```python
import torch

def _softmax(x, axis=-1):
    return torch.softmax(x, dim=axis)

def _gelu(x):
    return torch.nn.functional.gelu(x, approximate='tanh')

def _silu(x):
    return torch.nn.functional.silu(x)

def _sigmoid(x):
    return torch.sigmoid(x)

def _layernorm(x, axis=-1, eps=1e-05):
    m = x.mean(dim=axis, keepdim=True)
    v = x.var(dim=axis, keepdim=True, unbiased=False)
    return (x - m) / torch.sqrt(v + eps)

def _scatter_add(tgt, idx, src, axis=0):
    return tgt.clone().index_add_(axis, idx, src)

def _segment_sum(src, seg, n):
    out = torch.zeros((n,) + src.shape[1:], dtype=src.dtype)
    return out.index_add_(0, seg, src)

def _pad(x, pw):
    flat = tuple((v for pair in reversed(pw) for v in pair))
    return torch.nn.functional.pad(x, flat)
kernel_name = 'sequential_preLN__memory_aug_recurrent_mem_tr__glu_gated_swiglu__prompt'

def setup_inputs():

    _w = lambda a: (lambda t: t.to(torch.bfloat16) if t.is_floating_point() else t)(torch.as_tensor(a))

    def _A_setup():
        B, S, Dm = (1, 2048, 512)
        H, Dh = (32, 128)
        M, seg = (8, 32)
        seg = min(seg, S)
        S = S // seg * seg
        return {'x': _w((lambda *s: torch.randn(*s, dtype=torch.bfloat16) * 0.05)(B, S, Dm)), 'mem0': _w((lambda *s: torch.randn(*s, dtype=torch.bfloat16) * 0.2)(B, M, Dm)), 'Wq': _w((lambda *s: torch.randn(*s, dtype=torch.bfloat16) * 1.6)(Dm, H, Dh) * Dm ** (-0.5)), 'Wk': _w((lambda *s: torch.randn(*s, dtype=torch.bfloat16) * 1.6)(Dm, H, Dh) * Dm ** (-0.5)), 'Wv': _w((lambda *s: torch.randn(*s, dtype=torch.bfloat16) * 0.2)(Dm, H, Dh) * Dm ** (-0.5)), 'Wo': _w((lambda *s: torch.randn(*s, dtype=torch.bfloat16) * 0.2)(H, Dh, Dm) * (H * Dh) ** (-0.5)), 'seg_len': seg}
    _A_in = _A_setup()

    def _B_setup():
        B, S, D, F = (1, 2048, 512, 1376)
        return {'x': _w((lambda *s: torch.randn(*s, dtype=torch.bfloat16) * 0.05)(B, S, D)), 'w1': _w((lambda *s: torch.randn(*s, dtype=torch.bfloat16) * 0.2)(D, F) * (2.0 / D) ** 0.5), 'w3': _w((lambda *s: torch.randn(*s, dtype=torch.bfloat16) * 0.2)(D, F) * (2.0 / D) ** 0.5), 'w2': _w((lambda *s: torch.randn(*s, dtype=torch.bfloat16) * 0.2)(F, D) * (2.0 / F) ** 0.5)}
    _B_in = _B_setup()
    return {'A_x': _A_in['x'], 'A_mem0': _A_in['mem0'], 'A_Wq': _A_in['Wq'], 'A_Wk': _A_in['Wk'], 'A_Wv': _A_in['Wv'], 'A_Wo': _A_in['Wo'], 'A_seg_len': _A_in['seg_len'], 'B_x': _B_in['x'], 'B_w1': _B_in['w1'], 'B_w3': _B_in['w3'], 'B_w2': _B_in['w2']}

def reference(A_x, A_mem0, A_Wq, A_Wk, A_Wv, A_Wo, A_seg_len, B_x, B_w1, B_w3, B_w2):

    def _A_ref(x, mem0, Wq, Wk, Wv, Wo, seg_len):
        B, S, Dm = x.shape
        H, Dh = (Wq.shape[1], Wq.shape[2])
        M = mem0.shape[1]
        scale = Dh ** (-0.5)
        n_seg = S // seg_len
        L = M + seg_len
        idx = torch.arange(L)
        mask = (idx[:, None] < M) | (idx[:, None] >= idx[None, :])
        mem = mem0
        outs = []
        for s in range(n_seg):
            xs = x[:, s * seg_len:(s + 1) * seg_len, :].clone()
            h = torch.concatenate([mem, xs], axis=1)
            q = torch.einsum('btd,dhe->bhte', h, Wq)
            k = torch.einsum('btd,dhe->bhte', h, Wk)
            v = torch.einsum('btd,dhe->bhte', h, Wv)
            scores = torch.einsum('bhqe,bhke->bhqk', q, k) * scale
            scores = torch.where(mask[None, None], scores, -1000000000.0)
            p = _softmax(scores, axis=-1)
            o = torch.einsum('bhqk,bhke->bhqe', p, v)
            o = torch.einsum('bhte,hed->btd', o, Wo)
            mem = o[:, :M, :].clone()
            outs.append(o[:, M:, :])
        return torch.concatenate(outs, axis=1)

    def _B_ref(x, w1, w3, w2):
        gate = torch.einsum('bsd,df->bsf', x, w1)
        up = torch.einsum('bsd,df->bsf', x, w3)
        h = _silu(gate) * up
        out = torch.einsum('bsf,fd->bsd', h, w2)
        return out
    x = A_x
    h = x + _A_ref(_layernorm(x, axis=-1), A_mem0, A_Wq, A_Wk, A_Wv, A_Wo, A_seg_len)
    h2 = h + _B_ref(_layernorm(h, axis=-1), B_w1, B_w3, B_w2)
    return h2
```

```python
import re

_REG = re.compile(r'^(-|abs\(|\|)?([vas])(\d+)\)?\|?$')
_RNG = re.compile(r'^(-)?([vas])\[(\d+):(\d+)\]$')

def regs_of(op):
    op = op.strip()
    m = _RNG.match(op)
    if m:
        return [(m.group(2), i) for i in range(int(m.group(3)), int(m.group(4)) + 1)]
    m = _REG.match(op)
    if m:
        return [(m.group(2), int(m.group(3)))]
    if op == 'vcc':
        return [('s', 106), ('s', 107)]
    if op == 'vcc_lo':
        return [('s', 106)]
    if op == 'vcc_hi':
        return [('s', 107)]
    if op == 'exec':
        return [('s', 126), ('s', 127)]
    if op == 'exec_lo':
        return [('s', 126)]
    if op == 'exec_hi':
        return [('s', 127)]
    if op == 'm0':
        return [('s', 124)]
    return []

TRANS = ('v_exp_f32', 'v_log_f32', 'v_rcp_f32', 'v_rsq_f32', 'v_sqrt_f32', 'v_sin_f32', 'v_cos_f32',
         'v_rcp_iflag_f32')

class Ins:
    __slots__ = ('text', 'mn', 'cls', 'wr', 'rd', 'a', 'b', 'c', 'passes', 'states', 'dpp', 'label',
                 'target', 'storedata', 'lds_dma', 'isload', 'uncond', 'laneselect')
    def __init__(self, text):
        self.text = text
        self.mn = None; self.cls = 'other'; self.wr = set(); self.rd = set()
        self.a = set(); self.b = set(); self.c = set(); self.passes = 0; self.states = 1
        self.dpp = False; self.label = None; self.target = None; self.storedata = set()
        self.lds_dma = False; self.isload = False; self.uncond = False; self.laneselect = set()

def parse(text):
    ins = Ins(text)
    t = text.split(';')[0].strip()
    if not t or t.startswith('.'):
        ins.cls = 'dir'; ins.states = 0
        return ins
    if t.endswith(':'):
        ins.cls = 'label'; ins.label = t[:-1]; ins.states = 0
        return ins
    parts = t.split(None, 1)
    mn = parts[0]
    ins.mn = mn
    rest = parts[1] if len(parts) > 1 else ''
    rest = re.sub(r':\[([^\]]*)\]', lambda m: ':[' + m.group(1).replace(',', '/') + ']', rest)
    ops = [o.strip() for o in rest.split(',')]
    mods = ''
    if ops:
        last = ops[-1].split()
        if last:
            ops[-1] = last[0]
            mods = ' '.join(last[1:])
    R = [regs_of(o) for o in ops]
    allr = lambda idxs: set(r for i in idxs if i < len(R) for r in R[i])
    n = len(ops)
    if mn.startswith('v_mfma') or mn.startswith('v_smfmac'):
        ins.cls = 'mfma'
        ins.passes = 8 if '32x32' in mn else 4
        ins.wr = allr([0]); ins.a = allr([1]); ins.b = allr([2])
        if mn.startswith('v_smfmac'):
            ins.c = allr([0]); ins.b |= allr([3])
        else:
            ins.c = allr([3])
        ins.rd = ins.a | ins.b | ins.c
    elif mn.startswith('v_'):
        ins.cls = 'valu'
        base = mn.replace('_e32', '').replace('_e64', '').replace('_dpp', '').replace('_sdwa', '')
        if base in TRANS:
            ins.cls = 'trans'
        if '_dpp' in mn or 'row_' in mods or 'quad_perm' in mods:
            ins.dpp = True
        if base.startswith('v_permlane') or base == 'v_swap_b32':
            ins.cls = 'perm' if base.startswith('v_permlane') else 'valu'
            ins.wr = allr([0, 1]); ins.rd = allr([0, 1])
        elif base.startswith('v_cmp'):
            ins.wr = allr([0]); ins.rd = allr(range(1, n))
            if base.startswith('v_cmpx'):
                ins.wr |= {('s', 126), ('s', 127)}
        elif base in ('v_readfirstlane_b32', 'v_readlane_b32'):
            ins.cls = 'readlane'
            ins.wr = allr([0]); ins.rd = allr(range(1, n)); ins.laneselect = allr([2])
        elif base == 'v_writelane_b32':
            ins.wr = allr([0]); ins.rd = allr(range(0, n)); ins.laneselect = allr([2])
        elif base in ('v_add_co_u32', 'v_sub_co_u32', 'v_addc_co_u32', 'v_subb_co_u32', 'v_subrev_co_u32',
                      'v_div_scale_f32', 'v_mad_u64_u32'):
            ins.wr = allr([0, 1]); ins.rd = allr(range(2, n))
        else:
            ins.wr = allr([0]); ins.rd = allr(range(1, n))
            if base in ('v_fmac_f32', 'v_mac_f32', 'v_dot2c_f32_bf16', 'v_pk_fmac_f16') or ins.dpp:
                ins.rd |= allr([0])
            if base == 'v_cndmask_b32' and n == 3:
                ins.rd |= {('s', 106), ('s', 107)}
    elif mn.startswith('ds_'):
        ins.cls = 'ds'
        if mn.startswith('ds_read') or mn.startswith('ds_bpermute') or mn.startswith('ds_permute') or mn.startswith('ds_swizzle') or '_rtn' in mn:
            ins.wr = allr([0]); ins.rd = allr(range(1, n)); ins.isload = True
        else:
            ins.rd = allr(range(n))
    elif mn.startswith('global_') or mn.startswith('buffer_') or mn.startswith('flat_'):
        ins.cls = 'vmem'
        if mn in ('buffer_inv', 'buffer_wbl2'):
            pass
        elif 'load_lds' in mn or (' lds' in (' ' + mods)):
            ins.lds_dma = True
            ins.rd = allr(range(n)) | {('s', 124)}
        elif '_load' in mn:
            ins.wr = allr([0]); ins.rd = allr(range(1, n)); ins.isload = True
        elif '_store' in mn:
            ins.rd = allr(range(n))
            if 'x4' in mn or 'x3' in mn:
                ins.storedata = allr([1]) if mn.startswith('global') or mn.startswith('flat') else allr([0])
        elif 'atomic' in mn:
            ins.rd = allr(range(n))
            if 'sc0' in mods:
                ins.wr = allr([0]); ins.isload = True
    elif mn.startswith('s_'):
        ins.cls = 'salu'
        if mn == 's_nop':
            ins.states = int(ops[0], 0) + 1
        elif mn.startswith('s_cbranch') or mn == 's_branch':
            ins.target = ops[0]; ins.uncond = (mn == 's_branch')
        elif mn == 's_endpgm':
            ins.uncond = True
        elif mn.startswith('s_cmp') or mn.startswith('s_bitcmp') or mn in ('s_waitcnt', 's_barrier', 's_sleep', 's_setprio'):
            ins.rd = allr(range(n))
        else:
            ins.wr = allr([0]); ins.rd = allr(range(1, n))
            if 'saveexec' in mn:
                ins.wr |= {('s', 126), ('s', 127)}
    return ins

def isv(r): return r[0] in 'va'
VALUISH = ('valu', 'trans', 'perm', 'readlane')

def need(p, c):
    w = 0
    if p.cls in VALUISH:
        pv = set(r for r in p.wr if isv(r)); ps = set(r for r in p.wr if not isv(r))
        if c.cls == 'mfma' and pv & c.rd: w = max(w, 2)
        if c.cls == 'mfma' and ps & {('s', 126), ('s', 127)}: w = max(w, 4)
        if c.cls == 'vmem' and ps & c.rd: w = max(w, 5)
        if c.cls in VALUISH:
            if ps & c.rd: w = max(w, 2)
            if ps & c.laneselect: w = max(w, 4)
            if c.dpp and pv & c.rd: w = max(w, 2)
            if c.cls == 'perm' and pv & c.rd: w = max(w, 2)
            if c.cls == 'readlane' and pv & c.rd: w = max(w, 1)
            if p.cls == 'trans' and c.cls != 'trans' and pv & c.rd: w = max(w, 1)
            if ps & {('s', 126), ('s', 127)}:
                if c.dpp: w = max(w, 5)
                if c.cls in ('perm', 'readlane'): w = max(w, 4)
            if ('op_sel' in p.text or 'sdwa' in p.text) and pv & (c.rd | c.wr): w = max(w, 1)
    if p.cls == 'mfma':
        big = p.passes == 8
        if c.cls == 'mfma':
            if p.wr & (c.a | c.b): w = max(w, 12 if big else 8)
            if p.wr & c.c:
                if not (p.wr == c.c and p.passes == c.passes): w = max(w, 10 if big else 6)
            elif p.wr & c.wr:
                w = max(w, 10 if big else 6)
        elif c.cls in VALUISH:
            if p.wr & (c.rd | c.wr): w = max(w, 12 if big else 8)
            if p.c & c.wr: w = max(w, 7 if big else 3)
        elif c.cls in ('ds', 'vmem'):
            if p.wr & (c.rd | c.wr): w = max(w, 12 if big else 8)
    if p.cls == 'vmem' and p.storedata:
        if c.cls in VALUISH and p.storedata & c.wr: w = max(w, 2)
        elif p.storedata & c.wr: w = max(w, 1)
    if p.cls == 'salu' and ('s', 124) in p.wr and c.cls == 'vmem' and c.lds_dma: w = max(w, 1)
    return w

WIN = 20

def _fix_seq(hist, ins):
    el = 0; req = 0
    real = [p for p in hist if p.states]
    n = len(real)
    for idx in range(n - 1, -1, -1):
        p = real[idx]
        nd = need(p, ins)
        if nd > el:
            e2 = el
            if p.cls == 'mfma':
                t = 0; lm = 0; lp = p.passes
                for q in real[idx + 1:]:
                    t += 1
                    if q.cls == 'mfma':
                        t = max(t, lm + lp); lm = t; lp = q.passes
                    t += q.states - 1
                e2 = max(el, t)
            r = nd - e2
            if r > req: req = r
        el += p.states
        if el >= WIN: break
    return req

def mk_nops(n):
    out = []
    while n > 0:
        k = min(n, 16)
        out.append(parse('  s_nop %d' % (k - 1)))
        n -= k
    return out

def insert_nops(lines):
    ins = [parse(l) for l in lines]
    for _ in range(20):
        changed = False
        out = []
        hist = []
        for i in ins:
            if i.states and i.cls not in ('dir', 'label'):
                r = _fix_seq(hist, i)
                if r > 0:
                    nn = mk_nops(r); out += nn; hist += nn; changed = True
            out.append(i); hist.append(i)
            if i.uncond: hist = []
            if len(hist) > 64: hist = hist[-40:]
        ins = out
        lab = {x.label: k for k, x in enumerate(ins) if x.cls == 'label'}
        inserts = {}
        for k, x in enumerate(ins):
            if x.target is None: continue
            q = lab[x.target]
            h = []
            j = k
            while j >= 0 and len(h) < 40:
                if j != k and ins[j].uncond: break
                h.append(ins[j]); j -= 1
            h.reverse()
            el = 0; j = q
            while j < len(ins) and el < WIN:
                y = ins[j]
                if y.states and y.cls not in ('dir', 'label'):
                    r = _fix_seq(h, y)
                    if r > 0:
                        inserts[j] = max(inserts.get(j, 0), r)
                        break
                    el += y.states
                h.append(y)
                if y.uncond: break
                j += 1
        if inserts:
            changed = True
            out = []
            for k, x in enumerate(ins):
                if k in inserts: out += mk_nops(inserts[k])
                out.append(x)
            ins = out
        if not changed: break
    return [i.text for i in ins]

def auto_wait(lines):
    out = []; on = False; pend = []
    def wait_upto(i):
        n = len(pend) - 1 - i
        assert n <= 15
        out.append('  s_waitcnt lgkmcnt(%d)' % n)
        del pend[:i + 1]
    for l in lines:
        ls = l.strip()
        if ls == '.aw_on': on = True; pend = []; continue
        if ls == '.aw_off':
            assert not pend, "pending lds ops at aw_off"
            on = False; continue
        if not on: out.append(l); continue
        if ls == '.aw_writes':
            idx = [i for i, q in enumerate(pend) if q is None]
            if idx: wait_upto(idx[-1])
            continue
        if ls == '.aw_all':
            if pend: wait_upto(len(pend) - 1)
            continue
        ins = parse(l)
        if ins.mn == 's_waitcnt' and 'lgkmcnt(0)' in ls: pend = []
        touch = ins.rd | ins.wr
        idx = [i for i, q in enumerate(pend) if q and (q & touch)]
        if idx: wait_upto(idx[-1])
        if ins.cls == 'ds':
            if len(pend) >= 15: wait_upto(0)
            pend.append(set(ins.wr) if ins.isload else None)
        out.append(l)
    return out

class K:
    def __init__(self):
        self.lines = []
        self.nlab = 0
    def __call__(self, s, *a):
        for l in (s % a if a else s).split('\n'):
            l = l.strip()
            if l: self.lines.append(l if l.endswith(':') or l.startswith('.') else '  ' + l)
    def lab(self, p='L'):
        self.nlab += 1
        return '%s_%d' % (p, self.nlab)
    def L(self, name): self.lines.append(name + ':')
    def c(self, s): self.lines.append('  ; ' + s)

def v(i, n=1): return 'v%d' % i if n == 1 else 'v[%d:%d]' % (i, i + n - 1)
def a(i, n=1): return 'a%d' % i if n == 1 else 'a[%d:%d]' % (i, i + n - 1)
def s(i, n=1): return 's%d' % i if n == 1 else 's[%d:%d]' % (i, i + n - 1)
def u(i, n=1):
    if i < 256:
        assert i + n <= 256
        return v(i, n)
    return a(i - 256, n)
```

```python
import sys
from roles import *
def header_comments(launches):
    src = open('cdna_kernels/%s.s.ref' % NAME).read().split('\n')
    out = []
    for l in src:
        if l.startswith('; @launch') or l.startswith('; Override') or l.startswith('; grid=ceil'): continue
        if not l.startswith(';'): break
        out.append(l)
    for (n, g, lds) in launches:
        out.append('; @launch kernel=%s grid=(%d,1,1) block=(256,1,1) lds=%d' % (n, g, lds))
    return out

def std_prologue(k, nwg, srds):
    k("s_cmp_ge_u32 s2, %d", nwg)
    lend = k.lab("END")
    k("s_cbranch_scc1 %s", lend)
    for n, r in srds: load_srd(k, n, r)
    lane_wave(k)
    k("s_waitcnt lgkmcnt(0)")
    for n, r in srds: fin_srd(k, n, r)
    return lend

def build(stages, ticks=False, stamps=True, **opts):
    k = K()
    k.stamps = stamps; k.ticks = ticks
    for kk, vv in opts.items(): setattr(k, kk, vv)
    launches = []; descs = []
    def kern(name, nwg, lds, srds, body):
        kernel_header(k, name)
        lend = std_prologue(k, nwg, srds)
        body(k)
        k.L(lend)
        k("s_endpgm")
        launches.append((name, nwg, lds)); descs.append(kernel_desc(name))
    kern("ln1_kernel", 128, 0, [('x', S_X), ('ws', S_WS)], lambda k: role_ln1(k, 2))
    kern("qkv_kernel", 192, 131072, [('ws', S_WS)], lambda k: role_qkv(k, 2))
    for st in stages: st(kern)
    body = insert_nops(auto_wait(k.lines))
    txt = '\n'.join(header_comments(launches)) + '\n.amdgcn_target "amdgcn-amd-amdhsa--gfx950"\n.text\n' + '\n'.join(body) + \
        '\n.section .rodata,"a"\n' + ''.join('.p2align 6\n' + d for d in descs)
    return txt
if __name__ == '__main__':
    out = sys.argv[1] if len(sys.argv) > 1 else 'v1.s'
    open(out, 'w').write(build([]))
```

```python
import sys, json
from build_v1 import *
import chain2
from chain2 import *
def st_chain(force_slow=False):
    def f(kern):
        def body(k):
            elect(k, S_HEAD)
            l = k.lab("NC")
            k("s_cmp_ge_u32 s%d, 32", S_HEAD)
            k("s_cbranch_scc1 %s", l)
            role_chain(k, force_slow)
            k.L(l)
        kern("chain_kernel", 256, 163840, [('ws', S_WS), ('dbg', S_DBG)], body)
    return f
if __name__ == '__main__':
    vs = json.loads(sys.argv[1]) if len(sys.argv) > 1 else [{}]
    for i, o in enumerate(vs):
        open('c%d.s' % i, 'w').write(build([st_chain(o.get('slow', False))], ticks=o.get('ticks', False), copt=o))
    open('c.json', 'w').write(json.dumps(vs))
```

```python
from roles import *

L_KT = 131072
L_MB = L_KT + 16384
L_XB = L_MB + 8192
L_OB = L_XB + 4096
L_MISC = 163328
WQ, WK, WO = 256, 384, 128
aM = [2, 3, 4, 5]; aXW = 6; aXR = 7; aOW = 8; aWV = 9; aKT = 10; aL16 = 11
aH1S = 12; aH1L = 13; aH2S = 14; aVMS = 15; IDX = 16; T0_ = 17; T1_ = 18; T2_ = 19
SEL = 20
VTN = 24
MA = 32; AQ = 64; AK = 72; AV = 80; G = 88; VT = 120
S_HEAD = 5; S_LIM = 6; S_STEP = 7
S_WQ, S_WK, S_WV, S_WO = 12, 16, 20, 28
sH1S0, sH1S1, sH1L, sH2S, sH2L = 32, 33, 34, 35, 36
sKV = 37
sKTD = 38
sKM = 39; sVM = 40; sC = 41; sCNT = 42; sT = 43
CSC = 0.08838834764831845 * 1.4426950408889634

import struct
def f2u(x): return struct.unpack('<I', struct.pack('<f', x))[0]

def smf(k, acc, A, B):
    k("v_smfmac_f32_16x16x64_bf16 %s, %s, %s, %s", v(acc, 4), v(A, 4), u(B, 8), v(IDX))

def tick(k, i):
    if not getattr(k, 'ticks', False): return
    k("s_memtime s[80:81]")
    k("s_waitcnt lgkmcnt(0)")
    k("s_sub_u32 s82, s80, s83")
    k("s_mov_b32 s83, s80")
    k("s_add_u32 s%d, s%d, s82", 64 + i, 64 + i)
def tick_init(k):
    if not getattr(k, 'ticks', False): return
    for i in range(16): k("s_mov_b32 s%d, 0", 64 + i)
    k("s_memtime s[80:81]")
    k("s_waitcnt lgkmcnt(0)")
    k("s_mov_b32 s83, s80")
def tick_dump(k):
    if not getattr(k, 'ticks', False): return
    k("s_lshl_b32 s80, s%d, 2", S_HEAD)
    k("s_add_u32 s80, s80, s%d", S_WAVE)
    k("s_lshl_b32 s80, s80, 6")
    k("s_add_u32 s80, s80, 0x%x", TS + 8 * 65536)
    k("v_mov_b32 v33, 0")
    for i in range(16):
        k("v_mov_b32 v32, s%d", 64 + i)
        k("buffer_store_dword v32, v33, %s, s80 offen offset:%d", s(S_WS, 4), 4 * i)

def chain_setup(k):
    w = S_WAVE
    k.c("---- chain setup: addresses")
    k("v_lshlrev_b32 %s, 4, v1", v(aL16))
    for jp in range(4):
        k("s_xor_b32 s%d, s%d, %d", sT, w, jp)
        k("s_lshl_b32 s%d, s%d, 11", sT, sT)
        k("s_add_u32 s%d, s%d, %d", sT, sT, L_MB)
        k("v_add_u32 %s, s%d, %s", v(aM[jp]), sT, v(aL16))
    k("v_and_b32 v90, 15, v1")
    k("v_lshrrev_b32 v91, 4, v1")
    k("v_bfe_u32 v92, v1, 2, 2")
    k("v_and_b32 v93, 3, v1")
    k("v_lshl_add_u32 v94, v92, 3, v93")
    k("v_lshlrev_b32 v94, 5, v94")
    k("v_lshl_add_u32 v94, v91, 3, v94")
    k("s_lshl_b32 s%d, s%d, 10", sT, w)
    k("s_add_u32 s%d, s%d, %d", sT, sT, L_XB)
    k("v_add_u32 %s, s%d, v94", v(aXW), sT)
    k("v_lshl_add_u32 v94, v91, 3, v92")
    k("v_lshlrev_b32 v94, 5, v94")
    k("v_lshl_add_u32 v94, v93, 3, v94")
    k("v_add_u32 %s, %d, v94", v(aXR), L_XB)
    k("v_lshlrev_b32 v94, 5, v90")
    k("v_lshl_add_u32 v94, v91, 3, v94")
    k("s_lshl_b32 s%d, s%d, 9", sT, w)
    k("s_add_u32 s%d, s%d, %d", sT, sT, L_OB)
    k("v_add_u32 %s, s%d, v94", v(aOW), sT)
    k("s_lshl_b32 s%d, s%d, 15", sT, w)
    k("v_add_u32 %s, s%d, %s", v(aWV), sT, v(aL16))
    k("v_add_u32 %s, %d, %s", v(aKT), L_KT, v(aL16))
    k("v_lshl_add_u32 v94, v92, 2, v91")
    k("v_lshlrev_b32 v94, 11, v94")
    k("v_lshl_add_u32 %s, v93, 4, v94", v(aH1S))
    k("v_lshl_add_u32 v94, v91, 2, v93")
    k("v_lshlrev_b32 v94, 6, v94")
    k("v_lshl_add_u32 %s, v92, 4, v94", v(aH1L))
    k("v_and_b32 v94, 2, v1")
    k("v_bfe_u32 v95, v1, 2, 1")
    k("v_add_u32 v94, v94, v95")
    k("v_lshlrev_b32 v94, 4, v94")
    k("v_lshl_add_u32 v94, v91, 2, v94")
    k("v_and_b32 v95, 9, v1")
    k("v_cmp_eq_u32 vcc, 0, v95")
    k("v_mov_b32 v95, 0x40000000")
    k("v_cndmask_b32 %s, v95, v94, vcc", v(aH2S))
    k("v_lshlrev_b32 %s, 3, v1", v(aVMS))
    k("v_and_b32 v94, 2, v1")
    k("v_cmp_eq_u32 vcc, 0, v94")
    k("v_mov_b32 v94, 0x44444444")
    k("v_mov_b32 v95, 0xeeeeeeee")
    k("v_cndmask_b32 %s, v95, v94, vcc", v(IDX))
    k("v_mov_b32 v94, 0x3f80")
    k("v_mov_b32 v95, 0x3f800000")
    for d in range(4):
        k("v_cmp_eq_u32 vcc, %d, v90", 2 * d)
        k("v_cndmask_b32 %s, 0, v94, vcc", v(SEL + d))
        k("v_cmp_eq_u32 vcc, %d, v90", 2 * d + 1)
        k("v_cndmask_b32 %s, %s, v95, vcc", v(SEL + d), v(SEL + d))
    k("s_lshl_b32 s%d, s%d, 16", sT, w)
    k("s_lshl_b32 s%d, s%d, 6", sH1S0, S_HEAD)
    k("s_add_u32 s%d, s%d, s%d", sH1S0, sH1S0, sT)
    k("s_add_u32 s%d, s%d, 0x%x", sH1S0, sH1S0, HOP1)
    k("s_add_u32 s%d, s%d, 0x8000", sH1S1, sH1S0)
    k("s_lshl_b32 s%d, s%d, 2", sH1L, S_HEAD)
    k("s_add_u32 s%d, s%d, s%d", sH1L, sH1L, w)
    k("s_lshl_b32 s%d, s%d, 6", sH2S, sH1L)
    k("s_add_u32 s%d, s%d, 0x%x", sH2S, sH2S, HOP2)
    k("s_lshl_b32 s%d, s%d, 11", sH1L, sH1L)
    k("s_add_u32 s%d, s%d, 0x%x", sH1L, sH1L, HOP1)
    k("s_lshl_b32 s%d, s%d, 11", sH2L, w)
    k("s_add_u32 s%d, s%d, 0x%x", sH2L, sH2L, HOP2)
    k("s_lshl_b32 s%d, s%d, 13", sKV, S_HEAD)
    k("s_lshl_b32 s%d, s%d, 11", sT, w)
    k("s_add_u32 s%d, s%d, s%d", sKV, sKV, sT)
    k("s_add_u32 s%d, s%d, 0x%x", sKV, sKV, KIMG)
    k("s_add_u32 s%d, s%d, %d", sKTD, sT, L_KT)
    k("s_lshl_b32 s%d, s%d, 12", sKM, S_HEAD)
    k("s_lshl_b32 s%d, s%d, 10", sT, w)
    k("s_add_u32 s%d, s%d, s%d", sKM, sKM, sT)
    k("s_add_u32 s%d, s%d, 0x%x", sKM, sKM, KM)
    k("s_lshl_b32 s%d, s%d, 11", sVM, S_HEAD)
    k("s_lshl_b32 s%d, s%d, 9", sT, w)
    k("s_add_u32 s%d, s%d, s%d", sVM, sVM, sT)
    k("s_add_u32 s%d, s%d, 0x%x", sVM, sVM, VM)
    k("s_mov_b32 s%d, 0x%x", sC, f2u(CSC))
    k("s_mov_b32 s%d, 400000", S_LIM)

def chain_arm(k):
    k.c("---- arm hop buffers (both slots), sc1")
    for i in range(4): k("v_mov_b32 %s, -1", v(96 + i))
    for slot in range(2):
        k("s_add_u32 s%d, s%d, 0x%x", sT, sH1L, slot * 262144)
        k("buffer_store_dwordx4 v[96:99], %s, %s, s%d offen sc1", v(aL16), s(S_WS, 4), sT)
        k("buffer_store_dwordx4 v[96:99], %s, %s, s%d offen offset:1024 sc1", v(aL16), s(S_WS, 4), sT)
        k("s_add_u32 s%d, s%d, 0x%x", sT, sH2S, slot * 8192)
        k("buffer_store_dword v96, %s, %s, s%d offen sc1", v(aH2S), s(S_WS, 4), sT)

def chain_load_weights(k, mid=None):
    w = S_WAVE
    k.c("---- chain weight load")
    k("v_lshrrev_b32 v100, 2, v1")
    k("v_lshlrev_b32 v100, 13, v100")
    k("v_lshl_add_u32 v100, v93, 4, v100")
    k("v_lshlrev_b32 v101, 10, v91")
    k("v_lshl_add_u32 v101, v90, 4, v101")
    k("s_lshl_b32 s44, s%d, 15", w)
    k("v_lshlrev_b32 v102, 3, v92")
    k("v_add_u32 v102, v102, v91")
    k("v_lshlrev_b32 v102, 7, v102")
    k("v_lshl_add_u32 v102, v93, 4, v102")
    k("v_add_u32 v102, s44, v102")
    k("v_lshrrev_b32 v103, 1, v92")
    k("v_lshl_add_u32 v103, v91, 1, v103")
    k("v_lshlrev_b32 v103, 2, v103")
    k("v_and_b32 v104, 1, v92")
    k("v_add_u32 v103, v103, v104")
    k("v_lshlrev_b32 v103, 8, v103")
    k("v_lshl_add_u32 v103, v93, 3, v103")
    k("v_add_u32 v103, s44, v103")
    k("s_lshl_b32 s45, s%d, 8", S_HEAD)
    k("s_lshl_b32 s46, s%d, 6", w)
    k("s_add_u32 s45, s45, s46")
    k("s_lshl_b32 s46, s%d, 17", S_HEAD)
    k("s_lshl_b32 s47, s%d, 8", w)
    k("s_add_u32 s46, s46, s47")
    k("s_lshl_b32 s47, s%d, 1", w)
    order = [('q', S_WQ), ('k', S_WK), ('o', S_WO), ('v', S_WV)]
    def issue(i):
        m, srd = order[i // 8]; j = i % 8
        if m == 'o':
            k("s_add_u32 s48, s46, %d", j * 16 * 1024)
            stepb, va = 4096, 101
        else:
            k("s_xor_b32 s48, s47, %d", j)
            k("s_lshl_b32 s48, s48, 19")
            k("s_add_u32 s48, s48, s45")
            stepb, va = 16 * 8192, 100
        for q in range(4):
            k("s_add_u32 m0, s44, %d", j * 4096 + q * 1024)
            k("buffer_load_dwordx4 %s, %s, s48 offen lds", v(va), s(srd, 4))
            if q < 3: k("s_add_u32 s48, s48, %d", stepb)
    for i in range(8): issue(i)
    if mid: mid(k)
    i = 0
    while i < 32:
        m, srd = order[i // 8]; j = i % 8
        n = 2 if m == 'o' else 1
        issued = min(32, i + 8)
        k("s_waitcnt vmcnt(%d)", 4 * (issued - (i + n)))
        if m in 'qk':
            base = WQ if m == 'q' else WK
            for t in range(2):
                for y in range(4):
                    k("ds_read_b64_tr_b16 %s, v102 offset:%d", u(base + (t * 8 + j) * 8 + 2 * y, 2),
                      j * 4096 + (8 * (y >> 1) + (y & 1)) * 64 + 8 * t)
            k("s_waitcnt lgkmcnt(0)")
        elif m == 'o':
            wp = j // 2; kbo = wp >> 1
            for nt in range(8):
                for yl in range(2):
                    y = 2 * (wp & 1) + yl
                    k("ds_read_b64_tr_b16 %s, v103 offset:%d", u(WO + (nt * 2 + kbo) * 8 + 2 * y, 2),
                      (32 * wp + 2 * yl) * 256 + nt * 32)
                if nt % 4 == 3: k("s_waitcnt lgkmcnt(0)")
        else:
            for t in range(2):
                for y in range(4):
                    k("ds_read_b64_tr_b16 %s, v102 offset:%d", v(64 + t * 8 + 2 * y, 2),
                      j * 4096 + (8 * (y >> 1) + (y & 1)) * 64 + 8 * t)
            k("s_waitcnt lgkmcnt(0)")
            for q in range(4):
                k("ds_write_b128 %s, %s offset:%d", v(aWV), v(64 + 4 * q, 4), j * 4096 + q * 1024)
            k("s_waitcnt lgkmcnt(0)")
        for x in range(n):
            if i + x + 8 < 32: issue(i + x + 8)
        i += n

def load_mem0(k, S_M0):
    k("v_lshrrev_b32 v104, 1, v90")
    k("v_and_b32 v104, 6, v104")
    k("v_and_b32 v105, 1, v1")
    k("v_add_u32 v104, v104, v105")
    k("v_lshlrev_b32 v104, 10, v104")
    k("v_and_b32 v105, 2, v1")
    k("v_lshl_add_u32 v104, v105, 5, v104")
    k("v_lshl_add_u32 v104, v91, 3, v104")
    k("s_lshl_b32 s%d, s%d, 8", sT, S_WAVE)
    for j in range(2):
        k("buffer_load_dwordx2 %s, v104, %s, s%d offen offset:%d", v(108 + 4 * j, 2), s(S_M0, 4), sT, j * 128)
        k("buffer_load_dwordx2 %s, v104, %s, s%d offen offset:%d", v(110 + 4 * j, 2), s(S_M0, 4), sT, j * 128 + 32)
    k("s_waitcnt vmcnt(0)")
    k("s_mov_b32 s44, 0x05040100")
    k("s_mov_b32 s45, 0x07060302")
    for j in range(2):
        for h in range(2):
            k("v_perm_b32 %s, %s, %s, s44", v(MA + 4 * j + 2 * h), v(110 + 4 * j + h), v(108 + 4 * j + h))
            k("v_perm_b32 %s, %s, %s, s45", v(MA + 4 * j + 2 * h + 1), v(110 + 4 * j + h), v(108 + 4 * j + h))

def kv_prefetch(k, parts):
    if getattr(k, 'nopf', False) and len(parts) == 1: return
    for p in parts:
        if p == 0:
            k("s_mov_b32 m0, s%d", sKTD)
            k("buffer_load_dwordx4 %s, %s, s%d offen sc1 lds", v(aL16), s(S_WS, 4), sKV)
        if p == 1:
            k("buffer_load_dwordx4 %s, %s, s%d offen offset:1024 sc1 lds", v(aL16), s(S_WS, 4), sKV)
            k("s_add_u32 s%d, s%d, 0x%x", sT, sKV, VIMG - KIMG)
        if p == 2:
            k("buffer_load_dwordx4 %s, %s, %s, s%d offen sc1", v(VTN, 4), v(aL16), s(S_WS, 4), sT)
        if p == 3:
            k("buffer_load_dwordx4 %s, %s, %s, s%d offen offset:1024 sc1", v(VTN + 4, 4), v(aL16), s(S_WS, 4), sT)
            k("s_add_u32 s%d, s%d, 0x40000", sKV, sKV)
            k("s_xor_b32 s%d, s%d, 0x%x", sKTD, sKTD, L_KT ^ (L_KT + 8192))

def wv_read(k, n):
    j, t = n >> 1, n & 1
    for h in range(2):
        k("ds_read_b128 %s, %s offset:%d", v(G + (n & 3) * 8 + 4 * h, 4), v(aWV), j * 4096 + t * 2048 + h * 1024)

def poll(k, buf, va, soff, tag, filler=None):
    def issue():
        k("buffer_load_dwordx4 %s, %s, %s, s%d offen sc1", v(buf, 4), v(va), s(S_WS, 4), soff)
        k("buffer_load_dwordx4 %s, %s, %s, s%d offen offset:1024 sc1", v(buf + 4, 4), v(va), s(S_WS, 4), soff)
    lp = k.lab(tag + "p"); ok = k.lab(tag + "ok")
    k("s_mov_b32 s%d, 0", sCNT)
    issue()
    if filler: filler(k)
    k.L(lp)
    k("s_waitcnt vmcnt(0)")
    k("v_max3_u32 %s, %s, %s, %s", v(T0_), v(buf), v(buf + 1), v(buf + 2))
    k("v_max3_u32 %s, %s, %s, %s", v(T1_), v(buf + 3), v(buf + 4), v(buf + 5))
    k("v_max3_u32 %s, %s, %s, %s", v(T0_), v(buf + 6), v(buf + 7), v(T0_))
    k("v_max_u32 %s, %s, %s", v(T0_), v(T0_), v(T1_))
    k("v_cmp_eq_u32 vcc, -1, %s", v(T0_))
    k("s_cbranch_vccz %s", ok)
    issue()
    k("s_add_u32 s%d, s%d, 1", sCNT, sCNT)
    k("s_cmp_lt_u32 s%d, s%d", sCNT, S_LIM)
    k("s_cbranch_scc1 %s", lp)
    k("s_mov_b32 s%d, 0", S_LIM)
    k("s_waitcnt vmcnt(0)")
    k.L(ok)

def xmax(k, r, tmp):
    k("v_mov_b32 %s, %s", v(tmp), v(r))
    k("v_permlane32_swap_b32 %s, %s", v(r), v(tmp))
    k("v_max_f32 %s, %s, %s", v(r), v(r), v(tmp))
    k("v_mov_b32 %s, %s", v(tmp), v(r))
    k("v_permlane16_swap_b32 %s, %s", v(r), v(tmp))
    k("v_max_f32 %s, %s, %s", v(r), v(r), v(tmp))

def chain_loop(k, stf, tag, kv_wait=None, km_publish=None):
    lp = k.lab(tag + "step"); lend = k.lab(tag + "end")
    QKs = lambda j: [smf(k, AQ, MA + 4 * j, WQ + j * 8), smf(k, AQ + 4, MA + 4 * j, WQ + (8 + j) * 8),
                     smf(k, AK, MA + 4 * j, WK + j * 8), smf(k, AK + 4, MA + 4 * j, WK + (8 + j) * 8)]
    Vs = lambda n: smf(k, AV + 4 * (n & 1), MA + 4 * (n >> 1), G + (n & 3) * 8)
    k.L(lp)
    k.c("P0: own m blocks valid in MA[0:8]; Wv n=0..3 staged; acc zero")
    k("ds_write_b128 %s, %s", v(aM[0]), v(MA, 4))
    k("ds_write_b128 %s, %s offset:1024", v(aM[0]), v(MA + 4, 4))
    QKs(0)
    k("s_waitcnt lgkmcnt(0)")
    k("s_barrier")
    tick(k, 0)
    for j in range(2, 8):
        k("ds_read_b128 %s, %s offset:%d", v(MA + 4 * j, 4), v(aM[j >> 1]), (j & 1) * 1024)
    QKs(1)
    Vs(0); Vs(1)
    wv_read(k, 4); wv_read(k, 5)
    if kv_wait: kv_wait(k)
    k("s_waitcnt lgkmcnt(9)"); QKs(2)
    kv_prefetch(k, [0])
    k("s_waitcnt lgkmcnt(8)"); QKs(3)
    kv_prefetch(k, [1])
    Vs(2); Vs(3)
    wv_read(k, 6); wv_read(k, 7)
    k("s_waitcnt lgkmcnt(11)"); QKs(4)
    kv_prefetch(k, [2])
    k("s_waitcnt lgkmcnt(10)"); QKs(5)
    kv_prefetch(k, [3])
    k("s_waitcnt lgkmcnt(9)"); QKs(6)
    k("s_waitcnt lgkmcnt(8)"); QKs(7)
    k("s_waitcnt lgkmcnt(4)")
    Vs(4); Vs(5)
    for t in range(2):
        k("v_add_f32 %s, %s, %s", v(AQ + 4 * t), v(AQ + 4 * t), v(AQ + 4 * t + 2))
        k("v_add_f32 %s, %s, %s", v(AQ + 4 * t + 1), v(AQ + 4 * t + 1), v(AQ + 4 * t + 3))
        k("v_cvt_pk_bf16_f32 %s, %s, %s", v(AQ + 4 * t), v(AQ + 4 * t), v(AQ + 4 * t + 1))
    k("ds_write2_b32 %s, %s, %s offset0:0 offset1:32", v(aXW), v(AQ), v(AQ + 4))
    for t in range(2):
        k("v_add_f32 %s, %s, %s", v(AK + 4 * t), v(AK + 4 * t), v(AK + 4 * t + 2))
        k("v_add_f32 %s, %s, %s", v(AK + 4 * t + 1), v(AK + 4 * t + 1), v(AK + 4 * t + 3))
        k("v_cvt_pk_bf16_f32 %s, %s, %s", v(AK + 4 * t), v(AK + 4 * t), v(AK + 4 * t + 1))
    k("ds_write2_b32 %s, %s, %s offset0:1 offset1:33", v(aXW), v(AK), v(AK + 4))
    wv_read(k, 8); wv_read(k, 9)
    k("s_waitcnt lgkmcnt(6)")
    Vs(6); Vs(7)
    k("s_waitcnt lgkmcnt(4)")
    tick(k, 1)
    k("s_barrier")
    tick(k, 2)
    X = AQ
    for kb in range(4):
        for y in range(2):
            k("ds_read_b64_tr_b16 %s, %s offset:%d", v(X + 4 * kb + 2 * y, 2), v(aXR), kb * 1024 + y * 128)
    k("s_waitcnt lgkmcnt(8)")
    Vs(8); Vs(9)
    k("s_waitcnt lgkmcnt(4)")
    wv_read(k, 10); wv_read(k, 11)
    for f in range(4):
        k("ds_read_b128 %s, %s offset:%d", v(MA + 4 * f, 4), v(aKT), f * 1024)
    TT0, TT1, TT2 = VT - 12, VT - 8, VT - 4
    k("s_waitcnt lgkmcnt(8)")
    wv_read(k, 12); wv_read(k, 13)
    k("ds_read_b128 %s, %s offset:%d", v(MA + 16, 4), v(aKT), 4 * 1024)
    l4 = [k.lab(tag + "km") for _ in range(4)]; lj = k.lab(tag + "kmj")
    for ww in range(3):
        k("s_cmp_eq_u32 s%d, %d", S_WAVE, ww + 1)
        k("s_cbranch_scc1 %s", l4[ww + 1])
    for ww in range(4):
        if ww: k.L(l4[ww])
        if not getattr(k, 'nokm', False): k("buffer_store_dwordx4 %s, %s, %s, s%d offen sc1", v(X + 4 * ww, 4), v(aL16), s(S_WS, 4), sKM)
        if ww < 3: k("s_branch %s", lj)
    k.L(lj)
    k("s_waitcnt lgkmcnt(9)")
    Vs(10); Vs(11)
    wv_read(k, 14); wv_read(k, 15)
    k("ds_read_b128 %s, %s offset:%d", v(MA + 20, 4), v(aKT), 5 * 1024)
    k("s_waitcnt lgkmcnt(6)")
    Vs(12); Vs(13)
    k("ds_read_b128 %s, %s offset:%d", v(MA + 24, 4), v(aKT), 6 * 1024)
    k("s_waitcnt lgkmcnt(2)")
    Vs(14); Vs(15)
    k("ds_read_b128 %s, %s offset:%d", v(MA + 28, 4), v(aKT), 7 * 1024)
    TT0, TT1, TT2 = G, G + 4, G + 8
    mf = lambda d, A, B, first: k("v_mfma_f32_16x16x32_bf16 %s, %s, %s, %s", v(d, 4), v(A, 4), v(B, 4), "0" if first else v(d, 4))
    for kb in range(4):
        mf(TT0, X + 4 * kb, X + 4 * kb, kb == 0)
        mf(TT1, MA + 4 * kb, X + 4 * kb, kb == 0)
    VMR = G + 12
    for t in range(2):
        k("v_add_f32 %s, %s, %s", v(AV + 4 * t), v(AV + 4 * t), v(AV + 4 * t + 2))
        k("v_add_f32 %s, %s, %s", v(AV + 4 * t + 1), v(AV + 4 * t + 1), v(AV + 4 * t + 3))
        k("v_cvt_pk_bf16_f32 %s, %s, %s", v(VMR + t), v(AV + 4 * t), v(AV + 4 * t + 1))
    k("s_waitcnt lgkmcnt(0)")
    for kb in range(4):
        mf(TT2, MA + 16 + 4 * kb, X + 4 * kb, kb == 0)
    if not getattr(k, 'nokm', False): k("buffer_store_dwordx2 %s, %s, %s, s%d offen sc1", v(VMR, 2), v(aVMS), s(S_WS, 4), sVM)
    k("s_add_u32 s%d, s%d, 0x20000", sKM, sKM)
    k("s_add_u32 s%d, s%d, 0x10000", sVM, sVM)
    k("s_cmp_eq_u32 s%d, 63", S_STEP)
    k("s_cbranch_scc1 %s", lend)
    tick(k, 3)
    PT = G + 16; PMA = G + 20; PMB = G + 22; ONES = G + 24; LA = G + 28; MX = G + 14; TMP = G + 15
    for i in range(4): k("v_mov_b32 %s, 0x3f803f80", v(ONES + i))
    k("v_mov_b32 %s, 0", v(PMA + 1))
    k("v_mov_b32 %s, 0", v(PMB))
    k("v_max3_f32 %s, %s, %s, %s", v(MX), v(TT0 + 2), v(TT0 + 3), v(TT1))
    k("v_max3_f32 %s, %s, %s, %s", v(TMP), v(TT1 + 1), v(TT1 + 2), v(TT1 + 3))
    k("v_max_f32 %s, %s, %s", v(MX), v(MX), v(TMP))
    k("v_max3_f32 %s, %s, %s, %s", v(MX), v(TT2), v(TT2 + 1), v(MX))
    k("v_max3_f32 %s, %s, %s, %s", v(MX), v(TT2 + 2), v(TT2 + 3), v(MX))
    xmax(k, MX, TMP)
    k("v_mul_f32 %s, s%d, %s", v(MX), sC, v(MX))
    vals = [TT1 + i for i in range(4)] + [TT2 + i for i in range(4)] + [TT0 + 2, TT0 + 3]
    for r in vals: k("v_fma_f32 %s, %s, s%d, -%s", v(r), v(r), sC, v(MX))
    for r in vals: k("v_exp_f32 %s, %s", v(r), v(r))
    for i in range(4):
        k("v_cvt_pk_bf16_f32 %s, %s, %s", v(PT + i), v(TT1 + 2 * i), v(TT1 + 2 * i + 1))
    k("v_cvt_pk_bf16_f32 %s, %s, %s", v(PMA), v(TT0 + 2), v(TT0 + 3))
    k("v_cvt_pk_bf16_f32 %s, %s, %s", v(PMB + 1), v(TT0 + 2), v(TT0 + 3))
    O = AV
    mf(LA, PT, ONES, True)
    mf(O, PT, VT, True)
    mf(O + 4, PT, VT + 4, True)
    m16 = lambda d, A, B: k("v_mfma_f32_16x16x16_bf16 %s, %s, %s, %s", v(d, 4), v(A, 2), v(B, 2), v(d, 4))
    m16(LA, PMA, ONES)
    m16(O, PMA, VMR)
    m16(O + 4, PMB, VMR)
    for i in range(8): k("v_mov_b32 %s, 0", v(MA + i))
    k("v_rcp_f32 %s, %s", v(LA), v(LA))
    k("v_rcp_f32 %s, %s", v(LA + 1), v(LA + 1))
    for t in range(2):
        k("v_mul_f32 %s, %s, %s", v(O + 4 * t), v(O + 4 * t), v(LA))
        k("v_mul_f32 %s, %s, %s", v(O + 4 * t + 1), v(O + 4 * t + 1), v(LA + 1))
        k("v_cvt_pk_bf16_f32 %s, %s, %s", v(MX + t), v(O + 4 * t), v(O + 4 * t + 1))
    k("ds_write_b64 %s, %s", v(aOW), v(MX, 2))
    for i in range(8, 20): k("v_mov_b32 %s, 0", v(MA + i))
    k("s_waitcnt lgkmcnt(0)")
    tick(k, 4)
    k("s_barrier")
    tick(k, 5)
    OA = AQ
    for kbo in range(2):
        for y in range(2):
            k("ds_read_b64_tr_b16 %s, %s offset:%d", v(OA + 4 * kbo + 2 * y, 2), v(aXR), (L_OB - L_XB) + kbo * 1024 + y * 128)
    for i in range(20, 32): k("v_mov_b32 %s, 0", v(MA + i))
    k("s_waitcnt lgkmcnt(2)")
    for nt in range(4): smf(k, MA + 4 * nt, OA, WO + (nt * 2) * 8)
    k("s_waitcnt lgkmcnt(0)")
    for nt in range(4): smf(k, MA + 4 * nt, OA + 4, WO + (nt * 2 + 1) * 8)
    PK = AK
    def fold(sx, interleave):
        ops = []
        for tt in range(4):
            r = MA + 4 * (4 * sx + tt)
            ops.append("v_add_f32 %s, %s, %s" % (v(r), v(r), v(r + 2)))
            ops.append("v_add_f32 %s, %s, %s" % (v(r + 1), v(r + 1), v(r + 3)))
        for b in range(2):
            for hh in range(2):
                r = MA + 4 * (4 * sx + 2 * hh)
                ops.append("v_cvt_pk_bf16_f32 %s, %s, %s" % (v(PK + 4 * sx + 2 * b + hh), v(r + b), v(r + 4 + b)))
        ops.append("buffer_store_dwordx4 %s, %s, %s, s%d offen %s" % (v(PK + 4 * sx, 4), v(aH1S), s(S_WS, 4), sH1S1 if sx else sH1S0, stf))
        return ops
    ops = fold(0, None)
    seq = [(nt, kbo) for kbo in range(2) for nt in range(4, 8)]
    for qi, (nt, kbo) in enumerate(seq):
        smf(k, MA + 4 * nt, OA + 4 * kbo, WO + (nt * 2 + kbo) * 8)
        if qi >= 1:
            for _ in range(2):
                if ops: k(ops.pop(0))
    for o in ops: k(o)
    for o in fold(1, None): k(o)
    tick(k, 6)
    H1 = AQ
    def fill1(k):
        for n in range(4): wv_read(k, n)
        for i in range(8): k("v_mov_b32 %s, 0", v(AV + i))
    poll(k, H1, aH1L, sH1L, tag + "h1", fill1)
    tick(k, 7)
    if getattr(k, 'ticks', False): k("s_add_u32 s74, s74, s%d", sCNT)
    RD = MA + 8
    mf(RD, H1, SEL, True)
    mf(RD, H1 + 4, SEL, False)
    k("v_add_f32 %s, %s, %s", v(RD), v(RD), v(RD + 1))
    k("v_add_f32 %s, %s, %s", v(RD + 2), v(RD + 2), v(RD + 3))
    k("v_add_f32 %s, %s, %s", v(RD), v(RD), v(RD + 2))
    k("v_mov_b32_dpp %s, %s quad_perm:[1,0,3,2] row_mask:0xf bank_mask:0xf", v(RD + 1), v(RD))
    k("v_cvt_pk_bf16_f32 %s, %s, %s", v(RD), v(RD), v(RD + 1))
    k("s_xor_b32 s%d, s%d, 0x2000", sT, sH2S)
    k("buffer_store_dword %s, %s, %s, s%d offen %s", v(RD), v(aH2S), s(S_WS, 4), sT, stf)
    tick(k, 8)
    for i in range(4): k("v_mov_b32 %s, -1", v(MA + 12 + i))
    k("buffer_store_dwordx4 %s, %s, %s, s%d offen %s", v(MA + 12, 4), v(aL16), s(S_WS, 4), sH1L, stf)
    k("buffer_store_dwordx4 %s, %s, %s, s%d offen offset:1024 %s", v(MA + 12, 4), v(aL16), s(S_WS, 4), sH1L, stf)
    k("buffer_store_dword %s, %s, %s, s%d offen %s", v(MA + 12), v(aH2S), s(S_WS, 4), sH2S, stf)
    k("s_mov_b32 s%d, s%d", sH2S, sT)
    for r in (sH1S0, sH1S1, sH1L): k("s_xor_b32 s%d, s%d, 0x40000", r, r)
    k("s_xor_b32 s%d, s%d, 0x2000", sH2L, sH2L)
    k("v_xor_b32 %s, 0x%x, %s", v(aKT), L_KT ^ (L_KT + 8192), v(aKT))
    def fill2(k):
        for i in range(16): k("v_mov_b32 %s, 0", v(AQ + i))
        for i in range(8): k("v_mov_b32 %s, %s", v(VT + i), v(VTN + i))
        k("s_add_u32 s%d, s%d, 1", S_STEP, S_STEP)
        if km_publish: km_publish(k)
    poll(k, MA, aL16, sH2L, tag + "h2", fill2)
    k("s_waitcnt lgkmcnt(0)")
    tick(k, 9)
    if getattr(k, 'ticks', False): k("s_add_u32 s75, s75, s%d", sCNT)
    k("s_branch %s", lp)
    k.L(lend)

def elect(k, S_ROLE):
    lw = k.lab("ELw"); lp = k.lab("ELp"); ok = k.lab("ELok")
    k("s_getreg_b32 s45, hwreg(HW_REG_XCC_ID)")
    k("s_and_b32 s45, s45, 7")
    k("s_cmp_lg_u32 s%d, 0", S_WAVE)
    k("s_cbranch_scc1 %s", lw)
    k("s_mov_b32 s46, s45")
    k("s_mov_b32 s47, 8")
    k("s_mov_b64 exec, 1")
    k.L(lp)
    k("s_lshl_b32 s48, s46, 2")
    k("s_add_u32 s48, s48, 128")
    k("s_cmp_eq_u32 s46, 0")
    k("s_cselect_b32 s48, 0, s48")
    k("v_mov_b32 v2, 0")
    k("v_mov_b32 v3, 1")
    k("buffer_atomic_add v3, v2, %s, s48 offen sc0 sc1", s(S_DBG, 4))
    k("s_waitcnt vmcnt(0)")
    k("v_readfirstlane_b32 s49, v3")
    k("s_cmp_lt_u32 s49, 32")
    k("s_cbranch_scc1 %s", ok)
    k("s_sub_u32 s47, s47, 1")
    k("s_mov_b32 s46, s47")
    k("s_cmp_lt_u32 s47, 8")
    k("s_cbranch_scc1 %s", lp)
    k("s_mov_b32 s46, 1000")
    k.L(ok)
    k("s_lshl_b32 s46, s46, 5")
    k("s_add_u32 s46, s46, s49")
    k("v_mov_b32 v3, s46")
    k("v_mov_b32 v2, %d", L_MISC)
    k("ds_write_b32 v2, v3")
    k("s_mov_b64 exec, -1")
    k("s_waitcnt lgkmcnt(0)")
    k.L(lw)
    k("s_barrier")
    k("v_mov_b32 v2, %d", L_MISC)
    k("ds_read_b32 v3, v2")
    k("s_waitcnt lgkmcnt(0)")
    k("v_readfirstlane_b32 s%d, v3", S_ROLE)

def role_chain(k, force_slow=False):
    k("s_mov_b32 s54, s45")
    stamp(k, 2, 0, wgreg=S_HEAD, vt=120)
    for n, r in (('Wq', S_WQ), ('Wk', S_WK), ('Wv', S_WV), ('Wo', S_WO), ('mem0', 56)): load_srd(k, n, r)
    chain_setup(k)
    k("s_waitcnt lgkmcnt(0)")
    for n, r in (('Wq', S_WQ), ('Wk', S_WK), ('Wv', S_WV), ('Wo', S_WO), ('mem0', 56)): fin_srd(k, n, r)
    chain_arm(k)
    load_mem0(k, 56)
    k("s_barrier")
    l1 = k.lab("CHa")
    k("s_cmp_lg_u32 s%d, 0", S_WAVE)
    k("s_cbranch_scc1 %s", l1)
    k("s_cmp_eq_u32 s54, 0")
    k("s_cselect_b32 s44, 1, 0x10001")
    k("v_mov_b32 v106, s44")
    k("v_mov_b32 v107, 0")
    k("s_mov_b64 exec, 1")
    k("buffer_atomic_add v106, v107, %s, 0 offen offset:64 sc1", s(S_DBG, 4))
    k("s_mov_b64 exec, -1")
    k.L(l1)
    chain_load_weights(k)
    stamp(k, 2, 1, wgreg=S_HEAD, vt=120)
    kv_prefetch(k, [0, 1, 2, 3])
    for n in range(4): wv_read(k, n)
    for i in range(24): k("v_mov_b32 %s, 0", v(AQ + i))
    k("s_mov_b32 s%d, 0", S_STEP)
    lp = k.lab("CHs"); ok = k.lab("CHok")
    k("v_mov_b32 %s, 0", v(T1_))
    k("s_mov_b32 s%d, 0", sCNT)
    k.L(lp)
    k("buffer_load_dword %s, %s, %s, 0 offen offset:64 sc1", v(T0_), v(T1_), s(S_DBG, 4))
    k("s_waitcnt vmcnt(0)")
    k("v_readfirstlane_b32 s44, %s", v(T0_))
    k("s_and_b32 s45, s44, 0xffff")
    k("s_cmp_eq_u32 s45, 32")
    k("s_cbranch_scc1 %s", ok)
    k("s_add_u32 s%d, s%d, 1", sCNT, sCNT)
    k("s_cmp_lt_u32 s%d, s%d", sCNT, S_LIM)
    k("s_cbranch_scc1 %s", lp)
    k("s_mov_b32 s%d, 0", S_LIM)
    k.L(ok)
    for i in range(8): k("v_mov_b32 %s, %s", v(VT + i), v(VTN + i))
    k("s_waitcnt lgkmcnt(0)")
    stamp(k, 2, 2, wgreg=S_HEAD, vt=56)
    tick_init(k)
    lslow = k.lab("CHslow"); ldone = k.lab("CHdone")
    k("s_lshr_b32 s44, s44, 16")
    k("s_cmp_lg_u32 s44, %d", 0 if not force_slow else 77)
    k("s_cbranch_scc1 %s", lslow)
    chain_loop(k, "", "F")
    k("s_branch %s", ldone)
    k.L(lslow)
    chain_loop(k, "sc1", "S")
    k.L(ldone)
    tick_dump(k)
    k("s_waitcnt vmcnt(0)")
    stamp(k, 2, 3, wgreg=S_HEAD, vt=56)
```

```python
from roles import *
import struct
def f2u(x): return struct.unpack('<I', struct.pack('<f', x))[0]

L_KT = 131072
L_MB = L_KT + 16384
L_XB = L_MB + 8192
L_OB = L_XB + 4096
L_MISC = L_OB + 2048
WQ, WK, WO = 256, 384, 128
aM = [2, 3, 4, 5]; aXW = 6; aXR = 7; aOW = 8; aWV = 9; aKT = 10; aL16 = 11
aH1S = 12; aH1L = 13; aH2S = 14; IDX = 15
KVM = 16
SEL = 20
VTN = 24
MA = 32; AQ = 64; AK = 72; AV = 80; G = 88; VT = 120
S_HEAD = 5; S_LIM = 6; S_STEP = 7
S_WQ, S_WK, S_WV, S_WO = 12, 16, 20, 28
sH1S0, sH1S1, sH1L, sH2S, sH2L = 32, 33, 34, 35, 36
sKV = 37; sKTD = 38; sKM = 39; sVIM = 40; sC = 41; sCNT = 42; sT = 43
sH1R = 50; sH2R = 51; sMASK = 52
CSC = 0.08838834764831845 * 1.4426950408889634
VORD = [0, 2, 4, 6, 1, 3, 5, 7]

from chain import elect, xmax
def tick(k, i):
    if getattr(k, 'ticks', False): k("s_memtime s[%d:%d]", 64 + 2 * i, 65 + 2 * i)
def tick_init(k):
    if not getattr(k, 'ticks', False): return
    for i in range(96, 100): k("s_mov_b32 s%d, 0", i)
def tick_step_end(k):
    if not getattr(k, 'ticks', False): return
    l = k.lab("tse")
    k("s_cmp_lg_u32 s%d, %d", S_STEP, k.copt.get('tstep', 41))
    k("s_cbranch_scc1 %s", l)
    k("s_waitcnt lgkmcnt(0)")
    k("s_lshl_b32 s100, s%d, 2", S_HEAD)
    k("s_add_u32 s100, s100, s%d", S_WAVE)
    k("s_lshl_b32 s100, s100, 7")
    k("s_add_u32 s100, s100, 0x%x", TS + 8 * 65536)
    k("v_mov_b32 v61, 0")
    for i in range(16):
        k("v_mov_b32 v60, s%d", 64 + 2 * i)
        k("buffer_store_dword v60, v61, %s, s100 offen offset:%d", s(S_WS, 4), 4 * i)
    k.L(l)
def tick_dump(k):
    if not getattr(k, 'ticks', False): return
    k("v_mov_b32 v61, 0")
    for i in range(4):
        k("v_mov_b32 v60, s%d", 96 + i)
        k("buffer_store_dword v60, v61, %s, s100 offen offset:%d", s(S_WS, 4), 64 + 4 * i)

def SMF(acc, A, B): return "v_smfmac_f32_16x16x64_bf16 %s, %s, %s, %s" % (v(acc, 4), v(A, 4), u(B, 8), v(IDX))
def MF(d, A, B, first): return "v_mfma_f32_16x16x32_bf16 %s, %s, %s, %s" % (v(d, 4), v(A, 4), v(B, 4), "0" if first else v(d, 4))
def M16(d, A, B): return "v_mfma_f32_16x16x16_bf16 %s, %s, %s, %s" % (v(d, 4), v(A, 2), v(B, 2), v(d, 4))

def chain_setup(k):
    w = S_WAVE
    k.c("---- chain setup: addresses")
    k("v_lshlrev_b32 %s, 4, v1", v(aL16))
    for jp in range(4):
        k("s_xor_b32 s%d, s%d, %d", sT, w, jp)
        k("s_lshl_b32 s%d, s%d, 11", sT, sT)
        k("s_add_u32 s%d, s%d, %d", sT, sT, L_MB)
        k("v_add_u32 %s, s%d, %s", v(aM[jp]), sT, v(aL16))
    k("v_and_b32 v90, 15, v1")
    k("v_lshrrev_b32 v91, 4, v1")
    k("v_bfe_u32 v92, v1, 2, 2")
    k("v_and_b32 v93, 3, v1")
    k("v_lshl_add_u32 v94, v92, 3, v93")
    k("v_lshlrev_b32 v94, 5, v94")
    k("v_lshl_add_u32 v94, v91, 3, v94")
    k("s_lshl_b32 s%d, s%d, 10", sT, w)
    k("s_add_u32 s%d, s%d, %d", sT, sT, L_XB)
    k("v_add_u32 %s, s%d, v94", v(aXW), sT)
    k("v_lshl_add_u32 v94, v91, 3, v92")
    k("v_lshlrev_b32 v94, 5, v94")
    k("v_lshl_add_u32 v94, v93, 3, v94")
    k("v_add_u32 %s, %d, v94", v(aXR), L_XB)
    k("v_lshlrev_b32 v94, 5, v90")
    k("v_lshl_add_u32 v94, v91, 3, v94")
    k("s_lshl_b32 s%d, s%d, 9", sT, w)
    k("s_add_u32 s%d, s%d, %d", sT, sT, L_OB)
    k("v_add_u32 %s, s%d, v94", v(aOW), sT)
    k("s_lshl_b32 s%d, s%d, 15", sT, w)
    k("v_add_u32 %s, s%d, %s", v(aWV), sT, v(aL16))
    k("v_add_u32 %s, %d, %s", v(aKT), L_KT, v(aL16))
    k("v_lshrrev_b32 v94, 1, v91")
    k("v_lshl_add_u32 v94, v92, 1, v94")
    k("v_and_b32 v95, 1, v91")
    k("v_lshl_add_u32 v94, v94, 2, v95")
    k("v_lshlrev_b32 v94, 11, v94")
    k("v_lshl_add_u32 %s, v93, 4, v94", v(aH1S))
    k("v_lshl_add_u32 v94, v91, 2, v93")
    k("v_lshlrev_b32 v94, 6, v94")
    k("v_lshl_add_u32 %s, v92, 4, v94", v(aH1L))
    k("v_and_b32 v94, 2, v1")
    k("v_bfe_u32 v95, v1, 2, 1")
    k("v_add_u32 v94, v94, v95")
    k("v_lshlrev_b32 v94, 4, v94")
    k("v_lshl_add_u32 v94, v91, 2, v94")
    k("v_and_b32 v95, 9, v1")
    k("v_cmp_eq_u32 vcc, 0, v95")
    k("v_mov_b32 v95, 0x40000000")
    k("v_cndmask_b32 %s, v95, v94, vcc", v(aH2S))
    k("v_and_b32 v94, 2, v1")
    k("v_cmp_eq_u32 vcc, 0, v94")
    k("v_mov_b32 v94, 0x44444444")
    k("v_mov_b32 v95, 0xeeeeeeee")
    k("v_cndmask_b32 %s, v95, v94, vcc", v(IDX))
    k("v_mov_b32 v94, 0x3f80")
    k("v_mov_b32 v95, 0x3f800000")
    for d in range(4):
        k("v_cmp_eq_u32 vcc, %d, v90", 2 * d)
        k("v_cndmask_b32 %s, 0, v94, vcc", v(SEL + d))
        k("v_cmp_eq_u32 vcc, %d, v90", 2 * d + 1)
        k("v_cndmask_b32 %s, %s, v95, vcc", v(SEL + d), v(SEL + d))
    k("s_lshl_b32 s%d, s%d, 16", sT, w)
    k("s_lshl_b32 s%d, s%d, 6", sH1S0, S_HEAD)
    k("s_add_u32 s%d, s%d, s%d", sH1S0, sH1S0, sT)
    k("s_add_u32 s%d, s%d, 0x%x", sH1S0, sH1S0, HOP1)
    k("s_add_u32 s%d, s%d, 0x1000", sH1S1, sH1S0)
    k("s_lshl_b32 s%d, s%d, 2", sH1L, S_HEAD)
    k("s_add_u32 s%d, s%d, s%d", sH1L, sH1L, w)
    k("s_lshl_b32 s%d, s%d, 11", sH1L, sH1L)
    k("s_add_u32 s%d, s%d, 0x%x", sH1L, sH1L, HOP1)
    k("s_lshr_b32 s%d, s%d, 3", sH2S, S_HEAD)
    k("s_lshl_b32 s%d, s%d, 11", sH2S, sH2S)
    k("s_and_b32 s%d, s%d, 7", sT, S_HEAD)
    k("s_lshl_b32 s%d, s%d, 7", sT, sT)
    k("s_add_u32 s%d, s%d, s%d", sH2S, sH2S, sT)
    k("s_lshr_b32 s%d, s%d, 1", sT, w)
    k("s_lshl_b32 s%d, s%d, 10", sT, sT)
    k("s_add_u32 s%d, s%d, s%d", sH2S, sH2S, sT)
    k("s_and_b32 s%d, s%d, 1", sT, w)
    k("s_lshl_b32 s%d, s%d, 6", sT, sT)
    k("s_add_u32 s%d, s%d, s%d", sH2S, sH2S, sT)
    k("s_add_u32 s%d, s%d, 0x%x", sH2S, sH2S, HOP2)
    k("s_lshl_b32 s%d, s%d, 11", sH2L, w)
    k("s_add_u32 s%d, s%d, 0x%x", sH2L, sH2L, HOP2)
    k("s_lshl_b32 s%d, s%d, 13", sKV, S_HEAD)
    k("s_lshl_b32 s%d, s%d, 11", sT, w)
    k("s_add_u32 s%d, s%d, s%d", sKV, sKV, sT)
    k("s_add_u32 s%d, s%d, 0x%x", sVIM, sKV, VIMG)
    k("s_add_u32 s%d, s%d, 0x%x", sKV, sKV, KIMG)
    k("s_add_u32 s%d, s%d, %d", sKTD, sT, L_KT)
    k("s_lshl_b32 s%d, s%d, 12", sKM, S_HEAD)
    k("s_lshl_b32 s%d, s%d, 10", sT, w)
    k("s_add_u32 s%d, s%d, s%d", sKM, sKM, sT)
    k("s_add_u32 s%d, s%d, 0x%x", sKM, sKM, KM)
    k("s_mov_b32 s%d, 0x%x", sC, f2u(CSC))
    k("s_mov_b32 s%d, 400000", S_LIM)
    k("s_mov_b32 s%d, 0x33333333", sMASK)
    k("s_mov_b32 s%d, 0x33333333", sMASK + 1)
    k("s_xor_b32 s%d, s%d, 0x40000", sH1R, sH1L)
    k("s_xor_b32 s%d, s%d, 0x2000", sH2R, sH2S)

import chain as _c1
def chain_arm(k):
    k.c("---- arm hop buffers (both slots), sc1")
    for i in range(4): k("v_mov_b32 %s, -1", v(96 + i))
    for slot in range(2):
        k("s_add_u32 s%d, s%d, 0x%x", sT, sH1L, slot * 262144)
        k("buffer_store_dwordx4 v[96:99], %s, %s, s%d offen sc1", v(aL16), s(S_WS, 4), sT)
        k("buffer_store_dwordx4 v[96:99], %s, %s, s%d offen offset:1024 sc1", v(aL16), s(S_WS, 4), sT)
        k("s_add_u32 s%d, s%d, 0x%x", sT, sH2S, slot * 8192)
        k("buffer_store_dword v96, %s, %s, s%d offen sc1", v(aH2S), s(S_WS, 4), sT)
chain_load_weights = _c1.chain_load_weights
load_mem0 = _c1.load_mem0

def PFK(p):
    W = s(S_WS, 4)
    return [["s_mov_b32 m0, s%d" % sKTD, "buffer_load_dwordx4 %s, %s, s%d offen sc1 lds" % (v(aL16), W, sKV)],
            ["buffer_load_dwordx4 %s, %s, s%d offen offset:1024 sc1 lds" % (v(aL16), W, sKV)],
            ["buffer_load_dwordx4 %s, %s, %s, s%d offen sc1" % (v(VTN, 4), v(aL16), W, sVIM)],
            ["buffer_load_dwordx4 %s, %s, %s, s%d offen offset:1024 sc1" % (v(VTN + 4, 4), v(aL16), W, sVIM)],
            ["s_add_u32 s%d, s%d, 0x40000" % (sKV, sKV), "s_add_u32 s%d, s%d, 0x40000" % (sVIM, sVIM),
             "s_xor_b32 s%d, s%d, 0x2000" % (sKTD, sKTD)]][p]

def WVR(n, h):
    j, t = VORD[n >> 1], n & 1
    return "ds_read_b128 %s, %s offset:%d" % (v(G + (n & 3) * 8 + 4 * h, 4), v(aWV), j * 4096 + t * 2048 + h * 1024)

def weave(k, spine, fill):
    for i, m in enumerate(spine):
        k(m)
        for f in fill.get(i, []): k(f)

def check_n(k, buf, n, t0, t1):
    if n == 8:
        k("v_max3_u32 %s, %s, %s, %s", v(t0), v(buf), v(buf + 1), v(buf + 2))
        k("v_max3_u32 %s, %s, %s, %s", v(t1), v(buf + 3), v(buf + 4), v(buf + 5))
        k("v_max3_u32 %s, %s, %s, %s", v(t0), v(buf + 6), v(buf + 7), v(t0))
        k("v_max_u32 %s, %s, %s", v(t0), v(t0), v(t1))
    else:
        k("v_max3_u32 %s, %s, %s, %s", v(t0), v(buf), v(buf + 1), v(buf + 2))
        k("v_max_u32 %s, %s, %s", v(t0), v(t0), v(buf + 3))
    k("v_cmp_eq_u32 vcc, -1, %s", v(t0))

def retry_stub(k, lab, back, loads, buf, n, pre=None, cnt=None):
    k.L(lab)
    lp = k.lab("rp")
    k("s_mov_b32 s%d, 0", sCNT)
    k.L(lp)
    for l in loads: k(l)
    if cnt is not None and getattr(k, 'ticks', False): k("s_add_u32 s%d, s%d, 1", cnt, cnt)
    k("s_waitcnt vmcnt(0)")
    if pre:
        for l in pre: k(l)
    check_n(k, buf, n, KVM, KVM + 1)
    k("s_cbranch_vccz %s", back)
    k("s_add_u32 s%d, s%d, 1", sCNT, sCNT)
    k("s_cmp_lt_u32 s%d, s%d", sCNT, S_LIM)
    k("s_cbranch_scc1 %s", lp)
    k("s_mov_b32 s%d, 0", S_LIM)
    k("s_branch %s", back)

def delay(k, slots):
    while slots > 0:
        m = min(slots, 16); k("s_nop %d", m - 1); slots -= m

def chain_loop(k, stf, tag):
    W = s(S_WS, 4)
    o = getattr(k, 'copt', {})
    TK = lambda i: ("s_memtime s[%d:%d]" % (64 + 2 * i, 65 + 2 * i)) if getattr(k, 'ticks', False) else ""
    lp = k.lab(tag + "step"); lend = k.lab(tag + "end"); lexit = k.lab(tag + "exit"); lfirst = k.lab(tag + "first")
    Q = lambda j: [SMF(AQ, MA + 4 * j, WQ + j * 8), SMF(AQ + 4, MA + 4 * j, WQ + (8 + j) * 8)]
    Kp = lambda j: [SMF(AK, MA + 4 * j, WK + j * 8), SMF(AK + 4, MA + 4 * j, WK + (8 + j) * 8)]
    V = lambda p: [SMF(AV + 4 * t, MA + 4 * VORD[p], G + ((2 * p + t) & 3) * 8) for t in range(2)]
    MR = lambda j: "ds_read_b128 %s, %s offset:%d" % (v(MA + 4 * j, 4), v(aM[j >> 1]), (j & 1) * 1024)
    KTR = lambda f: "ds_read_b128 %s, %s offset:%d" % (v(MA + 4 * VORD[f], 4), v(aKT), f * 1024)
    ldodd = "buffer_load_dwordx4 %s, %s, %s, s%d offen offset:1024 sc1" % (v(MA + 4, 4), v(aL16), W, sH2L)
    ldeven = "buffer_load_dwordx4 %s, %s, %s, s%d offen sc1" % (v(MA, 4), v(aL16), W, sH2L)
    r_odd = k.lab(tag + "rodd"); b_odd = k.lab(tag + "bodd")
    r_even = k.lab(tag + "reven"); r_h1 = k.lab(tag + "rh1"); b_h1 = k.lab(tag + "bh1")
    r_sm = k.lab(tag + "rsm"); b_sm = k.lab(tag + "bsm")
    k("s_branch %s", lfirst)
    k.L(lp)
    k(ldodd)
    k.L(lfirst)
    k(".aw_on")
    tick(k, 0)
    k("ds_write_b128 %s, %s", v(aM[0]), v(MA, 4))
    SENT = MA + 28
    weave(k, Q(0) + Kp(0) + V(0), {
        0: ["v_mov_b32 %s, -1" % v(SENT)], 1: ["v_mov_b32 %s, -1" % v(SENT + 1)], 2: ["v_mov_b32 %s, -1" % v(SENT + 2)],
        3: [".aw_writes", "s_barrier", TK(1), MR(2)], 4: [MR(4), "v_mov_b32 %s, -1" % v(SENT + 3)], 5: [MR(6)]})
    k(WVR(4, 0)); k(WVR(4, 1))
    k("buffer_store_dwordx4 %s, %s, %s, s%d offen %s", v(SENT, 4), v(aL16), W, sH1R, stf)
    weave(k, Q(2) + Kp(2) + V(1) + Q(4) + Kp(4), {
        0: [TK(2), WVR(5, 0)], 1: [WVR(5, 1)],
        2: ["buffer_store_dwordx4 %s, %s, %s, s%d offen offset:1024 %s" % (v(SENT, 4), v(aL16), W, sH1R, stf)],
        3: ["buffer_store_dword %s, %s, %s, s%d offen %s" % (v(SENT), v(aH2S), W, sH2R, stf)],
        4: [WVR(6, 0)], 5: [WVR(6, 1)], 6: [WVR(7, 0)], 7: [WVR(7, 1)], 8: ["s_waitcnt vmcnt(3)"]})
    check_n(k, MA + 4, 4, KVM, KVM + 1)
    k("s_cbranch_vccnz %s", r_odd)
    k.L(b_odd)
    tick(k, 3)
    k("ds_write_b128 %s, %s offset:1024", v(aM[0]), v(MA + 4, 4))
    qf = []
    for t in range(2):
        a_ = AQ + 4 * t
        qf += ["v_add_f32 %s, %s, %s" % (v(a_), v(a_), v(a_ + 2)), "v_add_f32 %s, %s, %s" % (v(a_ + 1), v(a_ + 1), v(a_ + 3)),
               "v_mul_f32 %s, s%d, %s" % (v(a_), sC, v(a_)), "v_mul_f32 %s, s%d, %s" % (v(a_ + 1), sC, v(a_ + 1)),
               "v_cvt_pk_bf16_f32 %s, %s, %s" % (v(a_), v(a_), v(a_ + 1))]
    weave(k, Q(6) + Kp(6) + Q(1) + Kp(1) + V(2) + Q(3) + Q(5) + Q(7) + V(3) + Kp(3) + Kp(5) + Kp(7) + V(4), {
        0: PFK(0), 1: PFK(1), 2: PFK(2),
        3: [".aw_writes", "s_barrier", TK(4), MR(3)], 4: [MR(5)], 5: [MR(7)], 6: PFK(3), 7: PFK(4),
        8: [WVR(8, 0)], 9: [WVR(8, 1)], 10: [WVR(9, 0)], 11: [WVR(9, 1)], 12: [KTR(0)], 13: [KTR(1)], 14: [KTR(2)],
        16: [WVR(10, 0), qf[0]], 17: [WVR(10, 1), qf[1]], 18: [WVR(11, 0), qf[5]], 19: [WVR(11, 1), qf[6]],
        20: [KTR(3), qf[2]], 21: [qf[3]], 22: [qf[7]], 23: [qf[8]], 24: [WVR(12, 0), qf[4]], 25: [WVR(12, 1), qf[9]]})
    k("ds_write2_b32 %s, %s, %s offset0:0 offset1:32", v(aXW), v(AQ), v(AQ + 4))
    for t in range(2):
        k("v_add_f32 %s, %s, %s", v(AK + 4 * t), v(AK + 4 * t), v(AK + 4 * t + 2))
        k("v_add_f32 %s, %s, %s", v(AK + 4 * t + 1), v(AK + 4 * t + 1), v(AK + 4 * t + 3))
        k("v_cvt_pk_bf16_f32 %s, %s, %s", v(KVM + t), v(AK + 4 * t), v(AK + 4 * t + 1))
    k("ds_write2_b32 %s, %s, %s offset0:1 offset1:33", v(aXW), v(KVM), v(KVM + 1))
    tick(k, 5)
    X = AQ
    XR = lambda i: "ds_read_b64_tr_b16 %s, %s offset:%d" % (v(X + 2 * i, 2), v(aXR), (i >> 1) * 1024 + (i & 1) * 128)
    weave(k, V(5), {0: [WVR(13, 0), WVR(13, 1)], 1: [WVR(14, 0), WVR(14, 1), WVR(15, 0), WVR(15, 1)]})
    k(".aw_writes"); k("s_barrier")
    tick(k, 6)
    for i in range(4): k(XR(i))
    weave(k, V(6) + V(7), {0: [XR(4), XR(5)], 1: [XR(6), XR(7), KTR(4), KTR(5)], 2: [KTR(6)], 3: [KTR(7)]})
    T1, T2, T0, E, PM, ONES, LA = G, G + 4, G + 8, G + 12, G + 20, G + 24, G + 28
    EX = lambda d, s_: "v_exp_f32 %s, %s" % (v(d), v(s_))
    CV = lambda d, a_, b_: "v_cvt_pk_bf16_f32 %s, %s, %s" % (v(d), v(a_), v(b_))
    MV = lambda d, x: "v_mov_b32 %s, %s" % (v(d), x)
    vf = []
    for t in range(2):
        a_ = AV + 4 * t
        vf += ["v_add_f32 %s, %s, %s" % (v(a_), v(a_), v(a_ + 2)), "v_add_f32 %s, %s, %s" % (v(a_ + 1), v(a_ + 1), v(a_ + 3)), CV(KVM + 2 + t, a_, a_ + 1)]
    sp = [MF(T1, MA + 4 * VORD[kb], X + 4 * kb, kb == 0) for kb in range(4)] + \
         [MF(T2, MA + 4 * VORD[4 + kb], X + 4 * kb, kb == 0) for kb in range(4)] + \
         [MF(T0, X + 4 * kb, X + 4 * kb, kb == 0) for kb in range(4)]
    weave(k, sp[:4], {0: [TK(7)], 1: vf[0:2], 2: vf[3:5], 3: [vf[2], vf[5]]})
    k("buffer_store_dwordx4 %s, %s, %s, s%d offen sc1", v(KVM, 4), v(aL16), W, sKM)
    k("s_cmp_eq_u32 s%d, 63", S_STEP)
    k("s_cbranch_scc1 %s", lexit)
    weave(k, sp[4:], {0: ["s_add_u32 s%d, s%d, 0x20000" % (sKM, sKM), MV(ONES, "0x3f803f80"), MV(ONES + 1, "0x3f803f80")],
        1: [EX(E, T1)], 2: [EX(E + 1, T1 + 1)], 3: [EX(E + 2, T1 + 2)], 4: [EX(E + 3, T1 + 3)],
        5: [EX(E + 4, T2)], 6: [EX(E + 5, T2 + 1)], 7: [EX(E + 6, T2 + 2)]})
    k(EX(E + 7, T2 + 3))
    k(CV(E, E, E + 1)); k(CV(E + 1, E + 2, E + 3)); k(CV(E + 2, E + 4, E + 5)); k(CV(E + 3, E + 6, E + 7))
    k(MV(ONES + 2, "0x3f803f80")); k(MV(ONES + 3, "0x3f803f80"))
    O = AV
    Z = lambda i: "v_mov_b32 %s, 0" % v(MA + i)
    def pv(k, fast):
        weave(k, [MF(O, E, VT, True), MF(O + 4, E, VT + 4, True), MF(LA, E, ONES, True)],
              {0: [EX(T0, T0 + 2)], 1: [EX(T0 + 1, T0 + 3)], 2: [MV(PM + 1, "0"), CV(PM, T0, T0 + 1), MV(PM + 2, "0"), CV(PM + 3, T0, T0 + 1)]})
        weave(k, [M16(LA, PM, ONES), M16(O, PM, KVM + 2), M16(O + 4, PM + 2, KVM + 2)],
              {0: ["v_max3_f32 %s, |%s|, |%s|, |%s|" % (v(X), v(T1), v(T1 + 1), v(T1 + 2)), "v_max3_f32 %s, |%s|, |%s|, |%s|" % (v(X + 1), v(T1 + 3), v(T2), v(T2 + 1))],
               1: ["v_max3_f32 %s, |%s|, |%s|, %s" % (v(X), v(T2 + 2), v(T2 + 3), v(X)), "v_max3_f32 %s, |%s|, |%s|, %s" % (v(X + 1), v(T0 + 2), v(T0 + 3), v(X + 1))],
               2: ["v_max_f32 %s, %s, %s" % (v(X), v(X), v(X + 1))]} if fast else {})
    tick(k, 8)
    pv(k, True)
    k("v_cmp_lt_f32 vcc, 0x42700000, %s", v(X))
    k("v_rcp_f32 %s, %s", v(LA), v(LA))
    k("s_and_b64 vcc, vcc, %s", s(sMASK, 2))
    k("s_cbranch_scc1 %s", r_sm)
    k.L(b_sm)
    k("v_rcp_f32 %s, %s", v(LA + 1), v(LA + 1))
    for t in range(2):
        k("v_mul_f32 %s, %s, %s", v(O + 4 * t), v(O + 4 * t), v(LA))
        k("v_mul_f32 %s, %s, %s", v(O + 4 * t + 1), v(O + 4 * t + 1), v(LA + 1))
        k(CV(E + 4 + t, O + 4 * t, O + 4 * t + 1))
    k("ds_write_b64 %s, %s", v(aOW), v(E + 4, 2))
    tick(k, 9)
    for i in range(0, 12): k(Z(i))
    k("s_waitcnt vmcnt(5)")
    k(".aw_writes"); k("s_barrier")
    tick(k, 10)
    OA = AQ
    for i in range(4):
        k("ds_read_b64_tr_b16 %s, %s offset:%d", v(OA + 2 * i, 2), v(aXR), (L_OB - L_XB) + (i >> 1) * 1024 + (i & 1) * 128)
    for i in range(12, 24): k(Z(i))
    PK = AK
    WOs = lambda nt: [SMF(MA + 4 * nt, OA + 4 * kbo, WO + (nt * 2 + kbo) * 8) for kbo in range(2)]
    AD = lambda nt, b: "v_add_f32 %s, %s, %s" % (v(MA + 4 * nt + b), v(MA + 4 * nt + b), v(MA + 4 * nt + 2 + b))
    PC = lambda sx, b, hh: CV(PK + 4 * sx + 2 * b + hh, MA + 4 * (4 * sx + 2 * hh) + b, MA + 4 * (4 * sx + 2 * hh + 1) + b)
    ST1 = lambda sx: "buffer_store_dwordx4 %s, %s, %s, s%d offen %s" % (v(PK + 4 * sx, 4), v(aH1S), W, sH1S1 if sx else sH1S0, stf)
    weave(k, WOs(0) + WOs(1) + WOs(2) + WOs(3) + WOs(4), {
        0: [TK(11), Z(24)], 1: [Z(25)], 2: [Z(26)], 3: [AD(0, 0)], 4: [AD(0, 1)], 5: [AD(1, 0)], 6: [AD(1, 1)], 7: [PC(0, 0, 0)], 8: [PC(0, 1, 0)],
        9: [AD(2, 0), AD(2, 1), AD(3, 0), AD(3, 1), PC(0, 0, 1), PC(0, 1, 1), ST1(0), TK(12), Z(27), Z(28), Z(29), Z(30), Z(31)]})
    weave(k, WOs(5) + WOs(6) + WOs(7), {0: [AD(4, 0)], 1: [AD(4, 1)], 3: [AD(5, 0)], 4: [AD(5, 1)],
        5: [PC(1, 0, 0), PC(1, 1, 0), AD(6, 0), AD(6, 1), AD(7, 0), AD(7, 1), PC(1, 0, 1), PC(1, 1, 1), ST1(1)]})
    tick(k, 13)
    H1 = AQ; RD = MA + 8
    h1l = ["buffer_load_dwordx4 %s, %s, %s, s%d offen sc1" % (v(H1, 4), v(aH1L), W, sH1L),
           "buffer_load_dwordx4 %s, %s, %s, s%d offen offset:1024 sc1" % (v(H1 + 4, 4), v(aH1L), W, sH1L)]
    red = [MF(RD, H1, SEL, True), MF(RD, H1 + 4, SEL, False)]
    l23 = k.lab(tag + "w23"); lj = k.lab(tag + "wj")
    k("s_cmp_ge_u32 s%d, 2", S_WAVE)
    k("s_cbranch_scc1 %s", l23)
    delay(k, o.get('d1a', 0))
    for l in h1l: k(l)
    k.L(l23)
    for n in range(4):
        k(WVR(n, 0)); k(WVR(n, 1))
    for i in range(8): k(MV(AV + i, "0"))
    k("s_mov_b32 s%d, s%d", sH1R, sH1L)
    k("s_mov_b32 s%d, s%d", sH2R, sH2S)
    k("s_xor_b32 s%d, s%d, 0x2000", sH2S, sH2S)
    for r in (sH1S0, sH1S1): k("s_xor_b32 s%d, s%d, 0x40000", r, r)
    k("s_xor_b32 s%d, s%d, 0x2000", sH2L, sH2L)
    k("v_xor_b32 %s, 0x2000, %s", v(aKT), v(aKT))
    k("s_add_u32 s%d, s%d, 1", S_STEP, S_STEP)
    k("s_cmp_lt_u32 s%d, 2", S_WAVE)
    k("s_cbranch_scc1 %s", lj)
    delay(k, o.get('d1b', 10))
    for l in h1l: k(l)
    k.L(lj)
    k("s_waitcnt vmcnt(0)")
    for l in red: k(l)
    check_n(k, H1, 8, KVM, KVM + 1)
    k("s_cbranch_vccnz %s", r_h1)
    k.L(b_h1)
    k("v_add_f32 %s, %s, %s", v(RD), v(RD), v(RD + 1))
    k("v_add_f32 %s, %s, %s", v(RD + 2), v(RD + 2), v(RD + 3))
    k("v_add_f32 %s, %s, %s", v(RD), v(RD), v(RD + 2))
    k("v_mov_b32_dpp %s, %s quad_perm:[1,0,3,2] row_mask:0xf bank_mask:0xf", v(RD + 1), v(RD))
    k("v_cvt_pk_bf16_f32 %s, %s, %s", v(RD), v(RD), v(RD + 1))
    k("buffer_store_dword %s, %s, %s, s%d offen %s", v(RD), v(aH2S), W, sH2S, stf)
    tick(k, 14)
    l01 = k.lab(tag + "w01"); lj2 = k.lab(tag + "wj2")
    k("s_cmp_lt_u32 s%d, 2", S_WAVE)
    k("s_cbranch_scc1 %s", l01)
    delay(k, o.get('d2b', 0))
    k(ldeven)
    k.L(l01)
    k("s_xor_b32 s%d, s%d, 0x40000", sH1L, sH1L)
    for i in range(16): k(MV(AQ + i, "0"))
    for i in range(8): k(MV(VT + i, v(VTN + i)))
    k("s_cmp_ge_u32 s%d, 2", S_WAVE)
    k("s_cbranch_scc1 %s", lj2)
    delay(k, o.get('d2a', 10))
    k(ldeven)
    k.L(lj2)
    k(".aw_all")
    k(".aw_off")
    k("s_waitcnt vmcnt(0)")
    check_n(k, MA, 4, KVM, KVM + 1)
    if getattr(k, 'ticks', False):
        lt = k.lab("tk")
        k("s_cbranch_vccnz %s", r_even)
        k.L(lt); tick(k, 15); tick_step_end(k); k("s_branch %s", lp)
        retry_stub(k, r_even, lt, [ldeven], MA, 4, cnt=97)
    else:
        k("s_cbranch_vccz %s", lp)
        retry_stub(k, r_even, lp, [ldeven], MA, 4, cnt=97)
    retry_stub(k, r_odd, b_odd, [ldodd], MA + 4, 4, cnt=98)
    retry_stub(k, r_h1, b_h1, h1l, H1, 8, pre=red, cnt=96)
    k.L(r_sm)
    k("v_max3_f32 %s, %s, %s, %s", v(X), v(T1), v(T1 + 1), v(T1 + 2))
    k("v_max3_f32 %s, %s, %s, %s", v(X), v(T1 + 3), v(T2), v(X))
    k("v_max3_f32 %s, %s, %s, %s", v(X), v(T2 + 1), v(T2 + 2), v(X))
    k("v_max3_f32 %s, %s, %s, %s", v(X), v(T2 + 3), v(T0 + 2), v(X))
    k("v_max_f32 %s, %s, %s", v(X), v(T0 + 3), v(X))
    xmax(k, X, X + 1)
    for r in [T1 + i for i in range(8)] + [T0 + 2, T0 + 3]: k("v_sub_f32 %s, %s, %s", v(r), v(r), v(X))
    for i in range(8): k(EX(E + i, T1 + i))
    for i in range(4): k(CV(E + i, E + 2 * i, E + 2 * i + 1))
    pv(k, False)
    k("v_rcp_f32 %s, %s", v(LA), v(LA))
    k("s_branch %s", b_sm)
    k.L(lexit)
    k("s_waitcnt lgkmcnt(0)")

def role_chain(k, force_slow=False):
    k("s_mov_b32 s54, s45")
    stamp(k, 2, 0, wgreg=S_HEAD, vt=120)
    srds = (('Wq', S_WQ), ('Wk', S_WK), ('Wv', S_WV), ('Wo', S_WO), ('mem0', 56))
    for n, r in srds: load_srd(k, n, r)
    chain_setup(k)
    k("s_waitcnt lgkmcnt(0)")
    for n, r in srds: fin_srd(k, n, r)
    chain_arm(k)
    load_mem0(k, 56)
    k("s_barrier")
    l1 = k.lab("CHa")
    k("s_cmp_lg_u32 s%d, 0", S_WAVE)
    k("s_cbranch_scc1 %s", l1)
    k("s_cmp_eq_u32 s54, 0")
    k("s_cselect_b32 s44, 1, 0x10001")
    k("v_mov_b32 v106, s44")
    k("v_mov_b32 v107, 0")
    k("s_mov_b64 exec, 1")
    k("buffer_atomic_add v106, v107, %s, 0 offen offset:64 sc1", s(S_DBG, 4))
    k("s_mov_b64 exec, -1")
    k.L(l1)
    chain_load_weights(k)
    stamp(k, 2, 1, wgreg=S_HEAD, vt=120)
    for p in range(5):
        for l in PFK(p): k(l)
    for n in range(4):
        k(WVR(n, 0)); k(WVR(n, 1))
    for i in range(24): k("v_mov_b32 %s, 0", v(AQ + i))
    k("s_mov_b32 s%d, 0", S_STEP)
    lp = k.lab("CHs"); ok = k.lab("CHok")
    k("v_mov_b32 %s, 0", v(KVM + 1))
    k("s_mov_b32 s%d, 0", sCNT)
    k.L(lp)
    k("buffer_load_dword %s, %s, %s, 0 offen offset:64 sc1", v(KVM), v(KVM + 1), s(S_DBG, 4))
    k("s_waitcnt vmcnt(0)")
    k("v_readfirstlane_b32 s44, %s", v(KVM))
    k("s_and_b32 s45, s44, 0xffff")
    k("s_cmp_eq_u32 s45, 32")
    k("s_cbranch_scc1 %s", ok)
    k("s_add_u32 s%d, s%d, 1", sCNT, sCNT)
    k("s_cmp_lt_u32 s%d, s%d", sCNT, S_LIM)
    k("s_cbranch_scc1 %s", lp)
    k("s_mov_b32 s%d, 0", S_LIM)
    k.L(ok)
    for i in range(8): k("v_mov_b32 %s, %s", v(VT + i), v(VTN + i))
    k("s_waitcnt lgkmcnt(0)")
    stamp(k, 2, 2, wgreg=S_HEAD, vt=56)
    tick_init(k)
    lslow = k.lab("CHslow"); ldone = k.lab("CHdone")
    k("s_lshr_b32 s44, s44, 16")
    k("s_cmp_lg_u32 s44, %d", 0 if not force_slow else 77)
    k("s_cbranch_scc1 %s", lslow)
    n0 = len(k.lines)
    chain_loop(k, "", "F")
    o = getattr(k, 'copt', {})
    if o.get('free'):
        body = k.lines[n0:]; out = []
        for l in body:
            ls = l.strip()
            if 's100' in ls: out.append(l); continue
            if ls.startswith('s_cbranch_vccnz'): continue
            if ls.startswith('s_cbranch_vccz Fstep'): l = l.replace('s_cbranch_vccz', 's_branch')
            if ls.startswith('s_cbranch_scc1 Frsm'): continue
            if 'novmem' in o['free'] and (ls.startswith('buffer_') or 'vmcnt' in ls): continue
            if 'nost' in o['free'] and ls.startswith('buffer_store'): continue
            if 'nowait' in o['free'] and 'vmcnt' in ls: continue
            if 'nods' in o['free'] and ls.startswith('ds_'): continue
            if 'nobar' in o['free'] and ls.startswith('s_barrier'): continue
            if 'novalu' in o['free'] and ls.startswith('v_') and 'mfma' not in ls: continue
            out.append(l)
        k.lines[n0:] = out
    k("s_branch %s", ldone)
    k.L(lslow)
    chain_loop(k, "sc1", "S")
    k.L(ldone)
    tick_dump(k)
    k("s_waitcnt vmcnt(0)")
    stamp(k, 2, 3, wgreg=S_HEAD, vt=56)
```

```python
from asmlib import *
NAME = "sequential_preLN__memory_aug_recurrent_mem_tr__glu_gated_swiglu__prompt"
XN    = 0x0000000
QIMG  = 0x0200000
KIMG  = 0x1200000
VIMG  = 0x2200000
KM    = 0x3200000
VM    = 0x3A00000
PART  = 0x4000000
HIMG  = 0x6000000
HNIMG = 0x6200000
ACT   = 0x6400000
HOP1  = 0x7000000
HOP2  = 0x7100000
FLAGS = 0x7200000
WS_BYTES = 268435456
KA = dict(x=0, mem0=8, Wq=16, Wk=24, Wv=32, Wo=40, w1=64, w3=72, w2=80, out=88, dbg=96, ws=104)
SZ = dict(x=2097152, mem0=8192, Wq=4194304, Wk=4194304, Wv=4194304, Wo=4194304, w1=512*1376*2, w3=512*1376*2,
          w2=1376*512*2, out=2097152, dbg=256, ws=WS_BYTES)

def load_srd(k, name, sreg):
    k("s_load_dwordx2 %s, s[0:1], %d", s(sreg, 2), KA[name])
def fin_srd(k, name, sreg):
    k("s_and_b32 %s, %s, 0xffff", s(sreg + 1), s(sreg + 1))
    k("s_mov_b32 %s, 0x%x", s(sreg + 2), SZ[name])
    k("s_mov_b32 %s, 0x20000", s(sreg + 3))

def kernel_header(k, name):
    k(".globl %s", name)
    k(".p2align 8")
    k(".type %s,@function", name)
    k.L(name)

def kernel_desc(name, vgpr=512, accum=256, sgpr=102):
    return """.amdhsa_kernel %s
  .amdhsa_next_free_vgpr %d
  .amdhsa_next_free_sgpr %d
  .amdhsa_accum_offset %d
  .amdhsa_group_segment_fixed_size 0
  .amdhsa_kernarg_size 112
  .amdhsa_user_sgpr_count 2
  .amdhsa_user_sgpr_kernarg_segment_ptr 1
  .amdhsa_system_sgpr_workgroup_id_x 1
  .amdhsa_float_denorm_mode_32 3
  .amdhsa_float_denorm_mode_16_64 3
.end_amdhsa_kernel
""" % (name, vgpr, sgpr, accum)

def row16_allreduce_add(k, r, tmp=None):
    for sh in (1, 2, 4, 8):
        k("v_add_f32_dpp %s, %s, %s row_ror:%d row_mask:0xf bank_mask:0xf", v(r), v(r), v(r), sh)

def round_bf16(k, dst, src):
    k("v_cvt_pk_bf16_f32 %s, %s, %s", v(dst), v(src), v(src))
    k("v_lshlrev_b32 %s, 16, %s", v(dst), v(dst))

TS = 0x7800000
def stamp(k, slot, idx, S_WS=8, wgreg=2, vt=2, st=60):
    if not getattr(k, 'stamps', False): return
    l = k.lab("ST")
    k("s_cmp_lg_u32 s4, 0")
    k("s_cbranch_scc1 %s", l)
    k("s_memrealtime %s", s(st, 2))
    k("s_lshl_b32 %s, s%d, 7", s(st + 2), wgreg)
    k("s_add_u32 %s, %s, 0x%x", s(st + 2), s(st + 2), TS + slot * 65536 + idx * 8)
    k("v_mov_b32 %s, 0", v(vt + 2))
    k("s_waitcnt lgkmcnt(0)")
    k("v_mov_b32 %s, %s", v(vt), s(st))
    k("v_mov_b32 %s, %s", v(vt + 1), s(st + 1))
    k("buffer_store_dwordx2 %s, %s, %s, %s offen", v(vt, 2), v(vt + 2), s(S_WS, 4), s(st + 2))
    k("s_waitcnt vmcnt(0)")
    k.L(l)
```

```python
from common import *

S_WS = 8
S_W  = 12
S_X  = 16
S_O  = 20
S_DBG = 24
S_WAVE = 4
ST = "sc1"
LD = "sc1"

def lane_wave(k):
    k("v_and_b32 v1, 63, v0")
    k("v_lshrrev_b32 v2, 6, v0")
    k("v_readfirstlane_b32 s%d, v2", S_WAVE)

def ln_finish(k, X, n, mean, var, t0, t1, OUT):
    round_bf16(k, mean, mean)
    round_bf16(k, var, var)
    k("v_add_f32 %s, 0x3727c5ac, %s", v(var), v(var))
    round_bf16(k, var, var)
    k("v_sqrt_f32 %s, %s", v(var), v(var))
    round_bf16(k, var, var)
    k("v_rcp_f32 %s, %s", v(var), v(var))
    for i in range(0, n, 2):
        k("v_sub_f32 %s, %s, %s", v(X + i), v(X + i), v(mean))
        k("v_sub_f32 %s, %s, %s", v(X + i + 1), v(X + i + 1), v(mean))
        k("v_cvt_pk_bf16_f32 %s, %s, %s", v(t0), v(X + i), v(X + i + 1))
        k("v_lshlrev_b32 %s, 16, %s", v(X + i), v(t0))
        k("v_and_b32 %s, 0xffff0000, %s", v(X + i + 1), v(t0))
        k("v_mul_f32 %s, %s, %s", v(X + i), v(X + i), v(var))
        k("v_mul_f32 %s, %s, %s", v(X + i + 1), v(X + i + 1), v(var))
        k("v_cvt_pk_bf16_f32 %s, %s, %s", v(OUT + i // 2), v(X + i), v(X + i + 1))

def role_ln1(k, s_tile):
    k.c("---- LN1 role")
    stamp(k, 0, 0, vt=120)
    k("v_lshrrev_b32 v2, 4, v1")
    k("v_and_b32 v3, 15, v1")
    k("s_lshl_b32 s40, s%d, 2", S_WAVE)
    k("v_add_u32 v2, s40, v2")
    k("v_lshlrev_b32 v4, 10, v2")
    k("v_lshl_add_u32 v4, v3, 4, v4")
    k("s_lshl_b32 s41, s%d, 14", s_tile)
    for it in range(4):
        k("buffer_load_dwordx4 %s, v4, %s, s41 offen offset:%d", v(8 + 4 * it, 4), s(S_X, 4), it * 256)
    k("v_lshrrev_b32 v5, 2, v3")
    k("v_lshlrev_b32 v5, 10, v5")
    k("v_and_b32 v6, 3, v3")
    k("v_lshl_add_u32 v5, v6, 8, v5")
    k("v_lshl_add_u32 v5, v2, 4, v5")
    X = 32
    for it in range(4):
        k("s_waitcnt vmcnt(%d)", 3 - it)
        for j in range(4):
            k("v_lshlrev_b32 %s, 16, %s", v(X + 8 * it + 2 * j), v(8 + 4 * it + j))
            k("v_and_b32 %s, 0xffff0000, %s", v(X + 8 * it + 2 * j + 1), v(8 + 4 * it + j))
    k("v_add_f32 v24, %s, %s", v(X), v(X + 1))
    k("v_add_f32 v25, %s, %s", v(X + 2), v(X + 3))
    for i in range(4, 32, 2):
        k("v_add_f32 v24, v24, %s", v(X + i))
        k("v_add_f32 v25, v25, %s", v(X + i + 1))
    k("v_add_f32 v24, v24, v25")
    row16_allreduce_add(k, 24)
    k("v_mul_f32 v24, 0x3b000000, v24")
    k("v_mov_b32 v25, 0")
    k("v_mov_b32 v26, 0")
    for i in range(0, 32, 2):
        k("v_sub_f32 v27, %s, v24", v(X + i))
        k("v_sub_f32 v28, %s, v24", v(X + i + 1))
        k("v_fmac_f32 v25, v27, v27")
        k("v_fmac_f32 v26, v28, v28")
    k("v_add_f32 v25, v25, v26")
    row16_allreduce_add(k, 25)
    k("v_mul_f32 v25, 0x3b000000, v25")
    ln_finish(k, X, 32, 24, 25, 26, 27, 8)
    for it in range(4):
        k("s_add_u32 s42, s41, 0x%x", XN + it * 4096)
        k("buffer_store_dwordx4 %s, v5, %s, s42 offen %s", v(8 + 4 * it, 4), s(S_WS, 4), ST)
    stamp(k, 0, 1, vt=120)

def stage_rows256(k, srd, s_base, pitch, nrows, vaddr, lds_off=0):
    k("v_lshrrev_b32 %s, 4, v1", v(vaddr + 1))
    k("v_lshlrev_b32 %s, 2, %s", v(vaddr), v(vaddr + 1))
    k("v_xor_b32 %s, %s, v1", v(vaddr), v(vaddr))
    k("v_and_b32 %s, 15, %s", v(vaddr), v(vaddr))
    k("v_lshlrev_b32 %s, 4, %s", v(vaddr), v(vaddr))
    k("s_mov_b32 s44, %d", pitch)
    k("v_mad_u32_u24 %s, %s, s44, %s", v(vaddr), v(vaddr + 1), v(vaddr))
    k("s_mul_i32 s44, s%d, %d", S_WAVE, 4 * pitch)
    k("s_add_u32 s44, s44, s%d", s_base)
    k("s_lshl_b32 s45, s%d, 10", S_WAVE)
    if lds_off: k("s_add_u32 s45, s45, %d", lds_off)
    n = nrows // 16
    for i in range(n):
        k("s_mov_b32 m0, s45")
        k("buffer_load_dwordx4 %s, %s, s44 offen lds", v(vaddr), s(srd, 4))
        if i < n - 1:
            k("s_add_u32 s44, s44, %d", 16 * pitch)
            k("s_add_u32 s45, s45, 4096")

def frag_addr256(k, va, vtmp, lds_off=0):
    k("v_lshrrev_b32 %s, 4, v1", v(va))
    k("v_lshlrev_b32 %s, 3, %s", v(va), v(va))
    k("v_bfe_u32 %s, v1, 2, 2", v(vtmp))
    k("v_add_u32 %s, %s, %s", v(va), v(va), v(vtmp))
    k("v_lshlrev_b32 %s, 8, %s", v(va), v(va))
    k("v_xor_b32 %s, s%d, %s", v(vtmp), S_WAVE, v(vtmp))
    k("v_lshl_add_u32 %s, %s, 6, %s", v(va), v(vtmp), v(va))
    k("v_and_b32 %s, 3, v1", v(vtmp))
    k("v_lshl_add_u32 %s, %s, 4, %s", v(va), v(vtmp), v(va))
    if lds_off: k("v_add_u32 %s, %d, %s", v(va), lds_off, v(va))
    k("v_add_u32 %s, 0x10000, %s", v(va + 1), v(va))

def read_frags256(k, va, WREG):
    for ks in range(16):
        for t in range(2):
            for y in range(2):
                off = ks * 8192 + y * 1024 + 8 * t
                k("ds_read_b64_tr_b16 %s, %s offset:%d", u(WREG + (t * 16 + ks) * 4 + 2 * y, 2),
                  v(va + (off >> 16)), off & 0xffff)
        if ks % 3 == 2: k("s_waitcnt lgkmcnt(4)")
    k("s_waitcnt lgkmcnt(0)")

def seg_gemm_loop(k, WREG, w_is_a, s_src, src_stride, niter_sreg, epilogue, n_epi_vm, pre_dma=None, publish=None, tag="G"):
    PF = 8; NB = 16; FW = 16; ACC = 80
    k("v_lshlrev_b32 v4, 4, v1")
    k("v_mov_b32 v5, v4")
    k("s_lshl_b32 s48, s%d, 13", S_WAVE)
    k("s_add_u32 s49, s%d, s48", s_src)
    k("s_mov_b32 s50, s48")
    k("s_mov_b32 s51, 0")
    k("s_mov_b32 s52, 0")
    def dma_piece(p):
        if p == 0:
            if pre_dma: pre_dma(k)
            k("s_cmp_lt_u32 s52, s%d", niter_sreg)
            k("s_cselect_b32 s53, s49, 0")
            k("s_mov_b32 m0, s50")
        if p == 4:
            k("s_add_u32 s53, s53, 4096")
            k("s_add_u32 m0, s50, 4096")
        k("buffer_load_dwordx4 v4, %s, s53 offen offset:%d %s lds", s(S_WS, 4), (p % 4) * 1024, LD)
        if p == 7:
            k("s_add_u32 s49, s49, %s", src_stride)
            k("s_add_u32 s50, s50, 0x8000")
            k("s_and_b32 s50, s50, 0x1ffff")
            k("s_add_u32 s52, s52, 1")
    for i in range(2):
        for p in range(8): dma_piece(p)
    dma_piece(0); dma_piece(1)
    for j in range(n_epi_vm): k("buffer_load_dword v7, v4, %s, 0 offen", s(S_WS, 4))
    k("s_waitcnt vmcnt(%d)", 10 + n_epi_vm)
    k("s_barrier")
    for f in range(PF):
        k("ds_read_b128 %s, v5 offset:%d", v(FW + 4 * (f % NB), 4), f * 1024)
    lp = k.lab(tag + "loop")
    k.L(lp)
    k("v_add_u32 v6, 0x8000, v5")
    k("v_and_b32 v6, 0x1ffff, v6")
    for f in range(32):
        mt, ks = f // 16, f % 16
        if f == 32 - PF:
            k("s_waitcnt vmcnt(%d)", 8 + n_epi_vm)
            k("s_barrier")
            if publish: publish(k)
        g = f + PF
        if g < 32: k("ds_read_b128 %s, v5 offset:%d", v(FW + 4 * (g % NB), 4), g * 1024)
        else: k("ds_read_b128 %s, v6 offset:%d", v(FW + 4 * (g % NB), 4), (g - 32) * 1024)
        k("s_waitcnt lgkmcnt(%d)", PF)
        for t in range(2):
            acc = v(ACC + (mt * 2 + t) * 4, 4)
            wf = u(WREG + (t * 16 + ks) * 4, 4); xf = v(FW + 4 * (f % NB), 4)
            A, B = (wf, xf) if w_is_a else (xf, wf)
            k("v_mfma_f32_16x16x32_bf16 %s, %s, %s, %s", acc, A, B, "0" if ks == 0 else acc)
            if t == 0 and f % 4 == 0: dma_piece(((f + 8) // 4) % 8)
    epilogue(k, ACC)
    k("v_mov_b32 v5, v6")
    k("s_add_u32 s51, s51, 1")
    k("s_cmp_lt_u32 s51, s%d", niter_sreg)
    k("s_cbranch_scc1 %s", lp)
    k("s_waitcnt vmcnt(0) lgkmcnt(0)")

def role_qkv(k, s_idx, pre_dma=None, publish=None):
    k.c("---- QKV role")
    stamp(k, 1, 0, vt=120)
    WREG = 128
    k("s_lshr_b32 s32, s%d, 6", s_idx)
    k("s_bfe_u32 s33, s%d, 0x50001", s_idx)
    k("s_and_b32 s34, s%d, 1", s_idx)
    k("s_lshl_b32 s35, s32, 3")
    k("s_add_u32 s35, s35, 24")
    k("s_cmp_eq_u32 s32, 2")
    k("s_cselect_b32 s35, 16, s35")
    k("s_load_dwordx2 %s, s[0:1], s35", s(S_W, 2))
    k("s_lshl_b32 s36, s33, 8")
    k("s_waitcnt lgkmcnt(0)")
    fin_srd(k, 'Wq', S_W)
    stage_rows256(k, S_W, 36, 8192, 512, 8)
    frag_addr256(k, 10, 12)
    k("s_waitcnt vmcnt(0)")
    k("s_barrier")
    stamp(k, 1, 1, vt=120)
    read_frags256(k, 10, WREG)
    k("s_barrier")
    stamp(k, 1, 2, vt=120)
    k("s_lshl_b32 s37, s32, 24")
    k("s_add_u32 s37, s37, 0x%x", KIMG)
    k("s_cmp_eq_u32 s32, 2")
    k("s_cselect_b32 s37, 0x%x, s37", QIMG)
    k("s_lshl_b32 s38, s33, 13")
    k("s_add_u32 s37, s37, s38")
    k("s_lshl_b32 s38, s34, 18")
    k("s_add_u32 s37, s37, s38")
    k("s_lshl_b32 s38, s34, 15")
    if XN: k("s_add_u32 s38, s38, 0x%x", XN)
    k("s_mov_b32 s39, 32")
    lv = k.lab("QKVv"); lend = k.lab("QKVend")
    k("s_cmp_eq_u32 s32, 1")
    k("s_cbranch_scc1 %s", lv)
    def epi_qk(k, ACC):
        for mt in range(2):
            for t in range(2):
                for h in range(2):
                    r = ACC + (mt * 2 + t) * 4 + 2 * h
                    k("v_cvt_pk_bf16_f32 %s, %s, %s", v(112 + mt * 4 + t * 2 + h), v(r), v(r + 1))
        k("buffer_store_dwordx4 v[112:115], v4, %s, s37 offen %s", s(S_WS, 4), ST)
        k("s_add_u32 s40, s37, 4096")
        k("buffer_store_dwordx4 v[116:119], v4, %s, s40 offen %s", s(S_WS, 4), ST)
        k("s_add_u32 s37, s37, 0x80000")
    k("s_lshl_b32 s40, s%d, 10", S_WAVE)
    k("s_add_u32 s37, s37, s40")
    seg_gemm_loop(k, WREG, True, 38, "0x10000", 39, epi_qk, 2, pre_dma, publish, tag="QK")
    k("s_branch %s", lend)
    k.L(lv)
    def epi_v(k, ACC):
        for t in range(2):
            for mt in range(2):
                for h in range(2):
                    r = ACC + (mt * 2 + t) * 4 + 2 * h
                    k("v_cvt_pk_bf16_f32 %s, %s, %s", v(112 + t * 4 + mt * 2 + h), v(r), v(r + 1))
        k("buffer_store_dwordx4 v[112:115], v4, %s, s37 offen %s", s(S_WS, 4), ST)
        k("buffer_store_dwordx4 v[116:119], v4, %s, s37 offen offset:1024 %s", s(S_WS, 4), ST)
        k("s_add_u32 s37, s37, 0x80000")
    k("s_lshl_b32 s40, s%d, 11", S_WAVE)
    k("s_add_u32 s37, s37, s40")
    seg_gemm_loop(k, WREG, False, 38, "0x10000", 39, epi_v, 2, pre_dma, publish, tag="V")
    k.L(lend)
    stamp(k, 1, 3, vt=120)
```

```python
from roles import *
from chain import xmax
import struct
def f2u(x): return struct.unpack('<I', struct.pack('<f', x))[0]
CSC = 0.08838834764831845 * 1.4426950408889634
def MF(d, A, B, first): return "v_mfma_f32_16x16x32_bf16 %s, %s, %s, %s" % (v(d, 4), u(A, 4), u(B, 4), "0" if first else v(d, 4))
def M16(d, A, B): return "v_mfma_f32_16x16x16_bf16 %s, %s, %s, %s" % (v(d, 4), v(A, 2), v(B, 2), v(d, 4))
def CV(d, a_, b_): return "v_cvt_pk_bf16_f32 %s, %s, %s" % (v(d), v(a_), v(b_))

def xsum(k, r, tmp):
    k("v_mov_b32 %s, %s", v(tmp), v(r))
    k("v_permlane32_swap_b32 %s, %s", v(r), v(tmp))
    k("v_add_f32 %s, %s, %s", v(r), v(r), v(tmp))
    k("v_mov_b32 %s, %s", v(tmp), v(r))
    k("v_permlane16_swap_b32 %s, %s", v(r), v(tmp))
    k("v_add_f32 %s, %s, %s", v(r), v(r), v(tmp))

def role_bc(k, s_idx, s_seg, nstride, wait_qkv=None, wait_kvm=None, publish=None):
    k.c("---- BC role")
    W = s(S_WS, 4); WREG = 256
    load_srd(k, 'Wo', S_W)
    k("s_lshr_b32 s32, s%d, 2", s_idx)
    k("s_and_b32 s33, s%d, 3", s_idx)
    k("s_lshl_b32 s36, s32, 19")
    k("s_lshl_b32 s37, s33, 8")
    k("s_add_u32 s36, s36, s37")
    k("s_waitcnt lgkmcnt(0)")
    fin_srd(k, 'Wo', S_W)
    stage_rows256(k, S_W, 36, 1024, 512, 8)
    frag_addr256(k, 10, 12)
    k("s_waitcnt vmcnt(0)")
    k("s_barrier")
    read_frags256(k, 10, WREG)
    k("s_barrier")
    QF, KF, VF, KV, XK = 16, 48, 80, 112, 128
    T, TM, P, PM, OT, FW, ACC = 144, 156, 164, 172, 180, 192, 180
    aL16, aXW, aXR, aOW, aOR = 4, 5, 6, 7, 8
    k("v_lshlrev_b32 v4, 4, v1")
    k("v_and_b32 v10, 15, v1")
    k("v_lshrrev_b32 v11, 4, v1")
    k("v_bfe_u32 v12, v1, 2, 2")
    k("v_and_b32 v13, 3, v1")
    k("s_lshl_b32 s38, s%d, 12", S_WAVE)
    k("s_add_u32 s38, s38, 65536")
    k("v_lshl_add_u32 v14, v12, 3, v13")
    k("v_lshlrev_b32 v14, 5, v14")
    k("v_lshl_add_u32 v14, v11, 3, v14")
    k("v_add_u32 v%d, s38, v14", aXW)
    k("v_lshl_add_u32 v14, v11, 3, v12")
    k("v_lshlrev_b32 v14, 5, v14")
    k("v_lshl_add_u32 v14, v13, 3, v14")
    k("v_add_u32 v%d, s38, v14", aXR)
    k("s_lshl_b32 s38, s%d, 12", S_WAVE)
    k("v_add_u32 v%d, s38, v4", aOW)
    k("v_mov_b32 v%d, v4", aOR)
    k("v_lshlrev_b32 v14, 2, v11")
    for j in range(4):
        k("v_add_u32 v15, %d, v14", j)
        k("v_cmp_gt_u32 %s, v15, v10", s(64 + 2 * j, 2))
    k("v_mov_b32 v9, 0xff800000")
    k("s_mov_b32 s41, 0x%x", f2u(CSC))
    k("s_lshl_b32 s34, s32, 2")
    k("s_add_u32 s34, s34, s%d", S_WAVE)
    k("s_lshl_b32 s35, s34, 13")
    k("s_lshl_b32 s39, s34, 12")
    k("s_lshl_b32 s40, s33, 2")
    k("s_add_u32 s40, s40, s%d", S_WAVE)
    k("s_lshl_b32 s40, s40, 11")
    k("s_lshl_b32 s38, s32, 16")
    k("s_add_u32 s40, s40, s38")
    k("s_add_u32 s40, s40, 0x%x", PART)
    def load_qkv(sseg):
        k("s_lshl_b32 s42, s%d, 18", sseg)
        k("s_add_u32 s42, s42, s35")
        for base, R in ((QIMG, QF), (KIMG, KF), (VIMG, VF)):
            for hf in range(2):
                k("s_add_u32 s43, s42, 0x%x", base + hf * 4096)
                for i in range(4):
                    k("buffer_load_dwordx4 %s, v4, %s, s43 offen offset:%d %s", v(R + 16 * hf + 4 * i, 4), W, i * 1024, LD)
    if wait_qkv: wait_qkv(k, s_seg)
    load_qkv(s_seg)
    lp = k.lab("BCl")
    k.L(lp)
    if wait_kvm: wait_kvm(k, s_seg)
    k("s_lshl_b32 s42, s%d, 17", s_seg)
    k("s_add_u32 s42, s42, s39")
    k("s_add_u32 s42, s42, 0x%x", KM)
    for i in range(4):
        k("buffer_load_dwordx4 %s, v4, %s, s42 offen offset:%d %s", v(KV + 4 * i, 4), W, i * 1024, LD)
    k("s_waitcnt vmcnt(12)")
    k(".aw_on")
    for kb in range(4):
        k(MF(T, KF + 4 * kb, QF + 4 * kb, kb == 0))
        k(MF(T + 4, KF + 4 * kb, QF + 16 + 4 * kb, kb == 0))
        k(MF(T + 8, KF + 16 + 4 * kb, QF + 16 + 4 * kb, kb == 0))
    k("s_waitcnt vmcnt(0)")
    for i in range(4):
        k("ds_write2_b32 v%d, %s, %s offset0:0 offset1:32", aXW, v(KV + 4 * i), v(KV + 4 * i + 1))
        if i < 3: k("v_add_u32 v%d, 1024, v%d", aXW, aXW)
    k("v_subrev_u32 v%d, 3072, v%d", aXW, aXW)
    k(".aw_writes")
    for i in range(8):
        k("ds_read_b64_tr_b16 %s, v%d offset:%d", v(XK + 2 * i, 2), aXR, (i >> 1) * 1024 + (i & 1) * 128)
    for j in range(4):
        k("v_cndmask_b32 %s, %s, v9, %s", v(T + j), v(T + j), s(64 + 2 * j, 2))
        k("v_cndmask_b32 %s, %s, v9, %s", v(T + 8 + j), v(T + 8 + j), s(64 + 2 * j, 2))
    for kb in range(4):
        k(MF(TM, XK + 4 * kb, QF + 4 * kb, kb == 0))
        k(MF(TM + 4, XK + 4 * kb, QF + 16 + 4 * kb, kb == 0))
    MX, SM, TMP = 10, 12, 14
    vals = [[T + j for j in range(4)] + [TM, TM + 1], [T + 4 + j for j in range(8)] + [TM + 4, TM + 5]]
    for mt in range(2):
        vs = vals[mt]
        k("v_max_f32 %s, %s, %s", v(MX + mt), v(vs[0]), v(vs[1]))
        for i in range(2, len(vs), 2):
            k("v_max3_f32 %s, %s, %s, %s", v(MX + mt), v(vs[i]), v(vs[i + 1]), v(MX + mt))
    for mt in range(2): xmax(k, MX + mt, TMP + mt)
    for mt in range(2):
        k("v_mul_f32 %s, s41, %s", v(MX + mt), v(MX + mt))
        for r in vals[mt]: k("v_fma_f32 %s, %s, s41, -%s", v(r), v(r), v(MX + mt))
        for r in vals[mt]: k("v_exp_f32 %s, %s", v(r), v(r))
    for mt in range(2):
        vs = vals[mt]
        k("v_add_f32 %s, %s, %s", v(SM + mt), v(vs[0]), v(vs[1]))
        for r in vs[2:]: k("v_add_f32 %s, %s, %s", v(SM + mt), v(SM + mt), v(r))
    for mt in range(2): xsum(k, SM + mt, TMP + mt)
    for mt in range(2): k("v_rcp_f32 %s, %s", v(SM + mt), v(SM + mt))
    for mt in range(2):
        for r in vals[mt]: k("v_mul_f32 %s, %s, %s", v(r), v(r), v(SM + mt))
    k(CV(P, T, T + 1)); k(CV(P + 1, T + 2, T + 3)); k("v_mov_b32 %s, 0", v(P + 2)); k("v_mov_b32 %s, 0", v(P + 3))
    for i in range(4): k(CV(P + 4 + i, T + 4 + 2 * i, T + 5 + 2 * i))
    for mt in range(2):
        k(CV(PM + 4 * mt, TM + 4 * mt, TM + 4 * mt + 1)); k("v_mov_b32 %s, 0", v(PM + 4 * mt + 1))
        k("v_mov_b32 %s, 0", v(PM + 4 * mt + 2)); k(CV(PM + 4 * mt + 3, TM + 4 * mt, TM + 4 * mt + 1))
    O = lambda wp, mt, t: FW + ((wp * 2 + mt) * 2 + t) * 4
    for wp in range(4):
        for mt in range(2):
            for t in range(2): k(MF(O(wp, mt, t), VF + 4 * (2 * wp + t), P + 4 * mt, True))
        for mt in range(2):
            for t in range(2): k(M16(O(wp, mt, t), KV + 4 * wp + 2, PM + 4 * mt + 2 * t))
    k("s_add_u32 s44, s%d, %d", s_seg, nstride)
    k("s_min_u32 s45, s44, 63")
    lnw = k.lab("BCnw")
    if wait_qkv:
        k("s_cmp_ge_u32 s44, 64")
        k("s_cselect_b32 s45, s%d, s45", s_seg)
        wait_qkv(k, 45)
    load_qkv(45)
    for wp in range(4):
        for mt in range(2):
            o0 = O(wp, mt, 0)
            for i in range(4): k(CV(o0 + i, o0 + 2 * i, o0 + 2 * i + 1))
            k("ds_write_b128 v%d, %s offset:%d", aOW, v(o0, 4), mt * 16384 + wp * 1024)
    k(".aw_writes")
    k("s_barrier")
    PF = 8
    AC = T
    for f in range(PF): k("ds_read_b128 %s, v%d offset:%d", v(FW + 4 * (f % 16), 4), aOR, f * 1024)
    for f in range(32):
        mt, ks = f // 16, f % 16
        if f + PF < 32: k("ds_read_b128 %s, v%d offset:%d", v(FW + 4 * ((f + PF) % 16), 4), aOR, (f + PF) * 1024)
        for t in range(2): k(MF(AC + (mt * 2 + t) * 4, WREG + (t * 16 + ks) * 4, FW + 4 * (f % 16), ks == 0))
        if f == 20:
            k("s_lshl_b32 s42, s%d, 19", s_seg)
            k("s_add_u32 s42, s42, s40")
            for t in range(2): k("buffer_store_dwordx4 %s, v4, %s, s42 offen offset:%d %s", v(AC + 4 * t, 4), W, t * 1024, ST)
    k(".aw_off")
    k("s_add_u32 s42, s42, 32768")
    for t in range(2): k("buffer_store_dwordx4 %s, v4, %s, s42 offen offset:%d %s", v(AC + 8 + 4 * t, 4), W, t * 1024, ST)
    k("v_xor_b32 v%d, 0x8000, v%d", aOW, aOW)
    k("v_xor_b32 v%d, 0x8000, v%d", aOR, aOR)
    if publish: publish(k, s_seg)
    k("s_mov_b32 s%d, s44", s_seg)
    k("s_cmp_lt_u32 s%d, 64", s_seg)
    k("s_waitcnt vmcnt(0)")
    k("s_cbranch_scc1 %s", lp)

def role_red(k, s_tq, s_seg, nstride, wait=None, publish=None):
    k.c("---- R role")
    W = s(S_WS, 4)
    k("v_and_b32 v10, 3, v1")
    k("v_bfe_u32 v11, v1, 2, 2")
    k("v_lshrrev_b32 v12, 4, v1")
    k("s_lshl_b32 s32, s%d, 2", S_WAVE)
    k("v_add_u32 v12, s32, v12")
    k("s_and_b32 s33, s%d, 3", s_tq)
    k("s_lshl_b32 s33, s33, 2")
    k("v_add_u32 v13, s33, v10")
    k("v_lshl_add_u32 v14, v11, 4, v13")
    k("v_lshlrev_b32 v14, 4, v14")
    k("v_lshl_add_u32 v4, v12, 11, v14")
    k("v_lshl_add_u32 v5, v12, 10, v14")
    k("v_lshlrev_b32 v6, 10, v13")
    k("v_lshl_add_u32 v6, v12, 6, v6")
    k("v_lshl_add_u32 v6, v11, 4, v6")
    k("s_lshr_b32 s34, s%d, 2", s_tq)
    k("s_lshl_b32 s35, s34, 15")
    k("s_add_u32 s35, s35, 0x%x", PART)
    k("s_lshl_b32 s36, s34, 14")
    k("s_lshl_b32 s37, s%d, 5", S_WAVE)
    k("v_lshlrev_b32 v8, 3, v10")
    k("v_add_u32 v7, s37, v8")
    lp = k.lab("Rl")
    k.L(lp)
    k("s_lshl_b32 s39, s%d, 15", s_seg)
    k("s_add_u32 s39, s39, s36")
    k("buffer_load_dwordx4 v[16:19], v6, %s, s39 offen", s(S_X, 4))
    if wait: wait(k, s_seg)
    k("s_lshl_b32 s38, s%d, 19", s_seg)
    k("s_add_u32 s38, s38, s35")
    PB = 32
    for hg in range(8):
        for t in range(2):
            k("buffer_load_dwordx4 %s, v4, %s, s38 offen offset:%d %s", v(PB + 8 * hg + 4 * t, 4), W, t * 1024, LD)
        if hg < 7: k("s_add_u32 s38, s38, 65536")
    X = 20
    k("s_waitcnt vmcnt(16)")
    for j in range(4):
        k("v_lshlrev_b32 %s, 16, %s", v(X + 2 * j), v(16 + j))
        k("v_and_b32 %s, 0xffff0000, %s", v(X + 2 * j + 1), v(16 + j))
    for hg in range(1, 8):
        k("s_waitcnt vmcnt(%d)", 14 - 2 * hg)
        for i in range(8): k("v_add_f32 %s, %s, %s", v(PB + i), v(PB + i), v(PB + 8 * hg + i))
    H = 40
    for i in range(0, 8, 2):
        k(CV(28, PB + i, PB + i + 1))
        k("v_lshlrev_b32 v29, 16, v28")
        k("v_and_b32 v28, 0xffff0000, v28")
        k("v_add_f32 %s, %s, v29", v(X + i), v(X + i))
        k("v_add_f32 %s, %s, v28", v(X + i + 1), v(X + i + 1))
        k(CV(H + i // 2, X + i, X + i + 1))
        k("v_lshlrev_b32 %s, 16, %s", v(X + i), v(H + i // 2))
        k("v_and_b32 %s, 0xffff0000, %s", v(X + i + 1), v(H + i // 2))
    k("s_add_u32 s38, s39, 0x%x", HIMG)
    k("buffer_store_dwordx4 %s, v5, %s, s38 offen %s", v(H, 4), W, ST)
    def red16(r, tmp):
        for sh in (4, 8): k("v_add_f32_dpp %s, %s, %s row_ror:%d row_mask:0xf bank_mask:0xf", v(r), v(r), v(r), sh)
        xsum(k, r, tmp)
    k("v_add_f32 v44, %s, %s", v(X), v(X + 1))
    for i in range(2, 8): k("v_add_f32 v44, v44, %s", v(X + i))
    red16(44, 46)
    k("v_mul_f32 v44, 0x3c000000, v44")
    k("v_mov_b32 v45, 0")
    for i in range(8):
        k("v_sub_f32 v46, %s, v44", v(X + i))
        k("v_fmac_f32 v45, v46, v46")
    red16(45, 46)
    k("ds_write_b64 v7, v[44:45]")
    k("s_waitcnt lgkmcnt(0)")
    k("s_barrier")
    for w in range(4): k("ds_read_b64 %s, v8 offset:%d", v(48 + 2 * w, 2), 32 * w)
    k("v_xor_b32 v7, 128, v7")
    k("v_xor_b32 v8, 128, v8")
    k("s_waitcnt lgkmcnt(0)")
    k("v_add_f32 v44, v48, v50"); k("v_add_f32 v46, v52, v54"); k("v_add_f32 v44, v44, v46")
    k("v_mul_f32 v44, 0.25, v44")
    k("v_add_f32 v45, v49, v51"); k("v_add_f32 v46, v53, v55"); k("v_add_f32 v45, v45, v46")
    k("v_mov_b32 v47, 0")
    for w in range(4):
        k("v_sub_f32 v46, %s, v44", v(48 + 2 * w))
        k("v_fmac_f32 v47, v46, v46")
    k("v_mul_f32 v47, 0x43000000, v47")
    k("v_add_f32 v45, v45, v47")
    k("v_mul_f32 v45, 0x3b000000, v45")
    ln_finish(k, X, 8, 44, 45, 46, 47, 56)
    k("s_add_u32 s38, s39, 0x%x", HNIMG)
    k("buffer_store_dwordx4 v[56:59], v5, %s, s38 offen %s", W, ST)
    if publish: publish(k, s_seg)
    k("s_add_u32 s%d, s%d, %d", s_seg, s_seg, nstride)
    k("s_cmp_lt_u32 s%d, 64", s_seg)
    k("s_cbranch_scc1 %s", lp)

def role_up(k, s_u, s_seg, nstride, niter_sreg, pre_dma=None, publish=None):
    k.c("---- U role")
    W = s(S_WS, 4); WREG = 128
    load_srd(k, 'w1', S_W); load_srd(k, 'w3', S_X)
    k("v_lshrrev_b32 v8, 3, v1")
    k("s_mov_b32 s32, 2752")
    k("v_mul_lo_u32 v8, v8, s32")
    k("v_and_b32 v9, 7, v1")
    k("v_lshl_add_u32 v8, v9, 4, v8")
    k("s_lshl_b32 s33, s%d, 7", s_u)
    k("s_mul_i32 s34, s%d, %d", S_WAVE, 8 * 2752)
    k("s_add_u32 s33, s33, s34")
    k("v_add_u32 v8, s33, v8")
    k("s_lshl_b32 s35, s%d, 10", S_WAVE)
    k("s_waitcnt lgkmcnt(0)")
    fin_srd(k, 'w1', S_W); fin_srd(k, 'w3', S_X)
    for i in range(16):
        k("s_add_u32 m0, s35, %d", i * 4096)
        k("buffer_load_dwordx4 v8, %s, 0 offen lds", s(S_W, 4))
        k("s_add_u32 m0, s35, %d", 65536 + i * 4096)
        k("buffer_load_dwordx4 v8, %s, 0 offen lds", s(S_X, 4))
        if i < 15: k("v_add_u32 v8, %d, v8", 32 * 2752)
    k("v_lshrrev_b32 v10, 4, v1")
    k("v_bfe_u32 v12, v1, 2, 2")
    k("v_lshl_add_u32 v10, v10, 3, v12")
    k("v_lshlrev_b32 v10, 7, v10")
    k("v_and_b32 v12, 3, v1")
    k("v_lshl_add_u32 v10, v12, 4, v10")
    k("s_lshr_b32 s36, s%d, 1", S_WAVE)
    k("s_lshl_b32 s37, s36, 6")
    k("s_and_b32 s38, s%d, 1", S_WAVE)
    k("s_lshl_b32 s38, s38, 3")
    k("s_add_u32 s37, s37, s38")
    k("v_add_u32 v10, s37, v10")
    k("v_add_u32 v11, 0x10000, v10")
    k("s_waitcnt vmcnt(0)")
    k("s_barrier")
    for ks in range(16):
        for t in range(2):
            for y in range(2):
                k("ds_read_b64_tr_b16 %s, v%d offset:%d", u(WREG + (t * 16 + ks) * 4 + 2 * y, 2), 10 + t, ks * 4096 + y * 512)
        if ks % 3 == 2: k("s_waitcnt lgkmcnt(4)")
    k("s_waitcnt lgkmcnt(0)")
    k("s_barrier")
    k("s_lshl_b32 s39, s%d, 1", s_u)
    k("s_add_u32 s39, s39, s36")
    k("v_lshlrev_b32 v12, 4, v1")
    k("v_add_u32 v12, s38, v12")
    k("s_cmp_lt_u32 s39, 43")
    k("s_cselect_b32 s40, 0, 0x40000000")
    k("v_add_u32 v12, s40, v12")
    k("s_lshl_b32 s39, s39, 10")
    k("s_mul_i32 s40, s%d, 88064", s_seg)
    k("s_add_u32 s39, s39, s40")
    k("s_add_u32 s39, s39, 0x%x", ACT)
    k("s_lshl_b32 s38, s%d, 15", s_seg)
    k("s_add_u32 s38, s38, 0x%x", HNIMG)
    k("s_mov_b32 s41, 0xbfb8aa3b")
    def epi(k, ACC):
        for mt in range(2):
            g0 = ACC + mt * 8; u0 = g0 + 4
            for r in (g0, g0 + 2, u0, u0 + 2):
                k(CV(112, r, r + 1))
                k("v_lshlrev_b32 %s, 16, v112", v(r))
                k("v_and_b32 %s, 0xffff0000, v112", v(r + 1))
            for j in range(4): k("v_mul_f32 %s, s41, %s", v(112 + j), v(g0 + j))
            for j in range(4): k("v_exp_f32 %s, %s", v(112 + j), v(112 + j))
            for j in range(4): k("v_add_f32 %s, 1.0, %s", v(112 + j), v(112 + j))
            for j in range(4): k("v_rcp_f32 %s, %s", v(112 + j), v(112 + j))
            for j in range(4): k("v_mul_f32 %s, %s, %s", v(g0 + j), v(g0 + j), v(112 + j))
            for r in (g0, g0 + 2):
                k(CV(112, r, r + 1))
                k("v_lshlrev_b32 %s, 16, v112", v(r))
                k("v_and_b32 %s, 0xffff0000, v112", v(r + 1))
            for j in range(4): k("v_mul_f32 %s, %s, %s", v(g0 + j), v(g0 + j), v(u0 + j))
            k(CV(116 + 2 * mt, g0, g0 + 1)); k(CV(117 + 2 * mt, g0 + 2, g0 + 3))
            if mt: k("s_add_u32 s40, s39, 44032")
            k("buffer_store_dwordx2 %s, v12, %s, s%d offen %s", v(116 + 2 * mt, 2), W, 40 if mt else 39, ST)
        k("s_add_u32 s39, s39, %d", 88064 * nstride)
    seg_gemm_loop(k, WREG, True, 38, "0x%x" % (32768 * nstride), niter_sreg, epi, 2, pre_dma, publish, tag="U")

def role_dn(k, s_dn, s_seg, nstride, wait=None):
    k.c("---- Dn role")
    W = s(S_WS, 4); WREG = 256
    load_srd(k, 'w2', S_W)
    k("v_lshrrev_b32 v8, 2, v1")
    k("v_lshlrev_b32 v8, 10, v8")
    k("v_and_b32 v9, 3, v1")
    k("v_lshl_add_u32 v8, v9, 4, v8")
    k("s_mul_i32 s32, s%d, %d", S_WAVE, 352 * 1024)
    k("s_lshl_b32 s33, s%d, 6", s_dn)
    k("s_add_u32 s32, s32, s33")
    k("v_add_u32 v8, s32, v8")
    k("s_mul_i32 s35, s%d, 22528", S_WAVE)
    k("s_waitcnt lgkmcnt(0)")
    fin_srd(k, 'w2', S_W)
    for i in range(22):
        k("s_add_u32 m0, s35, %d", i * 1024)
        k("buffer_load_dwordx4 v8, %s, 0 offen lds", s(S_W, 4))
        if i < 21: k("v_add_u32 v8, 16384, v8")
    k("v_lshrrev_b32 v11, 4, v1")
    k("v_bfe_u32 v12, v1, 2, 2")
    k("v_lshl_add_u32 v10, v11, 3, v12")
    k("v_lshlrev_b32 v10, 6, v10")
    k("v_lshl_add_u32 v10, v9, 4, v10")
    k("v_add_u32 v10, s35, v10")
    k("s_waitcnt vmcnt(0)")
    for ks in range(11):
        for t in range(2):
            for y in range(2):
                k("ds_read_b64_tr_b16 %s, v10 offset:%d", u(WREG + (t * 11 + ks) * 4 + 2 * y, 2), ks * 2048 + y * 256 + 8 * t)
        if ks % 3 == 2: k("s_waitcnt lgkmcnt(4)")
    k("s_waitcnt lgkmcnt(0)")
    k("s_barrier")
    k("v_lshlrev_b32 v4, 4, v1")
    k("s_cmp_eq_u32 s%d, 3", S_WAVE)
    k("s_cselect_b32 s36, 0x40000000, 0")
    k("v_add_u32 v5, s36, v4")
    k("s_mul_i32 s36, s%d, 11264", S_WAVE)
    k("s_add_u32 s36, s36, 0x%x", ACT)
    k("s_lshl_b32 s37, s%d, 12", S_WAVE)
    k("v_add_u32 v6, s37, v4")
    k("s_and_b32 s38, s%d, 1", S_WAVE)
    k("s_lshl_b32 s37, s38, 11")
    k("v_add_u32 v7, s37, v4")
    k("s_lshl_b32 s39, s38, 14")
    k("s_lshl_b32 s40, s%d, 10", s_dn)
    k("s_add_u32 s40, s40, s39")
    k("s_add_u32 s40, s40, 0x%x", HIMG)
    k("s_add_u32 s39, s39, s33")
    k("v_and_b32 v12, 15, v1")
    k("v_lshlrev_b32 v12, 10, v12")
    k("v_lshl_add_u32 v12, v11, 4, v12")
    AF = 32; AC = 16
    lp = k.lab("Dl"); lsk = k.lab("Dsk")
    k.L(lp)
    if wait: wait(k, s_seg)
    k("s_mul_i32 s41, s%d, 88064", s_seg)
    k("s_add_u32 s41, s41, s36")
    for mt in range(2):
        for ks in range(11):
            if ks % 4 == 0: k("s_add_u32 s42, s41, %d", mt * 44032 + ks * 1024)
            k("buffer_load_dwordx4 %s, v%d, %s, s42 offen offset:%d %s", v(AF + (mt * 11 + ks) * 4, 4), 5 if ks == 10 else 4, W, (ks % 4) * 1024, LD)
    k("s_lshl_b32 s43, s%d, 15", s_seg)
    k("s_add_u32 s42, s43, s40")
    k("buffer_load_dwordx4 v[120:123], v4, %s, s42 offen %s", W, LD)
    for mt in range(2):
        for ks in range(11):
            k("s_waitcnt vmcnt(%d)", 22 - (mt * 11 + ks))
            for t in range(2): k(MF(AC + (mt * 2 + t) * 4, WREG + (t * 11 + ks) * 4, AF + (mt * 11 + ks) * 4, ks == 0))
    for i in range(4): k("ds_write_b128 v6, %s offset:%d", v(AC + 4 * i, 4), i * 1024)
    k("s_waitcnt lgkmcnt(0)")
    k("s_barrier")
    k("s_cmp_ge_u32 s%d, 2", S_WAVE)
    k("s_cbranch_scc1 %s", lsk)
    for w in range(4):
        for t in range(2): k("ds_read_b128 %s, v7 offset:%d", v(AF + 8 * w + 4 * t, 4), w * 4096 + t * 1024)
    k("s_waitcnt vmcnt(0)")
    for j in range(4):
        k("v_lshlrev_b32 %s, 16, %s", v(72 + 2 * j), v(120 + j))
        k("v_and_b32 %s, 0xffff0000, %s", v(73 + 2 * j), v(120 + j))
    k("s_waitcnt lgkmcnt(0)")
    for i in range(8):
        k("v_add_f32 %s, %s, %s", v(AF + i), v(AF + i), v(AF + 8 + i))
        k("v_add_f32 %s, %s, %s", v(AF + 16 + i), v(AF + 16 + i), v(AF + 24 + i))
        k("v_add_f32 %s, %s, %s", v(AF + i), v(AF + i), v(AF + 16 + i))
    for i in range(0, 8, 2):
        k(CV(80, AF + i, AF + i + 1))
        k("v_lshlrev_b32 v81, 16, v80")
        k("v_and_b32 v80, 0xffff0000, v80")
        k("v_add_f32 %s, %s, v81", v(72 + i), v(72 + i))
        k("v_add_f32 %s, %s, v80", v(73 + i), v(73 + i))
        k(CV(84 + i // 2, 72 + i, 73 + i))
    k("s_add_u32 s42, s43, s39")
    k("buffer_store_dwordx4 v[84:87], v12, %s, s42 offen", s(S_O, 4))
    k.L(lsk)
    k("v_xor_b32 v6, 0x4000, v6")
    k("v_xor_b32 v7, 0x4000, v7")
    k("s_add_u32 s%d, s%d, %d", s_seg, s_seg, nstride)
    k("s_cmp_lt_u32 s%d, 64", s_seg)
    k("s_waitcnt vmcnt(0)")
    k("s_cbranch_scc1 %s", lp)
```

```python
import sys, json
from build_v2 import *
from roles2 import *
def st_rest(kern):
    def bc(k):
        k("s_and_b32 s5, s2, 31"); k("s_lshr_b32 s6, s2, 5")
        role_bc(k, 5, 6, 8)
    kern("bc_kernel", 256, 131072, [('ws', S_WS)], bc)
    def rd(k):
        k("s_and_b32 s5, s2, 7"); k("s_lshr_b32 s6, s2, 3")
        role_red(k, 5, 6, 32)
    kern("red_kernel", 256, 4096, [('ws', S_WS), ('x', S_X)], rd)
    def up(k):
        k("s_lshr_b32 s5, s2, 3"); k("s_and_b32 s6, s2, 7"); k("s_mov_b32 s7, 8")
        role_up(k, 5, 6, 8, 7)
    kern("up_kernel", 176, 131072, [('ws', S_WS)], up)
    def dn(k):
        k("s_and_b32 s5, s2, 15"); k("s_lshr_b32 s6, s2, 4")
        role_dn(k, 5, 6, 16)
    kern("dn_kernel", 256, 131072, [('ws', S_WS), ('out', S_O)], dn)
if __name__ == '__main__':
    o = {"d1a": 10, "d1b": 50, "d2a": 50, "d2b": 10}
    open('v3.s', 'w').write(build([st_chain(), st_rest], stamps=False, copt=o))
```

```python
import re

_REG = re.compile(r'^(-|abs\(|\|)?([vas])(\d+)\)?\|?$')
_RNG = re.compile(r'^(-)?([vas])\[(\d+):(\d+)\]$')

def regs_of(op):
    op = op.strip()
    m = _RNG.match(op)
    if m:
        return [(m.group(2), i) for i in range(int(m.group(3)), int(m.group(4)) + 1)]
    m = _REG.match(op)
    if m:
        return [(m.group(2), int(m.group(3)))]
    if op == 'vcc':
        return [('s', 106), ('s', 107)]
    if op == 'vcc_lo':
        return [('s', 106)]
    if op == 'vcc_hi':
        return [('s', 107)]
    if op == 'exec':
        return [('s', 126), ('s', 127)]
    if op == 'exec_lo':
        return [('s', 126)]
    if op == 'exec_hi':
        return [('s', 127)]
    if op == 'm0':
        return [('s', 124)]
    return []

TRANS = ('v_exp_f32', 'v_log_f32', 'v_rcp_f32', 'v_rsq_f32', 'v_sqrt_f32', 'v_sin_f32', 'v_cos_f32',
         'v_rcp_iflag_f32')

class Ins:
    __slots__ = ('text', 'mn', 'cls', 'wr', 'rd', 'a', 'b', 'c', 'passes', 'states', 'dpp', 'label',
                 'target', 'storedata', 'lds_dma', 'isload', 'uncond', 'laneselect')
    def __init__(self, text):
        self.text = text
        self.mn = None; self.cls = 'other'; self.wr = set(); self.rd = set()
        self.a = set(); self.b = set(); self.c = set(); self.passes = 0; self.states = 1
        self.dpp = False; self.label = None; self.target = None; self.storedata = set()
        self.lds_dma = False; self.isload = False; self.uncond = False; self.laneselect = set()

def parse(text):
    ins = Ins(text)
    t = text.split(';')[0].strip()
    if not t or t.startswith('.'):
        ins.cls = 'dir'; ins.states = 0
        return ins
    if t.endswith(':'):
        ins.cls = 'label'; ins.label = t[:-1]; ins.states = 0
        return ins
    parts = t.split(None, 1)
    mn = parts[0]
    ins.mn = mn
    rest = parts[1] if len(parts) > 1 else ''
    rest = re.sub(r':\[([^\]]*)\]', lambda m: ':[' + m.group(1).replace(',', '/') + ']', rest)
    ops = [o.strip() for o in rest.split(',')]
    mods = ''
    if ops:
        last = ops[-1].split()
        if last:
            ops[-1] = last[0]
            mods = ' '.join(last[1:])
    R = [regs_of(o) for o in ops]
    allr = lambda idxs: set(r for i in idxs if i < len(R) for r in R[i])
    n = len(ops)
    if mn.startswith('v_mfma') or mn.startswith('v_smfmac'):
        ins.cls = 'mfma'
        ins.passes = 8 if '32x32' in mn else 4
        ins.wr = allr([0]); ins.a = allr([1]); ins.b = allr([2])
        if mn.startswith('v_smfmac'):
            ins.c = allr([0]); ins.b |= allr([3])
        else:
            ins.c = allr([3])
        ins.rd = ins.a | ins.b | ins.c
    elif mn.startswith('v_'):
        ins.cls = 'valu'
        base = mn.replace('_e32', '').replace('_e64', '').replace('_dpp', '').replace('_sdwa', '')
        if base in TRANS:
            ins.cls = 'trans'
        if '_dpp' in mn or 'row_' in mods or 'quad_perm' in mods:
            ins.dpp = True
        if base.startswith('v_permlane') or base == 'v_swap_b32':
            ins.cls = 'perm' if base.startswith('v_permlane') else 'valu'
            ins.wr = allr([0, 1]); ins.rd = allr([0, 1])
        elif base.startswith('v_cmp'):
            ins.wr = allr([0]); ins.rd = allr(range(1, n))
            if base.startswith('v_cmpx'):
                ins.wr |= {('s', 126), ('s', 127)}
        elif base in ('v_readfirstlane_b32', 'v_readlane_b32'):
            ins.cls = 'readlane'
            ins.wr = allr([0]); ins.rd = allr(range(1, n)); ins.laneselect = allr([2])
        elif base == 'v_writelane_b32':
            ins.wr = allr([0]); ins.rd = allr(range(0, n)); ins.laneselect = allr([2])
        elif base in ('v_add_co_u32', 'v_sub_co_u32', 'v_addc_co_u32', 'v_subb_co_u32', 'v_subrev_co_u32',
                      'v_div_scale_f32', 'v_mad_u64_u32'):
            ins.wr = allr([0, 1]); ins.rd = allr(range(2, n))
        else:
            ins.wr = allr([0]); ins.rd = allr(range(1, n))
            if base in ('v_fmac_f32', 'v_mac_f32', 'v_dot2c_f32_bf16', 'v_pk_fmac_f16') or ins.dpp:
                ins.rd |= allr([0])
            if base == 'v_cndmask_b32' and n == 3:
                ins.rd |= {('s', 106), ('s', 107)}
    elif mn.startswith('ds_'):
        ins.cls = 'ds'
        if mn.startswith('ds_read') or mn.startswith('ds_bpermute') or mn.startswith('ds_permute') or mn.startswith('ds_swizzle') or '_rtn' in mn:
            ins.wr = allr([0]); ins.rd = allr(range(1, n)); ins.isload = True
        else:
            ins.rd = allr(range(n))
    elif mn.startswith('global_') or mn.startswith('buffer_') or mn.startswith('flat_'):
        ins.cls = 'vmem'
        if mn in ('buffer_inv', 'buffer_wbl2'):
            pass
        elif 'load_lds' in mn or (' lds' in (' ' + mods)):
            ins.lds_dma = True
            ins.rd = allr(range(n)) | {('s', 124)}
        elif '_load' in mn:
            ins.wr = allr([0]); ins.rd = allr(range(1, n)); ins.isload = True
        elif '_store' in mn:
            ins.rd = allr(range(n))
            if 'x4' in mn or 'x3' in mn:
                ins.storedata = allr([1]) if mn.startswith('global') or mn.startswith('flat') else allr([0])
        elif 'atomic' in mn:
            ins.rd = allr(range(n))
            if 'sc0' in mods:
                ins.wr = allr([0]); ins.isload = True
    elif mn.startswith('s_'):
        ins.cls = 'salu'
        if mn == 's_nop':
            ins.states = int(ops[0], 0) + 1
        elif mn.startswith('s_cbranch') or mn == 's_branch':
            ins.target = ops[0]; ins.uncond = (mn == 's_branch')
        elif mn == 's_endpgm':
            ins.uncond = True
        elif mn.startswith('s_cmp') or mn.startswith('s_bitcmp') or mn in ('s_waitcnt', 's_barrier', 's_sleep', 's_setprio'):
            ins.rd = allr(range(n))
        else:
            ins.wr = allr([0]); ins.rd = allr(range(1, n))
            if 'saveexec' in mn:
                ins.wr |= {('s', 126), ('s', 127)}
    return ins

def isv(r): return r[0] in 'va'
VALUISH = ('valu', 'trans', 'perm', 'readlane')

def need(p, c):
    w = 0
    if p.cls in VALUISH:
        pv = set(r for r in p.wr if isv(r)); ps = set(r for r in p.wr if not isv(r))
        if c.cls == 'mfma' and pv & c.rd: w = max(w, 2)
        if c.cls == 'mfma' and ps & {('s', 126), ('s', 127)}: w = max(w, 4)
        if c.cls == 'vmem' and ps & c.rd: w = max(w, 5)
        if c.cls in VALUISH:
            if ps & c.rd: w = max(w, 2)
            if ps & c.laneselect: w = max(w, 4)
            if c.dpp and pv & c.rd: w = max(w, 2)
            if c.cls == 'perm' and pv & c.rd: w = max(w, 2)
            if c.cls == 'readlane' and pv & c.rd: w = max(w, 1)
            if p.cls == 'trans' and c.cls != 'trans' and pv & c.rd: w = max(w, 1)
            if ps & {('s', 126), ('s', 127)}:
                if c.dpp: w = max(w, 5)
                if c.cls in ('perm', 'readlane'): w = max(w, 4)
            if ('op_sel' in p.text or 'sdwa' in p.text) and pv & (c.rd | c.wr): w = max(w, 1)
    if p.cls == 'mfma':
        big = p.passes == 8
        if c.cls == 'mfma':
            if p.wr & (c.a | c.b): w = max(w, 12 if big else 8)
            if p.wr & c.c:
                if not (p.wr == c.c and p.passes == c.passes): w = max(w, 10 if big else 6)
            elif p.wr & c.wr:
                w = max(w, 10 if big else 6)
        elif c.cls in VALUISH:
            if p.wr & (c.rd | c.wr): w = max(w, 12 if big else 8)
            if p.c & c.wr: w = max(w, 7 if big else 3)
        elif c.cls in ('ds', 'vmem'):
            if p.wr & (c.rd | c.wr): w = max(w, 12 if big else 8)
    if p.cls == 'vmem' and p.storedata:
        if c.cls in VALUISH and p.storedata & c.wr: w = max(w, 2)
        elif p.storedata & c.wr: w = max(w, 1)
    if p.cls == 'salu' and ('s', 124) in p.wr and c.cls == 'vmem' and c.lds_dma: w = max(w, 1)
    return w

WIN = 20

def _fix_seq(hist, ins):
    el = 0; req = 0
    real = [p for p in hist if p.states]
    n = len(real)
    for idx in range(n - 1, -1, -1):
        p = real[idx]
        nd = need(p, ins)
        if nd > el:
            e2 = el
            if p.cls == 'mfma':
                t = 0; lm = 0; lp = p.passes
                for q in real[idx + 1:]:
                    t += 1
                    if q.cls == 'mfma':
                        t = max(t, lm + lp); lm = t; lp = q.passes
                    t += q.states - 1
                e2 = max(el, t)
            r = nd - e2
            if r > req: req = r
        el += p.states
        if el >= WIN: break
    return req

def mk_nops(n):
    out = []
    while n > 0:
        k = min(n, 16)
        out.append(parse('  s_nop %d' % (k - 1)))
        n -= k
    return out

def insert_nops(lines):
    ins = [parse(l) for l in lines]
    for _ in range(20):
        changed = False
        out = []
        hist = []
        for i in ins:
            if i.states and i.cls not in ('dir', 'label'):
                r = _fix_seq(hist, i)
                if r > 0:
                    nn = mk_nops(r); out += nn; hist += nn; changed = True
            out.append(i); hist.append(i)
            if i.uncond: hist = []
            if len(hist) > 64: hist = hist[-40:]
        ins = out
        lab = {x.label: k for k, x in enumerate(ins) if x.cls == 'label'}
        inserts = {}
        for k, x in enumerate(ins):
            if x.target is None: continue
            q = lab[x.target]
            h = []
            j = k
            while j >= 0 and len(h) < 40:
                if j != k and ins[j].uncond: break
                h.append(ins[j]); j -= 1
            h.reverse()
            el = 0; j = q
            while j < len(ins) and el < WIN:
                y = ins[j]
                if y.states and y.cls not in ('dir', 'label'):
                    r = _fix_seq(h, y)
                    if r > 0:
                        inserts[j] = max(inserts.get(j, 0), r)
                        break
                    el += y.states
                h.append(y)
                if y.uncond: break
                j += 1
        if inserts:
            changed = True
            out = []
            for k, x in enumerate(ins):
                if k in inserts: out += mk_nops(inserts[k])
                out.append(x)
            ins = out
        if not changed: break
    return [i.text for i in ins]

def auto_wait(lines):
    out = []; on = False; pend = []
    def wait_upto(i):
        n = len(pend) - 1 - i
        assert n <= 15
        out.append('  s_waitcnt lgkmcnt(%d)' % n)
        del pend[:i + 1]
    for l in lines:
        ls = l.strip()
        if ls == '.aw_on': on = True; del pend[:]; continue
        if ls == '.aw_off':
            assert not pend, "pending lds ops at aw_off"
            on = False; continue
        if not on: out.append(l); continue
        if ls == '.aw_reset': del pend[:]; continue
        if ls == '.aw_fork': saved = list(pend); continue
        if ls == '.aw_join': pend[:] = saved; continue
        if ls == '.aw_writes':
            idx = [i for i, q in enumerate(pend) if q is None]
            if idx: wait_upto(idx[-1])
            continue
        if ls == '.aw_all':
            if pend: wait_upto(len(pend) - 1)
            continue
        ins = parse(l)
        if ins.mn == 's_waitcnt' and 'lgkmcnt(0)' in ls: del pend[:]
        touch = ins.rd | ins.wr
        idx = [i for i, q in enumerate(pend) if q and (q & touch)]
        if idx: wait_upto(idx[-1])
        if ins.cls == 'ds':
            if len(pend) >= 15: wait_upto(0)
            pend.append(set(ins.wr) if ins.isload else None)
        out.append(l)
    return out

class K:
    def __init__(self):
        self.lines = []
        self.nlab = 0
    def __call__(self, s, *a):
        for l in (s % a if a else s).split('\n'):
            l = l.strip()
            if l: self.lines.append(l if l.endswith(':') or l.startswith('.') else '  ' + l)
    def lab(self, p='L'):
        self.nlab += 1
        return '%s_%d' % (p, self.nlab)
    def L(self, name): self.lines.append(name + ':')
    def c(self, s): self.lines.append('  ; ' + s)

def v(i, n=1): return 'v%d' % i if n == 1 else 'v[%d:%d]' % (i, i + n - 1)
def a(i, n=1): return 'a%d' % i if n == 1 else 'a[%d:%d]' % (i, i + n - 1)
def s(i, n=1): return 's%d' % i if n == 1 else 's[%d:%d]' % (i, i + n - 1)
def u(i, n=1):
    if i < 256:
        assert i + n <= 256
        return v(i, n)
    return a(i - 256, n)
```

```python
from roles import *
import struct
def f2u(x): return struct.unpack('<I', struct.pack('<f', x))[0]

L_KT = 131072
L_MB = L_KT + 16384
L_XB = L_MB + 8192
L_OB = L_XB + 5120
L_MISC_ = L_OB + 2560
WQ, WK, WO = 256, 384, 128
aM = [2, 3, 4, 5]; aXW = 6; aXR = 7; aOW = 8; aWV = 9; aKT = 10; aL16 = 11
aH1S = 12; aWO = 13; aH1L = 11; aH2S = 14; IDX = 15
KVM = 16
SEL = 20
VTN = 24
MA = 32; AQ = 64; AK = 72; AV = 80; G = 88; VT = 120
S_HEAD = 5; S_LIM = 6; S_STEP = 7
S_WQ, S_WK, S_WV, S_WO = 12, 16, 20, 28
sH1S0, sH1S1, sH1L, sH2S, sH2L = 32, 33, 34, 35, 36
sKV = 37; sKTD = 38; sKM = 39; sVIM = 40; sC = 41; sCNT = 42; sT = 43
sH1R = 50; sH2R = 51; sMASK = 52
sPH = 50; sTHR = 49; sSAFE = 55; sQF = 46; sKF = 47; aFL = 0; aFL4 = 0
CSC = 0.08838834764831845 * 1.4426950408889634
VORD = [0, 2, 4, 6, 1, 3, 5, 7]
CT = MA

from chain import elect, xmax
def tick(k, i):
    if getattr(k, 'ticks', False): k("s_memtime s[%d:%d]", 64 + 2 * i, 65 + 2 * i)
def tick_init(k):
    if not getattr(k, 'ticks', False): return
    for i in range(96, 100): k("s_mov_b32 s%d, 0", i)
def tick_step_end(k):
    if not getattr(k, 'ticks', False): return
    l = k.lab("tse")
    k("s_cmp_lg_u32 s%d, %d", S_STEP, k.copt.get('tstep', 41))
    k("s_cbranch_scc1 %s", l)
    k("s_waitcnt vmcnt(0) lgkmcnt(0)")
    k("s_lshl_b32 s100, s%d, 2", S_HEAD)
    k("s_add_u32 s100, s100, s%d", S_WAVE)
    k("s_lshl_b32 s100, s100, 7")
    k("s_add_u32 s100, s100, 0x%x", TS + 8 * 65536)
    k("v_mov_b32 v41, 0")
    for i in range(16):
        k("v_mov_b32 v40, s%d", 64 + 2 * i)
        k("buffer_store_dword v40, v41, %s, s100 offen offset:%d", s(S_WS, 4), 4 * i)
    for e in range(2):
        lw = k.lab("cal")
        k("s_memrealtime s[64:65]")
        k("s_waitcnt lgkmcnt(0)")
        if e: k("s_add_u32 s64, s64, 100")
        k.L(lw)
        k("s_memrealtime s[66:67]")
        k("s_memtime s[68:69]")
        k("s_waitcnt lgkmcnt(0)")
        k("s_sub_u32 s70, s64, s66")
        k("s_cmp_ge_i32 s70, 0")
        k("s_cbranch_scc1 %s", lw)
        k("v_mov_b32 v40, s66")
        k("buffer_store_dword v40, v41, %s, s100 offen offset:%d", s(S_WS, 4), 80 + 8 * e)
        k("v_mov_b32 v40, s68")
        k("buffer_store_dword v40, v41, %s, s100 offen offset:%d", s(S_WS, 4), 84 + 8 * e)
    k.L(l)
def tick_dump(k):
    if not getattr(k, 'ticks', False): return
    k("v_mov_b32 v41, 0")
    for i in range(4):
        k("v_mov_b32 v40, s%d", 96 + i)
        k("buffer_store_dword v40, v41, %s, s100 offen offset:%d", s(S_WS, 4), 64 + 4 * i)

def SMF(acc, A, B): return "v_smfmac_f32_16x16x64_bf16 %s, %s, %s, %s" % (v(acc, 4), v(A, 4), u(B, 8), v(IDX))
def MF(d, A, B, first): return "v_mfma_f32_16x16x32_bf16 %s, %s, %s, %s" % (v(d, 4), v(A, 4), v(B, 4), "0" if first else v(d, 4))
def M16(d, A, B): return "v_mfma_f32_16x16x16_bf16 %s, %s, %s, %s" % (v(d, 4), v(A, 2), v(B, 2), v(d, 4))

def chain_setup(k):
    w = S_WAVE
    k.c("---- chain setup: addresses")
    k("v_lshlrev_b32 %s, 4, v1", v(aL16))
    for jp in range(4):
        k("s_xor_b32 s%d, s%d, %d", sT, w, jp)
        k("s_lshl_b32 s%d, s%d, 11", sT, sT)
        k("s_add_u32 s%d, s%d, %d", sT, sT, L_MB)
        k("v_add_u32 %s, s%d, %s", v(aM[jp]), sT, v(aL16))
    k("v_and_b32 v90, 15, v1")
    k("v_lshrrev_b32 v91, 4, v1")
    k("v_bfe_u32 v92, v1, 2, 2")
    k("v_and_b32 v93, 3, v1")
    k("v_mul_u32_u24 v94, 320, v91")
    k("v_lshl_add_u32 v94, v90, 3, v94")
    k("s_mul_i32 s%d, s%d, 1280", sT, w)
    k("s_add_u32 s%d, s%d, %d", sT, sT, L_XB)
    k("v_add_u32 %s, s%d, v94", v(aXW), sT)
    k("s_lshr_b32 s%d, s%d, 1", sT, w)
    k("s_mul_i32 s%d, s%d, 1280", sT, sT)
    k("s_and_b32 s%d, s%d, 1", sCNT, w)
    k("s_lshl_b32 s%d, s%d, 7", sCNT, sCNT)
    k("s_add_u32 s%d, s%d, s%d", sT, sT, sCNT)
    k("s_add_u32 s%d, s%d, %d", sT, sT, L_OB)
    k("v_add_u32 %s, s%d, v94", v(aOW), sT)
    k("v_mul_u32_u24 v94, 320, v93")
    k("v_lshrrev_b32 v95, 2, v1")
    k("v_lshl_add_u32 v94, v95, 3, v94")
    k("v_add_u32 %s, %d, v94", v(aXR), L_XB)
    k("s_lshl_b32 s%d, s%d, 14", sT, w)
    k("v_add_u32 %s, s%d, %s", v(aWV), sT, v(aL16))
    k("v_add_u32 %s, 0x10000, %s", v(aWO), v(aWV))
    k("v_add_u32 %s, %d, %s", v(aKT), L_KT, v(aL16))
    k("v_lshrrev_b32 v94, 1, v91")
    k("v_lshl_add_u32 v94, v92, 1, v94")
    k("v_and_b32 v95, 1, v91")
    k("v_lshl_add_u32 v94, v94, 2, v95")
    k("v_lshlrev_b32 v94, 11, v94")
    k("v_lshl_add_u32 %s, v93, 4, v94", v(aH1S))
    k("v_and_b32 v94, 2, v1")
    k("v_bfe_u32 v95, v1, 2, 1")
    k("v_add_u32 v94, v94, v95")
    k("v_lshlrev_b32 v94, 4, v94")
    k("v_bfe_u32 v95, v1, 4, 1")
    k("v_lshl_add_u32 v94, v95, 3, v94")
    k("v_lshrrev_b32 v95, 5, v1")
    k("v_lshl_add_u32 v94, v95, 2, v94")
    k("v_and_b32 v95, 9, v1")
    k("v_cmp_eq_u32 vcc, 0, v95")
    k("v_mov_b32 v95, 0x40000000")
    k("v_cndmask_b32 %s, v95, v94, vcc", v(aH2S))
    k("v_and_b32 v94, 2, v1")
    k("v_cmp_eq_u32 vcc, 0, v94")
    k("v_mov_b32 v94, 0x44444444")
    k("v_mov_b32 v95, 0xeeeeeeee")
    k("v_cndmask_b32 %s, v95, v94, vcc", v(IDX))
    k("v_mov_b32 v94, 0x3f80")
    k("v_mov_b32 v95, 0x3f800000")
    for d in range(4):
        k("v_cmp_eq_u32 vcc, %d, v90", 2 * d)
        k("v_cndmask_b32 %s, 0, v94, vcc", v(SEL + d))
        k("v_cmp_eq_u32 vcc, %d, v90", 2 * d + 1)
        k("v_cndmask_b32 %s, %s, v95, vcc", v(SEL + d), v(SEL + d))
    k("s_lshl_b32 s%d, s%d, 16", sT, w)
    k("s_lshl_b32 s%d, s%d, 6", sH1S0, S_HEAD)
    k("s_add_u32 s%d, s%d, s%d", sH1S0, sH1S0, sT)
    k("s_add_u32 s%d, s%d, 0x%x", sH1S0, sH1S0, HOP1)
    k("s_add_u32 s%d, s%d, 0x1000", sH1S1, sH1S0)
    k("s_lshl_b32 s%d, s%d, 2", sH1L, S_HEAD)
    k("s_add_u32 s%d, s%d, s%d", sH1L, sH1L, w)
    k("s_lshl_b32 s%d, s%d, 11", sH1L, sH1L)
    k("s_add_u32 s%d, s%d, 0x%x", sH1L, sH1L, HOP1)
    k("s_lshr_b32 s%d, s%d, 3", sH2S, S_HEAD)
    k("s_lshl_b32 s%d, s%d, 11", sH2S, sH2S)
    k("s_and_b32 s%d, s%d, 7", sT, S_HEAD)
    k("s_lshl_b32 s%d, s%d, 7", sT, sT)
    k("s_add_u32 s%d, s%d, s%d", sH2S, sH2S, sT)
    k("s_lshr_b32 s%d, s%d, 1", sT, w)
    k("s_lshl_b32 s%d, s%d, 10", sT, sT)
    k("s_add_u32 s%d, s%d, s%d", sH2S, sH2S, sT)
    k("s_and_b32 s%d, s%d, 1", sT, w)
    k("s_lshl_b32 s%d, s%d, 6", sT, sT)
    k("s_add_u32 s%d, s%d, s%d", sH2S, sH2S, sT)
    k("s_add_u32 s%d, s%d, 0x%x", sH2S, sH2S, HOP2)
    k("s_lshl_b32 s%d, s%d, 11", sH2L, w)
    k("s_add_u32 s%d, s%d, 0x%x", sH2L, sH2L, HOP2)
    k("s_lshl_b32 s%d, s%d, 13", sKV, S_HEAD)
    k("s_lshl_b32 s%d, s%d, 11", sT, w)
    k("s_add_u32 s%d, s%d, s%d", sKV, sKV, sT)
    k("s_add_u32 s%d, s%d, 0x%x", sVIM, sKV, VIMG)
    k("s_add_u32 s%d, s%d, 0x%x", sKV, sKV, KIMG)
    k("s_add_u32 s%d, s%d, %d", sKTD, sT, L_KT)
    k("s_lshl_b32 s%d, s%d, 12", sKM, S_HEAD)
    k("s_lshl_b32 s%d, s%d, 10", sT, w)
    k("s_add_u32 s%d, s%d, s%d", sKM, sKM, sT)
    k("s_add_u32 s%d, s%d, 0x%x", sKM, sKM, KM - 0x20000)
    k("s_mov_b32 s%d, 0x%x", sC, f2u(CSC))
    k("s_mov_b32 s%d, 400000", S_LIM)
    k("s_mov_b32 s%d, 0x33333333", sMASK)
    k("s_mov_b32 s%d, 0x33333333", sMASK + 1)
    k("s_mov_b32 s%d, 0", sPH)
    k("s_xor_b32 s%d, s%d, 0x2000", sH2R, sH2S)

def merged_setup(k):
    k("s_lshl_b32 s%d, s%d, 5", sQF, S_HEAD)
    k("s_add_u32 s%d, s%d, 0x%x", sQF, sQF, FLAGS + F_QF)
    k("s_lshl_b32 s%d, s%d, 2", sKF, S_HEAD)
    k("s_add_u32 s%d, s%d, s%d", sKF, sKF, S_WAVE)
    k("s_lshl_b32 s%d, s%d, 4", sKF, sKF)
    k("s_add_u32 s%d, s%d, 0x%x", sKF, sKF, FLAGS + F_KF)
    k("v_lshlrev_b32 %s, 2, v93", v(aFL))

def kv_refresh(k, plus, back=None):
    lp = k.lab("kvr"); ok = k.lab("kvok")
    k("s_mov_b32 s%d, 0", sCNT)
    k("s_add_u32 s%d, s%d, %d", sT, S_STEP, plus)
    k.L(lp)
    k("buffer_load_dword v1, %s, %s, s%d offen sc1", v(aFL), s(S_WS, 4), sQF)
    k("s_waitcnt vmcnt(0)")
    k("v_cmp_ge_u32 vcc, s%d, v1", sT)
    k("s_cbranch_vccz %s", ok)
    k("s_sleep 2")
    k("s_add_u32 s%d, s%d, 1", sCNT, sCNT)
    k("s_cmp_lt_u32 s%d, s%d", sCNT, S_LIM)
    k("s_cbranch_scc1 %s", lp)
    k("s_mov_b32 s%d, 0", S_LIM)
    k.L(ok)
    if back: k("s_branch %s", back)

import chain as _c1
def chain_arm(k):
    k.c("---- arm hop buffers (both slots), sc1")
    for i in range(4): k("v_mov_b32 %s, -1", v(96 + i))
    for slot in range(2):
        k("s_add_u32 s%d, s%d, 0x%x", sT, sH1L, slot * 262144)
        k("buffer_store_dwordx4 v[96:99], %s, %s, s%d offen sc1", v(aL16), s(S_WS, 4), sT)
        k("buffer_store_dwordx4 v[96:99], %s, %s, s%d offen offset:1024 sc1", v(aL16), s(S_WS, 4), sT)
    k("buffer_store_dword v96, %s, %s, s%d offen sc1", v(aH2S), s(S_WS, 4), sH2R)
load_mem0 = _c1.load_mem0
WVR_ = 128
WOR_ = 192

def chain_load_weights(k, hooks={}):
    w = S_WAVE
    k.c("---- chain weight load")
    k("s_lshl_b32 s44, s%d, 2", w)
    k("v_xor_b32 v120, s44, v90")
    k("v_lshlrev_b32 v120, 4, v120")
    k("v_lshl_add_u32 v120, v91, 13, v120")
    k("v_lshrrev_b32 v121, 3, v1")
    k("v_lshlrev_b32 v121, 10, v121")
    k("v_and_b32 v122, 7, v1")
    k("v_lshl_add_u32 v121, v122, 4, v121")
    k("v_lshlrev_b32 v126, 3, v92")
    k("v_add_u32 v126, v126, v91")
    k("v_lshlrev_b32 v126, 9, v126")
    k("v_xor_b32 v127, s%d, v92", w)
    k("v_lshl_add_u32 v126, v127, 6, v126")
    k("v_lshl_add_u32 v126, v93, 4, v126")
    for jp in range(4):
        k("s_xor_b32 s44, s%d, %d", w, jp)
        k("s_lshl_b32 s44, s44, 14")
        k("v_add_u32 v%d, s44, v126", 122 + jp)
    k("v_lshrrev_b32 v126, 1, v92")
    k("v_lshrrev_b32 v127, 1, v91")
    k("v_lshl_add_u32 v126, v127, 1, v126")
    k("v_and_b32 v127, 1, v91")
    k("v_lshl_add_u32 v126, v127, 3, v126")
    k("v_lshlrev_b32 v126, 2, v126")
    k("v_and_b32 v127, 1, v92")
    k("v_add_u32 v126, v126, v127")
    k("v_lshlrev_b32 v126, 7, v126")
    k("v_lshl_add_u32 v126, v93, 3, v126")
    k("s_lshl_b32 s44, s%d, 14", w)
    k("s_add_u32 s3, s44, 0x10000")
    k("v_add_u32 v126, s3, v126")
    k("s_lshl_b32 s45, s%d, 8", S_HEAD)
    k("s_lshl_b32 s48, s%d, 17", w)
    k("s_add_u32 s45, s45, s48")
    k("s_lshl_b32 s49, s%d, 17", S_HEAD)
    k("s_lshl_b32 s48, s%d, 8", w)
    k("s_add_u32 s49, s49, s48")
    k("s_lshl_b32 s44, s%d, 12", w)
    sc = [('q', 0), ('q', 1), ('k', 0), ('k', 1), ('v', 1), ('o', 0), ('v', 0), ('o', 1)]
    srds = dict(q=S_WQ, k=S_WK, v=S_WV, o=S_WO)
    queue = []
    def issue(i):
        m, par = sc[i]; reg = (i & 1) * 65536
        for n in range(16):
            if m == 'o':
                k("s_add_u32 s48, s49, %d", par * 128 + n * 8192)
                k("s_add_u32 m0, s3, %d", n * 1024)
            else:
                c, q = n >> 2, n & 3
                k("s_add_u32 s48, s45, %d", (2 * c + par) * 64 * 8192 + q * 4 * 8192)
                k("s_add_u32 m0, s44, %d", reg + c * 16384 + q * 1024)
            k("buffer_load_dwordx4 v%d, %s, s48 offen lds", 121 if m == 'o' else 120, s(srds[m], 4))
            queue.append(i)
    issue(0); issue(1)
    TMP = 40
    for i in range(8):
        m, par = sc[i]
        if i in hooks: queue.extend([-1] * hooks[i](k))
        last = max(n for n, c in enumerate(queue) if c == i)
        k("s_waitcnt vmcnt(%d)", len(queue) - 1 - last)
        k("s_barrier")
        inplace = i >= 6
        cnt = 0
        for a_ in range(4):
            for b_ in range(2):
                if inplace: dst = TMP + (a_ * 2 + b_) * 8
                elif m == 'q': dst = WQ + (b_ * 8 + 2 * a_ + par) * 8
                elif m == 'k': dst = WK + (b_ * 8 + 2 * a_ + par) * 8
                elif m == 'v': dst = WVR_ + (a_ * 2 + b_) * 8
                else: dst = WOR_ + (a_ * 2 + b_) * 8
                for y in range(4):
                    if m == 'o':
                        k("ds_read_b64_tr_b16 %s, v126 offset:%d", u(dst + 2 * y, 2), (64 * b_ + 16 * (y >> 1) + 2 * (y & 1)) * 128 + 32 * a_)
                    else:
                        k("ds_read_b64_tr_b16 %s, v%d offset:%d", u(dst + 2 * y, 2), 122 + a_, (8 * (y >> 1) + (y & 1)) * 256 + 8 * b_)
                cnt += 4
                if cnt % 8 == 0: k("s_waitcnt lgkmcnt(4)")
        if i < 4:
            for jp in range(4): k("v_xor_b32 v%d, 0x10000, v%d", 122 + jp, 122 + jp)
        k("s_waitcnt lgkmcnt(0)")
        k("s_barrier")
        if inplace:
            for q in range(16):
                k("ds_write_b128 %s, %s offset:%d", v(aWO if m == 'o' else aWV), v(TMP + 4 * q, 4), q * 1024)
                if q % 8 == 7: k("s_waitcnt lgkmcnt(0)")
        if i + 2 < 8: issue(i + 2)

def PFK(p):
    W = s(S_WS, 4)
    return [["s_mov_b32 m0, s%d" % sKTD, "buffer_load_dwordx4 %s, %s, s%d offen sc1 lds" % (v(aL16), W, sKV)],
            ["buffer_load_dwordx4 %s, %s, s%d offen offset:1024 sc1 lds" % (v(aL16), W, sKV)],
            ["buffer_load_dwordx4 %s, %s, %s, s%d offen sc1" % (v(VTN, 4), v(aL16), W, sVIM)],
            ["buffer_load_dwordx4 %s, %s, %s, s%d offen offset:1024 sc1" % (v(VTN + 4, 4), v(aL16), W, sVIM)],
            ["s_add_u32 s%d, s%d, 0x40000" % (sKV, sKV), "s_add_u32 s%d, s%d, 0x40000" % (sVIM, sVIM),
             "s_xor_b32 s%d, s%d, 0x2000" % (sKTD, sKTD)]][p]

def WVR(n, h):
    return "ds_read_b128 %s, %s offset:%d" % (v(G + (n & 3) * 8 + 4 * h, 4), v(aWV), n * 2048 + h * 1024)

def weave(k, spine, fill):
    for i, m in enumerate(spine):
        k(m)
        for f in fill.get(i, []): k(f)

def check_n(k, buf, n, t0, t1):
    if n == 8:
        k("v_max3_u32 %s, %s, %s, %s", v(t0), v(buf), v(buf + 1), v(buf + 2))
        k("v_max3_u32 %s, %s, %s, %s", v(t1), v(buf + 3), v(buf + 4), v(buf + 5))
        k("v_max3_u32 %s, %s, %s, %s", v(t0), v(buf + 6), v(buf + 7), v(t0))
        k("v_max_u32 %s, %s, %s", v(t0), v(t0), v(t1))
    else:
        k("v_max3_u32 %s, %s, %s, %s", v(t0), v(buf), v(buf + 1), v(buf + 2))
        k("v_max_u32 %s, %s, %s", v(t0), v(t0), v(buf + 3))
    k("v_cmp_eq_u32 vcc, -1, %s", v(t0))

def retry_stub(k, lab, back, loads, buf, n, pre=None, cnt=None):
    k.L(lab)
    lp = k.lab("rp")
    k("s_mov_b32 s%d, 0", sCNT)
    k.L(lp)
    for l in loads: k(l)
    if cnt is not None and getattr(k, 'ticks', False): k("s_add_u32 s%d, s%d, 1", cnt, cnt)
    k("s_waitcnt vmcnt(0)")
    if pre:
        for l in pre: k(l)
    check_n(k, buf, n, CT, CT + 1)
    k("s_cbranch_vccz %s", back)
    k("s_add_u32 s%d, s%d, 1", sCNT, sCNT)
    k("s_cmp_lt_u32 s%d, s%d", sCNT, S_LIM)
    k("s_cbranch_scc1 %s", lp)
    k("s_mov_b32 s%d, 0", S_LIM)
    k("s_branch %s", back)

def delay(k, slots):
    while slots > 0:
        m = min(slots, 16); k("s_nop %d", m - 1); slots -= m

def chain_loop(k, stf, tag):
    W = s(S_WS, 4)
    o = getattr(k, 'copt', {})
    mg = getattr(k, 'merged', False)
    tk = getattr(k, 'ticks', False)
    TK = lambda i: ("s_memtime s[%d:%d]" % (64 + 2 * i, 65 + 2 * i)) if tk else ""
    lexit = k.lab(tag + "exit")
    Qs = lambda j, b: [SMF(AQ, b, WQ + j * 8), SMF(AQ + 4, b, WQ + (8 + j) * 8)]
    Ks = lambda j, b: [SMF(AK, b, WK + j * 8), SMF(AK + 4, b, WK + (8 + j) * 8)]
    Vs = lambda j, b: [SMF(AV + 4 * t, b, (G + ((j + t) & 3) * 8) if j % 2 == 0 else (WVR_ + ((j >> 1) * 2 + t) * 8)) for t in range(2)]
    Q = lambda j: Qs(j, MA + 4 * j); Kp = lambda j: Ks(j, MA + 4 * j); V = lambda j: Vs(j, MA + 4 * j)
    KORD = [0, 1, 2, 4, 6, 3, 5, 7]
    MR = lambda j: "ds_read_b128 %s, %s offset:%d" % (v(MA + 4 * j, 4), v(aM[j >> 1]), (j & 1) * 1024)
    KTR = lambda f: "ds_read_b128 %s, %s offset:%d" % (v(MA + 4 * KORD[f], 4), v(aKT), f * 1024)
    MV = lambda d, x: "v_mov_b32 %s, %s" % (v(d), x)
    EX = lambda d, s_: "v_exp_f32 %s, %s" % (v(d), v(s_))
    CV = lambda d, a_, b_: "v_cvt_pk_bf16_f32 %s, %s, %s" % (v(d), v(a_), v(b_))
    FA = lambda a_: ["v_add_f32 %s, %s, %s" % (v(a_), v(a_), v(a_ + 2)), "v_add_f32 %s, %s, %s" % (v(a_ + 1), v(a_ + 1), v(a_ + 3))]
    stkvm = "buffer_store_dwordx4 %s, %s, %s, s%d offen sc1" % (v(KVM, 4), v(aL16), W, sKM)
    r_sm = k.lab(tag + "rsm"); b_sm = k.lab(tag + "bsm"); r_kv = k.lab(tag + "rkv"); b_kv = k.lab(tag + "bkv")
    EB = [MA, VTN]
    lS = [k.lab(tag + "s0v") for _ in EB]; lcom = k.lab(tag + "com"); lpoll = k.lab(tag + "poll")
    k("s_branch %s", lS[0])
    k(".aw_on")
    nb0 = o.get('b0', 5)
    fl = [["buffer_store_dword v1, %s, %s, s%d offen sc1" % (v(aFL), W, sKF)],
          ["buffer_load_dword v1, %s, %s, s%d offen sc1" % (v(aFL4), W, sQF)]] if mg else [[], []]
    for bi in (1, 0):
        b = EB[bi]
        k.L(lS[bi])
        k(".aw_reset")
        tick(k, 15); tick_step_end(k); tick(k, 0)
        if o.get('plog'): k("s_memtime s[64:65]")
        if o.get('plog2'): k("s_memtime s[64:65]"); k("s_memrealtime s[66:67]")
        k("ds_write_b128 %s, %s", v(aM[0]), v(b, 4))
        f = {0: ["ds_write_b128 %s, %s offset:1024" % (v(aM[0]), v(b + 4, 4))], nb0: [".aw_writes", "s_barrier", TK(1), MR(2)]}
        for x in range(3, 8): f[nb0 + x - 2] = [MR(x)]
        f[1] = PFK(0)[1:]; f[2] = PFK(1); f[3] = [stkvm]; f[4] = fl[0]
        weave(k, Qs(0, b) + Ks(0, b) + Qs(1, b + 4) + Ks(1, b + 4) + Vs(0, b) + Vs(1, b + 4), f)
        if bi: k("s_branch %s", lcom)
    k.L(lcom)
    for x in PFK(2) + PFK(3): k(x)
    qf = []
    for t in range(2):
        a_ = AQ + 4 * t
        qf += FA(a_) + ["v_mul_f32 %s, s%d, %s" % (v(a_), sC, v(a_)), "v_mul_f32 %s, s%d, %s" % (v(a_ + 1), sC, v(a_ + 1)), CV(a_, a_, a_ + 1)]
    weave(k, Q(2) + Q(3) + Q(4) + Q(5) + Q(6) + Q(7) + Kp(2) + Kp(3) + Kp(4) + Kp(5) + Kp(6) + Kp(7) + V(2), {
        0: [TK(2), WVR(4, 0)], 1: [WVR(4, 1)], 2: [WVR(5, 0)], 3: [WVR(5, 1)],
        4: fl[1], 5: PFK(4)[:2], 7: PFK(4)[2:] + ["s_add_u32 s%d, s%d, 0x20000" % (sKM, sKM)],
        6: ["s_waitcnt vmcnt(%d)" % (7 if mg else 5)] + (["v_mov_b32 v34, s64", "v_mov_b32 v35, s66", "v_mov_b32 v33, 0", "s_lshl_b32 s68, s%d, 3" % S_STEP, "s_add_u32 s68, s68, s100",
             "buffer_store_dwordx2 v[34:35], v33, %s, s68 offen" % W] if o.get('plog2') else []),
        8: [KTR(1)], 10: [KTR(0)],
        13: [qf[0]], 14: [qf[1]], 15: [qf[5]], 16: [qf[6]], 17: [qf[2]], 18: [qf[3]], 19: [qf[7]], 20: [qf[8]],
        21: [qf[4]], 22: [qf[9]], 24: [WVR(6, 0)], 25: [WVR(6, 1)]})
    for t in range(2):
        for x in FA(AK + 4 * t): k(x)
        k(CV(AQ + 4 * t + 1, AK + 4 * t, AK + 4 * t + 1))
    k("ds_write2_b64 %s, %s, %s offset0:0 offset1:16", v(aXW), v(AQ, 2), v(AQ + 4, 2))
    tick(k, 5)
    X = AQ
    XR = lambda i: "ds_read_b64_tr_b16 %s, %s offset:%d" % (v(X + 2 * i, 2), v(aXR), (i >> 1) * 1280 + (i & 1) * 128)
    ONES, PM, LA, E, T1, T2, T0 = G, G + 4, G + 8, G + 12, G + 20, G + 24, G + 28
    O1 = "0x3f803f80"
    nb = o.get('xb', 3)
    KORD[:] = [0, 1, 2, 4, 3, 5, 6, 7]
    f = {0: [WVR(7, 0), MV(KVM, v(AQ + 1))], 1: [WVR(7, 1), MV(KVM + 1, v(AQ + 5))], 2: [KTR(2), MV(ONES, O1)],
         nb: [".aw_writes", "s_barrier", TK(6), XR(0), XR(1)], nb + 1: [XR(2), XR(3)], nb + 2: [XR(4), XR(5)], nb + 3: [XR(6), XR(7)]}
    f[nb + 4] = [KTR(3), KTR(4)]
    f.setdefault(8, []); f[8] = f[8] + [KTR(5), KTR(6)]
    f[9] = [KTR(7)]
    weave(k, V(4) + V(3) + V(5) + V(6) + V(7), f)
    pass
    vf = []
    for t in range(2): vf += FA(AV + 4 * t) + [CV(KVM + 2 + t, AV + 4 * t, AV + 4 * t + 1)]
    t1 = lambda kb: MF(T1, MA + 4 * KORD[kb], X + 4 * kb, kb == 0)
    t2 = lambda kb: MF(T2, MA + 4 * KORD[4 + kb], X + 4 * kb, kb == 0)
    t0 = lambda kb: MF(T0, X + 4 * kb, X + 4 * kb, kb == 0)
    weave(k, [t1(0), t0(0), t1(1), t0(1), t1(2), t0(2)], {0: [TK(7), MV(ONES + 1, O1), "v_mov_b64 %s, %s" % (v(ONES + 2, 2), v(ONES, 2))], 1: vf[0:2], 2: vf[3:5], 3: [vf[2], vf[5]],
        4: [MV(PM + 1, "0"), MV(PM + 2, "0")], 5: ["s_cmp_eq_u32 s%d, 63" % S_STEP, "s_cbranch_scc1 %s" % lexit]})
    weave(k, [t1(3), t2(0), t0(3), t2(1), t2(2), t2(3)], {
        2: [EX(E, T1)], 3: [EX(E + 1, T1 + 1)], 4: [EX(E + 2, T1 + 2)],
        5: [EX(E + 3, T1 + 3), EX(T0, T0 + 2), EX(T0 + 1, T0 + 3), CV(E, E, E + 1), CV(E + 1, E + 2, E + 3), CV(PM, T0, T0 + 1), CV(PM + 3, T0, T0 + 1)]})
    O = AV
    Z = lambda i: "v_mov_b32 %s, 0" % v(MA + i)
    M16z = lambda d, A, B: "v_mfma_f32_16x16x16_bf16 %s, %s, %s, 0" % (v(d, 4), v(A, 2), v(B, 2))
    tick(k, 8)
    def pv(k, fast):
        weave(k, [M16z(LA, PM, ONES), M16z(O, PM, KVM + 2), M16z(O + 4, PM + 2, KVM + 2)],
              {0: [EX(E + 4, T2)], 1: [EX(E + 5, T2 + 1)], 2: [EX(E + 6, T2 + 2), EX(E + 7, T2 + 3), CV(E + 2, E + 4, E + 5), CV(E + 3, E + 6, E + 7)]} if fast else {})
        weave(k, [MF(LA, E, ONES, False), MF(O, E, VT, False), MF(O + 4, E, VT + 4, False)], {})
    pv(k, True)
    k("v_rcp_f32 %s, %s", v(LA), v(LA))
    k("v_rcp_f32 %s, %s", v(LA + 1), v(LA + 1))
    k.L(b_sm)
    for t in range(2):
        k("v_mul_f32 %s, %s, %s", v(O + 4 * t), v(O + 4 * t), v(LA))
        k("v_mul_f32 %s, %s, %s", v(O + 4 * t + 1), v(O + 4 * t + 1), v(LA + 1))
        k(CV(E + 4 + t, O + 4 * t, O + 4 * t + 1))
    k("ds_write_b64 %s, %s", v(aOW), v(E + 4, 2))
    tick(k, 9)
    Z2 = lambda i: "v_mov_b64 %s, 0" % v(MA + 2 * i, 2)
    k("v_max3_f32 %s, |%s|, |%s|, |%s|", v(X), v(T1), v(T1 + 1), v(T1 + 2))
    k("v_max3_f32 %s, |%s|, |%s|, |%s|", v(X + 1), v(T1 + 3), v(T2), v(T2 + 1))
    k("v_max3_f32 %s, |%s|, |%s|, %s", v(X), v(T2 + 2), v(T2 + 3), v(X))
    k("v_max3_f32 %s, |%s|, |%s|, %s", v(X + 1), v(T0 + 2), v(T0 + 3), v(X + 1))
    k("v_max_f32 %s, %s, %s", v(X), v(X), v(X + 1))
    k("v_cmp_lt_f32 vcc, s%d, %s", sTHR, v(X))
    k(Z2(0))
    k("s_and_b64 vcc, vcc, %s", s(sMASK, 2))
    k("s_cbranch_scc1 %s", r_sm)
    k("s_mov_b32 s%d, 0x42700000", sTHR)
    k(Z2(1)); k(Z2(2))
    k(".aw_writes"); k("s_barrier")
    tick(k, 10)
    OA = AQ
    nz1 = 3
    for i in range(4):
        k("ds_read_b64_tr_b16 %s, %s offset:%d", v(OA + 2 * i, 2), v(aXR), (L_OB - L_XB) + (i >> 1) * 1280 + (i & 1) * 128)
        if i == 1: k(Z2(nz1))
    PK = AK
    SB = {(4, 0): G, (5, 0): G + 8, (4, 1): G + 16, (5, 1): G + 24, (6, 0): VT, (7, 0): AV, (6, 1): G, (7, 1): G + 8}
    WOB = lambda nt, kbo: (WOR_ + (nt * 2 + kbo) * 8) if nt < 4 else SB[(nt, kbo)]
    WR = lambda nt, kbo, h: "ds_read_b128 %s, %s offset:%d" % (v(SB[(nt, kbo)] + 4 * h, 4), v(aWO), ((nt - 4) * 2 + kbo) * 2048 + h * 1024)
    WS_ = lambda nt, kbo: SMF(MA + 4 * nt, OA + 4 * kbo, WOB(nt, kbo))
    AD = lambda nt, b: "v_add_f32 %s, %s, %s" % (v(MA + 4 * nt + b), v(MA + 4 * nt + b), v(MA + 4 * nt + 2 + b))
    PC = lambda sx, b, hh: CV(PK + 4 * sx + 2 * b + hh, MA + 4 * (4 * sx + 2 * hh) + b, MA + 4 * (4 * sx + 2 * hh + 1) + b)
    ST1 = lambda sx: "buffer_store_dwordx4 %s, %s, %s, s%d offen %s" % (v(PK + 4 * sx, 4), v(aH1S), W, sH1S1 if sx else sH1S0, stf)
    TG = lambda sx: "v_and_or_b32 %s, %s, -2, s%d" % (v(PK + 4 * sx), v(PK + 4 * sx), sPH)
    k(Z2(4)); k(Z2(5)); k(WR(4, 0, 0)); k(Z2(6)); k(WR(4, 0, 1)); k(Z2(7))
    weave(k, [WS_(0, 0), WS_(1, 0), WS_(0, 1), WS_(1, 1), WS_(2, 0), WS_(3, 0), WS_(2, 1), WS_(3, 1), WS_(4, 0), WS_(5, 0),
              WS_(4, 1), WS_(5, 1), WS_(6, 0), WS_(7, 0), WS_(6, 1), WS_(7, 1)], {
        0: [TK(11), WR(5, 0, 0), Z2(8)], 1: [WR(5, 0, 1), Z2(9)], 2: [WR(4, 1, 0), Z2(10)], 3: [WR(4, 1, 1), Z2(11)],
        4: [WR(5, 1, 0), AD(0, 0)], 5: [WR(5, 1, 1), AD(0, 1)], 6: [WR(6, 0, 0), AD(1, 0)], 7: [WR(6, 0, 1), AD(1, 1)],
        8: [WR(7, 0, 0), PC(0, 0, 0)], 9: [WR(7, 0, 1), PC(0, 1, 0), AD(2, 0), WR(6, 1, 0), AD(2, 1), AD(3, 0), WR(6, 1, 1), AD(3, 1), TG(0), PC(0, 0, 1), PC(0, 1, 1), ST1(0), TK(12), Z2(12), Z2(13)],
        10: [WR(7, 1, 0), Z2(14)], 11: [WR(7, 1, 1), Z2(15)], 12: [AD(4, 0)], 13: [AD(4, 1)], 14: [AD(5, 0)],
        15: [AD(5, 1), PC(1, 0, 0), PC(1, 1, 0), TG(1), AD(6, 0), AD(6, 1), AD(7, 0), AD(7, 1), PC(1, 0, 1), PC(1, 1, 1), ST1(1)]})
    tick(k, 13)
    if o.get('plog'):
        k("s_mov_b32 m0, s%d", S_STEP)
        k("v_writelane_b32 v1, s64, m0")
    RD = MA + 16; HT = MA + 20; H1 = MA + 8; H1B = MA + 24
    h1lb = lambda b: ["buffer_load_dwordx4 %s, %s, %s, s%d offen sc1" % (v(b, 4), v(aL16), W, sH1L),
           "buffer_load_dwordx4 %s, %s, %s, s%d offen offset:1024 sc1" % (v(b + 4, 4), v(aL16), W, sH1L)]
    redb = lambda b: [MF(RD, b, SEL, True), MF(RD, b + 4, SEL, False),
           "v_bitop3_b32 %s, %s, %s, s%d bitop3:0x7e" % (v(HT), v(b), v(b + 4), sPH), "v_and_b32 %s, 1, %s" % (v(HT), v(HT)),
           "v_cmp_ne_u32 vcc, 0, %s" % v(HT)]
    h1l = h1lb(H1); red = redb(H1)
    lde = lambda b: ["buffer_load_dwordx4 %s, %s, %s, s%d offen sc1" % (v(b, 4), v(aL16), W, sH2L),
                     "buffer_load_dwordx4 %s, %s, %s, s%d offen offset:1024 sc1" % (v(b + 4, 4), v(aL16), W, sH2L)]
    KAV = "v_mov_b32 %s, 0" % v(MA + 22)
    def warm(vl, ol, slots, per=4):
        while slots > 0:
            k(vl.pop(0) if vl else KAV); slots -= 1
            r = min(per - 1, slots)
            while r > 0 and ol:
                x = ol.pop(0); k(x); c = 2 if x.startswith('ds_') else 1; r -= c; slots -= c
            if r > 0: k("s_nop %d", r - 1); slots -= r
    def spin(reg, n, lab):
        for i in range(n):
            k("v_cmp_ne_u32 vcc, 0x7fc1, %s", v(reg))
            k("s_cbranch_vccnz %s", lab)
            if o.get('spn', 0): k("s_nop %d", o.get('spn') - 1)
    hv = ["v_mov_b64 %s, 0" % v(AQ + 2 * i, 2) for i in range(12)] + ["v_xor_b32 %s, 0x2000, %s" % (v(aKT), v(aKT)), MV(H1 + 7, "0x7fc1"), MV(MA + 7, "0x7fc1")]
    ho = [WVR(n, h) for n in range(4) for h in range(2)] + \
         ["s_mov_b32 s%d, s%d" % (sH2R, sH2S), "s_xor_b32 s%d, s%d, 0x2000" % (sH2S, sH2S)] + \
         ["s_xor_b32 s%d, s%d, 0x40000" % (r, r) for r in (sH1S0, sH1S1)] + \
         ["s_xor_b32 s%d, s%d, 0x2000" % (sH2L, sH2L), "s_add_u32 s%d, s%d, 1" % (S_STEP, S_STEP), "s_mov_b32 m0, s%d" % sKTD]
    hv = [MV(H1B + 7, "0x7fc1")] + hv[-2:] + hv[:-2]
    ok1 = k.lab(tag + "ok1"); rr1 = k.lab(tag + "r1"); ar1 = k.lab(tag + "ar1"); ar0 = k.lab(tag + "ar0")
    p0 = o.get('p0', None)
    if p0 is not None:
        warm(hv, ho, p0)
        for l in h1lb(H1B): k(l)
    warm(hv, ho, o.get('p1', 60))
    tick(k, 3)
    for l in h1l: k(l)
    warm(hv, ho, o.get('w1', 45))
    assert not hv and not ho
    if p0 is not None:
        spin(H1B + 7, o.get('ns1', 24), ar0)
        k.L(ar0)
        k("s_waitcnt vmcnt(2)")
        for l in redb(H1B): k(l)
        k("s_cbranch_vccz %s", ok1)
        if tk: k("s_add_u32 s98, s98, 1")
    spin(H1 + 7, o.get('ns1', 24), ar1)
    k.L(ar1)
    k("s_waitcnt vmcnt(0)")
    tick(k, 4)
    for l in red: k(l)
    k("s_cbranch_vccnz %s", rr1)
    k.L(ok1)
    k("v_permlane32_swap_b32 %s, %s", v(RD), v(RD + 1))
    k("v_permlane32_swap_b32 %s, %s", v(RD + 2), v(RD + 3))
    k("v_add_f32 %s, %s, %s", v(RD), v(RD), v(RD + 1))
    k("v_add_f32 %s, %s, %s", v(RD + 2), v(RD + 2), v(RD + 3))
    k("v_permlane16_swap_b32 %s, %s", v(RD), v(RD + 2))
    k("v_add_f32 %s, %s, %s", v(RD), v(RD), v(RD + 2))
    k("v_mov_b32_dpp %s, %s quad_perm:[1,0,3,2] row_mask:0xf bank_mask:0xf", v(RD + 1), v(RD))
    k("v_cvt_pk_bf16_f32 %s, %s, %s", v(RD), v(RD), v(RD + 1))
    k("buffer_store_dword %s, %s, %s, s%d offen %s", v(RD), v(aH2S), W, sH2S, stf)
    tick(k, 14)
    k(MV(HT, "-1"))
    k("buffer_store_dword %s, %s, %s, s%d offen %s", v(HT), v(aH2S), W, sH2R, stf)
    hv = ["v_mov_b64 %s, %s" % (v(VT + 2 * i, 2), v(VTN + 2 * i, 2)) for i in range(4)] + [MV(VTN + 7, "0x7fc1")]
    ho = ["s_xor_b32 s%d, s%d, 0x40000" % (sH1L, sH1L), "s_bfe_u32 s%d, s%d, 0x10001" % (sPH, S_STEP), "s_mov_b32 s%d, 0" % sCNT]
    if mg:
        k("s_add_u32 s%d, s%d, 1", sT, S_STEP); k("v_cmp_ge_u32 vcc, s%d, v1", sT)
        k("s_cbranch_vccnz %s", r_kv)
        k.L(b_kv)
        k("s_sub_u32 s%d, s%d, 1", sT, S_STEP)
        k("v_mov_b32 v1, s%d", sT)
    p2 = o.get('p2', [40, 30])
    warm(hv, ho, p2[0])
    assert not hv and not ho
    for l in lde(EB[0]): k(l)
    warm(hv, ho, p2[1])
    for l in lde(EB[1]): k(l)
    warm(hv, ho, o.get('w2', 15))
    k(".aw_all")
    k(".aw_off")
    k.L(lpoll)
    for i, b in enumerate(EB):
        ar = k.lab(tag + "ar2")
        spin(b + 7, o.get('ns2', 16), ar)
        k.L(ar)
        k("s_waitcnt vmcnt(2)")
        check_n(k, b, 8, HT, HT + 1)
        k("s_cbranch_vccz %s", lS[i])
        k(MV(b + 7, "0x7fc1"))
        for l in lde(b): k(l)
        if tk: k("s_add_u32 s97, s97, 1")
    k("s_add_u32 s%d, s%d, 1", sCNT, sCNT)
    k("s_cmp_lt_u32 s%d, s%d", sCNT, S_LIM)
    k("s_cbranch_scc1 %s", lpoll)
    k("s_mov_b32 s%d, 0", S_LIM)
    k("s_waitcnt vmcnt(0)")
    k("s_branch %s", lS[0])
    k.L(rr1)
    l_ = k.lab("rp")
    k("s_mov_b32 s%d, 0", sCNT)
    k.L(l_)
    for l in h1l: k(l)
    if tk: k("s_add_u32 s96, s96, 1")
    k("s_waitcnt vmcnt(0)")
    for l in red: k(l)
    k("s_cbranch_vccz %s", ok1)
    k("s_add_u32 s%d, s%d, 1", sCNT, sCNT)
    k("s_cmp_lt_u32 s%d, s%d", sCNT, S_LIM)
    k("s_cbranch_scc1 %s", l_)
    k("s_mov_b32 s%d, 0", S_LIM)
    k("s_branch %s", ok1)
    if mg:
        k.L(r_kv)
        kv_refresh(k, 1, b_kv)
    k.L(r_sm)
    k("v_max3_f32 %s, %s, %s, %s", v(X), v(T1), v(T1 + 1), v(T1 + 2))
    k("v_max3_f32 %s, %s, %s, %s", v(X), v(T1 + 3), v(T2), v(X))
    k("v_max3_f32 %s, %s, %s, %s", v(X), v(T2 + 1), v(T2 + 2), v(X))
    k("v_max3_f32 %s, %s, %s, %s", v(X), v(T2 + 3), v(T0 + 2), v(X))
    k("v_max_f32 %s, %s, %s", v(X), v(T0 + 3), v(X))
    xmax(k, X, X + 1)
    for r in [T1 + i for i in range(8)] + [T0 + 2, T0 + 3]: k("v_sub_f32 %s, %s, %s", v(r), v(r), v(X))
    for i in range(8): k(EX(E + i, T1 + i))
    k(EX(T0, T0 + 2)); k(EX(T0 + 1, T0 + 3))
    for i in range(4): k(CV(E + i, E + 2 * i, E + 2 * i + 1))
    k(CV(PM, T0, T0 + 1)); k(CV(PM + 3, T0, T0 + 1))
    pv(k, False)
    k("s_mov_b32 s%d, 0x7f800000", sTHR)
    k("v_rcp_f32 %s, %s", v(LA), v(LA))
    k("v_rcp_f32 %s, %s", v(LA + 1), v(LA + 1))
    k("s_waitcnt lgkmcnt(0)")
    k("s_branch %s", b_sm)
    k.L(lexit)
    k(stkvm)
    k("s_waitcnt vmcnt(0) lgkmcnt(0)")
    if mg:
        k("v_mov_b32 v1, 64")
        k("buffer_store_dword v1, %s, %s, s%d offen sc1", v(aFL), W, sKF)

def role_chain(k, force_slow=False):
    mg = getattr(k, 'merged', False)
    k("s_mov_b32 s54, s45")
    stamp(k, 2, 0, wgreg=S_HEAD, vt=120)
    srds = (('Wq', S_WQ), ('Wk', S_WK), ('Wv', S_WV), ('Wo', S_WO), ('mem0', 56))
    for n, r in srds: load_srd(k, n, r)
    chain_setup(k)
    merged_setup(k)
    k("s_mov_b32 s%d, 0", S_STEP)
    k("s_waitcnt lgkmcnt(0)")
    for n, r in srds: fin_srd(k, n, r)
    W = s(S_WS, 4)
    def h_arm(k):
        chain_arm(k)
        k("v_lshrrev_b32 v104, 1, v90")
        k("v_and_b32 v104, 6, v104")
        k("v_and_b32 v105, 1, v1")
        k("v_add_u32 v104, v104, v105")
        k("v_lshlrev_b32 v104, 10, v104")
        k("v_and_b32 v105, 2, v1")
        k("v_lshl_add_u32 v104, v105, 5, v104")
        k("v_lshl_add_u32 v104, v91, 3, v104")
        k("s_lshl_b32 s%d, s%d, 8", sT, S_WAVE)
        for j in range(2):
            k("buffer_load_dwordx2 %s, v104, %s, s%d offen offset:%d", v(108 + 4 * j, 2), s(56, 4), sT, j * 128)
            k("buffer_load_dwordx2 %s, v104, %s, s%d offen offset:%d", v(110 + 4 * j, 2), s(56, 4), sT, j * 128 + 32)
        return 9
    def h_mem0(k):
        k("s_mov_b32 s%d, 0x05040100", sT)
        k("s_mov_b32 s%d, 0x07060302", sCNT)
        for j in range(2):
            for h in range(2):
                k("v_perm_b32 %s, %s, %s, s%d", v(MA + 4 * j + 2 * h), v(110 + 4 * j + h), v(108 + 4 * j + h), sT)
                k("v_perm_b32 %s, %s, %s, s%d", v(MA + 4 * j + 2 * h + 1), v(110 + 4 * j + h), v(108 + 4 * j + h), sCNT)
        k("buffer_store_dwordx4 %s, %s, %s, s%d offen offset:1024 sc1", v(MA + 4, 4), v(aL16), W, sH2L)
        k("v_mov_b32 v107, 0")
        k("buffer_load_dword v108, v107, %s, 0 offen offset:%d sc1", s(S_DBG, 4), DBG_READY)
        return 2
    def h_announce(k):
        k("s_cmp_eq_u32 s54, 0")
        k("s_cselect_b32 s%d, 1, 0x10001", sT)
        k("v_mov_b32 v106, s%d", sT)
        k("s_cmp_eq_u32 s%d, 0", S_WAVE)
        k("s_cselect_b32 s%d, 64, 0x1000", sT)
        k("v_mov_b32 v105, s%d", sT)
        k("s_mov_b64 exec, 1")
        k("buffer_atomic_add v106, v105, %s, 0 offen sc1", s(S_DBG, 4))
        k("s_mov_b64 exec, -1")
        return 1
    def h_flags(k):
        k("buffer_load_dword v109, %s, %s, s%d offen sc1", v(aFL), W, sQF)
        return 1
    def h_pf(k):
        k("s_waitcnt vmcnt(16)")
        k("v_cmp_eq_u32 vcc, 0, v108")
        k("s_or_b32 s%d, vcc_lo, vcc_hi", sSAFE)
        k("v_cmp_ge_u32 vcc, 1, v109")
        k("s_or_b32 s%d, s%d, vcc_lo", sSAFE, sSAFE)
        for p in range(4):
            for l in PFK(p): k(l)
        k("buffer_load_dword v110, v107, %s, 0 offen offset:64 sc1", s(S_DBG, 4))
        return 5
    h_arm(k)
    chain_load_weights(k, {1: h_mem0, 4: h_announce, 5: h_flags, 7: h_pf})
    stamp(k, 2, 1, wgreg=S_HEAD, vt=120)
    if mg:
        lok = k.lab("CHf")
        k("s_cmp_eq_u32 s%d, 0", sSAFE)
        k("s_cbranch_scc1 %s", lok)
        wait_ready(k, 108)
        kv_refresh(k, 1)
        for p in range(4):
            for l in PFK(p): k(l)
        k.L(lok)
    k("s_mov_b32 s%d, 0", sSAFE)
    k("s_mov_b32 s%d, 0x42700000", sTHR)
    for l in PFK(4): k(l)
    k("s_waitcnt vmcnt(0)")
    k("v_readfirstlane_b32 s44, v110")
    for n in range(4):
        k(WVR(n, 0)); k(WVR(n, 1))
    for i in range(24): k("v_mov_b32 %s, 0", v(AQ + i))
    lp = k.lab("CHs"); ok = k.lab("CHok")
    k("v_mov_b32 %s, 0", v(KVM + 1))
    k("s_mov_b32 s%d, 0", sCNT)
    k.L(lp)
    k("s_and_b32 s45, s44, 0xffff")
    k("s_cmp_eq_u32 s45, 32")
    k("s_cbranch_scc1 %s", ok)
    k("buffer_load_dword %s, %s, %s, 0 offen offset:64 sc1", v(KVM), v(KVM + 1), s(S_DBG, 4))
    k("s_waitcnt vmcnt(0)")
    k("v_readfirstlane_b32 s44, %s", v(KVM))
    k("s_add_u32 s%d, s%d, 1", sCNT, sCNT)
    k("s_cmp_lt_u32 s%d, s%d", sCNT, S_LIM)
    k("s_cbranch_scc1 %s", lp)
    k("s_mov_b32 s%d, 0", S_LIM)
    k.L(ok)
    k("s_waitcnt vmcnt(0)")
    for i in range(8): k("v_mov_b32 %s, %s", v(VT + i), v(VTN + i))
    k("s_waitcnt lgkmcnt(0)")
    stamp(k, 2, 2, wgreg=S_HEAD, vt=56)
    tick_init(k)
    if k.copt.get('plog2'):
        k("s_lshl_b32 s100, s%d, 2", S_HEAD)
        k("s_add_u32 s100, s100, s%d", S_WAVE)
        k("s_lshl_b32 s100, s100, 9")
        k("s_add_u32 s100, s100, 0x%x", TS + 8 * 65536)
    k("s_mov_b32 m0, s%d", sKTD)
    k("v_mov_b32 v1, 0")
    lslow = k.lab("CHslow"); ldone = k.lab("CHdone")
    k("s_lshr_b32 s44, s44, 16")
    k("s_cmp_lg_u32 s44, %d", 0 if not force_slow else 77)
    k("s_cbranch_scc1 %s", lslow)
    n0 = len(k.lines)
    chain_loop(k, "", "F")
    o = getattr(k, 'copt', {})
    if o.get('free'):
        body = k.lines[n0:]; out = []
        for l in body:
            ls = l.strip()
            if 's100' in ls: out.append(l); continue
            if ls.startswith('s_cbranch_vccnz'): continue
            if ls.startswith('s_cbranch_vccz Fs0v'): l = l.replace('s_cbranch_vccz', 's_branch')
            if ls.startswith('s_cbranch_scc1 Frsm'): continue
            if 'novmem' in o['free'] and (ls.startswith('buffer_') or 'vmcnt' in ls): continue
            if 'nowait' in o['free'] and 'vmcnt' in ls: continue
            out.append(l)
        k.lines[n0:] = out
    k("s_branch %s", ldone)
    k.L(lslow)
    chain_loop(k, "sc1", "S")
    k.L(ldone)
    if k.copt.get('plog'):
        k("s_lshl_b32 s100, s%d, 2", S_HEAD)
        k("s_add_u32 s100, s100, s%d", S_WAVE)
        k("s_lshl_b32 s100, s100, 8")
        k("s_add_u32 s100, s100, 0x%x", TS + 8 * 65536)
        k("v_lshrrev_b32 v40, 2, %s", v(aL16))
        k("buffer_store_dword v1, v40, %s, s100 offen", s(S_WS, 4))
    tick_dump(k)
    k("s_waitcnt vmcnt(0)")
    stamp(k, 2, 3, wgreg=S_HEAD, vt=56)
```

```python
from asmlib import *
NAME = "sequential_preLN__memory_aug_recurrent_mem_tr__glu_gated_swiglu__prompt"
XN    = 0x0000000
QIMG  = 0x0200000
KIMG  = 0x1200000
VIMG  = 0x2200000
KM    = 0x3220000
VM    = 0x3A00000
PART  = 0x4000000
HIMG  = 0x6000000
HNIMG = 0x6200000
ACT   = 0x6400000
HOP1  = 0x7000000
HOP2  = 0x7100000
FLAGS = 0x7200000
WS_BYTES = 268435456
KA = dict(x=0, mem0=8, Wq=16, Wk=24, Wv=32, Wo=40, w1=64, w3=72, w2=80, out=88, dbg=96, ws=104)
SZ = dict(x=2097152, mem0=8192, Wq=4194304, Wk=4194304, Wv=4194304, Wo=4194304, w1=512*1376*2, w3=512*1376*2,
          w2=1376*512*2, out=2097152, dbg=256, ws=WS_BYTES)

def load_srd(k, name, sreg):
    k("s_load_dwordx2 %s, s[0:1], %d", s(sreg, 2), KA[name])
def fin_srd(k, name, sreg):
    k("s_and_b32 %s, %s, 0xffff", s(sreg + 1), s(sreg + 1))
    k("s_mov_b32 %s, 0x%x", s(sreg + 2), SZ[name])
    k("s_mov_b32 %s, 0x20000", s(sreg + 3))

def kernel_header(k, name):
    k(".globl %s", name)
    k(".p2align 8")
    k(".type %s,@function", name)
    k.L(name)

def kernel_desc(name, vgpr=512, accum=256, sgpr=102):
    return """.amdhsa_kernel %s
  .amdhsa_next_free_vgpr %d
  .amdhsa_next_free_sgpr %d
  .amdhsa_accum_offset %d
  .amdhsa_group_segment_fixed_size 0
  .amdhsa_kernarg_size 112
  .amdhsa_user_sgpr_count 2
  .amdhsa_user_sgpr_kernarg_segment_ptr 1
  .amdhsa_system_sgpr_workgroup_id_x 1
  .amdhsa_float_denorm_mode_32 3
  .amdhsa_float_denorm_mode_16_64 3
.end_amdhsa_kernel
""" % (name, vgpr, sgpr, accum)

def row16_allreduce_add(k, r, tmp=None):
    for sh in (1, 2, 4, 8):
        k("v_add_f32_dpp %s, %s, %s row_ror:%d row_mask:0xf bank_mask:0xf", v(r), v(r), v(r), sh)

def round_bf16(k, dst, src):
    k("v_cvt_pk_bf16_f32 %s, %s, %s", v(dst), v(src), v(src))
    k("v_lshlrev_b32 %s, 16, %s", v(dst), v(dst))

TS = 0x7800000
def stamp(k, slot, idx, S_WS=8, wgreg=2, vt=2, st=60):
    if not getattr(k, 'stamps', False): return
    l = k.lab("ST")
    k("s_cmp_lg_u32 s4, 0")
    k("s_cbranch_scc1 %s", l)
    k("s_memrealtime %s", s(st, 2))
    k("s_lshl_b32 %s, s%d, 7", s(st + 2), wgreg)
    k("s_add_u32 %s, %s, 0x%x", s(st + 2), s(st + 2), TS + slot * 65536 + idx * 8)
    k("v_mov_b32 %s, 0", v(vt + 2))
    k("s_waitcnt lgkmcnt(0)")
    k("v_mov_b32 %s, %s", v(vt), s(st))
    k("v_mov_b32 %s, %s", v(vt + 1), s(st + 1))
    k("buffer_store_dwordx2 %s, %s, %s, %s offen", v(vt, 2), v(vt + 2), s(S_WS, 4), s(st + 2))
    k("s_waitcnt vmcnt(0)")
    k.L(l)

F_XN = 0x000; F_QF = 0x100; F_KF = 0x1000; F_BF = 0xA00; F_RF = 0xC00; F_UF = 0xE00
DBG_READY = 96
```

```python
from common import *

S_WS = 8
S_W  = 12
S_X  = 16
S_O  = 20
S_DBG = 24
S_WAVE = 4
ST = "sc1"
LD = "sc1"

def lane_wave(k):
    k("v_and_b32 v1, 63, v0")
    k("v_lshrrev_b32 v2, 6, v0")
    k("v_readfirstlane_b32 s%d, v2", S_WAVE)

S_SPIN = 6

def wait_ready(k, vt):
    lp = k.lab("rdy"); ok = k.lab("rdyok")
    k("s_mov_b32 s42, 0")
    k("v_mov_b32 %s, 0", v(vt + 1))
    k.L(lp)
    k("buffer_load_dword %s, %s, %s, 0 offen offset:%d sc1", v(vt), v(vt + 1), s(S_DBG, 4), DBG_READY)
    k("s_waitcnt vmcnt(0)")
    k("v_cmp_eq_u32 vcc, 0, %s", v(vt))
    k("s_cbranch_vccz %s", ok)
    k("s_sleep 2")
    k("s_add_u32 s42, s42, 1")
    k("s_cmp_lt_u32 s42, s%d", S_SPIN)
    k("s_cbranch_scc1 %s", lp)
    k("s_mov_b32 s%d, 0", S_SPIN)
    k.L(ok)

def wait_flags(k, vaddr, s_off, s_seg, vt, scnt=59):
    lp = k.lab("wf"); ok = k.lab("wfok")
    k("s_mov_b32 s%d, 0", scnt)
    k.L(lp)
    k("buffer_load_dword %s, %s, %s, s%d offen sc1", v(vt), v(vaddr), s(S_WS, 4), s_off)
    k("s_waitcnt vmcnt(0)")
    k("v_cmp_ge_u32 vcc, s%d, %s", s_seg, v(vt))
    k("s_cbranch_vccz %s", ok)
    k("s_sleep 2")
    k("s_add_u32 s%d, s%d, 1", scnt, scnt)
    k("s_cmp_lt_u32 s%d, s%d", scnt, S_SPIN)
    k("s_cbranch_scc1 %s", lp)
    k("s_mov_b32 s%d, 0", S_SPIN)
    k.L(ok)

def set_flag(k, s_off, val, vt, drain=True):
    l = k.lab("sf")
    if drain:
        k("s_waitcnt vmcnt(0)")
        k("s_barrier")
    k("s_cmp_lg_u32 s%d, 0", S_WAVE)
    k("s_cbranch_scc1 %s", l)
    k("v_mov_b32 %s, %s", v(vt), val)
    k("v_mov_b32 %s, 0", v(vt + 1))
    k("s_mov_b64 exec, 1")
    k("buffer_store_dword %s, %s, %s, s%d offen sc1", v(vt), v(vt + 1), s(S_WS, 4), s_off)
    k("s_mov_b64 exec, -1")
    k.L(l)

def ln_finish(k, X, n, mean, var, t0, t1, OUT):
    round_bf16(k, mean, mean)
    round_bf16(k, var, var)
    k("v_add_f32 %s, 0x3727c5ac, %s", v(var), v(var))
    round_bf16(k, var, var)
    k("v_sqrt_f32 %s, %s", v(var), v(var))
    round_bf16(k, var, var)
    k("v_rcp_f32 %s, %s", v(var), v(var))
    for i in range(0, n, 2):
        k("v_sub_f32 %s, %s, %s", v(X + i), v(X + i), v(mean))
        k("v_sub_f32 %s, %s, %s", v(X + i + 1), v(X + i + 1), v(mean))
        k("v_cvt_pk_bf16_f32 %s, %s, %s", v(t0), v(X + i), v(X + i + 1))
        k("v_lshlrev_b32 %s, 16, %s", v(X + i), v(t0))
        k("v_and_b32 %s, 0xffff0000, %s", v(X + i + 1), v(t0))
        k("v_mul_f32 %s, %s, %s", v(X + i), v(X + i), v(var))
        k("v_mul_f32 %s, %s, %s", v(X + i + 1), v(X + i + 1), v(var))
        k("v_cvt_pk_bf16_f32 %s, %s, %s", v(OUT + i // 2), v(X + i), v(X + i + 1))

def role_ln1(k, s_tile):
    k.c("---- LN1 role")
    stamp(k, 0, 0, vt=120)
    k("v_lshrrev_b32 v2, 4, v1")
    k("v_and_b32 v3, 15, v1")
    k("s_lshl_b32 s40, s%d, 2", S_WAVE)
    k("v_add_u32 v2, s40, v2")
    k("v_lshlrev_b32 v4, 10, v2")
    k("v_lshl_add_u32 v4, v3, 4, v4")
    k("s_lshl_b32 s41, s%d, 14", s_tile)
    for it in range(4):
        k("buffer_load_dwordx4 %s, v4, %s, s41 offen offset:%d", v(8 + 4 * it, 4), s(S_X, 4), it * 256)
    k("v_lshrrev_b32 v5, 2, v3")
    k("v_lshlrev_b32 v5, 10, v5")
    k("v_and_b32 v6, 3, v3")
    k("v_lshl_add_u32 v5, v6, 8, v5")
    k("v_lshl_add_u32 v5, v2, 4, v5")
    X = 32
    for it in range(4):
        k("s_waitcnt vmcnt(%d)", 3 - it)
        for j in range(4):
            k("v_lshlrev_b32 %s, 16, %s", v(X + 8 * it + 2 * j), v(8 + 4 * it + j))
            k("v_and_b32 %s, 0xffff0000, %s", v(X + 8 * it + 2 * j + 1), v(8 + 4 * it + j))
    k("v_add_f32 v24, %s, %s", v(X), v(X + 1))
    k("v_add_f32 v25, %s, %s", v(X + 2), v(X + 3))
    for i in range(4, 32, 2):
        k("v_add_f32 v24, v24, %s", v(X + i))
        k("v_add_f32 v25, v25, %s", v(X + i + 1))
    k("v_add_f32 v24, v24, v25")
    row16_allreduce_add(k, 24)
    k("v_mul_f32 v24, 0x3b000000, v24")
    k("v_mov_b32 v25, 0")
    k("v_mov_b32 v26, 0")
    for i in range(0, 32, 2):
        k("v_sub_f32 v27, %s, v24", v(X + i))
        k("v_sub_f32 v28, %s, v24", v(X + i + 1))
        k("v_fmac_f32 v25, v27, v27")
        k("v_fmac_f32 v26, v28, v28")
    k("v_add_f32 v25, v25, v26")
    row16_allreduce_add(k, 25)
    k("v_mul_f32 v25, 0x3b000000, v25")
    ln_finish(k, X, 32, 24, 25, 26, 27, 8)
    for it in range(4):
        k("s_add_u32 s42, s41, 0x%x", XN + it * 4096)
        k("buffer_store_dwordx4 %s, v5, %s, s42 offen %s", v(8 + 4 * it, 4), s(S_WS, 4), ST)
    stamp(k, 0, 1, vt=120)

def stage_rows256(k, srd, s_base, pitch, nrows, vaddr, lds_off=0):
    k("v_lshrrev_b32 %s, 4, v1", v(vaddr + 1))
    k("v_lshlrev_b32 %s, 2, %s", v(vaddr), v(vaddr + 1))
    k("v_xor_b32 %s, %s, v1", v(vaddr), v(vaddr))
    k("v_and_b32 %s, 15, %s", v(vaddr), v(vaddr))
    k("v_lshlrev_b32 %s, 4, %s", v(vaddr), v(vaddr))
    k("s_mov_b32 s44, %d", pitch)
    k("v_mad_u32_u24 %s, %s, s44, %s", v(vaddr), v(vaddr + 1), v(vaddr))
    k("s_mul_i32 s44, s%d, %d", S_WAVE, 4 * pitch)
    k("s_add_u32 s44, s44, s%d", s_base)
    k("s_lshl_b32 s45, s%d, 10", S_WAVE)
    if lds_off: k("s_add_u32 s45, s45, %d", lds_off)
    n = nrows // 16
    for i in range(n):
        k("s_mov_b32 m0, s45")
        k("buffer_load_dwordx4 %s, %s, s44 offen lds", v(vaddr), s(srd, 4))
        if i < n - 1:
            k("s_add_u32 s44, s44, %d", 16 * pitch)
            k("s_add_u32 s45, s45, 4096")

def frag_addr256(k, va, vtmp, lds_off=0):
    k("v_lshrrev_b32 %s, 4, v1", v(va))
    k("v_lshlrev_b32 %s, 3, %s", v(va), v(va))
    k("v_bfe_u32 %s, v1, 2, 2", v(vtmp))
    k("v_add_u32 %s, %s, %s", v(va), v(va), v(vtmp))
    k("v_lshlrev_b32 %s, 8, %s", v(va), v(va))
    k("v_xor_b32 %s, s%d, %s", v(vtmp), S_WAVE, v(vtmp))
    k("v_lshl_add_u32 %s, %s, 6, %s", v(va), v(vtmp), v(va))
    k("v_and_b32 %s, 3, v1", v(vtmp))
    k("v_lshl_add_u32 %s, %s, 4, %s", v(va), v(vtmp), v(va))
    if lds_off: k("v_add_u32 %s, %d, %s", v(va), lds_off, v(va))
    k("v_add_u32 %s, 0x10000, %s", v(va + 1), v(va))

def read_frags256(k, va, WREG):
    for ks in range(16):
        for t in range(2):
            for y in range(2):
                off = ks * 8192 + y * 1024 + 8 * t
                k("ds_read_b64_tr_b16 %s, %s offset:%d", u(WREG + (t * 16 + ks) * 4 + 2 * y, 2),
                  v(va + (off >> 16)), off & 0xffff)
        if ks % 3 == 2: k("s_waitcnt lgkmcnt(4)")
    k("s_waitcnt lgkmcnt(0)")

def seg_gemm_loop(k, WREG, w_is_a, s_src, src_stride, niter_sreg, epilogue, n_epi_vm, pre_dma=None, publish=None, tag="G"):
    PF = 8; NB = 16; FW = 16; ACC = 80
    k("v_lshlrev_b32 v4, 4, v1")
    k("v_mov_b32 v5, v4")
    k("s_lshl_b32 s48, s%d, 13", S_WAVE)
    k("s_add_u32 s49, s%d, s48", s_src)
    k("s_mov_b32 s50, s48")
    k("s_mov_b32 s51, 0")
    k("s_mov_b32 s52, 0")
    def dma_piece(p):
        if p == 0:
            if pre_dma: pre_dma(k)
            k("s_cmp_lt_u32 s52, s%d", niter_sreg)
            k("s_cselect_b32 s53, s49, 0")
            k("s_mov_b32 m0, s50")
        if p == 4:
            k("s_add_u32 s53, s53, 4096")
            k("s_add_u32 m0, s50, 4096")
        k("buffer_load_dwordx4 v4, %s, s53 offen offset:%d %s lds", s(S_WS, 4), (p % 4) * 1024, LD)
        if p == 7:
            k("s_add_u32 s49, s49, %s", src_stride)
            k("s_add_u32 s50, s50, 0x8000")
            k("s_and_b32 s50, s50, 0x1ffff")
            k("s_add_u32 s52, s52, 1")
    for i in range(2):
        for p in range(8): dma_piece(p)
    dma_piece(0); dma_piece(1)
    for j in range(n_epi_vm): k("buffer_load_dword v7, v4, %s, 0 offen", s(S_WS, 4))
    k("s_waitcnt vmcnt(%d)", 10 + n_epi_vm)
    k("s_barrier")
    for f in range(PF):
        k("ds_read_b128 %s, v5 offset:%d", v(FW + 4 * (f % NB), 4), f * 1024)
    lp = k.lab(tag + "loop")
    k.L(lp)
    k("v_add_u32 v6, 0x8000, v5")
    k("v_and_b32 v6, 0x1ffff, v6")
    for f in range(32):
        mt, ks = f // 16, f % 16
        if f == 32 - PF:
            k("s_waitcnt vmcnt(%d)", 8 + n_epi_vm)
            k("s_barrier")
            if publish: publish(k)
        g = f + PF
        if g < 32: k("ds_read_b128 %s, v5 offset:%d", v(FW + 4 * (g % NB), 4), g * 1024)
        else: k("ds_read_b128 %s, v6 offset:%d", v(FW + 4 * (g % NB), 4), (g - 32) * 1024)
        k("s_waitcnt lgkmcnt(%d)", PF)
        for t in range(2):
            acc = v(ACC + (mt * 2 + t) * 4, 4)
            wf = u(WREG + (t * 16 + ks) * 4, 4); xf = v(FW + 4 * (f % NB), 4)
            A, B = (wf, xf) if w_is_a else (xf, wf)
            k("v_mfma_f32_16x16x32_bf16 %s, %s, %s, %s", acc, A, B, "0" if ks == 0 else acc)
            if t == 0 and f % 4 == 0: dma_piece(((f + 8) // 4) % 8)
    epilogue(k, ACC)
    k("v_mov_b32 v5, v6")
    k("s_add_u32 s51, s51, 1")
    k("s_cmp_lt_u32 s51, s%d", niter_sreg)
    k("s_cbranch_scc1 %s", lp)
    k("s_waitcnt vmcnt(0) lgkmcnt(0)")

def role_qkv(k, s_idx, pre_dma=None, publish=None, pre_loop=None):
    k.c("---- QKV role")
    stamp(k, 1, 0, vt=120)
    WREG = 128
    k("s_lshr_b32 s32, s%d, 6", s_idx)
    k("s_bfe_u32 s33, s%d, 0x50001", s_idx)
    k("s_and_b32 s34, s%d, 1", s_idx)
    k("s_lshl_b32 s35, s32, 3")
    k("s_add_u32 s35, s35, 24")
    k("s_cmp_eq_u32 s32, 2")
    k("s_cselect_b32 s35, 16, s35")
    k("s_load_dwordx2 %s, s[0:1], s35", s(S_W, 2))
    k("s_lshl_b32 s36, s33, 8")
    k("s_waitcnt lgkmcnt(0)")
    fin_srd(k, 'Wq', S_W)
    stage_rows256(k, S_W, 36, 8192, 512, 8)
    frag_addr256(k, 10, 12)
    k("s_waitcnt vmcnt(0)")
    k("s_barrier")
    stamp(k, 1, 1, vt=120)
    read_frags256(k, 10, WREG)
    k("s_barrier")
    stamp(k, 1, 2, vt=120)
    k("s_lshl_b32 s37, s32, 24")
    k("s_add_u32 s37, s37, 0x%x", KIMG)
    k("s_cmp_eq_u32 s32, 2")
    k("s_cselect_b32 s37, 0x%x, s37", QIMG)
    k("s_lshl_b32 s38, s33, 13")
    k("s_add_u32 s37, s37, s38")
    k("s_lshl_b32 s38, s34, 18")
    k("s_add_u32 s37, s37, s38")
    k("s_lshl_b32 s38, s34, 15")
    if XN: k("s_add_u32 s38, s38, 0x%x", XN)
    k("s_mov_b32 s39, 32")
    if pre_loop: pre_loop(k)
    lv = k.lab("QKVv"); lend = k.lab("QKVend")
    k("s_cmp_eq_u32 s32, 1")
    k("s_cbranch_scc1 %s", lv)
    def epi_qk(k, ACC):
        for mt in range(2):
            for t in range(2):
                for h in range(2):
                    r = ACC + (mt * 2 + t) * 4 + 2 * h
                    k("v_cvt_pk_bf16_f32 %s, %s, %s", v(112 + mt * 4 + t * 2 + h), v(r), v(r + 1))
        k("buffer_store_dwordx4 v[112:115], v4, %s, s37 offen %s", s(S_WS, 4), ST)
        k("s_add_u32 s40, s37, 4096")
        k("buffer_store_dwordx4 v[116:119], v4, %s, s40 offen %s", s(S_WS, 4), ST)
        k("s_add_u32 s37, s37, 0x80000")
    k("s_lshl_b32 s40, s%d, 10", S_WAVE)
    k("s_add_u32 s37, s37, s40")
    seg_gemm_loop(k, WREG, True, 38, "0x10000", 39, epi_qk, 2, pre_dma, publish, tag="QK")
    k("s_branch %s", lend)
    k.L(lv)
    def epi_v(k, ACC):
        for t in range(2):
            for mt in range(2):
                for h in range(2):
                    r = ACC + (mt * 2 + t) * 4 + 2 * h
                    k("v_cvt_pk_bf16_f32 %s, %s, %s", v(112 + t * 4 + mt * 2 + h), v(r), v(r + 1))
        k("buffer_store_dwordx4 v[112:115], v4, %s, s37 offen %s", s(S_WS, 4), ST)
        k("buffer_store_dwordx4 v[116:119], v4, %s, s37 offen offset:1024 %s", s(S_WS, 4), ST)
        k("s_add_u32 s37, s37, 0x80000")
    k("s_lshl_b32 s40, s%d, 11", S_WAVE)
    k("s_add_u32 s37, s37, s40")
    seg_gemm_loop(k, WREG, False, 38, "0x10000", 39, epi_v, 2, pre_dma, publish, tag="V")
    k.L(lend)
    stamp(k, 1, 3, vt=120)
```

```python
from roles import *
from chain import xmax
import struct
def f2u(x): return struct.unpack('<I', struct.pack('<f', x))[0]
CSC = 0.08838834764831845 * 1.4426950408889634
def MF(d, A, B, first): return "v_mfma_f32_16x16x32_bf16 %s, %s, %s, %s" % (v(d, 4), u(A, 4), u(B, 4), "0" if first else v(d, 4))
def M16(d, A, B): return "v_mfma_f32_16x16x16_bf16 %s, %s, %s, %s" % (v(d, 4), v(A, 2), v(B, 2), v(d, 4))
def CV(d, a_, b_): return "v_cvt_pk_bf16_f32 %s, %s, %s" % (v(d), v(a_), v(b_))

def xsum(k, r, tmp):
    k("v_mov_b32 %s, %s", v(tmp), v(r))
    k("v_permlane32_swap_b32 %s, %s", v(r), v(tmp))
    k("v_add_f32 %s, %s, %s", v(r), v(r), v(tmp))
    k("v_mov_b32 %s, %s", v(tmp), v(r))
    k("v_permlane16_swap_b32 %s, %s", v(r), v(tmp))
    k("v_add_f32 %s, %s, %s", v(r), v(r), v(tmp))

def role_bc(k, s_idx, s_seg, nstride, wait_qkv=None, wait_kvm=None, publish=None):
    k.c("---- BC role")
    W = s(S_WS, 4); WREG = 256
    load_srd(k, 'Wo', S_W)
    k("s_lshr_b32 s32, s%d, 2", s_idx)
    k("s_and_b32 s33, s%d, 3", s_idx)
    k("s_lshl_b32 s36, s32, 19")
    k("s_lshl_b32 s37, s33, 8")
    k("s_add_u32 s36, s36, s37")
    k("s_waitcnt lgkmcnt(0)")
    fin_srd(k, 'Wo', S_W)
    stage_rows256(k, S_W, 36, 1024, 512, 8)
    frag_addr256(k, 10, 12)
    k("s_waitcnt vmcnt(0)")
    k("s_barrier")
    read_frags256(k, 10, WREG)
    k("s_barrier")
    QF, KF, VF, KV, XK = 16, 48, 80, 112, 128
    T, TM, P, PM, OT, FW, ACC = 144, 156, 164, 172, 180, 192, 180
    aL16, aXW, aXR, aOW, aOR = 4, 5, 6, 7, 8
    k("v_lshlrev_b32 v4, 4, v1")
    k("v_and_b32 v10, 15, v1")
    k("v_lshrrev_b32 v11, 4, v1")
    k("v_bfe_u32 v12, v1, 2, 2")
    k("v_and_b32 v13, 3, v1")
    k("s_lshl_b32 s38, s%d, 12", S_WAVE)
    k("s_add_u32 s38, s38, 65536")
    k("v_lshl_add_u32 v14, v12, 3, v13")
    k("v_lshlrev_b32 v14, 5, v14")
    k("v_lshl_add_u32 v14, v11, 3, v14")
    k("v_add_u32 v%d, s38, v14", aXW)
    k("v_lshl_add_u32 v14, v11, 3, v12")
    k("v_lshlrev_b32 v14, 5, v14")
    k("v_lshl_add_u32 v14, v13, 3, v14")
    k("v_add_u32 v%d, s38, v14", aXR)
    k("s_lshl_b32 s38, s%d, 12", S_WAVE)
    k("v_add_u32 v%d, s38, v4", aOW)
    k("v_mov_b32 v%d, v4", aOR)
    k("v_lshlrev_b32 v14, 2, v11")
    for j in range(4):
        k("v_add_u32 v15, %d, v14", j)
        k("v_cmp_gt_u32 %s, v15, v10", s(64 + 2 * j, 2))
    k("v_mov_b32 v9, 0xff800000")
    k("s_mov_b32 s41, 0x%x", f2u(CSC))
    k("s_lshl_b32 s34, s32, 2")
    k("s_add_u32 s34, s34, s%d", S_WAVE)
    k("s_lshl_b32 s35, s34, 13")
    k("s_lshl_b32 s39, s34, 12")
    k("s_lshl_b32 s40, s33, 2")
    k("s_add_u32 s40, s40, s%d", S_WAVE)
    k("s_lshl_b32 s40, s40, 11")
    k("s_lshl_b32 s38, s32, 16")
    k("s_add_u32 s40, s40, s38")
    k("s_add_u32 s40, s40, 0x%x", PART)
    def load_qkv(sseg):
        k("s_lshl_b32 s42, s%d, 18", sseg)
        k("s_add_u32 s42, s42, s35")
        for base, R in ((QIMG, QF), (KIMG, KF), (VIMG, VF)):
            for hf in range(2):
                k("s_add_u32 s43, s42, 0x%x", base + hf * 4096)
                for i in range(4):
                    k("buffer_load_dwordx4 %s, v4, %s, s43 offen offset:%d %s", v(R + 16 * hf + 4 * i, 4), W, i * 1024, LD)
    if wait_qkv: wait_qkv(k, s_seg)
    load_qkv(s_seg)
    lp = k.lab("BCl")
    k.L(lp)
    if wait_kvm: wait_kvm(k, s_seg)
    k("s_lshl_b32 s42, s%d, 17", s_seg)
    k("s_add_u32 s42, s42, s39")
    k("s_add_u32 s42, s42, 0x%x", KM)
    for i in range(4):
        k("buffer_load_dwordx4 %s, v4, %s, s42 offen offset:%d %s", v(KV + 4 * i, 4), W, i * 1024, LD)
    k("s_waitcnt vmcnt(12)")
    k(".aw_on")
    for kb in range(4):
        k(MF(T, KF + 4 * kb, QF + 4 * kb, kb == 0))
        k(MF(T + 4, KF + 4 * kb, QF + 16 + 4 * kb, kb == 0))
        k(MF(T + 8, KF + 16 + 4 * kb, QF + 16 + 4 * kb, kb == 0))
    k("s_waitcnt vmcnt(0)")
    for i in range(4):
        k("ds_write2_b32 v%d, %s, %s offset0:0 offset1:32", aXW, v(KV + 4 * i), v(KV + 4 * i + 1))
        if i < 3: k("v_add_u32 v%d, 1024, v%d", aXW, aXW)
    k("v_subrev_u32 v%d, 3072, v%d", aXW, aXW)
    k(".aw_writes")
    for i in range(8):
        k("ds_read_b64_tr_b16 %s, v%d offset:%d", v(XK + 2 * i, 2), aXR, (i >> 1) * 1024 + (i & 1) * 128)
    for j in range(4):
        k("v_cndmask_b32 %s, %s, v9, %s", v(T + j), v(T + j), s(64 + 2 * j, 2))
        k("v_cndmask_b32 %s, %s, v9, %s", v(T + 8 + j), v(T + 8 + j), s(64 + 2 * j, 2))
    for kb in range(4):
        k(MF(TM, XK + 4 * kb, QF + 4 * kb, kb == 0))
        k(MF(TM + 4, XK + 4 * kb, QF + 16 + 4 * kb, kb == 0))
    MX, SM, TMP = 10, 12, 14
    vals = [[T + j for j in range(4)] + [TM, TM + 1], [T + 4 + j for j in range(8)] + [TM + 4, TM + 5]]
    for mt in range(2):
        vs = vals[mt]
        k("v_max_f32 %s, %s, %s", v(MX + mt), v(vs[0]), v(vs[1]))
        for i in range(2, len(vs), 2):
            k("v_max3_f32 %s, %s, %s, %s", v(MX + mt), v(vs[i]), v(vs[i + 1]), v(MX + mt))
    for mt in range(2): xmax(k, MX + mt, TMP + mt)
    for mt in range(2):
        k("v_mul_f32 %s, s41, %s", v(MX + mt), v(MX + mt))
        for r in vals[mt]: k("v_fma_f32 %s, %s, s41, -%s", v(r), v(r), v(MX + mt))
        for r in vals[mt]: k("v_exp_f32 %s, %s", v(r), v(r))
    for mt in range(2):
        vs = vals[mt]
        k("v_add_f32 %s, %s, %s", v(SM + mt), v(vs[0]), v(vs[1]))
        for r in vs[2:]: k("v_add_f32 %s, %s, %s", v(SM + mt), v(SM + mt), v(r))
    for mt in range(2): xsum(k, SM + mt, TMP + mt)
    for mt in range(2): k("v_rcp_f32 %s, %s", v(SM + mt), v(SM + mt))
    for mt in range(2):
        for r in vals[mt]: k("v_mul_f32 %s, %s, %s", v(r), v(r), v(SM + mt))
    k(CV(P, T, T + 1)); k(CV(P + 1, T + 2, T + 3)); k("v_mov_b32 %s, 0", v(P + 2)); k("v_mov_b32 %s, 0", v(P + 3))
    for i in range(4): k(CV(P + 4 + i, T + 4 + 2 * i, T + 5 + 2 * i))
    for mt in range(2):
        k(CV(PM + 4 * mt, TM + 4 * mt, TM + 4 * mt + 1)); k("v_mov_b32 %s, 0", v(PM + 4 * mt + 1))
        k("v_mov_b32 %s, 0", v(PM + 4 * mt + 2)); k(CV(PM + 4 * mt + 3, TM + 4 * mt, TM + 4 * mt + 1))
    O = lambda wp, mt, t: FW + ((wp * 2 + mt) * 2 + t) * 4
    for wp in range(4):
        for mt in range(2):
            for t in range(2): k(MF(O(wp, mt, t), VF + 4 * (2 * wp + t), P + 4 * mt, True))
        for mt in range(2):
            for t in range(2): k(M16(O(wp, mt, t), KV + 4 * wp + 2, PM + 4 * mt + 2 * t))
    k("s_add_u32 s44, s%d, %d", s_seg, nstride)
    k("s_min_u32 s45, s44, 63")
    lnw = k.lab("BCnw")
    if wait_qkv:
        k("s_cmp_ge_u32 s44, 64")
        k("s_cselect_b32 s45, s%d, s45", s_seg)
        wait_qkv(k, 45)
    load_qkv(45)
    for wp in range(4):
        for mt in range(2):
            o0 = O(wp, mt, 0)
            for i in range(4): k(CV(o0 + i, o0 + 2 * i, o0 + 2 * i + 1))
            k("ds_write_b128 v%d, %s offset:%d", aOW, v(o0, 4), mt * 16384 + wp * 1024)
    k(".aw_writes")
    k("s_barrier")
    PF = 8
    AC = T
    for f in range(PF): k("ds_read_b128 %s, v%d offset:%d", v(FW + 4 * (f % 16), 4), aOR, f * 1024)
    for f in range(32):
        mt, ks = f // 16, f % 16
        if f + PF < 32: k("ds_read_b128 %s, v%d offset:%d", v(FW + 4 * ((f + PF) % 16), 4), aOR, (f + PF) * 1024)
        for t in range(2): k(MF(AC + (mt * 2 + t) * 4, WREG + (t * 16 + ks) * 4, FW + 4 * (f % 16), ks == 0))
        if f == 20:
            k("s_lshl_b32 s42, s%d, 19", s_seg)
            k("s_add_u32 s42, s42, s40")
            for t in range(2): k("buffer_store_dwordx4 %s, v4, %s, s42 offen offset:%d %s", v(AC + 4 * t, 4), W, t * 1024, ST)
    k(".aw_off")
    k("s_add_u32 s42, s42, 32768")
    for t in range(2): k("buffer_store_dwordx4 %s, v4, %s, s42 offen offset:%d %s", v(AC + 8 + 4 * t, 4), W, t * 1024, ST)
    k("v_xor_b32 v%d, 0x8000, v%d", aOW, aOW)
    k("v_xor_b32 v%d, 0x8000, v%d", aOR, aOR)
    if publish: publish(k, s_seg)
    k("s_mov_b32 s%d, s44", s_seg)
    k("s_cmp_lt_u32 s%d, 64", s_seg)
    k("s_waitcnt vmcnt(0)")
    k("s_cbranch_scc1 %s", lp)

def role_red(k, s_tq, s_seg, nstride, wait=None, publish=None):
    k.c("---- R role")
    W = s(S_WS, 4)
    k("v_and_b32 v10, 3, v1")
    k("v_bfe_u32 v11, v1, 2, 2")
    k("v_lshrrev_b32 v12, 4, v1")
    k("s_lshl_b32 s32, s%d, 2", S_WAVE)
    k("v_add_u32 v12, s32, v12")
    k("s_and_b32 s33, s%d, 3", s_tq)
    k("s_lshl_b32 s33, s33, 2")
    k("v_add_u32 v13, s33, v10")
    k("v_lshl_add_u32 v14, v11, 4, v13")
    k("v_lshlrev_b32 v14, 4, v14")
    k("v_lshl_add_u32 v4, v12, 11, v14")
    k("v_lshl_add_u32 v5, v12, 10, v14")
    k("v_lshlrev_b32 v6, 10, v13")
    k("v_lshl_add_u32 v6, v12, 6, v6")
    k("v_lshl_add_u32 v6, v11, 4, v6")
    k("s_lshr_b32 s34, s%d, 2", s_tq)
    k("s_lshl_b32 s35, s34, 15")
    k("s_add_u32 s35, s35, 0x%x", PART)
    k("s_lshl_b32 s36, s34, 14")
    k("s_lshl_b32 s37, s%d, 5", S_WAVE)
    k("v_lshlrev_b32 v8, 3, v10")
    k("v_add_u32 v7, s37, v8")
    lp = k.lab("Rl")
    k.L(lp)
    k("s_lshl_b32 s39, s%d, 15", s_seg)
    k("s_add_u32 s39, s39, s36")
    k("buffer_load_dwordx4 v[16:19], v6, %s, s39 offen", s(S_X, 4))
    if wait: wait(k, s_seg)
    k("s_lshl_b32 s38, s%d, 19", s_seg)
    k("s_add_u32 s38, s38, s35")
    PB = 32
    for hg in range(8):
        for t in range(2):
            k("buffer_load_dwordx4 %s, v4, %s, s38 offen offset:%d %s", v(PB + 8 * hg + 4 * t, 4), W, t * 1024, LD)
        if hg < 7: k("s_add_u32 s38, s38, 65536")
    X = 20
    k("s_waitcnt vmcnt(16)")
    for j in range(4):
        k("v_lshlrev_b32 %s, 16, %s", v(X + 2 * j), v(16 + j))
        k("v_and_b32 %s, 0xffff0000, %s", v(X + 2 * j + 1), v(16 + j))
    for hg in range(1, 8):
        k("s_waitcnt vmcnt(%d)", 14 - 2 * hg)
        for i in range(8): k("v_add_f32 %s, %s, %s", v(PB + i), v(PB + i), v(PB + 8 * hg + i))
    H = 40
    for i in range(0, 8, 2):
        k(CV(28, PB + i, PB + i + 1))
        k("v_lshlrev_b32 v29, 16, v28")
        k("v_and_b32 v28, 0xffff0000, v28")
        k("v_add_f32 %s, %s, v29", v(X + i), v(X + i))
        k("v_add_f32 %s, %s, v28", v(X + i + 1), v(X + i + 1))
        k(CV(H + i // 2, X + i, X + i + 1))
        k("v_lshlrev_b32 %s, 16, %s", v(X + i), v(H + i // 2))
        k("v_and_b32 %s, 0xffff0000, %s", v(X + i + 1), v(H + i // 2))
    k("s_add_u32 s38, s39, 0x%x", HIMG)
    k("buffer_store_dwordx4 %s, v5, %s, s38 offen %s", v(H, 4), W, ST)
    def red16(r, tmp):
        for sh in (4, 8): k("v_add_f32_dpp %s, %s, %s row_ror:%d row_mask:0xf bank_mask:0xf", v(r), v(r), v(r), sh)
        xsum(k, r, tmp)
    k("v_add_f32 v44, %s, %s", v(X), v(X + 1))
    for i in range(2, 8): k("v_add_f32 v44, v44, %s", v(X + i))
    red16(44, 46)
    k("v_mul_f32 v44, 0x3c000000, v44")
    k("v_mov_b32 v45, 0")
    for i in range(8):
        k("v_sub_f32 v46, %s, v44", v(X + i))
        k("v_fmac_f32 v45, v46, v46")
    red16(45, 46)
    k("ds_write_b64 v7, v[44:45]")
    k("s_waitcnt lgkmcnt(0)")
    k("s_barrier")
    for w in range(4): k("ds_read_b64 %s, v8 offset:%d", v(48 + 2 * w, 2), 32 * w)
    k("v_xor_b32 v7, 128, v7")
    k("v_xor_b32 v8, 128, v8")
    k("s_waitcnt lgkmcnt(0)")
    k("v_add_f32 v44, v48, v50"); k("v_add_f32 v46, v52, v54"); k("v_add_f32 v44, v44, v46")
    k("v_mul_f32 v44, 0.25, v44")
    k("v_add_f32 v45, v49, v51"); k("v_add_f32 v46, v53, v55"); k("v_add_f32 v45, v45, v46")
    k("v_mov_b32 v47, 0")
    for w in range(4):
        k("v_sub_f32 v46, %s, v44", v(48 + 2 * w))
        k("v_fmac_f32 v47, v46, v46")
    k("v_mul_f32 v47, 0x43000000, v47")
    k("v_add_f32 v45, v45, v47")
    k("v_mul_f32 v45, 0x3b000000, v45")
    ln_finish(k, X, 8, 44, 45, 46, 47, 56)
    k("s_add_u32 s38, s39, 0x%x", HNIMG)
    k("buffer_store_dwordx4 v[56:59], v5, %s, s38 offen %s", W, ST)
    if publish: publish(k, s_seg)
    k("s_add_u32 s%d, s%d, %d", s_seg, s_seg, nstride)
    k("s_cmp_lt_u32 s%d, 64", s_seg)
    k("s_cbranch_scc1 %s", lp)

def role_up(k, s_u, s_seg, nstride, niter_sreg, pre_dma=None, publish=None, wait=None):
    k.c("---- U role")
    W = s(S_WS, 4); WREG = 128
    load_srd(k, 'w1', S_W); load_srd(k, 'w3', S_X)
    k("v_lshrrev_b32 v8, 3, v1")
    k("s_mov_b32 s32, 2752")
    k("v_mul_lo_u32 v8, v8, s32")
    k("v_and_b32 v9, 7, v1")
    k("v_lshl_add_u32 v8, v9, 4, v8")
    k("s_lshl_b32 s33, s%d, 7", s_u)
    k("s_mul_i32 s34, s%d, %d", S_WAVE, 8 * 2752)
    k("s_add_u32 s33, s33, s34")
    k("v_add_u32 v8, s33, v8")
    k("s_lshl_b32 s35, s%d, 10", S_WAVE)
    k("s_waitcnt lgkmcnt(0)")
    fin_srd(k, 'w1', S_W); fin_srd(k, 'w3', S_X)
    for i in range(16):
        k("s_add_u32 m0, s35, %d", i * 4096)
        k("buffer_load_dwordx4 v8, %s, 0 offen lds", s(S_W, 4))
        k("s_add_u32 m0, s35, %d", 65536 + i * 4096)
        k("buffer_load_dwordx4 v8, %s, 0 offen lds", s(S_X, 4))
        if i < 15: k("v_add_u32 v8, %d, v8", 32 * 2752)
    k("v_lshrrev_b32 v10, 4, v1")
    k("v_bfe_u32 v12, v1, 2, 2")
    k("v_lshl_add_u32 v10, v10, 3, v12")
    k("v_lshlrev_b32 v10, 7, v10")
    k("v_and_b32 v12, 3, v1")
    k("v_lshl_add_u32 v10, v12, 4, v10")
    k("s_lshr_b32 s36, s%d, 1", S_WAVE)
    k("s_lshl_b32 s37, s36, 6")
    k("s_and_b32 s38, s%d, 1", S_WAVE)
    k("s_lshl_b32 s38, s38, 3")
    k("s_add_u32 s37, s37, s38")
    k("v_add_u32 v10, s37, v10")
    k("v_add_u32 v11, 0x10000, v10")
    k("s_waitcnt vmcnt(0)")
    k("s_barrier")
    for ks in range(16):
        for t in range(2):
            for y in range(2):
                k("ds_read_b64_tr_b16 %s, v%d offset:%d", u(WREG + (t * 16 + ks) * 4 + 2 * y, 2), 10 + t, ks * 4096 + y * 512)
        if ks % 3 == 2: k("s_waitcnt lgkmcnt(4)")
    k("s_waitcnt lgkmcnt(0)")
    k("s_barrier")
    k("s_lshl_b32 s39, s%d, 1", s_u)
    k("s_add_u32 s39, s39, s36")
    k("v_lshlrev_b32 v12, 4, v1")
    k("v_add_u32 v12, s38, v12")
    k("s_cmp_lt_u32 s39, 43")
    k("s_cselect_b32 s40, 0, 0x40000000")
    k("v_add_u32 v12, s40, v12")
    k("s_lshl_b32 s39, s39, 10")
    k("s_mul_i32 s40, s%d, 88064", s_seg)
    k("s_add_u32 s39, s39, s40")
    k("s_add_u32 s39, s39, 0x%x", ACT)
    k("s_lshl_b32 s38, s%d, 15", s_seg)
    k("s_add_u32 s38, s38, 0x%x", HNIMG)
    k("s_mov_b32 s41, 0xbfb8aa3b")
    def epi(k, ACC):
        for mt in range(2):
            g0 = ACC + mt * 8; u0 = g0 + 4
            for r in (g0, g0 + 2, u0, u0 + 2):
                k(CV(112, r, r + 1))
                k("v_lshlrev_b32 %s, 16, v112", v(r))
                k("v_and_b32 %s, 0xffff0000, v112", v(r + 1))
            for j in range(4): k("v_mul_f32 %s, s41, %s", v(112 + j), v(g0 + j))
            for j in range(4): k("v_exp_f32 %s, %s", v(112 + j), v(112 + j))
            for j in range(4): k("v_add_f32 %s, 1.0, %s", v(112 + j), v(112 + j))
            for j in range(4): k("v_rcp_f32 %s, %s", v(112 + j), v(112 + j))
            for j in range(4): k("v_mul_f32 %s, %s, %s", v(g0 + j), v(g0 + j), v(112 + j))
            for r in (g0, g0 + 2):
                k(CV(112, r, r + 1))
                k("v_lshlrev_b32 %s, 16, v112", v(r))
                k("v_and_b32 %s, 0xffff0000, v112", v(r + 1))
            for j in range(4): k("v_mul_f32 %s, %s, %s", v(g0 + j), v(g0 + j), v(u0 + j))
            k(CV(116 + 2 * mt, g0, g0 + 1)); k(CV(117 + 2 * mt, g0 + 2, g0 + 3))
            if mt: k("s_add_u32 s40, s39, 44032")
            k("buffer_store_dwordx2 %s, v12, %s, s%d offen %s", v(116 + 2 * mt, 2), W, 40 if mt else 39, ST)
        k("s_add_u32 s39, s39, %d", 88064 * nstride)
    if niter_sreg is not None:
        seg_gemm_loop(k, WREG, True, 38, "0x%x" % (32768 * nstride), niter_sreg, epi, 2, pre_dma, publish, tag="U")
        return
    k("v_lshlrev_b32 v4, 4, v1")
    k("s_lshl_b32 s48, s%d, 10", S_WAVE)
    k("s_add_u32 s38, s38, s48")
    lp = k.lab("Ul")
    k.L(lp)
    if wait: wait(k, s_seg)
    for i in range(8):
        k("s_add_u32 m0, s48, %d", i * 4096)
        k("s_add_u32 s49, s38, %d", i * 4096)
        k("buffer_load_dwordx4 v4, %s, s49 offen %s lds", W, LD)
    FW = 16; AC = 80
    k(".aw_on")
    for half in range(2):
        k("s_waitcnt vmcnt(%d)", 4 - 4 * half)
        k("s_barrier")
        for f in range(16): k("ds_read_b128 %s, v4 offset:%d", v(FW + 4 * f, 4), (half * 16 + f) * 1024)
        for f in range(16):
            for t in range(2): k(MF(AC + (half * 2 + t) * 4, WREG + (t * 16 + f) * 4, FW + 4 * f, f == 0))
    k(".aw_off")
    epi(k, AC)
    k("s_add_u32 s38, s38, %d", 32768 * nstride)
    if publish: publish(k, s_seg)
    k("s_add_u32 s%d, s%d, %d", s_seg, s_seg, nstride)
    k("s_cmp_lt_u32 s%d, 64", s_seg)
    k("s_cbranch_scc1 %s", lp)

def role_dn(k, s_dn, s_seg, nstride, wait=None):
    k.c("---- Dn role")
    W = s(S_WS, 4); WREG = 256
    load_srd(k, 'w2', S_W)
    k("v_lshrrev_b32 v8, 2, v1")
    k("v_lshlrev_b32 v8, 10, v8")
    k("v_and_b32 v9, 3, v1")
    k("v_lshl_add_u32 v8, v9, 4, v8")
    k("s_mul_i32 s32, s%d, %d", S_WAVE, 352 * 1024)
    k("s_lshl_b32 s33, s%d, 6", s_dn)
    k("s_add_u32 s32, s32, s33")
    k("v_add_u32 v8, s32, v8")
    k("s_mul_i32 s35, s%d, 22528", S_WAVE)
    k("s_waitcnt lgkmcnt(0)")
    fin_srd(k, 'w2', S_W)
    for i in range(22):
        k("s_add_u32 m0, s35, %d", i * 1024)
        k("buffer_load_dwordx4 v8, %s, 0 offen lds", s(S_W, 4))
        if i < 21: k("v_add_u32 v8, 16384, v8")
    k("v_lshrrev_b32 v11, 4, v1")
    k("v_bfe_u32 v12, v1, 2, 2")
    k("v_lshl_add_u32 v10, v11, 3, v12")
    k("v_lshlrev_b32 v10, 6, v10")
    k("v_lshl_add_u32 v10, v9, 4, v10")
    k("v_add_u32 v10, s35, v10")
    k("s_waitcnt vmcnt(0)")
    for ks in range(11):
        for t in range(2):
            for y in range(2):
                k("ds_read_b64_tr_b16 %s, v10 offset:%d", u(WREG + (t * 11 + ks) * 4 + 2 * y, 2), ks * 2048 + y * 256 + 8 * t)
        if ks % 3 == 2: k("s_waitcnt lgkmcnt(4)")
    k("s_waitcnt lgkmcnt(0)")
    k("s_barrier")
    k("v_lshlrev_b32 v4, 4, v1")
    k("s_cmp_eq_u32 s%d, 3", S_WAVE)
    k("s_cselect_b32 s36, 0x40000000, 0")
    k("v_add_u32 v5, s36, v4")
    k("s_mul_i32 s36, s%d, 11264", S_WAVE)
    k("s_add_u32 s36, s36, 0x%x", ACT)
    k("s_lshl_b32 s37, s%d, 12", S_WAVE)
    k("v_add_u32 v6, s37, v4")
    k("s_and_b32 s38, s%d, 1", S_WAVE)
    k("s_lshl_b32 s37, s38, 11")
    k("v_add_u32 v7, s37, v4")
    k("s_lshl_b32 s39, s38, 14")
    k("s_lshl_b32 s40, s%d, 10", s_dn)
    k("s_add_u32 s40, s40, s39")
    k("s_add_u32 s40, s40, 0x%x", HIMG)
    k("s_add_u32 s39, s39, s33")
    k("v_and_b32 v12, 15, v1")
    k("v_lshlrev_b32 v12, 10, v12")
    k("v_lshl_add_u32 v12, v11, 4, v12")
    AF = 32; AC = 16
    lp = k.lab("Dl"); lsk = k.lab("Dsk")
    k.L(lp)
    if wait: wait(k, s_seg)
    k("s_mul_i32 s41, s%d, 88064", s_seg)
    k("s_add_u32 s41, s41, s36")
    for mt in range(2):
        for ks in range(11):
            if ks % 4 == 0: k("s_add_u32 s42, s41, %d", mt * 44032 + ks * 1024)
            k("buffer_load_dwordx4 %s, v%d, %s, s42 offen offset:%d %s", v(AF + (mt * 11 + ks) * 4, 4), 5 if ks == 10 else 4, W, (ks % 4) * 1024, LD)
    k("s_lshl_b32 s43, s%d, 15", s_seg)
    k("s_add_u32 s42, s43, s40")
    k("buffer_load_dwordx4 v[120:123], v4, %s, s42 offen %s", W, LD)
    for mt in range(2):
        for ks in range(11):
            k("s_waitcnt vmcnt(%d)", 22 - (mt * 11 + ks))
            for t in range(2): k(MF(AC + (mt * 2 + t) * 4, WREG + (t * 11 + ks) * 4, AF + (mt * 11 + ks) * 4, ks == 0))
    for i in range(4): k("ds_write_b128 v6, %s offset:%d", v(AC + 4 * i, 4), i * 1024)
    k("s_waitcnt lgkmcnt(0)")
    k("s_barrier")
    k("s_cmp_ge_u32 s%d, 2", S_WAVE)
    k("s_cbranch_scc1 %s", lsk)
    for w in range(4):
        for t in range(2): k("ds_read_b128 %s, v7 offset:%d", v(AF + 8 * w + 4 * t, 4), w * 4096 + t * 1024)
    k("s_waitcnt vmcnt(0)")
    for j in range(4):
        k("v_lshlrev_b32 %s, 16, %s", v(72 + 2 * j), v(120 + j))
        k("v_and_b32 %s, 0xffff0000, %s", v(73 + 2 * j), v(120 + j))
    k("s_waitcnt lgkmcnt(0)")
    for i in range(8):
        k("v_add_f32 %s, %s, %s", v(AF + i), v(AF + i), v(AF + 8 + i))
        k("v_add_f32 %s, %s, %s", v(AF + 16 + i), v(AF + 16 + i), v(AF + 24 + i))
        k("v_add_f32 %s, %s, %s", v(AF + i), v(AF + i), v(AF + 16 + i))
    for i in range(0, 8, 2):
        k(CV(80, AF + i, AF + i + 1))
        k("v_lshlrev_b32 v81, 16, v80")
        k("v_and_b32 v80, 0xffff0000, v80")
        k("v_add_f32 %s, %s, v81", v(72 + i), v(72 + i))
        k("v_add_f32 %s, %s, v80", v(73 + i), v(73 + i))
        k(CV(84 + i // 2, 72 + i, 73 + i))
    k("s_add_u32 s42, s43, s39")
    k("buffer_store_dwordx4 v[84:87], v12, %s, s42 offen", s(S_O, 4))
    k.L(lsk)
    k("v_xor_b32 v6, 0x4000, v6")
    k("v_xor_b32 v7, 0x4000, v7")
    k("s_add_u32 s%d, s%d, %d", s_seg, s_seg, nstride)
    k("s_cmp_lt_u32 s%d, 64", s_seg)
    k("s_waitcnt vmcnt(0)")
    k("s_cbranch_scc1 %s", lp)
```

```python
import sys, json
from build_v1 import header_comments
from chain7 import *
from roles2 import *
KN = NAME + "_kernel"
def build(opts={}, stamps=False, ticks=False):
    k = K(); k.stamps = stamps; k.ticks = ticks; k.copt = opts; k.merged = True
    kernel_header(k, KN)
    lend = k.lab("END")
    k("s_cmp_ge_u32 s2, 256")
    k("s_cbranch_scc1 %s", lend)
    srds = [('ws', S_WS), ('dbg', S_DBG), ('x', S_X), ('out', S_O)]
    for n, r in srds: load_srd(k, n, r)
    lane_wave(k)
    k("s_mov_b32 s%d, 400000", S_SPIN)
    k("s_waitcnt lgkmcnt(0)")
    for n, r in srds: fin_srd(k, n, r)
    lz = k.lab("Z")
    k("s_cmp_lg_u32 s2, 0")
    k("s_cbranch_scc1 %s", lz)
    k("s_cmp_lg_u32 s%d, 1", S_WAVE)
    k("s_cbranch_scc1 %s", lz)
    for i in range(4): k("v_mov_b32 v%d, 0", 4 + i)
    k("v_lshlrev_b32 v8, 4, v1")
    k("s_mov_b32 s40, 0x%x", FLAGS)
    for i in range(4): k("buffer_store_dwordx4 v[4:7], v8, %s, s40 offen offset:%d sc1", s(S_WS, 4), i * 1024)
    k("s_mov_b32 s40, 0x%x", FLAGS + 4096)
    for i in range(2): k("buffer_store_dwordx4 v[4:7], v8, %s, s40 offen offset:%d sc1", s(S_WS, 4), i * 1024)
    k("v_mov_b32 v9, 1")
    k("s_waitcnt vmcnt(0)")
    k("s_mov_b64 exec, 1")
    k("buffer_store_dword v9, v4, %s, 0 offen offset:%d sc1", s(S_DBG, 4), DBG_READY)
    k("s_mov_b64 exec, -1")
    k.L(lz)
    ROLE = 5
    elect(k, ROLE)
    lw = k.lab("WORK")
    k("s_cmp_ge_u32 s%d, 32", ROLE)
    k("s_cbranch_scc1 %s", lw)
    role_chain(k, opts.get('slow', False))
    k("s_branch %s", lend)
    k.L(lw)
    k("s_cmp_ge_u32 s%d, 256", ROLE)
    k("s_cbranch_scc1 %s", lend)
    stamp(k, 3, 0, wgreg=ROLE, vt=120)
    GRP, TK_, SEG, FO, FI = 54, 55, 7, 56, 57
    k("s_lshr_b32 s%d, s%d, 5", GRP, ROLE)
    k("s_and_b32 s%d, s%d, 31", TK_, ROLE)
    lq = k.lab("DOQKV"); l2 = k.lab("ROLE2")
    k("s_cmp_ge_u32 s%d, 2", GRP)
    k("s_cbranch_scc1 %s", lq)
    k("s_mov_b32 s%d, s%d", SEG, TK_)
    lp = k.lab("LNl")
    k.L(lp)
    role_ln1(k, SEG)
    k("s_add_u32 s%d, s%d, 32", SEG, SEG)
    k("s_cmp_lt_u32 s%d, 128", SEG)
    k("s_cbranch_scc1 %s", lp)
    wait_ready(k, 2)
    k("s_lshl_b32 s%d, s%d, 2", FO, TK_)
    k("s_add_u32 s%d, s%d, 0x%x", FO, FO, FLAGS + F_XN)
    set_flag(k, FO, "1", 2)
    k("s_branch %s", l2)
    k.L(lq)
    k("s_sub_u32 s58, s%d, 64", ROLE)
    def pre_loop(k):
        wait_ready(k, 2)
        k("v_and_b32 v3, 31, v1")
        k("v_lshlrev_b32 v3, 2, v3")
        k("s_mov_b32 s%d, 0x%x", FI, FLAGS + F_XN)
        k("s_mov_b32 s%d, 0", SEG)
        wait_flags(k, 3, FI, SEG, 2)
        k("s_lshl_b32 s%d, s32, 1", FO)
        k("s_add_u32 s%d, s%d, s34", FO, FO)
        k("s_lshl_b32 s%d, s%d, 2", FO, FO)
        k("s_lshl_b32 s40, s33, 5")
        k("s_add_u32 s%d, s%d, s40", FO, FO)
        k("s_add_u32 s%d, s%d, 0x%x", FO, FO, FLAGS + F_QF)
        k("s_sub_u32 s%d, s34, 3", SEG)
    def q_publish(k):
        k("s_max_i32 s40, s%d, 0", SEG)
        set_flag(k, FO, "s40", 2, drain=False)
        k("s_add_u32 s%d, s%d, 2", SEG, SEG)
    role_qkv(k, 58, None, q_publish, pre_loop)
    set_flag(k, FO, "0x80", 2)
    k.L(l2)
    stamp(k, 3, 1, wgreg=ROLE, vt=120)
    k("s_waitcnt vmcnt(0)")
    k("s_barrier")
    lur = k.lab("UR"); ldn = k.lab("DN"); lrd = k.lab("RD"); lfin = k.lab("FIN")
    k("s_cmp_ge_u32 s%d, 4", GRP)
    k("s_cbranch_scc1 %s", lur)
    k("s_sub_u32 s%d, s%d, 1", SEG, GRP)
    k("s_lshl_b32 s%d, s%d, 7", FO, SEG)
    k("s_lshl_b32 s40, s%d, 2", TK_)
    k("s_add_u32 s%d, s%d, s40", FO, FO)
    k("s_add_u32 s%d, s%d, 0x%x", FO, FO, FLAGS + F_BF)
    def wait_qkv(k, sseg):
        k("v_min_u32 v3, 2, v1")
        k("v_lshlrev_b32 v3, 3, v3")
        k("s_and_b32 s%d, s%d, 1", FI, sseg)
        k("s_lshl_b32 s%d, s%d, 2", FI, FI)
        k("s_lshl_b32 s58, s34, 5")
        k("s_add_u32 s%d, s%d, s58", FI, FI)
        k("s_add_u32 s%d, s%d, 0x%x", FI, FI, FLAGS + F_QF)
        wait_flags(k, 3, FI, sseg, 2)
    def wait_kvm(k, sseg):
        k("v_and_b32 v3, 3, v1")
        k("v_lshlrev_b32 v3, 4, v3")
        k("s_lshl_b32 s%d, s34, 6", FI)
        k("s_add_u32 s%d, s%d, 0x%x", FI, FI, FLAGS + F_KF)
        wait_flags(k, 3, FI, sseg, 2)
    def publish(k, sseg):
        k("s_add_u32 s58, s%d, 1", sseg)
        set_flag(k, FO, "s58", 2)
    role_bc(k, TK_, SEG, 3, wait_qkv, wait_kvm, publish)
    k("s_branch %s", lfin)
    k.L(lur)
    k("s_cmp_eq_u32 s%d, 7", GRP)
    k("s_cbranch_scc1 %s", ldn)
    k("s_sub_u32 s%d, s%d, 4", SEG, GRP)
    k("s_lshl_b32 s%d, s%d, 7", FI, SEG)
    k("s_cmp_ge_u32 s%d, 22", TK_)
    k("s_cbranch_scc1 %s", lrd)
    k("s_lshl_b32 s40, s%d, 2", TK_)
    k("s_add_u32 s%d, s%d, s40", FO, FI)
    k("s_add_u32 s%d, s%d, 0x%x", FO, FO, FLAGS + F_UF)
    k("s_add_u32 s%d, s%d, 0x%x", FI, FI, FLAGS + F_RF)
    k("v_and_b32 v13, 7, v1")
    k("v_lshlrev_b32 v13, 2, v13")
    role_up(k, TK_, SEG, 3, None, None, publish, lambda k, sseg: wait_flags(k, 13, FI, sseg, 2))
    k("s_branch %s", lfin)
    k.L(lrd)
    k("s_cmp_ge_u32 s%d, 30", TK_)
    k("s_cbranch_scc1 %s", lfin)
    k("s_sub_u32 s%d, s%d, 22", TK_, TK_)
    k("s_lshl_b32 s40, s%d, 2", TK_)
    k("s_add_u32 s%d, s%d, s40", FO, FI)
    k("s_add_u32 s%d, s%d, 0x%x", FO, FO, FLAGS + F_RF)
    k("s_add_u32 s%d, s%d, 0x%x", FI, FI, FLAGS + F_BF)
    k("v_and_b32 v15, 31, v1")
    k("v_lshlrev_b32 v15, 2, v15")
    role_red(k, TK_, SEG, 3, lambda k, sseg: wait_flags(k, 15, FI, sseg, 2), publish)
    k("s_branch %s", lfin)
    k.L(ldn)
    k("s_lshr_b32 s%d, s%d, 4", SEG, TK_)
    k("s_and_b32 s%d, s%d, 15", TK_, TK_)
    k("v_min_u32 v13, 21, v1")
    k("v_lshlrev_b32 v13, 2, v13")
    def wait_up(k, sseg):
        k("s_mul_i32 s58, s%d, 43", sseg)
        k("s_lshr_b32 s58, s58, 7")
        k("s_mul_i32 s58, s58, 3")
        k("s_sub_u32 s58, s%d, s58", sseg)
        k("s_lshl_b32 s%d, s58, 7", FI)
        k("s_add_u32 s%d, s%d, 0x%x", FI, FI, FLAGS + F_UF)
        wait_flags(k, 13, FI, sseg, 2)
    role_dn(k, TK_, SEG, 2, wait_up)
    k.L(lfin)
    stamp(k, 3, 2, wgreg=ROLE, vt=120)
    k.L(lend)
    k("s_endpgm")
    body = insert_nops(auto_wait(k.lines))
    hdr = header_comments([])
    hdr.append('; @launch grid=(256,1,1) block=(256,1,1) lds=163840')
    return '\n'.join(hdr) + '\n.amdgcn_target "amdgcn-amd-amdhsa--gfx950"\n.text\n' + '\n'.join(body) + \
        '\n.section .rodata,"a"\n.p2align 6\n' + kernel_desc(KN)
if __name__ == '__main__':
    o = {"p0": 55, "p1": 35, "w1": 20, "b0": 6}
    if len(sys.argv) > 1: o.update(json.loads(sys.argv[1]))
    open('m.s', 'w').write(build(o))
    open('ms.s', 'w').write(build(o, stamps=True))
```

```python
from roles import *
import struct
def f2u(x): return struct.unpack('<I', struct.pack('<f', x))[0]

L_KT = 131072
L_MB = L_KT + 16384
L_XB = L_MB + 8192
L_OB = L_XB + 5120
L_MISC_ = L_OB + 2560
WQ, WK, WO = 256, 384, 128
aM = [2, 3, 4, 5]; aXW = 6; aXR = 7; aOW = 8; aWV = 9; aKT = 10; aL16 = 11
aH1S = 12; aWO = 13; aH1L = 11; aH2S = 14; IDX = 15
KVM = 16
SEL = 20
VTN = 24
MA = 32; AQ = 64; AK = 72; AV = 80; G = 88; VT = 120
S_HEAD = 5; S_LIM = 6; S_STEP = 7
S_WQ, S_WK, S_WV, S_WO = 12, 16, 20, 28
sH1S0, sH1S1, sH1L, sH2S, sH2L = 32, 33, 34, 35, 36
sKV = 37; sKTD = 38; sKM = 39; sVIM = 40; sC = 41; sCNT = 42; sT = 43
sH1R = 50; sH2R = 51; sMASK = 52
sPH = 50; sTHR = 49; sSAFE = 55; sQF = 46; sKF = 47; aFL = 0; aFL4 = 0
CSC = 0.08838834764831845 * 1.4426950408889634
VORD = [0, 2, 4, 6, 1, 3, 5, 7]
CT = MA

from chain import elect, xmax
def tick(k, i):
    if getattr(k, 'ticks', False): k("s_memtime s[%d:%d]", 64 + 2 * i, 65 + 2 * i)
def tick_init(k):
    if not getattr(k, 'ticks', False): return
    for i in range(96, 100): k("s_mov_b32 s%d, 0", i)
def tick_step_end(k):
    if not getattr(k, 'ticks', False): return
    l = k.lab("tse")
    k("s_cmp_lg_u32 s%d, %d", S_STEP, k.copt.get('tstep', 41))
    k("s_cbranch_scc1 %s", l)
    k("s_waitcnt vmcnt(0) lgkmcnt(0)")
    k("s_lshl_b32 s100, s%d, 2", S_HEAD)
    k("s_add_u32 s100, s100, s%d", S_WAVE)
    k("s_lshl_b32 s100, s100, 7")
    k("s_add_u32 s100, s100, 0x%x", TS + 8 * 65536)
    k("v_mov_b32 v41, 0")
    for i in range(16):
        k("v_mov_b32 v40, s%d", 64 + 2 * i)
        k("buffer_store_dword v40, v41, %s, s100 offen offset:%d", s(S_WS, 4), 4 * i)
    for e in range(2):
        lw = k.lab("cal")
        k("s_memrealtime s[64:65]")
        k("s_waitcnt lgkmcnt(0)")
        if e: k("s_add_u32 s64, s64, 100")
        k.L(lw)
        k("s_memrealtime s[66:67]")
        k("s_memtime s[68:69]")
        k("s_waitcnt lgkmcnt(0)")
        k("s_sub_u32 s70, s64, s66")
        k("s_cmp_ge_i32 s70, 0")
        k("s_cbranch_scc1 %s", lw)
        k("v_mov_b32 v40, s66")
        k("buffer_store_dword v40, v41, %s, s100 offen offset:%d", s(S_WS, 4), 80 + 8 * e)
        k("v_mov_b32 v40, s68")
        k("buffer_store_dword v40, v41, %s, s100 offen offset:%d", s(S_WS, 4), 84 + 8 * e)
    k.L(l)
def tick_dump(k):
    if not getattr(k, 'ticks', False): return
    k("v_mov_b32 v41, 0")
    for i in range(4):
        k("v_mov_b32 v40, s%d", 96 + i)
        k("buffer_store_dword v40, v41, %s, s100 offen offset:%d", s(S_WS, 4), 64 + 4 * i)

def SMF(acc, A, B): return "v_smfmac_f32_16x16x64_bf16 %s, %s, %s, %s" % (v(acc, 4), v(A, 4), u(B, 8), v(IDX))
def MF(d, A, B, first): return "v_mfma_f32_16x16x32_bf16 %s, %s, %s, %s" % (v(d, 4), v(A, 4), v(B, 4), "0" if first else v(d, 4))
def M16(d, A, B): return "v_mfma_f32_16x16x16_bf16 %s, %s, %s, %s" % (v(d, 4), v(A, 2), v(B, 2), v(d, 4))

def chain_setup(k):
    w = S_WAVE
    k.c("---- chain setup: addresses")
    k("v_lshlrev_b32 %s, 4, v1", v(aL16))
    for jp in range(4):
        k("s_xor_b32 s%d, s%d, %d", sT, w, jp)
        k("s_lshl_b32 s%d, s%d, 11", sT, sT)
        k("s_add_u32 s%d, s%d, %d", sT, sT, L_MB)
        k("v_add_u32 %s, s%d, %s", v(aM[jp]), sT, v(aL16))
    k("v_and_b32 v90, 15, v1")
    k("v_lshrrev_b32 v91, 4, v1")
    k("v_bfe_u32 v92, v1, 2, 2")
    k("v_and_b32 v93, 3, v1")
    k("v_mul_u32_u24 v94, 320, v91")
    k("v_lshl_add_u32 v94, v90, 3, v94")
    k("s_mul_i32 s%d, s%d, 1280", sT, w)
    k("s_add_u32 s%d, s%d, %d", sT, sT, L_XB)
    k("v_add_u32 %s, s%d, v94", v(aXW), sT)
    k("s_lshr_b32 s%d, s%d, 1", sT, w)
    k("s_mul_i32 s%d, s%d, 1280", sT, sT)
    k("s_and_b32 s%d, s%d, 1", sCNT, w)
    k("s_lshl_b32 s%d, s%d, 7", sCNT, sCNT)
    k("s_add_u32 s%d, s%d, s%d", sT, sT, sCNT)
    k("s_add_u32 s%d, s%d, %d", sT, sT, L_OB)
    k("v_add_u32 %s, s%d, v94", v(aOW), sT)
    k("v_mul_u32_u24 v94, 320, v93")
    k("v_lshrrev_b32 v95, 2, v1")
    k("v_lshl_add_u32 v94, v95, 3, v94")
    k("v_add_u32 %s, %d, v94", v(aXR), L_XB)
    k("s_lshl_b32 s%d, s%d, 14", sT, w)
    k("v_add_u32 %s, s%d, %s", v(aWV), sT, v(aL16))
    k("v_add_u32 %s, 0x10000, %s", v(aWO), v(aWV))
    k("v_add_u32 %s, %d, %s", v(aKT), L_KT, v(aL16))
    k("v_lshrrev_b32 v94, 3, v90")
    k("v_lshl_add_u32 v94, v94, 2, v91")
    k("v_lshlrev_b32 v94, 12, v94")
    k("v_and_b32 v95, 7, v1")
    k("v_lshl_add_u32 %s, v95, 3, v94", v(aH1S))
    k("v_lshlrev_b32 v94, 4, v91")
    k("v_lshl_add_u32 v94, v93, 2, v94")
    k("v_mov_b32 v95, v92")
    k("v_cmp_eq_u32 vcc, 0, v95")
    k("v_mov_b32 v95, 0x40000000")
    k("v_cndmask_b32 %s, v95, v94, vcc", v(aH2S))
    k("v_and_b32 v94, 2, v1")
    k("v_cmp_eq_u32 vcc, 0, v94")
    k("v_mov_b32 v94, 0x44444444")
    k("v_mov_b32 v95, 0xeeeeeeee")
    k("v_cndmask_b32 %s, v95, v94, vcc", v(IDX))
    k("v_mov_b32 v94, 0x3f80")
    k("v_mov_b32 v95, 0x3f800000")
    for d in range(4):
        k("v_cmp_eq_u32 vcc, %d, v90", 4 * d)
        k("v_cndmask_b32 %s, 0, v94, vcc", v(SEL + d))
        k("v_cmp_eq_u32 vcc, %d, v90", 4 * d + 1)
        k("v_cndmask_b32 %s, %s, v95, vcc", v(SEL + d), v(SEL + d))
    k("s_lshl_b32 s%d, s%d, 16", sT, w)
    k("s_lshl_b32 s%d, s%d, 6", sH1S0, S_HEAD)
    k("s_add_u32 s%d, s%d, s%d", sH1S0, sH1S0, sT)
    k("s_add_u32 s%d, s%d, 0x%x", sH1S0, sH1S0, HOP1)
    k("s_add_u32 s%d, s%d, 0x8000", sH1S1, sH1S0)
    k("s_lshl_b32 s%d, s%d, 2", sH1L, S_HEAD)
    k("s_add_u32 s%d, s%d, s%d", sH1L, sH1L, w)
    k("s_lshl_b32 s%d, s%d, 11", sH1L, sH1L)
    k("s_add_u32 s%d, s%d, 0x%x", sH1L, sH1L, HOP1)
    k("s_lshr_b32 s%d, s%d, 2", sH2S, S_HEAD)
    k("s_lshl_b32 s%d, s%d, 10", sH2S, sH2S)
    k("s_and_b32 s%d, s%d, 3", sT, S_HEAD)
    k("s_lshl_b32 s%d, s%d, 7", sT, sT)
    k("s_add_u32 s%d, s%d, s%d", sH2S, sH2S, sT)
    k("s_and_b32 s%d, s%d, 1", sT, w)
    k("s_lshl_b32 s%d, s%d, 9", sT, sT)
    k("s_add_u32 s%d, s%d, s%d", sH2S, sH2S, sT)
    k("s_lshr_b32 s%d, s%d, 1", sT, w)
    k("s_lshl_b32 s%d, s%d, 6", sT, sT)
    k("s_add_u32 s%d, s%d, s%d", sH2S, sH2S, sT)
    k("s_add_u32 s%d, s%d, 0x%x", sH2S, sH2S, HOP2)
    k("s_lshl_b32 s%d, s%d, 11", sH2L, w)
    k("s_add_u32 s%d, s%d, 0x%x", sH2L, sH2L, HOP2)
    k("s_lshl_b32 s%d, s%d, 13", sKV, S_HEAD)
    k("s_lshl_b32 s%d, s%d, 11", sT, w)
    k("s_add_u32 s%d, s%d, s%d", sKV, sKV, sT)
    k("s_add_u32 s%d, s%d, 0x%x", sVIM, sKV, VIMG)
    k("s_add_u32 s%d, s%d, 0x%x", sKV, sKV, KIMG)
    k("s_add_u32 s%d, s%d, %d", sKTD, sT, L_KT)
    k("s_lshl_b32 s%d, s%d, 12", sKM, S_HEAD)
    k("s_lshl_b32 s%d, s%d, 10", sT, w)
    k("s_add_u32 s%d, s%d, s%d", sKM, sKM, sT)
    k("s_add_u32 s%d, s%d, 0x%x", sKM, sKM, KM - 0x20000)
    k("s_mov_b32 s%d, 0x%x", sC, f2u(CSC))
    k("s_mov_b32 s%d, 400000", S_LIM)
    k("s_mov_b32 s%d, 0x33333333", sMASK)
    k("s_mov_b32 s%d, 0x33333333", sMASK + 1)
    k("s_mov_b32 s%d, 0", sPH)
    k("s_xor_b32 s%d, s%d, 0x2000", sH2R, sH2S)

def merged_setup(k):
    k("s_lshl_b32 s%d, s%d, 5", sQF, S_HEAD)
    k("s_add_u32 s%d, s%d, 0x%x", sQF, sQF, FLAGS + F_QF)
    k("s_lshl_b32 s%d, s%d, 2", sKF, S_HEAD)
    k("s_add_u32 s%d, s%d, s%d", sKF, sKF, S_WAVE)
    k("s_lshl_b32 s%d, s%d, 7", sKF, sKF)
    k("s_add_u32 s%d, s%d, 0x%x", sKF, sKF, FLAGS + F_KF)
    k("v_lshlrev_b32 %s, 2, v93", v(aFL))

def kv_refresh(k, plus, back=None):
    lp = k.lab("kvr"); ok = k.lab("kvok")
    k("s_mov_b32 s%d, 0", sCNT)
    k("s_add_u32 s%d, s%d, %d", sT, S_STEP, plus)
    k.L(lp)
    k("buffer_load_dword v1, %s, %s, s%d offen sc1", v(aFL), s(S_WS, 4), sQF)
    k("s_waitcnt vmcnt(0)")
    k("v_cmp_ge_u32 vcc, s%d, v1", sT)
    k("s_cbranch_vccz %s", ok)
    k("s_sleep 2")
    k("s_add_u32 s%d, s%d, 1", sCNT, sCNT)
    k("s_cmp_lt_u32 s%d, s%d", sCNT, S_LIM)
    k("s_cbranch_scc1 %s", lp)
    k("s_mov_b32 s%d, 0", S_LIM)
    k.L(ok)
    if back: k("s_branch %s", back)

import chain as _c1
def chain_arm(k):
    k.c("---- arm hop buffers (both slots), sc1")
    for i in range(4): k("v_mov_b32 %s, -1", v(96 + i))
    for slot in range(2):
        k("s_add_u32 s%d, s%d, 0x%x", sT, sH1L, slot * 262144)
        k("buffer_store_dwordx4 v[96:99], %s, %s, s%d offen sc1", v(aL16), s(S_WS, 4), sT)
        k("buffer_store_dwordx4 v[96:99], %s, %s, s%d offen offset:1024 sc1", v(aL16), s(S_WS, 4), sT)
    k("buffer_store_dword v96, %s, %s, s%d offen sc1", v(aH2S), s(S_WS, 4), sH2R)
load_mem0 = _c1.load_mem0
WVR_ = 128
WOR_ = 192

def chain_load_weights(k, hooks={}, pre_issue={}):
    w = S_WAVE
    k.c("---- chain weight load")
    k("s_and_b32 s44, s%d, 1", w)
    k("s_lshl_b32 s44, s44, 2")
    k("v_xor_b32 v120, s44, v90")
    k("v_and_b32 v121, 1, v91")
    k("v_lshlrev_b32 v121, 3, v121")
    k("v_xor_b32 v120, v120, v121")
    k("v_lshlrev_b32 v120, 4, v120")
    k("v_lshl_add_u32 v120, v91, 13, v120")
    k("v_lshrrev_b32 v121, 3, v1")
    k("v_lshlrev_b32 v121, 10, v121")
    k("v_and_b32 v122, 7, v1")
    k("v_lshl_add_u32 v121, v122, 4, v121")
    k("v_and_b32 v126, 1, v92")
    k("v_lshl_add_u32 v126, v126, 2, v91")
    k("v_lshrrev_b32 v127, 1, v92")
    k("v_lshl_add_u32 v126, v126, 2, v127")
    k("v_lshlrev_b32 v126, 8, v126")
    k("v_xor_b32 v127, s%d, v92", w)
    k("v_lshl_add_u32 v126, v127, 6, v126")
    k("v_lshl_add_u32 v126, v93, 4, v126")
    for jp in range(4):
        k("s_xor_b32 s44, s%d, %d", w, jp)
        k("s_lshl_b32 s44, s44, 14")
        k("v_add_u32 v%d, s44, v126", 122 + jp)
    k("v_lshrrev_b32 v126, 1, v92")
    k("v_lshrrev_b32 v127, 1, v91")
    k("v_lshl_add_u32 v126, v127, 1, v126")
    k("v_and_b32 v127, 1, v91")
    k("v_lshl_add_u32 v126, v127, 3, v126")
    k("v_lshlrev_b32 v126, 2, v126")
    k("v_and_b32 v127, 1, v92")
    k("v_add_u32 v126, v126, v127")
    k("v_lshlrev_b32 v126, 7, v126")
    k("v_lshl_add_u32 v126, v93, 3, v126")
    k("s_lshl_b32 s44, s%d, 14", w)
    k("s_add_u32 s3, s44, 0x10000")
    k("v_add_u32 v126, s3, v126")
    k("s_lshl_b32 s45, s%d, 8", S_HEAD)
    k("s_lshl_b32 s48, s%d, 17", w)
    k("s_add_u32 s45, s45, s48")
    k("s_lshl_b32 s49, s%d, 17", S_HEAD)
    k("s_lshl_b32 s48, s%d, 8", w)
    k("s_add_u32 s49, s49, s48")
    k("s_lshl_b32 s44, s%d, 12", w)
    sc = [('q', 0), ('q', 1), ('k', 0), ('k', 1), ('v', 1), ('o', 0), ('v', 0), ('o', 1)]
    srds = dict(q=S_WQ, k=S_WK, v=S_WV, o=S_WO)
    queue = []
    def issue(i):
        m, par = sc[i]; reg = (i & 1) * 65536
        for n in range(16):
            if m == 'o':
                k("s_add_u32 s48, s49, %d", par * 128 + n * 8192)
                k("s_add_u32 m0, s3, %d", n * 1024)
            else:
                c, q = n >> 2, n & 3
                k("s_add_u32 s48, s45, %d", (2 * c + par) * 64 * 8192 + q * 4 * 8192)
                k("s_add_u32 m0, s44, %d", reg + c * 16384 + q * 1024)
            k("buffer_load_dwordx4 v%d, %s, s48 offen lds", 121 if m == 'o' else 120, s(srds[m], 4))
            queue.append(i)
    k("v_lshrrev_b32 v118, 1, v1")
    k("v_lshlrev_b32 v118, 13, v118")
    k("v_and_b32 v119, 1, v1")
    k("v_lshl_add_u32 v118, v119, 7, v118")
    k("v_lshlrev_b32 v119, 10, v1")
    k("s_lshl_b32 s62, s%d, 8", S_HEAD)
    k("s_lshl_b32 s63, s%d, 20", w)
    k("s_add_u32 s62, s62, s63")
    td = k.copt.get('touch', 0)
    def touch(i):
        if not td or i >= 8: return
        m, par = sc[i]
        for n in range(2):
            if m == 'o': k("s_add_u32 s48, s49, %d", par * 128 + n * 65536)
            else: k("s_add_u32 s48, s62, %d", par * 64 * 8192 + n * 32 * 8192)
            k("buffer_load_dword v117, v%d, %s, s48 offen", 119 if m == 'o' else 118, s(srds[m], 4))
            queue.append(-2)
    lstamp(k, 7)
    issue(0); issue(1)
    lstamp(k, 5)
    for x in range(td): touch(2 + x)
    TMP = 40
    for i in range(8):
        m, par = sc[i]
        if i in hooks: queue.extend([-1] * hooks[i](k))
        last = max(n for n, c in enumerate(queue) if c == i)
        k("s_waitcnt vmcnt(%d)", len(queue) - 1 - last)
        k("s_barrier")
        if i < 5: lstamp(k, i)
        inplace = i >= 6
        cnt = 0
        for a_ in range(4):
            for b_ in range(2):
                if inplace: dst = TMP + (a_ * 2 + b_) * 8
                elif m == 'q': dst = WQ + (b_ * 8 + 2 * a_ + par) * 8
                elif m == 'k': dst = WK + (b_ * 8 + 2 * a_ + par) * 8
                elif m == 'v': dst = WVR_ + (a_ * 2 + b_) * 8
                else: dst = WOR_ + (a_ * 2 + b_) * 8
                for y in range(4):
                    if m == 'o':
                        k("ds_read_b64_tr_b16 %s, v126 offset:%d", u(dst + 2 * y, 2), (64 * b_ + 16 * (y >> 1) + 2 * (y & 1)) * 128 + 32 * a_)
                    else:
                        k("ds_read_b64_tr_b16 %s, v%d offset:%d", u(dst + 2 * y, 2), 122 + a_, (32 * (y >> 1) + 2 * (y & 1)) * 256 + 8 * b_)
                cnt += 4
                if cnt % 8 == 0: k("s_waitcnt lgkmcnt(4)")
        if i < 4:
            for jp in range(4): k("v_xor_b32 v%d, 0x10000, v%d", 122 + jp, 122 + jp)
        k("s_waitcnt lgkmcnt(0)")
        k("s_barrier")
        if inplace:
            for q in range(16):
                k("ds_write_b128 %s, %s offset:%d", v(aWO if m == 'o' else aWV), v(TMP + 4 * q, 4), q * 1024)
                if q % 8 == 7: k("s_waitcnt lgkmcnt(0)")
        if i in pre_issue: pre_issue[i](k)
        if i + 2 < 8: issue(i + 2)
        touch(i + 2 + td)

def PFK(p):
    W = s(S_WS, 4)
    return [["s_mov_b32 m0, s%d" % sKTD, "buffer_load_dwordx4 %s, %s, s%d offen sc1 lds" % (v(aL16), W, sKV)],
            ["buffer_load_dwordx4 %s, %s, s%d offen offset:1024 sc1 lds" % (v(aL16), W, sKV)],
            ["buffer_load_dwordx4 %s, %s, %s, s%d offen sc1" % (v(VTN, 4), v(aL16), W, sVIM)],
            ["buffer_load_dwordx4 %s, %s, %s, s%d offen offset:1024 sc1" % (v(VTN + 4, 4), v(aL16), W, sVIM)],
            ["s_add_u32 s%d, s%d, 0x40000" % (sKV, sKV), "s_add_u32 s%d, s%d, 0x40000" % (sVIM, sVIM),
             "s_xor_b32 s%d, s%d, 0x2000" % (sKTD, sKTD)]][p]

def WVR(n, h):
    return "ds_read_b128 %s, %s offset:%d" % (v(G + (n & 3) * 8 + 4 * h, 4), v(aWV), n * 2048 + h * 1024)

def weave(k, spine, fill):
    for i, m in enumerate(spine):
        k(m)
        for f in fill.get(i, []): k(f)

def check_n(k, buf, n, t0, t1):
    if n == 8:
        k("v_max3_u32 %s, %s, %s, %s", v(t0), v(buf), v(buf + 1), v(buf + 2))
        k("v_max3_u32 %s, %s, %s, %s", v(t1), v(buf + 3), v(buf + 4), v(buf + 5))
        k("v_max3_u32 %s, %s, %s, %s", v(t0), v(buf + 6), v(buf + 7), v(t0))
        k("v_max_u32 %s, %s, %s", v(t0), v(t0), v(t1))
    else:
        k("v_max3_u32 %s, %s, %s, %s", v(t0), v(buf), v(buf + 1), v(buf + 2))
        k("v_max_u32 %s, %s, %s", v(t0), v(t0), v(buf + 3))
    k("v_cmp_eq_u32 vcc, -1, %s", v(t0))

def retry_stub(k, lab, back, loads, buf, n, pre=None, cnt=None):
    k.L(lab)
    lp = k.lab("rp")
    k("s_mov_b32 s%d, 0", sCNT)
    k.L(lp)
    for l in loads: k(l)
    if cnt is not None and getattr(k, 'ticks', False): k("s_add_u32 s%d, s%d, 1", cnt, cnt)
    k("s_waitcnt vmcnt(0)")
    if pre:
        for l in pre: k(l)
    check_n(k, buf, n, CT, CT + 1)
    k("s_cbranch_vccz %s", back)
    k("s_add_u32 s%d, s%d, 1", sCNT, sCNT)
    k("s_cmp_lt_u32 s%d, s%d", sCNT, S_LIM)
    k("s_cbranch_scc1 %s", lp)
    k("s_mov_b32 s%d, 0", S_LIM)
    k("s_branch %s", back)

def delay(k, slots):
    while slots > 0:
        m = min(slots, 16); k("s_nop %d", m - 1); slots -= m

def chain_loop(k, stf, tag):
    W = s(S_WS, 4)
    o = getattr(k, 'copt', {})
    mg = getattr(k, 'merged', False)
    tk = getattr(k, 'ticks', False)
    TK = lambda i: ("s_memtime s[%d:%d]" % (64 + 2 * i, 65 + 2 * i)) if tk else ""
    lexit = k.lab(tag + "exit")
    Qs = lambda j, b: [SMF(AQ, b, WQ + j * 8), SMF(AQ + 4, b, WQ + (8 + j) * 8)]
    Ks = lambda j, b: [SMF(AK, b, WK + j * 8), SMF(AK + 4, b, WK + (8 + j) * 8)]
    Vs = lambda j, b: [SMF(AV + 4 * t, b, (G + ((j + t) & 3) * 8) if j % 2 == 0 else (WVR_ + ((j >> 1) * 2 + t) * 8)) for t in range(2)]
    Q = lambda j: Qs(j, MA + 4 * j); Kp = lambda j: Ks(j, MA + 4 * j); V = lambda j: Vs(j, MA + 4 * j)
    KORD = [0, 1, 2, 4, 6, 3, 5, 7]
    MR = lambda j: "ds_read_b128 %s, %s offset:%d" % (v(MA + 4 * j, 4), v(aM[j >> 1]), (j & 1) * 1024)
    KTR = lambda f: "ds_read_b128 %s, %s offset:%d" % (v(MA + 4 * KORD[f], 4), v(aKT), f * 1024)
    MV = lambda d, x: "v_mov_b32 %s, %s" % (v(d), x)
    EX = lambda d, s_: "v_exp_f32 %s, %s" % (v(d), v(s_))
    CV = lambda d, a_, b_: "v_cvt_pk_bf16_f32 %s, %s, %s" % (v(d), v(a_), v(b_))
    FA = lambda a_: ["v_add_f32 %s, %s, %s" % (v(a_), v(a_), v(a_ + 2)), "v_add_f32 %s, %s, %s" % (v(a_ + 1), v(a_ + 1), v(a_ + 3))]
    stkvm = "buffer_store_dwordx4 %s, %s, %s, s%d offen sc1" % (v(KVM, 4), v(aL16), W, sKM)
    r_sm = k.lab(tag + "rsm"); b_sm = k.lab(tag + "bsm"); r_kv = k.lab(tag + "rkv"); b_kv = k.lab(tag + "bkv")
    EB = [MA, VTN]
    lF = [k.lab(tag + "s0f") for _ in EB]; lto = k.lab(tag + "to")
    RD = MA + 16; HT = MA + 20; H1 = MA + 8; H1B = MA + 24
    lde = lambda b: ["buffer_load_dwordx4 %s, %s, %s, s%d offen sc1" % (v(b, 4), v(aL16), W, sH2L),
                     "buffer_load_dwordx4 %s, %s, %s, s%d offen offset:1024 sc1" % (v(b + 4, 4), v(aL16), W, sH2L)]
    def spin(reg, n, lab, magic="0x7fc1"):
        for i in range(n):
            k("v_cmp_ne_u32 vcc, %s, %s", magic, v(reg))
            k("s_cbranch_vccnz %s", lab)
    lS = [k.lab(tag + "s0v") for _ in EB]; lcom = k.lab(tag + "com"); lpoll = k.lab(tag + "poll")
    k("s_branch %s", lS[0])
    k(".aw_on")
    nb0 = o.get('b0', 5)
    fl = [["buffer_store_dword v1, %s, %s, s%d offen sc1" % (v(aFL), W, sKF)],
          ["buffer_load_dword v1, %s, %s, s%d offen sc1" % (v(aFL4), W, sQF)]] if mg else [[], []]
    for bi in (1, 0):
        b = EB[bi]; ob = EB[1 - bi]
        k(".aw_reset")
        k.L(lF[1 - bi])
        k(MV(ob + 7, "-2"))
        for l in lde(ob): k(l)
        if tk: k("s_add_u32 s97, s97, 1")
        k("s_add_u32 s%d, s%d, 1", sCNT, sCNT)
        k("s_cmp_ge_u32 s%d, s%d", sCNT, S_LIM)
        k("s_cbranch_scc1 %s", lto)
        if bi == 0: k.L(lpoll)
        ar = k.lab(tag + "ar2")
        spin(b + 7, o.get('ns2', 16), ar, "-2")
        k.L(ar)
        k("s_waitcnt vmcnt(2)")
        k("v_max_u32 %s, %s, %s", v(HT), v(b + 3), v(b + 7))
        k("v_cmp_eq_u32 vcc, -1, %s", v(HT))
        k("s_cbranch_vccnz %s", lF[bi])
        k.L(lS[bi])
        tick(k, 15); tick_step_end(k); tick(k, 0)
        if o.get('plog2'): k("s_memtime s[64:65]"); k("s_memrealtime s[66:67]")
        k("ds_write_b128 %s, %s", v(aM[0]), v(b, 4))
        f = {o.get('gw2', 2): ["ds_write_b128 %s, %s offset:1024" % (v(aM[0]), v(b + 4, 4))], nb0: [".aw_writes", "s_barrier", TK(1), MR(2)]}
        for x in range(3, 8): f[min(nb0 + x - 2, 11)] = f.get(min(nb0 + x - 2, 11), []) + [MR(x)]
        if o.get('early', 0): f[1] = PFK(0)[1:]; f[2] = PFK(1); f[3] = [stkvm]; f[4] = fl[0]
        weave(k, Qs(0, b) + Ks(0, b) + Qs(1, b + 4) + Ks(1, b + 4) + Vs(0, b) + Vs(1, b + 4), f)
        if bi: k("s_branch %s", lcom)
    k.L(lcom)
    qf = []
    for t in range(2):
        a_ = AQ + 4 * t
        qf += FA(a_) + ["v_mul_f32 %s, s%d, %s" % (v(a_), sC, v(a_)), "v_mul_f32 %s, s%d, %s" % (v(a_ + 1), sC, v(a_ + 1)), CV(a_, a_, a_ + 1)]
    E_ = lambda x: [] if o.get('early', 0) else x
    weave(k, Q(2) + Q(3) + Q(4) + Q(5) + Q(6) + Q(7) + Kp(2) + Kp(3) + Kp(4) + Kp(5) + Kp(6) + Kp(7) + V(2), {
        0: [TK(2), "s_waitcnt vmcnt(0)"] + PFK(2), 1: [WVR(4, 0)], 2: [WVR(4, 1)], 3: PFK(3), 4: [WVR(5, 0)], 5: [WVR(5, 1)], 6: PFK(0)[1:], 7: [KTR(1)],
        8: (["v_mov_b32 v34, s64", "v_mov_b32 v35, s66", "v_mov_b32 v33, 0", "s_lshl_b32 s68, s%d, 3" % S_STEP, "s_add_u32 s68, s68, s100",
             "buffer_store_dwordx2 v[34:35], v33, %s, s68 offen" % W] if o.get('plog2') else []),
        9: PFK(1), 10: [KTR(0)], 11: PFK(4), 12: [stkvm],
        13: [qf[0]], 14: [qf[1]], 15: [qf[5]], 16: fl[0] + [qf[6]], 17: [qf[2]], 18: [qf[3]], 19: fl[1] + [qf[7]], 20: [qf[8]],
        21: [qf[4]], 22: [qf[9]], 23: ["s_add_u32 s%d, s%d, 0x20000" % (sKM, sKM)], 24: [WVR(6, 0)], 25: [WVR(6, 1)]})
    for t in range(2):
        if o.get('pk', 1): k("v_pk_add_f32 %s, %s, %s", v(AK + 4 * t, 2), v(AK + 4 * t, 2), v(AK + 4 * t + 2, 2))
        else:
            for x in FA(AK + 4 * t): k(x)
        k(CV(AQ + 4 * t + 1, AK + 4 * t, AK + 4 * t + 1))
    k("ds_write2_b64 %s, %s, %s offset0:0 offset1:16", v(aXW), v(AQ, 2), v(AQ + 4, 2))
    tick(k, 5)
    X = AQ
    XR = lambda i: "ds_read_b64_tr_b16 %s, %s offset:%d" % (v(X + 2 * i, 2), v(aXR), (i >> 1) * 1280 + (i & 1) * 128)
    ONES, PM, LA, E, T1, T2, T0 = G, G + 4, G + 8, G + 12, G + 20, G + 24, G + 28
    O1 = "0x3f803f80"
    nb = o.get('xb', 3)
    KORD[:] = [0, 1, 2, 4, 3, 5, 6, 7]
    f = {0: [WVR(7, 0), MV(KVM, v(AQ + 1))], 1: [WVR(7, 1), MV(KVM + 1, v(AQ + 5))], 2: [KTR(2), MV(ONES, O1)]}
    BAR = [".aw_writes", "s_barrier", TK(6)]
    if nb == 3:
        f.update({3: BAR + [XR(0), XR(1)], 4: [XR(2), XR(3)], 5: [XR(4), XR(5)], 6: [XR(6), XR(7)], 7: [KTR(3), KTR(4)], 8: [KTR(5), KTR(6)], 9: [KTR(7)]})
    elif nb == 4:
        f.update({3: [KTR(3), MV(ONES + 1, O1)], 4: BAR + [XR(0), XR(1)], 5: [XR(2), XR(3)], 6: [XR(4), XR(5)], 7: [XR(6), XR(7)], 8: [KTR(4), KTR(5)], 9: [KTR(6), KTR(7)]})
    elif nb == 5:
        f.update({3: [KTR(3), MV(ONES + 1, O1)], 4: [KTR(4), MV(PM + 1, "0")], 5: BAR + [XR(0), XR(1)], 6: [XR(2), XR(3)], 7: [XR(4), XR(5)], 8: [XR(6), XR(7)], 9: [KTR(5)]})
    elif nb == 6:
        f.update({3: [KTR(3), MV(ONES + 1, O1)], 4: [KTR(4), MV(PM + 1, "0")], 5: [KTR(5)], 6: BAR + [XR(0), XR(1), XR(2)], 7: [XR(3), XR(4)], 8: [XR(5), XR(6)], 9: [XR(7)]})
    weave(k, V(4) + V(3) + V(5) + V(6) + V(7), f)
    pass
    vf = []
    for t in range(2): vf += FA(AV + 4 * t) + [CV(KVM + 2 + t, AV + 4 * t, AV + 4 * t + 1)]
    t1 = lambda kb: MF(T1, MA + 4 * KORD[kb], X + 4 * kb, kb == 0)
    t2 = lambda kb: MF(T2, MA + 4 * KORD[4 + kb], X + 4 * kb, kb == 0)
    t0 = lambda kb: MF(T0, X + 4 * kb, X + 4 * kb, kb == 0)
    weave(k, [t1(0), t0(0), t1(1), t0(1), t1(2), t0(2)], {0: [TK(7)] + ([KTR(6)] if nb >= 5 else []) + ([MV(ONES + 1, O1)] if nb == 3 else []) + [MV(ONES + 2, O1)], 1: ([KTR(7)] if nb >= 5 else []) + vf[0:2], 2: vf[3:5], 3: [vf[2], vf[5]],
        4: [MV(PM + 1, "0"), MV(PM + 2, "0")], 5: ["s_cmp_eq_u32 s%d, 63" % S_STEP, "s_cbranch_scc1 %s" % lexit, MV(ONES + 3, O1)]})
    weave(k, [t1(3), t2(0), t0(3), t2(1), t2(2), t2(3)], {
        2: [EX(E, T1)], 3: [EX(E + 1, T1 + 1)], 4: [EX(E + 2, T1 + 2)],
        5: [EX(E + 3, T1 + 3), EX(T0, T0 + 2), EX(T0 + 1, T0 + 3), CV(E, E, E + 1), CV(E + 1, E + 2, E + 3), CV(PM, T0, T0 + 1), CV(PM + 3, T0, T0 + 1)]})
    O = AV
    Z = lambda i: "v_mov_b32 %s, 0" % v(MA + i)
    M16z = lambda d, A, B: "v_mfma_f32_16x16x16_bf16 %s, %s, %s, 0" % (v(d, 4), v(A, 2), v(B, 2))
    tick(k, 8)
    def pv(k, fast):
        weave(k, [M16z(LA, PM, ONES), M16z(O, PM, KVM + 2), M16z(O + 4, PM + 2, KVM + 2)],
              {0: [EX(E + 4, T2)], 1: [EX(E + 5, T2 + 1)], 2: [EX(E + 6, T2 + 2), EX(E + 7, T2 + 3), CV(E + 2, E + 4, E + 5), CV(E + 3, E + 6, E + 7)]} if fast else {})
        weave(k, [MF(LA, E, ONES, False), MF(O, E, VT, False), MF(O + 4, E, VT + 4, False)], {})
    pv(k, True)
    k("v_rcp_f32 %s, %s", v(LA), v(LA))
    k("v_rcp_f32 %s, %s", v(LA + 1), v(LA + 1))
    k.L(b_sm)
    for t in range(2):
        if o.get('pk', 1): k("v_pk_mul_f32 %s, %s, %s", v(O + 4 * t, 2), v(O + 4 * t, 2), v(LA, 2))
        else:
            k("v_mul_f32 %s, %s, %s", v(O + 4 * t), v(O + 4 * t), v(LA))
            k("v_mul_f32 %s, %s, %s", v(O + 4 * t + 1), v(O + 4 * t + 1), v(LA + 1))
        k(CV(E + 4 + t, O + 4 * t, O + 4 * t + 1))
    k("ds_write_b64 %s, %s", v(aOW), v(E + 4, 2))
    tick(k, 9)
    Z2 = lambda i: "v_mov_b64 %s, 0" % v(MA + 2 * i, 2)
    ZP = X + 8 + 6
    ZM = lambda r: "v_mfma_f32_32x32x8_bf16 %s, %s, %s, 0" % (v(r, 16), v(ZP, 2), v(ZP, 2))
    k("v_max3_f32 %s, |%s|, |%s|, |%s|", v(X), v(T1), v(T1 + 1), v(T1 + 2))
    k("v_max3_f32 %s, |%s|, |%s|, |%s|", v(X + 1), v(T1 + 3), v(T2), v(T2 + 1))
    k("v_max3_f32 %s, |%s|, |%s|, %s", v(X), v(T2 + 2), v(T2 + 3), v(X))
    k("v_max3_f32 %s, |%s|, |%s|, %s", v(X + 1), v(T0 + 2), v(T0 + 3), v(X + 1))
    k("v_mov_b64 %s, 0", v(ZP, 2))
    k("v_max_f32 %s, %s, %s", v(X), v(X), v(X + 1))
    k("v_cmp_lt_f32 vcc, s%d, %s", sTHR, v(X))
    k("s_and_b64 vcc, vcc, %s", s(sMASK, 2))
    k("s_cbranch_scc1 %s", r_sm)
    k("s_mov_b32 s%d, 0x42700000", sTHR)
    k(ZM(MA))
    k(".aw_writes"); k("s_barrier")
    tick(k, 10)
    OA = AQ
    for i in range(4):
        k("ds_read_b64_tr_b16 %s, %s offset:%d", v(OA + 2 * i, 2), v(aXR), (L_OB - L_XB) + (i >> 1) * 1280 + (i & 1) * 128)
        if i == o.get('zp', 1): k(ZM(MA + 16))
    PK = AK
    SB = {(4, 0): G, (5, 0): G + 8, (4, 1): G + 16, (5, 1): G + 24, (6, 0): VT, (7, 0): AV, (6, 1): G, (7, 1): G + 8}
    WOB = lambda nt, kbo: (WOR_ + (nt * 2 + kbo) * 8) if nt < 4 else SB[(nt, kbo)]
    WR = lambda nt, kbo, h: "ds_read_b128 %s, %s offset:%d" % (v(SB[(nt, kbo)] + 4 * h, 4), v(aWO), ((nt - 4) * 2 + kbo) * 2048 + h * 1024)
    WS_ = lambda nt, kbo: SMF(MA + 4 * nt, OA + 4 * kbo, WOB(nt, kbo))
    AD = lambda nt, b: "v_add_f32 %s, %s, %s" % (v(MA + 4 * nt + b), v(MA + 4 * nt + b), v(MA + 4 * nt + 2 + b))
    PC = lambda sx, b, hh: CV(PK + 4 * sx + 2 * b + hh, MA + 4 * (4 * sx + 2 * hh) + b, MA + 4 * (4 * sx + 2 * hh + 1) + b)
    ST1 = lambda sx: "buffer_store_dwordx4 %s, %s, %s, s%d offen %s" % (v(PK + 4 * sx, 4), v(aH1S), W, sH1S1 if sx else sH1S0, stf)
    PA = lambda nt: "v_pk_add_f32 %s, %s, %s" % (v(MA + 4 * nt, 2), v(MA + 4 * nt, 2), v(MA + 4 * nt + 2, 2))
    TG = lambda sx: "v_and_or_b32 %s, %s, -2, s%d" % (v(PK + 4 * sx), v(PK + 4 * sx), sPH)
    k(WR(4, 0, 0)); k(WR(4, 0, 1))
    A2 = lambda nt: [PA(nt)] if o.get('pk', 1) else [AD(nt, 0), AD(nt, 1)]
    P2 = lambda tp, b: CV(PK + 2 * tp + b, MA + 8 * tp + b, MA + 8 * tp + 4 + b)
    T2_ = lambda tp: "v_and_or_b32 %s, %s, -2, s%d" % (v(PK + 2 * tp), v(PK + 2 * tp), sPH)
    S2 = lambda tp: "buffer_store_dwordx2 %s, %s, %s, s%d offen offset:%d %s" % (v(PK + 2 * tp, 2), v(aH1S), W, sH1S1 if tp >> 1 else sH1S0, (tp & 1) * 2048, stf)
    fin = lambda tp: [AD(2 * tp + 1, 0), AD(2 * tp + 1, 1), P2(tp, 0), P2(tp, 1), T2_(tp), S2(tp)]
    fa = {0: [TK(11), WR(5, 0, 0)], 1: [WR(5, 0, 1)], 2: [WR(4, 1, 0)], 3: [WR(4, 1, 1)],
        4: [WR(5, 1, 0), AD(0, 0)], 5: [WR(5, 1, 1), AD(0, 1)] + fin(0) + [TK(12)], 6: [WR(6, 0, 0), WR(6, 0, 1)], 7: [WR(7, 0, 0), WR(7, 0, 1)],
        8: [WR(6, 1, 0), AD(2, 0)], 9: [WR(6, 1, 1), AD(2, 1), WR(7, 1, 0), WR(7, 1, 1)] + fin(1),
        12: [AD(4, 0)], 13: [AD(4, 1)] + fin(2),
        15: A2(6) + A2(7) + [P2(3, 0), P2(3, 1), T2_(3), S2(3)]}
    if o.get('lazy', 0):
        fa = {0: [TK(11), WR(5, 0, 0)], 1: [WR(5, 0, 1)], 2: [WR(4, 1, 0)], 3: [WR(4, 1, 1)],
            4: [WR(5, 1, 0), AD(0, 0)], 5: [WR(5, 1, 1), AD(0, 1)], 6: [WR(6, 0, 0), AD(1, 0)], 7: [WR(6, 0, 1), WR(7, 0, 0), WR(7, 0, 1)] + fin(0)[1:] + [TK(12)],
            8: [WR(6, 1, 0), AD(2, 0)], 9: [WR(6, 1, 1), AD(2, 1)], 10: [WR(7, 1, 0), AD(3, 0)], 11: [WR(7, 1, 1)] + fin(1)[1:],
            12: [AD(4, 0)], 13: [AD(4, 1)], 14: [AD(5, 0)],
            15: fin(2)[1:] + A2(6) + A2(7) + [P2(3, 0), P2(3, 1), T2_(3), S2(3)]}
    weave(k, [WS_(0, 0), WS_(1, 0), WS_(0, 1), WS_(1, 1), WS_(2, 0), WS_(3, 0), WS_(2, 1), WS_(3, 1), WS_(4, 0), WS_(5, 0),
              WS_(4, 1), WS_(5, 1), WS_(6, 0), WS_(7, 0), WS_(6, 1), WS_(7, 1)], fa)
    tick(k, 13)
    if o.get('plog'):
        k("s_mov_b32 m0, s%d", S_STEP)
        k("v_writelane_b32 v1, s64, m0")
    RD = MA + 16; HT = MA + 20; H1 = MA + 8; H1B = MA + 24
    h1lb = lambda b: ["buffer_load_dwordx4 %s, %s, %s, s%d offen sc1" % (v(b, 4), v(aL16), W, sH1L),
           "buffer_load_dwordx4 %s, %s, %s, s%d offen offset:1024 sc1" % (v(b + 4, 4), v(aL16), W, sH1L)]
    redb = lambda b: [MF(RD, SEL, b, True), MF(RD, SEL, b + 4, False),
           "v_bitop3_b32 %s, %s, %s, s%d bitop3:0x7e" % (v(HT), v(b), v(b + 4), sPH), "v_and_b32 %s, 1, %s" % (v(HT), v(HT)),
           "v_cmp_ne_u32 vcc, 0, %s" % v(HT)]
    h1l = h1lb(H1); red = redb(H1)
    lde = lambda b: ["buffer_load_dwordx4 %s, %s, %s, s%d offen sc1" % (v(b, 4), v(aL16), W, sH2L),
                     "buffer_load_dwordx4 %s, %s, %s, s%d offen offset:1024 sc1" % (v(b + 4, 4), v(aL16), W, sH2L)]
    KAV = "v_mov_b32 %s, 0" % v(MA + 22)
    def warm(vl, ol, slots, per=4):
        while slots > 0:
            k(vl.pop(0) if vl else KAV); slots -= 1
            r = min(per - 1, slots)
            while r > 0 and ol:
                x = ol.pop(0); k(x); c = 2 if x.startswith('ds_') else 1; r -= c; slots -= c
            if r > 0: k("s_nop %d", r - 1); slots -= r
    def spin(reg, n, lab, magic="0x7fc1"):
        for i in range(n):
            k("v_cmp_ne_u32 vcc, %s, %s", magic, v(reg))
            k("s_cbranch_vccnz %s", lab)
            if o.get('spn', 0): k("s_nop %d", o.get('spn') - 1)
    hv = ["v_mov_b64 %s, 0" % v(AQ + 2 * i, 2) for i in range(12)] + ["v_xor_b32 %s, 0x2000, %s" % (v(aKT), v(aKT)), MV(H1 + 7, "0x7fc1"), MV(MA + 7, "-2")]
    ho = [WVR(n, h) for n in range(4) for h in range(2)] + \
         ["s_mov_b32 s%d, s%d" % (sH2R, sH2S), "s_xor_b32 s%d, s%d, 0x2000" % (sH2S, sH2S)] + \
         ["s_xor_b32 s%d, s%d, 0x40000" % (r, r) for r in (sH1S0, sH1S1)] + \
         ["s_xor_b32 s%d, s%d, 0x2000" % (sH2L, sH2L), "s_add_u32 s%d, s%d, 1" % (S_STEP, S_STEP), "s_mov_b32 m0, s%d" % sKTD]
    hv = [MV(H1B + 3, "0x7fc1")] + hv[-2:] + hv[:-2]
    ok1 = k.lab(tag + "ok1"); rr1 = k.lab(tag + "r1"); ar1 = k.lab(tag + "ar1"); ar0 = k.lab(tag + "ar0")
    p0 = o.get('p0', None)
    if p0 is not None:
        warm(hv, ho, p0)
        tick(k, 3)
        for l in h1lb(H1B): k(l)
    warm(hv, ho, o.get('p1', 60))
    for l in h1l: k(l)
    warm(hv, ho, o.get('w1', 45))
    assert not hv and not ho
    k("s_mov_b32 s%d, 0", sCNT)
    lp1 = k.lab(tag + "lp1")
    k.L(lp1)
    spin(H1B + 3, o.get('ns1', 24), ar0)
    k.L(ar0)
    k("s_waitcnt vmcnt(3)")
    tick(k, 4)
    k(redb(H1B)[0])
    k("s_waitcnt vmcnt(2)")
    for l in redb(H1B)[1:]: k(l)
    k("s_cbranch_vccnz %s", rr1)
    k.L(ok1)
    for sh in (4, 8):
        for r in (RD, RD + 1): k("v_add_f32_dpp %s, %s, %s row_ror:%d row_mask:0xf bank_mask:0xf", v(r), v(r), v(r), sh)
    k("v_cvt_pk_bf16_f32 %s, %s, %s", v(RD), v(RD), v(RD + 1))
    k("buffer_store_dword %s, %s, %s, s%d offen %s", v(RD), v(aH2S), W, sH2S, stf)
    tick(k, 14)
    k(MV(HT, "-1"))
    k("buffer_store_dword %s, %s, %s, s%d offen %s", v(HT), v(aH2S), W, sH2R, stf)
    hv = ["v_mov_b64 %s, %s" % (v(VT + 2 * i, 2), v(VTN + 2 * i, 2)) for i in range(4)] + [MV(VTN + 7, "-2")]
    ho = ["s_xor_b32 s%d, s%d, 0x40000" % (sH1L, sH1L), "s_bfe_u32 s%d, s%d, 0x10001" % (sPH, S_STEP), "s_mov_b32 s%d, 0" % sCNT]
    if mg:
        k("s_add_u32 s%d, s%d, 1", sT, S_STEP); k("v_cmp_ge_u32 vcc, s%d, v1", sT)
        k("s_cbranch_vccnz %s", r_kv)
        k.L(b_kv)
        k("s_sub_u32 s%d, s%d, %d", sT, S_STEP, 1)
        k("v_mov_b32 v1, s%d", sT)
    p2 = o.get('p2', [40, 30])
    warm(hv, ho, p2[0])
    assert not hv and not ho
    for l in lde(EB[0]): k(l)
    warm(hv, ho, p2[1])
    for l in lde(EB[1]): k(l)
    warm(hv, ho, o.get('w2', 15))
    k(".aw_all")
    k(".aw_off")
    k("s_branch %s", lpoll)
    k.L(lto)
    k("s_mov_b32 s%d, 0", S_LIM)
    k("s_waitcnt vmcnt(0)")
    k("s_branch %s", lS[0])
    k.L(rr1)
    k(MV(H1B + 3, "0x7fc1"))
    for l in h1lb(H1B): k(l)
    if tk: k("s_add_u32 s98, s98, 1")
    spin(H1 + 7, o.get('ns1', 24), ar1)
    k.L(ar1)
    k("s_waitcnt vmcnt(2)")
    for l in red: k(l)
    k("s_cbranch_vccz %s", ok1)
    k(MV(H1 + 7, "0x7fc1"))
    for l in h1l: k(l)
    if tk: k("s_add_u32 s96, s96, 1")
    k("s_add_u32 s%d, s%d, 1", sCNT, sCNT)
    k("s_cmp_lt_u32 s%d, s%d", sCNT, S_LIM)
    k("s_cbranch_scc1 %s", lp1)
    k("s_mov_b32 s%d, 0", S_LIM)
    k("s_branch %s", ok1)
    if mg:
        k.L(r_kv)
        kv_refresh(k, 1, b_kv)
    k.L(r_sm)
    k("v_max3_f32 %s, %s, %s, %s", v(X), v(T1), v(T1 + 1), v(T1 + 2))
    k("v_max3_f32 %s, %s, %s, %s", v(X), v(T1 + 3), v(T2), v(X))
    k("v_max3_f32 %s, %s, %s, %s", v(X), v(T2 + 1), v(T2 + 2), v(X))
    k("v_max3_f32 %s, %s, %s, %s", v(X), v(T2 + 3), v(T0 + 2), v(X))
    k("v_max_f32 %s, %s, %s", v(X), v(T0 + 3), v(X))
    xmax(k, X, X + 1)
    for r in [T1 + i for i in range(8)] + [T0 + 2, T0 + 3]: k("v_sub_f32 %s, %s, %s", v(r), v(r), v(X))
    for i in range(8): k(EX(E + i, T1 + i))
    k(EX(T0, T0 + 2)); k(EX(T0 + 1, T0 + 3))
    for i in range(4): k(CV(E + i, E + 2 * i, E + 2 * i + 1))
    k(CV(PM, T0, T0 + 1)); k(CV(PM + 3, T0, T0 + 1))
    pv(k, False)
    k("s_mov_b32 s%d, 0x7f800000", sTHR)
    k("v_rcp_f32 %s, %s", v(LA), v(LA))
    k("v_rcp_f32 %s, %s", v(LA + 1), v(LA + 1))
    k("s_waitcnt lgkmcnt(0)")
    k("s_branch %s", b_sm)
    k.L(lexit)
    k(stkvm)
    k("s_waitcnt vmcnt(0) lgkmcnt(0)")
    if mg:
        k("v_mov_b32 v1, 64")
        k("buffer_store_dword v1, %s, %s, s%d offen sc1", v(aFL), W, sKF)

def role_chain(k, force_slow=False):
    mg = getattr(k, 'merged', False)
    k("s_mov_b32 s54, s45")
    stamp(k, 2, 0, wgreg=S_HEAD, vt=120)
    srds = (('Wq', S_WQ), ('Wk', S_WK), ('Wv', S_WV), ('Wo', S_WO), ('mem0', 56))
    for n, r in srds: load_srd(k, n, r)
    chain_setup(k)
    merged_setup(k)
    k("s_mov_b32 s%d, 0", S_STEP)
    k("s_waitcnt lgkmcnt(0)")
    for n, r in srds: fin_srd(k, n, r)
    W = s(S_WS, 4)
    def h_arm(k):
        chain_arm(k)
        k("v_lshrrev_b32 v104, 1, v90")
        k("v_and_b32 v104, 6, v104")
        k("v_and_b32 v105, 1, v1")
        k("v_add_u32 v104, v104, v105")
        k("v_lshlrev_b32 v104, 10, v104")
        k("v_lshrrev_b32 v105, 1, v91")
        k("v_lshl_add_u32 v104, v105, 6, v104")
        k("v_and_b32 v105, 1, v91")
        k("v_lshl_add_u32 v104, v105, 4, v104")
        k("s_lshl_b32 s%d, s%d, 8", sT, S_WAVE)
        for j in range(2):
            k("buffer_load_dwordx4 %s, v104, %s, s%d offen offset:%d", v(40 + 8 * j, 4), s(56, 4), sT, j * 128)
            k("buffer_load_dwordx4 %s, v104, %s, s%d offen offset:%d", v(44 + 8 * j, 4), s(56, 4), sT, j * 128 + 32)
        return 9
    lwarm = k.lab("CW"); lwend = k.lab("CWe")
    def h_mem0(k):
        k("v_and_b32 v105, 2, v1")
        k("v_mul_u32_u24 v105, 0x10101, v105")
        k("v_and_b32 v106, 2, v1")
        k("v_lshl_add_u32 v105, v106, 24, v105")
        k("v_add_u32 v105, 0x05040100, v105")
        for j in range(2):
            for i in range(4):
                k("v_perm_b32 %s, %s, %s, v105", v(MA + 4 * j + i), v(44 + 8 * j + i), v(40 + 8 * j + i))
        k("v_mov_b32 v107, 0")
        k("buffer_load_dword v108, v107, %s, 0 offen offset:%d sc1", s(S_DBG, 4), DBG_READY)
        n = 1
        if k.copt.get('cwarm', 1):
            lpc = k.lab("pc")
            k("s_getpc_b64 s[60:61]")
            k.L(lpc)
            k("s_add_u32 s60, s60, %s-%s", lwarm, lpc)
            k("s_addc_u32 s61, s61, 0")
            k("s_lshl_b32 s%d, s%d, 13", sT, S_WAVE)
            k("v_lshlrev_b32 v104, 7, v1")
            k("v_min_u32 v105, %s-%s-4, v104", lwend, lwarm)
            k("global_load_dword v116, v105, s[60:61]")
            k("v_add_u32 v104, 0x2000, v104")
            k("v_min_u32 v105, %s-%s-4, v104", lwend, lwarm)
            k("global_load_dword v117, v105, s[60:61]")
            n += 2
        return n
    def h_announce(k):
        k("s_cmp_eq_u32 s54, 0")
        k("s_cselect_b32 s%d, 1, 0x10001", sT)
        k("v_mov_b32 v106, s%d", sT)
        k("s_cmp_eq_u32 s%d, 0", S_WAVE)
        k("s_cselect_b32 s%d, 64, 0x1000", sT)
        k("v_mov_b32 v105, s%d", sT)
        k("s_mov_b64 exec, 1")
        k("buffer_atomic_add v106, v105, %s, 0 offen sc1", s(S_DBG, 4))
        k("s_mov_b64 exec, -1")
        return 1
    def h_flags(k):
        k("buffer_load_dword v109, %s, %s, s%d offen sc1", v(aFL), W, sQF)
        return 1
    def h_pf(k):
        k("s_waitcnt vmcnt(16)")
        k("v_cmp_eq_u32 vcc, 0, v108")
        k("s_or_b32 s%d, vcc_lo, vcc_hi", sSAFE)
        k("v_cmp_ge_u32 vcc, 1, v109")
        k("s_or_b32 s%d, s%d, vcc_lo", sSAFE, sSAFE)
        for p in range(4):
            for l in PFK(p): k(l)
        k("buffer_load_dword v110, v107, %s, 0 offen offset:64 sc1", s(S_DBG, 4))
        return 5
    h_arm(k)
    def h_thr(k):
        lp_ = k.lab("thr"); ok_ = k.lab("thro")
        k("s_mov_b32 s%d, 0", sCNT)
        k.L(lp_)
        k("buffer_load_dword v110, v107, %s, 0 offen offset:64 sc1", s(S_DBG, 4))
        k("s_waitcnt vmcnt(0)")
        k("v_readfirstlane_b32 s%d, v110", sT)
        k("s_and_b32 s%d, s%d, 0xffff", sT, sT)
        k("s_cmp_ge_u32 s%d, %d", sT, k.copt.get('thrn', 32))
        k("s_cbranch_scc1 %s", ok_)
        k("s_add_u32 s%d, s%d, 1", sCNT, sCNT)
        k("s_cmp_lt_u32 s%d, 2000", sCNT)
        k("s_cbranch_scc1 %s", lp_)
        k.L(ok_)
    thr = k.copt.get('thr', None)
    chain_load_weights(k, {1: h_mem0, 4: h_announce, 5: h_flags, 7: h_pf}, {thr: h_thr} if thr is not None else {})
    stamp(k, 2, 1, wgreg=S_HEAD, vt=120)
    if mg:
        lok = k.lab("CHf")
        k("s_cmp_eq_u32 s%d, 0", sSAFE)
        k("s_cbranch_scc1 %s", lok)
        wait_ready(k, 108)
        kv_refresh(k, 1)
        for p in range(4):
            for l in PFK(p): k(l)
        k.L(lok)
    k("s_mov_b32 s%d, 0", sSAFE)
    k("s_mov_b32 s%d, 0x42700000", sTHR)
    for l in PFK(4): k(l)
    k("s_waitcnt vmcnt(0)")
    k("v_readfirstlane_b32 s44, v110")
    for n in range(4):
        k(WVR(n, 0)); k(WVR(n, 1))
    for i in range(24): k("v_mov_b32 %s, 0", v(AQ + i))
    lp = k.lab("CHs"); ok = k.lab("CHok")
    k("v_mov_b32 %s, 0", v(KVM + 1))
    k("s_mov_b32 s%d, 0", sCNT)
    k.L(lp)
    k("s_and_b32 s45, s44, 0xffff")
    k("s_cmp_eq_u32 s45, 32")
    k("s_cbranch_scc1 %s", ok)
    k("buffer_load_dword %s, %s, %s, 0 offen offset:64 sc1", v(KVM), v(KVM + 1), s(S_DBG, 4))
    k("s_waitcnt vmcnt(0)")
    k("v_readfirstlane_b32 s44, %s", v(KVM))
    k("s_add_u32 s%d, s%d, 1", sCNT, sCNT)
    k("s_cmp_lt_u32 s%d, s%d", sCNT, S_LIM)
    k("s_cbranch_scc1 %s", lp)
    k("s_mov_b32 s%d, 0", S_LIM)
    k.L(ok)
    k("s_waitcnt vmcnt(0)")
    for i in range(8): k("v_mov_b32 %s, %s", v(VT + i), v(VTN + i))
    k("s_waitcnt lgkmcnt(0)")
    stamp(k, 2, 2, wgreg=S_HEAD, vt=56)
    stamp(k, 2, 4, wgreg=S_HEAD, vt=56, cyc=True)
    tick_init(k)
    if k.copt.get('plog2'):
        k("s_lshl_b32 s100, s%d, 2", S_HEAD)
        k("s_add_u32 s100, s100, s%d", S_WAVE)
        k("s_lshl_b32 s100, s100, 9")
        k("s_add_u32 s100, s100, 0x%x", TS + 8 * 65536)
    k("s_mov_b32 m0, s%d", sKTD)
    k("v_mov_b32 v1, 0")
    lslow = k.lab("CHslow"); ldone = k.lab("CHdone")
    k("s_lshr_b32 s44, s44, 16")
    k("s_cmp_lg_u32 s44, %d", 0 if not force_slow else 77)
    k("s_cbranch_scc1 %s", lslow)
    n0 = len(k.lines)
    k.L(lwarm)
    chain_loop(k, "", "F")
    k.L(lwend)
    o = getattr(k, 'copt', {})
    if o.get('free'):
        body = k.lines[n0:]; out = []
        for l in body:
            ls = l.strip()
            if 's100' in ls: out.append(l); continue
            if ls.startswith('s_cbranch_vccnz'): continue
            if ls.startswith('s_cbranch_vccz Fs0v'): l = l.replace('s_cbranch_vccz', 's_branch')
            if ls.startswith('s_cbranch_scc1 Frsm'): continue
            if 'novmem' in o['free'] and (ls.startswith('buffer_') or 'vmcnt' in ls): continue
            if 'nowait' in o['free'] and 'vmcnt' in ls: continue
            out.append(l)
        k.lines[n0:] = out
    k("s_branch %s", ldone)
    k.L(lslow)
    chain_loop(k, "sc1", "S")
    k.L(ldone)
    if k.copt.get('plog'):
        k("s_lshl_b32 s100, s%d, 2", S_HEAD)
        k("s_add_u32 s100, s100, s%d", S_WAVE)
        k("s_lshl_b32 s100, s100, 8")
        k("s_add_u32 s100, s100, 0x%x", TS + 8 * 65536)
        k("v_lshrrev_b32 v40, 2, %s", v(aL16))
        k("buffer_store_dword v1, v40, %s, s100 offen", s(S_WS, 4))
    tick_dump(k)
    k("s_waitcnt vmcnt(0)")
    stamp(k, 2, 3, wgreg=S_HEAD, vt=56)
    stamp(k, 2, 5, wgreg=S_HEAD, vt=56, cyc=True)
```

```python
from asmlib import *
NAME = "sequential_preLN__memory_aug_recurrent_mem_tr__glu_gated_swiglu__prompt"
XN    = 0x0000000
QIMG  = 0x0200000
KIMG  = 0x1200000
VIMG  = 0x2200000
KM    = 0x3220000
VM    = 0x3A00000
PART  = 0x4000000
HIMG  = 0x6000000
HNIMG = 0x6200000
ACT   = 0x6400000
HOP1  = 0x7000000
HOP2  = 0x7100000
FLAGS = 0x7200000
WS_BYTES = 268435456
KA = dict(x=0, mem0=8, Wq=16, Wk=24, Wv=32, Wo=40, w1=64, w3=72, w2=80, out=88, dbg=96, ws=104)
SZ = dict(x=2097152, mem0=8192, Wq=4194304, Wk=4194304, Wv=4194304, Wo=4194304, w1=512*1376*2, w3=512*1376*2,
          w2=1376*512*2, out=2097152, dbg=256, ws=WS_BYTES)

def load_srd(k, name, sreg):
    k("s_load_dwordx2 %s, s[0:1], %d", s(sreg, 2), KA[name])
def fin_srd(k, name, sreg):
    k("s_and_b32 %s, %s, 0xffff", s(sreg + 1), s(sreg + 1))
    k("s_mov_b32 %s, 0x%x", s(sreg + 2), SZ[name])
    k("s_mov_b32 %s, 0x20000", s(sreg + 3))

def kernel_header(k, name):
    k(".globl %s", name)
    k(".p2align 8")
    k(".type %s,@function", name)
    k.L(name)

def kernel_desc(name, vgpr=512, accum=256, sgpr=102):
    return """.amdhsa_kernel %s
  .amdhsa_next_free_vgpr %d
  .amdhsa_next_free_sgpr %d
  .amdhsa_accum_offset %d
  .amdhsa_group_segment_fixed_size 0
  .amdhsa_kernarg_size 112
  .amdhsa_user_sgpr_count 2
  .amdhsa_user_sgpr_kernarg_segment_ptr 1
  .amdhsa_system_sgpr_workgroup_id_x 1
  .amdhsa_float_denorm_mode_32 3
  .amdhsa_float_denorm_mode_16_64 3
.end_amdhsa_kernel
""" % (name, vgpr, sgpr, accum)

def row16_allreduce_add(k, r, tmp=None):
    for sh in (1, 2, 4, 8):
        k("v_add_f32_dpp %s, %s, %s row_ror:%d row_mask:0xf bank_mask:0xf", v(r), v(r), v(r), sh)

def round_bf16(k, dst, src):
    k("v_cvt_pk_bf16_f32 %s, %s, %s", v(dst), v(src), v(src))
    k("v_lshlrev_b32 %s, 16, %s", v(dst), v(dst))

TS = 0x7800000
def stamp(k, slot, idx, S_WS=8, wgreg=2, vt=2, st=60, cyc=False):
    if not getattr(k, 'stamps', False): return
    l = k.lab("ST")
    k("s_cmp_lg_u32 s4, 0")
    k("s_cbranch_scc1 %s", l)
    k("%s %s", "s_memtime" if cyc else "s_memrealtime", s(st, 2))
    k("s_lshl_b32 %s, s%d, 7", s(st + 2), wgreg)
    k("s_add_u32 %s, %s, 0x%x", s(st + 2), s(st + 2), TS + slot * 65536 + idx * 8)
    k("v_mov_b32 %s, 0", v(vt + 2))
    k("s_waitcnt lgkmcnt(0)")
    k("v_mov_b32 %s, %s", v(vt), s(st))
    k("v_mov_b32 %s, %s", v(vt + 1), s(st + 1))
    k("buffer_store_dwordx2 %s, %s, %s, %s offen", v(vt, 2), v(vt + 2), s(S_WS, 4), s(st + 2))
    k("s_waitcnt vmcnt(0)")
    k.L(l)

F_XN = 0x000; F_QF = 0x100; F_KF = 0x2000; F_BF = 0x6000; F_RF = 0x9000; F_UF = 0xC000
DBG_READY = 224

def lstamp(k, idx):
    if getattr(k, 'stamps', False): k("s_memrealtime s[%d:%d]", 76 + 2 * idx, 77 + 2 * idx)
def lstamp_dump(k, wgreg):
    if not getattr(k, 'stamps', False): return
    l = k.lab("LS")
    k("s_cmp_lg_u32 s4, 0")
    k("s_cbranch_scc1 %s", l)
    k("s_waitcnt lgkmcnt(0)")
    k("s_lshl_b32 s62, s%d, 7", wgreg)
    k("s_add_u32 s62, s62, 0x%x", TS + 4 * 65536)
    k("v_mov_b32 v122, 0")
    for i in range(8):
        k("v_mov_b32 v120, s%d", 76 + 2 * i); k("v_mov_b32 v121, s%d", 77 + 2 * i)
        k("buffer_store_dwordx2 v[120:121], v122, s[8:11], s62 offen offset:%d", 8 * i)
    k.L(l)
DBG_T = 228
```

```python
from common import *

S_WS = 8
S_W  = 12
S_X  = 16
S_O  = 20
S_DBG = 24
S_WAVE = 4
ST = "sc1"
LD = "sc1"

def lane_wave(k):
    k("v_and_b32 v1, 63, v0")
    k("v_lshrrev_b32 v2, 6, v0")
    k("v_readfirstlane_b32 s%d, v2", S_WAVE)

S_SPIN = 6

def wait_ready(k, vt):
    lp = k.lab("rdy"); ok = k.lab("rdyok")
    k("s_mov_b32 s42, 0")
    k("v_mov_b32 %s, 0", v(vt + 1))
    k.L(lp)
    k("buffer_load_dword %s, %s, %s, 0 offen offset:%d sc1", v(vt), v(vt + 1), s(S_DBG, 4), DBG_READY)
    k("s_waitcnt vmcnt(0)")
    k("v_cmp_eq_u32 vcc, 0, %s", v(vt))
    k("s_cbranch_vccz %s", ok)
    k("s_sleep 1")
    k("s_add_u32 s42, s42, 1")
    k("s_cmp_lt_u32 s42, s%d", S_SPIN)
    k("s_cbranch_scc1 %s", lp)
    k("s_mov_b32 s%d, 0", S_SPIN)
    k.L(ok)

def wait_flags(k, vaddr, s_off, s_seg, vt, scnt=59, wave0=False):
    lp = k.lab("wf"); ok = k.lab("wfok")
    if wave0:
        k("s_cmp_lg_u32 s%d, 0", S_WAVE)
        k("s_cbranch_scc1 %s", ok)
    k("s_mov_b32 s%d, 0", scnt)
    k.L(lp)
    k("buffer_load_dword %s, %s, %s, s%d offen sc1", v(vt), v(vaddr), s(S_WS, 4), s_off)
    k("s_waitcnt vmcnt(0)")
    k("v_cmp_ge_u32 vcc, s%d, %s", s_seg, v(vt))
    k("s_cbranch_vccz %s", ok)
    k("s_sleep 1")
    k("s_add_u32 s%d, s%d, 1", scnt, scnt)
    k("s_cmp_lt_u32 s%d, s%d", scnt, S_SPIN)
    k("s_cbranch_scc1 %s", lp)
    k("s_mov_b32 s%d, 0", S_SPIN)
    k.L(ok)
    if wave0: k("s_barrier")

def set_flag(k, s_off, val, vt, drain=True):
    l = k.lab("sf")
    if drain:
        k("s_waitcnt vmcnt(0)")
        k("s_barrier")
    k("s_cmp_lg_u32 s%d, 0", S_WAVE)
    k("s_cbranch_scc1 %s", l)
    k("v_mov_b32 %s, %s", v(vt), val)
    k("v_mov_b32 %s, 0", v(vt + 1))
    k("s_mov_b64 exec, 1")
    k("buffer_store_dword %s, %s, %s, s%d offen sc1", v(vt), v(vt + 1), s(S_WS, 4), s_off)
    k("s_mov_b64 exec, -1")
    k.L(l)

def ln_finish(k, X, n, mean, var, t0, t1, OUT):
    round_bf16(k, mean, mean)
    round_bf16(k, var, var)
    k("v_add_f32 %s, 0x3727c5ac, %s", v(var), v(var))
    round_bf16(k, var, var)
    k("v_sqrt_f32 %s, %s", v(var), v(var))
    round_bf16(k, var, var)
    k("v_rcp_f32 %s, %s", v(var), v(var))
    for i in range(0, n, 2):
        k("v_sub_f32 %s, %s, %s", v(X + i), v(X + i), v(mean))
        k("v_sub_f32 %s, %s, %s", v(X + i + 1), v(X + i + 1), v(mean))
        k("v_cvt_pk_bf16_f32 %s, %s, %s", v(t0), v(X + i), v(X + i + 1))
        k("v_lshlrev_b32 %s, 16, %s", v(X + i), v(t0))
        k("v_and_b32 %s, 0xffff0000, %s", v(X + i + 1), v(t0))
        k("v_mul_f32 %s, %s, %s", v(X + i), v(X + i), v(var))
        k("v_mul_f32 %s, %s, %s", v(X + i + 1), v(X + i + 1), v(var))
        k("v_cvt_pk_bf16_f32 %s, %s, %s", v(OUT + i // 2), v(X + i), v(X + i + 1))

def role_ln1(k, s_tile, ntiles=1, after=None):
    k.c("---- LN1 role")
    k("v_lshrrev_b32 v2, 4, v1")
    k("v_and_b32 v3, 15, v1")
    k("s_lshl_b32 s40, s%d, 2", S_WAVE)
    k("v_add_u32 v2, s40, v2")
    k("v_lshlrev_b32 v4, 10, v2")
    k("v_lshl_add_u32 v4, v3, 4, v4")
    k("s_lshl_b32 s41, s%d, 14", s_tile)
    RAW = 64
    for ti in range(ntiles):
        k("s_add_u32 s43, s41, %d", ti * 32 * 16384)
        for it in range(4):
            k("buffer_load_dwordx4 %s, v4, %s, s43 offen offset:%d", v(RAW + 16 * ti + 4 * it, 4), s(S_X, 4), it * 256)
    k("v_lshrrev_b32 v5, 2, v3")
    k("v_lshlrev_b32 v5, 10, v5")
    k("v_and_b32 v6, 3, v3")
    k("v_lshl_add_u32 v5, v6, 8, v5")
    k("v_lshl_add_u32 v5, v2, 4, v5")
    X = 32
    k("s_waitcnt vmcnt(%d)", 4 * (ntiles - 1))
    k("s_mov_b32 s43, 0")
    lp = k.lab("LN1l")
    k.L(lp)
    for i in range(16):
        k("v_lshlrev_b32 %s, 16, %s", v(X + 2 * i), v(RAW + i))
        k("v_and_b32 %s, 0xffff0000, %s", v(X + 2 * i + 1), v(RAW + i))
    k("v_add_f32 v24, %s, %s", v(X), v(X + 1))
    k("v_add_f32 v25, %s, %s", v(X + 2), v(X + 3))
    for i in range(4, 32, 2):
        k("v_add_f32 v24, v24, %s", v(X + i))
        k("v_add_f32 v25, v25, %s", v(X + i + 1))
    k("v_add_f32 v24, v24, v25")
    row16_allreduce_add(k, 24)
    k("v_mul_f32 v24, 0x3b000000, v24")
    k("v_mov_b32 v25, 0")
    k("v_mov_b32 v26, 0")
    for i in range(0, 32, 2):
        k("v_sub_f32 v27, %s, v24", v(X + i))
        k("v_sub_f32 v28, %s, v24", v(X + i + 1))
        k("v_fmac_f32 v25, v27, v27")
        k("v_fmac_f32 v26, v28, v28")
    k("v_add_f32 v25, v25, v26")
    row16_allreduce_add(k, 25)
    k("v_mul_f32 v25, 0x3b000000, v25")
    ln_finish(k, X, 32, 24, 25, 26, 27, 8)
    for it in range(4):
        k("s_add_u32 s42, s41, 0x%x", XN + it * 4096)
        k("buffer_store_dwordx4 %s, v5, %s, s42 offen %s", v(8 + 4 * it, 4), s(S_WS, 4), ST)
    if ntiles > 1:
        k("s_add_u32 s43, s43, 1")
        if after: after(k, 43)
        for i in range(0, 16 * (ntiles - 1), 2): k("v_mov_b64 %s, %s", v(RAW + i, 2), v(RAW + 16 + i, 2))
        k("s_add_u32 s41, s41, %d", 32 * 16384)
        k("s_cmp_lt_u32 s43, %d", ntiles)
        k("s_cbranch_scc1 %s", lp)

def stage_rows256(k, srd, s_base, pitch, nrows, vaddr, lds_off=0):
    k("v_lshrrev_b32 %s, 4, v1", v(vaddr + 1))
    k("v_lshlrev_b32 %s, 2, %s", v(vaddr), v(vaddr + 1))
    k("v_xor_b32 %s, %s, v1", v(vaddr), v(vaddr))
    k("v_and_b32 %s, 15, %s", v(vaddr), v(vaddr))
    k("v_lshlrev_b32 %s, 4, %s", v(vaddr), v(vaddr))
    k("s_mov_b32 s44, %d", pitch)
    k("v_mad_u32_u24 %s, %s, s44, %s", v(vaddr), v(vaddr + 1), v(vaddr))
    k("s_mul_i32 s44, s%d, %d", S_WAVE, 4 * pitch)
    k("s_add_u32 s44, s44, s%d", s_base)
    k("s_lshl_b32 s45, s%d, 10", S_WAVE)
    if lds_off: k("s_add_u32 s45, s45, %d", lds_off)
    n = nrows // 16
    for i in range(n):
        k("s_mov_b32 m0, s45")
        k("buffer_load_dwordx4 %s, %s, s44 offen lds", v(vaddr), s(srd, 4))
        if i < n - 1:
            k("s_add_u32 s44, s44, %d", 16 * pitch)
            k("s_add_u32 s45, s45, 4096")

def frag_addr256(k, va, vtmp, lds_off=0):
    k("v_lshrrev_b32 %s, 4, v1", v(va))
    k("v_lshlrev_b32 %s, 3, %s", v(va), v(va))
    k("v_bfe_u32 %s, v1, 2, 2", v(vtmp))
    k("v_add_u32 %s, %s, %s", v(va), v(va), v(vtmp))
    k("v_lshlrev_b32 %s, 8, %s", v(va), v(va))
    k("v_xor_b32 %s, s%d, %s", v(vtmp), S_WAVE, v(vtmp))
    k("v_lshl_add_u32 %s, %s, 6, %s", v(va), v(vtmp), v(va))
    k("v_and_b32 %s, 3, v1", v(vtmp))
    k("v_lshl_add_u32 %s, %s, 4, %s", v(va), v(vtmp), v(va))
    if lds_off: k("v_add_u32 %s, %d, %s", v(va), lds_off, v(va))
    k("v_add_u32 %s, 0x10000, %s", v(va + 1), v(va))

def read_frags256(k, va, WREG):
    for ks in range(16):
        for t in range(2):
            for y in range(2):
                off = ks * 8192 + y * 1024 + 8 * t
                k("ds_read_b64_tr_b16 %s, %s offset:%d", u(WREG + (t * 16 + ks) * 4 + 2 * y, 2),
                  v(va + (off >> 16)), off & 0xffff)
        if ks % 3 == 2: k("s_waitcnt lgkmcnt(4)")
    k("s_waitcnt lgkmcnt(0)")

def seg_gemm_loop(k, WREG, w_is_a, s_src, src_stride, niter_sreg, epilogue, n_epi_vm, pre_dma=None, publish=None, tag="G"):
    PF = 8; NB = 16; FW = 16; ACC = 80
    k("v_lshlrev_b32 v4, 4, v1")
    k("v_mov_b32 v5, v4")
    k("s_lshl_b32 s48, s%d, 13", S_WAVE)
    k("s_add_u32 s49, s%d, s48", s_src)
    k("s_mov_b32 s50, s48")
    k("s_mov_b32 s51, 0")
    k("s_mov_b32 s52, 0")
    def dma_piece(p):
        if p == 0:
            if pre_dma: pre_dma(k)
            k("s_cmp_lt_u32 s52, s%d", niter_sreg)
            k("s_cselect_b32 s53, s49, 0")
            k("s_mov_b32 m0, s50")
        if p == 4:
            k("s_add_u32 s53, s53, 4096")
            k("s_add_u32 m0, s50, 4096")
        k("buffer_load_dwordx4 v4, %s, s53 offen offset:%d %s lds", s(S_WS, 4), (p % 4) * 1024, LD)
        if p == 7:
            k("s_add_u32 s49, s49, %s", src_stride)
            k("s_add_u32 s50, s50, 0x8000")
            k("s_and_b32 s50, s50, 0x1ffff")
            k("s_add_u32 s52, s52, 1")
    for i in range(2):
        for p in range(8): dma_piece(p)
    dma_piece(0); dma_piece(1)
    for j in range(n_epi_vm): k("buffer_load_dword v7, v4, %s, 0 offen", s(S_WS, 4))
    k("s_waitcnt vmcnt(%d)", 10 + n_epi_vm)
    k("s_barrier")
    for f in range(PF):
        k("ds_read_b128 %s, v5 offset:%d", v(FW + 4 * (f % NB), 4), f * 1024)
    lp = k.lab(tag + "loop")
    k.L(lp)
    k("v_add_u32 v6, 0x8000, v5")
    k("v_and_b32 v6, 0x1ffff, v6")
    for f in range(32):
        mt, ks = f // 16, f % 16
        if f == 32 - PF:
            k("s_waitcnt vmcnt(%d)", 8 + n_epi_vm)
            k("s_barrier")
            if publish: publish(k)
        g = f + PF
        if g < 32: k("ds_read_b128 %s, v5 offset:%d", v(FW + 4 * (g % NB), 4), g * 1024)
        else: k("ds_read_b128 %s, v6 offset:%d", v(FW + 4 * (g % NB), 4), (g - 32) * 1024)
        k("s_waitcnt lgkmcnt(%d)", PF)
        for t in range(2):
            acc = v(ACC + (mt * 2 + t) * 4, 4)
            wf = u(WREG + (t * 16 + ks) * 4, 4); xf = v(FW + 4 * (f % NB), 4)
            A, B = (wf, xf) if w_is_a else (xf, wf)
            k("v_mfma_f32_16x16x32_bf16 %s, %s, %s, %s", acc, A, B, "0" if ks == 0 else acc)
            if t == 0 and f % 4 == 0: dma_piece(((f + 8) // 4) % 8)
    epilogue(k, ACC)
    k("v_mov_b32 v5, v6")
    k("s_add_u32 s51, s51, 1")
    k("s_cmp_lt_u32 s51, s%d", niter_sreg)
    k("s_cbranch_scc1 %s", lp)
    k("s_waitcnt vmcnt(0) lgkmcnt(0)")

def role_qkv(k, s_idx, pre_dma=None, publish=None, pre_loop=None):
    k.c("---- QKV role")
    stamp(k, 1, 0, vt=120)
    WREG = 128
    k("s_lshr_b32 s32, s%d, 6", s_idx)
    k("s_bfe_u32 s33, s%d, 0x50001", s_idx)
    k("s_and_b32 s34, s%d, 1", s_idx)
    k("s_lshl_b32 s35, s32, 3")
    k("s_add_u32 s35, s35, 24")
    k("s_cmp_eq_u32 s32, 2")
    k("s_cselect_b32 s35, 16, s35")
    k("s_load_dwordx2 %s, s[0:1], s35", s(S_W, 2))
    k("s_lshl_b32 s36, s33, 8")
    k("s_waitcnt lgkmcnt(0)")
    fin_srd(k, 'Wq', S_W)
    stage_rows256(k, S_W, 36, 8192, 512, 8)
    frag_addr256(k, 10, 12)
    k("s_waitcnt vmcnt(0)")
    k("s_barrier")
    stamp(k, 1, 1, vt=120)
    read_frags256(k, 10, WREG)
    k("s_barrier")
    stamp(k, 1, 2, vt=120)
    k("s_lshl_b32 s37, s32, 24")
    k("s_add_u32 s37, s37, 0x%x", KIMG)
    k("s_cmp_eq_u32 s32, 2")
    k("s_cselect_b32 s37, 0x%x, s37", QIMG)
    k("s_lshl_b32 s38, s33, 13")
    k("s_add_u32 s37, s37, s38")
    k("s_lshl_b32 s38, s34, 18")
    k("s_add_u32 s37, s37, s38")
    k("s_lshl_b32 s38, s34, 15")
    if XN: k("s_add_u32 s38, s38, 0x%x", XN)
    k("s_mov_b32 s39, 32")
    if pre_loop: pre_loop(k)
    lv = k.lab("QKVv"); lend = k.lab("QKVend")
    k("s_cmp_eq_u32 s32, 1")
    k("s_cbranch_scc1 %s", lv)
    def epi_qk(k, ACC):
        for mt in range(2):
            for t in range(2):
                for h in range(2):
                    r = ACC + (mt * 2 + t) * 4 + 2 * h
                    k("v_cvt_pk_bf16_f32 %s, %s, %s", v(112 + mt * 4 + t * 2 + h), v(r), v(r + 1))
        k("buffer_store_dwordx4 v[112:115], v4, %s, s37 offen %s", s(S_WS, 4), ST)
        k("s_add_u32 s40, s37, 4096")
        k("buffer_store_dwordx4 v[116:119], v4, %s, s40 offen %s", s(S_WS, 4), ST)
        k("s_add_u32 s37, s37, 0x80000")
    k("s_lshl_b32 s40, s%d, 10", S_WAVE)
    k("s_add_u32 s37, s37, s40")
    seg_gemm_loop(k, WREG, True, 38, "0x10000", 39, epi_qk, 2, pre_dma, publish, tag="QK")
    k("s_branch %s", lend)
    k.L(lv)
    def epi_v(k, ACC):
        for t in range(2):
            for mt in range(2):
                for h in range(2):
                    r = ACC + (mt * 2 + t) * 4 + 2 * h
                    k("v_cvt_pk_bf16_f32 %s, %s, %s", v(112 + t * 4 + mt * 2 + h), v(r), v(r + 1))
        k("buffer_store_dwordx4 v[112:115], v4, %s, s37 offen %s", s(S_WS, 4), ST)
        k("buffer_store_dwordx4 v[116:119], v4, %s, s37 offen offset:1024 %s", s(S_WS, 4), ST)
        k("s_add_u32 s37, s37, 0x80000")
    k("s_lshl_b32 s40, s%d, 11", S_WAVE)
    k("s_add_u32 s37, s37, s40")
    seg_gemm_loop(k, WREG, False, 38, "0x10000", 39, epi_v, 2, pre_dma, publish, tag="V")
    k.L(lend)
    stamp(k, 1, 3, vt=120)
```

```python
from roles import *
from chain import xmax
import struct
def f2u(x): return struct.unpack('<I', struct.pack('<f', x))[0]
CSC = 0.08838834764831845 * 1.4426950408889634
def MF(d, A, B, first): return "v_mfma_f32_16x16x32_bf16 %s, %s, %s, %s" % (v(d, 4), u(A, 4), u(B, 4), "0" if first else v(d, 4))
def M16(d, A, B): return "v_mfma_f32_16x16x16_bf16 %s, %s, %s, %s" % (v(d, 4), v(A, 2), v(B, 2), v(d, 4))
def CV(d, a_, b_): return "v_cvt_pk_bf16_f32 %s, %s, %s" % (v(d), v(a_), v(b_))

def xsum(k, r, tmp):
    k("v_mov_b32 %s, %s", v(tmp), v(r))
    k("v_permlane32_swap_b32 %s, %s", v(r), v(tmp))
    k("v_add_f32 %s, %s, %s", v(r), v(r), v(tmp))
    k("v_mov_b32 %s, %s", v(tmp), v(r))
    k("v_permlane16_swap_b32 %s, %s", v(r), v(tmp))
    k("v_add_f32 %s, %s, %s", v(r), v(r), v(tmp))

def role_bc(k, s_idx, s_seg, nstride, wait_qkv=None, wait_kvm=None, publish=None):
    k.c("---- BC role")
    W = s(S_WS, 4); WREG = 256
    load_srd(k, 'Wo', S_W)
    k("s_lshr_b32 s32, s%d, 2", s_idx)
    k("s_and_b32 s33, s%d, 3", s_idx)
    k("s_lshl_b32 s36, s32, 19")
    k("s_lshl_b32 s37, s33, 8")
    k("s_add_u32 s36, s36, s37")
    k("s_waitcnt lgkmcnt(0)")
    fin_srd(k, 'Wo', S_W)
    stage_rows256(k, S_W, 36, 1024, 512, 8)
    frag_addr256(k, 10, 12)
    k("s_waitcnt vmcnt(0)")
    k("s_barrier")
    read_frags256(k, 10, WREG)
    k("s_barrier")
    QF, KF, VF, KV, XK = 16, 48, 80, 112, 128
    T, TM, P, PM, OT, FW, ACC = 144, 156, 164, 172, 180, 192, 180
    aL16, aXW, aXR, aOW, aOR = 4, 5, 6, 7, 8
    k("v_lshlrev_b32 v4, 4, v1")
    k("v_and_b32 v10, 15, v1")
    k("v_lshrrev_b32 v11, 4, v1")
    k("v_bfe_u32 v12, v1, 2, 2")
    k("v_and_b32 v13, 3, v1")
    k("s_mul_i32 s38, s%d, 5120", S_WAVE)
    k("s_add_u32 s38, s38, 65536")
    k("v_mul_u32_u24 v14, 320, v11")
    k("v_lshl_add_u32 v14, v10, 3, v14")
    k("v_add_u32 v%d, s38, v14", aXW)
    k("v_mul_u32_u24 v14, 320, v13")
    k("v_lshrrev_b32 v15, 2, v1")
    k("v_lshl_add_u32 v14, v15, 3, v14")
    k("v_add_u32 v%d, s38, v14", aXR)
    k("s_lshl_b32 s38, s%d, 12", S_WAVE)
    k("v_add_u32 v%d, s38, v4", aOW)
    k("v_mov_b32 v%d, v4", aOR)
    k("v_lshlrev_b32 v14, 2, v11")
    for j in range(4):
        k("v_add_u32 v15, %d, v14", j)
        k("v_cmp_gt_u32 %s, v15, v10", s(64 + 2 * j, 2))
    k("v_mov_b32 v9, 0xff800000")
    k("s_mov_b32 s41, 0x%x", f2u(CSC))
    k("s_lshl_b32 s34, s32, 2")
    k("s_add_u32 s34, s34, s%d", S_WAVE)
    k("s_lshl_b32 s35, s34, 13")
    k("s_lshl_b32 s39, s34, 12")
    k("s_lshl_b32 s40, s33, 2")
    k("s_add_u32 s40, s40, s%d", S_WAVE)
    k("s_lshl_b32 s40, s40, 8")
    k("s_lshl_b32 s38, s32, 13")
    k("s_add_u32 s40, s40, s38")
    k("s_add_u32 s40, s40, 0x%x", PART)
    k("v_lshlrev_b32 v184, 16, v12")
    k("v_lshl_add_u32 v184, v11, 6, v184")
    k("v_lshl_add_u32 v184, v13, 4, v184")
    k("v_add_u32 v185, 4096, v184")
    def load_qkv(sseg):
        k("s_lshl_b32 s42, s%d, 18", sseg)
        k("s_add_u32 s42, s42, s35")
        for base, R in ((QIMG, QF), (KIMG, KF), (VIMG, VF)):
            for hf in range(2):
                k("s_add_u32 s43, s42, 0x%x", base + hf * 4096)
                for i in range(4):
                    k("buffer_load_dwordx4 %s, v4, %s, s43 offen offset:%d %s", v(R + 16 * hf + 4 * i, 4), W, i * 1024, LD)
    if wait_qkv: wait_qkv(k, s_seg)
    load_qkv(s_seg)
    lp = k.lab("BCl")
    k.L(lp)
    k("s_waitcnt vmcnt(8)")
    for kb in range(4):
        k(MF(T, KF + 4 * kb, QF + 4 * kb, kb == 0))
        k(MF(T + 4, KF + 4 * kb, QF + 16 + 4 * kb, kb == 0))
        k(MF(T + 8, KF + 16 + 4 * kb, QF + 16 + 4 * kb, kb == 0))
    for j in range(4):
        k("v_cndmask_b32 %s, %s, v9, %s", v(T + j), v(T + j), s(64 + 2 * j, 2))
        k("v_cndmask_b32 %s, %s, v9, %s", v(T + 8 + j), v(T + 8 + j), s(64 + 2 * j, 2))
    MX, SM, TMP, M2, S2 = 10, 12, 14, 180, 182
    vals = [[T + j for j in range(4)], [T + 4 + j for j in range(8)]]
    for mt in range(2):
        vs = vals[mt]
        k("v_max_f32 %s, %s, %s", v(MX + mt), v(vs[0]), v(vs[1]))
        for i in range(2, len(vs), 2):
            k("v_max3_f32 %s, %s, %s, %s", v(MX + mt), v(vs[i]), v(vs[i + 1]), v(MX + mt))
    for mt in range(2): xmax(k, MX + mt, TMP + mt)
    for mt in range(2):
        k("v_mul_f32 %s, s41, %s", v(MX + mt), v(MX + mt))
        for r in vals[mt]: k("v_fma_f32 %s, %s, s41, -%s", v(r), v(r), v(MX + mt))
        for r in vals[mt]: k("v_exp_f32 %s, %s", v(r), v(r))
    for mt in range(2):
        vs = vals[mt]
        k("v_add_f32 %s, %s, %s", v(SM + mt), v(vs[0]), v(vs[1]))
        for r in vs[2:]: k("v_add_f32 %s, %s, %s", v(SM + mt), v(SM + mt), v(r))
    k("v_mov_b32 %s, 0", v(P + 2)); k("v_mov_b32 %s, 0", v(P + 3))
    for mt in range(2):
        k("v_mov_b32 %s, 0", v(PM + 4 * mt + 1)); k("v_mov_b32 %s, 0", v(PM + 4 * mt + 2))
    k("s_lshl_b32 s42, s%d, 17", s_seg)
    k("s_add_u32 s42, s42, s39")
    k("s_add_u32 s42, s42, 0x%x", KM)
    lstamp(k, 0)
    if wait_kvm: wait_kvm(k, s_seg)
    lstamp(k, 1)
    for i in range(4):
        k("buffer_load_dwordx4 %s, v4, %s, s42 offen offset:%d %s", v(KV + 4 * i, 4), W, i * 1024, LD)
    k(".aw_on")
    for i in range(4):
        k("s_waitcnt vmcnt(%d)", 3 - i)
        k("ds_write2st64_b32 v%d, %s, %s offset0:%d offset1:%d", aXW, v(KV + 4 * i), v(KV + 4 * i + 1), 5 * i, 5 * i) if False else None
        k("ds_write_b32 v%d, %s offset:%d", aXW, v(KV + 4 * i), i * 1280)
        k("ds_write_b32 v%d, %s offset:%d", aXW, v(KV + 4 * i + 1), i * 1280 + 128)
        for y in range(2):
            k("ds_read_b64_tr_b16 %s, v%d offset:%d", v(XK + 4 * i + 2 * y, 2), aXR, i * 1280 + y * 128)
    lstamp(k, 2)
    for kb in range(4):
        k(MF(TM, XK + 4 * kb, QF + 4 * kb, kb == 0))
        k(MF(TM + 4, XK + 4 * kb, QF + 16 + 4 * kb, kb == 0))
    for mt in range(2):
        k("v_mul_f32 %s, s41, %s", v(TM + 4 * mt), v(TM + 4 * mt))
        k("v_mul_f32 %s, s41, %s", v(TM + 4 * mt + 1), v(TM + 4 * mt + 1))
        k("v_max3_f32 %s, %s, %s, %s", v(M2 + mt), v(TM + 4 * mt), v(TM + 4 * mt + 1), v(MX + mt))
    def x2(op, r, tmp):
        for sw in ("v_permlane32_swap_b32", "v_permlane16_swap_b32"):
            for mt in range(2): k("v_mov_b32 %s, %s", v(tmp + mt), v(r + mt))
            for mt in range(2): k("%s %s, %s", sw, v(r + mt), v(tmp + mt))
            for mt in range(2): k("%s %s, %s, %s", op, v(r + mt), v(r + mt), v(tmp + mt))
    x2("v_max_f32", M2, TMP)
    for mt in range(2):
        k("v_sub_f32 %s, %s, %s", v(MX + mt), v(MX + mt), v(M2 + mt))
        k("v_sub_f32 %s, %s, %s", v(TM + 4 * mt), v(TM + 4 * mt), v(M2 + mt))
        k("v_sub_f32 %s, %s, %s", v(TM + 4 * mt + 1), v(TM + 4 * mt + 1), v(M2 + mt))
    for mt in range(2):
        for r in (MX + mt, TM + 4 * mt, TM + 4 * mt + 1): k("v_exp_f32 %s, %s", v(r), v(r))
    for mt in range(2):
        k("v_fma_f32 %s, %s, %s, %s", v(SM + mt), v(SM + mt), v(MX + mt), v(TM + 4 * mt))
        k("v_add_f32 %s, %s, %s", v(SM + mt), v(SM + mt), v(TM + 4 * mt + 1))
    x2("v_add_f32", SM, TMP)
    for mt in range(2): k("v_rcp_f32 %s, %s", v(SM + mt), v(SM + mt))
    for mt in range(2):
        k("v_mul_f32 %s, %s, %s", v(MX + mt), v(MX + mt), v(SM + mt))
        k("v_mul_f32 %s, %s, %s", v(TM + 4 * mt), v(TM + 4 * mt), v(SM + mt))
        k("v_mul_f32 %s, %s, %s", v(TM + 4 * mt + 1), v(TM + 4 * mt + 1), v(SM + mt))
    for mt in range(2):
        for r in vals[mt]: k("v_mul_f32 %s, %s, %s", v(r), v(r), v(MX + mt))
    k(CV(P, T, T + 1)); k(CV(P + 1, T + 2, T + 3))
    for i in range(4): k(CV(P + 4 + i, T + 4 + 2 * i, T + 5 + 2 * i))
    for mt in range(2):
        k(CV(PM + 4 * mt, TM + 4 * mt, TM + 4 * mt + 1)); k(CV(PM + 4 * mt + 3, TM + 4 * mt, TM + 4 * mt + 1))
    O = lambda wp, mt, t: FW + ((wp * 2 + mt) * 2 + t) * 4
    def pack(wp):
        out = []
        for mt in range(2):
            o0 = O(wp, mt, 0)
            out += [CV(o0 + i, o0 + 2 * i, o0 + 2 * i + 1) for i in range(4)]
            out += ["ds_write_b128 v%d, %s offset:%d" % (aOW, v(o0, 4), mt * 16384 + wp * 1024)]
        return out
    pend = []
    for wp in range(4):
        ms = [MF(O(wp, mt, t), VF + 4 * (2 * wp + t), P + 4 * mt, True) for mt in range(2) for t in range(2)] + \
             [M16(O(wp, mt, t), KV + 4 * wp + 2, PM + 4 * mt + 2 * t) for mt in range(2) for t in range(2)]
        for mi, m_ in enumerate(ms):
            k(m_)
            if mi >= 2:
                for _ in range(2):
                    if pend: k(pend.pop(0))
        pend = pack(wp)
    for x in pend: k(x)
    k("s_add_u32 s44, s%d, %d", s_seg, nstride)
    lnw = k.lab("BCnw")
    k("s_cmp_ge_u32 s44, 64")
    k("s_cbranch_scc1 %s", lnw)
    if wait_qkv: wait_qkv(k, 44)
    load_qkv(44)
    k.L(lnw)
    k(".aw_writes")
    k("s_barrier")
    lstamp(k, 3)
    PF = 8
    AC = T
    for f in range(PF): k("ds_read_b128 %s, v%d offset:%d", v(FW + 4 * (f % 16), 4), aOR, f * 1024)
    for f in range(32):
        mt, ks = f // 16, f % 16
        if f + PF < 32: k("ds_read_b128 %s, v%d offset:%d", v(FW + 4 * ((f + PF) % 16), 4), aOR, (f + PF) * 1024)
        for t in range(2): k(MF(AC + (mt * 2 + t) * 4, WREG + (t * 16 + ks) * 4, FW + 4 * (f % 16), ks == 0))
        if f == 20:
            k("s_lshl_b32 s42, s%d, 19", s_seg)
            k("s_add_u32 s42, s42, s40")
            for t in range(2): k("buffer_store_dwordx4 %s, v%d, %s, s42 offen %s", v(AC + 4 * t, 4), 184 + t, W, ST)
    k(".aw_off")
    k("s_add_u32 s42, s42, 0x40000")
    for t in range(2): k("buffer_store_dwordx4 %s, v%d, %s, s42 offen %s", v(AC + 8 + 4 * t, 4), 184 + t, W, ST)
    k("v_xor_b32 v%d, 0x8000, v%d", aOW, aOW)
    k("v_xor_b32 v%d, 0x8000, v%d", aOR, aOR)
    lstamp(k, 4)
    if publish: publish(k, s_seg)
    lstamp(k, 5)
    k("s_mov_b32 s%d, s44", s_seg)
    k("s_cmp_lt_u32 s%d, 64", s_seg)
    k("s_cbranch_scc1 %s", lp)

def role_red(k, s_tq, s_seg, nstride, wait=None, publish=None):
    k.c("---- R role")
    W = s(S_WS, 4)
    k("v_and_b32 v10, 3, v1")
    k("v_bfe_u32 v11, v1, 2, 2")
    k("v_lshrrev_b32 v12, 4, v1")
    k("s_lshl_b32 s32, s%d, 2", S_WAVE)
    k("v_add_u32 v12, s32, v12")
    k("s_and_b32 s33, s%d, 3", s_tq)
    k("s_lshl_b32 s33, s33, 2")
    k("v_add_u32 v13, s33, v10")
    k("v_lshl_add_u32 v14, v11, 4, v13")
    k("v_lshlrev_b32 v14, 4, v14")
    k("v_lshlrev_b32 v4, 4, v0")
    k("v_add_u32 v9, 4096, v4")
    k("v_lshl_add_u32 v5, v12, 10, v14")
    k("v_lshlrev_b32 v6, 10, v13")
    k("v_lshl_add_u32 v6, v12, 6, v6")
    k("v_lshl_add_u32 v6, v11, 4, v6")
    k("s_lshr_b32 s34, s%d, 2", s_tq)
    k("s_lshl_b32 s35, s%d, 16", s_tq)
    k("s_add_u32 s35, s35, 0x%x", PART)
    k("s_lshl_b32 s36, s34, 14")
    k("s_lshl_b32 s37, s%d, 5", S_WAVE)
    k("v_lshlrev_b32 v8, 3, v10")
    k("v_add_u32 v7, s37, v8")
    lp = k.lab("Rl")
    k.L(lp)
    k("s_lshl_b32 s39, s%d, 15", s_seg)
    k("s_add_u32 s39, s39, s36")
    k("buffer_load_dwordx4 v[16:19], v6, %s, s39 offen", s(S_X, 4))
    lstamp(k, 0)
    if wait: wait(k, s_seg)
    lstamp(k, 1)
    k("s_lshl_b32 s38, s%d, 19", s_seg)
    k("s_add_u32 s38, s38, s35")
    PB = 32
    for hg in range(8):
        for t in range(2):
            k("buffer_load_dwordx4 %s, v%d, %s, s38 offen %s", v(PB + 8 * hg + 4 * t, 4), 9 if t else 4, W, LD)
        if hg < 7: k("s_add_u32 s38, s38, 8192")
    X = 20
    k("s_waitcnt vmcnt(16)")
    for j in range(4):
        k("v_lshlrev_b32 %s, 16, %s", v(X + 2 * j), v(16 + j))
        k("v_and_b32 %s, 0xffff0000, %s", v(X + 2 * j + 1), v(16 + j))
    for hg in range(1, 8):
        k("s_waitcnt vmcnt(%d)", 14 - 2 * hg)
        for i in range(8): k("v_add_f32 %s, %s, %s", v(PB + i), v(PB + i), v(PB + 8 * hg + i))
    lstamp(k, 2)
    H = 40
    for i in range(0, 8, 2):
        k(CV(28, PB + i, PB + i + 1))
        k("v_lshlrev_b32 v29, 16, v28")
        k("v_and_b32 v28, 0xffff0000, v28")
        k("v_add_f32 %s, %s, v29", v(X + i), v(X + i))
        k("v_add_f32 %s, %s, v28", v(X + i + 1), v(X + i + 1))
        k(CV(H + i // 2, X + i, X + i + 1))
        k("v_lshlrev_b32 %s, 16, %s", v(X + i), v(H + i // 2))
        k("v_and_b32 %s, 0xffff0000, %s", v(X + i + 1), v(H + i // 2))
    k("s_add_u32 s38, s39, 0x%x", HIMG)
    k("buffer_store_dwordx4 %s, v5, %s, s38 offen %s", v(H, 4), W, ST)
    def red16(r, tmp):
        for sh in (4, 8): k("v_add_f32_dpp %s, %s, %s row_ror:%d row_mask:0xf bank_mask:0xf", v(r), v(r), v(r), sh)
        xsum(k, r, tmp)
    k("v_add_f32 v44, %s, %s", v(X), v(X + 1))
    for i in range(2, 8): k("v_add_f32 v44, v44, %s", v(X + i))
    red16(44, 46)
    k("v_mul_f32 v44, 0x3c000000, v44")
    k("v_mov_b32 v45, 0")
    for i in range(8):
        k("v_sub_f32 v46, %s, v44", v(X + i))
        k("v_fmac_f32 v45, v46, v46")
    red16(45, 46)
    k("ds_write_b64 v7, v[44:45]")
    k("s_waitcnt lgkmcnt(0)")
    k("s_barrier")
    for w in range(4): k("ds_read_b64 %s, v8 offset:%d", v(48 + 2 * w, 2), 32 * w)
    k("v_xor_b32 v7, 128, v7")
    k("v_xor_b32 v8, 128, v8")
    k("s_waitcnt lgkmcnt(0)")
    k("v_add_f32 v44, v48, v50"); k("v_add_f32 v46, v52, v54"); k("v_add_f32 v44, v44, v46")
    k("v_mul_f32 v44, 0.25, v44")
    k("v_add_f32 v45, v49, v51"); k("v_add_f32 v46, v53, v55"); k("v_add_f32 v45, v45, v46")
    k("v_mov_b32 v47, 0")
    for w in range(4):
        k("v_sub_f32 v46, %s, v44", v(48 + 2 * w))
        k("v_fmac_f32 v47, v46, v46")
    k("v_mul_f32 v47, 0x43000000, v47")
    k("v_add_f32 v45, v45, v47")
    k("v_mul_f32 v45, 0x3b000000, v45")
    ln_finish(k, X, 8, 44, 45, 46, 47, 56)
    k("s_add_u32 s38, s39, 0x%x", HNIMG)
    k("buffer_store_dwordx4 v[56:59], v5, %s, s38 offen %s", W, ST)
    lstamp(k, 4)
    if publish: publish(k, s_seg)
    lstamp(k, 5)
    k("s_add_u32 s%d, s%d, %d", s_seg, s_seg, nstride)
    k("s_cmp_lt_u32 s%d, 64", s_seg)
    k("s_cbranch_scc1 %s", lp)

def role_up(k, s_u, s_seg, nstride, niter_sreg, pre_dma=None, publish=None, wait=None):
    k.c("---- U role")
    W = s(S_WS, 4); WREG = 128
    load_srd(k, 'w1', S_W); load_srd(k, 'w3', S_X)
    k("v_lshrrev_b32 v8, 3, v1")
    k("s_mov_b32 s32, 2752")
    k("v_mul_lo_u32 v8, v8, s32")
    k("v_and_b32 v9, 7, v1")
    k("v_lshl_add_u32 v8, v9, 4, v8")
    k("s_lshl_b32 s33, s%d, 7", s_u)
    k("s_mul_i32 s34, s%d, %d", S_WAVE, 8 * 2752)
    k("s_add_u32 s33, s33, s34")
    k("v_add_u32 v8, s33, v8")
    k("s_lshl_b32 s35, s%d, 10", S_WAVE)
    k("s_waitcnt lgkmcnt(0)")
    fin_srd(k, 'w1', S_W); fin_srd(k, 'w3', S_X)
    for i in range(16):
        k("s_add_u32 m0, s35, %d", i * 4096)
        k("buffer_load_dwordx4 v8, %s, 0 offen lds", s(S_W, 4))
        k("s_add_u32 m0, s35, %d", 65536 + i * 4096)
        k("buffer_load_dwordx4 v8, %s, 0 offen lds", s(S_X, 4))
        if i < 15: k("v_add_u32 v8, %d, v8", 32 * 2752)
    WREG = 256
    k("v_lshrrev_b32 v10, 4, v1")
    k("v_bfe_u32 v12, v1, 2, 2")
    k("v_lshl_add_u32 v10, v10, 3, v12")
    k("v_lshlrev_b32 v10, 7, v10")
    k("v_and_b32 v12, 3, v1")
    k("v_lshl_add_u32 v10, v12, 4, v10")
    k("s_lshr_b32 s36, s%d, 1", S_WAVE)
    k("s_lshl_b32 s37, s36, 6")
    k("v_add_u32 v10, s37, v10")
    k("v_add_u32 v11, 0x10000, v10")
    k("s_waitcnt vmcnt(0)")
    k("s_barrier")
    for ks in range(16):
        for m in range(2):
            for hf in range(2):
                for y in range(2):
                    k("ds_read_b64_tr_b16 %s, v%d offset:%d", u(WREG + ((m * 2 + hf) * 16 + ks) * 4 + 2 * y, 2), 10 + m, ks * 4096 + y * 512 + 8 * hf)
        k("s_waitcnt lgkmcnt(4)")
    k("s_waitcnt lgkmcnt(0)")
    k("s_barrier")
    k("s_and_b32 s37, s%d, 1", S_WAVE)
    k("s_lshl_b32 s39, s%d, 1", s_u)
    k("s_add_u32 s39, s39, s36")
    k("v_lshlrev_b32 v4, 4, v1")
    k("s_cmp_lt_u32 s39, 43")
    k("s_cselect_b32 s40, 0, 0x40000000")
    k("v_add_u32 v12, s40, v4")
    k("s_lshl_b32 s39, s39, 10")
    k("s_mul_i32 s40, s%d, 88064", s_seg)
    k("s_add_u32 s39, s39, s40")
    k("s_mul_i32 s40, s37, 44032")
    k("s_add_u32 s39, s39, s40")
    k("s_add_u32 s39, s39, 0x%x", ACT)
    k("s_lshl_b32 s38, s%d, 15", s_seg)
    k("s_add_u32 s38, s38, 0x%x", HNIMG)
    k("s_mov_b32 s41, 0xbfb8aa3b")
    k("s_lshl_b32 s40, s37, 14")
    k("v_add_u32 v5, s40, v4")
    k("s_lshl_b32 s48, s36, 10")
    k("s_add_u32 s48, s48, s40")
    k("s_add_u32 s38, s38, s48")
    lp = k.lab("Ul")
    k.L(lp)
    lstamp(k, 0)
    if wait: wait(k, s_seg)
    lstamp(k, 1)
    for i in range(8):
        k("s_add_u32 m0, s48, %d", i * 2048)
        k("s_add_u32 s49, s38, %d", i * 2048)
        k("buffer_load_dwordx4 v4, %s, s49 offen %s lds", W, LD)
    FW = 16; AC = 80
    k(".aw_on")
    for half in range(2):
        k("s_waitcnt vmcnt(%d)", 4 - 4 * half)
        k("s_barrier")
        lstamp(k, 2 + half)
        for f in range(8): k("ds_read_b128 %s, v5 offset:%d", v(FW + 4 * (half * 8 + f), 4), (half * 8 + f) * 1024)
        for f in range(half * 8, half * 8 + 8):
            for q in range(4): k(MF(AC + 4 * q, WREG + (q * 16 + f) * 4, FW + 4 * f, f == 0))
    k(".aw_off")
    g0 = AC; u0 = AC + 8; TT = 96
    for r in range(AC, AC + 16, 2):
        k(CV(TT, r, r + 1))
        k("v_lshlrev_b32 %s, 16, %s", v(r), v(TT))
        k("v_and_b32 %s, 0xffff0000, %s", v(r + 1), v(TT))
    for j in range(8): k("v_mul_f32 %s, s41, %s", v(TT + j), v(g0 + j))
    for j in range(8): k("v_exp_f32 %s, %s", v(TT + j), v(TT + j))
    for j in range(8): k("v_add_f32 %s, 1.0, %s", v(TT + j), v(TT + j))
    for j in range(8): k("v_rcp_f32 %s, %s", v(TT + j), v(TT + j))
    for j in range(8): k("v_mul_f32 %s, %s, %s", v(g0 + j), v(g0 + j), v(TT + j))
    for r in range(g0, g0 + 8, 2):
        k(CV(TT, r, r + 1))
        k("v_lshlrev_b32 %s, 16, %s", v(r), v(TT))
        k("v_and_b32 %s, 0xffff0000, %s", v(r + 1), v(TT))
    for j in range(8): k("v_mul_f32 %s, %s, %s", v(g0 + j), v(g0 + j), v(u0 + j))
    for j in range(4): k(CV(TT + j, g0 + 2 * j, g0 + 2 * j + 1))
    k("buffer_store_dwordx4 %s, v12, %s, s39 offen %s", v(TT, 4), W, ST)
    k("s_add_u32 s39, s39, %d", 88064 * nstride)
    k("s_add_u32 s38, s38, %d", 32768 * nstride)
    lstamp(k, 4)
    if publish: publish(k, s_seg)
    lstamp(k, 5)
    k("s_add_u32 s%d, s%d, %d", s_seg, s_seg, nstride)
    k("s_cmp_lt_u32 s%d, 64", s_seg)
    k("s_cbranch_scc1 %s", lp)

def role_dn(k, s_dn, s_seg, nstride, wait=None):
    k.c("---- Dn role")
    W = s(S_WS, 4); WREG = 256
    load_srd(k, 'w2', S_W)
    k("v_lshrrev_b32 v8, 2, v1")
    k("v_lshlrev_b32 v8, 10, v8")
    k("v_and_b32 v9, 3, v1")
    k("v_lshl_add_u32 v8, v9, 4, v8")
    k("s_mul_i32 s32, s%d, %d", S_WAVE, 352 * 1024)
    k("s_lshl_b32 s33, s%d, 6", s_dn)
    k("s_add_u32 s32, s32, s33")
    k("v_add_u32 v8, s32, v8")
    k("s_mul_i32 s35, s%d, 22528", S_WAVE)
    k("s_waitcnt lgkmcnt(0)")
    fin_srd(k, 'w2', S_W)
    for i in range(22):
        k("s_add_u32 m0, s35, %d", i * 1024)
        k("buffer_load_dwordx4 v8, %s, 0 offen lds", s(S_W, 4))
        if i < 21: k("v_add_u32 v8, 16384, v8")
    k("v_lshrrev_b32 v11, 4, v1")
    k("v_bfe_u32 v12, v1, 2, 2")
    k("v_lshl_add_u32 v10, v11, 3, v12")
    k("v_lshlrev_b32 v10, 6, v10")
    k("v_lshl_add_u32 v10, v9, 4, v10")
    k("v_add_u32 v10, s35, v10")
    k("s_waitcnt vmcnt(0)")
    for ks in range(11):
        for t in range(2):
            for y in range(2):
                k("ds_read_b64_tr_b16 %s, v10 offset:%d", u(WREG + (t * 11 + ks) * 4 + 2 * y, 2), ks * 2048 + y * 256 + 8 * t)
        if ks % 3 == 2: k("s_waitcnt lgkmcnt(4)")
    k("s_waitcnt lgkmcnt(0)")
    k("s_barrier")
    k("v_lshlrev_b32 v4, 4, v1")
    k("s_cmp_eq_u32 s%d, 3", S_WAVE)
    k("s_cselect_b32 s36, 0x40000000, 0")
    k("v_add_u32 v5, s36, v4")
    k("s_mul_i32 s36, s%d, 11264", S_WAVE)
    k("s_add_u32 s36, s36, 0x%x", ACT)
    k("s_lshl_b32 s37, s%d, 12", S_WAVE)
    k("v_add_u32 v6, s37, v4")
    k("s_and_b32 s38, s%d, 1", S_WAVE)
    k("s_lshl_b32 s37, s38, 11")
    k("v_add_u32 v7, s37, v4")
    k("s_lshl_b32 s39, s38, 14")
    k("s_lshl_b32 s40, s%d, 10", s_dn)
    k("s_add_u32 s40, s40, s39")
    k("s_add_u32 s40, s40, 0x%x", HIMG)
    k("s_add_u32 s39, s39, s33")
    k("v_and_b32 v12, 15, v1")
    k("v_lshlrev_b32 v12, 10, v12")
    k("v_lshl_add_u32 v12, v11, 4, v12")
    AF = 32; AC = 16
    lp = k.lab("Dl"); lsk = k.lab("Dsk")
    k.L(lp)
    lstamp(k, 0)
    if wait: wait(k, s_seg)
    lstamp(k, 1)
    k("s_mul_i32 s41, s%d, 88064", s_seg)
    k("s_add_u32 s41, s41, s36")
    for mt in range(2):
        for ks in range(11):
            if ks % 4 == 0: k("s_add_u32 s42, s41, %d", mt * 44032 + ks * 1024)
            k("buffer_load_dwordx4 %s, v%d, %s, s42 offen offset:%d %s", v(AF + (mt * 11 + ks) * 4, 4), 5 if ks == 10 else 4, W, (ks % 4) * 1024, LD)
    k("s_lshl_b32 s43, s%d, 15", s_seg)
    k("s_add_u32 s42, s43, s40")
    k("buffer_load_dwordx4 v[120:123], v4, %s, s42 offen %s", W, LD)
    for mt in range(2):
        for ks in range(11):
            k("s_waitcnt vmcnt(%d)", 22 - (mt * 11 + ks))
            for t in range(2): k(MF(AC + (mt * 2 + t) * 4, WREG + (t * 11 + ks) * 4, AF + (mt * 11 + ks) * 4, ks == 0))
    lstamp(k, 2)
    for i in range(4): k("ds_write_b128 v6, %s offset:%d", v(AC + 4 * i, 4), i * 1024)
    k("s_waitcnt lgkmcnt(0)")
    k("s_barrier")
    k("s_cmp_ge_u32 s%d, 2", S_WAVE)
    k("s_cbranch_scc1 %s", lsk)
    for w in range(4):
        for t in range(2): k("ds_read_b128 %s, v7 offset:%d", v(AF + 8 * w + 4 * t, 4), w * 4096 + t * 1024)
    k("s_waitcnt vmcnt(0)")
    for j in range(4):
        k("v_lshlrev_b32 %s, 16, %s", v(72 + 2 * j), v(120 + j))
        k("v_and_b32 %s, 0xffff0000, %s", v(73 + 2 * j), v(120 + j))
    k("s_waitcnt lgkmcnt(0)")
    for i in range(8):
        k("v_add_f32 %s, %s, %s", v(AF + i), v(AF + i), v(AF + 8 + i))
        k("v_add_f32 %s, %s, %s", v(AF + 16 + i), v(AF + 16 + i), v(AF + 24 + i))
        k("v_add_f32 %s, %s, %s", v(AF + i), v(AF + i), v(AF + 16 + i))
    for i in range(0, 8, 2):
        k(CV(80, AF + i, AF + i + 1))
        k("v_lshlrev_b32 v81, 16, v80")
        k("v_and_b32 v80, 0xffff0000, v80")
        k("v_add_f32 %s, %s, v81", v(72 + i), v(72 + i))
        k("v_add_f32 %s, %s, v80", v(73 + i), v(73 + i))
        k(CV(84 + i // 2, 72 + i, 73 + i))
    k("s_add_u32 s42, s43, s39")
    k("buffer_store_dwordx4 v[84:87], v12, %s, s42 offen", s(S_O, 4))
    k.L(lsk)
    lstamp(k, 4)
    k("v_xor_b32 v6, 0x4000, v6")
    k("v_xor_b32 v7, 0x4000, v7")
    k("s_add_u32 s%d, s%d, %d", s_seg, s_seg, nstride)
    k("s_cmp_lt_u32 s%d, 64", s_seg)
    k("s_waitcnt vmcnt(0)")
    k("s_cbranch_scc1 %s", lp)
```

```python
import sys, json
from build_v1 import header_comments
from chain10 import *
from roles2 import *
KN = NAME + "_kernel"
def build(opts={}, stamps=False, ticks=False):
    k = K(); k.stamps = stamps; k.ticks = ticks; k.copt = opts; k.merged = True
    kernel_header(k, KN)
    lend = k.lab("END")
    lstamp(k, 6)
    k("s_cmp_ge_u32 s2, 256")
    k("s_cbranch_scc1 %s", lend)
    srds = [('ws', S_WS), ('dbg', S_DBG), ('x', S_X), ('out', S_O)]
    for n, r in srds: load_srd(k, n, r)
    lane_wave(k)
    k("s_mov_b32 s%d, 400000", S_SPIN)
    k("s_waitcnt lgkmcnt(0)")
    for n, r in srds: fin_srd(k, n, r)
    lz = k.lab("Z")
    k("s_cmp_lg_u32 s2, 0")
    k("s_cbranch_scc1 %s", lz)
    k("s_cmp_lg_u32 s%d, 1", S_WAVE)
    k("s_cbranch_scc1 %s", lz)
    for i in range(4): k("v_mov_b32 v%d, 0", 4 + i)
    k("v_lshlrev_b32 v8, 4, v1")
    k("s_mov_b32 s40, 0x%x", FLAGS)
    for i in range(2): k("buffer_store_dwordx4 v[4:7], v8, %s, s40 offen offset:%d sc1", s(S_WS, 4), i * 1024)
    k("v_lshlrev_b32 v8, 7, v1")
    for i in range(7):
        k("s_mov_b32 s40, 0x%x", FLAGS + 0x2000 + i * 0x2000)
        k("buffer_store_dwordx4 v[4:7], v8, %s, s40 offen sc1", s(S_WS, 4))
    k("v_mov_b32 v9, 1")
    k("s_waitcnt vmcnt(0)")
    k("s_mov_b64 exec, 1")
    k("buffer_store_dword v9, v4, %s, 0 offen offset:%d sc1", s(S_DBG, 4), DBG_READY)
    k("s_mov_b64 exec, -1")
    k.L(lz)
    ROLE = 5
    elect(k, ROLE)
    lw = k.lab("WORK")
    k("s_cmp_ge_u32 s%d, 32", ROLE)
    k("s_cbranch_scc1 %s", lw)
    role_chain(k, opts.get('slow', False))
    lstamp_dump(k, ROLE)
    k("s_branch %s", lend)
    k.L(lw)
    k("s_cmp_ge_u32 s%d, 256", ROLE)
    k("s_cbranch_scc1 %s", lend)
    stamp(k, 3, 0, wgreg=ROLE, vt=120)
    GRP, TK_, SEG, FO, FI = 54, 55, 7, 56, 57
    k("s_lshr_b32 s%d, s%d, 5", GRP, ROLE)
    k("s_and_b32 s%d, s%d, 31", TK_, ROLE)
    lq = k.lab("DOQKV"); l2 = k.lab("ROLE2")
    k("s_cmp_ge_u32 s%d, 2", GRP)
    k("s_cbranch_scc1 %s", lq)
    k("s_lshl_b32 s%d, s%d, 2", FO, TK_)
    k("s_add_u32 s%d, s%d, 0x%x", FO, FO, FLAGS + F_XN)
    def ln_after(k, scount):
        ls = k.lab("LNs")
        k("s_cmp_lg_u32 s%d, 1", scount)
        k("s_cbranch_scc1 %s", ls)
        wait_ready(k, 2)
        k.L(ls)
        set_flag(k, FO, "s%d" % scount, 2)
    role_ln1(k, TK_, 4, ln_after)
    k("s_branch %s", l2)
    k.L(lq)
    k("s_sub_u32 s58, s%d, 64", ROLE)
    def pre_loop(k):
        wait_ready(k, 2)
        k("v_and_b32 v8, 31, v1")
        k("v_lshlrev_b32 v8, 2, v8")
        k("s_mov_b32 s%d, 0x%x", FI, FLAGS + F_XN)
        k("s_mov_b32 s%d, 0", SEG)
        wait_flags(k, 8, FI, SEG, 2)
        k("s_lshl_b32 s%d, s32, 1", FO)
        k("s_add_u32 s%d, s%d, s34", FO, FO)
        k("s_lshl_b32 s%d, s%d, 2", FO, FO)
        k("s_lshl_b32 s40, s33, 5")
        k("s_add_u32 s%d, s%d, s40", FO, FO)
        k("s_add_u32 s%d, s%d, 0x%x", FO, FO, FLAGS + F_QF)
        k("s_sub_u32 s%d, s34, 3", SEG)
    def q_publish(k):
        k("s_max_i32 s40, s%d, 0", SEG)
        set_flag(k, FO, "s40", 2, drain=False)
        k("s_add_u32 s%d, s%d, 2", SEG, SEG)
    def q_pre_dma(k):
        ls = k.lab("QPd")
        k("s_cmp_lg_u32 s52, 8")
        k("s_cbranch_scc1 %s", ls)
        k("s_mov_b32 s58, 3")
        wait_flags(k, 8, FI, 58, 2)
        k.L(ls)
    if opts.get('qdelay'):
        lqd = k.lab("QD"); lqo = k.lab("QDo")
        k("s_cmp_lt_u32 s58, 128")
        k("s_cbranch_scc1 %s", lqo)
        k("v_mov_b32 v3, 0"); k("s_mov_b32 s59, 0")
        k.L(lqd)
        k("buffer_load_dword v2, v3, %s, 0 offen offset:64 sc1", s(S_DBG, 4))
        k("s_waitcnt vmcnt(0)")
        k("v_readfirstlane_b32 s40, v2")
        k("s_and_b32 s40, s40, 0xffff")
        k("s_cmp_ge_u32 s40, 32")
        k("s_cbranch_scc1 %s", lqo)
        k("s_sleep 16")
        k("s_add_u32 s59, s59, 1")
        k("s_cmp_lt_u32 s59, 20000")
        k("s_cbranch_scc1 %s", lqd)
        k.L(lqo)
    role_qkv(k, 58, q_pre_dma, q_publish, pre_loop)
    set_flag(k, FO, "0x80", 2)
    k.L(l2)
    stamp(k, 3, 1, wgreg=ROLE, vt=120)
    k("s_waitcnt vmcnt(0)")
    k("s_barrier")
    lur = k.lab("UR"); ldn = k.lab("DN"); lrd = k.lab("RD"); lfin = k.lab("FIN")
    k("s_cmp_ge_u32 s%d, 4", GRP)
    k("s_cbranch_scc1 %s", lur)
    k("s_sub_u32 s%d, s%d, 1", SEG, GRP)
    k("s_lshl_b32 s%d, s%d, 12", FO, SEG)
    k("s_lshl_b32 s40, s%d, 7", TK_)
    k("s_add_u32 s%d, s%d, s40", FO, FO)
    k("s_add_u32 s%d, s%d, 0x%x", FO, FO, FLAGS + F_BF)
    def wait_qkv(k, sseg):
        lsk = k.lab("wq")
        k("s_cmp_lt_u32 s%d, s72", sseg)
        k("s_cbranch_scc1 %s", lsk)
        k("v_min_u32 v3, 5, v1")
        k("v_lshlrev_b32 v3, 2, v3")
        k("s_lshl_b32 s%d, s34, 5", FI)
        k("s_add_u32 s%d, s%d, 0x%x", FI, FI, FLAGS + F_QF)
        wait_flags(k, 3, FI, sseg, 2)
        k("v_cmp_gt_u32 vcc, 0x80, v2")
        k("s_cmp_eq_u64 vcc, 0")
        k("s_cselect_b32 s72, 64, 0")
        k.L(lsk)
        return
        k("v_min_u32 v3, 2, v1")
        k("v_lshlrev_b32 v3, 3, v3")
        k("s_and_b32 s%d, s%d, 1", FI, sseg)
        k("s_lshl_b32 s%d, s%d, 2", FI, FI)
        k("s_lshl_b32 s58, s34, 5")
        k("s_add_u32 s%d, s%d, s58", FI, FI)
        k("s_add_u32 s%d, s%d, 0x%x", FI, FI, FLAGS + F_QF)
        wait_flags(k, 3, FI, sseg, 2)
    def wait_kvm(k, sseg):
        k("v_and_b32 v3, 3, v1")
        k("v_lshlrev_b32 v3, 7, v3")
        k("s_lshl_b32 s%d, s34, 9", FI)
        k("s_add_u32 s%d, s%d, 0x%x", FI, FI, FLAGS + F_KF)
        wait_flags(k, 3, FI, sseg, 2)
    def publish(k, sseg):
        k("s_add_u32 s58, s%d, 1", sseg)
        set_flag(k, FO, "s58", 2)
    k("s_mov_b32 s72, 0")
    role_bc(k, TK_, SEG, 3, wait_qkv, wait_kvm, publish)
    k("s_branch %s", lfin)
    k.L(lur)
    k("s_cmp_eq_u32 s%d, 7", GRP)
    k("s_cbranch_scc1 %s", ldn)
    k("s_sub_u32 s%d, s%d, 4", SEG, GRP)
    k("s_lshl_b32 s%d, s%d, 12", FI, SEG)
    k("s_cmp_ge_u32 s%d, 22", TK_)
    k("s_cbranch_scc1 %s", lrd)
    k("s_lshl_b32 s40, s%d, 7", TK_)
    k("s_add_u32 s%d, s%d, s40", FO, FI)
    k("s_add_u32 s%d, s%d, 0x%x", FO, FO, FLAGS + F_UF)
    k("s_add_u32 s%d, s%d, 0x%x", FI, FI, FLAGS + F_RF)
    k("v_and_b32 v13, 7, v1")
    k("v_lshlrev_b32 v13, 7, v13")
    role_up(k, TK_, SEG, 3, None, None, publish, lambda k, sseg: wait_flags(k, 13, FI, sseg, 2, wave0=True))
    k("s_branch %s", lfin)
    k.L(lrd)
    k("s_cmp_ge_u32 s%d, 30", TK_)
    k("s_cbranch_scc1 %s", lfin)
    k("s_sub_u32 s%d, s%d, 22", TK_, TK_)
    k("s_lshl_b32 s40, s%d, 7", TK_)
    k("s_add_u32 s%d, s%d, s40", FO, FI)
    k("s_add_u32 s%d, s%d, 0x%x", FO, FO, FLAGS + F_RF)
    k("s_add_u32 s%d, s%d, 0x%x", FI, FI, FLAGS + F_BF)
    k("v_and_b32 v15, 31, v1")
    k("v_lshlrev_b32 v15, 7, v15")
    role_red(k, TK_, SEG, 3, lambda k, sseg: wait_flags(k, 15, FI, sseg, 2, wave0=True), publish)
    k("s_branch %s", lfin)
    k.L(ldn)
    k("s_lshr_b32 s%d, s%d, 4", SEG, TK_)
    k("s_and_b32 s%d, s%d, 15", TK_, TK_)
    k("v_min_u32 v13, 21, v1")
    k("v_lshlrev_b32 v13, 7, v13")
    def wait_up(k, sseg):
        k("s_mul_i32 s58, s%d, 43", sseg)
        k("s_lshr_b32 s58, s58, 7")
        k("s_mul_i32 s58, s58, 3")
        k("s_sub_u32 s58, s%d, s58", sseg)
        k("s_lshl_b32 s%d, s58, 12", FI)
        k("s_add_u32 s%d, s%d, 0x%x", FI, FI, FLAGS + F_UF)
        wait_flags(k, 13, FI, sseg, 2, wave0=True)
    role_dn(k, TK_, SEG, 2, wait_up)
    k.L(lfin)
    stamp(k, 3, 2, wgreg=ROLE, vt=120)
    lstamp_dump(k, ROLE)
    k.L(lend)
    k("s_endpgm")
    body = insert_nops(auto_wait(k.lines))
    hdr = header_comments([])
    hdr.append('; @launch grid=(256,1,1) block=(256,1,1) lds=163840')
    return '\n'.join(hdr) + '\n.amdgcn_target "amdgcn-amd-amdhsa--gfx950"\n.text\n' + '\n'.join(body) + \
        '\n.section .rodata,"a"\n.p2align 6\n' + kernel_desc(KN)
if __name__ == '__main__':
    o = {"p0": 48, "p1": 24, "w1": 14, "b0": 6, "p2": [30, 30], "w2": 14, "ns1": 0, "ns2": 0, "lazy": 1}
    if len(sys.argv) > 1: o.update(json.loads(sys.argv[1]))
    open('m.s', 'w').write(build(o))
    open('ms.s', 'w').write(build(o, stamps=True))
```

```python
from roles import *
import struct
def f2u(x): return struct.unpack('<I', struct.pack('<f', x))[0]

L_KT = 131072
L_MB = L_KT + 16384
L_XB = L_MB + 8192
L_OB = L_XB + 5120
L_MISC_ = L_OB + 2560
WQ, WK, WO = 256, 384, 128
aM = [2, 3, 4, 5]; aXW = 6; aXR = 7; aOW = 8; aWV = 9; aKT = 10; aL16 = 11
aH1S = 12; aWO = 13; aH1L = 11; aH2S = 14; IDX = 15
KVM = 16
SEL = 20
VTN = 24
MA = 32; AQ = 64; AK = 72; AV = 80; G = 88; VT = 120
S_HEAD = 5; S_LIM = 6; S_STEP = 7
S_WQ, S_WK, S_WV, S_WO = 12, 16, 20, 28
sH1S0, sH1S1, sH1L, sH2S, sH2L = 32, 33, 34, 35, 36
sKV = 37; sKTD = 38; sKM = 39; sVIM = 40; sC = 41; sCNT = 42; sT = 43
sH1R = 50; sH2R = 51; sMASK = 52
sPH = 50; sTHR = 49; sSAFE = 55; sQF = 46; sKF = 47; aFL = 0; aFL4 = 0
CSC = 0.08838834764831845 * 1.4426950408889634
VORD = [0, 2, 4, 6, 1, 3, 5, 7]
CT = MA

from chain import elect, xmax
def tick(k, i):
    if getattr(k, 'ticks', False): k("s_memtime s[%d:%d]", 64 + 2 * i, 65 + 2 * i)
def tick_init(k):
    if not getattr(k, 'ticks', False): return
    for i in range(96, 100): k("s_mov_b32 s%d, 0", i)
def tick_step_end(k):
    if not getattr(k, 'ticks', False): return
    l = k.lab("tse")
    k("s_cmp_lg_u32 s%d, %d", S_STEP, k.copt.get('tstep', 41))
    k("s_cbranch_scc1 %s", l)
    k("s_waitcnt vmcnt(0) lgkmcnt(0)")
    k("s_lshl_b32 s100, s%d, 2", S_HEAD)
    k("s_add_u32 s100, s100, s%d", S_WAVE)
    k("s_lshl_b32 s100, s100, 7")
    k("s_add_u32 s100, s100, 0x%x", TS + 8 * 65536)
    k("v_mov_b32 v41, 0")
    for i in range(16):
        k("v_mov_b32 v40, s%d", 64 + 2 * i)
        k("buffer_store_dword v40, v41, %s, s100 offen offset:%d", s(S_WS, 4), 4 * i)
    for e in range(2):
        lw = k.lab("cal")
        k("s_memrealtime s[64:65]")
        k("s_waitcnt lgkmcnt(0)")
        if e: k("s_add_u32 s64, s64, 100")
        k.L(lw)
        k("s_memrealtime s[66:67]")
        k("s_memtime s[68:69]")
        k("s_waitcnt lgkmcnt(0)")
        k("s_sub_u32 s70, s64, s66")
        k("s_cmp_ge_i32 s70, 0")
        k("s_cbranch_scc1 %s", lw)
        k("v_mov_b32 v40, s66")
        k("buffer_store_dword v40, v41, %s, s100 offen offset:%d", s(S_WS, 4), 80 + 8 * e)
        k("v_mov_b32 v40, s68")
        k("buffer_store_dword v40, v41, %s, s100 offen offset:%d", s(S_WS, 4), 84 + 8 * e)
    k.L(l)
def tick_dump(k):
    if not getattr(k, 'ticks', False): return
    k("v_mov_b32 v41, 0")
    for i in range(4):
        k("v_mov_b32 v40, s%d", 96 + i)
        k("buffer_store_dword v40, v41, %s, s100 offen offset:%d", s(S_WS, 4), 64 + 4 * i)

def SMF(acc, A, B): return "v_smfmac_f32_16x16x64_bf16 %s, %s, %s, %s" % (v(acc, 4), v(A, 4), u(B, 8), v(IDX))
def MF(d, A, B, first): return "v_mfma_f32_16x16x32_bf16 %s, %s, %s, %s" % (v(d, 4), v(A, 4), v(B, 4), "0" if first else v(d, 4))
def M16(d, A, B): return "v_mfma_f32_16x16x16_bf16 %s, %s, %s, %s" % (v(d, 4), v(A, 2), v(B, 2), v(d, 4))

def chain_setup(k):
    w = S_WAVE
    k.c("---- chain setup: addresses")
    k("v_lshlrev_b32 %s, 4, v1", v(aL16))
    for jp in range(4):
        k("s_xor_b32 s%d, s%d, %d", sT, w, jp)
        k("s_lshl_b32 s%d, s%d, 11", sT, sT)
        k("s_add_u32 s%d, s%d, %d", sT, sT, L_MB)
        k("v_add_u32 %s, s%d, %s", v(aM[jp]), sT, v(aL16))
    k("v_and_b32 v90, 15, v1")
    k("v_lshrrev_b32 v91, 4, v1")
    k("v_bfe_u32 v92, v1, 2, 2")
    k("v_and_b32 v93, 3, v1")
    k("v_mul_u32_u24 v94, 320, v91")
    k("v_lshl_add_u32 v94, v90, 3, v94")
    k("s_mul_i32 s%d, s%d, 1280", sT, w)
    k("s_add_u32 s%d, s%d, %d", sT, sT, L_XB)
    k("v_add_u32 %s, s%d, v94", v(aXW), sT)
    k("s_lshr_b32 s%d, s%d, 1", sT, w)
    k("s_mul_i32 s%d, s%d, 1280", sT, sT)
    k("s_and_b32 s%d, s%d, 1", sCNT, w)
    k("s_lshl_b32 s%d, s%d, 7", sCNT, sCNT)
    k("s_add_u32 s%d, s%d, s%d", sT, sT, sCNT)
    k("s_add_u32 s%d, s%d, %d", sT, sT, L_OB)
    k("v_add_u32 %s, s%d, v94", v(aOW), sT)
    k("v_mul_u32_u24 v94, 320, v93")
    k("v_lshrrev_b32 v95, 2, v1")
    k("v_lshl_add_u32 v94, v95, 3, v94")
    k("v_add_u32 %s, %d, v94", v(aXR), L_XB)
    k("s_lshl_b32 s%d, s%d, 14", sT, w)
    k("v_add_u32 %s, s%d, %s", v(aWV), sT, v(aL16))
    k("v_add_u32 %s, 0x10000, %s", v(aWO), v(aWV))
    k("v_add_u32 %s, %d, %s", v(aKT), L_KT, v(aL16))
    k("v_lshrrev_b32 v94, 3, v90")
    k("v_lshl_add_u32 v94, v94, 2, v91")
    k("v_lshlrev_b32 v94, 13, v94")
    k("v_and_b32 v95, 7, v1")
    k("v_lshl_add_u32 %s, v95, 3, v94", v(aH1S))
    k("v_lshlrev_b32 v94, 4, v91")
    k("v_lshl_add_u32 v94, v93, 2, v94")
    k("v_mov_b32 v95, v92")
    k("v_cmp_eq_u32 vcc, 0, v95")
    k("v_mov_b32 v95, 0x40000000")
    k("v_cndmask_b32 %s, v95, v94, vcc", v(aH2S))
    k("v_and_b32 v94, 2, v1")
    k("v_cmp_eq_u32 vcc, 0, v94")
    k("v_mov_b32 v94, 0x44444444")
    k("v_mov_b32 v95, 0xeeeeeeee")
    k("v_cndmask_b32 %s, v95, v94, vcc", v(IDX))
    k("v_mov_b32 v94, 0x3f80")
    k("v_mov_b32 v95, 0x3f800000")
    for d in range(4):
        k("v_cmp_eq_u32 vcc, %d, v90", 4 * d)
        k("v_cndmask_b32 %s, 0, v94, vcc", v(SEL + d))
        k("v_cmp_eq_u32 vcc, %d, v90", 4 * d + 1)
        k("v_cndmask_b32 %s, %s, v95, vcc", v(SEL + d), v(SEL + d))
    k("s_lshl_b32 s%d, s%d, 16", sT, w)
    k("s_lshl_b32 s%d, s%d, 6", sH1S0, S_HEAD)
    k("s_add_u32 s%d, s%d, s%d", sH1S0, sH1S0, sT)
    k("s_add_u32 s%d, s%d, 0x%x", sH1S0, sH1S0, HOP1)
    k("s_add_u32 s%d, s%d, 0x1000", sH1S1, sH1S0)
    k("s_lshl_b32 s%d, s%d, 2", sH1L, S_HEAD)
    k("s_add_u32 s%d, s%d, s%d", sH1L, sH1L, w)
    k("s_lshl_b32 s%d, s%d, 11", sH1L, sH1L)
    k("s_add_u32 s%d, s%d, 0x%x", sH1L, sH1L, HOP1)
    k("s_lshr_b32 s%d, s%d, 3", sH2S, S_HEAD)
    k("s_lshl_b32 s%d, s%d, 11", sH2S, sH2S)
    k("s_and_b32 s%d, s%d, 7", sT, S_HEAD)
    k("s_lshl_b32 s%d, s%d, 6", sT, sT)
    k("s_add_u32 s%d, s%d, s%d", sH2S, sH2S, sT)
    k("s_lshl_b32 s%d, s%d, 9", sT, w)
    k("s_add_u32 s%d, s%d, s%d", sH2S, sH2S, sT)
    k("s_add_u32 s%d, s%d, 0x%x", sH2S, sH2S, HOP2)
    k("s_lshl_b32 s%d, s%d, 11", sH2L, w)
    k("s_add_u32 s%d, s%d, 0x%x", sH2L, sH2L, HOP2)
    k("s_lshl_b32 s%d, s%d, 13", sKV, S_HEAD)
    k("s_lshl_b32 s%d, s%d, 11", sT, w)
    k("s_add_u32 s%d, s%d, s%d", sKV, sKV, sT)
    k("s_add_u32 s%d, s%d, 0x%x", sVIM, sKV, VIMG)
    k("s_add_u32 s%d, s%d, 0x%x", sKV, sKV, KIMG)
    k("s_add_u32 s%d, s%d, %d", sKTD, sT, L_KT)
    k("s_lshl_b32 s%d, s%d, 12", sKM, S_HEAD)
    k("s_lshl_b32 s%d, s%d, 10", sT, w)
    k("s_add_u32 s%d, s%d, s%d", sKM, sKM, sT)
    k("s_add_u32 s%d, s%d, 0x%x", sKM, sKM, KM - 0x20000)
    k("s_mov_b32 s%d, 0x%x", sC, f2u(CSC))
    k("s_mov_b32 s%d, 400000", S_LIM)
    k("s_mov_b32 s%d, 0x33333333", sMASK)
    k("s_mov_b32 s%d, 0x33333333", sMASK + 1)
    k("s_mov_b32 s%d, 0", sPH)
    k("s_xor_b32 s%d, s%d, 0x2000", sH2R, sH2S)

def merged_setup(k):
    k("s_lshl_b32 s%d, s%d, 5", sQF, S_HEAD)
    k("s_add_u32 s%d, s%d, 0x%x", sQF, sQF, FLAGS + F_QF)
    k("s_lshl_b32 s%d, s%d, 2", sKF, S_HEAD)
    k("s_add_u32 s%d, s%d, s%d", sKF, sKF, S_WAVE)
    k("s_lshl_b32 s%d, s%d, 7", sKF, sKF)
    k("s_add_u32 s%d, s%d, 0x%x", sKF, sKF, FLAGS + F_KF)
    k("v_lshlrev_b32 %s, 2, v93", v(aFL))

def kv_refresh(k, plus, back=None):
    lp = k.lab("kvr"); ok = k.lab("kvok")
    k("s_mov_b32 s%d, 0", sCNT)
    k("s_add_u32 s%d, s%d, %d", sT, S_STEP, plus)
    k.L(lp)
    k("buffer_load_dword v1, %s, %s, s%d offen sc1", v(aFL), s(S_WS, 4), sQF)
    k("s_waitcnt vmcnt(0)")
    k("v_cmp_ge_u32 vcc, s%d, v1", sT)
    k("s_cbranch_vccz %s", ok)
    k("s_sleep 2")
    k("s_add_u32 s%d, s%d, 1", sCNT, sCNT)
    k("s_cmp_lt_u32 s%d, s%d", sCNT, S_LIM)
    k("s_cbranch_scc1 %s", lp)
    k("s_mov_b32 s%d, 0", S_LIM)
    k.L(ok)
    if back: k("s_branch %s", back)

import chain as _c1
def chain_arm(k):
    k.c("---- arm hop buffers (both slots), sc1")
    for i in range(4): k("v_mov_b32 %s, -1", v(96 + i))
    for slot in range(2):
        k("s_add_u32 s%d, s%d, 0x%x", sT, sH1L, slot * 262144)
        k("buffer_store_dwordx4 v[96:99], %s, %s, s%d offen sc1", v(aL16), s(S_WS, 4), sT)
        k("buffer_store_dwordx4 v[96:99], %s, %s, s%d offen offset:1024 sc1", v(aL16), s(S_WS, 4), sT)
    k("buffer_store_dword v96, %s, %s, s%d offen sc1", v(aH2S), s(S_WS, 4), sH2R)
load_mem0 = _c1.load_mem0
WVR_ = 128
WOR_ = 192

def chain_load_weights(k, hooks={}, pre_issue={}, after_first=None):
    w = S_WAVE
    k.c("---- chain weight load")
    k("v_and_b32 v90, 15, v1")
    k("v_lshrrev_b32 v91, 4, v1")
    k("s_and_b32 s44, s%d, 1", w)
    k("s_lshl_b32 s44, s44, 2")
    k("v_xor_b32 v120, s44, v90")
    k("v_and_b32 v121, 1, v91")
    k("v_lshlrev_b32 v121, 3, v121")
    k("v_xor_b32 v120, v120, v121")
    k("v_lshlrev_b32 v120, 4, v120")
    k("v_lshl_add_u32 v120, v91, 13, v120")
    k("s_lshl_b32 s45, s%d, 8", S_HEAD)
    k("s_lshl_b32 s48, s%d, 17", w)
    k("s_add_u32 s45, s45, s48")
    k("s_lshl_b32 s44, s%d, 12", w)
    sc = [('q', 0), ('q', 1), ('k', 0), ('k', 1), ('v', 1), ('o', 0), ('v', 0), ('o', 1)]
    srds = dict(q=S_WQ, k=S_WK, v=S_WV, o=S_WO)
    queue = []
    def issue(i):
        m, par = sc[i]; reg = (i & 1) * 65536
        for n in range(16):
            if m == 'o':
                k("s_add_u32 s48, s49, %d", par * 128 + n * 8192)
                k("s_add_u32 m0, s3, %d", n * 1024)
            else:
                c, q = n >> 2, n & 3
                k("s_add_u32 s48, s45, %d", (2 * c + par) * 64 * 8192 + q * 4 * 8192)
                k("s_add_u32 m0, s44, %d", reg + c * 16384 + q * 1024)
            k("buffer_load_dwordx4 v%d, %s, s48 offen lds", 121 if m == 'o' else 120, s(srds[m], 4))
            queue.append(i)
    k("s_waitcnt lgkmcnt(0)")
    fin_srd(k, 'Wq', S_WQ)
    lstamp(k, 7)
    issue(0)
    if after_first: after_first(k)
    k("v_lshrrev_b32 v121, 3, v1")
    k("v_lshlrev_b32 v121, 10, v121")
    k("v_and_b32 v122, 7, v1")
    k("v_lshl_add_u32 v121, v122, 4, v121")
    k("v_and_b32 v126, 1, v92")
    k("v_lshl_add_u32 v126, v126, 2, v91")
    k("v_lshrrev_b32 v127, 1, v92")
    k("v_lshl_add_u32 v126, v126, 2, v127")
    k("v_lshlrev_b32 v126, 8, v126")
    k("v_xor_b32 v127, s%d, v92", w)
    k("v_lshl_add_u32 v126, v127, 6, v126")
    k("v_lshl_add_u32 v126, v93, 4, v126")
    for jp in range(4):
        k("s_xor_b32 s48, s%d, %d", w, jp)
        k("s_lshl_b32 s48, s48, 14")
        k("v_add_u32 v%d, s48, v126", 122 + jp)
    k("v_lshrrev_b32 v126, 1, v92")
    k("v_lshrrev_b32 v127, 1, v91")
    k("v_lshl_add_u32 v126, v127, 1, v126")
    k("v_and_b32 v127, 1, v91")
    k("v_lshl_add_u32 v126, v127, 3, v126")
    k("v_lshlrev_b32 v126, 2, v126")
    k("v_and_b32 v127, 1, v92")
    k("v_add_u32 v126, v126, v127")
    k("v_lshlrev_b32 v126, 7, v126")
    k("v_lshl_add_u32 v126, v93, 3, v126")
    k("s_lshl_b32 s48, s%d, 14", w)
    k("s_add_u32 s3, s48, 0x10000")
    k("v_add_u32 v126, s3, v126")
    k("s_lshl_b32 s49, s%d, 17", S_HEAD)
    k("s_lshl_b32 s48, s%d, 8", w)
    k("s_add_u32 s49, s49, s48")
    if -1 in hooks: queue.extend([-1] * hooks[-1](k))
    issue(1)
    lstamp(k, 5)
    TMP = 40
    for i in range(8):
        m, par = sc[i]
        if i in hooks: queue.extend([-1] * hooks[i](k))
        last = max(n for n, c in enumerate(queue) if c == i)
        k("s_waitcnt vmcnt(%d)", len(queue) - 1 - last)
        k("s_barrier")
        if i < 5: lstamp(k, i)
        inplace = i >= 6
        cnt = 0
        for a_ in range(4):
            for b_ in range(2):
                if inplace: dst = TMP + (a_ * 2 + b_) * 8
                elif m == 'q': dst = WQ + (b_ * 8 + 2 * a_ + par) * 8
                elif m == 'k': dst = WK + (b_ * 8 + 2 * a_ + par) * 8
                elif m == 'v': dst = WVR_ + (a_ * 2 + b_) * 8
                else: dst = WOR_ + (a_ * 2 + b_) * 8
                for y in range(4):
                    if m == 'o':
                        k("ds_read_b64_tr_b16 %s, v126 offset:%d", u(dst + 2 * y, 2), (64 * b_ + 16 * (y >> 1) + 2 * (y & 1)) * 128 + 32 * a_)
                    else:
                        k("ds_read_b64_tr_b16 %s, v%d offset:%d", u(dst + 2 * y, 2), 122 + a_, (32 * (y >> 1) + 2 * (y & 1)) * 256 + 8 * b_)
                cnt += 4
                if cnt % 8 == 0: k("s_waitcnt lgkmcnt(4)")
        if i < 4:
            for jp in range(4): k("v_xor_b32 v%d, 0x10000, v%d", 122 + jp, 122 + jp)
        k("s_waitcnt lgkmcnt(0)")
        k("s_barrier")
        if inplace:
            for q in range(16):
                k("ds_write_b128 %s, %s offset:%d", v(aWO if m == 'o' else aWV), v(TMP + 4 * q, 4), q * 1024)
                if q % 8 == 7: k("s_waitcnt lgkmcnt(0)")
        if i in pre_issue: pre_issue[i](k)
        if i + 2 < 8: issue(i + 2)


def PFK(p):
    W = s(S_WS, 4)
    return [["s_mov_b32 m0, s%d" % sKTD, "buffer_load_dwordx4 %s, %s, s%d offen sc1 lds" % (v(aL16), W, sKV)],
            ["buffer_load_dwordx4 %s, %s, s%d offen offset:1024 sc1 lds" % (v(aL16), W, sKV)],
            ["buffer_load_dwordx4 %s, %s, %s, s%d offen sc1" % (v(VTN, 4), v(aL16), W, sVIM)],
            ["buffer_load_dwordx4 %s, %s, %s, s%d offen offset:1024 sc1" % (v(VTN + 4, 4), v(aL16), W, sVIM)],
            ["s_add_u32 s%d, s%d, 0x40000" % (sKV, sKV), "s_add_u32 s%d, s%d, 0x40000" % (sVIM, sVIM),
             "s_xor_b32 s%d, s%d, 0x2000" % (sKTD, sKTD)]][p]

def WVR(n, h):
    return "ds_read_b128 %s, %s offset:%d" % (v(G + (n & 3) * 8 + 4 * h, 4), v(aWV), n * 2048 + h * 1024)

def weave(k, spine, fill):
    for i, m in enumerate(spine):
        k(m)
        for f in fill.get(i, []): k(f)

def check_n(k, buf, n, t0, t1):
    if n == 8:
        k("v_max3_u32 %s, %s, %s, %s", v(t0), v(buf), v(buf + 1), v(buf + 2))
        k("v_max3_u32 %s, %s, %s, %s", v(t1), v(buf + 3), v(buf + 4), v(buf + 5))
        k("v_max3_u32 %s, %s, %s, %s", v(t0), v(buf + 6), v(buf + 7), v(t0))
        k("v_max_u32 %s, %s, %s", v(t0), v(t0), v(t1))
    else:
        k("v_max3_u32 %s, %s, %s, %s", v(t0), v(buf), v(buf + 1), v(buf + 2))
        k("v_max_u32 %s, %s, %s", v(t0), v(t0), v(buf + 3))
    k("v_cmp_eq_u32 vcc, -1, %s", v(t0))

def retry_stub(k, lab, back, loads, buf, n, pre=None, cnt=None):
    k.L(lab)
    lp = k.lab("rp")
    k("s_mov_b32 s%d, 0", sCNT)
    k.L(lp)
    for l in loads: k(l)
    if cnt is not None and getattr(k, 'ticks', False): k("s_add_u32 s%d, s%d, 1", cnt, cnt)
    k("s_waitcnt vmcnt(0)")
    if pre:
        for l in pre: k(l)
    check_n(k, buf, n, CT, CT + 1)
    k("s_cbranch_vccz %s", back)
    k("s_add_u32 s%d, s%d, 1", sCNT, sCNT)
    k("s_cmp_lt_u32 s%d, s%d", sCNT, S_LIM)
    k("s_cbranch_scc1 %s", lp)
    k("s_mov_b32 s%d, 0", S_LIM)
    k("s_branch %s", back)

def delay(k, slots):
    while slots > 0:
        m = min(slots, 16); k("s_nop %d", m - 1); slots -= m

def chain_loop(k, stf, tag):
    W = s(S_WS, 4)
    o = getattr(k, 'copt', {})
    mg = getattr(k, 'merged', False)
    tk = getattr(k, 'ticks', False)
    TK = lambda i: ("s_memtime s[%d:%d]" % (64 + 2 * i, 65 + 2 * i)) if tk else ""
    lexit = k.lab(tag + "exit"); bexit = k.lab(tag + "bexit")
    Qs = lambda j, b: [SMF(AQ, b, WQ + j * 8), SMF(AQ + 4, b, WQ + (8 + j) * 8)]
    Ks = lambda j, b: [SMF(AK, b, WK + j * 8), SMF(AK + 4, b, WK + (8 + j) * 8)]
    Vs = lambda j, b: [SMF(AV + 4 * t, b, (G + ((j + t) & 3) * 8) if j % 2 == 0 else (WVR_ + ((j >> 1) * 2 + t) * 8)) for t in range(2)]
    Q = lambda j: Qs(j, MA + 4 * j); Kp = lambda j: Ks(j, MA + 4 * j); V = lambda j: Vs(j, MA + 4 * j)
    KORD = [0, 1, 2, 4, 6, 3, 5, 7]
    MR = lambda j: "ds_read_b128 %s, %s offset:%d" % (v(MA + 4 * j, 4), v(aM[j >> 1]), (j & 1) * 1024)
    KTR = lambda f: "ds_read_b128 %s, %s offset:%d" % (v(MA + 4 * KORD[f], 4), v(aKT), f * 1024)
    MV = lambda d, x: "v_mov_b32 %s, %s" % (v(d), x)
    EX = lambda d, s_: "v_exp_f32 %s, %s" % (v(d), v(s_))
    CV = lambda d, a_, b_: "v_cvt_pk_bf16_f32 %s, %s, %s" % (v(d), v(a_), v(b_))
    FA = lambda a_: ["v_add_f32 %s, %s, %s" % (v(a_), v(a_), v(a_ + 2)), "v_add_f32 %s, %s, %s" % (v(a_ + 1), v(a_ + 1), v(a_ + 3))]
    stkvm = "buffer_store_dwordx4 %s, %s, %s, s%d offen sc1" % (v(KVM, 4), v(aL16), W, sKM)
    r_sm = k.lab(tag + "rsm"); b_sm = k.lab(tag + "bsm"); r_kv = k.lab(tag + "rkv"); b_kv = k.lab(tag + "bkv")
    EB = [MA, VTN]
    lF = [k.lab(tag + "s0f") for _ in EB]; lto = k.lab(tag + "to")
    RD = MA + 16; HT = MA + 20; H1 = MA + 8; H1B = MA + 24
    lde = lambda b: ["buffer_load_dwordx4 %s, %s, %s, s%d offen sc1" % (v(b, 4), v(aL16), W, sH2L),
                     "buffer_load_dwordx4 %s, %s, %s, s%d offen offset:1024 sc1" % (v(b + 4, 4), v(aL16), W, sH2L)]
    def spin(reg, n, lab, magic="0x7fc1"):
        for i in range(n):
            k("v_cmp_ne_u32 vcc, %s, %s", magic, v(reg))
            k("s_cbranch_vccnz %s", lab)
    lS = [k.lab(tag + "s0v") for _ in EB]; lcom = k.lab(tag + "com"); lpoll = k.lab(tag + "poll")
    k("s_branch %s", lS[0])
    k(".aw_on")
    nb0 = o.get('b0', 5)
    fl = [[],
          ["buffer_load_dword v1, %s, %s, s%d offen sc1" % (v(aFL4), W, sQF)]] if mg else [[], []]
    for bi in (1, 0):
        b = EB[bi]; ob = EB[1 - bi]
        k(".aw_reset")
        k.L(lF[1 - bi])
        k(MV(ob + 7, "-2"))
        for l in lde(ob): k(l)
        if tk: k("s_add_u32 s97, s97, 1")
        k("s_add_u32 s%d, s%d, 1", sCNT, sCNT)
        k("s_cmp_ge_u32 s%d, s%d", sCNT, S_LIM)
        k("s_cbranch_scc1 %s", lto)
        if bi == 0: k.L(lpoll)
        ar = k.lab(tag + "ar2")
        spin(b + 7, o.get('ns2', 16), ar, "-2")
        k.L(ar)
        k("s_waitcnt vmcnt(2)")
        k("v_max_u32 %s, %s, %s", v(HT), v(b + 3), v(b + 7))
        k("v_cmp_eq_u32 vcc, -1, %s", v(HT))
        k("s_cbranch_vccnz %s", lF[bi])
        k.L(lS[bi])
        tick(k, 15); tick_step_end(k); tick(k, 0)
        if o.get('plog2'): k("s_memtime s[64:65]"); k("s_memrealtime s[66:67]")
        k("ds_write_b128 %s, %s", v(aM[0]), v(b, 4))
        f = {o.get('gw2', 2): ["ds_write_b128 %s, %s offset:1024" % (v(aM[0]), v(b + 4, 4))], nb0: [".aw_writes", "s_barrier", TK(1), MR(2)]}
        for x in range(3, 8): f[min(nb0 + x - 2, 11)] = f.get(min(nb0 + x - 2, 11), []) + [MR(x)]
        if o.get('early', 0): f[1] = PFK(0)[1:]; f[2] = PFK(1); f[3] = [stkvm]; f[4] = fl[0]
        weave(k, Qs(0, b) + Ks(0, b) + Qs(1, b + 4) + Ks(1, b + 4) + Vs(0, b) + Vs(1, b + 4), f)
        if bi: k("s_branch %s", lcom)
    k.L(lcom)
    qf = []
    for t in range(2):
        a_ = AQ + 4 * t
        qf += FA(a_) + ["v_mul_f32 %s, s%d, %s" % (v(a_), sC, v(a_)), "v_mul_f32 %s, s%d, %s" % (v(a_ + 1), sC, v(a_ + 1)), CV(a_, a_, a_ + 1)]
    E_ = lambda x: [] if o.get('early', 0) else x
    weave(k, Q(2) + Q(3) + Q(4) + Q(5) + Q(6) + Q(7) + Kp(2) + Kp(3) + Kp(4) + Kp(5) + Kp(6) + Kp(7) + V(2), {
        0: [TK(2), "s_waitcnt vmcnt(0)"] + PFK(2), 1: [WVR(4, 0)], 2: [WVR(4, 1)], 3: PFK(3), 4: [WVR(5, 0)], 5: [WVR(5, 1)], 6: PFK(0)[1:], 7: [KTR(1)],
        8: (["v_mov_b32 v34, s64", "v_mov_b32 v35, s66", "v_mov_b32 v33, 0", "s_lshl_b32 s68, s%d, 3" % S_STEP, "s_add_u32 s68, s68, s100",
             "buffer_store_dwordx2 v[34:35], v33, %s, s68 offen" % W] if o.get('plog2') else []),
        9: PFK(1), 10: [KTR(0)], 11: PFK(4), 12: [stkvm],
        13: [qf[0]], 14: [qf[1]], 15: [qf[5]], 16: fl[0] + [qf[6]], 17: [qf[2]], 18: [qf[3]], 19: fl[1] + [qf[7]], 20: [qf[8]],
        21: [qf[4]], 22: [qf[9]], 23: ["s_add_u32 s%d, s%d, 0x20000" % (sKM, sKM)], 24: [WVR(6, 0)], 25: [WVR(6, 1)]})
    for t in range(2):
        if o.get('pk', 1): k("v_pk_add_f32 %s, %s, %s", v(AK + 4 * t, 2), v(AK + 4 * t, 2), v(AK + 4 * t + 2, 2))
        else:
            for x in FA(AK + 4 * t): k(x)
        k(CV(AQ + 4 * t + 1, AK + 4 * t, AK + 4 * t + 1))
    k("ds_write2_b64 %s, %s, %s offset0:0 offset1:16", v(aXW), v(AQ, 2), v(AQ + 4, 2))
    tick(k, 5)
    X = AQ
    XR = lambda i: "ds_read_b64_tr_b16 %s, %s offset:%d" % (v(X + 2 * i, 2), v(aXR), (i >> 1) * 1280 + (i & 1) * 128)
    ONES, PM, LA, E, T1, T2, T0 = G, G + 4, G + 8, G + 12, G + 20, G + 24, G + 28
    O1 = "0x3f803f80"
    nb = o.get('xb', 3)
    KORD[:] = [0, 1, 2, 4, 3, 5, 6, 7]
    f = {0: [WVR(7, 0), MV(KVM, v(AQ + 1))], 1: [WVR(7, 1), MV(KVM + 1, v(AQ + 5))], 2: [KTR(2), MV(ONES, O1)]}
    BAR = [".aw_writes", "s_barrier", TK(6)]
    if nb == 3:
        f.update({3: BAR + [XR(0), XR(1)], 4: [XR(2), XR(3)], 5: [XR(4), XR(5)], 6: [XR(6), XR(7)], 7: [KTR(3), KTR(4)], 8: [KTR(5), KTR(6)], 9: [KTR(7)]})
    elif nb == 4:
        f.update({3: [KTR(3), MV(ONES + 1, O1)], 4: BAR + [XR(0), XR(1)], 5: [XR(2), XR(3)], 6: [XR(4), XR(5)], 7: [XR(6), XR(7)], 8: [KTR(4), KTR(5)], 9: [KTR(6), KTR(7)]})
    elif nb == 5:
        f.update({3: [KTR(3), MV(ONES + 1, O1)], 4: [KTR(4), MV(PM + 1, "0")], 5: BAR + [XR(0), XR(1)], 6: [XR(2), XR(3)], 7: [XR(4), XR(5)], 8: [XR(6), XR(7)], 9: [KTR(5)]})
    elif nb == 6:
        f.update({3: [KTR(3), MV(ONES + 1, O1)], 4: [KTR(4), MV(PM + 1, "0")], 5: [KTR(5)], 6: BAR + [XR(0), XR(1), XR(2)], 7: [XR(3), XR(4)], 8: [XR(5), XR(6)], 9: [XR(7)]})
    weave(k, V(4) + V(3) + V(5) + V(6) + V(7), f)
    pass
    vf = []
    for t in range(2): vf += FA(AV + 4 * t) + [CV(KVM + 2 + t, AV + 4 * t, AV + 4 * t + 1)]
    t1 = lambda kb: MF(T1, MA + 4 * KORD[kb], X + 4 * kb, kb == 0)
    t2 = lambda kb: MF(T2, MA + 4 * KORD[4 + kb], X + 4 * kb, kb == 0)
    t0 = lambda kb: MF(T0, X + 4 * kb, X + 4 * kb, kb == 0)
    weave(k, [t1(0), t0(0), t1(1), t0(1), t1(2), t0(2)], {0: [TK(7)] + ([KTR(6)] if nb >= 5 else []) + ([MV(ONES + 1, O1)] if nb == 3 else []) + [MV(ONES + 2, O1)], 1: ([KTR(7)] if nb >= 5 else []) + vf[0:2], 2: vf[3:5], 3: [vf[2], vf[5]],
        4: [MV(PM + 1, "0"), MV(PM + 2, "0")], 5: ["s_cmp_ge_u32 s%d, %d" % (S_STEP, o.get('kvl', 59)), "s_cbranch_scc1 %s" % lexit, bexit + ":", MV(ONES + 3, O1)]})
    weave(k, [t1(3), t2(0), t0(3), t2(1), t2(2), t2(3)], {
        2: [EX(E, T1)], 3: [EX(E + 1, T1 + 1)], 4: [EX(E + 2, T1 + 2)],
        5: [EX(E + 3, T1 + 3), EX(T0, T0 + 2), EX(T0 + 1, T0 + 3), CV(E, E, E + 1), CV(E + 1, E + 2, E + 3), CV(PM, T0, T0 + 1), CV(PM + 3, T0, T0 + 1)]})
    O = AV
    Z = lambda i: "v_mov_b32 %s, 0" % v(MA + i)
    M16z = lambda d, A, B: "v_mfma_f32_16x16x16_bf16 %s, %s, %s, 0" % (v(d, 4), v(A, 2), v(B, 2))
    tick(k, 8)
    def pv(k, fast):
        weave(k, [M16z(LA, PM, ONES), M16z(O, PM, KVM + 2), M16z(O + 4, PM + 2, KVM + 2)],
              {0: [EX(E + 4, T2)], 1: [EX(E + 5, T2 + 1)], 2: [EX(E + 6, T2 + 2), EX(E + 7, T2 + 3), CV(E + 2, E + 4, E + 5), CV(E + 3, E + 6, E + 7)]} if fast else {})
        weave(k, [MF(LA, E, ONES, False), MF(O, E, VT, False), MF(O + 4, E, VT + 4, False)], {})
    pv(k, True)
    k("v_rcp_f32 %s, %s", v(LA), v(LA))
    k("v_rcp_f32 %s, %s", v(LA + 1), v(LA + 1))
    k.L(b_sm)
    for t in range(2):
        if o.get('pk', 1): k("v_pk_mul_f32 %s, %s, %s", v(O + 4 * t, 2), v(O + 4 * t, 2), v(LA, 2))
        else:
            k("v_mul_f32 %s, %s, %s", v(O + 4 * t), v(O + 4 * t), v(LA))
            k("v_mul_f32 %s, %s, %s", v(O + 4 * t + 1), v(O + 4 * t + 1), v(LA + 1))
        k(CV(E + 4 + t, O + 4 * t, O + 4 * t + 1))
    k("ds_write_b64 %s, %s", v(aOW), v(E + 4, 2))
    tick(k, 9)
    Z2 = lambda i: "v_mov_b64 %s, 0" % v(MA + 2 * i, 2)
    ZP = X + 8 + 6
    ZM = lambda r: "v_mfma_f32_32x32x8_bf16 %s, %s, %s, 0" % (v(r, 16), v(ZP, 2), v(ZP, 2))
    k("v_max3_f32 %s, |%s|, |%s|, |%s|", v(X), v(T1), v(T1 + 1), v(T1 + 2))
    k("v_max3_f32 %s, |%s|, |%s|, |%s|", v(X + 1), v(T1 + 3), v(T2), v(T2 + 1))
    k("v_max3_f32 %s, |%s|, |%s|, %s", v(X), v(T2 + 2), v(T2 + 3), v(X))
    k("v_max3_f32 %s, |%s|, |%s|, %s", v(X + 1), v(T0 + 2), v(T0 + 3), v(X + 1))
    k("v_mov_b64 %s, 0", v(ZP, 2))
    k("v_max_f32 %s, %s, %s", v(X), v(X), v(X + 1))
    k("v_cmp_lt_f32 vcc, s%d, %s", sTHR, v(X))
    k("s_and_b64 vcc, vcc, %s", s(sMASK, 2))
    k("s_cbranch_scc1 %s", r_sm)
    k("s_mov_b32 s%d, 0x42700000", sTHR)
    k(ZM(MA))
    k(".aw_writes"); k("s_barrier")
    tick(k, 10)
    OA = AQ
    for i in range(4):
        k("ds_read_b64_tr_b16 %s, %s offset:%d", v(OA + 2 * i, 2), v(aXR), (L_OB - L_XB) + (i >> 1) * 1280 + (i & 1) * 128)
        if i == o.get('zp', 1): k(ZM(MA + 16))
    PK = AK
    SB = {(4, 0): G, (5, 0): G + 8, (4, 1): G + 16, (5, 1): G + 24, (6, 0): VT, (7, 0): AV, (6, 1): G, (7, 1): G + 8}
    WOB = lambda nt, kbo: (WOR_ + (nt * 2 + kbo) * 8) if nt < 4 else SB[(nt, kbo)]
    WR = lambda nt, kbo, h: "ds_read_b128 %s, %s offset:%d" % (v(SB[(nt, kbo)] + 4 * h, 4), v(aWO), ((nt - 4) * 2 + kbo) * 2048 + h * 1024)
    WS_ = lambda nt, kbo: SMF(MA + 4 * nt, OA + 4 * kbo, WOB(nt, kbo))
    AD = lambda nt, b: "v_add_f32 %s, %s, %s" % (v(MA + 4 * nt + b), v(MA + 4 * nt + b), v(MA + 4 * nt + 2 + b))
    PC = lambda sx, b, hh: CV(PK + 4 * sx + 2 * b + hh, MA + 4 * (4 * sx + 2 * hh) + b, MA + 4 * (4 * sx + 2 * hh + 1) + b)
    ST1 = lambda sx: "buffer_store_dwordx4 %s, %s, %s, s%d offen %s" % (v(PK + 4 * sx, 4), v(aH1S), W, sH1S1 if sx else sH1S0, stf)
    PA = lambda nt: "v_pk_add_f32 %s, %s, %s" % (v(MA + 4 * nt, 2), v(MA + 4 * nt, 2), v(MA + 4 * nt + 2, 2))
    TG = lambda sx: "v_and_or_b32 %s, %s, -2, s%d" % (v(PK + 4 * sx), v(PK + 4 * sx), sPH)
    k(WR(4, 0, 0)); k(WR(4, 0, 1))
    A2 = lambda nt: [PA(nt)] if o.get('pk', 1) else [AD(nt, 0), AD(nt, 1)]
    P2 = lambda tp, b: CV(PK + 2 * tp + b, MA + 8 * tp + b, MA + 8 * tp + 4 + b)
    T2_ = lambda tp: "v_and_or_b32 %s, %s, -2, s%d" % (v(PK + 2 * tp), v(PK + 2 * tp), sPH)
    S2 = lambda tp: "buffer_store_dwordx2 %s, %s, %s, s%d offen offset:%d %s" % (v(PK + 2 * tp, 2), v(aH1S), W, sH1S1 if tp >> 1 else sH1S0, (tp & 1) * 2048, stf)
    fin = lambda tp: [AD(2 * tp + 1, 0), AD(2 * tp + 1, 1), P2(tp, 0), P2(tp, 1), T2_(tp), S2(tp)]
    fa = {0: [TK(11), WR(5, 0, 0)], 1: [WR(5, 0, 1)], 2: [WR(4, 1, 0)], 3: [WR(4, 1, 1)],
        4: [WR(5, 1, 0), AD(0, 0)], 5: [WR(5, 1, 1), AD(0, 1)] + fin(0) + [TK(12)], 6: [WR(6, 0, 0), WR(6, 0, 1)], 7: [WR(7, 0, 0), WR(7, 0, 1)],
        8: [WR(6, 1, 0), AD(2, 0)], 9: [WR(6, 1, 1), AD(2, 1), WR(7, 1, 0), WR(7, 1, 1)] + fin(1),
        12: [AD(4, 0)], 13: [AD(4, 1)] + fin(2),
        15: A2(6) + A2(7) + [P2(3, 0), P2(3, 1), T2_(3), S2(3)]}
    if o.get('lazy', 0):
        fa = {0: [TK(11), WR(5, 0, 0)], 1: [WR(5, 0, 1)], 2: [WR(4, 1, 0)], 3: [WR(4, 1, 1)],
            4: [WR(5, 1, 0), AD(0, 0)], 5: [WR(5, 1, 1), AD(0, 1)], 6: [WR(6, 0, 0), AD(1, 0)], 7: [WR(6, 0, 1), WR(7, 0, 0), WR(7, 0, 1)] + fin(0)[1:] + [TK(12)],
            8: [WR(6, 1, 0), AD(2, 0)], 9: [WR(6, 1, 1), AD(2, 1)], 10: [WR(7, 1, 0), AD(3, 0)], 11: [WR(7, 1, 1)] + fin(1)[1:],
            12: [AD(4, 0)], 13: [AD(4, 1)], 14: [AD(5, 0)],
            15: fin(2)[1:] + A2(6) + A2(7) + [P2(3, 0), P2(3, 1), T2_(3), S2(3)]}
    weave(k, [WS_(0, 0), WS_(1, 0), WS_(0, 1), WS_(1, 1), WS_(2, 0), WS_(3, 0), WS_(2, 1), WS_(3, 1), WS_(4, 0), WS_(5, 0),
              WS_(4, 1), WS_(5, 1), WS_(6, 0), WS_(7, 0), WS_(6, 1), WS_(7, 1)], fa)
    tick(k, 13)
    if o.get('plog'):
        k("s_mov_b32 m0, s%d", S_STEP)
        k("v_writelane_b32 v1, s64, m0")
    RD = MA + 16; HT = MA + 20; H1 = MA + 8; H1B = MA + 24
    h1lb = lambda b: ["buffer_load_dwordx4 %s, %s, %s, s%d offen sc1" % (v(b, 4), v(aL16), W, sH1L),
           "buffer_load_dwordx4 %s, %s, %s, s%d offen offset:1024 sc1" % (v(b + 4, 4), v(aL16), W, sH1L)]
    redb = lambda b: [MF(RD, SEL, b, True), MF(RD, SEL, b + 4, False),
           "v_bitop3_b32 %s, %s, %s, s%d bitop3:0x7e" % (v(HT), v(b), v(b + 4), sPH), "v_and_b32 %s, 1, %s" % (v(HT), v(HT)),
           "v_cmp_ne_u32 vcc, 0, %s" % v(HT)]
    h1l = h1lb(H1); red = redb(H1)
    lde = lambda b: ["buffer_load_dwordx4 %s, %s, %s, s%d offen sc1" % (v(b, 4), v(aL16), W, sH2L),
                     "buffer_load_dwordx4 %s, %s, %s, s%d offen offset:1024 sc1" % (v(b + 4, 4), v(aL16), W, sH2L)]
    KAV = "v_mov_b32 %s, 0" % v(MA + 22)
    def warm(vl, ol, slots, per=o.get('per', 4)):
        while slots > 0:
            k(vl.pop(0) if vl else (KAV if o.get('ka', 0) else "s_nop 0")); slots -= 1
            r = min(per - 1, slots)
            while r > 0 and ol:
                x = ol.pop(0); k(x); c = 2 if x.startswith('ds_') else 1; r -= c; slots -= c
            if r > 0: k("s_nop %d", r - 1); slots -= r
    def spin(reg, n, lab, magic="0x7fc1"):
        for i in range(n):
            k("v_cmp_ne_u32 vcc, %s, %s", magic, v(reg))
            k("s_cbranch_vccnz %s", lab)
            if o.get('spn', 0): k("s_nop %d", o.get('spn') - 1)
    ok1 = k.lab(tag + "ok1"); rr1 = k.lab(tag + "r1"); ar1 = k.lab(tag + "ar1"); ar0 = k.lab(tag + "ar0")
    lp1 = k.lab(tag + "lp1"); lB = k.lab(tag + "gB"); lA2 = k.lab(tag + "gA2")
    k("s_cmp_ge_u32 s%d, 2", S_WAVE)
    k(".aw_fork")
    k("s_cbranch_scc1 %s", lB)
    for g in 'ab':
        if g == 'b':
            k.L(lB); k(".aw_join")
        hv = ["v_mov_b64 %s, 0" % v(AQ + 2 * i, 2) for i in range(12)] + ["v_xor_b32 %s, 0x2000, %s" % (v(aKT), v(aKT))]
        ho = [WVR(n, h) for n in range(4) for h in range(2)] + \
             ["s_mov_b32 s%d, s%d" % (sH2R, sH2S), "s_xor_b32 s%d, s%d, 0x2000" % (sH2S, sH2S)] + \
             ["s_xor_b32 s%d, s%d, 0x40000" % (r, r) for r in (sH1S0, sH1S1)] + \
             ["s_xor_b32 s%d, s%d, 0x2000" % (sH2L, sH2L), "s_add_u32 s%d, s%d, 1" % (S_STEP, S_STEP), "s_mov_b32 m0, s%d" % sKTD, "s_mov_b32 s%d, 0" % sCNT]
        warm(hv, ho, o.get('p0' + g, 24 if g == 'a' else 44))
        tick(k, 3)
        for l in h1lb(H1B): k(l)
        warm(hv, ho, o.get('p1' + g, 54 if g == 'a' else 24))
        for l in h1l: k(l)
        warm(hv, ho, o.get('w1' + g, 2 if g == 'a' else 14))
        assert not hv and not ho
        k(".aw_all")
        if g == 'a': k("s_branch %s", lp1)
    k.L(lp1)
    spin(H1B + 3, o.get('ns1', 24), ar0)
    k.L(ar0)
    k("s_waitcnt vmcnt(3)")
    tick(k, 4)
    k(redb(H1B)[0])
    k("s_waitcnt vmcnt(2)")
    for l in redb(H1B)[1:]: k(l)
    k("s_cbranch_vccnz %s", rr1)
    k.L(ok1)
    for sh in (4, 8):
        for r in (RD, RD + 1): k("v_add_f32_dpp %s, %s, %s row_ror:%d row_mask:0xf bank_mask:0xf", v(r), v(r), v(r), sh)
    k("v_cvt_pk_bf16_f32 %s, %s, %s", v(RD), v(RD), v(RD + 1))
    k("buffer_store_dword %s, %s, %s, s%d offen %s", v(RD), v(aH2S), W, sH2S, stf)
    tick(k, 14)
    k(MV(HT, "-1"))
    k("buffer_store_dword %s, %s, %s, s%d offen %s", v(HT), v(aH2S), W, sH2R, stf)
    hv = ["v_mov_b64 %s, %s" % (v(VT + 2 * i, 2), v(VTN + 2 * i, 2)) for i in range(4)] + [MV(VTN + 7, "-2")]
    ho = ["s_xor_b32 s%d, s%d, 0x40000" % (sH1L, sH1L), "s_bfe_u32 s%d, s%d, 0x10001" % (sPH, S_STEP), "s_mov_b32 s%d, 0" % sCNT]
    if mg:
        k("s_add_u32 s%d, s%d, 1", sT, S_STEP); k("v_cmp_ge_u32 vcc, s%d, v1", sT)
        k("s_cbranch_vccnz %s", r_kv)
        k.L(b_kv)
    k("s_cmp_ge_u32 s%d, 2", S_WAVE)
    k("s_cbranch_scc1 %s", lA2)
    warm([], [], o.get('p2a', 20))
    k.L(lA2)
    p2 = o.get('p2', [26, 30])
    warm(hv, ho, p2[0])
    assert not hv and not ho
    for l in lde(EB[0]): k(l)
    warm(hv, ho, p2[1])
    for l in lde(EB[1]): k(l)
    warm(hv, ho, o.get('w2', 15))
    k(".aw_all")
    k(".aw_off")
    k("s_branch %s", lpoll)
    k.L(lto)
    k("s_mov_b32 s%d, 0", S_LIM)
    k("s_waitcnt vmcnt(0)")
    k("s_branch %s", lS[0])
    k.L(rr1)
    k(MV(H1B + 3, "0x7fc1"))
    for l in h1lb(H1B): k(l)
    if tk: k("s_add_u32 s98, s98, 1")
    spin(H1 + 7, o.get('ns1', 24), ar1)
    k.L(ar1)
    k("s_waitcnt vmcnt(2)")
    for l in red: k(l)
    k("s_cbranch_vccz %s", ok1)
    k(MV(H1 + 7, "0x7fc1"))
    for l in h1l: k(l)
    if tk: k("s_add_u32 s96, s96, 1")
    k("s_add_u32 s%d, s%d, 1", sCNT, sCNT)
    k("s_cmp_lt_u32 s%d, s%d", sCNT, S_LIM)
    k("s_cbranch_scc1 %s", lp1)
    k("s_mov_b32 s%d, 0", S_LIM)
    k("s_branch %s", ok1)
    if mg:
        k.L(r_kv)
        kv_refresh(k, 1, b_kv)
    k.L(r_sm)
    k("v_max3_f32 %s, %s, %s, %s", v(X), v(T1), v(T1 + 1), v(T1 + 2))
    k("v_max3_f32 %s, %s, %s, %s", v(X), v(T1 + 3), v(T2), v(X))
    k("v_max3_f32 %s, %s, %s, %s", v(X), v(T2 + 1), v(T2 + 2), v(X))
    k("v_max3_f32 %s, %s, %s, %s", v(X), v(T2 + 3), v(T0 + 2), v(X))
    k("v_max_f32 %s, %s, %s", v(X), v(T0 + 3), v(X))
    xmax(k, X, X + 1)
    for r in [T1 + i for i in range(8)] + [T0 + 2, T0 + 3]: k("v_sub_f32 %s, %s, %s", v(r), v(r), v(X))
    for i in range(8): k(EX(E + i, T1 + i))
    k(EX(T0, T0 + 2)); k(EX(T0 + 1, T0 + 3))
    for i in range(4): k(CV(E + i, E + 2 * i, E + 2 * i + 1))
    k(CV(PM, T0, T0 + 1)); k(CV(PM + 3, T0, T0 + 1))
    pv(k, False)
    k("s_mov_b32 s%d, 0x7f800000", sTHR)
    k("v_rcp_f32 %s, %s", v(LA), v(LA))
    k("v_rcp_f32 %s, %s", v(LA + 1), v(LA + 1))
    k("s_waitcnt lgkmcnt(0)")
    k("s_branch %s", b_sm)
    k.L(lexit)
    k(stkvm)
    k("s_cmp_lt_u32 s%d, 63", S_STEP)
    k("s_cbranch_scc1 %s", bexit)
    k("s_waitcnt lgkmcnt(0)")

def role_chain(k, force_slow=False):
    mg = getattr(k, 'merged', False)
    k("s_mov_b32 s54, s45")
    srds = (('Wq', S_WQ), ('Wk', S_WK), ('Wv', S_WV), ('Wo', S_WO), ('mem0', 56))
    for n, r in srds: load_srd(k, n, r)
    def after_first(k):
        for n, r in srds[1:] + (('ws', S_WS), ('dbg', S_DBG)): fin_srd(k, n, r)
        chain_setup(k)
        merged_setup(k)
        k("s_mov_b32 s%d, 0", S_STEP)
    W = s(S_WS, 4)
    def h_arm(k):
        chain_arm(k)
        k("v_lshrrev_b32 v104, 1, v90")
        k("v_and_b32 v104, 6, v104")
        k("v_and_b32 v105, 1, v1")
        k("v_add_u32 v104, v104, v105")
        k("v_lshlrev_b32 v104, 10, v104")
        k("v_lshrrev_b32 v105, 1, v91")
        k("v_lshl_add_u32 v104, v105, 6, v104")
        k("v_and_b32 v105, 1, v91")
        k("v_lshl_add_u32 v104, v105, 4, v104")
        k("s_lshl_b32 s%d, s%d, 8", sT, S_WAVE)
        for j in range(2):
            k("buffer_load_dwordx4 %s, v104, %s, s%d offen offset:%d", v(40 + 8 * j, 4), s(56, 4), sT, j * 128)
            k("buffer_load_dwordx4 %s, v104, %s, s%d offen offset:%d", v(44 + 8 * j, 4), s(56, 4), sT, j * 128 + 32)
        return 9
    lwarm = k.lab("CW"); lwend = k.lab("CWe")
    def h_mem0(k):
        k("v_and_b32 v105, 2, v1")
        k("v_mul_u32_u24 v105, 0x10101, v105")
        k("v_and_b32 v106, 2, v1")
        k("v_lshl_add_u32 v105, v106, 24, v105")
        k("v_add_u32 v105, 0x05040100, v105")
        for j in range(2):
            for i in range(4):
                k("v_perm_b32 %s, %s, %s, v105", v(MA + 4 * j + i), v(44 + 8 * j + i), v(40 + 8 * j + i))
        k("v_mov_b32 v107, 0")
        k("buffer_load_dword v108, v107, %s, 0 offen offset:%d sc1", s(S_DBG, 4), DBG_READY)
        n = 1
        if k.copt.get('cwarm', 1):
            lpc = k.lab("pc")
            k("s_getpc_b64 s[60:61]")
            k.L(lpc)
            k("s_add_u32 s60, s60, %s-%s", lwarm, lpc)
            k("s_addc_u32 s61, s61, 0")
            k("s_lshl_b32 s%d, s%d, 13", sT, S_WAVE)
            k("v_lshlrev_b32 v104, 7, v1")
            k("v_min_u32 v105, %s-%s-4, v104", lwend, lwarm)
            k("global_load_dword v116, v105, s[60:61]")
            k("v_add_u32 v104, 0x2000, v104")
            k("v_min_u32 v105, %s-%s-4, v104", lwend, lwarm)
            k("global_load_dword v117, v105, s[60:61]")
            n += 2
        return n
    def h_announce(k):
        k("s_cmp_eq_u32 s54, 0")
        k("s_cselect_b32 s%d, 1, 0x10001", sT)
        k("v_mov_b32 v106, s%d", sT)
        k("s_cmp_eq_u32 s%d, 0", S_WAVE)
        k("s_cselect_b32 s%d, 8, 0x1000", sT)
        k("v_mov_b32 v105, s%d", sT)
        k("s_mov_b64 exec, 1")
        k("buffer_atomic_add v106, v105, %s, 0 offen sc1", s(S_DBG, 4))
        k("s_mov_b64 exec, -1")
        return 1
    def h_flags(k):
        k("buffer_load_dword v109, %s, %s, s%d offen sc1", v(aFL), W, sQF)
        n = 1
        if k.copt.get('hwarm', 1):
            for base, x in ((sH1L, 0), (sH1L, 0x40000), (sH2L, 0), (sH2L, 0x2000)):
                k("s_xor_b32 s%d, s%d, 0x%x", sT, base, x)
                for off in (0, 1024):
                    k("buffer_load_dwordx4 v[112:115], %s, %s, s%d offen offset:%d sc1", v(aL16), W, sT, off)
                    n += 1
        return n
    def h_pf(k):
        k("s_waitcnt vmcnt(16)")
        k("v_cmp_eq_u32 vcc, 0, v108")
        k("s_or_b32 s%d, vcc_lo, vcc_hi", sSAFE)
        k("v_cmp_ge_u32 vcc, 1, v109")
        k("s_or_b32 s%d, s%d, vcc_lo", sSAFE, sSAFE)
        for p in range(4):
            for l in PFK(p): k(l)
        k("buffer_load_dword v110, v107, %s, 0 offen offset:8 sc1", s(S_DBG, 4))
        return 5
    def h3(k): return h_mem0(k) + h_announce(k)
    chain_load_weights(k, {-1: h_arm, 2: h3, 5: h_flags, 7: h_pf} if k.copt.get('ho', 0) == 0 else {-1: h_arm, 2: h_mem0, k.copt['ho']: h_announce, 5: h_flags, 7: h_pf}, {}, after_first)
    stamp(k, 2, 1, wgreg=S_HEAD, vt=120)
    if mg:
        lok = k.lab("CHf")
        k("s_cmp_eq_u32 s%d, 0", sSAFE)
        k("s_cbranch_scc1 %s", lok)
        wait_ready(k, 108)
        kv_refresh(k, 1)
        for p in range(4):
            for l in PFK(p): k(l)
        k.L(lok)
    k("s_mov_b32 s%d, 0", sSAFE)
    k("s_mov_b32 s%d, 0x42700000", sTHR)
    for l in PFK(4): k(l)
    k("s_waitcnt vmcnt(0)")
    k("v_readfirstlane_b32 s44, v110")
    for n in range(4):
        k(WVR(n, 0)); k(WVR(n, 1))
    for i in range(24): k("v_mov_b32 %s, 0", v(AQ + i))
    lp = k.lab("CHs"); ok = k.lab("CHok")
    k("v_mov_b32 %s, 0", v(KVM + 1))
    k("s_mov_b32 s%d, 0", sCNT)
    k.L(lp)
    k("s_and_b32 s45, s44, 0xffff")
    k("s_cmp_ge_u32 s45, 32")
    k("s_cbranch_scc1 %s", ok)
    k("buffer_load_dword %s, %s, %s, 0 offen offset:8 sc1", v(KVM), v(KVM + 1), s(S_DBG, 4))
    k("s_waitcnt vmcnt(0)")
    k("v_readfirstlane_b32 s44, %s", v(KVM))
    k("s_add_u32 s%d, s%d, 1", sCNT, sCNT)
    k("s_cmp_lt_u32 s%d, s%d", sCNT, S_LIM)
    k("s_cbranch_scc1 %s", lp)
    k("s_mov_b32 s%d, 0", S_LIM)
    k.L(ok)
    k("s_waitcnt vmcnt(0)")
    for i in range(8): k("v_mov_b32 %s, %s", v(VT + i), v(VTN + i))
    k("s_waitcnt lgkmcnt(0)")
    stamp(k, 2, 2, wgreg=S_HEAD, vt=56)
    stamp(k, 2, 4, wgreg=S_HEAD, vt=56, cyc=True)
    tick_init(k)
    if k.copt.get('plog2'):
        k("s_lshl_b32 s100, s%d, 2", S_HEAD)
        k("s_add_u32 s100, s100, s%d", S_WAVE)
        k("s_lshl_b32 s100, s100, 9")
        k("s_add_u32 s100, s100, 0x%x", TS + 8 * 65536)
    k("s_mov_b32 m0, s%d", sKTD)
    k("v_mov_b32 v1, 0")
    lslow = k.lab("CHslow"); ldone = k.lab("CHdone")
    k("s_lshr_b32 s44, s44, 16")
    k("s_cmp_lg_u32 s44, %d", 0 if not force_slow else 77)
    k("s_cbranch_scc1 %s", lslow)
    n0 = len(k.lines)
    k.L(lwarm)
    chain_loop(k, "", "F")
    k.L(lwend)
    o = getattr(k, 'copt', {})
    if o.get('free'):
        body = k.lines[n0:]; out = []
        for l in body:
            ls = l.strip()
            if 's100' in ls: out.append(l); continue
            if ls.startswith('s_cbranch_vccnz'): continue
            if ls.startswith('s_cbranch_vccz Fs0v'): l = l.replace('s_cbranch_vccz', 's_branch')
            if ls.startswith('s_cbranch_scc1 Frsm'): continue
            if 'novmem' in o['free'] and (ls.startswith('buffer_') or 'vmcnt' in ls): continue
            if 'nowait' in o['free'] and 'vmcnt' in ls: continue
            out.append(l)
        k.lines[n0:] = out
    k("s_branch %s", ldone)
    k.L(lslow)
    chain_loop(k, "sc1", "S")
    k.L(ldone)
    if k.copt.get('plog'):
        k("s_lshl_b32 s100, s%d, 2", S_HEAD)
        k("s_add_u32 s100, s100, s%d", S_WAVE)
        k("s_lshl_b32 s100, s100, 8")
        k("s_add_u32 s100, s100, 0x%x", TS + 8 * 65536)
        k("v_lshrrev_b32 v40, 2, %s", v(aL16))
        k("buffer_store_dword v1, v40, %s, s100 offen", s(S_WS, 4))
    tick_dump(k)
    k("s_waitcnt vmcnt(0)")
    stamp(k, 2, 3, wgreg=S_HEAD, vt=56)
    stamp(k, 2, 5, wgreg=S_HEAD, vt=56, cyc=True)
```

```python
from common import *

S_WS = 8
S_W  = 12
S_X  = 16
S_O  = 20
S_DBG = 24
S_WAVE = 4
ST = "sc1"
LD = "sc1"

def lane_wave(k):
    k("v_and_b32 v1, 63, v0")
    k("v_lshrrev_b32 v2, 6, v0")
    k("v_readfirstlane_b32 s%d, v2", S_WAVE)

S_SPIN = 6

def wait_ready(k, vt, off=DBG_READY):
    lp = k.lab("rdy"); ok = k.lab("rdyok")
    k("s_mov_b32 s42, 0")
    k("v_mov_b32 %s, 0", v(vt + 1))
    k.L(lp)
    k("buffer_load_dword %s, %s, %s, 0 offen offset:%d sc1", v(vt), v(vt + 1), s(S_DBG, 4), off)
    k("s_waitcnt vmcnt(0)")
    k("v_cmp_eq_u32 vcc, 0, %s", v(vt))
    k("s_cbranch_vccz %s", ok)
    k("s_sleep 1")
    k("s_add_u32 s42, s42, 1")
    k("s_cmp_lt_u32 s42, s%d", S_SPIN)
    k("s_cbranch_scc1 %s", lp)
    k("s_mov_b32 s%d, 0", S_SPIN)
    k.L(ok)

def wait_flags(k, vaddr, s_off, s_seg, vt, scnt=59, wave0=False):
    lp = k.lab("wf"); ok = k.lab("wfok")
    if wave0:
        k("s_cmp_lg_u32 s%d, 0", S_WAVE)
        k("s_cbranch_scc1 %s", ok)
    k("s_mov_b32 s%d, 0", scnt)
    k.L(lp)
    k("buffer_load_dword %s, %s, %s, s%d offen sc1", v(vt), v(vaddr), s(S_WS, 4), s_off)
    k("s_waitcnt vmcnt(0)")
    k("v_cmp_ge_u32 vcc, s%d, %s", s_seg, v(vt))
    k("s_cbranch_vccz %s", ok)
    k("s_sleep %d", getattr(k, 'copt', {}).get('slp', 1))
    k("s_add_u32 s%d, s%d, 1", scnt, scnt)
    k("s_cmp_lt_u32 s%d, s%d", scnt, S_SPIN)
    k("s_cbranch_scc1 %s", lp)
    k("s_mov_b32 s%d, 0", S_SPIN)
    k.L(ok)
    if wave0: k("s_barrier")

def set_flag(k, s_off, val, vt, drain=True):
    l = k.lab("sf")
    if drain:
        k("s_waitcnt vmcnt(0)")
        k("s_barrier")
    k("s_cmp_lg_u32 s%d, 0", S_WAVE)
    k("s_cbranch_scc1 %s", l)
    k("v_mov_b32 %s, %s", v(vt), val)
    k("v_mov_b32 %s, 0", v(vt + 1))
    k("s_mov_b64 exec, 1")
    k("buffer_store_dword %s, %s, %s, s%d offen sc1", v(vt), v(vt + 1), s(S_WS, 4), s_off)
    k("s_mov_b64 exec, -1")
    k.L(l)

def ln_finish(k, X, n, mean, var, t0, t1, OUT):
    round_bf16(k, mean, mean)
    round_bf16(k, var, var)
    k("v_add_f32 %s, 0x3727c5ac, %s", v(var), v(var))
    round_bf16(k, var, var)
    k("v_sqrt_f32 %s, %s", v(var), v(var))
    round_bf16(k, var, var)
    k("v_rcp_f32 %s, %s", v(var), v(var))
    for i in range(0, n, 2):
        k("v_sub_f32 %s, %s, %s", v(X + i), v(X + i), v(mean))
        k("v_sub_f32 %s, %s, %s", v(X + i + 1), v(X + i + 1), v(mean))
        k("v_cvt_pk_bf16_f32 %s, %s, %s", v(t0), v(X + i), v(X + i + 1))
        k("v_lshlrev_b32 %s, 16, %s", v(X + i), v(t0))
        k("v_and_b32 %s, 0xffff0000, %s", v(X + i + 1), v(t0))
        k("v_mul_f32 %s, %s, %s", v(X + i), v(X + i), v(var))
        k("v_mul_f32 %s, %s, %s", v(X + i + 1), v(X + i + 1), v(var))
        k("v_cvt_pk_bf16_f32 %s, %s, %s", v(OUT + i // 2), v(X + i), v(X + i + 1))

def role_ln1(k, s_tile, ntiles=1, after=None):
    k.c("---- LN1 role")
    k("v_lshrrev_b32 v2, 4, v1")
    k("v_and_b32 v3, 15, v1")
    k("s_lshl_b32 s40, s%d, 2", S_WAVE)
    k("v_add_u32 v2, s40, v2")
    k("v_lshlrev_b32 v4, 10, v2")
    k("v_lshl_add_u32 v4, v3, 4, v4")
    k("s_lshl_b32 s41, s%d, 14", s_tile)
    RAW = 64
    for ti in range(ntiles):
        k("s_add_u32 s43, s41, %d", ti * 32 * 16384)
        for it in range(4):
            k("buffer_load_dwordx4 %s, v4, %s, s43 offen offset:%d", v(RAW + 16 * ti + 4 * it, 4), s(S_X, 4), it * 256)
    k("v_lshrrev_b32 v5, 2, v3")
    k("v_lshlrev_b32 v5, 10, v5")
    k("v_and_b32 v6, 3, v3")
    k("v_lshl_add_u32 v5, v6, 8, v5")
    k("v_lshl_add_u32 v5, v2, 4, v5")
    X = 32
    k("s_waitcnt vmcnt(%d)", 4 * (ntiles - 1))
    k("s_mov_b32 s43, 0")
    lp = k.lab("LN1l")
    k.L(lp)
    for i in range(16):
        k("v_lshlrev_b32 %s, 16, %s", v(X + 2 * i), v(RAW + i))
        k("v_and_b32 %s, 0xffff0000, %s", v(X + 2 * i + 1), v(RAW + i))
    k("v_add_f32 v24, %s, %s", v(X), v(X + 1))
    k("v_add_f32 v25, %s, %s", v(X + 2), v(X + 3))
    for i in range(4, 32, 2):
        k("v_add_f32 v24, v24, %s", v(X + i))
        k("v_add_f32 v25, v25, %s", v(X + i + 1))
    k("v_add_f32 v24, v24, v25")
    row16_allreduce_add(k, 24)
    k("v_mul_f32 v24, 0x3b000000, v24")
    k("v_mov_b32 v25, 0")
    k("v_mov_b32 v26, 0")
    for i in range(0, 32, 2):
        k("v_sub_f32 v27, %s, v24", v(X + i))
        k("v_sub_f32 v28, %s, v24", v(X + i + 1))
        k("v_fmac_f32 v25, v27, v27")
        k("v_fmac_f32 v26, v28, v28")
    k("v_add_f32 v25, v25, v26")
    row16_allreduce_add(k, 25)
    k("v_mul_f32 v25, 0x3b000000, v25")
    ln_finish(k, X, 32, 24, 25, 26, 27, 8)
    for it in range(4):
        k("s_add_u32 s42, s41, 0x%x", XN + it * 4096)
        k("buffer_store_dwordx4 %s, v5, %s, s42 offen %s", v(8 + 4 * it, 4), s(S_WS, 4), ST)
    if ntiles > 1:
        k("s_add_u32 s43, s43, 1")
        if after: after(k, 43)
        for i in range(0, 16 * (ntiles - 1), 2): k("v_mov_b64 %s, %s", v(RAW + i, 2), v(RAW + 16 + i, 2))
        k("s_add_u32 s41, s41, %d", 32 * 16384)
        k("s_cmp_lt_u32 s43, %d", ntiles)
        k("s_cbranch_scc1 %s", lp)

def stage_rows256(k, srd, s_base, pitch, nrows, vaddr, lds_off=0):
    k("v_lshrrev_b32 %s, 4, v1", v(vaddr + 1))
    k("v_lshlrev_b32 %s, 2, %s", v(vaddr), v(vaddr + 1))
    k("v_xor_b32 %s, %s, v1", v(vaddr), v(vaddr))
    k("v_and_b32 %s, 15, %s", v(vaddr), v(vaddr))
    k("v_lshlrev_b32 %s, 4, %s", v(vaddr), v(vaddr))
    k("s_mov_b32 s44, %d", pitch)
    k("v_mad_u32_u24 %s, %s, s44, %s", v(vaddr), v(vaddr + 1), v(vaddr))
    k("s_mul_i32 s44, s%d, %d", S_WAVE, 4 * pitch)
    k("s_add_u32 s44, s44, s%d", s_base)
    k("s_lshl_b32 s45, s%d, 10", S_WAVE)
    if lds_off: k("s_add_u32 s45, s45, %d", lds_off)
    n = nrows // 16
    for i in range(n):
        k("s_mov_b32 m0, s45")
        k("buffer_load_dwordx4 %s, %s, s44 offen lds", v(vaddr), s(srd, 4))
        if i < n - 1:
            k("s_add_u32 s44, s44, %d", 16 * pitch)
            k("s_add_u32 s45, s45, 4096")

def frag_addr256(k, va, vtmp, lds_off=0):
    k("v_lshrrev_b32 %s, 4, v1", v(va))
    k("v_lshlrev_b32 %s, 3, %s", v(va), v(va))
    k("v_bfe_u32 %s, v1, 2, 2", v(vtmp))
    k("v_add_u32 %s, %s, %s", v(va), v(va), v(vtmp))
    k("v_lshlrev_b32 %s, 8, %s", v(va), v(va))
    k("v_xor_b32 %s, s%d, %s", v(vtmp), S_WAVE, v(vtmp))
    k("v_lshl_add_u32 %s, %s, 6, %s", v(va), v(vtmp), v(va))
    k("v_and_b32 %s, 3, v1", v(vtmp))
    k("v_lshl_add_u32 %s, %s, 4, %s", v(va), v(vtmp), v(va))
    if lds_off: k("v_add_u32 %s, %d, %s", v(va), lds_off, v(va))
    k("v_add_u32 %s, 0x10000, %s", v(va + 1), v(va))

def read_frags256(k, va, WREG):
    for ks in range(16):
        for t in range(2):
            for y in range(2):
                off = ks * 8192 + y * 1024 + 8 * t
                k("ds_read_b64_tr_b16 %s, %s offset:%d", u(WREG + (t * 16 + ks) * 4 + 2 * y, 2),
                  v(va + (off >> 16)), off & 0xffff)
        if ks % 3 == 2: k("s_waitcnt lgkmcnt(4)")
    k("s_waitcnt lgkmcnt(0)")

def seg_gemm_loop(k, WREG, w_is_a, s_src, src_stride, niter_sreg, epilogue, n_epi_vm, pre_dma=None, publish=None, tag="G"):
    PF = 8; NB = 16; FW = 16; ACC = 80
    k("v_lshlrev_b32 v4, 4, v1")
    k("v_mov_b32 v5, v4")
    k("s_lshl_b32 s48, s%d, 13", S_WAVE)
    k("s_add_u32 s49, s%d, s48", s_src)
    k("s_mov_b32 s50, s48")
    k("s_mov_b32 s51, 0")
    k("s_mov_b32 s52, 0")
    def dma_piece(p):
        if p == 0:
            if pre_dma: pre_dma(k)
            k("s_cmp_lt_u32 s52, s%d", niter_sreg)
            k("s_cselect_b32 s53, s49, 0")
            k("s_mov_b32 m0, s50")
        if p == 4:
            k("s_add_u32 s53, s53, 4096")
            k("s_add_u32 m0, s50, 4096")
        k("buffer_load_dwordx4 v4, %s, s53 offen offset:%d %s lds", s(S_WS, 4), (p % 4) * 1024, LD)
        if p == 7:
            k("s_add_u32 s49, s49, %s", src_stride)
            k("s_add_u32 s50, s50, 0x8000")
            k("s_and_b32 s50, s50, 0x1ffff")
            k("s_add_u32 s52, s52, 1")
    for i in range(2):
        for p in range(8): dma_piece(p)
    dma_piece(0); dma_piece(1)
    for j in range(n_epi_vm): k("buffer_load_dword v7, v4, %s, 0 offen", s(S_WS, 4))
    k("s_waitcnt vmcnt(%d)", 10 + n_epi_vm)
    k("s_barrier")
    for f in range(PF):
        k("ds_read_b128 %s, v5 offset:%d", v(FW + 4 * (f % NB), 4), f * 1024)
    lp = k.lab(tag + "loop")
    k.L(lp)
    k("v_add_u32 v6, 0x8000, v5")
    k("v_and_b32 v6, 0x1ffff, v6")
    for f in range(32):
        mt, ks = f // 16, f % 16
        if f == 32 - PF:
            k("s_waitcnt vmcnt(%d)", 8 + n_epi_vm)
            k("s_barrier")
            if publish: publish(k)
        g = f + PF
        if g < 32: k("ds_read_b128 %s, v5 offset:%d", v(FW + 4 * (g % NB), 4), g * 1024)
        else: k("ds_read_b128 %s, v6 offset:%d", v(FW + 4 * (g % NB), 4), (g - 32) * 1024)
        k("s_waitcnt lgkmcnt(%d)", PF)
        for t in range(2):
            acc = v(ACC + (mt * 2 + t) * 4, 4)
            wf = u(WREG + (t * 16 + ks) * 4, 4); xf = v(FW + 4 * (f % NB), 4)
            A, B = (wf, xf) if w_is_a else (xf, wf)
            k("v_mfma_f32_16x16x32_bf16 %s, %s, %s, %s", acc, A, B, "0" if ks == 0 else acc)
            if t == 0 and f % 4 == 0: dma_piece(((f + 8) // 4) % 8)
    epilogue(k, ACC)
    k("v_mov_b32 v5, v6")
    k("s_add_u32 s51, s51, 1")
    k("s_cmp_lt_u32 s51, s%d", niter_sreg)
    k("s_cbranch_scc1 %s", lp)
    k("s_waitcnt vmcnt(0) lgkmcnt(0)")

def role_qkv(k, s_idx, pre_dma=None, publish=None, pre_loop=None):
    k.c("---- QKV role")
    stamp(k, 1, 0, vt=120)
    WREG = 128
    k("s_lshr_b32 s32, s%d, 6", s_idx)
    k("s_bfe_u32 s33, s%d, 0x50001", s_idx)
    k("s_and_b32 s34, s%d, 1", s_idx)
    k("s_lshl_b32 s35, s32, 3")
    k("s_add_u32 s35, s35, 24")
    k("s_cmp_eq_u32 s32, 2")
    k("s_cselect_b32 s35, 16, s35")
    k("s_load_dwordx2 %s, s[0:1], s35", s(S_W, 2))
    k("s_lshl_b32 s36, s33, 8")
    k("s_waitcnt lgkmcnt(0)")
    fin_srd(k, 'Wq', S_W)
    stage_rows256(k, S_W, 36, 8192, 512, 8)
    frag_addr256(k, 10, 12)
    k("s_waitcnt vmcnt(0)")
    k("s_barrier")
    stamp(k, 1, 1, vt=120)
    read_frags256(k, 10, WREG)
    k("s_barrier")
    stamp(k, 1, 2, vt=120)
    k("s_lshl_b32 s37, s32, 24")
    k("s_add_u32 s37, s37, 0x%x", KIMG)
    k("s_cmp_eq_u32 s32, 2")
    k("s_cselect_b32 s37, 0x%x, s37", QIMG)
    k("s_lshl_b32 s38, s33, 13")
    k("s_add_u32 s37, s37, s38")
    k("s_lshl_b32 s38, s34, 18")
    k("s_add_u32 s37, s37, s38")
    k("s_lshl_b32 s38, s34, 15")
    if XN: k("s_add_u32 s38, s38, 0x%x", XN)
    k("s_mov_b32 s39, 32")
    if pre_loop: pre_loop(k)
    lv = k.lab("QKVv"); lend = k.lab("QKVend")
    k("s_cmp_eq_u32 s32, 1")
    k("s_cbranch_scc1 %s", lv)
    def epi_qk(k, ACC):
        for mt in range(2):
            for t in range(2):
                for h in range(2):
                    r = ACC + (mt * 2 + t) * 4 + 2 * h
                    k("v_cvt_pk_bf16_f32 %s, %s, %s", v(112 + mt * 4 + t * 2 + h), v(r), v(r + 1))
        k("buffer_store_dwordx4 v[112:115], v4, %s, s37 offen %s", s(S_WS, 4), ST)
        k("s_add_u32 s40, s37, 4096")
        k("buffer_store_dwordx4 v[116:119], v4, %s, s40 offen %s", s(S_WS, 4), ST)
        k("s_add_u32 s37, s37, 0x80000")
    k("s_lshl_b32 s40, s%d, 10", S_WAVE)
    k("s_add_u32 s37, s37, s40")
    seg_gemm_loop(k, WREG, True, 38, "0x10000", 39, epi_qk, 2, pre_dma, publish, tag="QK")
    k("s_branch %s", lend)
    k.L(lv)
    def epi_v(k, ACC):
        for t in range(2):
            for mt in range(2):
                for h in range(2):
                    r = ACC + (mt * 2 + t) * 4 + 2 * h
                    k("v_cvt_pk_bf16_f32 %s, %s, %s", v(112 + t * 4 + mt * 2 + h), v(r), v(r + 1))
        k("buffer_store_dwordx4 v[112:115], v4, %s, s37 offen %s", s(S_WS, 4), ST)
        k("buffer_store_dwordx4 v[116:119], v4, %s, s37 offen offset:1024 %s", s(S_WS, 4), ST)
        k("buffer_store_dwordx4 v[120:123], v4, %s, s41 offen %s", s(S_WS, 4), ST)
        k("s_add_u32 s37, s37, 0x80000")
        k("s_add_u32 s41, s41, 0x40000")
    k("s_lshl_b32 s40, s%d, 11", S_WAVE)
    k("s_add_u32 s37, s37, s40")
    k("s_lshl_b32 s41, s34, 17")
    k("s_lshl_b32 s40, s33, 12")
    k("s_add_u32 s41, s41, s40")
    k("s_lshl_b32 s40, s%d, 10", S_WAVE)
    k("s_add_u32 s41, s41, s40")
    k("s_add_u32 s41, s41, 0x%x", KM)
    for i in range(4): k("v_mov_b32 v%d, -1", 120 + i)
    seg_gemm_loop(k, WREG, False, 38, "0x10000", 39, epi_v, 3, pre_dma, publish, tag="V")
    k.L(lend)
    stamp(k, 1, 3, vt=120)
```

```python
from roles import *
from chain import xmax
import struct
def f2u(x): return struct.unpack('<I', struct.pack('<f', x))[0]
CSC = 0.08838834764831845 * 1.4426950408889634
def MF(d, A, B, first): return "v_mfma_f32_16x16x32_bf16 %s, %s, %s, %s" % (v(d, 4), u(A, 4), u(B, 4), "0" if first else v(d, 4))
def M16(d, A, B): return "v_mfma_f32_16x16x16_bf16 %s, %s, %s, %s" % (v(d, 4), v(A, 2), v(B, 2), v(d, 4))
def CV(d, a_, b_): return "v_cvt_pk_bf16_f32 %s, %s, %s" % (v(d), v(a_), v(b_))

def xsum(k, r, tmp):
    k("v_mov_b32 %s, %s", v(tmp), v(r))
    k("v_permlane32_swap_b32 %s, %s", v(r), v(tmp))
    k("v_add_f32 %s, %s, %s", v(r), v(r), v(tmp))
    k("v_mov_b32 %s, %s", v(tmp), v(r))
    k("v_permlane16_swap_b32 %s, %s", v(r), v(tmp))
    k("v_add_f32 %s, %s, %s", v(r), v(r), v(tmp))

def last_seg(k, dst, s_seg):
    k("s_add_u32 s%d, s%d, 60", dst, s_seg)
    k("s_cmp_eq_u32 s%d, 0", s_seg)
    k("s_cselect_b32 s%d, 63, s%d", dst, dst)

def role_bc(k, s_idx, s_seg, nstride, wait_qkv=None, wait_kvm=None, publish=None, hint=None):
    k.c("---- BC role")
    W = s(S_WS, 4); WREG = 256
    load_srd(k, 'Wo', S_W)
    k("s_lshr_b32 s32, s%d, 2", s_idx)
    k("s_and_b32 s33, s%d, 3", s_idx)
    k("s_lshl_b32 s36, s32, 19")
    k("s_lshl_b32 s37, s33, 8")
    k("s_add_u32 s36, s36, s37")
    k("s_waitcnt lgkmcnt(0)")
    fin_srd(k, 'Wo', S_W)
    stage_rows256(k, S_W, 36, 1024, 512, 8)
    frag_addr256(k, 10, 12)
    k("s_waitcnt vmcnt(0)")
    k("s_barrier")
    read_frags256(k, 10, WREG)
    k("s_barrier")
    QF, KF, VF, KV, XK = 16, 48, 80, 112, 128
    T, TM, P, PM, OT, FW, ACC = 144, 156, 164, 172, 180, 192, 180
    aL16, aXW, aXR, aOW, aOR = 4, 5, 6, 7, 8
    k("v_lshlrev_b32 v4, 4, v1")
    k("v_and_b32 v10, 15, v1")
    k("v_lshrrev_b32 v11, 4, v1")
    k("v_bfe_u32 v12, v1, 2, 2")
    k("v_and_b32 v13, 3, v1")
    k("s_mul_i32 s38, s%d, 5120", S_WAVE)
    k("s_add_u32 s38, s38, 65536")
    k("v_mul_u32_u24 v14, 320, v11")
    k("v_lshl_add_u32 v14, v10, 3, v14")
    k("v_add_u32 v%d, s38, v14", aXW)
    k("v_mul_u32_u24 v14, 320, v13")
    k("v_lshrrev_b32 v15, 2, v1")
    k("v_lshl_add_u32 v14, v15, 3, v14")
    k("v_add_u32 v%d, s38, v14", aXR)
    k("s_lshl_b32 s38, s%d, 12", S_WAVE)
    k("v_add_u32 v%d, s38, v4", aOW)
    k("v_mov_b32 v%d, v4", aOR)
    k("v_lshlrev_b32 v14, 2, v11")
    for j in range(4):
        k("v_add_u32 v15, %d, v14", j)
        k("v_cmp_gt_u32 %s, v15, v10", s(64 + 2 * j, 2))
    k("v_mov_b32 v9, 0xff800000")
    k("s_mov_b32 s41, 0x%x", f2u(CSC))
    k("s_lshl_b32 s34, s32, 2")
    k("s_add_u32 s34, s34, s%d", S_WAVE)
    k("s_lshl_b32 s35, s34, 13")
    k("s_lshl_b32 s39, s34, 12")
    k("s_lshl_b32 s40, s33, 2")
    k("s_add_u32 s40, s40, s%d", S_WAVE)
    k("s_lshl_b32 s40, s40, 8")
    k("s_lshl_b32 s38, s32, 13")
    k("s_add_u32 s40, s40, s38")
    k("s_add_u32 s40, s40, 0x%x", PART)
    k("v_lshlrev_b32 v184, 16, v12")
    k("v_lshl_add_u32 v184, v11, 6, v184")
    k("v_lshl_add_u32 v184, v13, 4, v184")
    k("v_add_u32 v185, 4096, v184")
    def load_qkv(sseg):
        k("s_lshl_b32 s45, s%d, 18", sseg)
        k("s_add_u32 s45, s45, s35")
        for base, R in ((QIMG, QF), (KIMG, KF), (VIMG, VF)):
            for hf in range(2):
                k("s_add_u32 s43, s45, 0x%x", base + hf * 4096)
                for i in range(4):
                    k("buffer_load_dwordx4 %s, v4, %s, s43 offen offset:%d %s", a(128 + R - QF + 16 * hf + 4 * i, 4), W, i * 1024, LD)
    if hint:
        last_seg(k, 42, s_seg)
        k("s_lshl_b32 s42, s42, 19")
        k("s_add_u32 s42, s42, s40")
        k("s_add_u32 s43, s42, 0x40000")
        for i in range(4): k("v_mov_b32 v%d, -1", 188 + i)
        for sr in (42, 43):
            for t in range(2): k("buffer_store_dwordx4 v[188:191], v%d, %s, s%d offen %s", 184 + t, W, sr, ST)
    if wait_qkv: wait_qkv(k, s_seg)
    load_qkv(s_seg)
    lp = k.lab("BCl")
    k.L(lp)
    k("s_waitcnt vmcnt(0)")
    for i in range(96): k("v_accvgpr_read_b32 v%d, a%d", QF + i, 128 + i)
    for kb in range(4):
        k(MF(T, KF + 4 * kb, QF + 4 * kb, kb == 0))
        k(MF(T + 4, KF + 4 * kb, QF + 16 + 4 * kb, kb == 0))
        k(MF(T + 8, KF + 16 + 4 * kb, QF + 16 + 4 * kb, kb == 0))
    for j in range(4):
        k("v_cndmask_b32 %s, %s, v9, %s", v(T + j), v(T + j), s(64 + 2 * j, 2))
        k("v_cndmask_b32 %s, %s, v9, %s", v(T + 8 + j), v(T + 8 + j), s(64 + 2 * j, 2))
    MX, SM, TMP, M2, S2 = 10, 12, 14, 180, 182
    vals = [[T + j for j in range(4)], [T + 4 + j for j in range(8)]]
    for mt in range(2):
        vs = vals[mt]
        k("v_max_f32 %s, %s, %s", v(MX + mt), v(vs[0]), v(vs[1]))
        for i in range(2, len(vs), 2):
            k("v_max3_f32 %s, %s, %s, %s", v(MX + mt), v(vs[i]), v(vs[i + 1]), v(MX + mt))
    for mt in range(2): xmax(k, MX + mt, TMP + mt)
    for mt in range(2):
        k("v_mul_f32 %s, s41, %s", v(MX + mt), v(MX + mt))
        for r in vals[mt]: k("v_fma_f32 %s, %s, s41, -%s", v(r), v(r), v(MX + mt))
        for r in vals[mt]: k("v_exp_f32 %s, %s", v(r), v(r))
    for mt in range(2):
        vs = vals[mt]
        k("v_add_f32 %s, %s, %s", v(SM + mt), v(vs[0]), v(vs[1]))
        for r in vs[2:]: k("v_add_f32 %s, %s, %s", v(SM + mt), v(SM + mt), v(r))
    k("v_mov_b32 %s, 0", v(P + 2)); k("v_mov_b32 %s, 0", v(P + 3))
    for mt in range(2):
        k("v_mov_b32 %s, 0", v(PM + 4 * mt + 1)); k("v_mov_b32 %s, 0", v(PM + 4 * mt + 2))
    k("s_lshl_b32 s42, s%d, 17", s_seg)
    k("s_add_u32 s42, s42, s39")
    k("s_add_u32 s42, s42, 0x%x", KM)
    lstamp(k, 0)
    lpk = k.lab("BCk"); okk = k.lab("BCko")
    k("s_mov_b32 s59, 0")
    k.L(lpk)
    for i in range(4):
        k("buffer_load_dwordx4 %s, v4, %s, s42 offen offset:%d %s", v(KV + 4 * i, 4), W, i * 1024, LD)
    k("s_waitcnt vmcnt(0)")
    k("v_max3_u32 v2, %s, %s, %s", v(KV), v(KV + 4), v(KV + 8))
    k("v_max_u32 v2, v2, %s", v(KV + 12))
    k("v_cmp_eq_u32 vcc, -1, v2")
    k("s_cbranch_vccz %s", okk)
    k("s_sleep %d", getattr(k, 'copt', {}).get('slpk', 2))
    k("s_add_u32 s59, s59, 1")
    k("s_cmp_lt_u32 s59, s%d", S_SPIN)
    k("s_cbranch_scc1 %s", lpk)
    k("s_mov_b32 s%d, 0", S_SPIN)
    k.L(okk)
    lstamp(k, 1)
    lnw = k.lab("BCnw")
    k("s_add_u32 s44, s%d, %d", s_seg, nstride)
    k("s_cmp_ge_u32 s44, 64")
    k("s_cbranch_scc1 %s", lnw)
    if wait_qkv: wait_qkv(k, 44)
    load_qkv(44)
    k.L(lnw)
    k(".aw_on")
    for i in range(4):
        k("ds_write_b32 v%d, %s offset:%d", aXW, v(KV + 4 * i), i * 1280)
        k("ds_write_b32 v%d, %s offset:%d", aXW, v(KV + 4 * i + 1), i * 1280 + 128)
        for y in range(2):
            k("ds_read_b64_tr_b16 %s, v%d offset:%d", v(XK + 4 * i + 2 * y, 2), aXR, i * 1280 + y * 128)
    lstamp(k, 2)
    for kb in range(4):
        k(MF(TM, XK + 4 * kb, QF + 4 * kb, kb == 0))
        k(MF(TM + 4, XK + 4 * kb, QF + 16 + 4 * kb, kb == 0))
    for mt in range(2):
        k("v_mul_f32 %s, s41, %s", v(TM + 4 * mt), v(TM + 4 * mt))
        k("v_mul_f32 %s, s41, %s", v(TM + 4 * mt + 1), v(TM + 4 * mt + 1))
        k("v_max3_f32 %s, %s, %s, %s", v(M2 + mt), v(TM + 4 * mt), v(TM + 4 * mt + 1), v(MX + mt))
    def x2(op, r, tmp):
        for sw in ("v_permlane32_swap_b32", "v_permlane16_swap_b32"):
            for mt in range(2): k("v_mov_b32 %s, %s", v(tmp + mt), v(r + mt))
            for mt in range(2): k("%s %s, %s", sw, v(r + mt), v(tmp + mt))
            for mt in range(2): k("%s %s, %s, %s", op, v(r + mt), v(r + mt), v(tmp + mt))
    x2("v_max_f32", M2, TMP)
    for mt in range(2):
        k("v_sub_f32 %s, %s, %s", v(MX + mt), v(MX + mt), v(M2 + mt))
        k("v_sub_f32 %s, %s, %s", v(TM + 4 * mt), v(TM + 4 * mt), v(M2 + mt))
        k("v_sub_f32 %s, %s, %s", v(TM + 4 * mt + 1), v(TM + 4 * mt + 1), v(M2 + mt))
    for mt in range(2):
        for r in (MX + mt, TM + 4 * mt, TM + 4 * mt + 1): k("v_exp_f32 %s, %s", v(r), v(r))
    for mt in range(2):
        k("v_fma_f32 %s, %s, %s, %s", v(SM + mt), v(SM + mt), v(MX + mt), v(TM + 4 * mt))
        k("v_add_f32 %s, %s, %s", v(SM + mt), v(SM + mt), v(TM + 4 * mt + 1))
    x2("v_add_f32", SM, TMP)
    for mt in range(2): k("v_rcp_f32 %s, %s", v(SM + mt), v(SM + mt))
    for mt in range(2):
        k("v_mul_f32 %s, %s, %s", v(MX + mt), v(MX + mt), v(SM + mt))
        k("v_mul_f32 %s, %s, %s", v(TM + 4 * mt), v(TM + 4 * mt), v(SM + mt))
        k("v_mul_f32 %s, %s, %s", v(TM + 4 * mt + 1), v(TM + 4 * mt + 1), v(SM + mt))
    for mt in range(2):
        for r in vals[mt]: k("v_mul_f32 %s, %s, %s", v(r), v(r), v(MX + mt))
    k(CV(P, T, T + 1)); k(CV(P + 1, T + 2, T + 3))
    for i in range(4): k(CV(P + 4 + i, T + 4 + 2 * i, T + 5 + 2 * i))
    for mt in range(2):
        k(CV(PM + 4 * mt, TM + 4 * mt, TM + 4 * mt + 1)); k(CV(PM + 4 * mt + 3, TM + 4 * mt, TM + 4 * mt + 1))
    O = lambda wp, mt, t: FW + ((wp * 2 + mt) * 2 + t) * 4
    def pack(wp):
        out = []
        for mt in range(2):
            o0 = O(wp, mt, 0)
            out += [CV(o0 + i, o0 + 2 * i, o0 + 2 * i + 1) for i in range(4)]
            out += ["ds_write_b128 v%d, %s offset:%d" % (aOW, v(o0, 4), mt * 16384 + wp * 1024)]
        return out
    pend = []
    for wp in range(4):
        ms = [MF(O(wp, mt, t), VF + 4 * (2 * wp + t), P + 4 * mt, True) for mt in range(2) for t in range(2)] + \
             [M16(O(wp, mt, t), KV + 4 * wp + 2, PM + 4 * mt + 2 * t) for mt in range(2) for t in range(2)]
        for mi, m_ in enumerate(ms):
            k(m_)
            if mi >= 2:
                for _ in range(2):
                    if pend: k(pend.pop(0))
        pend = pack(wp)
    for x in pend: k(x)
    k(".aw_writes")
    k("s_barrier")
    lstamp(k, 3)
    PF = 8
    AC = T
    for f in range(PF): k("ds_read_b128 %s, v%d offset:%d", v(FW + 4 * (f % 16), 4), aOR, f * 1024)
    for f in range(32):
        mt, ks = f // 16, f % 16
        if f + PF < 32: k("ds_read_b128 %s, v%d offset:%d", v(FW + 4 * ((f + PF) % 16), 4), aOR, (f + PF) * 1024)
        for t in range(2): k(MF(AC + (mt * 2 + t) * 4, WREG + (t * 16 + ks) * 4, FW + 4 * (f % 16), ks == 0))
        if hint and f == k.copt.get('hbc', 99): hint(k, s_seg)
        if f == 20:
            k("s_lshl_b32 s42, s%d, 19", s_seg)
            k("s_add_u32 s42, s42, s40")
            for t in range(2): k("buffer_store_dwordx4 %s, v%d, %s, s42 offen %s", v(AC + 4 * t, 4), 184 + t, W, ST)
    k(".aw_off")
    k("s_add_u32 s42, s42, 0x40000")
    for t in range(2): k("buffer_store_dwordx4 %s, v%d, %s, s42 offen %s", v(AC + 8 + 4 * t, 4), 184 + t, W, ST)
    k("v_xor_b32 v%d, 0x8000, v%d", aOW, aOW)
    k("v_xor_b32 v%d, 0x8000, v%d", aOR, aOR)
    lstamp(k, 4)
    if hint: hint(k, s_seg, True)
    if publish: publish(k, s_seg)
    lstamp(k, 5)
    k("s_add_u32 s%d, s%d, %d", s_seg, s_seg, nstride)
    k("s_cmp_lt_u32 s%d, 64", s_seg)
    k("s_cbranch_scc1 %s", lp)

def role_red(k, s_tq, s_seg, nstride, wait=None, publish=None, hint=None, wait_final=None):
    k.c("---- R role")
    W = s(S_WS, 4)
    k("v_and_b32 v10, 3, v1")
    k("v_bfe_u32 v11, v1, 2, 2")
    k("v_lshrrev_b32 v12, 4, v1")
    k("s_lshl_b32 s32, s%d, 2", S_WAVE)
    k("v_add_u32 v12, s32, v12")
    k("s_and_b32 s33, s%d, 3", s_tq)
    k("s_lshl_b32 s33, s33, 2")
    k("v_add_u32 v13, s33, v10")
    k("v_lshl_add_u32 v14, v11, 4, v13")
    k("v_lshlrev_b32 v14, 4, v14")
    k("v_lshlrev_b32 v4, 4, v0")
    k("v_add_u32 v9, 4096, v4")
    k("v_lshl_add_u32 v5, v12, 10, v14")
    k("v_lshlrev_b32 v6, 10, v13")
    k("v_lshl_add_u32 v6, v12, 6, v6")
    k("v_lshl_add_u32 v6, v11, 4, v6")
    k("s_lshr_b32 s34, s%d, 2", s_tq)
    k("s_lshl_b32 s35, s%d, 16", s_tq)
    k("s_add_u32 s35, s35, 0x%x", PART)
    k("s_lshl_b32 s36, s34, 14")
    k("s_lshl_b32 s37, s%d, 5", S_WAVE)
    k("v_lshlrev_b32 v8, 3, v10")
    k("v_add_u32 v7, s37, v8")
    if hint:
        last_seg(k, 39, s_seg)
        k("s_lshl_b32 s39, s39, 15")
        k("s_add_u32 s39, s39, s36")
        for i in range(4): k("v_mov_b32 v%d, -1", 16 + i)
        for base in (HIMG, HNIMG):
            k("s_add_u32 s38, s39, 0x%x", base)
            k("buffer_store_dwordx4 v[16:19], v5, %s, s38 offen %s", W, ST)
        k("s_waitcnt vmcnt(0)")
    lp = k.lab("Rl"); lre = k.lab("Rre"); lfb = k.lab("Rfb"); lgo = k.lab("Rgo"); lend = k.lab("Rend")
    k.L(lp)
    k("s_mov_b32 s73, 61")
    k("s_lshl_b32 s39, s%d, 15", s_seg)
    k("s_add_u32 s39, s39, s36")
    k("buffer_load_dwordx4 v[16:19], v6, %s, s39 offen", s(S_X, 4))
    lstamp(k, 0)
    if wait: wait(k, s_seg)
    lstamp(k, 1)
    k.L(lre)
    k("s_lshl_b32 s38, s%d, 19", s_seg)
    k("s_add_u32 s38, s38, s35")
    PB = 32
    for hg in range(8):
        for t in range(2):
            k("buffer_load_dwordx4 %s, v%d, %s, s38 offen %s", v(PB + 8 * hg + 4 * t, 4), 9 if t else 4, W, LD)
        if hg < 7: k("s_add_u32 s38, s38, 8192")
    X = 20
    k("s_waitcnt vmcnt(16)")
    for j in range(4):
        k("v_lshlrev_b32 %s, 16, %s", v(X + 2 * j), v(16 + j))
        k("v_and_b32 %s, 0xffff0000, %s", v(X + 2 * j + 1), v(16 + j))
    for hg in range(1, 8):
        k("s_waitcnt vmcnt(%d)", 14 - 2 * hg)
        for i in range(8): k("v_add_f32 %s, %s, %s", v(PB + i), v(PB + i), v(PB + 8 * hg + i))
    lstamp(k, 2)
    if hint:
        k("v_cmp_u_f32 vcc, %s, %s", v(PB), v(PB + 4))
        k("s_cbranch_vccnz %s", lfb)
        k.L(lgo)
    H = 40
    for i in range(0, 8, 2):
        k(CV(28, PB + i, PB + i + 1))
        k("v_lshlrev_b32 v29, 16, v28")
        k("v_and_b32 v28, 0xffff0000, v28")
        k("v_add_f32 %s, %s, v29", v(X + i), v(X + i))
        k("v_add_f32 %s, %s, v28", v(X + i + 1), v(X + i + 1))
        k(CV(H + i // 2, X + i, X + i + 1))
        k("v_lshlrev_b32 %s, 16, %s", v(X + i), v(H + i // 2))
        k("v_and_b32 %s, 0xffff0000, %s", v(X + i + 1), v(H + i // 2))
    k("s_add_u32 s38, s39, 0x%x", HIMG)
    k("buffer_store_dwordx4 %s, v5, %s, s38 offen %s", v(H, 4), W, ST)
    def red16(r, tmp):
        for sh in (4, 8): k("v_add_f32_dpp %s, %s, %s row_ror:%d row_mask:0xf bank_mask:0xf", v(r), v(r), v(r), sh)
        xsum(k, r, tmp)
    k("v_add_f32 v44, %s, %s", v(X), v(X + 1))
    for i in range(2, 8): k("v_add_f32 v44, v44, %s", v(X + i))
    red16(44, 46)
    k("v_mul_f32 v44, 0x3c000000, v44")
    k("v_mov_b32 v45, 0")
    for i in range(8):
        k("v_sub_f32 v46, %s, v44", v(X + i))
        k("v_fmac_f32 v45, v46, v46")
    red16(45, 46)
    k("ds_write_b64 v7, v[44:45]")
    k("s_waitcnt lgkmcnt(0)")
    k("s_barrier")
    for w in range(4): k("ds_read_b64 %s, v8 offset:%d", v(48 + 2 * w, 2), 32 * w)
    k("v_xor_b32 v7, 128, v7")
    k("v_xor_b32 v8, 128, v8")
    k("s_waitcnt lgkmcnt(0)")
    k("v_add_f32 v44, v48, v50"); k("v_add_f32 v46, v52, v54"); k("v_add_f32 v44, v44, v46")
    k("v_mul_f32 v44, 0.25, v44")
    k("v_add_f32 v45, v49, v51"); k("v_add_f32 v46, v53, v55"); k("v_add_f32 v45, v45, v46")
    k("v_mov_b32 v47, 0")
    for w in range(4):
        k("v_sub_f32 v46, %s, v44", v(48 + 2 * w))
        k("v_fmac_f32 v47, v46, v46")
    k("v_mul_f32 v47, 0x43000000, v47")
    k("v_add_f32 v45, v45, v47")
    k("v_mul_f32 v45, 0x3b000000, v45")
    if hint and k.copt.get('hr', 0): hint(k, s_seg)
    ln_finish(k, X, 8, 44, 45, 46, 47, 56)
    k("s_add_u32 s38, s39, 0x%x", HNIMG)
    k("buffer_store_dwordx4 v[56:59], v5, %s, s38 offen %s", W, ST)
    lstamp(k, 4)
    if hint: hint(k, s_seg, True)
    if publish: publish(k, s_seg)
    lstamp(k, 5)
    k("s_add_u32 s%d, s%d, %d", s_seg, s_seg, nstride)
    k("s_cmp_lt_u32 s%d, 64", s_seg)
    k("s_cbranch_scc1 %s", lp)
    if hint:
        k("s_branch %s", lend)
        k.L(lfb)
        k("s_cmp_lt_u32 s%d, s73", s_seg)
        k("s_cbranch_scc1 %s", lgo)
        k("s_mov_b32 s73, 64")
        wait_final(k)
        k("s_branch %s", lre)
        k.L(lend)

def role_up(k, s_u, s_seg, nstride, niter_sreg, pre_dma=None, publish=None, wait=None, hint=None, wait_final=None):
    k.c("---- U role")
    W = s(S_WS, 4); WREG = 128
    load_srd(k, 'w1', S_W); load_srd(k, 'w3', S_X)
    k("v_lshrrev_b32 v8, 3, v1")
    k("s_mov_b32 s32, 2752")
    k("v_mul_lo_u32 v8, v8, s32")
    k("v_and_b32 v9, 7, v1")
    k("v_lshl_add_u32 v8, v9, 4, v8")
    k("s_lshl_b32 s33, s%d, 7", s_u)
    k("s_mul_i32 s34, s%d, %d", S_WAVE, 8 * 2752)
    k("s_add_u32 s33, s33, s34")
    k("v_add_u32 v8, s33, v8")
    k("s_lshl_b32 s35, s%d, 10", S_WAVE)
    k("s_waitcnt lgkmcnt(0)")
    fin_srd(k, 'w1', S_W); fin_srd(k, 'w3', S_X)
    for i in range(16):
        k("s_add_u32 m0, s35, %d", i * 4096)
        k("buffer_load_dwordx4 v8, %s, 0 offen lds", s(S_W, 4))
        k("s_add_u32 m0, s35, %d", 65536 + i * 4096)
        k("buffer_load_dwordx4 v8, %s, 0 offen lds", s(S_X, 4))
        if i < 15: k("v_add_u32 v8, %d, v8", 32 * 2752)
    WREG = 256
    k("v_lshrrev_b32 v10, 4, v1")
    k("v_bfe_u32 v12, v1, 2, 2")
    k("v_lshl_add_u32 v10, v10, 3, v12")
    k("v_lshlrev_b32 v10, 7, v10")
    k("v_and_b32 v12, 3, v1")
    k("v_lshl_add_u32 v10, v12, 4, v10")
    k("s_lshr_b32 s36, s%d, 1", S_WAVE)
    k("s_lshl_b32 s37, s36, 6")
    k("v_add_u32 v10, s37, v10")
    k("v_add_u32 v11, 0x10000, v10")
    k("s_waitcnt vmcnt(0)")
    k("s_barrier")
    for ks in range(16):
        for m in range(2):
            for hf in range(2):
                for y in range(2):
                    k("ds_read_b64_tr_b16 %s, v%d offset:%d", u(WREG + ((m * 2 + hf) * 16 + ks) * 4 + 2 * y, 2), 10 + m, ks * 4096 + y * 512 + 8 * hf)
        k("s_waitcnt lgkmcnt(4)")
    k("s_waitcnt lgkmcnt(0)")
    k("s_barrier")
    k("s_and_b32 s37, s%d, 1", S_WAVE)
    k("s_lshl_b32 s39, s%d, 1", s_u)
    k("s_add_u32 s39, s39, s36")
    k("v_lshlrev_b32 v4, 4, v1")
    k("s_cmp_lt_u32 s39, 43")
    k("s_cselect_b32 s40, 0, 0x40000000")
    k("v_add_u32 v12, s40, v4")
    k("s_lshl_b32 s39, s39, 10")
    k("s_mul_i32 s40, s%d, 88064", s_seg)
    k("s_add_u32 s39, s39, s40")
    k("s_mul_i32 s40, s37, 44032")
    k("s_add_u32 s39, s39, s40")
    k("s_add_u32 s39, s39, 0x%x", ACT)
    k("s_lshl_b32 s38, s%d, 15", s_seg)
    k("s_add_u32 s38, s38, 0x%x", HNIMG)
    k("s_mov_b32 s41, 0xbfb8aa3b")
    k("s_lshl_b32 s40, s37, 14")
    k("v_add_u32 v5, s40, v4")
    k("s_lshl_b32 s48, s36, 10")
    k("s_add_u32 s48, s48, s40")
    k("s_add_u32 s38, s38, s48")
    if hint:
        last_seg(k, 49, s_seg)
        k("s_sub_u32 s49, s49, s%d", s_seg)
        k("s_mul_i32 s49, s49, 88064")
        k("s_add_u32 s49, s49, s39")
        for i in range(4): k("v_mov_b32 v%d, -1", 16 + i)
        k("buffer_store_dwordx4 v[16:19], v12, %s, s49 offen %s", W, ST)
        k("s_waitcnt vmcnt(0)")
    lp = k.lab("Ul"); lfb = k.lab("Ufb"); lgo = k.lab("Ugo"); lend = k.lab("Uend")
    k.L(lp)
    lstamp(k, 0)
    if wait: wait(k, s_seg)
    lstamp(k, 1)
    for i in range(8):
        k("s_add_u32 m0, s48, %d", i * 2048)
        k("s_add_u32 s49, s38, %d", i * 2048)
        k("buffer_load_dwordx4 v4, %s, s49 offen %s lds", W, LD)
    FW = 16; AC = 80
    k(".aw_on")
    for half in range(2):
        k("s_waitcnt vmcnt(%d)", 4 - 4 * half)
        k("s_barrier")
        lstamp(k, 2 + half)
        for f in range(8): k("ds_read_b128 %s, v5 offset:%d", v(FW + 4 * (half * 8 + f), 4), (half * 8 + f) * 1024)

        for f in range(half * 8, half * 8 + 8):
            for q in range(4): k(MF(AC + 4 * q, WREG + (q * 16 + f) * 4, FW + 4 * f, f == 0))
    k(".aw_off")
    if hint:
        k("v_cmp_u_f32 vcc, %s, %s", v(AC), v(AC))
        k("s_cbranch_vccnz %s", lfb)
        k.L(lgo)
        if k.copt.get('hu', 0): hint(k, s_seg)
    g0 = AC; u0 = AC + 8; TT = 96
    for r in range(AC, AC + 16, 2):
        k(CV(TT, r, r + 1))
        k("v_lshlrev_b32 %s, 16, %s", v(r), v(TT))
        k("v_and_b32 %s, 0xffff0000, %s", v(r + 1), v(TT))
    for j in range(8): k("v_mul_f32 %s, s41, %s", v(TT + j), v(g0 + j))
    for j in range(8): k("v_exp_f32 %s, %s", v(TT + j), v(TT + j))
    for j in range(8): k("v_add_f32 %s, 1.0, %s", v(TT + j), v(TT + j))
    for j in range(8): k("v_rcp_f32 %s, %s", v(TT + j), v(TT + j))
    for j in range(8): k("v_mul_f32 %s, %s, %s", v(g0 + j), v(g0 + j), v(TT + j))
    for r in range(g0, g0 + 8, 2):
        k(CV(TT, r, r + 1))
        k("v_lshlrev_b32 %s, 16, %s", v(r), v(TT))
        k("v_and_b32 %s, 0xffff0000, %s", v(r + 1), v(TT))
    for j in range(8): k("v_mul_f32 %s, %s, %s", v(g0 + j), v(g0 + j), v(u0 + j))
    for j in range(4): k(CV(TT + j, g0 + 2 * j, g0 + 2 * j + 1))
    k("buffer_store_dwordx4 %s, v12, %s, s39 offen %s", v(TT, 4), W, ST)
    k("s_add_u32 s39, s39, %d", 88064 * nstride)
    k("s_add_u32 s38, s38, %d", 32768 * nstride)
    lstamp(k, 4)
    if hint:
        hint(k, s_seg, True)
        ls_ = k.lab("Uwf")
        k("s_cmp_lt_u32 s%d, 61", s_seg)
        k("s_cbranch_scc1 %s", ls_)
        wait_final(k)
        k.L(ls_)
    if publish: publish(k, s_seg)
    lstamp(k, 5)
    k("s_add_u32 s%d, s%d, %d", s_seg, s_seg, nstride)
    k("s_cmp_lt_u32 s%d, 64", s_seg)
    k("s_cbranch_scc1 %s", lp)
    if hint:
        k("s_branch %s", lend)
        k.L(lfb)
        k("s_cmp_lt_u32 s%d, 61", s_seg)
        k("s_cbranch_scc1 %s", lgo)
        wait_final(k)
        k("s_lshl_b32 s49, s36, 10")
        k("s_sub_u32 s49, s38, s49")
        for f in range(16):
            k("buffer_load_dwordx4 %s, v4, %s, s49 offen offset:%d %s", v(FW + 4 * f, 4), W, (f % 4) * 1024, LD)
            if f % 4 == 3: k("s_add_u32 s49, s49, 4096")
        k("s_waitcnt vmcnt(0)")
        for f in range(16):
            for q in range(4): k(MF(AC + 4 * q, WREG + (q * 16 + f) * 4, FW + 4 * f, f == 0))
        k("s_branch %s", lgo)
        k.L(lend)

def role_dn(k, s_dn, s_seg, nstride, wait=None, wait_final=None):
    k.c("---- Dn role")
    W = s(S_WS, 4); WREG = 256
    load_srd(k, 'w2', S_W)
    k("v_lshrrev_b32 v8, 2, v1")
    k("v_lshlrev_b32 v8, 10, v8")
    k("v_and_b32 v9, 3, v1")
    k("v_lshl_add_u32 v8, v9, 4, v8")
    k("s_mul_i32 s32, s%d, %d", S_WAVE, 352 * 1024)
    k("s_lshl_b32 s33, s%d, 6", s_dn)
    k("s_add_u32 s32, s32, s33")
    k("v_add_u32 v8, s32, v8")
    k("s_mul_i32 s35, s%d, 22528", S_WAVE)
    k("s_waitcnt lgkmcnt(0)")
    fin_srd(k, 'w2', S_W)
    for i in range(22):
        k("s_add_u32 m0, s35, %d", i * 1024)
        k("buffer_load_dwordx4 v8, %s, 0 offen lds", s(S_W, 4))
        if i < 21: k("v_add_u32 v8, 16384, v8")
    k("v_lshrrev_b32 v11, 4, v1")
    k("v_bfe_u32 v12, v1, 2, 2")
    k("v_lshl_add_u32 v10, v11, 3, v12")
    k("v_lshlrev_b32 v10, 6, v10")
    k("v_lshl_add_u32 v10, v9, 4, v10")
    k("v_add_u32 v10, s35, v10")
    k("s_waitcnt vmcnt(0)")
    for ks in range(11):
        for t in range(2):
            for y in range(2):
                k("ds_read_b64_tr_b16 %s, v10 offset:%d", u(WREG + (t * 11 + ks) * 4 + 2 * y, 2), ks * 2048 + y * 256 + 8 * t)
        if ks % 3 == 2: k("s_waitcnt lgkmcnt(4)")
    k("s_waitcnt lgkmcnt(0)")
    k("s_barrier")
    k("v_lshlrev_b32 v4, 4, v1")
    k("s_cmp_eq_u32 s%d, 3", S_WAVE)
    k("s_cselect_b32 s36, 0x40000000, 0")
    k("v_add_u32 v5, s36, v4")
    k("s_mul_i32 s36, s%d, 11264", S_WAVE)
    k("s_add_u32 s36, s36, 0x%x", ACT)
    k("s_lshl_b32 s37, s%d, 12", S_WAVE)
    k("v_add_u32 v6, s37, v4")
    k("s_and_b32 s38, s%d, 1", S_WAVE)
    k("s_lshl_b32 s37, s38, 11")
    k("v_add_u32 v7, s37, v4")
    k("s_lshl_b32 s39, s38, 14")
    k("s_lshl_b32 s40, s%d, 10", s_dn)
    k("s_add_u32 s40, s40, s39")
    k("s_add_u32 s40, s40, 0x%x", HIMG)
    k("s_add_u32 s39, s39, s33")
    k("v_and_b32 v12, 15, v1")
    k("v_lshlrev_b32 v12, 10, v12")
    k("v_lshl_add_u32 v12, v11, 4, v12")
    AF = 32; AC = 16
    lp = k.lab("Dl"); lsk = k.lab("Dsk"); lre = k.lab("Dre"); lfb = k.lab("Dfb"); lgo = k.lab("Dgo"); lend = k.lab("Dend")
    k.L(lp)
    k("s_mov_b32 s73, 61")
    lstamp(k, 0)
    if wait: wait(k, s_seg)
    lstamp(k, 1)
    k.L(lre)
    k("s_mul_i32 s41, s%d, 88064", s_seg)
    k("s_add_u32 s41, s41, s36")
    for mt in range(2):
        for ks in range(11):
            if ks % 4 == 0: k("s_add_u32 s42, s41, %d", mt * 44032 + ks * 1024)
            k("buffer_load_dwordx4 %s, v%d, %s, s42 offen offset:%d %s", v(AF + (mt * 11 + ks) * 4, 4), 5 if ks == 10 else 4, W, (ks % 4) * 1024, LD)
    k("s_lshl_b32 s43, s%d, 15", s_seg)
    k("s_add_u32 s42, s43, s40")
    k("buffer_load_dwordx4 v[120:123], v4, %s, s42 offen %s", W, LD)
    for mt in range(2):
        for ks in range(11):
            k("s_waitcnt vmcnt(%d)", 22 - (mt * 11 + ks))
            for t in range(2): k(MF(AC + (mt * 2 + t) * 4, WREG + (t * 11 + ks) * 4, AF + (mt * 11 + ks) * 4, ks == 0))
    lstamp(k, 2)
    if wait_final:
        k("s_waitcnt vmcnt(0)")
        k("v_cmp_eq_u32 s[74:75], -1, v120")
        k("v_cmp_u_f32 vcc, %s, %s", v(AC), v(AC + 8))
        k("s_or_b64 vcc, vcc, s[74:75]")
        k("s_cbranch_scc1 %s", lfb)
        k.L(lgo)
    for i in range(4): k("ds_write_b128 v6, %s offset:%d", v(AC + 4 * i, 4), i * 1024)
    k("s_waitcnt lgkmcnt(0)")
    k("s_barrier")
    k("s_cmp_ge_u32 s%d, 2", S_WAVE)
    k("s_cbranch_scc1 %s", lsk)
    for w in range(4):
        for t in range(2): k("ds_read_b128 %s, v7 offset:%d", v(AF + 8 * w + 4 * t, 4), w * 4096 + t * 1024)
    k("s_waitcnt vmcnt(0)")
    for j in range(4):
        k("v_lshlrev_b32 %s, 16, %s", v(72 + 2 * j), v(120 + j))
        k("v_and_b32 %s, 0xffff0000, %s", v(73 + 2 * j), v(120 + j))
    k("s_waitcnt lgkmcnt(0)")
    for i in range(8):
        k("v_add_f32 %s, %s, %s", v(AF + i), v(AF + i), v(AF + 8 + i))
        k("v_add_f32 %s, %s, %s", v(AF + 16 + i), v(AF + 16 + i), v(AF + 24 + i))
        k("v_add_f32 %s, %s, %s", v(AF + i), v(AF + i), v(AF + 16 + i))
    for i in range(0, 8, 2):
        k(CV(80, AF + i, AF + i + 1))
        k("v_lshlrev_b32 v81, 16, v80")
        k("v_and_b32 v80, 0xffff0000, v80")
        k("v_add_f32 %s, %s, v81", v(72 + i), v(72 + i))
        k("v_add_f32 %s, %s, v80", v(73 + i), v(73 + i))
        k(CV(84 + i // 2, 72 + i, 73 + i))
    k("s_add_u32 s42, s43, s39")
    k("buffer_store_dwordx4 v[84:87], v12, %s, s42 offen", s(S_O, 4))
    k.L(lsk)
    lstamp(k, 4)
    k("v_xor_b32 v6, 0x4000, v6")
    k("v_xor_b32 v7, 0x4000, v7")
    k("s_add_u32 s%d, s%d, %d", s_seg, s_seg, nstride)
    k("s_cmp_lt_u32 s%d, 64", s_seg)
    k("s_waitcnt vmcnt(0)")
    k("s_cbranch_scc1 %s", lp)
    if wait_final:
        k("s_branch %s", lend)
        k.L(lfb)
        k("s_cmp_lt_u32 s%d, s73", s_seg)
        k("s_cbranch_scc1 %s", lgo)
        k("s_mov_b32 s73, 64")
        wait_final(k)
        k("s_branch %s", lre)
        k.L(lend)
```

```python
import sys, json
from build_v1 import header_comments
from chain12 import *
from roles2 import *
KN = NAME + "_kernel"
def build(opts={}, stamps=False, ticks=False):
    k = K(); k.stamps = stamps; k.ticks = ticks; k.copt = opts; k.merged = True
    kernel_header(k, KN)
    lend = k.lab("END")
    lstamp(k, 6)
    k("s_cmp_ge_u32 s2, 256")
    k("s_cbranch_scc1 %s", lend)
    load_srd(k, 'ws', S_WS); load_srd(k, 'dbg', S_DBG)
    lane_wave(k)
    k("s_mov_b32 s%d, 400000", S_SPIN)
    ROLE = 5
    k("s_getreg_b32 s45, hwreg(HW_REG_XCC_ID)")
    k("s_and_b32 s45, s45, 7")
    k("s_cmp_eq_u32 s45, 0")
    k("s_cselect_b32 s46, 1, 0")
    k("s_and_b32 s47, s2, 7")
    k("s_cmp_eq_u32 s47, 0")
    k("s_cselect_b32 s47, 1, 0")
    k("s_mov_b32 s3, s2")
    lsw = k.lab("SWAP"); lrd = k.lab("ROLED"); lw = k.lab("WORK")
    k("s_cmp_lg_u32 s46, s47")
    k("s_cbranch_scc1 %s", lsw)
    k.L(lrd)
    k("s_and_b32 s%d, s3, 7", ROLE)
    k("s_lshl_b32 s%d, s%d, 5", ROLE, ROLE)
    k("s_lshr_b32 s3, s3, 3")
    k("s_add_u32 s%d, s%d, s3", ROLE, ROLE)
    k("s_cmp_ge_u32 s%d, 32", ROLE)
    k("s_cbranch_scc1 %s", lw)
    role_chain(k, opts.get('slow', False))
    lstamp_dump(k, ROLE)
    k("s_branch %s", lend)
    k.L(lsw)
    lo = k.lab("SWo"); lp = k.lab("SWp"); ld = k.lab("SWd"); lc = k.lab("SWc")
    k("s_waitcnt lgkmcnt(0)")
    fin_srd(k, 'dbg', S_DBG)
    k("s_cmp_lg_u32 s%d, 0", S_WAVE)
    k("s_cbranch_scc1 %s", lo)
    k("s_mov_b64 exec, 1")
    k("s_lshl_b32 s48, s47, 2")
    k("v_mov_b32 v2, 0"); k("v_mov_b32 v4, 1")
    k("buffer_atomic_add v4, v2, %s, s48 offen sc0 sc1", s(S_DBG, 4))
    k("s_lshl_b32 s49, s47, 4")
    k("s_lshl_b32 s50, s46, 4")
    k("s_add_u32 s51, s2, 1")
    k("s_lshl_b32 s51, s51, s49")
    k("s_waitcnt vmcnt(0)")
    k("v_readfirstlane_b32 s48, v4")
    k("s_cmp_ge_u32 s48, 32")
    k("s_cbranch_scc1 %s", ld)
    k("s_lshl_b32 s48, s48, 2")
    k("s_add_u32 s48, s48, 64")
    k("v_mov_b32 v4, s51")
    k("buffer_atomic_or v4, v2, %s, s48 offen sc0 sc1", s(S_DBG, 4))
    k("s_mov_b32 s52, 0")
    k.L(lp)
    k("s_waitcnt vmcnt(0)")
    k("v_readfirstlane_b32 s53, v4")
    k("s_lshr_b32 s44, s53, s49")
    k("s_and_b32 s44, s44, 0xffff")
    k("s_cmp_eq_u32 s44, 0xffff")
    k("s_cbranch_scc1 %s", ld)
    k("s_lshr_b32 s53, s53, s50")
    k("s_and_b32 s53, s53, 0xffff")
    k("s_cmp_lg_u32 s53, 0")
    k("s_cbranch_scc1 %s", lc)
    k("s_cmp_gt_u32 s52, 400")
    k("s_cbranch_scc1 %s", ld)
    k("s_add_u32 s52, s52, 1")
    k("buffer_load_dword v4, v2, %s, s48 offen sc1", s(S_DBG, 4))
    k("s_cmp_le_u32 s52, 400")
    k("s_cbranch_scc1 %s", lp)
    k("s_waitcnt vmcnt(0)")
    k("s_lshl_b32 s53, 0xffff, s50")
    k("s_or_b32 s53, s53, s51")
    k("v_mov_b32 v4, s53"); k("v_mov_b32 v5, s51")
    k("buffer_atomic_cmpswap v[4:5], v2, %s, s48 offen sc0 sc1", s(S_DBG, 4))
    k("s_branch %s", lp)
    k.L(lc)
    k("s_sub_u32 s3, s53, 1")
    k("s_and_b32 s3, s3, 255")
    k.L(ld)
    k("v_mov_b32 v3, s3"); k("v_mov_b32 v2, 163328")
    k("ds_write_b32 v2, v3")
    k("s_mov_b64 exec, -1")
    k("s_waitcnt lgkmcnt(0)")
    k.L(lo)
    k("s_barrier")
    k("v_mov_b32 v2, 163328")
    k("ds_read_b32 v3, v2")
    k("s_waitcnt lgkmcnt(0)")
    k("v_readfirstlane_b32 s3, v3")
    k("s_branch %s", lrd)
    k.L(lw)
    srds = [('x', S_X), ('out', S_O)]
    for n, r in srds: load_srd(k, n, r)
    k("s_waitcnt lgkmcnt(0)")
    for n, r in srds + [('ws', S_WS), ('dbg', S_DBG)]: fin_srd(k, n, r)
    lz = k.lab("Z")
    k("s_cmp_lg_u32 s%d, 224", ROLE)
    k("s_cbranch_scc1 %s", lz)
    k("s_cmp_lg_u32 s%d, 1", S_WAVE)
    k("s_cbranch_scc1 %s", lz)
    for i in range(4): k("v_mov_b32 v%d, 0", 4 + i)
    k("v_lshlrev_b32 v8, 4, v1")
    k("s_mov_b32 s40, 0x%x", FLAGS)
    for i in range(2): k("buffer_store_dwordx4 v[4:7], v8, %s, s40 offen offset:%d sc1", s(S_WS, 4), i * 1024)
    k("v_lshlrev_b32 v8, 7, v1")
    for i in range(7):
        k("s_mov_b32 s40, 0x%x", FLAGS + 0x2000 + i * 0x2000)
        k("buffer_store_dwordx4 v[4:7], v8, %s, s40 offen sc1", s(S_WS, 4))
    k("v_mov_b32 v9, 1")
    k("s_waitcnt vmcnt(0)")
    k("s_mov_b64 exec, 1")
    k("buffer_store_dword v9, v4, %s, 0 offen offset:%d sc1", s(S_DBG, 4), DBG_READY)
    k("s_mov_b64 exec, -1")
    k.L(lz)
    k("s_cmp_ge_u32 s%d, 256", ROLE)
    k("s_cbranch_scc1 %s", lend)
    stamp(k, 3, 0, wgreg=ROLE, vt=120)
    GRP, TK_, SEG, FO, FI = 54, 55, 7, 56, 57
    k("s_lshr_b32 s%d, s%d, 5", GRP, ROLE)
    k("s_and_b32 s%d, s%d, 31", TK_, ROLE)
    lq = k.lab("DOQKV"); l2 = k.lab("ROLE2")
    k("s_cmp_ge_u32 s%d, 2", GRP)
    k("s_cbranch_scc1 %s", lq)
    k("s_lshl_b32 s%d, s%d, 2", FO, TK_)
    k("s_add_u32 s%d, s%d, 0x%x", FO, FO, FLAGS + F_XN)
    def ln_after(k, scount):
        ls = k.lab("LNs")
        k("s_cmp_lg_u32 s%d, 1", scount)
        k("s_cbranch_scc1 %s", ls)
        wait_ready(k, 2)
        k.L(ls)
        set_flag(k, FO, "s%d" % scount, 2)
    role_ln1(k, TK_, 4, ln_after)
    k("s_branch %s", l2)
    k.L(lq)
    k("s_sub_u32 s58, s%d, 64", ROLE)
    def pre_loop(k):
        wait_ready(k, 2)
        k("v_and_b32 v8, 31, v1")
        k("v_lshlrev_b32 v8, 2, v8")
        k("s_mov_b32 s%d, 0x%x", FI, FLAGS + F_XN)
        k("s_mov_b32 s%d, 0", SEG)
        wait_flags(k, 8, FI, SEG, 2)
        k("s_lshl_b32 s%d, s32, 1", FO)
        k("s_add_u32 s%d, s%d, s34", FO, FO)
        k("s_lshl_b32 s%d, s%d, 2", FO, FO)
        k("s_lshl_b32 s40, s33, 5")
        k("s_add_u32 s%d, s%d, s40", FO, FO)
        k("s_add_u32 s%d, s%d, 0x%x", FO, FO, FLAGS + F_QF)
        k("s_sub_u32 s%d, s34, 3", SEG)
    def q_publish(k):
        k("s_max_i32 s40, s%d, 0", SEG)
        set_flag(k, FO, "s40", 2, drain=False)
        k("s_add_u32 s%d, s%d, 2", SEG, SEG)
    def q_pre_dma(k):
        ls = k.lab("QPd")
        k("s_cmp_lg_u32 s52, 8")
        k("s_cbranch_scc1 %s", ls)
        k("s_mov_b32 s58, 3")
        wait_flags(k, 8, FI, 58, 2)
        k.L(ls)
    for _ in range(opts.get('wdelay', 0)): k("s_sleep 37")
    if opts.get('qdelay'):
        lqd = k.lab("QD"); lqo = k.lab("QDo")
        k("s_cmp_lt_u32 s58, 128")
        k("s_cbranch_scc1 %s", lqo)
        k("v_mov_b32 v3, 0"); k("s_mov_b32 s59, 0")
        k.L(lqd)
        k("buffer_load_dword v2, v3, %s, 0 offen offset:8 sc1", s(S_DBG, 4))
        k("s_waitcnt vmcnt(0)")
        k("v_readfirstlane_b32 s40, v2")
        k("s_and_b32 s40, s40, 0xffff")
        k("s_cmp_ge_u32 s40, 32")
        k("s_cbranch_scc1 %s", lqo)
        k("s_sleep 16")
        k("s_add_u32 s59, s59, 1")
        k("s_cmp_lt_u32 s59, 20000")
        k("s_cbranch_scc1 %s", lqd)
        k.L(lqo)
    role_qkv(k, 58, q_pre_dma, q_publish, pre_loop)
    set_flag(k, FO, "0x80", 2)
    k.L(l2)
    stamp(k, 3, 1, wgreg=ROLE, vt=120)
    k("s_waitcnt vmcnt(0)")
    k("s_barrier")
    lur = k.lab("UR"); ldn = k.lab("DN"); lrd = k.lab("RD"); lfin = k.lab("FIN")
    k("s_cmp_ge_u32 s%d, 4", GRP)
    k("s_cbranch_scc1 %s", lur)
    k("s_sub_u32 s%d, s%d, 1", SEG, GRP)
    k("s_lshl_b32 s%d, s%d, 12", FO, SEG)
    k("s_lshl_b32 s40, s%d, 7", TK_)
    k("s_add_u32 s%d, s%d, s40", FO, FO)
    k("s_add_u32 s%d, s%d, 0x%x", FO, FO, FLAGS + F_BF)
    def wait_qkv(k, sseg):
        lsk = k.lab("wq")
        k("s_cmp_lt_u32 s%d, s72", sseg)
        k("s_cbranch_scc1 %s", lsk)
        k("v_min_u32 v3, 5, v1")
        k("v_lshlrev_b32 v3, 2, v3")
        k("s_lshl_b32 s%d, s34, 5", FI)
        k("s_add_u32 s%d, s%d, 0x%x", FI, FI, FLAGS + F_QF)
        wait_flags(k, 3, FI, sseg, 2)
        k("v_cmp_gt_u32 vcc, 0x80, v2")
        k("s_cmp_eq_u64 vcc, 0")
        k("s_cselect_b32 s72, 64, 0")
        k.L(lsk)
        return
        k("v_min_u32 v3, 2, v1")
        k("v_lshlrev_b32 v3, 3, v3")
        k("s_and_b32 s%d, s%d, 1", FI, sseg)
        k("s_lshl_b32 s%d, s%d, 2", FI, FI)
        k("s_lshl_b32 s58, s34, 5")
        k("s_add_u32 s%d, s%d, s58", FI, FI)
        k("s_add_u32 s%d, s%d, 0x%x", FI, FI, FLAGS + F_QF)
        wait_flags(k, 3, FI, sseg, 2)
    def wait_kvm(k, sseg):
        k("v_and_b32 v3, 3, v1")
        k("v_lshlrev_b32 v3, 7, v3")
        k("s_lshl_b32 s%d, s34, 9", FI)
        k("s_add_u32 s%d, s%d, 0x%x", FI, FI, FLAGS + F_KF)
        wait_flags(k, 3, FI, sseg, 2)
    H = opts.get('hint', 1)
    def publish(k, sseg):
        k("s_add_u32 s58, s%d, 1", sseg)
        k("s_cmp_ge_u32 s%d, 61", sseg)
        k("s_cselect_b32 s58, 0x100, s58")
        set_flag(k, FO, "s58", 2)
    def hint(k, sseg, bar=False):
        l = k.lab("hn")
        k("s_cmp_lt_u32 s%d, 61", sseg)
        k("s_cbranch_scc1 %s", l)
        if bar: k("s_barrier")
        set_flag(k, FO, "64", 2, drain=False)
        k.L(l)
    def wfin(va):
        def f(k):
            k("s_mov_b32 s58, 0xff")
            wait_flags(k, va, FI, 58, 2)
        return f
    if not H: hint = None
    k("s_mov_b32 s72, 0")
    role_bc(k, TK_, SEG, 3, wait_qkv, wait_kvm, publish, hint)
    k("s_branch %s", lfin)
    k.L(lur)
    k("s_cmp_eq_u32 s%d, 7", GRP)
    k("s_cbranch_scc1 %s", ldn)
    k("s_sub_u32 s%d, s%d, 4", SEG, GRP)
    k("s_lshl_b32 s%d, s%d, 12", FI, SEG)
    k("s_cmp_ge_u32 s%d, 22", TK_)
    k("s_cbranch_scc1 %s", lrd)
    k("s_lshl_b32 s40, s%d, 7", TK_)
    k("s_add_u32 s%d, s%d, s40", FO, FI)
    k("s_add_u32 s%d, s%d, 0x%x", FO, FO, FLAGS + F_UF)
    k("s_add_u32 s%d, s%d, 0x%x", FI, FI, FLAGS + F_RF)
    k("v_and_b32 v13, 7, v1")
    k("v_lshlrev_b32 v13, 7, v13")
    role_up(k, TK_, SEG, 3, None, None, publish, lambda k, sseg: wait_flags(k, 13, FI, sseg, 2, wave0=True), hint, wfin(13))
    k("s_branch %s", lfin)
    k.L(lrd)
    k("s_cmp_ge_u32 s%d, 30", TK_)
    k("s_cbranch_scc1 %s", lfin)
    k("s_sub_u32 s%d, s%d, 22", TK_, TK_)
    k("s_lshl_b32 s40, s%d, 7", TK_)
    k("s_add_u32 s%d, s%d, s40", FO, FI)
    k("s_add_u32 s%d, s%d, 0x%x", FO, FO, FLAGS + F_RF)
    k("s_add_u32 s%d, s%d, 0x%x", FI, FI, FLAGS + F_BF)
    k("v_and_b32 v15, 31, v1")
    k("v_lshlrev_b32 v15, 7, v15")
    role_red(k, TK_, SEG, 3, lambda k, sseg: wait_flags(k, 15, FI, sseg, 2, wave0=True), publish, hint, wfin(15))
    k("s_branch %s", lfin)
    k.L(ldn)
    k("s_lshr_b32 s%d, s%d, 4", SEG, TK_)
    k("s_and_b32 s%d, s%d, 15", TK_, TK_)
    k("v_min_u32 v13, 21, v1")
    k("v_lshlrev_b32 v13, 7, v13")
    def wait_up(k, sseg):
        k("s_mul_i32 s58, s%d, 43", sseg)
        k("s_lshr_b32 s58, s58, 7")
        k("s_mul_i32 s58, s58, 3")
        k("s_sub_u32 s58, s%d, s58", sseg)
        k("s_lshl_b32 s%d, s58, 12", FI)
        k("s_add_u32 s%d, s%d, 0x%x", FI, FI, FLAGS + F_UF)
        wait_flags(k, 13, FI, sseg, 2, wave0=True)
    role_dn(k, TK_, SEG, 2, wait_up, wfin(13) if H else None)
    k.L(lfin)
    stamp(k, 3, 2, wgreg=ROLE, vt=120)
    lstamp_dump(k, ROLE)
    k.L(lend)
    k("s_endpgm")
    body = insert_nops(auto_wait(k.lines))
    hdr = header_comments([])
    hdr.append('; @launch grid=(256,1,1) block=(256,1,1) lds=163840')
    return '\n'.join(hdr) + '\n.amdgcn_target "amdgcn-amd-amdhsa--gfx950"\n.text\n' + '\n'.join(body) + \
        '\n.section .rodata,"a"\n.p2align 6\n' + kernel_desc(KN)
if __name__ == '__main__':
    o = {"lazy": 1, "p0a": 44, "p1a": 24, "w1a": 14, "p2a": 4, "hbc": 26, "hr": 1, "hu": 1, "w1": 14, "b0": 6, "w2": 14, "ns1": 0, "ns2": 0, "ho": 4}
    if len(sys.argv) > 1: o.update(json.loads(sys.argv[1]))
    open('m.s', 'w').write(build(o))
    open('ms.s', 'w').write(build(o, stamps=True))
```

```python
from roles import *
import struct
def f2u(x): return struct.unpack('<I', struct.pack('<f', x))[0]

L_KT = 131072
L_MB = L_KT + 16384
L_XB = L_MB + 8192
L_OB = L_XB + 5120
L_MISC_ = L_OB + 2560
WQ, WK, WO = 256, 384, 128
aM = [2, 3, 4, 5]; aXW = 6; aXR = 7; aOW = 8; aWV = 9; aKT = 10; aL16 = 11
aH1S = 12; aWO = 13; aH1L = 11; aH2S = 14; IDX = 15
KVM = 16
SEL = 20
VTN = 24
MA = 32; AQ = 64; AK = 72; AV = 80; G = 88; VT = 120
S_HEAD = 5; S_LIM = 6; S_STEP = 7
S_WQ, S_WK, S_WV, S_WO = 12, 16, 20, 28
sH1S0, sH1S1, sH1L, sH2S, sH2L = 32, 33, 34, 35, 36
sKV = 37; sKTD = 38; sKM = 39; sVIM = 40; sC = 41; sCNT = 42; sT = 43
sH1R = 50; sH2R = 51; sMASK = 52
sPH = 50; sTHR = 49; sSAFE = 55; sQF = 46; sKF = 47; aFL = 0; aFL4 = 0
CSC = 0.08838834764831845 * 1.4426950408889634
VORD = [0, 2, 4, 6, 1, 3, 5, 7]
CT = MA

from chain import elect, xmax
def tick(k, i):
    if getattr(k, 'ticks', False): k("s_memtime s[%d:%d]", 64 + 2 * i, 65 + 2 * i)
def tick_init(k):
    if not getattr(k, 'ticks', False): return
    for i in range(96, 100): k("s_mov_b32 s%d, 0", i)
def tick_step_end(k):
    if not getattr(k, 'ticks', False): return
    l = k.lab("tse")
    k("s_cmp_lg_u32 s%d, %d", S_STEP, k.copt.get('tstep', 41))
    k("s_cbranch_scc1 %s", l)
    k("s_waitcnt vmcnt(0) lgkmcnt(0)")
    k("s_lshl_b32 s100, s%d, 2", S_HEAD)
    k("s_add_u32 s100, s100, s%d", S_WAVE)
    k("s_lshl_b32 s100, s100, 7")
    k("s_add_u32 s100, s100, 0x%x", TS + 8 * 65536)
    k("v_mov_b32 v41, 0")
    for i in range(16):
        k("v_mov_b32 v40, s%d", 64 + 2 * i)
        k("buffer_store_dword v40, v41, %s, s100 offen offset:%d", s(S_WS, 4), 4 * i)
    for e in range(2):
        lw = k.lab("cal")
        k("s_memrealtime s[64:65]")
        k("s_waitcnt lgkmcnt(0)")
        if e: k("s_add_u32 s64, s64, 100")
        k.L(lw)
        k("s_memrealtime s[66:67]")
        k("s_memtime s[68:69]")
        k("s_waitcnt lgkmcnt(0)")
        k("s_sub_u32 s70, s64, s66")
        k("s_cmp_ge_i32 s70, 0")
        k("s_cbranch_scc1 %s", lw)
        k("v_mov_b32 v40, s66")
        k("buffer_store_dword v40, v41, %s, s100 offen offset:%d", s(S_WS, 4), 80 + 8 * e)
        k("v_mov_b32 v40, s68")
        k("buffer_store_dword v40, v41, %s, s100 offen offset:%d", s(S_WS, 4), 84 + 8 * e)
    k.L(l)
def tick_dump(k):
    if not getattr(k, 'ticks', False): return
    k("v_mov_b32 v41, 0")
    for i in range(4):
        k("v_mov_b32 v40, s%d", 96 + i)
        k("buffer_store_dword v40, v41, %s, s100 offen offset:%d", s(S_WS, 4), 64 + 4 * i)

def SMF(acc, A, B): return "v_smfmac_f32_16x16x64_bf16 %s, %s, %s, %s" % (v(acc, 4), v(A, 4), u(B, 8), v(IDX))
def MF(d, A, B, first): return "v_mfma_f32_16x16x32_bf16 %s, %s, %s, %s" % (v(d, 4), v(A, 4), v(B, 4), "0" if first else v(d, 4))
def M16(d, A, B): return "v_mfma_f32_16x16x16_bf16 %s, %s, %s, %s" % (v(d, 4), v(A, 2), v(B, 2), v(d, 4))

def chain_setup(k):
    w = S_WAVE
    k.c("---- chain setup: addresses")
    k("v_lshlrev_b32 %s, 4, v1", v(aL16))
    for jp in range(4):
        k("s_xor_b32 s%d, s%d, %d", sT, w, jp)
        k("s_lshl_b32 s%d, s%d, 11", sT, sT)
        k("s_add_u32 s%d, s%d, %d", sT, sT, L_MB)
        k("v_add_u32 %s, s%d, %s", v(aM[jp]), sT, v(aL16))
    k("v_and_b32 v90, 15, v1")
    k("v_lshrrev_b32 v91, 4, v1")
    k("v_bfe_u32 v92, v1, 2, 2")
    k("v_and_b32 v93, 3, v1")
    k("v_mul_u32_u24 v94, 320, v91")
    k("v_lshl_add_u32 v94, v90, 3, v94")
    k("s_mul_i32 s%d, s%d, 1280", sT, w)
    k("s_add_u32 s%d, s%d, %d", sT, sT, L_XB)
    k("v_add_u32 %s, s%d, v94", v(aXW), sT)
    k("s_lshr_b32 s%d, s%d, 1", sT, w)
    k("s_mul_i32 s%d, s%d, 1280", sT, sT)
    k("s_and_b32 s%d, s%d, 1", sCNT, w)
    k("s_lshl_b32 s%d, s%d, 7", sCNT, sCNT)
    k("s_add_u32 s%d, s%d, s%d", sT, sT, sCNT)
    k("s_add_u32 s%d, s%d, %d", sT, sT, L_OB)
    k("v_add_u32 %s, s%d, v94", v(aOW), sT)
    k("v_mul_u32_u24 v94, 320, v93")
    k("v_lshrrev_b32 v95, 2, v1")
    k("v_lshl_add_u32 v94, v95, 3, v94")
    k("v_add_u32 %s, %d, v94", v(aXR), L_XB)
    k("s_lshl_b32 s%d, s%d, 14", sT, w)
    k("v_add_u32 %s, s%d, %s", v(aWV), sT, v(aL16))
    k("v_add_u32 %s, 0x10000, %s", v(aWO), v(aWV))
    k("v_add_u32 %s, %d, %s", v(aKT), L_KT, v(aL16))
    k("v_lshrrev_b32 v94, 3, v90")
    k("v_lshl_add_u32 v94, v94, 2, v91")
    k("v_lshlrev_b32 v94, 13, v94")
    k("v_and_b32 v95, 7, v1")
    k("v_lshl_add_u32 %s, v95, 3, v94", v(aH1S))
    k("v_lshlrev_b32 v94, 4, v91")
    k("v_lshl_add_u32 v94, v93, 2, v94")
    k("v_mov_b32 v95, v92")
    k("v_cmp_eq_u32 vcc, 0, v95")
    k("v_mov_b32 v95, 0x40000000")
    k("v_cndmask_b32 %s, v95, v94, vcc", v(aH2S))
    k("v_and_b32 v94, 2, v1")
    k("v_cmp_eq_u32 vcc, 0, v94")
    k("v_mov_b32 v94, 0x44444444")
    k("v_mov_b32 v95, 0xeeeeeeee")
    k("v_cndmask_b32 %s, v95, v94, vcc", v(IDX))
    k("v_mov_b32 v94, 0x3f80")
    k("v_mov_b32 v95, 0x3f800000")
    for d in range(4):
        k("v_cmp_eq_u32 vcc, %d, v90", 4 * d)
        k("v_cndmask_b32 %s, 0, v94, vcc", v(SEL + d))
        k("v_cmp_eq_u32 vcc, %d, v90", 4 * d + 1)
        k("v_cndmask_b32 %s, %s, v95, vcc", v(SEL + d), v(SEL + d))
    k("s_lshl_b32 s%d, s%d, 16", sT, w)
    k("s_lshl_b32 s%d, s%d, 6", sH1S0, S_HEAD)
    k("s_add_u32 s%d, s%d, s%d", sH1S0, sH1S0, sT)
    k("s_add_u32 s%d, s%d, 0x%x", sH1S0, sH1S0, HOP1)
    k("s_add_u32 s%d, s%d, 0x1000", sH1S1, sH1S0)
    k("s_lshl_b32 s%d, s%d, 2", sH1L, S_HEAD)
    k("s_add_u32 s%d, s%d, s%d", sH1L, sH1L, w)
    k("s_lshl_b32 s%d, s%d, 11", sH1L, sH1L)
    k("s_add_u32 s%d, s%d, 0x%x", sH1L, sH1L, HOP1)
    k("s_lshr_b32 s%d, s%d, 3", sH2S, S_HEAD)
    k("s_lshl_b32 s%d, s%d, 11", sH2S, sH2S)
    k("s_and_b32 s%d, s%d, 7", sT, S_HEAD)
    k("s_lshl_b32 s%d, s%d, 6", sT, sT)
    k("s_add_u32 s%d, s%d, s%d", sH2S, sH2S, sT)
    k("s_lshl_b32 s%d, s%d, 9", sT, w)
    k("s_add_u32 s%d, s%d, s%d", sH2S, sH2S, sT)
    k("s_add_u32 s%d, s%d, 0x%x", sH2S, sH2S, HOP2)
    k("s_lshl_b32 s%d, s%d, 11", sH2L, w)
    k("s_add_u32 s%d, s%d, 0x%x", sH2L, sH2L, HOP2)
    k("s_lshl_b32 s%d, s%d, 13", sKV, S_HEAD)
    k("s_lshl_b32 s%d, s%d, 11", sT, w)
    k("s_add_u32 s%d, s%d, s%d", sKV, sKV, sT)
    k("s_add_u32 s%d, s%d, 0x%x", sVIM, sKV, VIMG)
    k("s_add_u32 s%d, s%d, 0x%x", sKV, sKV, KIMG)
    k("s_add_u32 s%d, s%d, %d", sKTD, sT, L_KT)
    k("s_lshl_b32 s%d, s%d, 12", sKM, S_HEAD)
    k("s_lshl_b32 s%d, s%d, 10", sT, w)
    k("s_add_u32 s%d, s%d, s%d", sKM, sKM, sT)
    k("s_add_u32 s%d, s%d, 0x%x", sKM, sKM, KM - 0x20000)
    k("s_mov_b32 s%d, 0x%x", sC, f2u(CSC))
    k("s_mov_b32 s%d, 400000", S_LIM)
    k("s_mov_b32 s%d, 0x33333333", sMASK)
    k("s_mov_b32 s%d, 0x33333333", sMASK + 1)
    k("s_mov_b32 s%d, 0", sPH)
    k("s_xor_b32 s%d, s%d, 0x2000", sH2R, sH2S)

def merged_setup(k):
    k("s_lshl_b32 s%d, s%d, 5", sQF, S_HEAD)
    k("s_add_u32 s%d, s%d, 0x%x", sQF, sQF, FLAGS + F_QF)
    k("s_lshl_b32 s%d, s%d, 2", sKF, S_HEAD)
    k("s_add_u32 s%d, s%d, s%d", sKF, sKF, S_WAVE)
    k("s_lshl_b32 s%d, s%d, 7", sKF, sKF)
    k("s_add_u32 s%d, s%d, 0x%x", sKF, sKF, FLAGS + F_KF)
    k("v_lshlrev_b32 %s, 2, v93", v(aFL))

def kv_refresh(k, plus, back=None):
    lp = k.lab("kvr"); ok = k.lab("kvok")
    k("s_mov_b32 s%d, 0", sCNT)
    k("s_add_u32 s%d, s%d, %d", sT, S_STEP, plus)
    k.L(lp)
    k("buffer_load_dword v1, %s, %s, s%d offen sc1", v(aFL), s(S_WS, 4), sQF)
    k("s_waitcnt vmcnt(0)")
    k("v_cmp_ge_u32 vcc, s%d, v1", sT)
    k("s_cbranch_vccz %s", ok)
    k("s_sleep 2")
    k("s_add_u32 s%d, s%d, 1", sCNT, sCNT)
    k("s_cmp_lt_u32 s%d, s%d", sCNT, S_LIM)
    k("s_cbranch_scc1 %s", lp)
    k("s_mov_b32 s%d, 0", S_LIM)
    k.L(ok)
    if back: k("s_branch %s", back)

import chain as _c1
def chain_arm(k):
    k.c("---- arm hop buffers (both slots), sc1")
    for i in range(4): k("v_mov_b32 %s, -1", v(96 + i))
    for slot in range(2):
        k("s_add_u32 s%d, s%d, 0x%x", sT, sH1L, slot * 262144)
        k("buffer_store_dwordx4 v[96:99], %s, %s, s%d offen sc1", v(aL16), s(S_WS, 4), sT)
        k("buffer_store_dwordx4 v[96:99], %s, %s, s%d offen offset:1024 sc1", v(aL16), s(S_WS, 4), sT)
    k("buffer_store_dword v96, %s, %s, s%d offen sc1", v(aH2S), s(S_WS, 4), sH2R)
load_mem0 = _c1.load_mem0
WVR_ = 128
WOR_ = 192

def chain_load_weights(k, hooks={}, pre_issue={}, after_first=None):
    w = S_WAVE
    k.c("---- chain weight load")
    k("v_and_b32 v90, 15, v1")
    k("v_lshrrev_b32 v91, 4, v1")
    k("s_and_b32 s44, s%d, 1", w)
    k("s_lshl_b32 s44, s44, 2")
    k("v_xor_b32 v120, s44, v90")
    k("v_and_b32 v121, 1, v91")
    k("v_lshlrev_b32 v121, 3, v121")
    k("v_xor_b32 v120, v120, v121")
    k("v_lshlrev_b32 v120, 4, v120")
    k("v_lshl_add_u32 v120, v91, 13, v120")
    k("s_lshl_b32 s45, s%d, 8", S_HEAD)
    k("s_lshl_b32 s48, s%d, 17", w)
    k("s_add_u32 s45, s45, s48")
    k("s_lshl_b32 s44, s%d, 12", w)
    sc = [('q', 0), ('q', 1), ('k', 0), ('k', 1), ('v', 1), ('o', 0), ('v', 0), ('o', 1)]
    srds = dict(q=S_WQ, k=S_WK, v=S_WV, o=S_WO)
    queue = []
    def issue(i):
        m, par = sc[i]; reg = (i & 1) * 65536
        for n in range(16):
            if m == 'o':
                k("s_add_u32 s48, s49, %d", par * 128 + n * 8192)
                k("s_add_u32 m0, s3, %d", n * 1024)
            else:
                c, q = n >> 2, n & 3
                k("s_add_u32 s48, s45, %d", (2 * c + par) * 64 * 8192 + q * 4 * 8192)
                k("s_add_u32 m0, s44, %d", reg + c * 16384 + q * 1024)
            k("buffer_load_dwordx4 v%d, %s, s48 offen lds", 121 if m == 'o' else 120, s(srds[m], 4))
            queue.append(i)
    k("s_waitcnt lgkmcnt(0)")
    fin_srd(k, 'Wq', S_WQ)
    lstamp(k, 7)
    issue(0)
    if after_first: after_first(k)
    k("v_lshrrev_b32 v121, 3, v1")
    k("v_lshlrev_b32 v121, 10, v121")
    k("v_and_b32 v122, 7, v1")
    k("v_lshl_add_u32 v121, v122, 4, v121")
    k("v_and_b32 v126, 1, v92")
    k("v_lshl_add_u32 v126, v126, 2, v91")
    k("v_lshrrev_b32 v127, 1, v92")
    k("v_lshl_add_u32 v126, v126, 2, v127")
    k("v_lshlrev_b32 v126, 8, v126")
    k("v_xor_b32 v127, s%d, v92", w)
    k("v_lshl_add_u32 v126, v127, 6, v126")
    k("v_lshl_add_u32 v126, v93, 4, v126")
    for jp in range(4):
        k("s_xor_b32 s48, s%d, %d", w, jp)
        k("s_lshl_b32 s48, s48, 14")
        k("v_add_u32 v%d, s48, v126", 122 + jp)
    k("v_lshrrev_b32 v126, 1, v92")
    k("v_lshrrev_b32 v127, 1, v91")
    k("v_lshl_add_u32 v126, v127, 1, v126")
    k("v_and_b32 v127, 1, v91")
    k("v_lshl_add_u32 v126, v127, 3, v126")
    k("v_lshlrev_b32 v126, 2, v126")
    k("v_and_b32 v127, 1, v92")
    k("v_add_u32 v126, v126, v127")
    k("v_lshlrev_b32 v126, 7, v126")
    k("v_lshl_add_u32 v126, v93, 3, v126")
    k("s_lshl_b32 s48, s%d, 14", w)
    k("s_add_u32 s3, s48, 0x10000")
    k("v_add_u32 v126, s3, v126")
    k("s_lshl_b32 s49, s%d, 17", S_HEAD)
    k("s_lshl_b32 s48, s%d, 8", w)
    k("s_add_u32 s49, s49, s48")
    if -1 in hooks: queue.extend([-1] * hooks[-1](k))
    issue(1)
    lstamp(k, 5)
    TMP = 40
    for i in range(8):
        m, par = sc[i]
        if i in hooks: queue.extend([-1] * hooks[i](k))
        last = max(n for n, c in enumerate(queue) if c == i)
        k("s_waitcnt vmcnt(%d)", len(queue) - 1 - last)
        k("s_barrier")
        if i < 5: lstamp(k, i)
        inplace = i >= 6
        cnt = 0
        for a_ in range(4):
            for b_ in range(2):
                if inplace: dst = TMP + (a_ * 2 + b_) * 8
                elif m == 'q': dst = WQ + (b_ * 8 + 2 * a_ + par) * 8
                elif m == 'k': dst = WK + (b_ * 8 + 2 * a_ + par) * 8
                elif m == 'v': dst = WVR_ + (a_ * 2 + b_) * 8
                else: dst = WOR_ + (a_ * 2 + b_) * 8
                for y in range(4):
                    if m == 'o':
                        k("ds_read_b64_tr_b16 %s, v126 offset:%d", u(dst + 2 * y, 2), (64 * b_ + 16 * (y >> 1) + 2 * (y & 1)) * 128 + 32 * a_)
                    else:
                        k("ds_read_b64_tr_b16 %s, v%d offset:%d", u(dst + 2 * y, 2), 122 + a_, (32 * (y >> 1) + 2 * (y & 1)) * 256 + 8 * b_)
                cnt += 4
                if cnt % 8 == 0: k("s_waitcnt lgkmcnt(4)")
        if i < 4:
            for jp in range(4): k("v_xor_b32 v%d, 0x10000, v%d", 122 + jp, 122 + jp)
        k("s_waitcnt lgkmcnt(0)")
        k("s_barrier")
        if inplace:
            for q in range(16):
                k("ds_write_b128 %s, %s offset:%d", v(aWO if m == 'o' else aWV), v(TMP + 4 * q, 4), q * 1024)
                if q % 8 == 7: k("s_waitcnt lgkmcnt(0)")
        if i in pre_issue: pre_issue[i](k)
        if i + 2 < 8: issue(i + 2)


def PFK(p):
    W = s(S_WS, 4)
    return [["s_mov_b32 m0, s%d" % sKTD, "buffer_load_dwordx4 %s, %s, s%d offen sc1 lds" % (v(aL16), W, sKV)],
            ["buffer_load_dwordx4 %s, %s, s%d offen offset:1024 sc1 lds" % (v(aL16), W, sKV)],
            ["buffer_load_dwordx4 %s, %s, %s, s%d offen sc1" % (v(VTN, 4), v(aL16), W, sVIM)],
            ["buffer_load_dwordx4 %s, %s, %s, s%d offen offset:1024 sc1" % (v(VTN + 4, 4), v(aL16), W, sVIM)],
            ["s_add_u32 s%d, s%d, 0x40000" % (sKV, sKV), "s_add_u32 s%d, s%d, 0x40000" % (sVIM, sVIM),
             "s_xor_b32 s%d, s%d, 0x2000" % (sKTD, sKTD)]][p]

def WVR(n, h):
    return "ds_read_b128 %s, %s offset:%d" % (v(G + (n & 3) * 8 + 4 * h, 4), v(aWV), n * 2048 + h * 1024)

def weave(k, spine, fill):
    for i, m in enumerate(spine):
        k(m)
        for f in fill.get(i, []): k(f)

def check_n(k, buf, n, t0, t1):
    if n == 8:
        k("v_max3_u32 %s, %s, %s, %s", v(t0), v(buf), v(buf + 1), v(buf + 2))
        k("v_max3_u32 %s, %s, %s, %s", v(t1), v(buf + 3), v(buf + 4), v(buf + 5))
        k("v_max3_u32 %s, %s, %s, %s", v(t0), v(buf + 6), v(buf + 7), v(t0))
        k("v_max_u32 %s, %s, %s", v(t0), v(t0), v(t1))
    else:
        k("v_max3_u32 %s, %s, %s, %s", v(t0), v(buf), v(buf + 1), v(buf + 2))
        k("v_max_u32 %s, %s, %s", v(t0), v(t0), v(buf + 3))
    k("v_cmp_eq_u32 vcc, -1, %s", v(t0))

def retry_stub(k, lab, back, loads, buf, n, pre=None, cnt=None):
    k.L(lab)
    lp = k.lab("rp")
    k("s_mov_b32 s%d, 0", sCNT)
    k.L(lp)
    for l in loads: k(l)
    if cnt is not None and getattr(k, 'ticks', False): k("s_add_u32 s%d, s%d, 1", cnt, cnt)
    k("s_waitcnt vmcnt(0)")
    if pre:
        for l in pre: k(l)
    check_n(k, buf, n, CT, CT + 1)
    k("s_cbranch_vccz %s", back)
    k("s_add_u32 s%d, s%d, 1", sCNT, sCNT)
    k("s_cmp_lt_u32 s%d, s%d", sCNT, S_LIM)
    k("s_cbranch_scc1 %s", lp)
    k("s_mov_b32 s%d, 0", S_LIM)
    k("s_branch %s", back)

def delay(k, slots):
    while slots > 0:
        m = min(slots, 16); k("s_nop %d", m - 1); slots -= m

def chain_loop(k, stf, tag):
    W = s(S_WS, 4)
    o = getattr(k, 'copt', {})
    mg = getattr(k, 'merged', False)
    tk = getattr(k, 'ticks', False)
    TK = lambda i: ("s_memtime s[%d:%d]" % (64 + 2 * i, 65 + 2 * i)) if tk else ""
    lexit = k.lab(tag + "exit"); bexit = k.lab(tag + "bexit")
    Qs = lambda j, b: [SMF(AQ, b, WQ + j * 8), SMF(AQ + 4, b, WQ + (8 + j) * 8)]
    Ks = lambda j, b: [SMF(AK, b, WK + j * 8), SMF(AK + 4, b, WK + (8 + j) * 8)]
    Vs = lambda j, b: [SMF(AV + 4 * t, b, (G + ((j + t) & 3) * 8) if j % 2 == 0 else (WVR_ + ((j >> 1) * 2 + t) * 8)) for t in range(2)]
    Q = lambda j: Qs(j, MA + 4 * j); Kp = lambda j: Ks(j, MA + 4 * j); V = lambda j: Vs(j, MA + 4 * j)
    KORD = [0, 1, 2, 4, 6, 3, 5, 7]
    MR = lambda j: "ds_read_b128 %s, %s offset:%d" % (v(MA + 4 * j, 4), v(aM[j >> 1]), (j & 1) * 1024)
    KTR = lambda f: "ds_read_b128 %s, %s offset:%d" % (v(MA + 4 * KORD[f], 4), v(aKT), f * 1024)
    MV = lambda d, x: "v_mov_b32 %s, %s" % (v(d), x)
    EX = lambda d, s_: "v_exp_f32 %s, %s" % (v(d), v(s_))
    CV = lambda d, a_, b_: "v_cvt_pk_bf16_f32 %s, %s, %s" % (v(d), v(a_), v(b_))
    FA = lambda a_: ["v_add_f32 %s, %s, %s" % (v(a_), v(a_), v(a_ + 2)), "v_add_f32 %s, %s, %s" % (v(a_ + 1), v(a_ + 1), v(a_ + 3))]
    stkvm = "buffer_store_dwordx4 %s, %s, %s, s%d offen sc1" % (v(KVM, 4), v(aL16), W, sKM)
    r_sm = k.lab(tag + "rsm"); b_sm = k.lab(tag + "bsm"); r_kv = k.lab(tag + "rkv"); b_kv = k.lab(tag + "bkv")
    EB = [MA, VTN]
    lF = [k.lab(tag + "s0f") for _ in EB]; lto = k.lab(tag + "to")
    RD = MA + 16; HT = MA + 20; H1 = MA + 8; H1B = MA + 24
    lde = lambda b: ["buffer_load_dwordx4 %s, %s, %s, s%d offen sc1" % (v(b, 4), v(aL16), W, sH2L),
                     "buffer_load_dwordx4 %s, %s, %s, s%d offen offset:1024 sc1" % (v(b + 4, 4), v(aL16), W, sH2L)]
    def spin(reg, n, lab, magic="0x7fc1"):
        for i in range(n):
            k("v_cmp_ne_u32 vcc, %s, %s", magic, v(reg))
            k("s_cbranch_vccnz %s", lab)
    lS = [k.lab(tag + "s0v") for _ in EB]; lcom = k.lab(tag + "com"); lpoll = k.lab(tag + "poll")
    k("s_branch %s", lS[0])
    k(".aw_on")
    nb0 = o.get('b0', 5)
    fl = [[],
          ["buffer_load_dword v1, %s, %s, s%d offen sc1" % (v(aFL4), W, sQF)]] if mg else [[], []]
    for bi in (1, 0):
        b = EB[bi]; ob = EB[1 - bi]
        k(".aw_reset")
        k.L(lF[1 - bi])
        k(MV(ob + 7, "-2"))
        for l in lde(ob): k(l)
        if tk: k("s_add_u32 s97, s97, 1")
        k("s_add_u32 s%d, s%d, 1", sCNT, sCNT)
        k("s_cmp_ge_u32 s%d, s%d", sCNT, S_LIM)
        k("s_cbranch_scc1 %s", lto)
        if bi == 0: k.L(lpoll)
        ar = k.lab(tag + "ar2")
        spin(b + 7, o.get('ns2', 16), ar, "-2")
        k.L(ar)
        k("s_waitcnt vmcnt(2)")
        k("v_max_u32 %s, %s, %s", v(HT), v(b + 3), v(b + 7))
        k("v_cmp_eq_u32 vcc, -1, %s", v(HT))
        k("s_cbranch_vccnz %s", lF[bi])
        k.L(lS[bi])
        tick(k, 15); tick_step_end(k); tick(k, 0)
        if o.get('plog2'): k("s_memtime s[64:65]"); k("s_memrealtime s[66:67]")
        k("ds_write_b128 %s, %s", v(aM[0]), v(b, 4))
        f = {o.get('gw2', 2): ["ds_write_b128 %s, %s offset:1024" % (v(aM[0]), v(b + 4, 4))], nb0: [".aw_writes", "s_barrier", TK(1), MR(2)]}
        for x in range(3, 8): f[min(nb0 + x - 2, 11)] = f.get(min(nb0 + x - 2, 11), []) + [MR(x)]
        if o.get('early', 0): f[1] = PFK(0)[1:]; f[2] = PFK(1); f[3] = [stkvm]; f[4] = fl[0]
        weave(k, Qs(0, b) + Ks(0, b) + Qs(1, b + 4) + Ks(1, b + 4) + Vs(0, b) + Vs(1, b + 4), f)
        if bi: k("s_branch %s", lcom)
    k.L(lcom)
    qf = []
    for t in range(2):
        a_ = AQ + 4 * t
        qf += FA(a_) + ["v_mul_f32 %s, s%d, %s" % (v(a_), sC, v(a_)), "v_mul_f32 %s, s%d, %s" % (v(a_ + 1), sC, v(a_ + 1)), CV(a_, a_, a_ + 1)]
    E_ = lambda x: [] if o.get('early', 0) else x
    weave(k, Q(2) + Q(3) + Q(4) + Q(5) + Q(6) + Q(7) + Kp(2) + Kp(3) + Kp(4) + Kp(5) + Kp(6) + Kp(7) + V(2), {
        0: [TK(2), "s_waitcnt vmcnt(0)"] + PFK(2), 1: [WVR(4, 0)], 2: [WVR(4, 1)], 3: PFK(3), 4: [WVR(5, 0)], 5: [WVR(5, 1)], 6: PFK(0)[1:], 7: [KTR(1)],
        8: (["v_mov_b32 v34, s64", "v_mov_b32 v35, s66", "v_mov_b32 v33, 0", "s_lshl_b32 s68, s%d, 3" % S_STEP, "s_add_u32 s68, s68, s100",
             "buffer_store_dwordx2 v[34:35], v33, %s, s68 offen" % W] if o.get('plog2') else []),
        9: PFK(1), 10: [KTR(0)], 11: PFK(4), 12: [stkvm],
        13: [qf[0]], 14: [qf[1]], 15: [qf[5]], 16: fl[0] + [qf[6]], 17: [qf[2]], 18: [qf[3]], 19: fl[1] + [qf[7]], 20: [qf[8]],
        21: [qf[4]], 22: [qf[9]], 23: ["s_add_u32 s%d, s%d, 0x20000" % (sKM, sKM)], 24: [WVR(6, 0)], 25: [WVR(6, 1)]})
    for t in range(2):
        if o.get('pk', 1): k("v_pk_add_f32 %s, %s, %s", v(AK + 4 * t, 2), v(AK + 4 * t, 2), v(AK + 4 * t + 2, 2))
        else:
            for x in FA(AK + 4 * t): k(x)
        k(CV(AQ + 4 * t + 1, AK + 4 * t, AK + 4 * t + 1))
    k("ds_write2_b64 %s, %s, %s offset0:0 offset1:16", v(aXW), v(AQ, 2), v(AQ + 4, 2))
    tick(k, 5)
    X = AQ
    XR = lambda i: "ds_read_b64_tr_b16 %s, %s offset:%d" % (v(X + 2 * i, 2), v(aXR), (i >> 1) * 1280 + (i & 1) * 128)
    ONES, PM, LA, E, T1, T2, T0 = G, G + 4, G + 8, G + 12, G + 20, G + 24, G + 28
    O1 = "0x3f803f80"
    nb = o.get('xb', 3)
    KORD[:] = [0, 1, 2, 4, 3, 5, 6, 7]
    f = {0: [WVR(7, 0), MV(KVM, v(AQ + 1))], 1: [WVR(7, 1), MV(KVM + 1, v(AQ + 5))], 2: [KTR(2), MV(ONES, O1)]}
    BAR = [".aw_writes", "s_barrier", TK(6)]
    if nb == 3:
        f.update({3: BAR + [XR(0), XR(1)], 4: [XR(2), XR(3)], 5: [XR(4), XR(5)], 6: [XR(6), XR(7)], 7: [KTR(3), KTR(4)], 8: [KTR(5), KTR(6)], 9: [KTR(7)]})
    elif nb == 4:
        f.update({3: [KTR(3), MV(ONES + 1, O1)], 4: BAR + [XR(0), XR(1)], 5: [XR(2), XR(3)], 6: [XR(4), XR(5)], 7: [XR(6), XR(7)], 8: [KTR(4), KTR(5)], 9: [KTR(6), KTR(7)]})
    elif nb == 5:
        f.update({3: [KTR(3), MV(ONES + 1, O1)], 4: [KTR(4), MV(PM + 1, "0")], 5: BAR + [XR(0), XR(1)], 6: [XR(2), XR(3)], 7: [XR(4), XR(5)], 8: [XR(6), XR(7)], 9: [KTR(5)]})
    elif nb == 6:
        f.update({3: [KTR(3), MV(ONES + 1, O1)], 4: [KTR(4), MV(PM + 1, "0")], 5: [KTR(5)], 6: BAR + [XR(0), XR(1), XR(2)], 7: [XR(3), XR(4)], 8: [XR(5), XR(6)], 9: [XR(7)]})
    weave(k, V(4) + V(3) + V(5) + V(6) + V(7), f)
    pass
    vf = []
    for t in range(2): vf += FA(AV + 4 * t) + [CV(KVM + 2 + t, AV + 4 * t, AV + 4 * t + 1)]
    t1 = lambda kb: MF(T1, MA + 4 * KORD[kb], X + 4 * kb, kb == 0)
    t2 = lambda kb: MF(T2, MA + 4 * KORD[4 + kb], X + 4 * kb, kb == 0)
    t0 = lambda kb: MF(T0, X + 4 * kb, X + 4 * kb, kb == 0)
    weave(k, [t1(0), t0(0), t1(1), t0(1), t1(2), t0(2)], {0: [TK(7)] + ([KTR(6)] if nb >= 5 else []) + ([MV(ONES + 1, O1)] if nb == 3 else []) + [MV(ONES + 2, O1)], 1: ([KTR(7)] if nb >= 5 else []) + vf[0:2], 2: vf[3:5], 3: [vf[2], vf[5]],
        4: [MV(PM + 1, "0"), MV(PM + 2, "0")], 5: ["s_cmp_ge_u32 s%d, %d" % (S_STEP, o.get('kvl', 59)), "s_cbranch_scc1 %s" % lexit, bexit + ":", MV(ONES + 3, O1)]})
    weave(k, [t1(3), t2(0), t0(3), t2(1), t2(2), t2(3)], {
        2: [EX(E, T1)], 3: [EX(E + 1, T1 + 1)], 4: [EX(E + 2, T1 + 2)],
        5: [EX(E + 3, T1 + 3), EX(T0, T0 + 2), EX(T0 + 1, T0 + 3), CV(E, E, E + 1), CV(E + 1, E + 2, E + 3), CV(PM, T0, T0 + 1), CV(PM + 3, T0, T0 + 1)]})
    O = AV
    Z = lambda i: "v_mov_b32 %s, 0" % v(MA + i)
    M16z = lambda d, A, B: "v_mfma_f32_16x16x16_bf16 %s, %s, %s, 0" % (v(d, 4), v(A, 2), v(B, 2))
    tick(k, 8)
    def pv(k, fast):
        weave(k, [M16z(LA, PM, ONES), M16z(O, PM, KVM + 2), M16z(O + 4, PM + 2, KVM + 2)],
              {0: [EX(E + 4, T2)], 1: [EX(E + 5, T2 + 1)], 2: [EX(E + 6, T2 + 2), EX(E + 7, T2 + 3), CV(E + 2, E + 4, E + 5), CV(E + 3, E + 6, E + 7)]} if fast else {})
        weave(k, [MF(LA, E, ONES, False), MF(O, E, VT, False), MF(O + 4, E, VT + 4, False)], {})
    pv(k, True)
    k("v_rcp_f32 %s, %s", v(LA), v(LA))
    k("v_rcp_f32 %s, %s", v(LA + 1), v(LA + 1))
    k.L(b_sm)
    for t in range(2):
        if o.get('pk', 1): k("v_pk_mul_f32 %s, %s, %s", v(O + 4 * t, 2), v(O + 4 * t, 2), v(LA, 2))
        else:
            k("v_mul_f32 %s, %s, %s", v(O + 4 * t), v(O + 4 * t), v(LA))
            k("v_mul_f32 %s, %s, %s", v(O + 4 * t + 1), v(O + 4 * t + 1), v(LA + 1))
        k(CV(E + 4 + t, O + 4 * t, O + 4 * t + 1))
    k("ds_write_b64 %s, %s", v(aOW), v(E + 4, 2))
    tick(k, 9)
    Z2 = lambda i: "v_mov_b64 %s, 0" % v(MA + 2 * i, 2)
    ZP = X + 8 + 6
    ZM = lambda r: "v_mfma_f32_32x32x8_bf16 %s, %s, %s, 0" % (v(r, 16), v(ZP, 2), v(ZP, 2))
    k("v_max3_f32 %s, |%s|, |%s|, |%s|", v(X), v(T1), v(T1 + 1), v(T1 + 2))
    k("v_max3_f32 %s, |%s|, |%s|, |%s|", v(X + 1), v(T1 + 3), v(T2), v(T2 + 1))
    k("v_max3_f32 %s, |%s|, |%s|, %s", v(X), v(T2 + 2), v(T2 + 3), v(X))
    k("v_max3_f32 %s, |%s|, |%s|, %s", v(X + 1), v(T0 + 2), v(T0 + 3), v(X + 1))
    k("v_mov_b64 %s, 0", v(ZP, 2))
    k("v_max_f32 %s, %s, %s", v(X), v(X), v(X + 1))
    k("v_cmp_lt_f32 vcc, s%d, %s", sTHR, v(X))
    k("s_and_b64 vcc, vcc, %s", s(sMASK, 2))
    k("s_cbranch_scc1 %s", r_sm)
    k("s_mov_b32 s%d, 0x42700000", sTHR)
    k(ZM(MA))
    k(".aw_writes"); k("s_barrier")
    tick(k, 10)
    OA = AQ
    for i in range(4):
        k("ds_read_b64_tr_b16 %s, %s offset:%d", v(OA + 2 * i, 2), v(aXR), (L_OB - L_XB) + (i >> 1) * 1280 + (i & 1) * 128)
        if i == o.get('zp', 1): k(ZM(MA + 16))
    PK = AK
    SB = {(4, 0): G, (5, 0): G + 8, (4, 1): G + 16, (5, 1): G + 24, (6, 0): VT, (7, 0): AV, (6, 1): G, (7, 1): G + 8}
    WOB = lambda nt, kbo: (WOR_ + (nt * 2 + kbo) * 8) if nt < 4 else SB[(nt, kbo)]
    WR = lambda nt, kbo, h: "ds_read_b128 %s, %s offset:%d" % (v(SB[(nt, kbo)] + 4 * h, 4), v(aWO), ((nt - 4) * 2 + kbo) * 2048 + h * 1024)
    WS_ = lambda nt, kbo: SMF(MA + 4 * nt, OA + 4 * kbo, WOB(nt, kbo))
    AD = lambda nt, b: "v_add_f32 %s, %s, %s" % (v(MA + 4 * nt + b), v(MA + 4 * nt + b), v(MA + 4 * nt + 2 + b))
    PC = lambda sx, b, hh: CV(PK + 4 * sx + 2 * b + hh, MA + 4 * (4 * sx + 2 * hh) + b, MA + 4 * (4 * sx + 2 * hh + 1) + b)
    ST1 = lambda sx: "buffer_store_dwordx4 %s, %s, %s, s%d offen %s" % (v(PK + 4 * sx, 4), v(aH1S), W, sH1S1 if sx else sH1S0, stf)
    PA = lambda nt: "v_pk_add_f32 %s, %s, %s" % (v(MA + 4 * nt, 2), v(MA + 4 * nt, 2), v(MA + 4 * nt + 2, 2))
    TG = lambda sx: "v_and_or_b32 %s, %s, -2, s%d" % (v(PK + 4 * sx), v(PK + 4 * sx), sPH)
    k(WR(4, 0, 0)); k(WR(4, 0, 1))
    A2 = lambda nt: [PA(nt)] if o.get('pk', 1) else [AD(nt, 0), AD(nt, 1)]
    P2 = lambda tp, b: CV(PK + 2 * tp + b, MA + 8 * tp + b, MA + 8 * tp + 4 + b)
    T2_ = lambda tp: "v_and_or_b32 %s, %s, -2, s%d" % (v(PK + 2 * tp), v(PK + 2 * tp), sPH)
    S2 = lambda tp: "buffer_store_dwordx2 %s, %s, %s, s%d offen offset:%d %s" % (v(PK + 2 * tp, 2), v(aH1S), W, sH1S1 if tp >> 1 else sH1S0, (tp & 1) * 2048, stf)
    fin = lambda tp: [AD(2 * tp + 1, 0), AD(2 * tp + 1, 1), P2(tp, 0), P2(tp, 1), T2_(tp), S2(tp)]
    fa = {0: [TK(11), WR(5, 0, 0)], 1: [WR(5, 0, 1)], 2: [WR(4, 1, 0)], 3: [WR(4, 1, 1)],
        4: [WR(5, 1, 0), AD(0, 0)], 5: [WR(5, 1, 1), AD(0, 1)] + fin(0) + [TK(12)], 6: [WR(6, 0, 0), WR(6, 0, 1)], 7: [WR(7, 0, 0), WR(7, 0, 1)],
        8: [WR(6, 1, 0), AD(2, 0)], 9: [WR(6, 1, 1), AD(2, 1), WR(7, 1, 0), WR(7, 1, 1)] + fin(1),
        12: [AD(4, 0)], 13: [AD(4, 1)] + fin(2),
        15: A2(6) + A2(7) + [P2(3, 0), P2(3, 1), T2_(3), S2(3)]}
    if o.get('lazy', 0):
        fa = {0: [TK(11), WR(5, 0, 0)], 1: [WR(5, 0, 1)], 2: [WR(4, 1, 0)], 3: [WR(4, 1, 1)],
            4: [WR(5, 1, 0), AD(0, 0)], 5: [WR(5, 1, 1), AD(0, 1)], 6: [WR(6, 0, 0), AD(1, 0)], 7: [WR(6, 0, 1), WR(7, 0, 0), WR(7, 0, 1)] + fin(0)[1:] + [TK(12)],
            8: [WR(6, 1, 0), AD(2, 0)], 9: [WR(6, 1, 1), AD(2, 1)], 10: [WR(7, 1, 0), AD(3, 0)], 11: [WR(7, 1, 1)] + fin(1)[1:],
            12: [AD(4, 0)], 13: [AD(4, 1)], 14: [AD(5, 0)],
            15: fin(2)[1:] + A2(6) + A2(7) + [P2(3, 0), P2(3, 1), T2_(3), S2(3)]}
    weave(k, [WS_(0, 0), WS_(1, 0), WS_(0, 1), WS_(1, 1), WS_(2, 0), WS_(3, 0), WS_(2, 1), WS_(3, 1), WS_(4, 0), WS_(5, 0),
              WS_(4, 1), WS_(5, 1), WS_(6, 0), WS_(7, 0), WS_(6, 1), WS_(7, 1)], fa)
    tick(k, 13)
    if o.get('plog'):
        k("s_mov_b32 m0, s%d", S_STEP)
        k("v_writelane_b32 v1, s64, m0")
    RD = MA + 16; HT = MA + 20; H1 = MA + 8; H1B = MA + 24
    h1lb = lambda b: ["buffer_load_dwordx4 %s, %s, %s, s%d offen sc1" % (v(b, 4), v(aL16), W, sH1L),
           "buffer_load_dwordx4 %s, %s, %s, s%d offen offset:1024 sc1" % (v(b + 4, 4), v(aL16), W, sH1L)]
    redb = lambda b: [MF(RD, SEL, b, True), MF(RD, SEL, b + 4, False),
           "v_bitop3_b32 %s, %s, %s, s%d bitop3:0x7e" % (v(HT), v(b), v(b + 4), sPH), "v_and_b32 %s, 1, %s" % (v(HT), v(HT)),
           "v_cmp_ne_u32 vcc, 0, %s" % v(HT)]
    h1l = h1lb(H1); red = redb(H1)
    lde = lambda b: ["buffer_load_dwordx4 %s, %s, %s, s%d offen sc1" % (v(b, 4), v(aL16), W, sH2L),
                     "buffer_load_dwordx4 %s, %s, %s, s%d offen offset:1024 sc1" % (v(b + 4, 4), v(aL16), W, sH2L)]
    KAV = "v_mov_b32 %s, 0" % v(MA + 22)
    def warm(vl, ol, slots, per=o.get('per', 4)):
        while slots > 0:
            k(vl.pop(0) if vl else (KAV if o.get('ka', 0) else "s_nop 0")); slots -= 1
            r = min(per - 1, slots)
            while r > 0 and ol:
                x = ol.pop(0); k(x); c = 2 if x.startswith('ds_') else 1; r -= c; slots -= c
            if r > 0: k("s_nop %d", r - 1); slots -= r
    def spin(reg, n, lab, magic="0x7fc1"):
        for i in range(n):
            k("v_cmp_ne_u32 vcc, %s, %s", magic, v(reg))
            k("s_cbranch_vccnz %s", lab)
            if o.get('spn', 0): k("s_nop %d", o.get('spn') - 1)
    ok1 = k.lab(tag + "ok1"); rr1 = k.lab(tag + "r1"); ar1 = k.lab(tag + "ar1"); ar0 = k.lab(tag + "ar0")
    lp1 = k.lab(tag + "lp1"); lB = k.lab(tag + "gB"); lA2 = k.lab(tag + "gA2")
    k("s_cmp_ge_u32 s%d, 2", S_WAVE)
    k(".aw_fork")
    k("s_cbranch_scc1 %s", lB)
    for g in 'ab':
        if g == 'b':
            k.L(lB); k(".aw_join")
        hv = ["v_mov_b64 %s, 0" % v(AQ + 2 * i, 2) for i in range(12)] + ["v_xor_b32 %s, 0x2000, %s" % (v(aKT), v(aKT))]
        ho = [WVR(n, h) for n in range(4) for h in range(2)] + \
             ["s_mov_b32 s%d, s%d" % (sH2R, sH2S), "s_xor_b32 s%d, s%d, 0x2000" % (sH2S, sH2S)] + \
             ["s_xor_b32 s%d, s%d, 0x40000" % (r, r) for r in (sH1S0, sH1S1)] + \
             ["s_xor_b32 s%d, s%d, 0x2000" % (sH2L, sH2L), "s_add_u32 s%d, s%d, 1" % (S_STEP, S_STEP), "s_mov_b32 m0, s%d" % sKTD, "s_mov_b32 s%d, 0" % sCNT]
        warm(hv, ho, o.get('p0' + g, 24 if g == 'a' else 44))
        tick(k, 3)
        for l in h1lb(H1B): k(l)
        warm(hv, ho, o.get('p1' + g, 54 if g == 'a' else 24))
        for l in h1l: k(l)
        warm(hv, ho, o.get('w1' + g, 2 if g == 'a' else 14))
        assert not hv and not ho
        k(".aw_all")
        if g == 'a': k("s_branch %s", lp1)
    k.L(lp1)
    spin(H1B + 3, o.get('ns1', 24), ar0)
    k.L(ar0)
    k("s_waitcnt vmcnt(3)")
    tick(k, 4)
    k(redb(H1B)[0])
    k("s_waitcnt vmcnt(2)")
    for l in redb(H1B)[1:]: k(l)
    k("s_cbranch_vccnz %s", rr1)
    k.L(ok1)
    for sh in (4, 8):
        for r in (RD, RD + 1): k("v_add_f32_dpp %s, %s, %s row_ror:%d row_mask:0xf bank_mask:0xf", v(r), v(r), v(r), sh)
    k("v_cvt_pk_bf16_f32 %s, %s, %s", v(RD), v(RD), v(RD + 1))
    k("buffer_store_dword %s, %s, %s, s%d offen %s", v(RD), v(aH2S), W, sH2S, stf)
    tick(k, 14)
    k(MV(HT, "-1"))
    k("buffer_store_dword %s, %s, %s, s%d offen %s", v(HT), v(aH2S), W, sH2R, stf)
    hv = ["v_mov_b64 %s, %s" % (v(VT + 2 * i, 2), v(VTN + 2 * i, 2)) for i in range(4)] + [MV(VTN + 7, "-2")]
    ho = ["s_xor_b32 s%d, s%d, 0x40000" % (sH1L, sH1L), "s_bfe_u32 s%d, s%d, 0x10001" % (sPH, S_STEP), "s_mov_b32 s%d, 0" % sCNT]
    if mg:
        k("s_add_u32 s%d, s%d, 1", sT, S_STEP); k("v_cmp_ge_u32 vcc, s%d, v1", sT)
        k("s_cbranch_vccnz %s", r_kv)
        k.L(b_kv)
    k("s_cmp_ge_u32 s%d, 2", S_WAVE)
    k("s_cbranch_scc1 %s", lA2)
    warm([], [], o.get('p2a', 20))
    k.L(lA2)
    p2 = o.get('p2', [26, 30])
    warm(hv, ho, p2[0])
    assert not hv and not ho
    for l in lde(EB[0]): k(l)
    warm(hv, ho, p2[1])
    for l in lde(EB[1]): k(l)
    warm(hv, ho, o.get('w2', 15))
    k(".aw_all")
    k(".aw_off")
    k("s_branch %s", lpoll)
    k.L(lto)
    k("s_mov_b32 s%d, 0", S_LIM)
    k("s_waitcnt vmcnt(0)")
    k("s_branch %s", lS[0])
    k.L(rr1)
    k(MV(H1B + 3, "0x7fc1"))
    for l in h1lb(H1B): k(l)
    if tk: k("s_add_u32 s98, s98, 1")
    spin(H1 + 7, o.get('ns1', 24), ar1)
    k.L(ar1)
    k("s_waitcnt vmcnt(2)")
    for l in red: k(l)
    k("s_cbranch_vccz %s", ok1)
    k(MV(H1 + 7, "0x7fc1"))
    for l in h1l: k(l)
    if tk: k("s_add_u32 s96, s96, 1")
    k("s_add_u32 s%d, s%d, 1", sCNT, sCNT)
    k("s_cmp_lt_u32 s%d, s%d", sCNT, S_LIM)
    k("s_cbranch_scc1 %s", lp1)
    k("s_mov_b32 s%d, 0", S_LIM)
    k("s_branch %s", ok1)
    if mg:
        k.L(r_kv)
        kv_refresh(k, 1, b_kv)
    k.L(r_sm)
    k("v_max3_f32 %s, %s, %s, %s", v(X), v(T1), v(T1 + 1), v(T1 + 2))
    k("v_max3_f32 %s, %s, %s, %s", v(X), v(T1 + 3), v(T2), v(X))
    k("v_max3_f32 %s, %s, %s, %s", v(X), v(T2 + 1), v(T2 + 2), v(X))
    k("v_max3_f32 %s, %s, %s, %s", v(X), v(T2 + 3), v(T0 + 2), v(X))
    k("v_max_f32 %s, %s, %s", v(X), v(T0 + 3), v(X))
    xmax(k, X, X + 1)
    for r in [T1 + i for i in range(8)] + [T0 + 2, T0 + 3]: k("v_sub_f32 %s, %s, %s", v(r), v(r), v(X))
    for i in range(8): k(EX(E + i, T1 + i))
    k(EX(T0, T0 + 2)); k(EX(T0 + 1, T0 + 3))
    for i in range(4): k(CV(E + i, E + 2 * i, E + 2 * i + 1))
    k(CV(PM, T0, T0 + 1)); k(CV(PM + 3, T0, T0 + 1))
    pv(k, False)
    k("s_mov_b32 s%d, 0x7f800000", sTHR)
    k("v_rcp_f32 %s, %s", v(LA), v(LA))
    k("v_rcp_f32 %s, %s", v(LA + 1), v(LA + 1))
    k("s_waitcnt lgkmcnt(0)")
    k("s_branch %s", b_sm)
    k.L(lexit)
    k(stkvm)
    k("s_cmp_lt_u32 s%d, 63", S_STEP)
    k("s_cbranch_scc1 %s", bexit)
    k("s_waitcnt lgkmcnt(0)")

def role_chain(k, force_slow=False):
    mg = getattr(k, 'merged', False)
    srds = (('Wq', S_WQ), ('Wk', S_WK), ('Wv', S_WV), ('Wo', S_WO), ('mem0', 56))
    for n, r in srds: load_srd(k, n, r)
    def after_first(k):
        for n, r in srds[1:] + (('ws', S_WS), ('dbg', S_DBG)): fin_srd(k, n, r)
        chain_setup(k)
        merged_setup(k)
        k("s_mov_b32 s%d, 0", S_STEP)
    W = s(S_WS, 4)
    def h_arm(k):
        chain_arm(k)
        k("v_lshrrev_b32 v104, 1, v90")
        k("v_and_b32 v104, 6, v104")
        k("v_and_b32 v105, 1, v1")
        k("v_add_u32 v104, v104, v105")
        k("v_lshlrev_b32 v104, 10, v104")
        k("v_lshrrev_b32 v105, 1, v91")
        k("v_lshl_add_u32 v104, v105, 6, v104")
        k("v_and_b32 v105, 1, v91")
        k("v_lshl_add_u32 v104, v105, 4, v104")
        k("s_lshl_b32 s%d, s%d, 8", sT, S_WAVE)
        for j in range(2):
            k("buffer_load_dwordx4 %s, v104, %s, s%d offen offset:%d", v(40 + 8 * j, 4), s(56, 4), sT, j * 128)
            k("buffer_load_dwordx4 %s, v104, %s, s%d offen offset:%d", v(44 + 8 * j, 4), s(56, 4), sT, j * 128 + 32)
        k("v_mov_b32 v107, 0")
        k("buffer_load_dword v118, v107, %s, 0 offen offset:%d sc1", s(S_DBG, 4), DBG_T)
        return 10
    lwarm = k.lab("CW"); lwend = k.lab("CWe")
    def h_mem0(k):
        lt = k.lab("CT"); lt2 = k.lab("CT2")
        k("v_cmp_eq_u32 vcc, 0, v118")
        k("s_cbranch_vccz %s", lt)
        wait_ready(k, 118, DBG_T)
        k.L(lt)
        k("v_readfirstlane_b32 s%d, v118", sT)
        k("s_cmp_lg_u32 s%d, s54", sT)
        k("s_cselect_b32 s100, 0x10001, 1")
        k("s_cbranch_scc0 %s", lt2)
        k("s_cmp_eq_u32 s101, 0")
        k("s_cbranch_scc1 %s", k.lswap)
        k.L(lt2)
        k("v_and_b32 v105, 2, v1")
        k("v_mul_u32_u24 v105, 0x10101, v105")
        k("v_and_b32 v106, 2, v1")
        k("v_lshl_add_u32 v105, v106, 24, v105")
        k("v_add_u32 v105, 0x05040100, v105")
        for j in range(2):
            for i in range(4):
                k("v_perm_b32 %s, %s, %s, v105", v(MA + 4 * j + i), v(44 + 8 * j + i), v(40 + 8 * j + i))
        k("v_mov_b32 v107, 0")
        k("buffer_load_dword v108, v107, %s, 0 offen offset:%d sc1", s(S_DBG, 4), DBG_READY)
        n = 1
        if k.copt.get('cwarm', 1):
            lpc = k.lab("pc")
            k("s_getpc_b64 s[60:61]")
            k.L(lpc)
            k("s_add_u32 s60, s60, %s-%s", lwarm, lpc)
            k("s_addc_u32 s61, s61, 0")
            k("s_lshl_b32 s%d, s%d, 13", sT, S_WAVE)
            k("v_lshlrev_b32 v104, 7, v1")
            k("v_min_u32 v105, %s-%s-4, v104", lwend, lwarm)
            k("global_load_dword v116, v105, s[60:61]")
            k("v_add_u32 v104, 0x2000, v104")
            k("v_min_u32 v105, %s-%s-4, v104", lwend, lwarm)
            k("global_load_dword v117, v105, s[60:61]")
            n += 2
        return n
    def h_announce(k):
        k("v_mov_b32 v106, s100")
        k("s_cmp_eq_u32 s%d, 0", S_WAVE)
        k("s_cselect_b32 s%d, 8, 0x1000", sT)
        k("v_mov_b32 v105, s%d", sT)
        k("s_mov_b64 exec, 1")
        k("buffer_atomic_add v106, v105, %s, 0 offen sc1", s(S_DBG, 4))
        k("s_mov_b64 exec, -1")
        return 1
    def h_flags(k):
        k("buffer_load_dword v109, %s, %s, s%d offen sc1", v(aFL), W, sQF)
        n = 1
        if k.copt.get('hwarm', 1):
            for base, x in ((sH1L, 0), (sH1L, 0x40000), (sH2L, 0), (sH2L, 0x2000)):
                k("s_xor_b32 s%d, s%d, 0x%x", sT, base, x)
                for off in (0, 1024):
                    k("buffer_load_dwordx4 v[112:115], %s, %s, s%d offen offset:%d sc1", v(aL16), W, sT, off)
                    n += 1
        return n
    def h_pf(k):
        k("s_waitcnt vmcnt(16)")
        k("v_cmp_eq_u32 vcc, 0, v108")
        k("s_or_b32 s%d, vcc_lo, vcc_hi", sSAFE)
        k("v_cmp_ge_u32 vcc, 1, v109")
        k("s_or_b32 s%d, s%d, vcc_lo", sSAFE, sSAFE)
        for p in range(4):
            for l in PFK(p): k(l)
        k("buffer_load_dword v110, v107, %s, 0 offen offset:8 sc1", s(S_DBG, 4))
        return 5
    def h3(k): return h_mem0(k) + h_announce(k)
    chain_load_weights(k, {-1: h_arm, 2: h3, 5: h_flags, 7: h_pf} if k.copt.get('ho', 0) == 0 else {-1: h_arm, 2: h_mem0, k.copt['ho']: h_announce, 5: h_flags, 7: h_pf}, {}, after_first)
    stamp(k, 2, 1, wgreg=S_HEAD, vt=120)
    if mg:
        lok = k.lab("CHf")
        k("s_cmp_eq_u32 s%d, 0", sSAFE)
        k("s_cbranch_scc1 %s", lok)
        wait_ready(k, 108)
        kv_refresh(k, 1)
        for p in range(4):
            for l in PFK(p): k(l)
        k.L(lok)
    k("s_mov_b32 s%d, 0", sSAFE)
    k("s_mov_b32 s%d, 0x42700000", sTHR)
    for l in PFK(4): k(l)
    k("s_waitcnt vmcnt(0)")
    k("v_readfirstlane_b32 s44, v110")
    for n in range(4):
        k(WVR(n, 0)); k(WVR(n, 1))
    for i in range(24): k("v_mov_b32 %s, 0", v(AQ + i))
    lp = k.lab("CHs"); ok = k.lab("CHok")
    k("v_mov_b32 %s, 0", v(KVM + 1))
    k("s_mov_b32 s%d, 0", sCNT)
    k.L(lp)
    k("s_and_b32 s45, s44, 0xffff")
    k("s_cmp_ge_u32 s45, 32")
    k("s_cbranch_scc1 %s", ok)
    k("buffer_load_dword %s, %s, %s, 0 offen offset:8 sc1", v(KVM), v(KVM + 1), s(S_DBG, 4))
    k("s_waitcnt vmcnt(0)")
    k("v_readfirstlane_b32 s44, %s", v(KVM))
    k("s_add_u32 s%d, s%d, 1", sCNT, sCNT)
    k("s_cmp_lt_u32 s%d, s%d", sCNT, S_LIM)
    k("s_cbranch_scc1 %s", lp)
    k("s_mov_b32 s%d, 0", S_LIM)
    k.L(ok)
    k("s_waitcnt vmcnt(0)")
    for i in range(8): k("v_mov_b32 %s, %s", v(VT + i), v(VTN + i))
    k("s_waitcnt lgkmcnt(0)")
    stamp(k, 2, 2, wgreg=S_HEAD, vt=56)
    stamp(k, 2, 4, wgreg=S_HEAD, vt=56, cyc=True)
    tick_init(k)
    if k.copt.get('plog2'):
        k("s_lshl_b32 s100, s%d, 2", S_HEAD)
        k("s_add_u32 s100, s100, s%d", S_WAVE)
        k("s_lshl_b32 s100, s100, 9")
        k("s_add_u32 s100, s100, 0x%x", TS + 8 * 65536)
    k("s_mov_b32 m0, s%d", sKTD)
    k("v_mov_b32 v1, 0")
    lslow = k.lab("CHslow"); ldone = k.lab("CHdone")
    k("s_lshr_b32 s44, s44, 16")
    k("s_cmp_lg_u32 s44, %d", 0 if not force_slow else 77)
    k("s_cbranch_scc1 %s", lslow)
    n0 = len(k.lines)
    k.L(lwarm)
    chain_loop(k, "", "F")
    k.L(lwend)
    o = getattr(k, 'copt', {})
    if o.get('free'):
        body = k.lines[n0:]; out = []
        for l in body:
            ls = l.strip()
            if 's100' in ls: out.append(l); continue
            if ls.startswith('s_cbranch_vccnz'): continue
            if ls.startswith('s_cbranch_vccz Fs0v'): l = l.replace('s_cbranch_vccz', 's_branch')
            if ls.startswith('s_cbranch_scc1 Frsm'): continue
            if 'novmem' in o['free'] and (ls.startswith('buffer_') or 'vmcnt' in ls): continue
            if 'nowait' in o['free'] and 'vmcnt' in ls: continue
            out.append(l)
        k.lines[n0:] = out
    k("s_branch %s", ldone)
    k.L(lslow)
    chain_loop(k, "sc1", "S")
    k.L(ldone)
    if k.copt.get('plog'):
        k("s_lshl_b32 s100, s%d, 2", S_HEAD)
        k("s_add_u32 s100, s100, s%d", S_WAVE)
        k("s_lshl_b32 s100, s100, 8")
        k("s_add_u32 s100, s100, 0x%x", TS + 8 * 65536)
        k("v_lshrrev_b32 v40, 2, %s", v(aL16))
        k("buffer_store_dword v1, v40, %s, s100 offen", s(S_WS, 4))
    tick_dump(k)
    k("s_waitcnt vmcnt(0)")
    stamp(k, 2, 3, wgreg=S_HEAD, vt=56)
    stamp(k, 2, 5, wgreg=S_HEAD, vt=56, cyc=True)
```

```python
import sys, json
from build_v1 import header_comments
from chain12 import *
from roles2 import *
KN = NAME + "_kernel"
def build(opts={}, stamps=False, ticks=False):
    k = K(); k.stamps = stamps; k.ticks = ticks; k.copt = opts; k.merged = True
    kernel_header(k, KN)
    lend = k.lab("END")
    lstamp(k, 6)
    k("s_cmp_ge_u32 s2, 256")
    k("s_cbranch_scc1 %s", lend)
    load_srd(k, 'ws', S_WS); load_srd(k, 'dbg', S_DBG)
    if opts.get('home'): k("s_xor_b32 s2, s2, %d", opts['home'])
    lane_wave(k)
    k("s_mov_b32 s%d, 400000", S_SPIN)
    ROLE = 5
    k("s_getreg_b32 s54, hwreg(HW_REG_XCC_ID)")
    k("s_and_b32 s54, s54, 7")
    k("s_add_u32 s54, s54, 1")
    k("s_mov_b32 s3, s2")
    k("s_mov_b32 s101, 0")
    lsw = k.lab("SWAP"); lrd = k.lab("ROLED"); lw = k.lab("WORK")
    k("s_or_b32 s44, s2, s%d", S_WAVE)
    k("s_cmp_lg_u32 s44, 0")
    k("s_cbranch_scc1 %s", lrd)
    k("s_waitcnt lgkmcnt(0)")
    fin_srd(k, 'dbg', S_DBG)
    k("v_mov_b32 v2, 0"); k("v_mov_b32 v3, %s", str(opts['die'] + 1) if 'die' in opts else "s54")
    k("buffer_store_dword v3, v2, %s, 0 offen offset:%d sc1", s(S_DBG, 4), DBG_T)
    k.L(lrd)
    k("s_and_b32 s%d, s3, 7", ROLE)
    k("s_lshl_b32 s%d, s%d, 5", ROLE, ROLE)
    k("s_lshr_b32 s3, s3, 3")
    k("s_add_u32 s%d, s%d, s3", ROLE, ROLE)
    k("s_cmp_ge_u32 s%d, 32", ROLE)
    k("s_cbranch_scc1 %s", lw)
    k.lswap = lsw
    role_chain(k, opts.get('slow', False))
    lstamp_dump(k, ROLE)
    k("s_branch %s", lend)
    k.L(lsw)
    lo = k.lab("SWo"); lp = k.lab("SWp"); ld = k.lab("SWd"); lc = k.lab("SWc")
    k("s_waitcnt vmcnt(0) lgkmcnt(0)")
    k("s_barrier")
    k("s_mov_b32 s101, 1")
    k("s_mov_b32 s3, s2")
    k("s_and_b32 s47, s2, 7")
    k("s_cmp_eq_u32 s47, 0")
    k("s_cselect_b32 s47, 1, 0")
    k("s_xor_b32 s46, s47, 1")
    k("v_mbcnt_lo_u32_b32 v1, -1, 0")
    k("v_mbcnt_hi_u32_b32 v1, -1, v1")
    k("s_lshl_b32 s44, s%d, 6", S_WAVE)
    k("v_add_u32 v0, s44, v1")
    k("s_cmp_lg_u32 s%d, 0", S_WAVE)
    k("s_cbranch_scc1 %s", lo)
    k("s_mov_b64 exec, 1")
    k("s_lshl_b32 s48, s47, 2")
    k("v_mov_b32 v2, 0"); k("v_mov_b32 v4, 1")
    k("buffer_atomic_add v4, v2, %s, s48 offen sc0 sc1", s(S_DBG, 4))
    k("s_lshl_b32 s49, s47, 4")
    k("s_lshl_b32 s50, s46, 4")
    k("s_add_u32 s51, s2, 1")
    k("s_lshl_b32 s51, s51, s49")
    k("s_waitcnt vmcnt(0)")
    k("v_readfirstlane_b32 s48, v4")
    k("s_cmp_ge_u32 s48, 32")
    k("s_cbranch_scc1 %s", ld)
    k("s_lshl_b32 s48, s48, 2")
    k("s_add_u32 s48, s48, 64")
    k("v_mov_b32 v4, s51")
    k("buffer_atomic_or v4, v2, %s, s48 offen sc0 sc1", s(S_DBG, 4))
    k("s_mov_b32 s52, 0")
    k.L(lp)
    k("s_waitcnt vmcnt(0)")
    k("v_readfirstlane_b32 s53, v4")
    k("s_lshr_b32 s44, s53, s49")
    k("s_and_b32 s44, s44, 0xffff")
    k("s_cmp_eq_u32 s44, 0xffff")
    k("s_cbranch_scc1 %s", ld)
    k("s_lshr_b32 s53, s53, s50")
    k("s_and_b32 s53, s53, 0xffff")
    k("s_cmp_lg_u32 s53, 0")
    k("s_cbranch_scc1 %s", lc)
    k("s_cmp_gt_u32 s52, 400")
    k("s_cbranch_scc1 %s", ld)
    k("s_add_u32 s52, s52, 1")
    k("buffer_load_dword v4, v2, %s, s48 offen sc1", s(S_DBG, 4))
    k("s_cmp_le_u32 s52, 400")
    k("s_cbranch_scc1 %s", lp)
    k("s_waitcnt vmcnt(0)")
    k("s_lshl_b32 s53, 0xffff, s50")
    k("s_or_b32 s53, s53, s51")
    k("v_mov_b32 v4, s53"); k("v_mov_b32 v5, s51")
    k("buffer_atomic_cmpswap v[4:5], v2, %s, s48 offen sc0 sc1", s(S_DBG, 4))
    k("s_branch %s", lp)
    k.L(lc)
    k("s_sub_u32 s3, s53, 1")
    k("s_and_b32 s3, s3, 255")
    k.L(ld)
    k("v_mov_b32 v3, s3"); k("v_mov_b32 v2, 163328")
    k("ds_write_b32 v2, v3")
    k("s_mov_b64 exec, -1")
    k("s_waitcnt lgkmcnt(0)")
    k.L(lo)
    k("s_barrier")
    k("v_mov_b32 v2, 163328")
    k("ds_read_b32 v3, v2")
    k("s_waitcnt lgkmcnt(0)")
    k("v_readfirstlane_b32 s3, v3")
    k("s_branch %s", lrd)
    k.L(lw)
    srds = [('x', S_X), ('out', S_O)]
    for n, r in srds: load_srd(k, n, r)
    k("s_waitcnt lgkmcnt(0)")
    for n, r in srds + [('ws', S_WS), ('dbg', S_DBG)]: fin_srd(k, n, r)
    k("s_mov_b32 s100, s54")
    def tcheck(k):
        lnt = k.lab("NT"); lgo = k.lab("NTs")
        k("s_cmp_lg_u32 s101, 0")
        k("s_cbranch_scc1 %s", lnt)
        wait_ready(k, 2, DBG_T)
        k("v_readfirstlane_b32 s44, v2")
        k("s_cmp_lg_u32 s44, s100")
        k("s_cbranch_scc1 %s", lnt)
        k("s_mov_b32 s54, s100")
        k("s_branch %s", lsw)
        k.L(lnt)
    lz = k.lab("Z")
    k("s_lshl_b32 s44, s101, 8")
    k("s_or_b32 s44, s44, s2")
    k("s_cmp_lg_u32 s44, 7")
    k("s_cbranch_scc1 %s", lz)
    k("s_cmp_lg_u32 s%d, 1", S_WAVE)
    k("s_cbranch_scc1 %s", lz)
    for i in range(4): k("v_mov_b32 v%d, 0", 4 + i)
    k("v_lshlrev_b32 v8, 4, v1")
    k("s_mov_b32 s40, 0x%x", FLAGS)
    for i in range(2): k("buffer_store_dwordx4 v[4:7], v8, %s, s40 offen offset:%d sc1", s(S_WS, 4), i * 1024)
    k("v_lshlrev_b32 v8, 7, v1")
    for i in range(7):
        k("s_mov_b32 s40, 0x%x", FLAGS + 0x2000 + i * 0x2000)
        k("buffer_store_dwordx4 v[4:7], v8, %s, s40 offen sc1", s(S_WS, 4))
    k("v_mov_b32 v9, 1")
    k("s_waitcnt vmcnt(0)")
    k("s_mov_b64 exec, 1")
    k("buffer_store_dword v9, v4, %s, 0 offen offset:%d sc1", s(S_DBG, 4), DBG_READY)
    k("s_mov_b64 exec, -1")
    k.L(lz)
    k("s_cmp_ge_u32 s%d, 256", ROLE)
    k("s_cbranch_scc1 %s", lend)
    stamp(k, 3, 0, wgreg=ROLE, vt=120)
    GRP, TK_, SEG, FO, FI = 54, 55, 7, 56, 57
    k("s_lshr_b32 s%d, s%d, 5", GRP, ROLE)
    k("s_and_b32 s%d, s%d, 31", TK_, ROLE)
    lq = k.lab("DOQKV"); l2 = k.lab("ROLE2")
    k("s_cmp_ge_u32 s%d, 2", GRP)
    k("s_cbranch_scc1 %s", lq)
    k("s_lshl_b32 s%d, s%d, 2", FO, TK_)
    k("s_add_u32 s%d, s%d, 0x%x", FO, FO, FLAGS + F_XN)
    def ln_after(k, scount):
        ls = k.lab("LNs")
        k("s_cmp_lg_u32 s%d, 1", scount)
        k("s_cbranch_scc1 %s", ls)
        tcheck(k)
        wait_ready(k, 2)
        k.L(ls)
        set_flag(k, FO, "s%d" % scount, 2)
    role_ln1(k, TK_, 4, ln_after)
    k("s_branch %s", l2)
    k.L(lq)
    k("s_sub_u32 s58, s%d, 64", ROLE)
    def pre_loop(k):
        tcheck(k)
        wait_ready(k, 2)
        k("v_and_b32 v8, 31, v1")
        k("v_lshlrev_b32 v8, 2, v8")
        k("s_mov_b32 s%d, 0x%x", FI, FLAGS + F_XN)
        k("s_mov_b32 s%d, 0", SEG)
        wait_flags(k, 8, FI, SEG, 2)
        k("s_lshl_b32 s%d, s32, 1", FO)
        k("s_add_u32 s%d, s%d, s34", FO, FO)
        k("s_lshl_b32 s%d, s%d, 2", FO, FO)
        k("s_lshl_b32 s40, s33, 5")
        k("s_add_u32 s%d, s%d, s40", FO, FO)
        k("s_add_u32 s%d, s%d, 0x%x", FO, FO, FLAGS + F_QF)
        k("s_sub_u32 s%d, s34, 3", SEG)
    def q_publish(k):
        k("s_max_i32 s40, s%d, 0", SEG)
        set_flag(k, FO, "s40", 2, drain=False)
        k("s_add_u32 s%d, s%d, 2", SEG, SEG)
    def q_pre_dma(k):
        ls = k.lab("QPd")
        k("s_cmp_lg_u32 s52, 8")
        k("s_cbranch_scc1 %s", ls)
        k("s_mov_b32 s58, 3")
        wait_flags(k, 8, FI, 58, 2)
        k.L(ls)
    for _ in range(opts.get('wdelay', 0)): k("s_sleep 37")
    if opts.get('qdelay'):
        lqd = k.lab("QD"); lqo = k.lab("QDo")
        k("s_cmp_lt_u32 s58, 128")
        k("s_cbranch_scc1 %s", lqo)
        k("v_mov_b32 v3, 0"); k("s_mov_b32 s59, 0")
        k.L(lqd)
        k("buffer_load_dword v2, v3, %s, 0 offen offset:8 sc1", s(S_DBG, 4))
        k("s_waitcnt vmcnt(0)")
        k("v_readfirstlane_b32 s40, v2")
        k("s_and_b32 s40, s40, 0xffff")
        k("s_cmp_ge_u32 s40, 32")
        k("s_cbranch_scc1 %s", lqo)
        k("s_sleep 16")
        k("s_add_u32 s59, s59, 1")
        k("s_cmp_lt_u32 s59, 20000")
        k("s_cbranch_scc1 %s", lqd)
        k.L(lqo)
    role_qkv(k, 58, q_pre_dma, q_publish, pre_loop)
    set_flag(k, FO, "0x80", 2)
    k.L(l2)
    stamp(k, 3, 1, wgreg=ROLE, vt=120)
    k("s_waitcnt vmcnt(0)")
    k("s_barrier")
    lur = k.lab("UR"); ldn = k.lab("DN"); lrd = k.lab("RD"); lfin = k.lab("FIN")
    k("s_cmp_ge_u32 s%d, 4", GRP)
    k("s_cbranch_scc1 %s", lur)
    k("s_sub_u32 s%d, s%d, 1", SEG, GRP)
    k("s_lshl_b32 s%d, s%d, 12", FO, SEG)
    k("s_lshl_b32 s40, s%d, 7", TK_)
    k("s_add_u32 s%d, s%d, s40", FO, FO)
    k("s_add_u32 s%d, s%d, 0x%x", FO, FO, FLAGS + F_BF)
    def wait_qkv(k, sseg):
        lsk = k.lab("wq")
        k("s_cmp_lt_u32 s%d, s72", sseg)
        k("s_cbranch_scc1 %s", lsk)
        k("v_min_u32 v3, 5, v1")
        k("v_lshlrev_b32 v3, 2, v3")
        k("s_lshl_b32 s%d, s34, 5", FI)
        k("s_add_u32 s%d, s%d, 0x%x", FI, FI, FLAGS + F_QF)
        wait_flags(k, 3, FI, sseg, 2)
        k("v_cmp_gt_u32 vcc, 0x80, v2")
        k("s_cmp_eq_u64 vcc, 0")
        k("s_cselect_b32 s72, 64, 0")
        k.L(lsk)
        return
        k("v_min_u32 v3, 2, v1")
        k("v_lshlrev_b32 v3, 3, v3")
        k("s_and_b32 s%d, s%d, 1", FI, sseg)
        k("s_lshl_b32 s%d, s%d, 2", FI, FI)
        k("s_lshl_b32 s58, s34, 5")
        k("s_add_u32 s%d, s%d, s58", FI, FI)
        k("s_add_u32 s%d, s%d, 0x%x", FI, FI, FLAGS + F_QF)
        wait_flags(k, 3, FI, sseg, 2)
    def wait_kvm(k, sseg):
        k("v_and_b32 v3, 3, v1")
        k("v_lshlrev_b32 v3, 7, v3")
        k("s_lshl_b32 s%d, s34, 9", FI)
        k("s_add_u32 s%d, s%d, 0x%x", FI, FI, FLAGS + F_KF)
        wait_flags(k, 3, FI, sseg, 2)
    H = opts.get('hint', 1)
    def publish(k, sseg):
        k("s_add_u32 s58, s%d, 1", sseg)
        k("s_cmp_ge_u32 s%d, 61", sseg)
        k("s_cselect_b32 s58, 0x100, s58")
        set_flag(k, FO, "s58", 2)
    def hint(k, sseg, bar=False):
        l = k.lab("hn")
        k("s_cmp_lt_u32 s%d, 61", sseg)
        k("s_cbranch_scc1 %s", l)
        if bar: k("s_barrier")
        set_flag(k, FO, "64", 2, drain=False)
        k.L(l)
    def wfin(va):
        def f(k):
            k("s_mov_b32 s58, 0xff")
            wait_flags(k, va, FI, 58, 2)
        return f
    if not H: hint = None
    k("s_mov_b32 s72, 0")
    role_bc(k, TK_, SEG, 3, wait_qkv, wait_kvm, publish, hint)
    k("s_branch %s", lfin)
    k.L(lur)
    k("s_cmp_eq_u32 s%d, 7", GRP)
    k("s_cbranch_scc1 %s", ldn)
    k("s_sub_u32 s%d, s%d, 4", SEG, GRP)
    k("s_lshl_b32 s%d, s%d, 12", FI, SEG)
    k("s_cmp_ge_u32 s%d, 22", TK_)
    k("s_cbranch_scc1 %s", lrd)
    k("s_lshl_b32 s40, s%d, 7", TK_)
    k("s_add_u32 s%d, s%d, s40", FO, FI)
    k("s_add_u32 s%d, s%d, 0x%x", FO, FO, FLAGS + F_UF)
    k("s_add_u32 s%d, s%d, 0x%x", FI, FI, FLAGS + F_RF)
    k("v_and_b32 v13, 7, v1")
    k("v_lshlrev_b32 v13, 7, v13")
    role_up(k, TK_, SEG, 3, None, None, publish, lambda k, sseg: wait_flags(k, 13, FI, sseg, 2, wave0=True), hint, wfin(13))
    k("s_branch %s", lfin)
    k.L(lrd)
    k("s_cmp_ge_u32 s%d, 30", TK_)
    k("s_cbranch_scc1 %s", lfin)
    k("s_sub_u32 s%d, s%d, 22", TK_, TK_)
    k("s_lshl_b32 s40, s%d, 7", TK_)
    k("s_add_u32 s%d, s%d, s40", FO, FI)
    k("s_add_u32 s%d, s%d, 0x%x", FO, FO, FLAGS + F_RF)
    k("s_add_u32 s%d, s%d, 0x%x", FI, FI, FLAGS + F_BF)
    k("v_and_b32 v15, 31, v1")
    k("v_lshlrev_b32 v15, 7, v15")
    role_red(k, TK_, SEG, 3, lambda k, sseg: wait_flags(k, 15, FI, sseg, 2, wave0=True), publish, hint, wfin(15))
    k("s_branch %s", lfin)
    k.L(ldn)
    k("s_lshr_b32 s%d, s%d, 4", SEG, TK_)
    k("s_and_b32 s%d, s%d, 15", TK_, TK_)
    k("v_min_u32 v13, 21, v1")
    k("v_lshlrev_b32 v13, 7, v13")
    def wait_up(k, sseg):
        k("s_mul_i32 s58, s%d, 43", sseg)
        k("s_lshr_b32 s58, s58, 7")
        k("s_mul_i32 s58, s58, 3")
        k("s_sub_u32 s58, s%d, s58", sseg)
        k("s_lshl_b32 s%d, s58, 12", FI)
        k("s_add_u32 s%d, s%d, 0x%x", FI, FI, FLAGS + F_UF)
        wait_flags(k, 13, FI, sseg, 2, wave0=True)
    role_dn(k, TK_, SEG, 2, wait_up, wfin(13) if H else None)
    k.L(lfin)
    stamp(k, 3, 2, wgreg=ROLE, vt=120)
    lstamp_dump(k, ROLE)
    k.L(lend)
    k("s_endpgm")
    body = insert_nops(auto_wait(k.lines))
    hdr = header_comments([])
    hdr.append('; @launch grid=(256,1,1) block=(256,1,1) lds=163840')
    return '\n'.join(hdr) + '\n.amdgcn_target "amdgcn-amd-amdhsa--gfx950"\n.text\n' + '\n'.join(body) + \
        '\n.section .rodata,"a"\n.p2align 6\n' + kernel_desc(KN)
if __name__ == '__main__':
    o = {"lazy": 1, "p0a": 44, "p1a": 24, "w1a": 14, "p2a": 4, "hbc": 26, "hr": 1, "hu": 1, "w1": 14, "b0": 6, "w2": 14, "ns1": 0, "ns2": 0, "ho": 4}
    if len(sys.argv) > 1: o.update(json.loads(sys.argv[1]))
    open('m.s', 'w').write(build(o))
    open('ms.s', 'w').write(build(o, stamps=True))
```

```python
from roles import *
import struct
def f2u(x): return struct.unpack('<I', struct.pack('<f', x))[0]

L_KT = 131072
L_MB = L_KT + 16384
L_XB = L_MB + 8192
L_OB = L_XB + 5120
L_MISC_ = L_OB + 2560
WQ, WK, WO = 256, 384, 128
aM = [2, 3, 4, 5]; aXW = 6; aXR = 7; aOW = 8; aWV = 9; aKT = 10; aL16 = 11
aH1S = 12; aWO = 13; aH1L = 11; aH2S = 14; IDX = 15
KVM = 16
SEL = 20
VTN = 24
MA = 32; AQ = 64; AK = 72; AV = 80; G = 88; VT = 120
S_HEAD = 5; S_LIM = 6; S_STEP = 7
S_WQ, S_WK, S_WV, S_WO = 12, 16, 20, 28
sH1S0, sH1S1, sH1L, sH2S, sH2L = 32, 33, 34, 35, 36
sKV = 37; sKTD = 38; sKM = 39; sVIM = 40; sC = 41; sCNT = 42; sT = 43
sH1R = 50; sH2R = 51; sMASK = 52
sPH = 50; sTHR = 49; sSAFE = 55; sQF = 46; sKF = 47; aFL = 0; aFL4 = 0
CSC = 0.08838834764831845 * 1.4426950408889634
VORD = [0, 2, 4, 6, 1, 3, 5, 7]
CT = MA

from chain import elect, xmax
def tick(k, i):
    if getattr(k, 'ticks', False): k("s_memtime s[%d:%d]", 64 + 2 * i, 65 + 2 * i)
def tick_init(k):
    if not getattr(k, 'ticks', False): return
    for i in range(96, 100): k("s_mov_b32 s%d, 0", i)
def tick_step_end(k):
    if not getattr(k, 'ticks', False): return
    l = k.lab("tse")
    k("s_cmp_lg_u32 s%d, %d", S_STEP, k.copt.get('tstep', 41))
    k("s_cbranch_scc1 %s", l)
    k("s_waitcnt vmcnt(0) lgkmcnt(0)")
    k("s_lshl_b32 s100, s%d, 2", S_HEAD)
    k("s_add_u32 s100, s100, s%d", S_WAVE)
    k("s_lshl_b32 s100, s100, 7")
    k("s_add_u32 s100, s100, 0x%x", TS + 8 * 65536)
    k("v_mov_b32 v41, 0")
    for i in range(16):
        k("v_mov_b32 v40, s%d", 64 + 2 * i)
        k("buffer_store_dword v40, v41, %s, s100 offen offset:%d", s(S_WS, 4), 4 * i)
    for e in range(2):
        lw = k.lab("cal")
        k("s_memrealtime s[64:65]")
        k("s_waitcnt lgkmcnt(0)")
        if e: k("s_add_u32 s64, s64, 100")
        k.L(lw)
        k("s_memrealtime s[66:67]")
        k("s_memtime s[68:69]")
        k("s_waitcnt lgkmcnt(0)")
        k("s_sub_u32 s70, s64, s66")
        k("s_cmp_ge_i32 s70, 0")
        k("s_cbranch_scc1 %s", lw)
        k("v_mov_b32 v40, s66")
        k("buffer_store_dword v40, v41, %s, s100 offen offset:%d", s(S_WS, 4), 80 + 8 * e)
        k("v_mov_b32 v40, s68")
        k("buffer_store_dword v40, v41, %s, s100 offen offset:%d", s(S_WS, 4), 84 + 8 * e)
    k.L(l)
def tick_dump(k):
    if not getattr(k, 'ticks', False): return
    k("v_mov_b32 v41, 0")
    for i in range(4):
        k("v_mov_b32 v40, s%d", 96 + i)
        k("buffer_store_dword v40, v41, %s, s100 offen offset:%d", s(S_WS, 4), 64 + 4 * i)

def SMF(acc, A, B): return "v_smfmac_f32_16x16x64_bf16 %s, %s, %s, %s" % (v(acc, 4), v(A, 4), u(B, 8), v(IDX))
def MF(d, A, B, first): return "v_mfma_f32_16x16x32_bf16 %s, %s, %s, %s" % (v(d, 4), v(A, 4), v(B, 4), "0" if first else v(d, 4))
def M16(d, A, B): return "v_mfma_f32_16x16x16_bf16 %s, %s, %s, %s" % (v(d, 4), v(A, 2), v(B, 2), v(d, 4))

def chain_setup(k):
    w = S_WAVE
    k.c("---- chain setup: addresses")
    k("v_lshlrev_b32 %s, 4, v1", v(aL16))
    for jp in range(4):
        k("s_xor_b32 s%d, s%d, %d", sT, w, jp)
        k("s_lshl_b32 s%d, s%d, 11", sT, sT)
        k("s_add_u32 s%d, s%d, %d", sT, sT, L_MB)
        k("v_add_u32 %s, s%d, %s", v(aM[jp]), sT, v(aL16))
    k("v_and_b32 v90, 15, v1")
    k("v_lshrrev_b32 v91, 4, v1")
    k("v_bfe_u32 v92, v1, 2, 2")
    k("v_and_b32 v93, 3, v1")
    k("v_mul_u32_u24 v94, 320, v91")
    k("v_lshl_add_u32 v94, v90, 3, v94")
    k("s_mul_i32 s%d, s%d, 1280", sT, w)
    k("s_add_u32 s%d, s%d, %d", sT, sT, L_XB)
    k("v_add_u32 %s, s%d, v94", v(aXW), sT)
    k("s_lshr_b32 s%d, s%d, 1", sT, w)
    k("s_mul_i32 s%d, s%d, 1280", sT, sT)
    k("s_and_b32 s%d, s%d, 1", sCNT, w)
    k("s_lshl_b32 s%d, s%d, 7", sCNT, sCNT)
    k("s_add_u32 s%d, s%d, s%d", sT, sT, sCNT)
    k("s_add_u32 s%d, s%d, %d", sT, sT, L_OB)
    k("v_add_u32 %s, s%d, v94", v(aOW), sT)
    k("v_mul_u32_u24 v94, 320, v93")
    k("v_lshrrev_b32 v95, 2, v1")
    k("v_lshl_add_u32 v94, v95, 3, v94")
    k("v_add_u32 %s, %d, v94", v(aXR), L_XB)
    k("s_lshl_b32 s%d, s%d, 14", sT, w)
    k("v_add_u32 %s, s%d, %s", v(aWV), sT, v(aL16))
    k("v_add_u32 %s, 0x10000, %s", v(aWO), v(aWV))
    k("v_add_u32 %s, %d, %s", v(aKT), L_KT, v(aL16))
    k("v_lshrrev_b32 v94, 3, v90")
    k("v_lshl_add_u32 v94, v94, 2, v91")
    k("v_lshlrev_b32 v94, 13, v94")
    k("v_and_b32 v95, 7, v1")
    k("v_lshl_add_u32 %s, v95, 3, v94", v(aH1S))
    k("v_lshlrev_b32 v94, 4, v91")
    k("v_lshl_add_u32 v94, v93, 2, v94")
    k("v_mov_b32 v95, v92")
    k("v_cmp_eq_u32 vcc, 0, v95")
    k("v_mov_b32 v95, 0x40000000")
    k("v_cndmask_b32 %s, v95, v94, vcc", v(aH2S))
    k("v_and_b32 v94, 2, v1")
    k("v_cmp_eq_u32 vcc, 0, v94")
    k("v_mov_b32 v94, 0x44444444")
    k("v_mov_b32 v95, 0xeeeeeeee")
    k("v_cndmask_b32 %s, v95, v94, vcc", v(IDX))
    k("v_mov_b32 v94, 0x3f80")
    k("v_mov_b32 v95, 0x3f800000")
    for d in range(4):
        k("v_cmp_eq_u32 vcc, %d, v90", 4 * d)
        k("v_cndmask_b32 %s, 0, v94, vcc", v(SEL + d))
        k("v_cmp_eq_u32 vcc, %d, v90", 4 * d + 1)
        k("v_cndmask_b32 %s, %s, v95, vcc", v(SEL + d), v(SEL + d))
    k("s_lshl_b32 s%d, s%d, 16", sT, w)
    k("s_lshl_b32 s%d, s%d, 6", sH1S0, S_HEAD)
    k("s_add_u32 s%d, s%d, s%d", sH1S0, sH1S0, sT)
    k("s_add_u32 s%d, s%d, 0x%x", sH1S0, sH1S0, HOP1)
    k("s_add_u32 s%d, s%d, 0x1000", sH1S1, sH1S0)
    k("s_lshl_b32 s%d, s%d, 2", sH1L, S_HEAD)
    k("s_add_u32 s%d, s%d, s%d", sH1L, sH1L, w)
    k("s_lshl_b32 s%d, s%d, 11", sH1L, sH1L)
    k("s_add_u32 s%d, s%d, 0x%x", sH1L, sH1L, HOP1)
    k("s_lshr_b32 s%d, s%d, 3", sH2S, S_HEAD)
    k("s_lshl_b32 s%d, s%d, 11", sH2S, sH2S)
    k("s_and_b32 s%d, s%d, 7", sT, S_HEAD)
    k("s_lshl_b32 s%d, s%d, 6", sT, sT)
    k("s_add_u32 s%d, s%d, s%d", sH2S, sH2S, sT)
    k("s_lshl_b32 s%d, s%d, 9", sT, w)
    k("s_add_u32 s%d, s%d, s%d", sH2S, sH2S, sT)
    k("s_add_u32 s%d, s%d, 0x%x", sH2S, sH2S, HOP2)
    k("s_lshl_b32 s%d, s%d, 11", sH2L, w)
    k("s_add_u32 s%d, s%d, 0x%x", sH2L, sH2L, HOP2)
    k("s_lshl_b32 s%d, s%d, 13", sKV, S_HEAD)
    k("s_lshl_b32 s%d, s%d, 11", sT, w)
    k("s_add_u32 s%d, s%d, s%d", sKV, sKV, sT)
    k("s_add_u32 s%d, s%d, 0x%x", sVIM, sKV, VIMG)
    k("s_add_u32 s%d, s%d, 0x%x", sKV, sKV, KIMG)
    k("s_add_u32 s%d, s%d, %d", sKTD, sT, L_KT)
    k("s_lshl_b32 s%d, s%d, 12", sKM, S_HEAD)
    k("s_lshl_b32 s%d, s%d, 10", sT, w)
    k("s_add_u32 s%d, s%d, s%d", sKM, sKM, sT)
    k("s_add_u32 s%d, s%d, 0x%x", sKM, sKM, KM - 0x20000)
    k("s_mov_b32 s%d, 0x%x", sC, f2u(CSC))
    k("s_mov_b32 s%d, 400000", S_LIM)
    k("s_mov_b32 s%d, 0x33333333", sMASK)
    k("s_mov_b32 s%d, 0x33333333", sMASK + 1)
    k("s_mov_b32 s%d, 0", sPH)
    k("s_xor_b32 s%d, s%d, 0x2000", sH2R, sH2S)

def merged_setup(k):
    k("s_lshl_b32 s%d, s%d, 5", sQF, S_HEAD)
    k("s_add_u32 s%d, s%d, 0x%x", sQF, sQF, FLAGS + F_QF)
    k("s_lshl_b32 s%d, s%d, 2", sKF, S_HEAD)
    k("s_add_u32 s%d, s%d, s%d", sKF, sKF, S_WAVE)
    k("s_lshl_b32 s%d, s%d, 7", sKF, sKF)
    k("s_add_u32 s%d, s%d, 0x%x", sKF, sKF, FLAGS + F_KF)
    k("v_lshlrev_b32 %s, 2, v93", v(aFL))

def kv_refresh(k, plus, back=None):
    lp = k.lab("kvr"); ok = k.lab("kvok")
    k("s_mov_b32 s%d, 0", sCNT)
    k("s_add_u32 s%d, s%d, %d", sT, S_STEP, plus)
    k.L(lp)
    k("buffer_load_dword v1, %s, %s, s%d offen sc1", v(aFL), s(S_WS, 4), sQF)
    k("s_waitcnt vmcnt(0)")
    k("v_cmp_ge_u32 vcc, s%d, v1", sT)
    k("s_cbranch_vccz %s", ok)
    k("s_sleep 2")
    k("s_add_u32 s%d, s%d, 1", sCNT, sCNT)
    k("s_cmp_lt_u32 s%d, s%d", sCNT, S_LIM)
    k("s_cbranch_scc1 %s", lp)
    k("s_mov_b32 s%d, 0", S_LIM)
    k.L(ok)
    if back: k("s_branch %s", back)

import chain as _c1
def chain_arm(k):
    k.c("---- arm hop buffers (both slots), sc1")
    for i in range(4): k("v_mov_b32 %s, -1", v(96 + i))
    for slot in range(2):
        k("s_add_u32 s%d, s%d, 0x%x", sT, sH1L, slot * 262144)
        k("buffer_store_dwordx4 v[96:99], %s, %s, s%d offen sc1", v(aL16), s(S_WS, 4), sT)
        k("buffer_store_dwordx4 v[96:99], %s, %s, s%d offen offset:1024 sc1", v(aL16), s(S_WS, 4), sT)
    k("buffer_store_dword v96, %s, %s, s%d offen sc1", v(aH2S), s(S_WS, 4), sH2R)
load_mem0 = _c1.load_mem0
WVR_ = 128
WOR_ = 192

def chain_load_weights(k, hooks={}, pre_issue={}, after_first=None):
    w = S_WAVE
    k.c("---- chain weight load")
    k("v_and_b32 v90, 15, v1")
    k("v_lshrrev_b32 v91, 4, v1")
    k("s_and_b32 s44, s%d, 1", w)
    k("s_lshl_b32 s44, s44, 2")
    k("v_xor_b32 v120, s44, v90")
    k("v_and_b32 v121, 1, v91")
    k("v_lshlrev_b32 v121, 3, v121")
    k("v_xor_b32 v120, v120, v121")
    k("v_lshlrev_b32 v120, 4, v120")
    k("v_lshl_add_u32 v120, v91, 13, v120")
    k("s_lshl_b32 s45, s%d, 8", S_HEAD)
    k("s_lshl_b32 s48, s%d, 17", w)
    k("s_add_u32 s45, s45, s48")
    k("s_lshl_b32 s44, s%d, 12", w)
    sc = [('q', 0), ('q', 1), ('k', 0), ('k', 1), ('v', 1), ('o', 0), ('v', 0), ('o', 1)]
    srds = dict(q=S_WQ, k=S_WK, v=S_WV, o=S_WO)
    queue = []
    def issue(i):
        m, par = sc[i]; reg = (i & 1) * 65536
        for n in range(16):
            if m == 'o':
                k("s_add_u32 s48, s49, %d", par * 128 + n * 8192)
                k("s_add_u32 m0, s3, %d", n * 1024)
            else:
                c, q = n >> 2, n & 3
                k("s_add_u32 s48, s45, %d", (2 * c + par) * 64 * 8192 + q * 4 * 8192)
                k("s_add_u32 m0, s44, %d", reg + c * 16384 + q * 1024)
            k("buffer_load_dwordx4 v%d, %s, s48 offen lds", 121 if m == 'o' else 120, s(srds[m], 4))
            queue.append(i)
    k("s_waitcnt lgkmcnt(0)")
    fin_srd(k, 'Wq', S_WQ)
    lstamp(k, 7)
    issue(0)
    if after_first: after_first(k)
    k("v_lshrrev_b32 v121, 3, v1")
    k("v_lshlrev_b32 v121, 10, v121")
    k("v_and_b32 v122, 7, v1")
    k("v_lshl_add_u32 v121, v122, 4, v121")
    k("v_and_b32 v126, 1, v92")
    k("v_lshl_add_u32 v126, v126, 2, v91")
    k("v_lshrrev_b32 v127, 1, v92")
    k("v_lshl_add_u32 v126, v126, 2, v127")
    k("v_lshlrev_b32 v126, 8, v126")
    k("v_xor_b32 v127, s%d, v92", w)
    k("v_lshl_add_u32 v126, v127, 6, v126")
    k("v_lshl_add_u32 v126, v93, 4, v126")
    for jp in range(4):
        k("s_xor_b32 s48, s%d, %d", w, jp)
        k("s_lshl_b32 s48, s48, 14")
        k("v_add_u32 v%d, s48, v126", 122 + jp)
    k("v_lshrrev_b32 v126, 1, v92")
    k("v_lshrrev_b32 v127, 1, v91")
    k("v_lshl_add_u32 v126, v127, 1, v126")
    k("v_and_b32 v127, 1, v91")
    k("v_lshl_add_u32 v126, v127, 3, v126")
    k("v_lshlrev_b32 v126, 2, v126")
    k("v_and_b32 v127, 1, v92")
    k("v_add_u32 v126, v126, v127")
    k("v_lshlrev_b32 v126, 7, v126")
    k("v_lshl_add_u32 v126, v93, 3, v126")
    k("s_lshl_b32 s48, s%d, 14", w)
    k("s_add_u32 s3, s48, 0x10000")
    k("v_add_u32 v126, s3, v126")
    k("s_lshl_b32 s49, s%d, 17", S_HEAD)
    k("s_lshl_b32 s48, s%d, 8", w)
    k("s_add_u32 s49, s49, s48")
    if -1 in hooks: queue.extend([-1] * hooks[-1](k))
    issue(1)
    lstamp(k, 5)
    TMP = 40
    for i in range(8):
        m, par = sc[i]
        if i in hooks: queue.extend([-1] * hooks[i](k))
        last = max(n for n, c in enumerate(queue) if c == i)
        k("s_waitcnt vmcnt(%d)", len(queue) - 1 - last)
        k("s_barrier")
        if i < 5: lstamp(k, i)
        inplace = i >= 6
        cnt = 0
        for a_ in range(4):
            for b_ in range(2):
                if inplace: dst = TMP + (a_ * 2 + b_) * 8
                elif m == 'q': dst = WQ + (b_ * 8 + 2 * a_ + par) * 8
                elif m == 'k': dst = WK + (b_ * 8 + 2 * a_ + par) * 8
                elif m == 'v': dst = WVR_ + (a_ * 2 + b_) * 8
                else: dst = WOR_ + (a_ * 2 + b_) * 8
                for y in range(4):
                    if m == 'o':
                        k("ds_read_b64_tr_b16 %s, v126 offset:%d", u(dst + 2 * y, 2), (64 * b_ + 16 * (y >> 1) + 2 * (y & 1)) * 128 + 32 * a_)
                    else:
                        k("ds_read_b64_tr_b16 %s, v%d offset:%d", u(dst + 2 * y, 2), 122 + a_, (32 * (y >> 1) + 2 * (y & 1)) * 256 + 8 * b_)
                cnt += 4
                if cnt % 8 == 0: k("s_waitcnt lgkmcnt(4)")
        if i < 4:
            for jp in range(4): k("v_xor_b32 v%d, 0x10000, v%d", 122 + jp, 122 + jp)
        k("s_waitcnt lgkmcnt(0)")
        k("s_barrier")
        if inplace:
            for q in range(16):
                k("ds_write_b128 %s, %s offset:%d", v(aWO if m == 'o' else aWV), v(TMP + 4 * q, 4), q * 1024)
                if q % 8 == 7: k("s_waitcnt lgkmcnt(0)")
        if i in pre_issue: pre_issue[i](k)
        if i + 2 < 8: issue(i + 2)


def PFK(p):
    W = s(S_WS, 4)
    return [["s_mov_b32 m0, s%d" % sKTD, "buffer_load_dwordx4 %s, %s, s%d offen sc1 lds" % (v(aL16), W, sKV)],
            ["buffer_load_dwordx4 %s, %s, s%d offen offset:1024 sc1 lds" % (v(aL16), W, sKV)],
            ["buffer_load_dwordx4 %s, %s, %s, s%d offen sc1" % (v(VTN, 4), v(aL16), W, sVIM)],
            ["buffer_load_dwordx4 %s, %s, %s, s%d offen offset:1024 sc1" % (v(VTN + 4, 4), v(aL16), W, sVIM)],
            ["s_add_u32 s%d, s%d, 0x40000" % (sKV, sKV), "s_add_u32 s%d, s%d, 0x40000" % (sVIM, sVIM),
             "s_xor_b32 s%d, s%d, 0x2000" % (sKTD, sKTD)]][p]

def WVR(n, h):
    return "ds_read_b128 %s, %s offset:%d" % (v(G + (n & 3) * 8 + 4 * h, 4), v(aWV), n * 2048 + h * 1024)

def weave(k, spine, fill):
    for i, m in enumerate(spine):
        k(m)
        for f in fill.get(i, []): k(f)

def check_n(k, buf, n, t0, t1):
    if n == 8:
        k("v_max3_u32 %s, %s, %s, %s", v(t0), v(buf), v(buf + 1), v(buf + 2))
        k("v_max3_u32 %s, %s, %s, %s", v(t1), v(buf + 3), v(buf + 4), v(buf + 5))
        k("v_max3_u32 %s, %s, %s, %s", v(t0), v(buf + 6), v(buf + 7), v(t0))
        k("v_max_u32 %s, %s, %s", v(t0), v(t0), v(t1))
    else:
        k("v_max3_u32 %s, %s, %s, %s", v(t0), v(buf), v(buf + 1), v(buf + 2))
        k("v_max_u32 %s, %s, %s", v(t0), v(t0), v(buf + 3))
    k("v_cmp_eq_u32 vcc, -1, %s", v(t0))

def retry_stub(k, lab, back, loads, buf, n, pre=None, cnt=None):
    k.L(lab)
    lp = k.lab("rp")
    k("s_mov_b32 s%d, 0", sCNT)
    k.L(lp)
    for l in loads: k(l)
    if cnt is not None and getattr(k, 'ticks', False): k("s_add_u32 s%d, s%d, 1", cnt, cnt)
    k("s_waitcnt vmcnt(0)")
    if pre:
        for l in pre: k(l)
    check_n(k, buf, n, CT, CT + 1)
    k("s_cbranch_vccz %s", back)
    k("s_add_u32 s%d, s%d, 1", sCNT, sCNT)
    k("s_cmp_lt_u32 s%d, s%d", sCNT, S_LIM)
    k("s_cbranch_scc1 %s", lp)
    k("s_mov_b32 s%d, 0", S_LIM)
    k("s_branch %s", back)

def delay(k, slots):
    while slots > 0:
        m = min(slots, 16); k("s_nop %d", m - 1); slots -= m

def chain_loop(k, stf, tag):
    W = s(S_WS, 4)
    o = getattr(k, 'copt', {})
    mg = getattr(k, 'merged', False)
    tk = getattr(k, 'ticks', False)
    TK = lambda i: ("s_memtime s[%d:%d]" % (64 + 2 * i, 65 + 2 * i)) if tk else ""
    lexit = k.lab(tag + "exit"); bexit = k.lab(tag + "bexit")
    Qs = lambda j, b: [SMF(AQ, b, WQ + j * 8), SMF(AQ + 4, b, WQ + (8 + j) * 8)]
    Ks = lambda j, b: [SMF(AK, b, WK + j * 8), SMF(AK + 4, b, WK + (8 + j) * 8)]
    Vs = lambda j, b: [SMF(AV + 4 * t, b, (G + ((j + t) & 3) * 8) if j % 2 == 0 else (WVR_ + ((j >> 1) * 2 + t) * 8)) for t in range(2)]
    Q = lambda j: Qs(j, MA + 4 * j); Kp = lambda j: Ks(j, MA + 4 * j); V = lambda j: Vs(j, MA + 4 * j)
    KORD = [0, 1, 2, 4, 6, 3, 5, 7]
    MR = lambda j: "ds_read_b128 %s, %s offset:%d" % (v(MA + 4 * j, 4), v(aM[j >> 1]), (j & 1) * 1024)
    KTR = lambda f: "ds_read_b128 %s, %s offset:%d" % (v(MA + 4 * KORD[f], 4), v(aKT), f * 1024)
    MV = lambda d, x: "v_mov_b32 %s, %s" % (v(d), x)
    EX = lambda d, s_: "v_exp_f32 %s, %s" % (v(d), v(s_))
    CV = lambda d, a_, b_: "v_cvt_pk_bf16_f32 %s, %s, %s" % (v(d), v(a_), v(b_))
    FA = lambda a_: ["v_add_f32 %s, %s, %s" % (v(a_), v(a_), v(a_ + 2)), "v_add_f32 %s, %s, %s" % (v(a_ + 1), v(a_ + 1), v(a_ + 3))]
    stkvm = "buffer_store_dwordx4 %s, %s, %s, s%d offen sc1" % (v(KVM, 4), v(aL16), W, sKM)
    r_sm = k.lab(tag + "rsm"); b_sm = k.lab(tag + "bsm"); r_kv = k.lab(tag + "rkv"); b_kv = k.lab(tag + "bkv")
    EB = [MA, VTN]
    lF = [k.lab(tag + "s0f") for _ in EB]; lto = k.lab(tag + "to")
    RD = MA + 16; HT = MA + 20; H1 = MA + 8; H1B = MA + 24
    lde = lambda b: ["buffer_load_dwordx4 %s, %s, %s, s%d offen sc1" % (v(b, 4), v(aL16), W, sH2L),
                     "buffer_load_dwordx4 %s, %s, %s, s%d offen offset:1024 sc1" % (v(b + 4, 4), v(aL16), W, sH2L)]
    def spin(reg, n, lab, magic="0x7fc1"):
        for i in range(n):
            k("v_cmp_ne_u32 vcc, %s, %s", magic, v(reg))
            k("s_cbranch_vccnz %s", lab)
    lS = [k.lab(tag + "s0v") for _ in EB]; lcom = k.lab(tag + "com"); lpoll = k.lab(tag + "poll")
    k("s_branch %s", lS[0])
    k(".aw_on")
    nb0 = o.get('b0', 5)
    fl = [[],
          ["buffer_load_dword v1, %s, %s, s%d offen sc1" % (v(aFL4), W, sQF)]] if mg else [[], []]
    for bi in (1, 0):
        b = EB[bi]; ob = EB[1 - bi]
        k(".aw_reset")
        k.L(lF[1 - bi])
        if o.get('mask', 0): k("s_mov_b64 exec, vcc")
        for l in lde(ob): k(l)
        if o.get('mask', 0): k("s_mov_b64 exec, -1")
        if tk: k("s_add_u32 s97, s97, 1")
        k("s_add_u32 s%d, s%d, 1", sCNT, sCNT)
        k("s_cmp_ge_u32 s%d, s%d", sCNT, S_LIM)
        k("s_cbranch_scc1 %s", lto)
        if bi == 0: k.L(lpoll)
        ar = k.lab(tag + "ar2")
        spin(b + 7, o.get('ns2', 16), ar, "-2")
        k.L(ar)
        k("s_waitcnt vmcnt(2)")
        k("v_max_u32 %s, %s, %s", v(HT), v(b + 3), v(b + 7))
        k("v_cmp_eq_u32 vcc, -1, %s", v(HT))
        k("s_cbranch_vccnz %s", lF[bi])
        k.L(lS[bi])
        tick(k, 15); tick_step_end(k); tick(k, 0)
        if o.get('plog2'): k("s_memtime s[64:65]"); k("s_memrealtime s[66:67]")
        k("ds_write_b128 %s, %s", v(aM[0]), v(b, 4))
        f = {o.get('gw2', 2): ["ds_write_b128 %s, %s offset:1024" % (v(aM[0]), v(b + 4, 4))], nb0: [".aw_writes", "s_barrier", TK(1), MR(2)]}
        for x in range(3, 8): f[min(nb0 + x - 2, 11)] = f.get(min(nb0 + x - 2, 11), []) + [MR(x)]
        if o.get('early', 0): f[1] = PFK(0)[1:]; f[2] = PFK(1); f[3] = [stkvm]; f[4] = fl[0]
        weave(k, Qs(0, b) + Ks(0, b) + Qs(1, b + 4) + Ks(1, b + 4) + Vs(0, b) + Vs(1, b + 4), f)
        if bi: k("s_branch %s", lcom)
    k.L(lcom)
    qf = []
    for t in range(2):
        a_ = AQ + 4 * t
        qf += FA(a_) + ["v_mul_f32 %s, s%d, %s" % (v(a_), sC, v(a_)), "v_mul_f32 %s, s%d, %s" % (v(a_ + 1), sC, v(a_ + 1)), CV(a_, a_, a_ + 1)]
    E_ = lambda x: [] if o.get('early', 0) else x
    weave(k, Q(2) + Q(3) + Q(4) + Q(5) + Q(6) + Q(7) + Kp(2) + Kp(3) + Kp(4) + Kp(5) + Kp(6) + Kp(7) + V(2), {
        0: [TK(2), "s_waitcnt vmcnt(0)"] + PFK(2), 1: [WVR(4, 0)], 2: [WVR(4, 1)], 3: PFK(3), 4: [WVR(5, 0)], 5: [WVR(5, 1)], 6: PFK(0)[1:], 7: [KTR(1)],
        8: (["v_mov_b32 v34, s64", "v_mov_b32 v35, s66", "v_mov_b32 v33, 0", "s_lshl_b32 s68, s%d, 3" % S_STEP, "s_add_u32 s68, s68, s100",
             "buffer_store_dwordx2 v[34:35], v33, %s, s68 offen" % W] if o.get('plog2') else []),
        9: PFK(1), 10: [KTR(0)], 11: PFK(4), 12: [stkvm],
        13: [qf[0]], 14: [qf[1]], 15: [qf[5]], 16: fl[0] + [qf[6]], 17: [qf[2]], 18: [qf[3]], 19: fl[1] + [qf[7]], 20: [qf[8]],
        21: [qf[4]], 22: [qf[9]], 23: ["s_add_u32 s%d, s%d, 0x20000" % (sKM, sKM)], 24: [WVR(6, 0)], 25: [WVR(6, 1)]})
    for t in range(2):
        if o.get('pk', 1): k("v_pk_add_f32 %s, %s, %s", v(AK + 4 * t, 2), v(AK + 4 * t, 2), v(AK + 4 * t + 2, 2))
        else:
            for x in FA(AK + 4 * t): k(x)
        k(CV(AQ + 4 * t + 1, AK + 4 * t, AK + 4 * t + 1))
    k("ds_write2_b64 %s, %s, %s offset0:0 offset1:16", v(aXW), v(AQ, 2), v(AQ + 4, 2))
    tick(k, 5)
    X = AQ
    XR = lambda i: "ds_read_b64_tr_b16 %s, %s offset:%d" % (v(X + 2 * i, 2), v(aXR), (i >> 1) * 1280 + (i & 1) * 128)
    ONES, PM, LA, E, T1, T2, T0 = G, G + 4, G + 8, G + 12, G + 20, G + 24, G + 28
    O1 = "0x3f803f80"
    nb = o.get('xb', 3)
    KORD[:] = [0, 1, 2, 4, 3, 5, 6, 7]
    f = {0: [WVR(7, 0), MV(KVM, v(AQ + 1))], 1: [WVR(7, 1), MV(KVM + 1, v(AQ + 5))], 2: [KTR(2), MV(ONES, O1)]}
    BAR = [".aw_writes", "s_barrier", TK(6)]
    if nb == 3:
        f.update({3: BAR + [XR(0), XR(1)], 4: [XR(2), XR(3)], 5: [XR(4), XR(5)], 6: [XR(6), XR(7)], 7: [KTR(3), KTR(4)], 8: [KTR(5), KTR(6)], 9: [KTR(7)]})
    elif nb == 4:
        f.update({3: [KTR(3), MV(ONES + 1, O1)], 4: BAR + [XR(0), XR(1)], 5: [XR(2), XR(3)], 6: [XR(4), XR(5)], 7: [XR(6), XR(7)], 8: [KTR(4), KTR(5)], 9: [KTR(6), KTR(7)]})
    elif nb == 5:
        f.update({3: [KTR(3), MV(ONES + 1, O1)], 4: [KTR(4), MV(PM + 1, "0")], 5: BAR + [XR(0), XR(1)], 6: [XR(2), XR(3)], 7: [XR(4), XR(5)], 8: [XR(6), XR(7)], 9: [KTR(5)]})
    elif nb == 6:
        f.update({3: [KTR(3), MV(ONES + 1, O1)], 4: [KTR(4), MV(PM + 1, "0")], 5: [KTR(5)], 6: BAR + [XR(0), XR(1), XR(2)], 7: [XR(3), XR(4)], 8: [XR(5), XR(6)], 9: [XR(7)]})
    weave(k, V(4) + V(3) + V(5) + V(6) + V(7), f)
    pass
    vf = []
    for t in range(2): vf += FA(AV + 4 * t) + [CV(KVM + 2 + t, AV + 4 * t, AV + 4 * t + 1)]
    t1 = lambda kb: MF(T1, MA + 4 * KORD[kb], X + 4 * kb, kb == 0)
    t2 = lambda kb: MF(T2, MA + 4 * KORD[4 + kb], X + 4 * kb, kb == 0)
    t0 = lambda kb: MF(T0, X + 4 * kb, X + 4 * kb, kb == 0)
    weave(k, [t1(0), t0(0), t1(1), t0(1), t1(2), t0(2)], {0: [TK(7)] + ([KTR(6)] if nb >= 5 else []) + ([MV(ONES + 1, O1)] if nb == 3 else []) + [MV(ONES + 2, O1)], 1: ([KTR(7)] if nb >= 5 else []) + vf[0:2], 2: vf[3:5], 3: [vf[2], vf[5]],
        4: [MV(PM + 1, "0"), MV(PM + 2, "0")], 5: ["s_cmp_ge_u32 s%d, %d" % (S_STEP, o.get('kvl', 59)), "s_cbranch_scc1 %s" % lexit, bexit + ":", MV(ONES + 3, O1)]})
    weave(k, [t1(3), t2(0), t0(3), t2(1), t2(2), t2(3)], {
        2: [EX(E, T1)], 3: [EX(E + 1, T1 + 1)], 4: [EX(E + 2, T1 + 2)],
        5: [EX(E + 3, T1 + 3), EX(T0, T0 + 2), EX(T0 + 1, T0 + 3), CV(E, E, E + 1), CV(E + 1, E + 2, E + 3), CV(PM, T0, T0 + 1), CV(PM + 3, T0, T0 + 1)]})
    O = AV
    Z = lambda i: "v_mov_b32 %s, 0" % v(MA + i)
    M16z = lambda d, A, B: "v_mfma_f32_16x16x16_bf16 %s, %s, %s, 0" % (v(d, 4), v(A, 2), v(B, 2))
    tick(k, 8)
    def pv(k, fast):
        weave(k, [M16z(LA, PM, ONES), M16z(O, PM, KVM + 2), M16z(O + 4, PM + 2, KVM + 2)],
              {0: [EX(E + 4, T2)], 1: [EX(E + 5, T2 + 1)], 2: [EX(E + 6, T2 + 2), EX(E + 7, T2 + 3), CV(E + 2, E + 4, E + 5), CV(E + 3, E + 6, E + 7)]} if fast else {})
        weave(k, [MF(LA, E, ONES, False), MF(O, E, VT, False), MF(O + 4, E, VT + 4, False)], {})
    pv(k, True)
    k("v_rcp_f32 %s, %s", v(LA), v(LA))
    k("v_rcp_f32 %s, %s", v(LA + 1), v(LA + 1))
    k.L(b_sm)
    for t in range(2):
        if o.get('pk', 1): k("v_pk_mul_f32 %s, %s, %s", v(O + 4 * t, 2), v(O + 4 * t, 2), v(LA, 2))
        else:
            k("v_mul_f32 %s, %s, %s", v(O + 4 * t), v(O + 4 * t), v(LA))
            k("v_mul_f32 %s, %s, %s", v(O + 4 * t + 1), v(O + 4 * t + 1), v(LA + 1))
        k(CV(E + 4 + t, O + 4 * t, O + 4 * t + 1))
    k("ds_write_b64 %s, %s", v(aOW), v(E + 4, 2))
    tick(k, 9)
    Z2 = lambda i: "v_mov_b64 %s, 0" % v(MA + 2 * i, 2)
    ZP = X + 8 + 6
    ZM = lambda r: "v_mfma_f32_32x32x8_bf16 %s, %s, %s, 0" % (v(r, 16), v(ZP, 2), v(ZP, 2))
    k("v_max3_f32 %s, |%s|, |%s|, |%s|", v(X), v(T1), v(T1 + 1), v(T1 + 2))
    k("v_max3_f32 %s, |%s|, |%s|, |%s|", v(X + 1), v(T1 + 3), v(T2), v(T2 + 1))
    k("v_max3_f32 %s, |%s|, |%s|, %s", v(X), v(T2 + 2), v(T2 + 3), v(X))
    k("v_max3_f32 %s, |%s|, |%s|, %s", v(X + 1), v(T0 + 2), v(T0 + 3), v(X + 1))
    k("v_mov_b64 %s, 0", v(ZP, 2))
    k("v_max_f32 %s, %s, %s", v(X), v(X), v(X + 1))
    k("v_cmp_lt_f32 vcc, s%d, %s", sTHR, v(X))
    k("s_and_b64 vcc, vcc, %s", s(sMASK, 2))
    k("s_cbranch_scc1 %s", r_sm)
    k("s_mov_b32 s%d, 0x42700000", sTHR)
    k(ZM(MA))
    k(".aw_writes"); k("s_barrier")
    tick(k, 10)
    OA = AQ
    for i in range(4):
        k("ds_read_b64_tr_b16 %s, %s offset:%d", v(OA + 2 * i, 2), v(aXR), (L_OB - L_XB) + (i >> 1) * 1280 + (i & 1) * 128)
        if i == o.get('zp', 1): k(ZM(MA + 16))
    PK = AK
    SB = {(4, 0): G, (5, 0): G + 8, (4, 1): G + 16, (5, 1): G + 24, (6, 0): VT, (7, 0): AV, (6, 1): G, (7, 1): G + 8}
    WOB = lambda nt, kbo: (WOR_ + (nt * 2 + kbo) * 8) if nt < 4 else SB[(nt, kbo)]
    WR = lambda nt, kbo, h: "ds_read_b128 %s, %s offset:%d" % (v(SB[(nt, kbo)] + 4 * h, 4), v(aWO), ((nt - 4) * 2 + kbo) * 2048 + h * 1024)
    WS_ = lambda nt, kbo: SMF(MA + 4 * nt, OA + 4 * kbo, WOB(nt, kbo))
    AD = lambda nt, b: "v_add_f32 %s, %s, %s" % (v(MA + 4 * nt + b), v(MA + 4 * nt + b), v(MA + 4 * nt + 2 + b))
    PC = lambda sx, b, hh: CV(PK + 4 * sx + 2 * b + hh, MA + 4 * (4 * sx + 2 * hh) + b, MA + 4 * (4 * sx + 2 * hh + 1) + b)
    ST1 = lambda sx: "buffer_store_dwordx4 %s, %s, %s, s%d offen %s" % (v(PK + 4 * sx, 4), v(aH1S), W, sH1S1 if sx else sH1S0, stf)
    PA = lambda nt: "v_pk_add_f32 %s, %s, %s" % (v(MA + 4 * nt, 2), v(MA + 4 * nt, 2), v(MA + 4 * nt + 2, 2))
    TG = lambda sx: "v_and_or_b32 %s, %s, -2, s%d" % (v(PK + 4 * sx), v(PK + 4 * sx), sPH)
    k(WR(4, 0, 0)); k(WR(4, 0, 1))
    A2 = lambda nt: [PA(nt)] if o.get('pk', 1) else [AD(nt, 0), AD(nt, 1)]
    P2 = lambda tp, b: CV(PK + 2 * tp + b, MA + 8 * tp + b, MA + 8 * tp + 4 + b)
    T2_ = lambda tp: "v_and_or_b32 %s, %s, -2, s%d" % (v(PK + 2 * tp), v(PK + 2 * tp), sPH)
    S2 = lambda tp: "buffer_store_dwordx2 %s, %s, %s, s%d offen offset:%d %s" % (v(PK + 2 * tp, 2), v(aH1S), W, sH1S1 if tp >> 1 else sH1S0, (tp & 1) * 2048, stf)
    fin = lambda tp: [AD(2 * tp + 1, 0), AD(2 * tp + 1, 1), P2(tp, 0), P2(tp, 1), T2_(tp), S2(tp)]
    fa = {0: [TK(11), WR(5, 0, 0)], 1: [WR(5, 0, 1)], 2: [WR(4, 1, 0)], 3: [WR(4, 1, 1)],
        4: [WR(5, 1, 0), AD(0, 0)], 5: [WR(5, 1, 1), AD(0, 1)] + fin(0) + [TK(12)], 6: [WR(6, 0, 0), WR(6, 0, 1)], 7: [WR(7, 0, 0), WR(7, 0, 1)],
        8: [WR(6, 1, 0), AD(2, 0)], 9: [WR(6, 1, 1), AD(2, 1), WR(7, 1, 0), WR(7, 1, 1)] + fin(1),
        12: [AD(4, 0)], 13: [AD(4, 1)] + fin(2),
        15: A2(6) + A2(7) + [P2(3, 0), P2(3, 1), T2_(3), S2(3)]}
    if o.get('lazy', 0):
        fa = {0: [TK(11), WR(5, 0, 0)], 1: [WR(5, 0, 1)], 2: [WR(4, 1, 0)], 3: [WR(4, 1, 1)],
            4: [WR(5, 1, 0), AD(0, 0)], 5: [WR(5, 1, 1), AD(0, 1)], 6: [WR(6, 0, 0), AD(1, 0)], 7: [WR(6, 0, 1), WR(7, 0, 0), WR(7, 0, 1)] + fin(0)[1:] + [TK(12)],
            8: [WR(6, 1, 0), AD(2, 0)], 9: [WR(6, 1, 1), AD(2, 1)], 10: [WR(7, 1, 0), AD(3, 0)], 11: [WR(7, 1, 1)] + fin(1)[1:],
            12: [AD(4, 0)], 13: [AD(4, 1)], 14: [AD(5, 0)],
            15: fin(2)[1:] + A2(6) + A2(7) + [P2(3, 0), P2(3, 1), T2_(3), S2(3)]}
    weave(k, [WS_(0, 0), WS_(1, 0), WS_(0, 1), WS_(1, 1), WS_(2, 0), WS_(3, 0), WS_(2, 1), WS_(3, 1), WS_(4, 0), WS_(5, 0),
              WS_(4, 1), WS_(5, 1), WS_(6, 0), WS_(7, 0), WS_(6, 1), WS_(7, 1)], fa)
    tick(k, 13)
    if o.get('plog'):
        k("s_mov_b32 m0, s%d", S_STEP)
        k("v_writelane_b32 v1, s64, m0")
    RD = MA + 16; HT = MA + 20; H1 = MA + 8; H1B = MA + 24
    h1lb = lambda b: ["buffer_load_dwordx4 %s, %s, %s, s%d offen sc1" % (v(b, 4), v(aL16), W, sH1L),
           "buffer_load_dwordx4 %s, %s, %s, s%d offen offset:1024 sc1" % (v(b + 4, 4), v(aL16), W, sH1L)]
    redb = lambda b: [MF(RD, SEL, b, True), MF(RD, SEL, b + 4, False),
           "v_bitop3_b32 %s, %s, %s, s%d bitop3:0x7e" % (v(HT), v(b), v(b + 4), sPH), "v_and_b32 %s, 1, %s" % (v(HT), v(HT)),
           "v_cmp_ne_u32 vcc, 0, %s" % v(HT)]
    h1l = h1lb(H1); red = redb(H1)
    lde = lambda b: ["buffer_load_dwordx4 %s, %s, %s, s%d offen sc1" % (v(b, 4), v(aL16), W, sH2L),
                     "buffer_load_dwordx4 %s, %s, %s, s%d offen offset:1024 sc1" % (v(b + 4, 4), v(aL16), W, sH2L)]
    KAV = "v_mov_b32 %s, 0" % v(MA + 22)
    def warm(vl, ol, slots, per=o.get('per', 4)):
        while slots > 0:
            k(vl.pop(0) if vl else (KAV if o.get('ka', 0) else "s_nop 0")); slots -= 1
            r = min(per - 1, slots)
            while r > 0 and ol:
                x = ol.pop(0); k(x); c = 2 if x.startswith('ds_') else 1; r -= c; slots -= c
            if r > 0: k("s_nop %d", r - 1); slots -= r
    def spin(reg, n, lab, magic="0x7fc1"):
        for i in range(n):
            k("v_cmp_ne_u32 vcc, %s, %s", magic, v(reg))
            k("s_cbranch_vccnz %s", lab)
            if o.get('spn', 0): k("s_nop %d", o.get('spn') - 1)
    ok1 = k.lab(tag + "ok1"); rr1 = k.lab(tag + "r1"); ar1 = k.lab(tag + "ar1"); ar0 = k.lab(tag + "ar0")
    lp1 = k.lab(tag + "lp1"); lB = k.lab(tag + "gB"); lA2 = k.lab(tag + "gA2")
    k("s_cmp_ge_u32 s%d, 2", S_WAVE)
    k(".aw_fork")
    k("s_cbranch_scc1 %s", lB)
    for g in 'ab':
        if g == 'b':
            k.L(lB); k(".aw_join")
        hv = ["v_mov_b64 %s, 0" % v(AQ + 2 * i, 2) for i in range(12)] + ["v_xor_b32 %s, 0x2000, %s" % (v(aKT), v(aKT))]
        ho = [WVR(n, h) for n in range(4) for h in range(2)] + \
             ["s_mov_b32 s%d, s%d" % (sH2R, sH2S), "s_xor_b32 s%d, s%d, 0x2000" % (sH2S, sH2S)] + \
             ["s_xor_b32 s%d, s%d, 0x40000" % (r, r) for r in (sH1S0, sH1S1)] + \
             ["s_xor_b32 s%d, s%d, 0x2000" % (sH2L, sH2L), "s_add_u32 s%d, s%d, 1" % (S_STEP, S_STEP), "s_mov_b32 m0, s%d" % sKTD, "s_mov_b32 s%d, 0" % sCNT]
        warm(hv, ho, o.get('p0' + g, 24 if g == 'a' else 44))
        tick(k, 3)
        for l in h1lb(H1B): k(l)
        warm(hv, ho, o.get('p1' + g, 54 if g == 'a' else 24))
        for l in h1l: k(l)
        warm(hv, ho, o.get('w1' + g, 2 if g == 'a' else 14))
        assert not hv and not ho
        k(".aw_all")
        if g == 'a': k("s_branch %s", lp1)
    k.L(lp1)
    spin(H1B + 3, o.get('ns1', 24), ar0)
    k.L(ar0)
    k("s_waitcnt vmcnt(3)")
    tick(k, 4)
    k(redb(H1B)[0])
    k("s_waitcnt vmcnt(2)")
    for l in redb(H1B)[1:]: k(l)
    k("s_cbranch_vccnz %s", rr1)
    k.L(ok1)
    for sh in (4, 8):
        for r in (RD, RD + 1): k("v_add_f32_dpp %s, %s, %s row_ror:%d row_mask:0xf bank_mask:0xf", v(r), v(r), v(r), sh)
    k("v_cvt_pk_bf16_f32 %s, %s, %s", v(RD), v(RD), v(RD + 1))
    k("buffer_store_dword %s, %s, %s, s%d offen %s", v(RD), v(aH2S), W, sH2S, stf)
    tick(k, 14)
    k(MV(HT, "-1"))
    k("buffer_store_dword %s, %s, %s, s%d offen %s", v(HT), v(aH2S), W, sH2R, stf)
    hv = ["v_mov_b64 %s, %s" % (v(VT + 2 * i, 2), v(VTN + 2 * i, 2)) for i in range(4)]
    ho = ["s_xor_b32 s%d, s%d, 0x40000" % (sH1L, sH1L), "s_bfe_u32 s%d, s%d, 0x10001" % (sPH, S_STEP), "s_mov_b32 s%d, 0" % sCNT]
    if mg:
        k("s_add_u32 s%d, s%d, 1", sT, S_STEP); k("v_cmp_ge_u32 vcc, s%d, v1", sT)
        k("s_cbranch_vccnz %s", r_kv)
        k.L(b_kv)
    k("s_cmp_ge_u32 s%d, 2", S_WAVE)
    k("s_cbranch_scc1 %s", lA2)
    warm([], [], o.get('p2a', 20))
    k.L(lA2)
    p2 = o.get('p2', [26, 30])
    warm(hv, ho, p2[0])
    assert not hv and not ho
    for l in lde(EB[0]): k(l)
    warm(hv, ho, p2[1])
    for l in lde(EB[1]): k(l)
    warm(hv, ho, o.get('w2', 15))
    k(".aw_all")
    k(".aw_off")
    k("s_branch %s", lpoll)
    k.L(lto)
    k("s_mov_b32 s%d, 0", S_LIM)
    k("s_waitcnt vmcnt(0)")
    k("s_branch %s", lS[0])
    k.L(rr1)
    if o.get('mask', 0): k("s_mov_b64 exec, vcc")
    for l in h1lb(H1B): k(l)
    if o.get('mask', 0): k("s_mov_b64 exec, -1")
    if tk: k("s_add_u32 s98, s98, 1")
    spin(H1 + 7, o.get('ns1', 24), ar1)
    k.L(ar1)
    k("s_waitcnt vmcnt(2)")
    for l in red: k(l)
    k("s_cbranch_vccz %s", ok1)
    if o.get('mask', 0): k("s_mov_b64 exec, vcc")
    for l in h1l: k(l)
    if o.get('mask', 0): k("s_mov_b64 exec, -1")
    if tk: k("s_add_u32 s96, s96, 1")
    k("s_add_u32 s%d, s%d, 1", sCNT, sCNT)
    k("s_cmp_lt_u32 s%d, s%d", sCNT, S_LIM)
    k("s_cbranch_scc1 %s", lp1)
    k("s_mov_b32 s%d, 0", S_LIM)
    k("s_branch %s", ok1)
    if mg:
        k.L(r_kv)
        kv_refresh(k, 1, b_kv)
    k.L(r_sm)
    k("v_max3_f32 %s, %s, %s, %s", v(X), v(T1), v(T1 + 1), v(T1 + 2))
    k("v_max3_f32 %s, %s, %s, %s", v(X), v(T1 + 3), v(T2), v(X))
    k("v_max3_f32 %s, %s, %s, %s", v(X), v(T2 + 1), v(T2 + 2), v(X))
    k("v_max3_f32 %s, %s, %s, %s", v(X), v(T2 + 3), v(T0 + 2), v(X))
    k("v_max_f32 %s, %s, %s", v(X), v(T0 + 3), v(X))
    xmax(k, X, X + 1)
    for r in [T1 + i for i in range(8)] + [T0 + 2, T0 + 3]: k("v_sub_f32 %s, %s, %s", v(r), v(r), v(X))
    for i in range(8): k(EX(E + i, T1 + i))
    k(EX(T0, T0 + 2)); k(EX(T0 + 1, T0 + 3))
    for i in range(4): k(CV(E + i, E + 2 * i, E + 2 * i + 1))
    k(CV(PM, T0, T0 + 1)); k(CV(PM + 3, T0, T0 + 1))
    pv(k, False)
    k("s_mov_b32 s%d, 0x7f800000", sTHR)
    k("v_rcp_f32 %s, %s", v(LA), v(LA))
    k("v_rcp_f32 %s, %s", v(LA + 1), v(LA + 1))
    k("s_waitcnt lgkmcnt(0)")
    k("s_branch %s", b_sm)
    k.L(lexit)
    k(stkvm)
    k("s_cmp_lt_u32 s%d, 63", S_STEP)
    k("s_cbranch_scc1 %s", bexit)
    k("s_waitcnt lgkmcnt(0)")

def role_chain(k, force_slow=False):
    mg = getattr(k, 'merged', False)
    srds = (('Wq', S_WQ), ('Wk', S_WK), ('Wv', S_WV), ('Wo', S_WO), ('mem0', 56))
    for n, r in srds: load_srd(k, n, r)
    def after_first(k):
        for n, r in srds[1:] + (('ws', S_WS), ('dbg', S_DBG)): fin_srd(k, n, r)
        chain_setup(k)
        merged_setup(k)
        k("s_mov_b32 s%d, 0", S_STEP)
    W = s(S_WS, 4)
    def h_arm(k):
        chain_arm(k)
        k("v_lshrrev_b32 v104, 1, v90")
        k("v_and_b32 v104, 6, v104")
        k("v_and_b32 v105, 1, v1")
        k("v_add_u32 v104, v104, v105")
        k("v_lshlrev_b32 v104, 10, v104")
        k("v_lshrrev_b32 v105, 1, v91")
        k("v_lshl_add_u32 v104, v105, 6, v104")
        k("v_and_b32 v105, 1, v91")
        k("v_lshl_add_u32 v104, v105, 4, v104")
        k("s_lshl_b32 s%d, s%d, 8", sT, S_WAVE)
        for j in range(2):
            k("buffer_load_dwordx4 %s, v104, %s, s%d offen offset:%d", v(40 + 8 * j, 4), s(56, 4), sT, j * 128)
            k("buffer_load_dwordx4 %s, v104, %s, s%d offen offset:%d", v(44 + 8 * j, 4), s(56, 4), sT, j * 128 + 32)
        k("v_mov_b32 v107, 0")
        k("buffer_load_dword v118, v107, %s, 0 offen offset:%d sc1", s(S_DBG, 4), DBG_T)
        return 10
    lwarm = k.lab("CW"); lwend = k.lab("CWe")
    def h_mem0(k):
        lt = k.lab("CT"); lt2 = k.lab("CT2")
        k("v_cmp_eq_u32 vcc, 0, v118")
        k("s_cbranch_vccz %s", lt)
        wait_ready(k, 118, DBG_T)
        k.L(lt)
        k("v_readfirstlane_b32 s%d, v118", sT)
        k("s_cmp_lg_u32 s%d, s54", sT)
        k("s_cselect_b32 s100, 0x10001, 1")
        k("s_cbranch_scc0 %s", lt2)
        k("s_cmp_eq_u32 s101, 0")
        k("s_cbranch_scc1 %s", k.lswap)
        k.L(lt2)
        k("v_and_b32 v105, 2, v1")
        k("v_mul_u32_u24 v105, 0x10101, v105")
        k("v_and_b32 v106, 2, v1")
        k("v_lshl_add_u32 v105, v106, 24, v105")
        k("v_add_u32 v105, 0x05040100, v105")
        for j in range(2):
            for i in range(4):
                k("v_perm_b32 %s, %s, %s, v105", v(MA + 4 * j + i), v(44 + 8 * j + i), v(40 + 8 * j + i))
        k("v_mov_b32 v107, 0")
        k("buffer_load_dword v108, v107, %s, 0 offen offset:%d sc1", s(S_DBG, 4), DBG_READY)
        n = 1
        if k.copt.get('cwarm', 1):
            lpc = k.lab("pc")
            k("s_getpc_b64 s[60:61]")
            k.L(lpc)
            k("s_add_u32 s60, s60, %s-%s", lwarm, lpc)
            k("s_addc_u32 s61, s61, 0")
            k("s_lshl_b32 s%d, s%d, 13", sT, S_WAVE)
            k("v_lshlrev_b32 v104, 7, v1")
            k("v_min_u32 v105, %s-%s-4, v104", lwend, lwarm)
            k("global_load_dword v116, v105, s[60:61]")
            k("v_add_u32 v104, 0x2000, v104")
            k("v_min_u32 v105, %s-%s-4, v104", lwend, lwarm)
            k("global_load_dword v117, v105, s[60:61]")
            n += 2
        return n
    def h_announce(k):
        k("v_mov_b32 v106, s100")
        k("s_cmp_eq_u32 s%d, 0", S_WAVE)
        k("s_cselect_b32 s%d, 8, 0x1000", sT)
        k("v_mov_b32 v105, s%d", sT)
        k("s_mov_b64 exec, 1")
        k("buffer_atomic_add v106, v105, %s, 0 offen sc1", s(S_DBG, 4))
        k("s_mov_b64 exec, -1")
        return 1
    def h_flags(k):
        k("buffer_load_dword v109, %s, %s, s%d offen sc1", v(aFL), W, sQF)
        n = 1
        if k.copt.get('hwarm', 1):
            for base, x in ((sH1L, 0), (sH1L, 0x40000), (sH2L, 0), (sH2L, 0x2000)):
                k("s_xor_b32 s%d, s%d, 0x%x", sT, base, x)
                for off in (0, 1024):
                    k("buffer_load_dwordx4 v[112:115], %s, %s, s%d offen offset:%d sc1", v(aL16), W, sT, off)
                    n += 1
        return n
    def h_pf(k):
        k("s_waitcnt vmcnt(16)")
        k("v_cmp_eq_u32 vcc, 0, v108")
        k("s_or_b32 s%d, vcc_lo, vcc_hi", sSAFE)
        k("v_cmp_ge_u32 vcc, 1, v109")
        k("s_or_b32 s%d, s%d, vcc_lo", sSAFE, sSAFE)
        for p in range(4):
            for l in PFK(p): k(l)
        k("buffer_load_dword v110, v107, %s, 0 offen offset:8 sc1", s(S_DBG, 4))
        return 5
    def h3(k): return h_mem0(k) + h_announce(k)
    chain_load_weights(k, {-1: h_arm, 2: h3, 5: h_flags, 7: h_pf} if k.copt.get('ho', 0) == 0 else {-1: h_arm, 2: h_mem0, k.copt['ho']: h_announce, 5: h_flags, 7: h_pf}, {}, after_first)
    stamp(k, 2, 1, wgreg=S_HEAD, vt=120)
    if k.copt.get('dst'): k("s_memrealtime s[94:95]")
    if mg:
        lok = k.lab("CHf")
        k("s_cmp_eq_u32 s%d, 0", sSAFE)
        k("s_cbranch_scc1 %s", lok)
        wait_ready(k, 108)
        kv_refresh(k, 1)
        for p in range(4):
            for l in PFK(p): k(l)
        k.L(lok)
    k("s_mov_b32 s%d, 0", sSAFE)
    k("s_mov_b32 s%d, 0x42700000", sTHR)
    for l in PFK(4): k(l)
    k("s_waitcnt vmcnt(0)")
    k("v_readfirstlane_b32 s44, v110")
    for n in range(4):
        k(WVR(n, 0)); k(WVR(n, 1))
    for i in range(24): k("v_mov_b32 %s, 0", v(AQ + i))
    lp = k.lab("CHs"); ok = k.lab("CHok")
    k("v_mov_b32 %s, 0", v(KVM + 1))
    k("s_mov_b32 s%d, 0", sCNT)
    k.L(lp)
    k("s_and_b32 s45, s44, 0xffff")
    k("s_cmp_ge_u32 s45, 32")
    k("s_cbranch_scc1 %s", ok)
    k("buffer_load_dword %s, %s, %s, 0 offen offset:8 sc1", v(KVM), v(KVM + 1), s(S_DBG, 4))
    k("s_waitcnt vmcnt(0)")
    k("v_readfirstlane_b32 s44, %s", v(KVM))
    k("s_add_u32 s%d, s%d, 1", sCNT, sCNT)
    k("s_cmp_lt_u32 s%d, s%d", sCNT, S_LIM)
    k("s_cbranch_scc1 %s", lp)
    k("s_mov_b32 s%d, 0", S_LIM)
    k.L(ok)
    k("s_waitcnt vmcnt(0)")
    for i in range(8): k("v_mov_b32 %s, %s", v(VT + i), v(VTN + i))
    k("s_waitcnt lgkmcnt(0)")
    stamp(k, 2, 2, wgreg=S_HEAD, vt=56)
    if k.copt.get('dst'): k("s_memrealtime s[96:97]"); k("s_waitcnt lgkmcnt(0)")
    stamp(k, 2, 4, wgreg=S_HEAD, vt=56, cyc=True)
    tick_init(k)
    if k.copt.get('plog2'):
        k("s_lshl_b32 s100, s%d, 2", S_HEAD)
        k("s_add_u32 s100, s100, s%d", S_WAVE)
        k("s_lshl_b32 s100, s100, 9")
        k("s_add_u32 s100, s100, 0x%x", TS + 8 * 65536)
    k("s_mov_b32 m0, s%d", sKTD)
    k("v_mov_b32 v1, 0")
    lslow = k.lab("CHslow"); ldone = k.lab("CHdone")
    k("s_lshr_b32 s44, s44, 16")
    k("s_cmp_lg_u32 s44, %d", 0 if not force_slow else 77)
    k("s_cbranch_scc1 %s", lslow)
    n0 = len(k.lines)
    k.L(lwarm)
    chain_loop(k, "", "F")
    k.L(lwend)
    o = getattr(k, 'copt', {})
    if o.get('free'):
        body = k.lines[n0:]; out = []
        for l in body:
            ls = l.strip()
            if 's100' in ls: out.append(l); continue
            if ls.startswith('s_cbranch_vccnz'): continue
            if ls.startswith('s_cbranch_vccz Fs0v'): l = l.replace('s_cbranch_vccz', 's_branch')
            if ls.startswith('s_cbranch_scc1 Frsm'): continue
            if 'novmem' in o['free'] and (ls.startswith('buffer_') or 'vmcnt' in ls): continue
            if 'nowait' in o['free'] and 'vmcnt' in ls: continue
            out.append(l)
        k.lines[n0:] = out
    k("s_branch %s", ldone)
    k.L(lslow)
    chain_loop(k, "sc1", "S")
    k.L(ldone)
    if k.copt.get('plog'):
        k("s_lshl_b32 s100, s%d, 2", S_HEAD)
        k("s_add_u32 s100, s100, s%d", S_WAVE)
        k("s_lshl_b32 s100, s100, 8")
        k("s_add_u32 s100, s100, 0x%x", TS + 8 * 65536)
        k("v_lshrrev_b32 v40, 2, %s", v(aL16))
        k("buffer_store_dword v1, v40, %s, s100 offen", s(S_WS, 4))
    tick_dump(k)
    k("s_waitcnt vmcnt(0)")
    stamp(k, 2, 3, wgreg=S_HEAD, vt=56)
    dstamp(k, 7, 56); dstamp(k, 5, 56, False, 94); dstamp(k, 6, 56, False, 96); dstamp(k, 3, 56, True, 98)
    stamp(k, 2, 5, wgreg=S_HEAD, vt=56, cyc=True)
```

```python
from asmlib import *
NAME = "sequential_preLN__memory_aug_recurrent_mem_tr__glu_gated_swiglu__prompt"
XN    = 0x0000000
QIMG  = 0x0200000
KIMG  = 0x1200000
VIMG  = 0x2200000
KM    = 0x3220000
VM    = 0x3A00000
PART  = 0x4000000
HIMG  = 0x6000000
HNIMG = 0x6200000
ACT   = 0x6400000
HOP1  = 0x7000000
HOP2  = 0x7100000
FLAGS = 0x7200000
WS_BYTES = 268435456
KA = dict(x=0, mem0=8, Wq=16, Wk=24, Wv=32, Wo=40, w1=64, w3=72, w2=80, out=88, dbg=96, ws=104)
SZ = dict(x=2097152, mem0=8192, Wq=4194304, Wk=4194304, Wv=4194304, Wo=4194304, w1=512*1376*2, w3=512*1376*2,
          w2=1376*512*2, out=2097152, dbg=256, ws=WS_BYTES)

def load_srd(k, name, sreg):
    k("s_load_dwordx2 %s, s[0:1], %d", s(sreg, 2), KA[name])
def fin_srd(k, name, sreg):
    k("s_and_b32 %s, %s, 0xffff", s(sreg + 1), s(sreg + 1))
    k("s_mov_b32 %s, 0x%x", s(sreg + 2), SZ[name])
    k("s_mov_b32 %s, 0x20000", s(sreg + 3))

def kernel_header(k, name):
    k(".globl %s", name)
    k(".p2align 8")
    k(".type %s,@function", name)
    k.L(name)

def kernel_desc(name, vgpr=512, accum=256, sgpr=102):
    return """.amdhsa_kernel %s
  .amdhsa_next_free_vgpr %d
  .amdhsa_next_free_sgpr %d
  .amdhsa_accum_offset %d
  .amdhsa_group_segment_fixed_size 0
  .amdhsa_kernarg_size 112
  .amdhsa_user_sgpr_count 2
  .amdhsa_user_sgpr_kernarg_segment_ptr 1
  .amdhsa_system_sgpr_workgroup_id_x 1
  .amdhsa_float_denorm_mode_32 3
  .amdhsa_float_denorm_mode_16_64 3
.end_amdhsa_kernel
""" % (name, vgpr, sgpr, accum)

def row16_allreduce_add(k, r, tmp=None):
    for sh in (1, 2, 4, 8):
        k("v_add_f32_dpp %s, %s, %s row_ror:%d row_mask:0xf bank_mask:0xf", v(r), v(r), v(r), sh)

def round_bf16(k, dst, src):
    k("v_cvt_pk_bf16_f32 %s, %s, %s", v(dst), v(src), v(src))
    k("v_lshlrev_b32 %s, 16, %s", v(dst), v(dst))

TS = 0x7800000
def stamp(k, slot, idx, S_WS=8, wgreg=2, vt=2, st=60, cyc=False):
    if not getattr(k, 'stamps', False): return
    l = k.lab("ST")
    k("s_cmp_lg_u32 s4, 0")
    k("s_cbranch_scc1 %s", l)
    k("%s %s", "s_memtime" if cyc else "s_memrealtime", s(st, 2))
    k("s_lshl_b32 %s, s%d, 7", s(st + 2), wgreg)
    k("s_add_u32 %s, %s, 0x%x", s(st + 2), s(st + 2), TS + slot * 65536 + idx * 8)
    k("v_mov_b32 %s, 0", v(vt + 2))
    k("s_waitcnt lgkmcnt(0)")
    k("v_mov_b32 %s, %s", v(vt), s(st))
    k("v_mov_b32 %s, %s", v(vt + 1), s(st + 1))
    k("buffer_store_dwordx2 %s, %s, %s, %s offen", v(vt, 2), v(vt + 2), s(S_WS, 4), s(st + 2))
    if not (slot == 2 and idx in (1, 2, 4)): k("s_waitcnt vmcnt(0)")
    k.L(l)

F_XN = 0x000; F_QF = 0x100; F_KF = 0x2000; F_BF = 0x6000; F_RF = 0x9000; F_UF = 0xC000
DBG_READY = 224

def lstamp(k, idx):
    if getattr(k, 'stamps', False) or (getattr(k, 'copt', {}).get('dst') and idx in (0, 1)): k("s_memrealtime s[%d:%d]", 76 + 2 * idx, 77 + 2 * idx)
def lstamp_dump(k, wgreg):
    if not getattr(k, 'stamps', False): return
    l = k.lab("LS")
    k("s_cmp_lg_u32 s4, 0")
    k("s_cbranch_scc1 %s", l)
    k("s_waitcnt lgkmcnt(0)")
    k("s_lshl_b32 s62, s%d, 7", wgreg)
    k("s_add_u32 s62, s62, 0x%x", TS + 4 * 65536)
    k("v_mov_b32 v122, 0")
    for i in range(8):
        k("v_mov_b32 v120, s%d", 76 + 2 * i); k("v_mov_b32 v121, s%d", 77 + 2 * i)
        k("buffer_store_dwordx2 v[120:121], v122, s[8:11], s62 offen offset:%d", 8 * i)
    k.L(l)
DBG_T = 228

def dstamp(k, word, vt, neg=False, sreg=None):
    if not getattr(k, 'copt', {}).get('dst'): return
    l = k.lab("DS")
    k("s_cmp_lg_u32 s4, 0")
    k("s_cbranch_scc1 %s", l)
    if sreg is None:
        k("s_memrealtime s[60:61]")
        k("s_waitcnt lgkmcnt(0)")
        sreg = 60
    k("s_and_b32 s62, s%d, 0xffffff", sreg)
    if neg: k("s_xor_b32 s62, s62, 0xffffff")
    k("v_mov_b32 %s, s62", v(vt)); k("v_mov_b32 %s, 0", v(vt + 1))
    k("s_mov_b64 exec, 1")
    k("buffer_atomic_umax %s, %s, s[24:27], 0 offen offset:%d sc1", v(vt), v(vt + 1), 4 * word)
    k("s_mov_b64 exec, -1")
    k.L(l)
```

```python
from roles import *
from chain import xmax
import struct
def f2u(x): return struct.unpack('<I', struct.pack('<f', x))[0]
CSC = 0.08838834764831845 * 1.4426950408889634
def MF(d, A, B, first): return "v_mfma_f32_16x16x32_bf16 %s, %s, %s, %s" % (v(d, 4), u(A, 4), u(B, 4), "0" if first else v(d, 4))
def M16(d, A, B): return "v_mfma_f32_16x16x16_bf16 %s, %s, %s, %s" % (v(d, 4), v(A, 2), v(B, 2), v(d, 4))
def CV(d, a_, b_): return "v_cvt_pk_bf16_f32 %s, %s, %s" % (v(d), v(a_), v(b_))

def xsum(k, r, tmp):
    k("v_mov_b32 %s, %s", v(tmp), v(r))
    k("v_permlane32_swap_b32 %s, %s", v(r), v(tmp))
    k("v_add_f32 %s, %s, %s", v(r), v(r), v(tmp))
    k("v_mov_b32 %s, %s", v(tmp), v(r))
    k("v_permlane16_swap_b32 %s, %s", v(r), v(tmp))
    k("v_add_f32 %s, %s, %s", v(r), v(r), v(tmp))

def last_seg(k, dst, s_seg):
    k("s_add_u32 s%d, s%d, 60", dst, s_seg)
    k("s_cmp_eq_u32 s%d, 0", s_seg)
    k("s_cselect_b32 s%d, 63, s%d", dst, dst)

def role_bc(k, s_idx, s_seg, nstride, wait_qkv=None, wait_kvm=None, publish=None, hint=None):
    k.c("---- BC role")
    W = s(S_WS, 4); WREG = 256
    load_srd(k, 'Wo', S_W)
    k("s_lshr_b32 s32, s%d, 2", s_idx)
    k("s_and_b32 s33, s%d, 3", s_idx)
    k("s_lshl_b32 s36, s32, 19")
    k("s_lshl_b32 s37, s33, 8")
    k("s_add_u32 s36, s36, s37")
    k("s_waitcnt lgkmcnt(0)")
    fin_srd(k, 'Wo', S_W)
    stage_rows256(k, S_W, 36, 1024, 512, 8)
    frag_addr256(k, 10, 12)
    k("s_waitcnt vmcnt(0)")
    k("s_barrier")
    read_frags256(k, 10, WREG)
    k("s_barrier")
    QF, KF, VF, KV, XK = 16, 48, 80, 112, 128
    T, TM, P, PM, OT, FW, ACC = 144, 156, 164, 172, 180, 192, 180
    aL16, aXW, aXR, aOW, aOR = 4, 5, 6, 7, 8
    k("v_lshlrev_b32 v4, 4, v1")
    k("v_and_b32 v10, 15, v1")
    k("v_lshrrev_b32 v11, 4, v1")
    k("v_bfe_u32 v12, v1, 2, 2")
    k("v_and_b32 v13, 3, v1")
    k("s_mul_i32 s38, s%d, 5120", S_WAVE)
    k("s_add_u32 s38, s38, 65536")
    k("v_mul_u32_u24 v14, 320, v11")
    k("v_lshl_add_u32 v14, v10, 3, v14")
    k("v_add_u32 v%d, s38, v14", aXW)
    k("v_mul_u32_u24 v14, 320, v13")
    k("v_lshrrev_b32 v15, 2, v1")
    k("v_lshl_add_u32 v14, v15, 3, v14")
    k("v_add_u32 v%d, s38, v14", aXR)
    k("s_lshl_b32 s38, s%d, 12", S_WAVE)
    k("v_add_u32 v%d, s38, v4", aOW)
    k("v_mov_b32 v%d, v4", aOR)
    k("v_lshlrev_b32 v14, 2, v11")
    for j in range(4):
        k("v_add_u32 v15, %d, v14", j)
        k("v_cmp_gt_u32 %s, v15, v10", s(64 + 2 * j, 2))
    k("v_mov_b32 v9, 0xff800000")
    k("s_mov_b32 s41, 0x%x", f2u(CSC))
    k("s_lshl_b32 s34, s32, 2")
    k("s_add_u32 s34, s34, s%d", S_WAVE)
    k("s_lshl_b32 s35, s34, 13")
    k("s_lshl_b32 s39, s34, 12")
    k("s_lshl_b32 s40, s33, 2")
    k("s_add_u32 s40, s40, s%d", S_WAVE)
    k("s_lshl_b32 s40, s40, 8")
    k("s_lshl_b32 s38, s32, 13")
    k("s_add_u32 s40, s40, s38")
    k("s_add_u32 s40, s40, 0x%x", PART)
    k("v_lshlrev_b32 v184, 16, v12")
    k("v_lshl_add_u32 v184, v11, 6, v184")
    k("v_lshl_add_u32 v184, v13, 4, v184")
    k("v_add_u32 v185, 4096, v184")
    def load_qkv(sseg):
        k("s_lshl_b32 s45, s%d, 18", sseg)
        k("s_add_u32 s45, s45, s35")
        for base, R in ((QIMG, QF), (KIMG, KF), (VIMG, VF)):
            for hf in range(2):
                k("s_add_u32 s43, s45, 0x%x", base + hf * 4096)
                for i in range(4):
                    k("buffer_load_dwordx4 %s, v4, %s, s43 offen offset:%d %s", a(128 + R - QF + 16 * hf + 4 * i, 4), W, i * 1024, LD)
    if hint:
        last_seg(k, 42, s_seg)
        k("s_lshl_b32 s42, s42, 19")
        k("s_add_u32 s42, s42, s40")
        k("s_add_u32 s43, s42, 0x40000")
        for i in range(4): k("v_mov_b32 v%d, -1", 188 + i)
        for n in range(k.narm):
            for sr in (42, 43):
                for t in range(2): k("buffer_store_dwordx4 v[188:191], v%d, %s, s%d offen %s", 184 + t, W, sr, ST)
                k("s_sub_u32 s%d, s%d, 0x%x", sr, sr, 3 << 19)
    if wait_qkv: wait_qkv(k, s_seg)
    load_qkv(s_seg)
    lp = k.lab("BCl")
    k.L(lp)
    k("s_waitcnt vmcnt(0)")
    for i in range(96): k("v_accvgpr_read_b32 v%d, a%d", QF + i, 128 + i)
    for kb in range(4):
        k(MF(T, KF + 4 * kb, QF + 4 * kb, kb == 0))
        k(MF(T + 4, KF + 4 * kb, QF + 16 + 4 * kb, kb == 0))
        k(MF(T + 8, KF + 16 + 4 * kb, QF + 16 + 4 * kb, kb == 0))
    for j in range(4):
        k("v_cndmask_b32 %s, %s, v9, %s", v(T + j), v(T + j), s(64 + 2 * j, 2))
        k("v_cndmask_b32 %s, %s, v9, %s", v(T + 8 + j), v(T + 8 + j), s(64 + 2 * j, 2))
    MX, SM, TMP, M2, S2 = 10, 12, 14, 180, 182
    vals = [[T + j for j in range(4)], [T + 4 + j for j in range(8)]]
    for mt in range(2):
        vs = vals[mt]
        k("v_max_f32 %s, %s, %s", v(MX + mt), v(vs[0]), v(vs[1]))
        for i in range(2, len(vs), 2):
            k("v_max3_f32 %s, %s, %s, %s", v(MX + mt), v(vs[i]), v(vs[i + 1]), v(MX + mt))
    for mt in range(2): xmax(k, MX + mt, TMP + mt)
    for mt in range(2):
        k("v_mul_f32 %s, s41, %s", v(MX + mt), v(MX + mt))
        for r in vals[mt]: k("v_fma_f32 %s, %s, s41, -%s", v(r), v(r), v(MX + mt))
        for r in vals[mt]: k("v_exp_f32 %s, %s", v(r), v(r))
    for mt in range(2):
        vs = vals[mt]
        k("v_add_f32 %s, %s, %s", v(SM + mt), v(vs[0]), v(vs[1]))
        for r in vs[2:]: k("v_add_f32 %s, %s, %s", v(SM + mt), v(SM + mt), v(r))
    k("v_mov_b32 %s, 0", v(P + 2)); k("v_mov_b32 %s, 0", v(P + 3))
    for mt in range(2):
        k("v_mov_b32 %s, 0", v(PM + 4 * mt + 1)); k("v_mov_b32 %s, 0", v(PM + 4 * mt + 2))
    k("s_lshl_b32 s42, s%d, 17", s_seg)
    k("s_add_u32 s42, s42, s39")
    k("s_add_u32 s42, s42, 0x%x", KM)
    lstamp(k, 0)
    lpk = k.lab("BCk"); okk = k.lab("BCko")
    k("s_mov_b32 s59, 0")
    k.L(lpk)
    for i in range(4):
        k("buffer_load_dwordx4 %s, v4, %s, s42 offen offset:%d %s", v(KV + 4 * i, 4), W, i * 1024, LD)
    k("s_waitcnt vmcnt(0)")
    k("v_max3_u32 v2, %s, %s, %s", v(KV), v(KV + 4), v(KV + 8))
    k("v_max_u32 v2, v2, %s", v(KV + 12))
    k("v_cmp_eq_u32 vcc, -1, v2")
    k("s_cbranch_vccz %s", okk)
    k("s_sleep %d", getattr(k, 'copt', {}).get('slpk', 2))
    k("s_add_u32 s59, s59, 1")
    k("s_cmp_lt_u32 s59, s%d", S_SPIN)
    k("s_cbranch_scc1 %s", lpk)
    k("s_mov_b32 s%d, 0", S_SPIN)
    k.L(okk)
    lstamp(k, 1)
    lnw = k.lab("BCnw")
    k("s_add_u32 s44, s%d, %d", s_seg, nstride)
    k("s_cmp_ge_u32 s44, 64")
    k("s_cbranch_scc1 %s", lnw)
    if wait_qkv: wait_qkv(k, 44)
    load_qkv(44)
    k.L(lnw)
    k(".aw_on")
    for i in range(4):
        k("ds_write_b32 v%d, %s offset:%d", aXW, v(KV + 4 * i), i * 1280)
        k("ds_write_b32 v%d, %s offset:%d", aXW, v(KV + 4 * i + 1), i * 1280 + 128)
        for y in range(2):
            k("ds_read_b64_tr_b16 %s, v%d offset:%d", v(XK + 4 * i + 2 * y, 2), aXR, i * 1280 + y * 128)
    lstamp(k, 2)
    for kb in range(4):
        k(MF(TM, XK + 4 * kb, QF + 4 * kb, kb == 0))
        k(MF(TM + 4, XK + 4 * kb, QF + 16 + 4 * kb, kb == 0))
    for mt in range(2):
        k("v_mul_f32 %s, s41, %s", v(TM + 4 * mt), v(TM + 4 * mt))
        k("v_mul_f32 %s, s41, %s", v(TM + 4 * mt + 1), v(TM + 4 * mt + 1))
        k("v_max3_f32 %s, %s, %s, %s", v(M2 + mt), v(TM + 4 * mt), v(TM + 4 * mt + 1), v(MX + mt))
    def x2(op, r, tmp):
        for sw in ("v_permlane32_swap_b32", "v_permlane16_swap_b32"):
            for mt in range(2): k("v_mov_b32 %s, %s", v(tmp + mt), v(r + mt))
            for mt in range(2): k("%s %s, %s", sw, v(r + mt), v(tmp + mt))
            for mt in range(2): k("%s %s, %s, %s", op, v(r + mt), v(r + mt), v(tmp + mt))
    x2("v_max_f32", M2, TMP)
    for mt in range(2):
        k("v_sub_f32 %s, %s, %s", v(MX + mt), v(MX + mt), v(M2 + mt))
        k("v_sub_f32 %s, %s, %s", v(TM + 4 * mt), v(TM + 4 * mt), v(M2 + mt))
        k("v_sub_f32 %s, %s, %s", v(TM + 4 * mt + 1), v(TM + 4 * mt + 1), v(M2 + mt))
    for mt in range(2):
        for r in (MX + mt, TM + 4 * mt, TM + 4 * mt + 1): k("v_exp_f32 %s, %s", v(r), v(r))
    for mt in range(2):
        k("v_fma_f32 %s, %s, %s, %s", v(SM + mt), v(SM + mt), v(MX + mt), v(TM + 4 * mt))
        k("v_add_f32 %s, %s, %s", v(SM + mt), v(SM + mt), v(TM + 4 * mt + 1))
    x2("v_add_f32", SM, TMP)
    for mt in range(2): k("v_rcp_f32 %s, %s", v(SM + mt), v(SM + mt))
    for mt in range(2):
        k("v_mul_f32 %s, %s, %s", v(MX + mt), v(MX + mt), v(SM + mt))
        k("v_mul_f32 %s, %s, %s", v(TM + 4 * mt), v(TM + 4 * mt), v(SM + mt))
        k("v_mul_f32 %s, %s, %s", v(TM + 4 * mt + 1), v(TM + 4 * mt + 1), v(SM + mt))
    for mt in range(2):
        for r in vals[mt]: k("v_mul_f32 %s, %s, %s", v(r), v(r), v(MX + mt))
    k(CV(P, T, T + 1)); k(CV(P + 1, T + 2, T + 3))
    for i in range(4): k(CV(P + 4 + i, T + 4 + 2 * i, T + 5 + 2 * i))
    for mt in range(2):
        k(CV(PM + 4 * mt, TM + 4 * mt, TM + 4 * mt + 1)); k(CV(PM + 4 * mt + 3, TM + 4 * mt, TM + 4 * mt + 1))
    O = lambda wp, mt, t: FW + ((wp * 2 + mt) * 2 + t) * 4
    def pack(wp):
        out = []
        for mt in range(2):
            o0 = O(wp, mt, 0)
            out += [CV(o0 + i, o0 + 2 * i, o0 + 2 * i + 1) for i in range(4)]
            out += ["ds_write_b128 v%d, %s offset:%d" % (aOW, v(o0, 4), mt * 16384 + wp * 1024)]
        return out
    pend = []
    for wp in range(4):
        ms = [MF(O(wp, mt, t), VF + 4 * (2 * wp + t), P + 4 * mt, True) for mt in range(2) for t in range(2)] + \
             [M16(O(wp, mt, t), KV + 4 * wp + 2, PM + 4 * mt + 2 * t) for mt in range(2) for t in range(2)]
        for mi, m_ in enumerate(ms):
            k(m_)
            if mi >= 2:
                for _ in range(2):
                    if pend: k(pend.pop(0))
        pend = pack(wp)
    for x in pend: k(x)
    k(".aw_writes")
    k("s_barrier")
    lstamp(k, 3)
    PF = 8
    AC = T
    for f in range(PF): k("ds_read_b128 %s, v%d offset:%d", v(FW + 4 * (f % 16), 4), aOR, f * 1024)
    for f in range(32):
        mt, ks = f // 16, f % 16
        if f + PF < 32: k("ds_read_b128 %s, v%d offset:%d", v(FW + 4 * ((f + PF) % 16), 4), aOR, (f + PF) * 1024)
        for t in range(2): k(MF(AC + (mt * 2 + t) * 4, WREG + (t * 16 + ks) * 4, FW + 4 * (f % 16), ks == 0))
        if hint and f == k.copt.get('hbc', 99): hint(k, s_seg)
        if f == 20:
            k("s_lshl_b32 s42, s%d, 19", s_seg)
            k("s_add_u32 s42, s42, s40")
            for t in range(2): k("buffer_store_dwordx4 %s, v%d, %s, s42 offen %s", v(AC + 4 * t, 4), 184 + t, W, ST)
    k(".aw_off")
    k("s_add_u32 s42, s42, 0x40000")
    for t in range(2): k("buffer_store_dwordx4 %s, v%d, %s, s42 offen %s", v(AC + 8 + 4 * t, 4), 184 + t, W, ST)
    k("v_xor_b32 v%d, 0x8000, v%d", aOW, aOW)
    k("v_xor_b32 v%d, 0x8000, v%d", aOR, aOR)
    lstamp(k, 4)
    if hint: hint(k, s_seg, True)
    if publish: publish(k, s_seg)
    lstamp(k, 5)
    k("s_add_u32 s%d, s%d, %d", s_seg, s_seg, nstride)
    k("s_cmp_lt_u32 s%d, 64", s_seg)
    k("s_cbranch_scc1 %s", lp)

def role_red(k, s_tq, s_seg, nstride, wait=None, publish=None, hint=None, wait_final=None):
    k.c("---- R role")
    W = s(S_WS, 4)
    k("v_and_b32 v10, 3, v1")
    k("v_bfe_u32 v11, v1, 2, 2")
    k("v_lshrrev_b32 v12, 4, v1")
    k("s_lshl_b32 s32, s%d, 2", S_WAVE)
    k("v_add_u32 v12, s32, v12")
    k("s_and_b32 s33, s%d, 3", s_tq)
    k("s_lshl_b32 s33, s33, 2")
    k("v_add_u32 v13, s33, v10")
    k("v_lshl_add_u32 v14, v11, 4, v13")
    k("v_lshlrev_b32 v14, 4, v14")
    k("v_lshlrev_b32 v4, 4, v0")
    k("v_add_u32 v9, 4096, v4")
    k("v_lshl_add_u32 v5, v12, 10, v14")
    k("v_lshlrev_b32 v6, 10, v13")
    k("v_lshl_add_u32 v6, v12, 6, v6")
    k("v_lshl_add_u32 v6, v11, 4, v6")
    k("s_lshr_b32 s34, s%d, 2", s_tq)
    k("s_lshl_b32 s35, s%d, 16", s_tq)
    k("s_add_u32 s35, s35, 0x%x", PART)
    k("s_lshl_b32 s36, s34, 14")
    k("s_lshl_b32 s37, s%d, 5", S_WAVE)
    k("v_lshlrev_b32 v8, 3, v10")
    k("v_add_u32 v7, s37, v8")
    if hint:
        last_seg(k, 39, s_seg)
        k("s_lshl_b32 s39, s39, 15")
        k("s_add_u32 s39, s39, s36")
        for i in range(4): k("v_mov_b32 v%d, -1", 16 + i)
        for n in range(k.narm):
            for base in (HIMG, HNIMG):
                k("s_add_u32 s38, s39, 0x%x", base - n * (3 << 15))
                k("buffer_store_dwordx4 v[16:19], v5, %s, s38 offen %s", W, ST)
        k("s_waitcnt vmcnt(0)")
    lp = k.lab("Rl"); lre = k.lab("Rre"); lfb = k.lab("Rfb"); lgo = k.lab("Rgo"); lend = k.lab("Rend")
    k.L(lp)
    k("s_mov_b32 s73, %d", 64 - 3 * k.narm)
    k("s_lshl_b32 s39, s%d, 15", s_seg)
    k("s_add_u32 s39, s39, s36")
    k("buffer_load_dwordx4 v[16:19], v6, %s, s39 offen", s(S_X, 4))
    lstamp(k, 0)
    if wait: wait(k, s_seg)
    lstamp(k, 1)
    k.L(lre)
    k("s_lshl_b32 s38, s%d, 19", s_seg)
    k("s_add_u32 s38, s38, s35")
    PB = 32
    for hg in range(8):
        for t in range(2):
            k("buffer_load_dwordx4 %s, v%d, %s, s38 offen %s", v(PB + 8 * hg + 4 * t, 4), 9 if t else 4, W, LD)
        if hg < 7: k("s_add_u32 s38, s38, 8192")
    X = 20
    k("s_waitcnt vmcnt(16)")
    for j in range(4):
        k("v_lshlrev_b32 %s, 16, %s", v(X + 2 * j), v(16 + j))
        k("v_and_b32 %s, 0xffff0000, %s", v(X + 2 * j + 1), v(16 + j))
    for hg in range(1, 8):
        k("s_waitcnt vmcnt(%d)", 14 - 2 * hg)
        for i in range(8): k("v_add_f32 %s, %s, %s", v(PB + i), v(PB + i), v(PB + 8 * hg + i))
    lstamp(k, 2)
    if hint:
        k("v_cmp_u_f32 vcc, %s, %s", v(PB), v(PB + 4))
        k("s_cbranch_vccnz %s", lfb)
        k.L(lgo)
    H = 40
    for i in range(0, 8, 2):
        k(CV(28, PB + i, PB + i + 1))
        k("v_lshlrev_b32 v29, 16, v28")
        k("v_and_b32 v28, 0xffff0000, v28")
        k("v_add_f32 %s, %s, v29", v(X + i), v(X + i))
        k("v_add_f32 %s, %s, v28", v(X + i + 1), v(X + i + 1))
        k(CV(H + i // 2, X + i, X + i + 1))
        k("v_lshlrev_b32 %s, 16, %s", v(X + i), v(H + i // 2))
        k("v_and_b32 %s, 0xffff0000, %s", v(X + i + 1), v(H + i // 2))
    k("s_add_u32 s38, s39, 0x%x", HIMG)
    k("buffer_store_dwordx4 %s, v5, %s, s38 offen %s", v(H, 4), W, ST)
    def red16(r, tmp):
        for sh in (4, 8): k("v_add_f32_dpp %s, %s, %s row_ror:%d row_mask:0xf bank_mask:0xf", v(r), v(r), v(r), sh)
        xsum(k, r, tmp)
    k("v_add_f32 v44, %s, %s", v(X), v(X + 1))
    for i in range(2, 8): k("v_add_f32 v44, v44, %s", v(X + i))
    red16(44, 46)
    k("v_mul_f32 v44, 0x3c000000, v44")
    k("v_mov_b32 v45, 0")
    for i in range(8):
        k("v_sub_f32 v46, %s, v44", v(X + i))
        k("v_fmac_f32 v45, v46, v46")
    red16(45, 46)
    if hint and k.copt.get('hr2', 0): hint(k, s_seg)
    k("ds_write_b64 v7, v[44:45]")
    k("s_waitcnt lgkmcnt(0)")
    k("s_barrier")
    for w in range(4): k("ds_read_b64 %s, v8 offset:%d", v(48 + 2 * w, 2), 32 * w)
    k("v_xor_b32 v7, 128, v7")
    k("v_xor_b32 v8, 128, v8")
    k("s_waitcnt lgkmcnt(0)")
    k("v_add_f32 v44, v48, v50"); k("v_add_f32 v46, v52, v54"); k("v_add_f32 v44, v44, v46")
    k("v_mul_f32 v44, 0.25, v44")
    k("v_add_f32 v45, v49, v51"); k("v_add_f32 v46, v53, v55"); k("v_add_f32 v45, v45, v46")
    k("v_mov_b32 v47, 0")
    for w in range(4):
        k("v_sub_f32 v46, %s, v44", v(48 + 2 * w))
        k("v_fmac_f32 v47, v46, v46")
    k("v_mul_f32 v47, 0x43000000, v47")
    k("v_add_f32 v45, v45, v47")
    k("v_mul_f32 v45, 0x3b000000, v45")
    if hint and k.copt.get('hr', 0): hint(k, s_seg)
    ln_finish(k, X, 8, 44, 45, 46, 47, 56)
    k("s_add_u32 s38, s39, 0x%x", HNIMG)
    k("buffer_store_dwordx4 v[56:59], v5, %s, s38 offen %s", W, ST)
    lstamp(k, 4)
    if hint: hint(k, s_seg, True)
    if publish: publish(k, s_seg)
    lstamp(k, 5)
    k("s_add_u32 s%d, s%d, %d", s_seg, s_seg, nstride)
    k("s_cmp_lt_u32 s%d, 64", s_seg)
    k("s_cbranch_scc1 %s", lp)
    if hint:
        k("s_branch %s", lend)
        k.L(lfb)
        k("s_cmp_lt_u32 s%d, s73", s_seg)
        k("s_cbranch_scc1 %s", lgo)
        k("s_mov_b32 s73, 64")
        wait_final(k, s_seg)
        k("s_branch %s", lre)
        k.L(lend)

def role_up(k, s_u, s_seg, nstride, niter_sreg, pre_dma=None, publish=None, wait=None, hint=None, wait_final=None):
    k.c("---- U role")
    W = s(S_WS, 4); WREG = 128
    load_srd(k, 'w1', S_W); load_srd(k, 'w3', S_X)
    k("v_lshrrev_b32 v8, 3, v1")
    k("s_mov_b32 s32, 2752")
    k("v_mul_lo_u32 v8, v8, s32")
    k("v_and_b32 v9, 7, v1")
    k("v_lshl_add_u32 v8, v9, 4, v8")
    k("s_lshl_b32 s33, s%d, 7", s_u)
    k("s_mul_i32 s34, s%d, %d", S_WAVE, 8 * 2752)
    k("s_add_u32 s33, s33, s34")
    k("v_add_u32 v8, s33, v8")
    k("s_lshl_b32 s35, s%d, 10", S_WAVE)
    k("s_waitcnt lgkmcnt(0)")
    fin_srd(k, 'w1', S_W); fin_srd(k, 'w3', S_X)
    for i in range(16):
        k("s_add_u32 m0, s35, %d", i * 4096)
        k("buffer_load_dwordx4 v8, %s, 0 offen lds", s(S_W, 4))
        k("s_add_u32 m0, s35, %d", 65536 + i * 4096)
        k("buffer_load_dwordx4 v8, %s, 0 offen lds", s(S_X, 4))
        if i < 15: k("v_add_u32 v8, %d, v8", 32 * 2752)
    WREG = 256
    k("v_lshrrev_b32 v10, 4, v1")
    k("v_bfe_u32 v12, v1, 2, 2")
    k("v_lshl_add_u32 v10, v10, 3, v12")
    k("v_lshlrev_b32 v10, 7, v10")
    k("v_and_b32 v12, 3, v1")
    k("v_lshl_add_u32 v10, v12, 4, v10")
    k("s_lshr_b32 s36, s%d, 1", S_WAVE)
    k("s_lshl_b32 s37, s36, 6")
    k("v_add_u32 v10, s37, v10")
    k("v_add_u32 v11, 0x10000, v10")
    k("s_waitcnt vmcnt(0)")
    k("s_barrier")
    for ks in range(16):
        for m in range(2):
            for hf in range(2):
                for y in range(2):
                    k("ds_read_b64_tr_b16 %s, v%d offset:%d", u(WREG + ((m * 2 + hf) * 16 + ks) * 4 + 2 * y, 2), 10 + m, ks * 4096 + y * 512 + 8 * hf)
        k("s_waitcnt lgkmcnt(4)")
    k("s_waitcnt lgkmcnt(0)")
    k("s_barrier")
    k("s_and_b32 s37, s%d, 1", S_WAVE)
    k("s_lshl_b32 s39, s%d, 1", s_u)
    k("s_add_u32 s39, s39, s36")
    k("v_lshlrev_b32 v4, 4, v1")
    k("s_cmp_lt_u32 s39, 43")
    k("s_cselect_b32 s40, 0, 0x40000000")
    k("v_add_u32 v12, s40, v4")
    k("s_lshl_b32 s39, s39, 10")
    k("s_mul_i32 s40, s%d, 88064", s_seg)
    k("s_add_u32 s39, s39, s40")
    k("s_mul_i32 s40, s37, 44032")
    k("s_add_u32 s39, s39, s40")
    k("s_add_u32 s39, s39, 0x%x", ACT)
    k("s_lshl_b32 s38, s%d, 15", s_seg)
    k("s_add_u32 s38, s38, 0x%x", HNIMG)
    k("s_mov_b32 s41, 0xbfb8aa3b")
    k("s_lshl_b32 s40, s37, 14")
    k("v_add_u32 v5, s40, v4")
    k("s_lshl_b32 s48, s36, 10")
    k("s_add_u32 s48, s48, s40")
    k("s_add_u32 s38, s38, s48")
    if hint:
        last_seg(k, 49, s_seg)
        k("s_sub_u32 s49, s49, s%d", s_seg)
        k("s_mul_i32 s49, s49, 88064")
        k("s_add_u32 s49, s49, s39")
        for i in range(4): k("v_mov_b32 v%d, -1", 16 + i)
        for n in range(k.narm):
            k("buffer_store_dwordx4 v[16:19], v12, %s, s49 offen %s", W, ST)
            k("s_sub_u32 s49, s49, %d", 3 * 88064)
        k("s_waitcnt vmcnt(0)")
    lp = k.lab("Ul"); lfb = k.lab("Ufb"); lgo = k.lab("Ugo"); lend = k.lab("Uend")
    k.L(lp)
    lstamp(k, 0)
    if wait: wait(k, s_seg)
    lstamp(k, 1)
    for i in range(8):
        k("s_add_u32 m0, s48, %d", i * 2048)
        k("s_add_u32 s49, s38, %d", i * 2048)
        k("buffer_load_dwordx4 v4, %s, s49 offen %s lds", W, LD)
    FW = 16; AC = 80
    k(".aw_on")
    for half in range(2):
        k("s_waitcnt vmcnt(%d)", 4 - 4 * half)
        k("s_barrier")
        lstamp(k, 2 + half)
        for f in range(8): k("ds_read_b128 %s, v5 offset:%d", v(FW + 4 * (half * 8 + f), 4), (half * 8 + f) * 1024)

        for f in range(half * 8, half * 8 + 8):
            for q in range(4): k(MF(AC + 4 * q, WREG + (q * 16 + f) * 4, FW + 4 * f, f == 0))
            if hint and f == k.copt.get('hu2', 99): hint(k, s_seg)
    k(".aw_off")
    if hint:
        k("v_cmp_u_f32 vcc, %s, %s", v(AC), v(AC))
        k("s_cbranch_vccnz %s", lfb)
        k.L(lgo)
        if k.copt.get('hu', 0): hint(k, s_seg)
    g0 = AC; u0 = AC + 8; TT = 96
    for r in range(AC, AC + 16, 2):
        k(CV(TT, r, r + 1))
        k("v_lshlrev_b32 %s, 16, %s", v(r), v(TT))
        k("v_and_b32 %s, 0xffff0000, %s", v(r + 1), v(TT))
    for j in range(8): k("v_mul_f32 %s, s41, %s", v(TT + j), v(g0 + j))
    for j in range(8): k("v_exp_f32 %s, %s", v(TT + j), v(TT + j))
    for j in range(8): k("v_add_f32 %s, 1.0, %s", v(TT + j), v(TT + j))
    for j in range(8): k("v_rcp_f32 %s, %s", v(TT + j), v(TT + j))
    for j in range(8): k("v_mul_f32 %s, %s, %s", v(g0 + j), v(g0 + j), v(TT + j))
    for r in range(g0, g0 + 8, 2):
        k(CV(TT, r, r + 1))
        k("v_lshlrev_b32 %s, 16, %s", v(r), v(TT))
        k("v_and_b32 %s, 0xffff0000, %s", v(r + 1), v(TT))
    for j in range(8): k("v_mul_f32 %s, %s, %s", v(g0 + j), v(g0 + j), v(u0 + j))
    for j in range(4): k(CV(TT + j, g0 + 2 * j, g0 + 2 * j + 1))
    k("buffer_store_dwordx4 %s, v12, %s, s39 offen %s", v(TT, 4), W, ST)
    k("s_add_u32 s39, s39, %d", 88064 * nstride)
    k("s_add_u32 s38, s38, %d", 32768 * nstride)
    lstamp(k, 4)
    if hint:
        hint(k, s_seg, True)
        ls_ = k.lab("Uwf")
        k("s_cmp_lt_u32 s%d, %d", s_seg, 64 - 3 * k.narm)
        k("s_cbranch_scc1 %s", ls_)
        wait_final(k, s_seg)
        k.L(ls_)
    if publish: publish(k, s_seg)
    lstamp(k, 5)
    k("s_add_u32 s%d, s%d, %d", s_seg, s_seg, nstride)
    k("s_cmp_lt_u32 s%d, 64", s_seg)
    k("s_cbranch_scc1 %s", lp)
    if hint:
        k("s_branch %s", lend)
        k.L(lfb)
        k("s_cmp_lt_u32 s%d, %d", s_seg, 64 - 3 * k.narm)
        k("s_cbranch_scc1 %s", lgo)
        wait_final(k, s_seg)
        k("s_lshl_b32 s49, s36, 10")
        k("s_sub_u32 s49, s38, s49")
        for f in range(16):
            k("buffer_load_dwordx4 %s, v4, %s, s49 offen offset:%d %s", v(FW + 4 * f, 4), W, (f % 4) * 1024, LD)
            if f % 4 == 3: k("s_add_u32 s49, s49, 4096")
        k("s_waitcnt vmcnt(0)")
        for f in range(16):
            for q in range(4): k(MF(AC + 4 * q, WREG + (q * 16 + f) * 4, FW + 4 * f, f == 0))
        k("s_branch %s", lgo)
        k.L(lend)

def role_dn(k, s_dn, s_seg, nstride, s_mt, wait=None, wait_final=None):
    k.c("---- Dn role")
    W = s(S_WS, 4); WREG = 256
    load_srd(k, 'w2', S_W)
    k("v_lshrrev_b32 v8, 2, v1")
    k("v_lshlrev_b32 v8, 10, v8")
    k("v_and_b32 v9, 3, v1")
    k("v_lshl_add_u32 v8, v9, 4, v8")
    k("s_mul_i32 s32, s%d, %d", S_WAVE, 352 * 1024)
    k("s_lshl_b32 s33, s%d, 6", s_dn)
    k("s_add_u32 s32, s32, s33")
    k("v_add_u32 v8, s32, v8")
    k("s_mul_i32 s35, s%d, 22528", S_WAVE)
    k("s_waitcnt lgkmcnt(0)")
    fin_srd(k, 'w2', S_W)
    for i in range(22):
        k("s_add_u32 m0, s35, %d", i * 1024)
        k("buffer_load_dwordx4 v8, %s, 0 offen lds", s(S_W, 4))
        if i < 21: k("v_add_u32 v8, 16384, v8")
    k("v_lshrrev_b32 v11, 4, v1")
    k("v_bfe_u32 v12, v1, 2, 2")
    k("v_lshl_add_u32 v10, v11, 3, v12")
    k("v_lshlrev_b32 v10, 6, v10")
    k("v_lshl_add_u32 v10, v9, 4, v10")
    k("v_add_u32 v10, s35, v10")
    k("s_waitcnt vmcnt(0)")
    for ks in range(11):
        for t in range(2):
            for y in range(2):
                k("ds_read_b64_tr_b16 %s, v10 offset:%d", u(WREG + (t * 11 + ks) * 4 + 2 * y, 2), ks * 2048 + y * 256 + 8 * t)
        if ks % 3 == 2: k("s_waitcnt lgkmcnt(4)")
    k("s_waitcnt lgkmcnt(0)")
    k("s_barrier")
    k("v_lshlrev_b32 v4, 4, v1")
    k("s_cmp_eq_u32 s%d, 3", S_WAVE)
    k("s_cselect_b32 s36, 0x40000000, 0")
    k("v_add_u32 v5, s36, v4")
    k("s_mul_i32 s36, s%d, 11264", S_WAVE)
    k("s_add_u32 s36, s36, 0x%x", ACT)
    k("s_mul_i32 s37, s%d, 44032", s_mt)
    k("s_add_u32 s36, s36, s37")
    k("s_lshl_b32 s37, s%d, 11", S_WAVE)
    k("v_add_u32 v6, s37, v4")
    k("v_mov_b32 v7, v4")
    k("s_lshl_b32 s39, s%d, 14", s_mt)
    k("s_lshl_b32 s40, s%d, 10", s_dn)
    k("s_add_u32 s40, s40, s39")
    k("s_add_u32 s40, s40, 0x%x", HIMG)
    k("s_add_u32 s39, s39, s33")
    k("v_and_b32 v12, 15, v1")
    k("v_lshlrev_b32 v12, 10, v12")
    k("v_lshl_add_u32 v12, v11, 4, v12")
    AF = 32; AC = 16
    lp = k.lab("Dl"); lsk = k.lab("Dsk"); lre = k.lab("Dre"); lfb = k.lab("Dfb"); lgo = k.lab("Dgo"); lend = k.lab("Dend"); lw3 = k.lab("Dw3")
    k.L(lp)
    k("s_mov_b32 s73, %d", 64 - 3 * k.narm)
    lstamp(k, 0)
    if wait: wait(k, s_seg)
    lstamp(k, 1)
    k.L(lre)
    k("s_mul_i32 s41, s%d, 88064", s_seg)
    k("s_add_u32 s41, s41, s36")
    k("s_lshl_b32 s43, s%d, 15", s_seg)
    k("s_add_u32 s42, s43, s40")
    k("buffer_load_dwordx4 v[120:123], v4, %s, s42 offen %s", W, LD)
    for ks in range(11):
        if ks % 4 == 0: k("s_add_u32 s42, s41, %d", ks * 1024)
        k("buffer_load_dwordx4 %s, v%d, %s, s42 offen offset:%d %s", v(AF + ks * 4, 4), 5 if ks == 10 else 4, W, (ks % 4) * 1024, LD)
    for ks in range(11):
        k("s_waitcnt vmcnt(%d)", 10 - ks)
        for t in range(2): k(MF(AC + t * 4, WREG + (t * 11 + ks) * 4, AF + ks * 4, ks == 0))
        if ks < 4:
            k("v_lshlrev_b32 %s, 16, %s", v(96 + 2 * ks), v(120 + ks))
            k("v_and_b32 %s, 0xffff0000, %s", v(97 + 2 * ks), v(120 + ks))
    lstamp(k, 2)
    if wait_final:
        k("v_cmp_u_f32 vcc, %s, %s", v(AC), v(96))
        k("s_cbranch_vccnz %s", lfb)
        k.L(lgo)
    k("s_cmp_eq_u32 s%d, 3", S_WAVE)
    k("s_cbranch_scc1 %s", lw3)
    for i in range(2): k("ds_write_b128 v6, %s offset:%d", v(AC + 4 * i, 4), i * 1024)
    k("s_waitcnt lgkmcnt(0)")
    k("s_barrier")
    k("s_branch %s", lsk)
    k.L(lw3)
    k("s_barrier")
    for w in range(3):
        for t in range(2): k("ds_read_b128 %s, v7 offset:%d", v(AF + 8 * w + 4 * t, 4), w * 2048 + t * 1024)
    for w in range(3):
        k("s_waitcnt lgkmcnt(%d)", 4 - 2 * w)
        for i in range(0, 8, 2): k("v_pk_add_f32 %s, %s, %s", v(AC + i, 2), v(AC + i, 2), v(AF + 8 * w + i, 2))
    for i in range(0, 8, 2): k(CV(80 + i // 2, AC + i, AC + i + 1))
    for i in range(0, 8, 2):
        k("v_lshlrev_b32 %s, 16, %s", v(AC + i), v(80 + i // 2))
        k("v_and_b32 %s, 0xffff0000, %s", v(AC + i + 1), v(80 + i // 2))
    for i in range(0, 8, 2): k("v_pk_add_f32 %s, %s, %s", v(AC + i, 2), v(AC + i, 2), v(96 + i, 2))
    for i in range(0, 8, 2): k(CV(84 + i // 2, AC + i, AC + i + 1))
    k("s_add_u32 s42, s43, s39")
    k("buffer_store_dwordx4 v[84:87], v12, %s, s42 offen %s", s(S_O, 4), k.copt.get('ost', ''))
    k.L(lsk)
    lstamp(k, 4)
    k("v_xor_b32 v6, 0x4000, v6")
    k("v_xor_b32 v7, 0x4000, v7")
    k("s_add_u32 s%d, s%d, %d", s_seg, s_seg, nstride)
    k("s_cmp_lt_u32 s%d, 64", s_seg)
    k("s_cbranch_scc1 %s", lp)
    if wait_final:
        k("s_branch %s", lend)
        k.L(lfb)
        k("s_cmp_lt_u32 s%d, s73", s_seg)
        k("s_cbranch_scc1 %s", lgo)
        k("s_mov_b32 s73, 64")
        wait_final(k, s_seg)
        k("s_branch %s", lre)
        k.L(lend)
```

```python
import sys, json
from build_v1 import header_comments
from chain12 import *
from roles2 import *
KN = NAME + "_kernel"
def build(opts={}, stamps=False, ticks=False):
    k = K(); k.stamps = stamps; k.ticks = ticks; k.copt = opts; k.merged = True
    kernel_header(k, KN)
    lend = k.lab("END")
    lstamp(k, 6)
    if opts.get('dst'): k("s_memrealtime s[98:99]")
    k("s_cmp_ge_u32 s2, 256")
    k("s_cbranch_scc1 %s", lend)
    load_srd(k, 'ws', S_WS); load_srd(k, 'dbg', S_DBG)
    if opts.get('home'): k("s_xor_b32 s2, s2, %d", opts['home'])
    lane_wave(k)
    k("s_mov_b32 s%d, 400000", S_SPIN)
    ROLE = 5
    k("s_getreg_b32 s54, hwreg(HW_REG_XCC_ID)")
    k("s_and_b32 s54, s54, 7")
    k("s_add_u32 s54, s54, 1")
    k("s_mov_b32 s3, s2")
    k("s_mov_b32 s101, 0")
    lsw = k.lab("SWAP"); lrd = k.lab("ROLED"); lw = k.lab("WORK")
    k("s_or_b32 s44, s2, s%d", S_WAVE)
    k("s_cmp_lg_u32 s44, 0")
    k("s_cbranch_scc1 %s", lrd)
    k("s_waitcnt lgkmcnt(0)")
    fin_srd(k, 'dbg', S_DBG)
    k("v_mov_b32 v2, 0"); k("v_mov_b32 v3, %s", str(opts['die'] + 1) if 'die' in opts else "s54")
    k("buffer_store_dword v3, v2, %s, 0 offen offset:%d sc1", s(S_DBG, 4), DBG_T)
    k.L(lrd)
    k("s_and_b32 s%d, s3, 7", ROLE)
    k("s_lshl_b32 s%d, s%d, 5", ROLE, ROLE)
    k("s_lshr_b32 s3, s3, 3")
    k("s_add_u32 s%d, s%d, s3", ROLE, ROLE)
    k("s_cmp_ge_u32 s%d, 32", ROLE)
    k("s_cbranch_scc1 %s", lw)
    k.lswap = lsw
    role_chain(k, opts.get('slow', False))
    lstamp_dump(k, ROLE)
    k("s_branch %s", lend)
    k.L(lsw)
    lo = k.lab("SWo"); lp = k.lab("SWp"); ld = k.lab("SWd"); lc = k.lab("SWc")
    k("s_waitcnt vmcnt(0) lgkmcnt(0)")
    k("s_barrier")
    k("s_mov_b32 s101, 1")
    k("s_mov_b32 s3, s2")
    k("s_and_b32 s47, s2, 7")
    k("s_cmp_eq_u32 s47, 0")
    k("s_cselect_b32 s47, 1, 0")
    k("s_xor_b32 s46, s47, 1")
    k("v_mbcnt_lo_u32_b32 v1, -1, 0")
    k("v_mbcnt_hi_u32_b32 v1, -1, v1")
    k("s_lshl_b32 s44, s%d, 6", S_WAVE)
    k("v_add_u32 v0, s44, v1")
    k("s_cmp_lg_u32 s%d, 0", S_WAVE)
    k("s_cbranch_scc1 %s", lo)
    k("s_mov_b64 exec, 1")
    k("s_lshl_b32 s48, s47, 2")
    k("v_mov_b32 v2, 0"); k("v_mov_b32 v4, 1")
    k("buffer_atomic_add v4, v2, %s, s48 offen sc0 sc1", s(S_DBG, 4))
    k("s_lshl_b32 s49, s47, 4")
    k("s_lshl_b32 s50, s46, 4")
    k("s_add_u32 s51, s2, 1")
    k("s_lshl_b32 s51, s51, s49")
    k("s_waitcnt vmcnt(0)")
    k("v_readfirstlane_b32 s48, v4")
    k("s_cmp_ge_u32 s48, 32")
    k("s_cbranch_scc1 %s", ld)
    k("s_lshl_b32 s48, s48, 2")
    k("s_add_u32 s48, s48, 64")
    k("v_mov_b32 v4, s51")
    k("buffer_atomic_or v4, v2, %s, s48 offen sc0 sc1", s(S_DBG, 4))
    k("s_mov_b32 s52, 0")
    k.L(lp)
    k("s_waitcnt vmcnt(0)")
    k("v_readfirstlane_b32 s53, v4")
    k("s_lshr_b32 s44, s53, s49")
    k("s_and_b32 s44, s44, 0xffff")
    k("s_cmp_eq_u32 s44, 0xffff")
    k("s_cbranch_scc1 %s", ld)
    k("s_lshr_b32 s53, s53, s50")
    k("s_and_b32 s53, s53, 0xffff")
    k("s_cmp_lg_u32 s53, 0")
    k("s_cbranch_scc1 %s", lc)
    k("s_cmp_gt_u32 s52, 400")
    k("s_cbranch_scc1 %s", ld)
    k("s_add_u32 s52, s52, 1")
    k("buffer_load_dword v4, v2, %s, s48 offen sc1", s(S_DBG, 4))
    k("s_cmp_le_u32 s52, 400")
    k("s_cbranch_scc1 %s", lp)
    k("s_waitcnt vmcnt(0)")
    k("s_lshl_b32 s53, 0xffff, s50")
    k("s_or_b32 s53, s53, s51")
    k("v_mov_b32 v4, s53"); k("v_mov_b32 v5, s51")
    k("buffer_atomic_cmpswap v[4:5], v2, %s, s48 offen sc0 sc1", s(S_DBG, 4))
    k("s_branch %s", lp)
    k.L(lc)
    k("s_sub_u32 s3, s53, 1")
    k("s_and_b32 s3, s3, 255")
    k.L(ld)
    k("v_mov_b32 v3, s3"); k("v_mov_b32 v2, 163328")
    k("ds_write_b32 v2, v3")
    k("s_mov_b64 exec, -1")
    k("s_waitcnt lgkmcnt(0)")
    k.L(lo)
    k("s_barrier")
    k("v_mov_b32 v2, 163328")
    k("ds_read_b32 v3, v2")
    k("s_waitcnt lgkmcnt(0)")
    k("v_readfirstlane_b32 s3, v3")
    k("s_branch %s", lrd)
    k.L(lw)
    srds = [('x', S_X), ('out', S_O)]
    for n, r in srds: load_srd(k, n, r)
    k("s_waitcnt lgkmcnt(0)")
    for n, r in srds + [('ws', S_WS), ('dbg', S_DBG)]: fin_srd(k, n, r)
    k("s_mov_b32 s100, s54")
    def tcheck(k):
        lnt = k.lab("NT"); lgo = k.lab("NTs")
        k("s_cmp_lg_u32 s101, 0")
        k("s_cbranch_scc1 %s", lnt)
        wait_ready(k, 2, DBG_T)
        k("v_readfirstlane_b32 s44, v2")
        k("s_cmp_lg_u32 s44, s100")
        k("s_cbranch_scc1 %s", lnt)
        k("s_mov_b32 s54, s100")
        k("s_branch %s", lsw)
        k.L(lnt)
    lz = k.lab("Z")
    k("s_lshl_b32 s44, s101, 8")
    k("s_or_b32 s44, s44, s2")
    k("s_cmp_lg_u32 s44, 7")
    k("s_cbranch_scc1 %s", lz)
    k("s_cmp_lg_u32 s%d, 1", S_WAVE)
    k("s_cbranch_scc1 %s", lz)
    for i in range(4): k("v_mov_b32 v%d, 0", 4 + i)
    k("v_lshlrev_b32 v8, 4, v1")
    k("s_mov_b32 s40, 0x%x", FLAGS)
    for i in range(2): k("buffer_store_dwordx4 v[4:7], v8, %s, s40 offen offset:%d sc1", s(S_WS, 4), i * 1024)
    k("v_lshlrev_b32 v8, 7, v1")
    for i in range(7):
        k("s_mov_b32 s40, 0x%x", FLAGS + 0x2000 + i * 0x2000)
        k("buffer_store_dwordx4 v[4:7], v8, %s, s40 offen sc1", s(S_WS, 4))
    k("v_mov_b32 v9, 1")
    k("s_waitcnt vmcnt(0)")
    k("s_mov_b64 exec, 1")
    k("buffer_store_dword v9, v4, %s, 0 offen offset:%d sc1", s(S_DBG, 4), DBG_READY)
    k("s_mov_b64 exec, -1")
    k.L(lz)
    k("s_cmp_ge_u32 s%d, 256", ROLE)
    k("s_cbranch_scc1 %s", lend)
    stamp(k, 3, 0, wgreg=ROLE, vt=120)
    GRP, TK_, SEG, FO, FI = 54, 55, 7, 56, 57
    k("s_lshr_b32 s%d, s%d, 5", GRP, ROLE)
    k("s_and_b32 s%d, s%d, 31", TK_, ROLE)
    lq = k.lab("DOQKV"); l2 = k.lab("ROLE2")
    k("s_cmp_ge_u32 s%d, 2", GRP)
    k("s_cbranch_scc1 %s", lq)
    k("s_lshl_b32 s%d, s%d, 2", FO, TK_)
    k("s_add_u32 s%d, s%d, 0x%x", FO, FO, FLAGS + F_XN)
    def ln_after(k, scount):
        ls = k.lab("LNs")
        k("s_cmp_lg_u32 s%d, 1", scount)
        k("s_cbranch_scc1 %s", ls)
        tcheck(k)
        wait_ready(k, 2)
        k.L(ls)
        set_flag(k, FO, "s%d" % scount, 2)
    role_ln1(k, TK_, 4, ln_after)
    k("s_branch %s", l2)
    k.L(lq)
    k("s_sub_u32 s58, s%d, 64", ROLE)
    def pre_loop(k):
        tcheck(k)
        wait_ready(k, 2)
        k("v_and_b32 v8, 31, v1")
        k("v_lshlrev_b32 v8, 2, v8")
        k("s_mov_b32 s%d, 0x%x", FI, FLAGS + F_XN)
        k("s_mov_b32 s%d, 0", SEG)
        wait_flags(k, 8, FI, SEG, 2)
        k("s_lshl_b32 s%d, s32, 1", FO)
        k("s_add_u32 s%d, s%d, s34", FO, FO)
        k("s_lshl_b32 s%d, s%d, 2", FO, FO)
        k("s_lshl_b32 s40, s33, 5")
        k("s_add_u32 s%d, s%d, s40", FO, FO)
        k("s_add_u32 s%d, s%d, 0x%x", FO, FO, FLAGS + F_QF)
        k("s_sub_u32 s%d, s34, 3", SEG)
    def q_publish(k):
        k("s_max_i32 s40, s%d, 0", SEG)
        set_flag(k, FO, "s40", 2, drain=False)
        k("s_add_u32 s%d, s%d, 2", SEG, SEG)
    def q_pre_dma(k):
        ls = k.lab("QPd")
        k("s_cmp_lg_u32 s52, 8")
        k("s_cbranch_scc1 %s", ls)
        k("s_mov_b32 s58, 3")
        wait_flags(k, 8, FI, 58, 2)
        k.L(ls)
    for _ in range(opts.get('wdelay', 0)): k("s_sleep 37")
    if opts.get('qdelay'):
        lqd = k.lab("QD"); lqo = k.lab("QDo")
        k("s_cmp_lt_u32 s58, 128")
        k("s_cbranch_scc1 %s", lqo)
        k("v_mov_b32 v3, 0"); k("s_mov_b32 s59, 0")
        k.L(lqd)
        k("buffer_load_dword v2, v3, %s, 0 offen offset:8 sc1", s(S_DBG, 4))
        k("s_waitcnt vmcnt(0)")
        k("v_readfirstlane_b32 s40, v2")
        k("s_and_b32 s40, s40, 0xffff")
        k("s_cmp_ge_u32 s40, 32")
        k("s_cbranch_scc1 %s", lqo)
        k("s_sleep 16")
        k("s_add_u32 s59, s59, 1")
        k("s_cmp_lt_u32 s59, 20000")
        k("s_cbranch_scc1 %s", lqd)
        k.L(lqo)
    role_qkv(k, 58, q_pre_dma, q_publish, pre_loop)
    set_flag(k, FO, "0x80", 2)
    k.L(l2)
    stamp(k, 3, 1, wgreg=ROLE, vt=120)
    dstamp(k, 8, 120)
    k("s_waitcnt vmcnt(0)")
    k("s_barrier")
    lur = k.lab("UR"); ldn = k.lab("DN"); lrd = k.lab("RD"); lfin = k.lab("FIN")
    k("s_cmp_ge_u32 s%d, 4", GRP)
    k("s_cbranch_scc1 %s", lur)
    k("s_sub_u32 s%d, s%d, 1", SEG, GRP)
    k("s_lshl_b32 s%d, s%d, 12", FO, SEG)
    k("s_lshl_b32 s40, s%d, 7", TK_)
    k("s_add_u32 s%d, s%d, s40", FO, FO)
    k("s_add_u32 s%d, s%d, 0x%x", FO, FO, FLAGS + F_BF)
    def wait_qkv(k, sseg):
        lsk = k.lab("wq")
        k("s_cmp_lt_u32 s%d, s72", sseg)
        k("s_cbranch_scc1 %s", lsk)
        k("v_min_u32 v3, 5, v1")
        k("v_lshlrev_b32 v3, 2, v3")
        k("s_lshl_b32 s%d, s34, 5", FI)
        k("s_add_u32 s%d, s%d, 0x%x", FI, FI, FLAGS + F_QF)
        wait_flags(k, 3, FI, sseg, 2)
        k("v_cmp_gt_u32 vcc, 0x80, v2")
        k("s_cmp_eq_u64 vcc, 0")
        k("s_cselect_b32 s72, 64, 0")
        k.L(lsk)
        return
        k("v_min_u32 v3, 2, v1")
        k("v_lshlrev_b32 v3, 3, v3")
        k("s_and_b32 s%d, s%d, 1", FI, sseg)
        k("s_lshl_b32 s%d, s%d, 2", FI, FI)
        k("s_lshl_b32 s58, s34, 5")
        k("s_add_u32 s%d, s%d, s58", FI, FI)
        k("s_add_u32 s%d, s%d, 0x%x", FI, FI, FLAGS + F_QF)
        wait_flags(k, 3, FI, sseg, 2)
    def wait_kvm(k, sseg):
        k("v_and_b32 v3, 3, v1")
        k("v_lshlrev_b32 v3, 7, v3")
        k("s_lshl_b32 s%d, s34, 9", FI)
        k("s_add_u32 s%d, s%d, 0x%x", FI, FI, FLAGS + F_KF)
        wait_flags(k, 3, FI, sseg, 2)
    H = opts.get('hint', 1)
    k.narm = opts.get('narm', 2) if H else 0
    A0 = 64 - 3 * k.narm
    def publish(k, sseg):
        k("s_lshl_b32 s58, s%d, 1", sseg)
        k("s_add_u32 s58, s58, 2")
        set_flag(k, FO, "s58", 2)
    def hint(k, sseg, bar=False):
        l = k.lab("hn")
        k("s_cmp_lt_u32 s%d, %d", sseg, A0)
        k("s_cbranch_scc1 %s", l)
        if bar: k("s_barrier")
        k("s_lshl_b32 s58, s%d, 1", sseg)
        k("s_add_u32 s58, s58, 1")
        set_flag(k, FO, "s58", 2, drain=False)
        k.L(l)
    def wfin(va):
        def f(k, sseg):
            k("s_lshl_b32 s58, s%d, 1", sseg)
            k("s_add_u32 s58, s58, 1")
            wait_flags(k, va, FI, 58, 2)
        return f
    def wnorm(va):
        def f(k, sseg):
            k("s_cmp_lt_u32 s%d, %d", sseg, A0)
            k("s_addc_u32 s58, s%d, s%d", sseg, sseg)
            wait_flags(k, va, FI, 58, 2, wave0=True)
        return f
    if not H: hint = None
    k("s_mov_b32 s72, 0")
    role_bc(k, TK_, SEG, 3, wait_qkv, wait_kvm, publish, hint)
    dstamp(k, 10, 120)
    k("s_branch %s", lfin)
    k.L(lur)
    k("s_cmp_eq_u32 s%d, 7", GRP)
    k("s_cbranch_scc1 %s", ldn)
    k("s_sub_u32 s%d, s%d, 4", SEG, GRP)
    k("s_lshl_b32 s%d, s%d, 12", FI, SEG)
    k("s_cmp_ge_u32 s%d, 22", TK_)
    k("s_cbranch_scc1 %s", lrd)
    k("s_lshl_b32 s40, s%d, 7", TK_)
    k("s_add_u32 s%d, s%d, s40", FO, FI)
    k("s_add_u32 s%d, s%d, 0x%x", FO, FO, FLAGS + F_UF)
    k("s_add_u32 s%d, s%d, 0x%x", FI, FI, FLAGS + F_RF)
    k("v_and_b32 v13, 7, v1")
    k("v_lshlrev_b32 v13, 7, v13")
    role_up(k, TK_, SEG, 3, None, None, publish, wnorm(13), hint, wfin(13))
    dstamp(k, 12, 120)
    k("s_branch %s", lfin)
    k.L(lrd)
    k("s_cmp_ge_u32 s%d, 30", TK_)
    k("s_cbranch_scc1 %s", lfin)
    k("s_sub_u32 s%d, s%d, 22", TK_, TK_)
    k("s_lshl_b32 s40, s%d, 7", TK_)
    k("s_add_u32 s%d, s%d, s40", FO, FI)
    k("s_add_u32 s%d, s%d, 0x%x", FO, FO, FLAGS + F_RF)
    k("s_add_u32 s%d, s%d, 0x%x", FI, FI, FLAGS + F_BF)
    k("v_and_b32 v15, 31, v1")
    k("v_lshlrev_b32 v15, 7, v15")
    role_red(k, TK_, SEG, 3, wnorm(15), publish, hint, wfin(15))
    dstamp(k, 11, 120)
    k("s_branch %s", lfin)
    k.L(ldn)
    k("s_lshr_b32 s72, s%d, 4", TK_)
    k("s_mov_b32 s%d, 0", SEG)
    k("s_and_b32 s%d, s%d, 15", TK_, TK_)
    k("v_min_u32 v13, 21, v1")
    k("v_lshlrev_b32 v13, 7, v13")
    def wait_up(k, sseg):
        k("s_mul_i32 s58, s%d, 43", sseg)
        k("s_lshr_b32 s58, s58, 7")
        k("s_mul_i32 s58, s58, 3")
        k("s_sub_u32 s58, s%d, s58", sseg)
        k("s_lshl_b32 s%d, s58, 12", FI)
        k("s_add_u32 s%d, s%d, 0x%x", FI, FI, FLAGS + F_UF)
        wnorm(13)(k, sseg)
    role_dn(k, TK_, SEG, 1, 72, wait_up, wfin(13) if H else None)
    k.L(lfin)
    stamp(k, 3, 2, wgreg=ROLE, vt=120)
    dstamp(k, 9, 120); dstamp(k, 3, 120, True, 98); dstamp(k, 4, 120, False, 98)
    lstamp_dump(k, ROLE)
    k.L(lend)
    k("s_endpgm")
    body = insert_nops(auto_wait(k.lines))
    hdr = header_comments([])
    hdr.append('; @launch grid=(256,1,1) block=(256,1,1) lds=163840')
    return '\n'.join(hdr) + '\n.amdgcn_target "amdgcn-amd-amdhsa--gfx950"\n.text\n' + '\n'.join(body) + \
        '\n.section .rodata,"a"\n.p2align 6\n' + kernel_desc(KN)
if __name__ == '__main__':
    o = {"lazy": 1, "p0a": 44, "p1a": 24, "w1a": 14, "p2a": 4, "hbc": 22, "hr": 1, "hu": 1, "hu2": 12, "narm": 3, "kvl": 57, "w1": 14, "b0": 6, "w2": 14, "ns1": 0, "ns2": 0, "ho": 4}
    if len(sys.argv) > 1: o.update(json.loads(sys.argv[1]))
    open('m.s', 'w').write(build(o))
    open('ms.s', 'w').write(build(o, stamps=True))
```

```python
from roles import *
import struct
def f2u(x): return struct.unpack('<I', struct.pack('<f', x))[0]

L_KT = 131072
L_MB = L_KT + 16384
L_XB = L_MB + 8192
L_OB = L_XB + 5120
L_MISC_ = L_OB + 2560
WQ, WK, WO = 256, 384, 128
aM = [2, 3, 4, 5]; aXW = 6; aXR = 7; aOW = 8; aWV = 9; aKT = 10; aL16 = 11
aH1S = 12; aWO = 13; aH1L = 11; aH2S = 14; IDX = 15
KVM = 16
SEL = 20
VTN = 24
MA = 32; AQ = 64; AK = 72; AV = 80; G = 88; VT = 120
S_HEAD = 5; S_LIM = 6; S_STEP = 7
S_WQ, S_WK, S_WV, S_WO = 12, 16, 20, 28
sH1S0, sH1S1, sH1L, sH2S, sH2L = 32, 33, 34, 35, 36
sKV = 37; sKTD = 38; sKM = 39; sVIM = 40; sC = 41; sCNT = 42; sT = 43
sH1R = 50; sH2R = 51; sMASK = 52
sPH = 50; sTHR = 49; sSAFE = 55; sQF = 46; sKF = 47; aFL = 0; aFL4 = 0
CSC = 0.08838834764831845 * 1.4426950408889634
VORD = [0, 2, 4, 6, 1, 3, 5, 7]
CT = MA

from chain import elect, xmax
def tick(k, i):
    if getattr(k, 'ticks', False): k("s_memtime s[%d:%d]", 64 + 2 * i, 65 + 2 * i)
def tick_init(k):
    if not getattr(k, 'ticks', False): return
    for i in range(96, 100): k("s_mov_b32 s%d, 0", i)
def tick_step_end(k):
    if not getattr(k, 'ticks', False): return
    l = k.lab("tse")
    k("s_cmp_lg_u32 s%d, %d", S_STEP, k.copt.get('tstep', 41))
    k("s_cbranch_scc1 %s", l)
    k("s_waitcnt vmcnt(0) lgkmcnt(0)")
    k("s_lshl_b32 s100, s%d, 2", S_HEAD)
    k("s_add_u32 s100, s100, s%d", S_WAVE)
    k("s_lshl_b32 s100, s100, 7")
    k("s_add_u32 s100, s100, 0x%x", TS + 8 * 65536)
    k("v_mov_b32 v41, 0")
    for i in range(16):
        k("v_mov_b32 v40, s%d", 64 + 2 * i)
        k("buffer_store_dword v40, v41, %s, s100 offen offset:%d", s(S_WS, 4), 4 * i)
    for e in range(2):
        lw = k.lab("cal")
        k("s_memrealtime s[64:65]")
        k("s_waitcnt lgkmcnt(0)")
        if e: k("s_add_u32 s64, s64, 100")
        k.L(lw)
        k("s_memrealtime s[66:67]")
        k("s_memtime s[68:69]")
        k("s_waitcnt lgkmcnt(0)")
        k("s_sub_u32 s70, s64, s66")
        k("s_cmp_ge_i32 s70, 0")
        k("s_cbranch_scc1 %s", lw)
        k("v_mov_b32 v40, s66")
        k("buffer_store_dword v40, v41, %s, s100 offen offset:%d", s(S_WS, 4), 80 + 8 * e)
        k("v_mov_b32 v40, s68")
        k("buffer_store_dword v40, v41, %s, s100 offen offset:%d", s(S_WS, 4), 84 + 8 * e)
    k.L(l)
def tick_dump(k):
    if not getattr(k, 'ticks', False): return
    k("v_mov_b32 v41, 0")
    for i in range(4):
        k("v_mov_b32 v40, s%d", 96 + i)
        k("buffer_store_dword v40, v41, %s, s100 offen offset:%d", s(S_WS, 4), 64 + 4 * i)

def SMF(acc, A, B): return "v_smfmac_f32_16x16x64_bf16 %s, %s, %s, %s" % (v(acc, 4), v(A, 4), u(B, 8), v(IDX))
def MF(d, A, B, first): return "v_mfma_f32_16x16x32_bf16 %s, %s, %s, %s" % (v(d, 4), v(A, 4), v(B, 4), "0" if first else v(d, 4))
def M16(d, A, B): return "v_mfma_f32_16x16x16_bf16 %s, %s, %s, %s" % (v(d, 4), v(A, 2), v(B, 2), v(d, 4))

def chain_setup(k):
    w = S_WAVE
    k.c("---- chain setup: addresses")
    k("v_lshlrev_b32 %s, 4, v1", v(aL16))
    for jp in range(4):
        k("s_xor_b32 s%d, s%d, %d", sT, w, jp)
        k("s_lshl_b32 s%d, s%d, 11", sT, sT)
        k("s_add_u32 s%d, s%d, %d", sT, sT, L_MB)
        k("v_add_u32 %s, s%d, %s", v(aM[jp]), sT, v(aL16))
    k("v_and_b32 v90, 15, v1")
    k("v_lshrrev_b32 v91, 4, v1")
    k("v_bfe_u32 v92, v1, 2, 2")
    k("v_and_b32 v93, 3, v1")
    k("v_mul_u32_u24 v94, 320, v91")
    k("v_lshl_add_u32 v94, v90, 3, v94")
    k("s_mul_i32 s%d, s%d, 1280", sT, w)
    k("s_add_u32 s%d, s%d, %d", sT, sT, L_XB)
    k("v_add_u32 %s, s%d, v94", v(aXW), sT)
    k("s_lshr_b32 s%d, s%d, 1", sT, w)
    k("s_mul_i32 s%d, s%d, 1280", sT, sT)
    k("s_and_b32 s%d, s%d, 1", sCNT, w)
    k("s_lshl_b32 s%d, s%d, 7", sCNT, sCNT)
    k("s_add_u32 s%d, s%d, s%d", sT, sT, sCNT)
    k("s_add_u32 s%d, s%d, %d", sT, sT, L_OB)
    k("v_add_u32 %s, s%d, v94", v(aOW), sT)
    k("v_mul_u32_u24 v94, 320, v93")
    k("v_lshrrev_b32 v95, 2, v1")
    k("v_lshl_add_u32 v94, v95, 3, v94")
    k("v_add_u32 %s, %d, v94", v(aXR), L_XB)
    k("s_lshl_b32 s%d, s%d, 14", sT, w)
    k("v_add_u32 %s, s%d, %s", v(aWV), sT, v(aL16))
    k("v_add_u32 %s, 0x10000, %s", v(aWO), v(aWV))
    k("v_add_u32 %s, %d, %s", v(aKT), L_KT, v(aL16))
    k("v_lshrrev_b32 v94, 3, v90")
    k("v_lshl_add_u32 v94, v94, 2, v91")
    k("v_lshlrev_b32 v94, 13, v94")
    k("v_and_b32 v95, 7, v1")
    k("v_lshl_add_u32 %s, v95, 3, v94", v(aH1S))
    k("v_lshlrev_b32 v94, 4, v91")
    k("v_lshl_add_u32 v94, v93, 2, v94")
    k("v_mov_b32 v95, v92")
    k("v_cmp_eq_u32 vcc, 0, v95")
    k("v_mov_b32 v95, 0x40000000")
    k("v_cndmask_b32 %s, v95, v94, vcc", v(aH2S))
    k("v_and_b32 v94, 2, v1")
    k("v_cmp_eq_u32 vcc, 0, v94")
    k("v_mov_b32 v94, 0x44444444")
    k("v_mov_b32 v95, 0xeeeeeeee")
    k("v_cndmask_b32 %s, v95, v94, vcc", v(IDX))
    k("v_mov_b32 v94, 0x3f80")
    k("v_mov_b32 v95, 0x3f800000")
    for d in range(4):
        k("v_cmp_eq_u32 vcc, %d, v90", 4 * d)
        k("v_cndmask_b32 %s, 0, v94, vcc", v(SEL + d))
        k("v_cmp_eq_u32 vcc, %d, v90", 4 * d + 1)
        k("v_cndmask_b32 %s, %s, v95, vcc", v(SEL + d), v(SEL + d))
    k("s_lshl_b32 s%d, s%d, 16", sT, w)
    k("s_lshl_b32 s%d, s%d, 6", sH1S0, S_HEAD)
    k("s_add_u32 s%d, s%d, s%d", sH1S0, sH1S0, sT)
    k("s_add_u32 s%d, s%d, 0x%x", sH1S0, sH1S0, HOP1)
    k("s_add_u32 s%d, s%d, 0x1000", sH1S1, sH1S0)
    k("s_lshl_b32 s%d, s%d, 2", sH1L, S_HEAD)
    k("s_add_u32 s%d, s%d, s%d", sH1L, sH1L, w)
    k("s_lshl_b32 s%d, s%d, 11", sH1L, sH1L)
    k("s_add_u32 s%d, s%d, 0x%x", sH1L, sH1L, HOP1)
    k("s_lshr_b32 s%d, s%d, 3", sH2S, S_HEAD)
    k("s_lshl_b32 s%d, s%d, 11", sH2S, sH2S)
    k("s_and_b32 s%d, s%d, 7", sT, S_HEAD)
    k("s_lshl_b32 s%d, s%d, 6", sT, sT)
    k("s_add_u32 s%d, s%d, s%d", sH2S, sH2S, sT)
    k("s_lshl_b32 s%d, s%d, 9", sT, w)
    k("s_add_u32 s%d, s%d, s%d", sH2S, sH2S, sT)
    k("s_add_u32 s%d, s%d, 0x%x", sH2S, sH2S, HOP2)
    k("s_lshl_b32 s%d, s%d, 11", sH2L, w)
    k("s_add_u32 s%d, s%d, 0x%x", sH2L, sH2L, HOP2)
    k("s_lshl_b32 s%d, s%d, 13", sKV, S_HEAD)
    k("s_lshl_b32 s%d, s%d, 11", sT, w)
    k("s_add_u32 s%d, s%d, s%d", sKV, sKV, sT)
    k("s_add_u32 s%d, s%d, 0x%x", sVIM, sKV, VIMG)
    k("s_add_u32 s%d, s%d, 0x%x", sKV, sKV, KIMG)
    k("s_add_u32 s%d, s%d, %d", sKTD, sT, L_KT)
    k("s_lshl_b32 s%d, s%d, 12", sKM, S_HEAD)
    k("s_lshl_b32 s%d, s%d, 10", sT, w)
    k("s_add_u32 s%d, s%d, s%d", sKM, sKM, sT)
    k("s_add_u32 s%d, s%d, 0x%x", sKM, sKM, KM - 0x20000)
    k("s_mov_b32 s%d, 0x%x", sC, f2u(CSC))
    k("s_mov_b32 s%d, 400000", S_LIM)
    k("s_mov_b32 s%d, 0x33333333", sMASK)
    k("s_mov_b32 s%d, 0x33333333", sMASK + 1)
    k("s_mov_b32 s%d, 0", sPH)
    k("s_xor_b32 s%d, s%d, 0x2000", sH2R, sH2S)

def merged_setup(k):
    k("s_lshl_b32 s%d, s%d, 5", sQF, S_HEAD)
    k("s_add_u32 s%d, s%d, 0x%x", sQF, sQF, FLAGS + F_QF)
    k("s_lshl_b32 s%d, s%d, 2", sKF, S_HEAD)
    k("s_add_u32 s%d, s%d, s%d", sKF, sKF, S_WAVE)
    k("s_lshl_b32 s%d, s%d, 7", sKF, sKF)
    k("s_add_u32 s%d, s%d, 0x%x", sKF, sKF, FLAGS + F_KF)
    k("v_lshlrev_b32 %s, 2, v93", v(aFL))

def kv_refresh(k, plus, back=None):
    lp = k.lab("kvr"); ok = k.lab("kvok")
    k("s_mov_b32 s%d, 0", sCNT)
    k("s_add_u32 s%d, s%d, %d", sT, S_STEP, plus)
    k.L(lp)
    k("buffer_load_dword v1, %s, %s, s%d offen sc1", v(aFL), s(S_WS, 4), sQF)
    k("s_waitcnt vmcnt(0)")
    k("v_cmp_ge_u32 vcc, s%d, v1", sT)
    k("s_cbranch_vccz %s", ok)
    k("s_sleep 2")
    k("s_add_u32 s%d, s%d, 1", sCNT, sCNT)
    k("s_cmp_lt_u32 s%d, s%d", sCNT, S_LIM)
    k("s_cbranch_scc1 %s", lp)
    k("s_mov_b32 s%d, 0", S_LIM)
    k.L(ok)
    if back: k("s_branch %s", back)

import chain as _c1
def chain_arm(k):
    k.c("---- arm hop buffers (both slots), sc1")
    for i in range(4): k("v_mov_b32 %s, -1", v(96 + i))
    for slot in range(2):
        k("s_add_u32 s%d, s%d, 0x%x", sT, sH1L, slot * 262144)
        k("buffer_store_dwordx4 v[96:99], %s, %s, s%d offen sc1", v(aL16), s(S_WS, 4), sT)
        k("buffer_store_dwordx4 v[96:99], %s, %s, s%d offen offset:1024 sc1", v(aL16), s(S_WS, 4), sT)
    k("buffer_store_dword v96, %s, %s, s%d offen sc1", v(aH2S), s(S_WS, 4), sH2R)
load_mem0 = _c1.load_mem0
WVR_ = 128
WOR_ = 192

def chain_load_weights(k, hooks={}, pre_issue={}, after_first=None):
    w = S_WAVE
    k.c("---- chain weight load")
    k("v_and_b32 v90, 15, v1")
    k("v_lshrrev_b32 v91, 4, v1")
    k("s_and_b32 s44, s%d, 1", w)
    k("s_lshl_b32 s44, s44, 2")
    k("v_xor_b32 v120, s44, v90")
    k("v_and_b32 v121, 1, v91")
    k("v_lshlrev_b32 v121, 3, v121")
    k("v_xor_b32 v120, v120, v121")
    k("v_lshlrev_b32 v120, 4, v120")
    k("v_lshl_add_u32 v120, v91, 13, v120")
    k("s_lshl_b32 s45, s%d, 8", S_HEAD)
    k("s_lshl_b32 s48, s%d, 17", w)
    k("s_add_u32 s45, s45, s48")
    k("s_lshl_b32 s44, s%d, 12", w)
    sc = [('q', 0), ('q', 1), ('k', 0), ('k', 1), ('v', 1), ('o', 0), ('v', 0), ('o', 1)]
    srds = dict(q=S_WQ, k=S_WK, v=S_WV, o=S_WO)
    queue = []
    def issue(i):
        m, par = sc[i]; reg = (i & 1) * 65536
        for n in range(16):
            if m == 'o':
                k("s_add_u32 s48, s49, %d", par * 128 + n * 8192)
                k("s_add_u32 m0, s3, %d", n * 1024)
            else:
                c, q = n >> 2, n & 3
                k("s_add_u32 s48, s45, %d", (2 * c + par) * 64 * 8192 + q * 4 * 8192)
                k("s_add_u32 m0, s44, %d", reg + c * 16384 + q * 1024)
            k("buffer_load_dwordx4 v%d, %s, s48 offen lds", 121 if m == 'o' else 120, s(srds[m], 4))
            queue.append(i)
    k("s_waitcnt lgkmcnt(0)")
    fin_srd(k, 'Wq', S_WQ)
    lstamp(k, 7)
    issue(0)
    if after_first: after_first(k)
    k("v_lshrrev_b32 v121, 3, v1")
    k("v_lshlrev_b32 v121, 10, v121")
    k("v_and_b32 v122, 7, v1")
    k("v_lshl_add_u32 v121, v122, 4, v121")
    k("v_and_b32 v126, 1, v92")
    k("v_lshl_add_u32 v126, v126, 2, v91")
    k("v_lshrrev_b32 v127, 1, v92")
    k("v_lshl_add_u32 v126, v126, 2, v127")
    k("v_lshlrev_b32 v126, 8, v126")
    k("v_xor_b32 v127, s%d, v92", w)
    k("v_lshl_add_u32 v126, v127, 6, v126")
    k("v_lshl_add_u32 v126, v93, 4, v126")
    for jp in range(4):
        k("s_xor_b32 s48, s%d, %d", w, jp)
        k("s_lshl_b32 s48, s48, 14")
        k("v_add_u32 v%d, s48, v126", 122 + jp)
    k("v_lshrrev_b32 v126, 1, v92")
    k("v_lshrrev_b32 v127, 1, v91")
    k("v_lshl_add_u32 v126, v127, 1, v126")
    k("v_and_b32 v127, 1, v91")
    k("v_lshl_add_u32 v126, v127, 3, v126")
    k("v_lshlrev_b32 v126, 2, v126")
    k("v_and_b32 v127, 1, v92")
    k("v_add_u32 v126, v126, v127")
    k("v_lshlrev_b32 v126, 7, v126")
    k("v_lshl_add_u32 v126, v93, 3, v126")
    k("s_lshl_b32 s48, s%d, 14", w)
    k("s_add_u32 s3, s48, 0x10000")
    k("v_add_u32 v126, s3, v126")
    k("s_lshl_b32 s49, s%d, 17", S_HEAD)
    k("s_lshl_b32 s48, s%d, 8", w)
    k("s_add_u32 s49, s49, s48")
    if -1 in hooks: queue.extend([-1] * hooks[-1](k))
    issue(1)
    lstamp(k, 5)
    TMP = 40
    for i in range(8):
        m, par = sc[i]
        if i in hooks: queue.extend([-1] * hooks[i](k))
        last = max(n for n, c in enumerate(queue) if c == i)
        k("s_waitcnt vmcnt(%d)", len(queue) - 1 - last)
        k("s_barrier")
        if i < 5: lstamp(k, i)
        inplace = i >= 6
        cnt = 0
        for a_ in range(4):
            for b_ in range(2):
                if inplace: dst = TMP + (a_ * 2 + b_) * 8
                elif m == 'q': dst = WQ + (b_ * 8 + 2 * a_ + par) * 8
                elif m == 'k': dst = WK + (b_ * 8 + 2 * a_ + par) * 8
                elif m == 'v': dst = WVR_ + (a_ * 2 + b_) * 8
                else: dst = WOR_ + (a_ * 2 + b_) * 8
                for y in range(4):
                    if m == 'o':
                        k("ds_read_b64_tr_b16 %s, v126 offset:%d", u(dst + 2 * y, 2), (64 * b_ + 16 * (y >> 1) + 2 * (y & 1)) * 128 + 32 * a_)
                    else:
                        k("ds_read_b64_tr_b16 %s, v%d offset:%d", u(dst + 2 * y, 2), 122 + a_, (32 * (y >> 1) + 2 * (y & 1)) * 256 + 8 * b_)
                cnt += 4
                if cnt % 8 == 0: k("s_waitcnt lgkmcnt(4)")
        if i < 4:
            for jp in range(4): k("v_xor_b32 v%d, 0x10000, v%d", 122 + jp, 122 + jp)
        k("s_waitcnt lgkmcnt(0)")
        k("s_barrier")
        if inplace:
            for q in range(16):
                k("ds_write_b128 %s, %s offset:%d", v(aWO if m == 'o' else aWV), v(TMP + 4 * q, 4), q * 1024)
                if q % 8 == 7: k("s_waitcnt lgkmcnt(0)")
        if i in pre_issue: pre_issue[i](k)
        if i + 2 < 8: issue(i + 2)


def PFK(p):
    W = s(S_WS, 4)
    return [["s_mov_b32 m0, s%d" % sKTD, "buffer_load_dwordx4 %s, %s, s%d offen sc1 lds" % (v(aL16), W, sKV)],
            ["buffer_load_dwordx4 %s, %s, s%d offen offset:1024 sc1 lds" % (v(aL16), W, sKV)],
            ["buffer_load_dwordx4 %s, %s, %s, s%d offen sc1" % (v(VTN, 4), v(aL16), W, sVIM)],
            ["buffer_load_dwordx4 %s, %s, %s, s%d offen offset:1024 sc1" % (v(VTN + 4, 4), v(aL16), W, sVIM)],
            ["s_add_u32 s%d, s%d, 0x40000" % (sKV, sKV), "s_add_u32 s%d, s%d, 0x40000" % (sVIM, sVIM),
             "s_xor_b32 s%d, s%d, 0x2000" % (sKTD, sKTD)]][p]

def WVR(n, h):
    return "ds_read_b128 %s, %s offset:%d" % (v(G + (n & 3) * 8 + 4 * h, 4), v(aWV), n * 2048 + h * 1024)

def weave(k, spine, fill):
    for i, m in enumerate(spine):
        k(m)
        for f in fill.get(i, []): k(f)

def check_n(k, buf, n, t0, t1):
    if n == 8:
        k("v_max3_u32 %s, %s, %s, %s", v(t0), v(buf), v(buf + 1), v(buf + 2))
        k("v_max3_u32 %s, %s, %s, %s", v(t1), v(buf + 3), v(buf + 4), v(buf + 5))
        k("v_max3_u32 %s, %s, %s, %s", v(t0), v(buf + 6), v(buf + 7), v(t0))
        k("v_max_u32 %s, %s, %s", v(t0), v(t0), v(t1))
    else:
        k("v_max3_u32 %s, %s, %s, %s", v(t0), v(buf), v(buf + 1), v(buf + 2))
        k("v_max_u32 %s, %s, %s", v(t0), v(t0), v(buf + 3))
    k("v_cmp_eq_u32 vcc, -1, %s", v(t0))

def retry_stub(k, lab, back, loads, buf, n, pre=None, cnt=None):
    k.L(lab)
    lp = k.lab("rp")
    k("s_mov_b32 s%d, 0", sCNT)
    k.L(lp)
    for l in loads: k(l)
    if cnt is not None and getattr(k, 'ticks', False): k("s_add_u32 s%d, s%d, 1", cnt, cnt)
    k("s_waitcnt vmcnt(0)")
    if pre:
        for l in pre: k(l)
    check_n(k, buf, n, CT, CT + 1)
    k("s_cbranch_vccz %s", back)
    k("s_add_u32 s%d, s%d, 1", sCNT, sCNT)
    k("s_cmp_lt_u32 s%d, s%d", sCNT, S_LIM)
    k("s_cbranch_scc1 %s", lp)
    k("s_mov_b32 s%d, 0", S_LIM)
    k("s_branch %s", back)

def delay(k, slots):
    while slots > 0:
        m = min(slots, 16); k("s_nop %d", m - 1); slots -= m

def chain_loop(k, stf, tag):
    W = s(S_WS, 4)
    o = getattr(k, 'copt', {})
    mg = getattr(k, 'merged', False)
    tk = getattr(k, 'ticks', False)
    TK = lambda i: ("s_memtime s[%d:%d]" % (64 + 2 * i, 65 + 2 * i)) if tk else ""
    lexit = k.lab(tag + "exit"); bexit = k.lab(tag + "bexit")
    Qs = lambda j, b: [SMF(AQ, b, WQ + j * 8), SMF(AQ + 4, b, WQ + (8 + j) * 8)]
    Ks = lambda j, b: [SMF(AK, b, WK + j * 8), SMF(AK + 4, b, WK + (8 + j) * 8)]
    Vs = lambda j, b: [SMF(AV + 4 * t, b, (G + ((j + t) & 3) * 8) if j % 2 == 0 else (WVR_ + ((j >> 1) * 2 + t) * 8)) for t in range(2)]
    Q = lambda j: Qs(j, MA + 4 * j); Kp = lambda j: Ks(j, MA + 4 * j); V = lambda j: Vs(j, MA + 4 * j)
    KORD = [0, 1, 2, 4, 6, 3, 5, 7]
    MR = lambda j: "ds_read_b128 %s, %s offset:%d" % (v(MA + 4 * j, 4), v(aM[j >> 1]), (j & 1) * 1024)
    KTR = lambda f: "ds_read_b128 %s, %s offset:%d" % (v(MA + 4 * KORD[f], 4), v(aKT), f * 1024)
    MV = lambda d, x: "v_mov_b32 %s, %s" % (v(d), x)
    EX = lambda d, s_: "v_exp_f32 %s, %s" % (v(d), v(s_))
    CV = lambda d, a_, b_: "v_cvt_pk_bf16_f32 %s, %s, %s" % (v(d), v(a_), v(b_))
    FA = lambda a_: ["v_add_f32 %s, %s, %s" % (v(a_), v(a_), v(a_ + 2)), "v_add_f32 %s, %s, %s" % (v(a_ + 1), v(a_ + 1), v(a_ + 3))]
    stkvm = "buffer_store_dwordx4 %s, %s, %s, s%d offen sc1" % (v(KVM, 4), v(aL16), W, sKM)
    r_sm = k.lab(tag + "rsm"); b_sm = k.lab(tag + "bsm"); r_kv = k.lab(tag + "rkv"); b_kv = k.lab(tag + "bkv")
    EB = [MA, VTN]
    lF = [k.lab(tag + "s0f") for _ in EB]; lto = k.lab(tag + "to")
    RD = MA + 16; HT = MA + 20; H1 = MA + 8; H1B = MA + 24
    lde = lambda b: ["buffer_load_dwordx4 %s, %s, %s, s%d offen sc1" % (v(b, 4), v(aL16), W, sH2L),
                     "buffer_load_dwordx4 %s, %s, %s, s%d offen offset:1024 sc1" % (v(b + 4, 4), v(aL16), W, sH2L)]
    def spin(reg, n, lab, magic="0x7fc1"):
        for i in range(n):
            k("v_cmp_ne_u32 vcc, %s, %s", magic, v(reg))
            k("s_cbranch_vccnz %s", lab)
    lS = [k.lab(tag + "s0v") for _ in EB]; lcom = k.lab(tag + "com"); lpoll = k.lab(tag + "poll")
    k("s_branch %s", lS[0])
    k(".aw_on")
    nb0 = o.get('b0', 5)
    fl = [[],
          ["buffer_load_dword v1, %s, %s, s%d offen sc1" % (v(aFL4), W, sQF)]] if mg else [[], []]
    for bi in (1, 0):
        b = EB[bi]; ob = EB[1 - bi]
        k(".aw_reset")
        k.L(lF[1 - bi])
        if o.get('mask', 0): k("s_mov_b64 exec, vcc")
        for l in lde(ob): k(l)
        if o.get('mask', 0): k("s_mov_b64 exec, -1")
        if tk: k("s_add_u32 s97, s97, 1")
        k("s_add_u32 s%d, s%d, 1", sCNT, sCNT)
        k("s_cmp_ge_u32 s%d, s%d", sCNT, S_LIM)
        k("s_cbranch_scc1 %s", lto)
        if bi == 0: k.L(lpoll)
        ar = k.lab(tag + "ar2")
        spin(b + 7, o.get('ns2', 16), ar, "-2")
        k.L(ar)
        k("s_waitcnt vmcnt(2)")
        k("v_max_u32 %s, %s, %s", v(HT), v(b + 3), v(b + 7))
        k("v_cmp_eq_u32 vcc, -1, %s", v(HT))
        k("s_cbranch_vccnz %s", lF[bi])
        k.L(lS[bi])
        tick(k, 15); tick_step_end(k); tick(k, 0)
        if o.get('plog2'): k("s_memtime s[64:65]"); k("s_memrealtime s[66:67]")
        w64 = o.get('w64', 0)
        if w64 == 0: k("ds_write_b128 %s, %s", v(aM[0]), v(b, 4))
        f = {o.get('gw2', 2): ["ds_write_b128 %s, %s offset:1024" % (v(aM[0]), v(b + 4, 4))], nb0: [".aw_writes", "s_barrier", TK(1), MR(2)]}
        if w64 == 1:
            del f[o.get('gw2', 2)]
            ws = ["ds_write_b64 %s, %s offset:%d" % (v(aM[0]), v(b + 2 * i, 2), (i >> 1) * 1024 + (i & 1) * 8) for i in range(4)]
            k(ws[0])
            for i in range(1, 4): f[i - 1] = [ws[i]]
        if w64 == 2:
            del f[o.get('gw2', 2)]
            ws = ["ds_write_b32 %s, %s offset:%d" % (v(aM[0]), v(b + i), (i >> 2) * 1024 + (i & 3) * 4) for i in range(8)]
            k(ws[0]); k(ws[1])
            for i in range(3): f[i] = ws[2 + 2 * i: 4 + 2 * i]
        for x in range(3, 8): f[min(nb0 + x - 2, 11)] = f.get(min(nb0 + x - 2, 11), []) + [MR(x)]
        if o.get('early', 0): f[1] = PFK(0)[1:]; f[2] = PFK(1); f[3] = [stkvm]; f[4] = fl[0]
        weave(k, Qs(0, b) + Ks(0, b) + Qs(1, b + 4) + Ks(1, b + 4) + Vs(0, b) + Vs(1, b + 4), f)
        if bi: k("s_branch %s", lcom)
    k.L(lcom)
    qf = []
    for t in range(2):
        a_ = AQ + 4 * t
        qf += FA(a_) + ["v_mul_f32 %s, s%d, %s" % (v(a_), sC, v(a_)), "v_mul_f32 %s, s%d, %s" % (v(a_ + 1), sC, v(a_ + 1)), CV(a_, a_, a_ + 1)]
    E_ = lambda x: [] if o.get('early', 0) else x
    weave(k, Q(2) + Q(3) + Q(4) + Q(5) + Q(6) + Q(7) + Kp(2) + Kp(3) + Kp(4) + Kp(5) + Kp(6) + Kp(7) + V(2), {
        0: [TK(2), "s_waitcnt vmcnt(0)"] + PFK(2), 1: [WVR(4, 0)], 2: [WVR(4, 1)], 3: PFK(3), 4: [WVR(5, 0)], 5: [WVR(5, 1)], 6: PFK(0)[1:], 7: [KTR(1)],
        8: (["v_mov_b32 v34, s64", "v_mov_b32 v35, s66", "v_mov_b32 v33, 0", "s_lshl_b32 s68, s%d, 3" % S_STEP, "s_add_u32 s68, s68, s100",
             "buffer_store_dwordx2 v[34:35], v33, %s, s68 offen" % W] if o.get('plog2') else []),
        9: PFK(1), 10: [KTR(0)], 11: PFK(4), 12: [stkvm],
        13: [qf[0]], 14: [qf[1]], 15: [qf[5]], 16: fl[0] + [qf[6]], 17: [qf[2]], 18: [qf[3]], 19: fl[1] + [qf[7]], 20: [qf[8]],
        21: [qf[4]], 22: [qf[9]], 23: ["s_add_u32 s%d, s%d, 0x20000" % (sKM, sKM)], 24: [WVR(6, 0)], 25: [WVR(6, 1)]})
    for t in range(2):
        if o.get('pk', 1): k("v_pk_add_f32 %s, %s, %s", v(AK + 4 * t, 2), v(AK + 4 * t, 2), v(AK + 4 * t + 2, 2))
        else:
            for x in FA(AK + 4 * t): k(x)
        k(CV(AQ + 4 * t + 1, AK + 4 * t, AK + 4 * t + 1))
    k("ds_write2_b64 %s, %s, %s offset0:0 offset1:16", v(aXW), v(AQ, 2), v(AQ + 4, 2))
    tick(k, 5)
    X = AQ
    XR = lambda i: "ds_read_b64_tr_b16 %s, %s offset:%d" % (v(X + 2 * i, 2), v(aXR), (i >> 1) * 1280 + (i & 1) * 128)
    ONES, PM, LA, E, T1, T2, T0 = G, G + 4, G + 8, G + 12, G + 20, G + 24, G + 28
    O1 = "0x3f803f80"
    nb = o.get('xb', 3)
    KORD[:] = [0, 1, 2, 4, 3, 5, 6, 7]
    f = {0: [WVR(7, 0), MV(KVM, v(AQ + 1))], 1: [WVR(7, 1), MV(KVM + 1, v(AQ + 5))], 2: [KTR(2), MV(ONES, O1)]}
    BAR = [".aw_writes", "s_barrier", TK(6)]
    if nb == 3:
        f.update({3: BAR + [XR(0), XR(1)], 4: [XR(2), XR(3)], 5: [XR(4), XR(5)], 6: [XR(6), XR(7)], 7: [KTR(3), KTR(4)], 8: [KTR(5), KTR(6)], 9: [KTR(7)]})
    elif nb == 4:
        f.update({3: [KTR(3), MV(ONES + 1, O1)], 4: BAR + [XR(0), XR(1)], 5: [XR(2), XR(3)], 6: [XR(4), XR(5)], 7: [XR(6), XR(7)], 8: [KTR(4), KTR(5)], 9: [KTR(6), KTR(7)]})
    elif nb == 5:
        f.update({3: [KTR(3), MV(ONES + 1, O1)], 4: [KTR(4), MV(PM + 1, "0")], 5: BAR + [XR(0), XR(1)], 6: [XR(2), XR(3)], 7: [XR(4), XR(5)], 8: [XR(6), XR(7)], 9: [KTR(5)]})
    elif nb == 6:
        f.update({3: [KTR(3), MV(ONES + 1, O1)], 4: [KTR(4), MV(PM + 1, "0")], 5: [KTR(5)], 6: BAR + [XR(0), XR(1), XR(2)], 7: [XR(3), XR(4)], 8: [XR(5), XR(6)], 9: [XR(7)]})
    weave(k, V(4) + V(3) + V(5) + V(6) + V(7), f)
    pass
    vf = []
    for t in range(2): vf += FA(AV + 4 * t) + [CV(KVM + 2 + t, AV + 4 * t, AV + 4 * t + 1)]
    t1 = lambda kb: MF(T1, MA + 4 * KORD[kb], X + 4 * kb, kb == 0)
    t2 = lambda kb: MF(T2, MA + 4 * KORD[4 + kb], X + 4 * kb, kb == 0)
    t0 = lambda kb: MF(T0, X + 4 * kb, X + 4 * kb, kb == 0)
    weave(k, [t1(0), t0(0), t1(1), t0(1), t1(2), t0(2)], {0: [TK(7)] + ([KTR(6)] if nb >= 5 else []) + ([MV(ONES + 1, O1)] if nb == 3 else []) + [MV(ONES + 2, O1)], 1: ([KTR(7)] if nb >= 5 else []) + vf[0:2], 2: vf[3:5], 3: [vf[2], vf[5]],
        4: [MV(PM + 1, "0"), MV(PM + 2, "0")], 5: ["s_cmp_ge_u32 s%d, %d" % (S_STEP, o.get('kvl', 59)), "s_cbranch_scc1 %s" % lexit, bexit + ":", MV(ONES + 3, O1)]})
    weave(k, [t1(3), t2(0), t0(3), t2(1), t2(2), t2(3)], {
        2: [EX(E, T1)], 3: [EX(E + 1, T1 + 1)], 4: [EX(E + 2, T1 + 2)],
        5: [EX(E + 3, T1 + 3), EX(T0, T0 + 2), EX(T0 + 1, T0 + 3), CV(E, E, E + 1), CV(E + 1, E + 2, E + 3), CV(PM, T0, T0 + 1), CV(PM + 3, T0, T0 + 1)]})
    O = AV
    Z = lambda i: "v_mov_b32 %s, 0" % v(MA + i)
    M16z = lambda d, A, B: "v_mfma_f32_16x16x16_bf16 %s, %s, %s, 0" % (v(d, 4), v(A, 2), v(B, 2))
    tick(k, 8)
    def pv(k, fast):
        weave(k, [M16z(LA, PM, ONES), M16z(O, PM, KVM + 2), M16z(O + 4, PM + 2, KVM + 2)],
              {0: [EX(E + 4, T2)], 1: [EX(E + 5, T2 + 1)], 2: [EX(E + 6, T2 + 2), EX(E + 7, T2 + 3), CV(E + 2, E + 4, E + 5), CV(E + 3, E + 6, E + 7)]} if fast else {})
        weave(k, [MF(LA, E, ONES, False), MF(O, E, VT, False), MF(O + 4, E, VT + 4, False)], {})
    pv(k, True)
    k("v_rcp_f32 %s, %s", v(LA), v(LA))
    k("v_rcp_f32 %s, %s", v(LA + 1), v(LA + 1))
    k.L(b_sm)
    for t in range(2):
        if o.get('pk', 1): k("v_pk_mul_f32 %s, %s, %s", v(O + 4 * t, 2), v(O + 4 * t, 2), v(LA, 2))
        else:
            k("v_mul_f32 %s, %s, %s", v(O + 4 * t), v(O + 4 * t), v(LA))
            k("v_mul_f32 %s, %s, %s", v(O + 4 * t + 1), v(O + 4 * t + 1), v(LA + 1))
        k(CV(E + 4 + t, O + 4 * t, O + 4 * t + 1))
    k("ds_write_b64 %s, %s", v(aOW), v(E + 4, 2))
    tick(k, 9)
    Z2 = lambda i: "v_mov_b64 %s, 0" % v(MA + 2 * i, 2)
    ZP = X + 8 + 6
    ZM = lambda r: "v_mfma_f32_32x32x8_bf16 %s, %s, %s, 0" % (v(r, 16), v(ZP, 2), v(ZP, 2))
    k("v_max3_f32 %s, |%s|, |%s|, |%s|", v(X), v(T1), v(T1 + 1), v(T1 + 2))
    k("v_max3_f32 %s, |%s|, |%s|, |%s|", v(X + 1), v(T1 + 3), v(T2), v(T2 + 1))
    k("v_max3_f32 %s, |%s|, |%s|, %s", v(X), v(T2 + 2), v(T2 + 3), v(X))
    k("v_max3_f32 %s, |%s|, |%s|, %s", v(X + 1), v(T0 + 2), v(T0 + 3), v(X + 1))
    k("v_mov_b64 %s, 0", v(ZP, 2))
    k("v_max_f32 %s, %s, %s", v(X), v(X), v(X + 1))
    k("v_cmp_lt_f32 vcc, s%d, %s", sTHR, v(X))
    k("s_and_b64 vcc, vcc, %s", s(sMASK, 2))
    k("s_cbranch_scc1 %s", r_sm)
    k("s_mov_b32 s%d, 0x42700000", sTHR)
    k(ZM(MA))
    k(".aw_writes"); k("s_barrier")
    tick(k, 10)
    OA = AQ
    for i in range(4):
        k("ds_read_b64_tr_b16 %s, %s offset:%d", v(OA + 2 * i, 2), v(aXR), (L_OB - L_XB) + (i >> 1) * 1280 + (i & 1) * 128)
        if i == o.get('zp', 1): k(ZM(MA + 16))
    PK = AK
    SB = {(4, 0): G, (5, 0): G + 8, (4, 1): G + 16, (5, 1): G + 24, (6, 0): VT, (7, 0): AV, (6, 1): G, (7, 1): G + 8}
    WOB = lambda nt, kbo: (WOR_ + (nt * 2 + kbo) * 8) if nt < 4 else SB[(nt, kbo)]
    WR = lambda nt, kbo, h: "ds_read_b128 %s, %s offset:%d" % (v(SB[(nt, kbo)] + 4 * h, 4), v(aWO), ((nt - 4) * 2 + kbo) * 2048 + h * 1024)
    WS_ = lambda nt, kbo: SMF(MA + 4 * nt, OA + 4 * kbo, WOB(nt, kbo))
    AD = lambda nt, b: "v_add_f32 %s, %s, %s" % (v(MA + 4 * nt + b), v(MA + 4 * nt + b), v(MA + 4 * nt + 2 + b))
    PC = lambda sx, b, hh: CV(PK + 4 * sx + 2 * b + hh, MA + 4 * (4 * sx + 2 * hh) + b, MA + 4 * (4 * sx + 2 * hh + 1) + b)
    ST1 = lambda sx: "buffer_store_dwordx4 %s, %s, %s, s%d offen %s" % (v(PK + 4 * sx, 4), v(aH1S), W, sH1S1 if sx else sH1S0, stf)
    PA = lambda nt: "v_pk_add_f32 %s, %s, %s" % (v(MA + 4 * nt, 2), v(MA + 4 * nt, 2), v(MA + 4 * nt + 2, 2))
    TG = lambda sx: "v_and_or_b32 %s, %s, -2, s%d" % (v(PK + 4 * sx), v(PK + 4 * sx), sPH)
    k(WR(4, 0, 0)); k(WR(4, 0, 1))
    A2 = lambda nt: [PA(nt)] if o.get('pk', 1) else [AD(nt, 0), AD(nt, 1)]
    P2 = lambda tp, b: CV(PK + 2 * tp + b, MA + 8 * tp + b, MA + 8 * tp + 4 + b)
    T2_ = lambda tp: "v_and_or_b32 %s, %s, -2, s%d" % (v(PK + 2 * tp), v(PK + 2 * tp), sPH)
    S2 = lambda tp: "buffer_store_dwordx2 %s, %s, %s, s%d offen offset:%d %s" % (v(PK + 2 * tp, 2), v(aH1S), W, sH1S1 if tp >> 1 else sH1S0, (tp & 1) * 2048, stf)
    fin = lambda tp: [AD(2 * tp + 1, 0), AD(2 * tp + 1, 1), P2(tp, 0), P2(tp, 1), T2_(tp), S2(tp)]
    fa = {0: [TK(11), WR(5, 0, 0)], 1: [WR(5, 0, 1)], 2: [WR(4, 1, 0)], 3: [WR(4, 1, 1)],
        4: [WR(5, 1, 0), AD(0, 0)], 5: [WR(5, 1, 1), AD(0, 1)] + fin(0) + [TK(12)], 6: [WR(6, 0, 0), WR(6, 0, 1)], 7: [WR(7, 0, 0), WR(7, 0, 1)],
        8: [WR(6, 1, 0), AD(2, 0)], 9: [WR(6, 1, 1), AD(2, 1), WR(7, 1, 0), WR(7, 1, 1)] + fin(1),
        12: [AD(4, 0)], 13: [AD(4, 1)] + fin(2),
        15: A2(6) + A2(7) + [P2(3, 0), P2(3, 1), T2_(3), S2(3)]}
    if o.get('lazy', 0):
        fa = {0: [TK(11), WR(5, 0, 0)], 1: [WR(5, 0, 1)], 2: [WR(4, 1, 0)], 3: [WR(4, 1, 1)],
            4: [WR(5, 1, 0), AD(0, 0)], 5: [WR(5, 1, 1), AD(0, 1)], 6: [WR(6, 0, 0), AD(1, 0)], 7: [WR(6, 0, 1), WR(7, 0, 0), WR(7, 0, 1)] + fin(0)[1:] + [TK(12)],
            8: [WR(6, 1, 0), AD(2, 0)], 9: [WR(6, 1, 1), AD(2, 1)], 10: [WR(7, 1, 0), AD(3, 0)], 11: [WR(7, 1, 1)] + fin(1)[1:],
            12: [AD(4, 0)], 13: [AD(4, 1)], 14: [AD(5, 0)],
            15: fin(2)[1:] + A2(6) + A2(7) + [P2(3, 0), P2(3, 1), T2_(3), S2(3)]}
    weave(k, [WS_(0, 0), WS_(1, 0), WS_(0, 1), WS_(1, 1), WS_(2, 0), WS_(3, 0), WS_(2, 1), WS_(3, 1), WS_(4, 0), WS_(5, 0),
              WS_(4, 1), WS_(5, 1), WS_(6, 0), WS_(7, 0), WS_(6, 1), WS_(7, 1)], fa)
    tick(k, 13)
    if o.get('plog'):
        k("s_mov_b32 m0, s%d", S_STEP)
        k("v_writelane_b32 v1, s64, m0")
    RD = MA + 16; HT = MA + 20; H1 = MA + 8; H1B = MA + 24
    h1lb = lambda b: ["buffer_load_dwordx4 %s, %s, %s, s%d offen sc1" % (v(b, 4), v(aL16), W, sH1L),
           "buffer_load_dwordx4 %s, %s, %s, s%d offen offset:1024 sc1" % (v(b + 4, 4), v(aL16), W, sH1L)]
    redb = lambda b: [MF(RD, SEL, b, True), MF(RD, SEL, b + 4, False),
           "v_bitop3_b32 %s, %s, %s, s%d bitop3:0x7e" % (v(HT), v(b), v(b + 4), sPH), "v_and_b32 %s, 1, %s" % (v(HT), v(HT)),
           "v_cmp_ne_u32 vcc, 0, %s" % v(HT)]
    h1l = h1lb(H1); red = redb(H1)
    lde = lambda b: ["buffer_load_dwordx4 %s, %s, %s, s%d offen sc1" % (v(b, 4), v(aL16), W, sH2L),
                     "buffer_load_dwordx4 %s, %s, %s, s%d offen offset:1024 sc1" % (v(b + 4, 4), v(aL16), W, sH2L)]
    KAV = "v_mov_b32 %s, 0" % v(MA + 22)
    def warm(vl, ol, slots, per=o.get('per', 4)):
        while slots > 0:
            k(vl.pop(0) if vl else (KAV if o.get('ka', 0) else "s_nop 0")); slots -= 1
            r = min(per - 1, slots)
            while r > 0 and ol:
                x = ol.pop(0); k(x); c = 2 if x.startswith('ds_') else 1; r -= c; slots -= c
            if r > 0: k("s_nop %d", r - 1); slots -= r
    def spin(reg, n, lab, magic="0x7fc1"):
        for i in range(n):
            k("v_cmp_ne_u32 vcc, %s, %s", magic, v(reg))
            k("s_cbranch_vccnz %s", lab)
            if o.get('spn', 0): k("s_nop %d", o.get('spn') - 1)
    ok1 = k.lab(tag + "ok1"); rr1 = k.lab(tag + "r1"); ar1 = k.lab(tag + "ar1"); ar0 = k.lab(tag + "ar0")
    lp1 = k.lab(tag + "lp1"); lB = k.lab(tag + "gB"); lA2 = k.lab(tag + "gA2")
    k("s_cmp_ge_u32 s%d, 2", S_WAVE)
    k(".aw_fork")
    k("s_cbranch_scc1 %s", lB)
    for g in 'ab':
        if g == 'b':
            k.L(lB); k(".aw_join")
        hv = ["v_mov_b64 %s, 0" % v(AQ + 2 * i, 2) for i in range(12)] + ["v_xor_b32 %s, 0x2000, %s" % (v(aKT), v(aKT))]
        ho = [WVR(n, h) for n in range(4) for h in range(2)] + \
             ["s_mov_b32 s%d, s%d" % (sH2R, sH2S), "s_xor_b32 s%d, s%d, 0x2000" % (sH2S, sH2S)] + \
             ["s_xor_b32 s%d, s%d, 0x40000" % (r, r) for r in (sH1S0, sH1S1)] + \
             ["s_xor_b32 s%d, s%d, 0x2000" % (sH2L, sH2L), "s_add_u32 s%d, s%d, 1" % (S_STEP, S_STEP), "s_mov_b32 m0, s%d" % sKTD, "s_mov_b32 s%d, 0" % sCNT]
        warm(hv, ho, o.get('p0' + g, 24 if g == 'a' else 44))
        tick(k, 3)
        for l in h1lb(H1B): k(l)
        warm(hv, ho, o.get('p1' + g, 54 if g == 'a' else 24))
        for l in h1l: k(l)
        warm(hv, ho, o.get('w1' + g, 2 if g == 'a' else 14))
        assert not hv and not ho
        k(".aw_all")
        if g == 'a': k("s_branch %s", lp1)
    k.L(lp1)
    spin(H1B + 3, o.get('ns1', 24), ar0)
    k.L(ar0)
    k("s_waitcnt vmcnt(3)")
    tick(k, 4)
    k(redb(H1B)[0])
    k("s_waitcnt vmcnt(2)")
    for l in redb(H1B)[1:]: k(l)
    k("s_cbranch_vccnz %s", rr1)
    k.L(ok1)
    for sh in (4, 8):
        for r in (RD, RD + 1): k("v_add_f32_dpp %s, %s, %s row_ror:%d row_mask:0xf bank_mask:0xf", v(r), v(r), v(r), sh)
    k("v_cvt_pk_bf16_f32 %s, %s, %s", v(RD), v(RD), v(RD + 1))
    k("buffer_store_dword %s, %s, %s, s%d offen %s", v(RD), v(aH2S), W, sH2S, stf)
    tick(k, 14)
    k(MV(HT, "-1"))
    k("buffer_store_dword %s, %s, %s, s%d offen %s", v(HT), v(aH2S), W, sH2R, stf)
    hv = ["v_mov_b64 %s, %s" % (v(VT + 2 * i, 2), v(VTN + 2 * i, 2)) for i in range(4)]
    ho = ["s_xor_b32 s%d, s%d, 0x40000" % (sH1L, sH1L), "s_bfe_u32 s%d, s%d, 0x10001" % (sPH, S_STEP), "s_mov_b32 s%d, 0" % sCNT]
    if mg:
        k("s_add_u32 s%d, s%d, 1", sT, S_STEP); k("v_cmp_ge_u32 vcc, s%d, v1", sT)
        k("s_cbranch_vccnz %s", r_kv)
        k.L(b_kv)
    k("s_cmp_ge_u32 s%d, 2", S_WAVE)
    k("s_cbranch_scc1 %s", lA2)
    warm([], [], o.get('p2a', 20))
    k.L(lA2)
    p2 = o.get('p2', [26, 30])
    warm(hv, ho, p2[0])
    assert not hv and not ho
    for l in lde(EB[0]): k(l)
    warm(hv, ho, p2[1])
    for l in lde(EB[1]): k(l)
    warm(hv, ho, o.get('w2', 15))
    k(".aw_all")
    k(".aw_off")
    k("s_branch %s", lpoll)
    k.L(lto)
    k("s_mov_b32 s%d, 0", S_LIM)
    k("s_waitcnt vmcnt(0)")
    k("s_branch %s", lS[0])
    k.L(rr1)
    if o.get('mask', 0): k("s_mov_b64 exec, vcc")
    for l in h1lb(H1B): k(l)
    if o.get('mask', 0): k("s_mov_b64 exec, -1")
    if tk: k("s_add_u32 s98, s98, 1")
    spin(H1 + 7, o.get('ns1', 24), ar1)
    k.L(ar1)
    k("s_waitcnt vmcnt(2)")
    for l in red: k(l)
    k("s_cbranch_vccz %s", ok1)
    if o.get('mask', 0): k("s_mov_b64 exec, vcc")
    for l in h1l: k(l)
    if o.get('mask', 0): k("s_mov_b64 exec, -1")
    if tk: k("s_add_u32 s96, s96, 1")
    k("s_add_u32 s%d, s%d, 1", sCNT, sCNT)
    k("s_cmp_lt_u32 s%d, s%d", sCNT, S_LIM)
    k("s_cbranch_scc1 %s", lp1)
    k("s_mov_b32 s%d, 0", S_LIM)
    k("s_branch %s", ok1)
    if mg:
        k.L(r_kv)
        kv_refresh(k, 1, b_kv)
    k.L(r_sm)
    k("v_max3_f32 %s, %s, %s, %s", v(X), v(T1), v(T1 + 1), v(T1 + 2))
    k("v_max3_f32 %s, %s, %s, %s", v(X), v(T1 + 3), v(T2), v(X))
    k("v_max3_f32 %s, %s, %s, %s", v(X), v(T2 + 1), v(T2 + 2), v(X))
    k("v_max3_f32 %s, %s, %s, %s", v(X), v(T2 + 3), v(T0 + 2), v(X))
    k("v_max_f32 %s, %s, %s", v(X), v(T0 + 3), v(X))
    xmax(k, X, X + 1)
    for r in [T1 + i for i in range(8)] + [T0 + 2, T0 + 3]: k("v_sub_f32 %s, %s, %s", v(r), v(r), v(X))
    for i in range(8): k(EX(E + i, T1 + i))
    k(EX(T0, T0 + 2)); k(EX(T0 + 1, T0 + 3))
    for i in range(4): k(CV(E + i, E + 2 * i, E + 2 * i + 1))
    k(CV(PM, T0, T0 + 1)); k(CV(PM + 3, T0, T0 + 1))
    pv(k, False)
    k("s_mov_b32 s%d, 0x7f800000", sTHR)
    k("v_rcp_f32 %s, %s", v(LA), v(LA))
    k("v_rcp_f32 %s, %s", v(LA + 1), v(LA + 1))
    k("s_waitcnt lgkmcnt(0)")
    k("s_branch %s", b_sm)
    k.L(lexit)
    k(stkvm)
    k("s_cmp_lt_u32 s%d, 63", S_STEP)
    k("s_cbranch_scc1 %s", bexit)
    k("s_waitcnt lgkmcnt(0)")

def role_chain(k, force_slow=False):
    mg = getattr(k, 'merged', False)
    srds = (('Wq', S_WQ), ('Wk', S_WK), ('Wv', S_WV), ('Wo', S_WO), ('mem0', 56))
    for n, r in srds: load_srd(k, n, r)
    def after_first(k):
        for n, r in srds[1:] + (('ws', S_WS), ('dbg', S_DBG)): fin_srd(k, n, r)
        chain_setup(k)
        merged_setup(k)
        k("s_mov_b32 s%d, 0", S_STEP)
    W = s(S_WS, 4)
    def h_arm(k):
        chain_arm(k)
        k("v_lshrrev_b32 v104, 1, v90")
        k("v_and_b32 v104, 6, v104")
        k("v_and_b32 v105, 1, v1")
        k("v_add_u32 v104, v104, v105")
        k("v_lshlrev_b32 v104, 10, v104")
        k("v_lshrrev_b32 v105, 1, v91")
        k("v_lshl_add_u32 v104, v105, 6, v104")
        k("v_and_b32 v105, 1, v91")
        k("v_lshl_add_u32 v104, v105, 4, v104")
        k("s_lshl_b32 s%d, s%d, 8", sT, S_WAVE)
        for j in range(2):
            k("buffer_load_dwordx4 %s, v104, %s, s%d offen offset:%d", v(40 + 8 * j, 4), s(56, 4), sT, j * 128)
            k("buffer_load_dwordx4 %s, v104, %s, s%d offen offset:%d", v(44 + 8 * j, 4), s(56, 4), sT, j * 128 + 32)
        k("v_mov_b32 v107, 0")
        k("buffer_load_dword v118, v107, %s, 0 offen offset:%d sc1", s(S_DBG, 4), DBG_T)
        return 10
    lwarm = k.lab("CW"); lwend = k.lab("CWe")
    def h_mem0(k):
        lt = k.lab("CT"); lt2 = k.lab("CT2")
        k("v_cmp_eq_u32 vcc, 0, v118")
        k("s_cbranch_vccz %s", lt)
        wait_ready(k, 118, DBG_T)
        k.L(lt)
        k("v_readfirstlane_b32 s%d, v118", sT)
        k("s_cmp_lg_u32 s%d, s54", sT)
        k("s_cselect_b32 s100, 0x10001, 1")
        k("s_cbranch_scc0 %s", lt2)
        k("s_cmp_eq_u32 s101, 0")
        k("s_cbranch_scc1 %s", k.lswap)
        k.L(lt2)
        k("v_and_b32 v105, 2, v1")
        k("v_mul_u32_u24 v105, 0x10101, v105")
        k("v_and_b32 v106, 2, v1")
        k("v_lshl_add_u32 v105, v106, 24, v105")
        k("v_add_u32 v105, 0x05040100, v105")
        for j in range(2):
            for i in range(4):
                k("v_perm_b32 %s, %s, %s, v105", v(MA + 4 * j + i), v(44 + 8 * j + i), v(40 + 8 * j + i))
        k("v_mov_b32 v107, 0")
        k("buffer_load_dword v108, v107, %s, 0 offen offset:%d sc1", s(S_DBG, 4), DBG_READY)
        n = 1
        if k.copt.get('cwarm', 1):
            lpc = k.lab("pc")
            k("s_getpc_b64 s[60:61]")
            k.L(lpc)
            k("s_add_u32 s60, s60, %s-%s", lwarm, lpc)
            k("s_addc_u32 s61, s61, 0")
            k("s_lshl_b32 s%d, s%d, 13", sT, S_WAVE)
            k("v_lshlrev_b32 v104, 7, v1")
            k("v_min_u32 v105, %s-%s-4, v104", lwend, lwarm)
            k("global_load_dword v116, v105, s[60:61]")
            k("v_add_u32 v104, 0x2000, v104")
            k("v_min_u32 v105, %s-%s-4, v104", lwend, lwarm)
            k("global_load_dword v117, v105, s[60:61]")
            n += 2
        return n
    def h_announce(k):
        k("v_mov_b32 v106, s100")
        k("s_cmp_eq_u32 s%d, 0", S_WAVE)
        k("s_cselect_b32 s%d, 8, 0x1000", sT)
        k("v_mov_b32 v105, s%d", sT)
        k("s_mov_b64 exec, 1")
        k("buffer_atomic_add v106, v105, %s, 0 offen sc1", s(S_DBG, 4))
        k("s_mov_b64 exec, -1")
        return 1
    def h_flags(k):
        k("buffer_load_dword v109, %s, %s, s%d offen sc1", v(aFL), W, sQF)
        n = 1
        if k.copt.get('hwarm', 1):
            for base, x in ((sH1L, 0), (sH1L, 0x40000), (sH2L, 0), (sH2L, 0x2000)):
                k("s_xor_b32 s%d, s%d, 0x%x", sT, base, x)
                for off in (0, 1024):
                    k("buffer_load_dwordx4 v[112:115], %s, %s, s%d offen offset:%d sc1", v(aL16), W, sT, off)
                    n += 1
        return n
    def h_pf(k):
        k("s_waitcnt vmcnt(16)")
        k("v_cmp_eq_u32 vcc, 0, v108")
        k("s_or_b32 s%d, vcc_lo, vcc_hi", sSAFE)
        k("v_cmp_ge_u32 vcc, 1, v109")
        k("s_or_b32 s%d, s%d, vcc_lo", sSAFE, sSAFE)
        for p in range(4):
            for l in PFK(p): k(l)
        k("buffer_load_dword v110, v107, %s, 0 offen offset:8 sc1", s(S_DBG, 4))
        return 5
    def h3(k): return h_mem0(k) + h_announce(k)
    chain_load_weights(k, {-1: h_arm, 2: h3, 5: h_flags, 7: h_pf} if k.copt.get('ho', 0) == 0 else {-1: h_arm, 2: h_mem0, k.copt['ho']: h_announce, 5: h_flags, 7: h_pf}, {}, after_first)
    stamp(k, 2, 1, wgreg=S_HEAD, vt=120)
    if k.copt.get('dst'): k("s_memrealtime s[94:95]")
    if mg:
        lok = k.lab("CHf")
        k("s_cmp_eq_u32 s%d, 0", sSAFE)
        k("s_cbranch_scc1 %s", lok)
        wait_ready(k, 108)
        kv_refresh(k, 1)
        for p in range(4):
            for l in PFK(p): k(l)
        k.L(lok)
    k("s_mov_b32 s%d, 0", sSAFE)
    k("s_mov_b32 s%d, 0x42700000", sTHR)
    for l in PFK(4): k(l)
    k("s_waitcnt vmcnt(0)")
    k("v_readfirstlane_b32 s44, v110")
    for n in range(4):
        k(WVR(n, 0)); k(WVR(n, 1))
    for i in range(24): k("v_mov_b32 %s, 0", v(AQ + i))
    lp = k.lab("CHs"); ok = k.lab("CHok")
    k("v_mov_b32 %s, 0", v(KVM + 1))
    k("s_mov_b32 s%d, 0", sCNT)
    k.L(lp)
    k("s_and_b32 s45, s44, 0xffff")
    k("s_cmp_ge_u32 s45, 32")
    k("s_cbranch_scc1 %s", ok)
    k("buffer_load_dword %s, %s, %s, 0 offen offset:8 sc1", v(KVM), v(KVM + 1), s(S_DBG, 4))
    k("s_waitcnt vmcnt(0)")
    k("v_readfirstlane_b32 s44, %s", v(KVM))
    k("s_add_u32 s%d, s%d, 1", sCNT, sCNT)
    k("s_cmp_lt_u32 s%d, s%d", sCNT, S_LIM)
    k("s_cbranch_scc1 %s", lp)
    k("s_mov_b32 s%d, 0", S_LIM)
    k.L(ok)
    k("s_waitcnt vmcnt(0)")
    for i in range(8): k("v_mov_b32 %s, %s", v(VT + i), v(VTN + i))
    k("s_waitcnt lgkmcnt(0)")
    stamp(k, 2, 2, wgreg=S_HEAD, vt=56)
    if k.copt.get('dst'): k("s_memrealtime s[96:97]"); k("s_waitcnt lgkmcnt(0)")
    stamp(k, 2, 4, wgreg=S_HEAD, vt=56, cyc=True)
    tick_init(k)
    if k.copt.get('plog2'):
        k("s_lshl_b32 s100, s%d, 2", S_HEAD)
        k("s_add_u32 s100, s100, s%d", S_WAVE)
        k("s_lshl_b32 s100, s100, 9")
        k("s_add_u32 s100, s100, 0x%x", TS + 8 * 65536)
    k("s_mov_b32 m0, s%d", sKTD)
    k("v_mov_b32 v1, 0")
    lslow = k.lab("CHslow"); ldone = k.lab("CHdone")
    k("s_lshr_b32 s44, s44, 16")
    k("s_cmp_lg_u32 s44, %d", 0 if not force_slow else 77)
    k("s_cbranch_scc1 %s", lslow)
    n0 = len(k.lines)
    k.L(lwarm)
    chain_loop(k, "", "F")
    k.L(lwend)
    o = getattr(k, 'copt', {})
    if o.get('free'):
        body = k.lines[n0:]; out = []
        for l in body:
            ls = l.strip()
            if 's100' in ls: out.append(l); continue
            if ls.startswith('s_cbranch_vccnz'): continue
            if ls.startswith('s_cbranch_vccz Fs0v'): l = l.replace('s_cbranch_vccz', 's_branch')
            if ls.startswith('s_cbranch_scc1 Frsm'): continue
            if 'novmem' in o['free'] and (ls.startswith('buffer_') or 'vmcnt' in ls): continue
            if 'nowait' in o['free'] and 'vmcnt' in ls: continue
            out.append(l)
        k.lines[n0:] = out
    k("s_branch %s", ldone)
    k.L(lslow)
    chain_loop(k, "sc1", "S")
    k.L(ldone)
    if k.copt.get('plog'):
        k("s_lshl_b32 s100, s%d, 2", S_HEAD)
        k("s_add_u32 s100, s100, s%d", S_WAVE)
        k("s_lshl_b32 s100, s100, 8")
        k("s_add_u32 s100, s100, 0x%x", TS + 8 * 65536)
        k("v_lshrrev_b32 v40, 2, %s", v(aL16))
        k("buffer_store_dword v1, v40, %s, s100 offen", s(S_WS, 4))
    tick_dump(k)
    k("s_waitcnt vmcnt(0)")
    stamp(k, 2, 3, wgreg=S_HEAD, vt=56)
    dstamp(k, 7, 56); dstamp(k, 5, 56, False, 94); dstamp(k, 6, 56, False, 96); dstamp(k, 3, 56, True, 98)
    stamp(k, 2, 5, wgreg=S_HEAD, vt=56, cyc=True)
```

```python
import sys, json
from build_v1 import header_comments
from chain15 import *
from roles2 import *
KN = NAME + "_kernel"
def build(opts={}, stamps=False, ticks=False):
    k = K(); k.stamps = stamps; k.ticks = ticks; k.copt = opts; k.merged = True
    kernel_header(k, KN)
    lend = k.lab("END")
    lstamp(k, 6)
    if opts.get('dst'): k("s_memrealtime s[98:99]")
    k("s_cmp_ge_u32 s2, 256")
    k("s_cbranch_scc1 %s", lend)
    load_srd(k, 'ws', S_WS); load_srd(k, 'dbg', S_DBG)
    if opts.get('home'): k("s_xor_b32 s2, s2, %d", opts['home'])
    lane_wave(k)
    k("s_mov_b32 s%d, 400000", S_SPIN)
    if opts.get('allwarm'):
        law = k.lab("AW"); lpc = k.lab("AWpc")
        k("s_cmp_ge_u32 s2, 64")
        k("s_cbranch_scc1 %s", law)
        k("s_cmp_lg_u32 s%d, 3", S_WAVE)
        k("s_cbranch_scc1 %s", law)
        k("s_getpc_b64 s[60:61]")
        k.L(lpc)
        k("s_lshr_b32 s44, s2, 3")
        k("s_lshl_b32 s44, s44, 13")
        k("v_lshlrev_b32 v2, 7, v1")
        k("v_add_u32 v2, s44, v2")
        k("v_min_u32 v2, %s-%s, v2", lend, lpc)
        k("global_load_dword v119, v2, s[60:61]")
        k("global_load_dword v3, v2, s[60:61] offset:-64") if False else None
        k.L(law)
    ROLE = 5
    k("s_getreg_b32 s54, hwreg(HW_REG_XCC_ID)")
    k("s_and_b32 s54, s54, 7")
    k("s_add_u32 s54, s54, 1")
    k("s_mov_b32 s3, s2")
    k("s_mov_b32 s101, 0")
    lsw = k.lab("SWAP"); lrd = k.lab("ROLED"); lw = k.lab("WORK")
    k("s_or_b32 s44, s2, s%d", S_WAVE)
    k("s_cmp_lg_u32 s44, 0")
    k("s_cbranch_scc1 %s", lrd)
    k("s_waitcnt lgkmcnt(0)")
    fin_srd(k, 'dbg', S_DBG)
    k("v_mov_b32 v2, 0"); k("v_mov_b32 v3, %s", str(opts['die'] + 1) if 'die' in opts else "s54")
    k("buffer_store_dword v3, v2, %s, 0 offen offset:%d sc1", s(S_DBG, 4), DBG_T)
    k.L(lrd)
    k("s_and_b32 s%d, s3, 7", ROLE)
    k("s_lshl_b32 s%d, s%d, 5", ROLE, ROLE)
    k("s_lshr_b32 s3, s3, 3")
    k("s_add_u32 s%d, s%d, s3", ROLE, ROLE)
    k("s_cmp_ge_u32 s%d, 32", ROLE)
    k("s_cbranch_scc1 %s", lw)
    k.lswap = lsw
    role_chain(k, opts.get('slow', False))
    lstamp_dump(k, ROLE)
    k("s_branch %s", lend)
    k.L(lsw)
    lo = k.lab("SWo"); lp = k.lab("SWp"); ld = k.lab("SWd"); lc = k.lab("SWc")
    k("s_waitcnt vmcnt(0) lgkmcnt(0)")
    k("s_barrier")
    k("s_mov_b32 s101, 1")
    k("s_mov_b32 s3, s2")
    k("s_and_b32 s47, s2, 7")
    k("s_cmp_eq_u32 s47, 0")
    k("s_cselect_b32 s47, 1, 0")
    k("s_xor_b32 s46, s47, 1")
    k("v_mbcnt_lo_u32_b32 v1, -1, 0")
    k("v_mbcnt_hi_u32_b32 v1, -1, v1")
    k("s_lshl_b32 s44, s%d, 6", S_WAVE)
    k("v_add_u32 v0, s44, v1")
    k("s_cmp_lg_u32 s%d, 0", S_WAVE)
    k("s_cbranch_scc1 %s", lo)
    k("s_mov_b64 exec, 1")
    k("s_lshl_b32 s48, s47, 2")
    k("v_mov_b32 v2, 0"); k("v_mov_b32 v4, 1")
    k("buffer_atomic_add v4, v2, %s, s48 offen sc0 sc1", s(S_DBG, 4))
    k("s_lshl_b32 s49, s47, 4")
    k("s_lshl_b32 s50, s46, 4")
    k("s_add_u32 s51, s2, 1")
    k("s_lshl_b32 s51, s51, s49")
    k("s_waitcnt vmcnt(0)")
    k("v_readfirstlane_b32 s48, v4")
    k("s_cmp_ge_u32 s48, %d", opts.get('maxpair', 32))
    k("s_cbranch_scc1 %s", ld)
    k("s_lshl_b32 s48, s48, 2")
    k("s_add_u32 s48, s48, 64")
    k("v_mov_b32 v4, s51")
    k("buffer_atomic_or v4, v2, %s, s48 offen sc0 sc1", s(S_DBG, 4))
    k("s_mov_b32 s52, 0")
    k.L(lp)
    k("s_waitcnt vmcnt(0)")
    k("v_readfirstlane_b32 s53, v4")
    k("s_lshr_b32 s44, s53, s49")
    k("s_and_b32 s44, s44, 0xffff")
    k("s_cmp_eq_u32 s44, 0xffff")
    k("s_cbranch_scc1 %s", ld)
    k("s_lshr_b32 s53, s53, s50")
    k("s_and_b32 s53, s53, 0xffff")
    k("s_cmp_lg_u32 s53, 0")
    k("s_cbranch_scc1 %s", lc)
    k("s_cmp_gt_u32 s52, 400")
    k("s_cbranch_scc1 %s", ld)
    k("s_add_u32 s52, s52, 1")
    k("buffer_load_dword v4, v2, %s, s48 offen sc1", s(S_DBG, 4))
    k("s_cmp_le_u32 s52, 400")
    k("s_cbranch_scc1 %s", lp)
    k("s_waitcnt vmcnt(0)")
    k("s_lshl_b32 s53, 0xffff, s50")
    k("s_or_b32 s53, s53, s51")
    k("v_mov_b32 v4, s53"); k("v_mov_b32 v5, s51")
    k("buffer_atomic_cmpswap v[4:5], v2, %s, s48 offen sc0 sc1", s(S_DBG, 4))
    k("s_branch %s", lp)
    k.L(lc)
    k("s_sub_u32 s3, s53, 1")
    k("s_and_b32 s3, s3, 255")
    k.L(ld)
    k("v_mov_b32 v3, s3"); k("v_mov_b32 v2, 163328")
    k("ds_write_b32 v2, v3")
    k("s_mov_b64 exec, -1")
    k("s_waitcnt lgkmcnt(0)")
    k.L(lo)
    k("s_barrier")
    k("v_mov_b32 v2, 163328")
    k("ds_read_b32 v3, v2")
    k("s_waitcnt lgkmcnt(0)")
    k("v_readfirstlane_b32 s3, v3")
    k("s_branch %s", lrd)
    k.L(lw)
    srds = [('x', S_X), ('out', S_O)]
    for n, r in srds: load_srd(k, n, r)
    k("s_waitcnt lgkmcnt(0)")
    for n, r in srds + [('ws', S_WS), ('dbg', S_DBG)]: fin_srd(k, n, r)
    k("s_mov_b32 s100, s54")
    def tcheck(k):
        lnt = k.lab("NT"); lgo = k.lab("NTs")
        k("s_cmp_lg_u32 s101, 0")
        k("s_cbranch_scc1 %s", lnt)
        wait_ready(k, 2, DBG_T)
        k("v_readfirstlane_b32 s44, v2")
        k("s_cmp_lg_u32 s44, s100")
        k("s_cbranch_scc1 %s", lnt)
        k("s_mov_b32 s54, s100")
        k("s_branch %s", lsw)
        k.L(lnt)
    lz = k.lab("Z")
    k("s_lshl_b32 s44, s101, 8")
    k("s_or_b32 s44, s44, s2")
    k("s_cmp_lg_u32 s44, 7")
    k("s_cbranch_scc1 %s", lz)
    k("s_cmp_lg_u32 s%d, 1", S_WAVE)
    k("s_cbranch_scc1 %s", lz)
    for i in range(4): k("v_mov_b32 v%d, 0", 4 + i)
    k("v_lshlrev_b32 v8, 4, v1")
    k("s_mov_b32 s40, 0x%x", FLAGS)
    for i in range(2): k("buffer_store_dwordx4 v[4:7], v8, %s, s40 offen offset:%d sc1", s(S_WS, 4), i * 1024)
    k("v_lshlrev_b32 v8, 7, v1")
    for i in range(7):
        k("s_mov_b32 s40, 0x%x", FLAGS + 0x2000 + i * 0x2000)
        k("buffer_store_dwordx4 v[4:7], v8, %s, s40 offen sc1", s(S_WS, 4))
    k("v_mov_b32 v9, 1")
    k("s_waitcnt vmcnt(0)")
    k("s_mov_b64 exec, 1")
    k("buffer_store_dword v9, v4, %s, 0 offen offset:%d sc1", s(S_DBG, 4), DBG_READY)
    k("s_mov_b64 exec, -1")
    k.L(lz)
    k("s_cmp_ge_u32 s%d, 256", ROLE)
    k("s_cbranch_scc1 %s", lend)
    stamp(k, 3, 0, wgreg=ROLE, vt=120)
    GRP, TK_, SEG, FO, FI = 54, 55, 7, 56, 57
    k("s_lshr_b32 s%d, s%d, 5", GRP, ROLE)
    k("s_and_b32 s%d, s%d, 31", TK_, ROLE)
    lq = k.lab("DOQKV"); l2 = k.lab("ROLE2")
    k("s_cmp_ge_u32 s%d, 2", GRP)
    k("s_cbranch_scc1 %s", lq)
    k("s_lshl_b32 s%d, s%d, 2", FO, TK_)
    k("s_add_u32 s%d, s%d, 0x%x", FO, FO, FLAGS + F_XN)
    def ln_after(k, scount):
        ls = k.lab("LNs")
        k("s_cmp_lg_u32 s%d, 1", scount)
        k("s_cbranch_scc1 %s", ls)
        tcheck(k)
        wait_ready(k, 2)
        k.L(ls)
        set_flag(k, FO, "s%d" % scount, 2)
    role_ln1(k, TK_, 4, ln_after)
    k("s_branch %s", l2)
    k.L(lq)
    k("s_sub_u32 s58, s%d, 64", ROLE)
    def pre_loop(k):
        tcheck(k)
        wait_ready(k, 2)
        k("v_and_b32 v8, 31, v1")
        k("v_lshlrev_b32 v8, 2, v8")
        k("s_mov_b32 s%d, 0x%x", FI, FLAGS + F_XN)
        k("s_mov_b32 s%d, 0", SEG)
        wait_flags(k, 8, FI, SEG, 2)
        k("s_lshl_b32 s%d, s32, 1", FO)
        k("s_add_u32 s%d, s%d, s34", FO, FO)
        k("s_lshl_b32 s%d, s%d, 2", FO, FO)
        k("s_lshl_b32 s40, s33, 5")
        k("s_add_u32 s%d, s%d, s40", FO, FO)
        k("s_add_u32 s%d, s%d, 0x%x", FO, FO, FLAGS + F_QF)
        k("s_sub_u32 s%d, s34, 3", SEG)
    def q_publish(k):
        k("s_max_i32 s40, s%d, 0", SEG)
        set_flag(k, FO, "s40", 2, drain=False)
        k("s_add_u32 s%d, s%d, 2", SEG, SEG)
    def q_pre_dma(k):
        ls = k.lab("QPd")
        k("s_cmp_lg_u32 s52, 8")
        k("s_cbranch_scc1 %s", ls)
        k("s_mov_b32 s58, 3")
        wait_flags(k, 8, FI, 58, 2)
        k.L(ls)
    for _ in range(opts.get('wdelay', 0)): k("s_sleep 37")
    if opts.get('qdelay'):
        lqd = k.lab("QD"); lqo = k.lab("QDo")
        k("s_cmp_lt_u32 s58, 128")
        k("s_cbranch_scc1 %s", lqo)
        k("v_mov_b32 v3, 0"); k("s_mov_b32 s59, 0")
        k.L(lqd)
        k("buffer_load_dword v2, v3, %s, 0 offen offset:8 sc1", s(S_DBG, 4))
        k("s_waitcnt vmcnt(0)")
        k("v_readfirstlane_b32 s40, v2")
        k("s_and_b32 s40, s40, 0xffff")
        k("s_cmp_ge_u32 s40, 32")
        k("s_cbranch_scc1 %s", lqo)
        k("s_sleep 16")
        k("s_add_u32 s59, s59, 1")
        k("s_cmp_lt_u32 s59, 20000")
        k("s_cbranch_scc1 %s", lqd)
        k.L(lqo)
    role_qkv(k, 58, q_pre_dma, q_publish, pre_loop)
    set_flag(k, FO, "0x80", 2)
    k.L(l2)
    stamp(k, 3, 1, wgreg=ROLE, vt=120)
    dstamp(k, 8, 120)
    k("s_waitcnt vmcnt(0)")
    k("s_barrier")
    lur = k.lab("UR"); ldn = k.lab("DN"); lrd = k.lab("RD"); lfin = k.lab("FIN")
    if opts.get('nowork'): k("s_branch %s", lfin)
    k("s_cmp_ge_u32 s%d, 4", GRP)
    k("s_cbranch_scc1 %s", lur)
    k("s_sub_u32 s%d, s%d, 1", SEG, GRP)
    k("s_lshl_b32 s%d, s%d, 12", FO, SEG)
    k("s_lshl_b32 s40, s%d, 7", TK_)
    k("s_add_u32 s%d, s%d, s40", FO, FO)
    k("s_add_u32 s%d, s%d, 0x%x", FO, FO, FLAGS + F_BF)
    def wait_qkv(k, sseg):
        lsk = k.lab("wq")
        k("s_cmp_lt_u32 s%d, s72", sseg)
        k("s_cbranch_scc1 %s", lsk)
        k("v_min_u32 v3, 5, v1")
        k("v_lshlrev_b32 v3, 2, v3")
        k("s_lshl_b32 s%d, s34, 5", FI)
        k("s_add_u32 s%d, s%d, 0x%x", FI, FI, FLAGS + F_QF)
        wait_flags(k, 3, FI, sseg, 2)
        k("v_cmp_gt_u32 vcc, 0x80, v2")
        k("s_cmp_eq_u64 vcc, 0")
        k("s_cselect_b32 s72, 64, 0")
        k.L(lsk)
        return
        k("v_min_u32 v3, 2, v1")
        k("v_lshlrev_b32 v3, 3, v3")
        k("s_and_b32 s%d, s%d, 1", FI, sseg)
        k("s_lshl_b32 s%d, s%d, 2", FI, FI)
        k("s_lshl_b32 s58, s34, 5")
        k("s_add_u32 s%d, s%d, s58", FI, FI)
        k("s_add_u32 s%d, s%d, 0x%x", FI, FI, FLAGS + F_QF)
        wait_flags(k, 3, FI, sseg, 2)
    def wait_kvm(k, sseg):
        k("v_and_b32 v3, 3, v1")
        k("v_lshlrev_b32 v3, 7, v3")
        k("s_lshl_b32 s%d, s34, 9", FI)
        k("s_add_u32 s%d, s%d, 0x%x", FI, FI, FLAGS + F_KF)
        wait_flags(k, 3, FI, sseg, 2)
    H = opts.get('hint', 1)
    k.narm = opts.get('narm', 2) if H else 0
    A0 = 64 - 3 * k.narm
    def publish(k, sseg):
        k("s_lshl_b32 s58, s%d, 1", sseg)
        k("s_add_u32 s58, s58, 2")
        set_flag(k, FO, "s58", 2)
    def hint(k, sseg, bar=False):
        l = k.lab("hn")
        k("s_cmp_lt_u32 s%d, %d", sseg, A0)
        k("s_cbranch_scc1 %s", l)
        if bar: k("s_barrier")
        k("s_lshl_b32 s58, s%d, 1", sseg)
        k("s_add_u32 s58, s58, 1")
        set_flag(k, FO, "s58", 2, drain=False)
        k.L(l)
    def wfin(va):
        def f(k, sseg):
            k("s_lshl_b32 s58, s%d, 1", sseg)
            k("s_add_u32 s58, s58, 1")
            wait_flags(k, va, FI, 58, 2)
        return f
    def wnorm(va):
        def f(k, sseg):
            k("s_cmp_lt_u32 s%d, %d", sseg, A0)
            k("s_addc_u32 s58, s%d, s%d", sseg, sseg)
            wait_flags(k, va, FI, 58, 2, wave0=True)
        return f
    if not H: hint = None
    k("s_mov_b32 s72, 0")
    role_bc(k, TK_, SEG, 3, wait_qkv, wait_kvm, publish, hint)
    dstamp(k, 10, 120); dstamp(k, 13, 120, False, 76); dstamp(k, 2, 120, True, 76)
    k("s_branch %s", lfin)
    k.L(lur)
    k("s_cmp_eq_u32 s%d, 7", GRP)
    k("s_cbranch_scc1 %s", ldn)
    k("s_sub_u32 s%d, s%d, 4", SEG, GRP)
    k("s_lshl_b32 s%d, s%d, 12", FI, SEG)
    k("s_cmp_ge_u32 s%d, 22", TK_)
    k("s_cbranch_scc1 %s", lrd)
    k("s_lshl_b32 s40, s%d, 7", TK_)
    k("s_add_u32 s%d, s%d, s40", FO, FI)
    k("s_add_u32 s%d, s%d, 0x%x", FO, FO, FLAGS + F_UF)
    k("s_add_u32 s%d, s%d, 0x%x", FI, FI, FLAGS + F_RF)
    k("v_and_b32 v13, 7, v1")
    k("v_lshlrev_b32 v13, 7, v13")
    role_up(k, TK_, SEG, 3, None, None, publish, wnorm(13), hint, wfin(13))
    dstamp(k, 12, 120)
    k("s_branch %s", lfin)
    k.L(lrd)
    k("s_cmp_ge_u32 s%d, 30", TK_)
    k("s_cbranch_scc1 %s", lfin)
    k("s_sub_u32 s%d, s%d, 22", TK_, TK_)
    k("s_lshl_b32 s40, s%d, 7", TK_)
    k("s_add_u32 s%d, s%d, s40", FO, FI)
    k("s_add_u32 s%d, s%d, 0x%x", FO, FO, FLAGS + F_RF)
    k("s_add_u32 s%d, s%d, 0x%x", FI, FI, FLAGS + F_BF)
    k("v_and_b32 v15, 31, v1")
    k("v_lshlrev_b32 v15, 7, v15")
    role_red(k, TK_, SEG, 3, wnorm(15), publish, hint, wfin(15))
    dstamp(k, 11, 120)
    k("s_branch %s", lfin)
    k.L(ldn)
    k("s_lshr_b32 s72, s%d, 4", TK_)
    k("s_mov_b32 s%d, 0", SEG)
    k("s_and_b32 s%d, s%d, 15", TK_, TK_)
    k("v_min_u32 v13, 21, v1")
    k("v_lshlrev_b32 v13, 7, v13")
    def wait_up(k, sseg):
        k("s_mul_i32 s58, s%d, 43", sseg)
        k("s_lshr_b32 s58, s58, 7")
        k("s_mul_i32 s58, s58, 3")
        k("s_sub_u32 s58, s%d, s58", sseg)
        k("s_lshl_b32 s%d, s58, 12", FI)
        k("s_add_u32 s%d, s%d, 0x%x", FI, FI, FLAGS + F_UF)
        wnorm(13)(k, sseg)
    role_dn(k, TK_, SEG, 1, 72, wait_up, wfin(13) if H else None)
    k('s_waitcnt lgkmcnt(0)'); dstamp(k, 14, 120, False, 76); dstamp(k, 15, 120, False, 78)
    k.L(lfin)
    stamp(k, 3, 2, wgreg=ROLE, vt=120)
    dstamp(k, 9, 120); dstamp(k, 3, 120, True, 98); dstamp(k, 4, 120, False, 98)
    lstamp_dump(k, ROLE)
    k.L(lend)
    k("s_endpgm")
    body = insert_nops(auto_wait(k.lines))
    hdr = header_comments([])
    hdr.append('; @launch grid=(256,1,1) block=(256,1,1) lds=163840')
    return '\n'.join(hdr) + '\n.amdgcn_target "amdgcn-amd-amdhsa--gfx950"\n.text\n' + '\n'.join(body) + \
        '\n.section .rodata,"a"\n.p2align 6\n' + kernel_desc(KN)
if __name__ == '__main__':
    o = {"lazy": 1, "p0a": 38, "p0b": 38, "p1a": 32, "p1b": 32, "p2": [26, 36], "w1a": 14, "p2a": 4, "hbc": 22, "hr": 1, "hu": 1, "hu2": 12, "narm": 3, "kvl": 60, "slpk": 4, "w1": 14, "b0": 6, "w2": 14, "ns1": 0, "ns2": 0, "ho": 4}
    if len(sys.argv) > 1: o.update(json.loads(sys.argv[1]))
    open('m.s', 'w').write(build(o))
    open('ms.s', 'w').write(build(o, stamps=True))
```

```python
import re

_REG = re.compile(r'^(-|abs\(|\|)?([vas])(\d+)\)?\|?$')
_RNG = re.compile(r'^(-)?([vas])\[(\d+):(\d+)\]$')

def regs_of(op):
    op = op.strip()
    m = _RNG.match(op)
    if m:
        return [(m.group(2), i) for i in range(int(m.group(3)), int(m.group(4)) + 1)]
    m = _REG.match(op)
    if m:
        return [(m.group(2), int(m.group(3)))]
    if op == 'vcc':
        return [('s', 106), ('s', 107)]
    if op == 'vcc_lo':
        return [('s', 106)]
    if op == 'vcc_hi':
        return [('s', 107)]
    if op == 'exec':
        return [('s', 126), ('s', 127)]
    if op == 'exec_lo':
        return [('s', 126)]
    if op == 'exec_hi':
        return [('s', 127)]
    if op == 'm0':
        return [('s', 124)]
    return []

TRANS = ('v_exp_f32', 'v_log_f32', 'v_rcp_f32', 'v_rsq_f32', 'v_sqrt_f32', 'v_sin_f32', 'v_cos_f32',
         'v_rcp_iflag_f32')

class Ins:
    __slots__ = ('text', 'mn', 'cls', 'wr', 'rd', 'a', 'b', 'c', 'passes', 'states', 'dpp', 'label',
                 'target', 'storedata', 'lds_dma', 'isload', 'uncond', 'laneselect')
    def __init__(self, text):
        self.text = text
        self.mn = None; self.cls = 'other'; self.wr = set(); self.rd = set()
        self.a = set(); self.b = set(); self.c = set(); self.passes = 0; self.states = 1
        self.dpp = False; self.label = None; self.target = None; self.storedata = set()
        self.lds_dma = False; self.isload = False; self.uncond = False; self.laneselect = set()

def parse(text):
    ins = Ins(text)
    t = text.split(';')[0].strip()
    if not t or t.startswith('.'):
        ins.cls = 'dir'; ins.states = 0
        return ins
    if t.endswith(':'):
        ins.cls = 'label'; ins.label = t[:-1]; ins.states = 0
        return ins
    parts = t.split(None, 1)
    mn = parts[0]
    ins.mn = mn
    rest = parts[1] if len(parts) > 1 else ''
    rest = re.sub(r':\[([^\]]*)\]', lambda m: ':[' + m.group(1).replace(',', '/') + ']', rest)
    ops = [o.strip() for o in rest.split(',')]
    mods = ''
    if ops:
        last = ops[-1].split()
        if last:
            ops[-1] = last[0]
            mods = ' '.join(last[1:])
    R = [regs_of(o) for o in ops]
    allr = lambda idxs: set(r for i in idxs if i < len(R) for r in R[i])
    n = len(ops)
    if mn.startswith('v_mfma') or mn.startswith('v_smfmac'):
        ins.cls = 'mfma'
        ins.passes = 8 if '32x32' in mn else 4
        ins.wr = allr([0]); ins.a = allr([1]); ins.b = allr([2])
        if mn.startswith('v_smfmac'):
            ins.c = allr([0]); ins.b |= allr([3])
        else:
            ins.c = allr([3])
        ins.rd = ins.a | ins.b | ins.c
    elif mn.startswith('v_'):
        ins.cls = 'valu'
        base = mn.replace('_e32', '').replace('_e64', '').replace('_dpp', '').replace('_sdwa', '')
        if base in TRANS:
            ins.cls = 'trans'
        if '_dpp' in mn or 'row_' in mods or 'quad_perm' in mods:
            ins.dpp = True
        if base.startswith('v_permlane') or base == 'v_swap_b32':
            ins.cls = 'perm' if base.startswith('v_permlane') else 'valu'
            ins.wr = allr([0, 1]); ins.rd = allr([0, 1])
        elif base.startswith('v_cmp'):
            ins.wr = allr([0]); ins.rd = allr(range(1, n))
            if base.startswith('v_cmpx'):
                ins.wr |= {('s', 126), ('s', 127)}
        elif base in ('v_readfirstlane_b32', 'v_readlane_b32'):
            ins.cls = 'readlane'
            ins.wr = allr([0]); ins.rd = allr(range(1, n)); ins.laneselect = allr([2])
        elif base == 'v_writelane_b32':
            ins.wr = allr([0]); ins.rd = allr(range(0, n)); ins.laneselect = allr([2])
        elif base in ('v_add_co_u32', 'v_sub_co_u32', 'v_addc_co_u32', 'v_subb_co_u32', 'v_subrev_co_u32',
                      'v_div_scale_f32', 'v_mad_u64_u32'):
            ins.wr = allr([0, 1]); ins.rd = allr(range(2, n))
        else:
            ins.wr = allr([0]); ins.rd = allr(range(1, n))
            if base in ('v_fmac_f32', 'v_mac_f32', 'v_dot2c_f32_bf16', 'v_pk_fmac_f16') or ins.dpp:
                ins.rd |= allr([0])
            if base == 'v_cndmask_b32' and n == 3:
                ins.rd |= {('s', 106), ('s', 107)}
    elif mn.startswith('ds_'):
        ins.cls = 'ds'
        if mn.startswith('ds_read') or mn.startswith('ds_bpermute') or mn.startswith('ds_permute') or mn.startswith('ds_swizzle') or '_rtn' in mn:
            ins.wr = allr([0]); ins.rd = allr(range(1, n)); ins.isload = True
        else:
            ins.rd = allr(range(n))
    elif mn.startswith('global_') or mn.startswith('buffer_') or mn.startswith('flat_'):
        ins.cls = 'vmem'
        if mn in ('buffer_inv', 'buffer_wbl2'):
            pass
        elif 'load_lds' in mn or (' lds' in (' ' + mods)):
            ins.lds_dma = True
            ins.rd = allr(range(n)) | {('s', 124)}
        elif '_load' in mn:
            ins.wr = allr([0]); ins.rd = allr(range(1, n)); ins.isload = True
        elif '_store' in mn:
            ins.rd = allr(range(n))
            if 'x4' in mn or 'x3' in mn:
                ins.storedata = allr([1]) if mn.startswith('global') or mn.startswith('flat') else allr([0])
        elif 'atomic' in mn:
            ins.rd = allr(range(n))
            if 'sc0' in mods:
                ins.wr = allr([0]); ins.isload = True
    elif mn.startswith('s_'):
        ins.cls = 'salu'
        if mn == 's_nop':
            ins.states = int(ops[0], 0) + 1
        elif mn.startswith('s_cbranch') or mn == 's_branch':
            ins.target = ops[0]; ins.uncond = (mn == 's_branch')
        elif mn == 's_endpgm':
            ins.uncond = True
        elif mn.startswith('s_cmp') or mn.startswith('s_bitcmp') or mn in ('s_waitcnt', 's_barrier', 's_sleep', 's_setprio'):
            ins.rd = allr(range(n))
        else:
            ins.wr = allr([0]); ins.rd = allr(range(1, n))
            if 'saveexec' in mn:
                ins.wr |= {('s', 126), ('s', 127)}
    return ins

def isv(r): return r[0] in 'va'
VALUISH = ('valu', 'trans', 'perm', 'readlane')

def need(p, c):
    w = 0
    if p.cls in VALUISH:
        pv = set(r for r in p.wr if isv(r)); ps = set(r for r in p.wr if not isv(r))
        if c.cls == 'mfma' and pv & c.rd: w = max(w, 2)
        if c.cls == 'mfma' and ps & {('s', 126), ('s', 127)}: w = max(w, 4)
        if c.cls == 'vmem' and ps & c.rd: w = max(w, 5)
        if c.cls in VALUISH:
            if ps & c.rd: w = max(w, 2)
            if ps & c.laneselect: w = max(w, 4)
            if c.dpp and pv & c.rd: w = max(w, 2)
            if c.cls == 'perm' and pv & c.rd: w = max(w, 2)
            if c.cls == 'readlane' and pv & c.rd: w = max(w, 1)
            if p.cls == 'trans' and c.cls != 'trans' and pv & c.rd: w = max(w, 1)
            if ps & {('s', 126), ('s', 127)}:
                if c.dpp: w = max(w, 5)
                if c.cls in ('perm', 'readlane'): w = max(w, 4)
            if ('op_sel' in p.text or 'sdwa' in p.text) and pv & (c.rd | c.wr): w = max(w, 1)
    if p.cls == 'mfma':
        big = p.passes == 8
        if c.cls == 'mfma':
            if p.wr & (c.a | c.b): w = max(w, 12 if big else 8)
            if p.wr & c.c:
                if not (p.wr == c.c and p.passes == c.passes): w = max(w, 10 if big else 6)
            elif p.wr & c.wr:
                w = max(w, 10 if big else 6)
        elif c.cls in VALUISH:
            if p.wr & (c.rd | c.wr): w = max(w, 12 if big else 8)
            if p.c & c.wr: w = max(w, 7 if big else 3)
        elif c.cls in ('ds', 'vmem'):
            if p.wr & (c.rd | c.wr): w = max(w, 12 if big else 8)
    if p.cls == 'vmem' and p.storedata:
        if c.cls in VALUISH and p.storedata & c.wr: w = max(w, 2)
        elif p.storedata & c.wr: w = max(w, 1)
    if p.cls == 'salu' and ('s', 124) in p.wr and c.cls == 'vmem' and c.lds_dma: w = max(w, 1)
    return w

WIN = 20

def _fix_seq(hist, ins):
    el = 0; req = 0
    real = [p for p in hist if p.states]
    n = len(real)
    for idx in range(n - 1, -1, -1):
        p = real[idx]
        nd = need(p, ins)
        if nd > el:
            e2 = el
            if p.cls == 'mfma':
                t = 0; lm = 0; lp = p.passes
                for q in real[idx + 1:]:
                    t += 1
                    if q.cls == 'mfma':
                        t = max(t, lm + lp); lm = t; lp = q.passes
                    t += q.states - 1
                e2 = max(el, t)
            r = nd - e2
            if r > req: req = r
        el += p.states
        if el >= WIN: break
    return req

def mk_nops(n):
    out = []
    while n > 0:
        k = min(n, 16)
        out.append(parse('  s_nop %d' % (k - 1)))
        n -= k
    return out

def insert_nops(lines):
    ins = [parse(l) for l in lines]
    for _ in range(20):
        changed = False
        out = []
        hist = []
        for i in ins:
            if i.states and i.cls not in ('dir', 'label'):
                r = _fix_seq(hist, i)
                if r > 0:
                    nn = mk_nops(r); out += nn; hist += nn; changed = True
            out.append(i); hist.append(i)
            if i.uncond: hist = []
            if len(hist) > 64: hist = hist[-40:]
        ins = out
        lab = {x.label: k for k, x in enumerate(ins) if x.cls == 'label'}
        inserts = {}
        for k, x in enumerate(ins):
            if x.target is None: continue
            q = lab[x.target]
            h = []
            j = k
            while j >= 0 and len(h) < 40:
                if j != k and ins[j].uncond: break
                h.append(ins[j]); j -= 1
            h.reverse()
            el = 0; j = q
            while j < len(ins) and el < WIN:
                y = ins[j]
                if y.states and y.cls not in ('dir', 'label'):
                    r = _fix_seq(h, y)
                    if r > 0:
                        inserts[j] = max(inserts.get(j, 0), r)
                        break
                    el += y.states
                h.append(y)
                if y.uncond: break
                j += 1
        if inserts:
            changed = True
            out = []
            for k, x in enumerate(ins):
                if k in inserts: out += mk_nops(inserts[k])
                out.append(x)
            ins = out
        if not changed: break
    return [i.text for i in ins]

AW_AGE = 60
AW_HOIST = True
def auto_wait(lines):
    out = []; on = False; pend = []; now = [0]; lastm = [0]
    def wait_upto(i, hoist=False):
        while i + 1 < len(pend) and now[0] - pend[i + 1][1] >= AW_AGE: i += 1
        n = len(pend) - 1 - i
        assert n <= 15
        pos = len(out)
        if hoist and AW_HOIST:
            while pos > 0 and parse(out[pos - 1]).cls in ('valu', 'trans') and len(out) - pos < 2: pos -= 1
            if not (pos > 0 and parse(out[pos - 1]).cls == 'mfma'): pos = len(out)
        out.insert(pos, '  s_waitcnt lgkmcnt(%d)' % n)
        del pend[:i + 1]
    for l in lines:
        ls = l.strip()
        if ls == '.aw_on': on = True; del pend[:]; continue
        if ls == '.aw_off':
            assert not pend, "pending lds ops at aw_off"
            on = False; continue
        if not on: out.append(l); continue
        if ls == '.aw_reset': del pend[:]; continue
        if ls == '.aw_fork': saved = list(pend); continue
        if ls == '.aw_join': pend[:] = saved; continue
        if ls == '.aw_writes':
            idx = [i for i, q in enumerate(pend) if q[0] is None]
            if idx: wait_upto(idx[-1])
            continue
        if ls == '.aw_all':
            if pend: wait_upto(len(pend) - 1)
            continue
        ins = parse(l)
        if ins.mn == 's_waitcnt' and 'lgkmcnt(0)' in ls: del pend[:]
        touch = ins.rd | ins.wr
        idx = [i for i, q in enumerate(pend) if q[0] and (q[0] & touch)]
        if idx: wait_upto(idx[-1], ins.cls == 'mfma')
        if ins.states:
            now[0] += 4
            if ins.cls == 'mfma':
                now[0] = max(now[0], lastm[0] + 16); lastm[0] = now[0]
        if ins.cls == 'ds':
            if len(pend) >= 15: wait_upto(0)
            pend.append((set(ins.wr) if ins.isload else None, now[0]))
        out.append(l)
    return out

class K:
    def __init__(self):
        self.lines = []
        self.nlab = 0
    def __call__(self, s, *a):
        for l in (s % a if a else s).split('\n'):
            l = l.strip()
            if l: self.lines.append(l if l.endswith(':') or l.startswith('.') else '  ' + l)
    def lab(self, p='L'):
        self.nlab += 1
        return '%s_%d' % (p, self.nlab)
    def L(self, name): self.lines.append(name + ':')
    def c(self, s): self.lines.append('  ; ' + s)

def v(i, n=1): return 'v%d' % i if n == 1 else 'v[%d:%d]' % (i, i + n - 1)
def a(i, n=1): return 'a%d' % i if n == 1 else 'a[%d:%d]' % (i, i + n - 1)
def s(i, n=1): return 's%d' % i if n == 1 else 's[%d:%d]' % (i, i + n - 1)
def u(i, n=1):
    if i < 256:
        assert i + n <= 256
        return v(i, n)
    return a(i - 256, n)
```

```python
from roles import *
import struct
def f2u(x): return struct.unpack('<I', struct.pack('<f', x))[0]

L_KT = 131072
L_MB = L_KT + 16384
L_XB = L_MB + 8192
L_OB = L_XB + 5120
L_MISC_ = L_OB + 2560
WQ, WK, WO = 256, 384, 128
aM = [2, 3, 4, 5]; aXW = 6; aXR = 7; aOW = 8; aWV = 9; aKT = 10; aL16 = 11
aH1S = 12; aWO = 13; aH1L = 11; aH2S = 14; IDX = 15
KVM = 16
SEL = 20
VTN = 24
MA = 32; AQ = 64; AK = 72; AV = 80; G = 88; VT = 120
S_HEAD = 5; S_LIM = 6; S_STEP = 7
S_WQ, S_WK, S_WV, S_WO = 12, 16, 20, 28
sH1S0, sH1S1, sH1L, sH2S, sH2L = 32, 33, 34, 35, 36
sKV = 37; sKTD = 38; sKM = 39; sVIM = 40; sC = 41; sCNT = 42; sT = 43
sH1R = 50; sH2R = 51; sMASK = 52
sPH = 50; sTHR = 49; sSAFE = 55; sQF = 46; sKF = 47; aFL = 0; aFL4 = 0
CSC = 0.08838834764831845 * 1.4426950408889634
VORD = [0, 2, 4, 6, 1, 3, 5, 7]
CT = MA

from chain import elect, xmax
def tick(k, i):
    if getattr(k, 'ticks', False): k("s_memtime s[%d:%d]", 64 + 2 * i, 65 + 2 * i)
def tick_init(k):
    if not getattr(k, 'ticks', False): return
    for i in range(96, 100): k("s_mov_b32 s%d, 0", i)
def tick_step_end(k):
    if not getattr(k, 'ticks', False): return
    l = k.lab("tse")
    k("s_cmp_lg_u32 s%d, %d", S_STEP, k.copt.get('tstep', 41))
    k("s_cbranch_scc1 %s", l)
    k("s_waitcnt vmcnt(0) lgkmcnt(0)")
    k("s_lshl_b32 s100, s%d, 2", S_HEAD)
    k("s_add_u32 s100, s100, s%d", S_WAVE)
    k("s_lshl_b32 s100, s100, 7")
    k("s_add_u32 s100, s100, 0x%x", TS + 8 * 65536)
    k("v_mov_b32 v41, 0")
    for i in range(16):
        k("v_mov_b32 v40, s%d", 64 + 2 * i)
        k("buffer_store_dword v40, v41, %s, s100 offen offset:%d", s(S_WS, 4), 4 * i)
    for e in range(2):
        lw = k.lab("cal")
        k("s_memrealtime s[64:65]")
        k("s_waitcnt lgkmcnt(0)")
        if e: k("s_add_u32 s64, s64, 100")
        k.L(lw)
        k("s_memrealtime s[66:67]")
        k("s_memtime s[68:69]")
        k("s_waitcnt lgkmcnt(0)")
        k("s_sub_u32 s70, s64, s66")
        k("s_cmp_ge_i32 s70, 0")
        k("s_cbranch_scc1 %s", lw)
        k("v_mov_b32 v40, s66")
        k("buffer_store_dword v40, v41, %s, s100 offen offset:%d", s(S_WS, 4), 80 + 8 * e)
        k("v_mov_b32 v40, s68")
        k("buffer_store_dword v40, v41, %s, s100 offen offset:%d", s(S_WS, 4), 84 + 8 * e)
    k.L(l)
def tick_dump(k):
    if not getattr(k, 'ticks', False): return
    k("v_mov_b32 v41, 0")
    for i in range(4):
        k("v_mov_b32 v40, s%d", 96 + i)
        k("buffer_store_dword v40, v41, %s, s100 offen offset:%d", s(S_WS, 4), 64 + 4 * i)

def SMF(acc, A, B): return "v_smfmac_f32_16x16x64_bf16 %s, %s, %s, %s" % (v(acc, 4), v(A, 4), u(B, 8), v(IDX))
def MF(d, A, B, first): return "v_mfma_f32_16x16x32_bf16 %s, %s, %s, %s" % (v(d, 4), v(A, 4), v(B, 4), "0" if first else v(d, 4))
def M16(d, A, B): return "v_mfma_f32_16x16x16_bf16 %s, %s, %s, %s" % (v(d, 4), v(A, 2), v(B, 2), v(d, 4))

def chain_setup(k):
    w = S_WAVE
    k.c("---- chain setup: addresses")
    k("v_lshlrev_b32 %s, 4, v1", v(aL16))
    for jp in range(4):
        k("s_xor_b32 s%d, s%d, %d", sT, w, jp)
        k("s_lshl_b32 s%d, s%d, 11", sT, sT)
        k("s_add_u32 s%d, s%d, %d", sT, sT, L_MB)
        k("v_add_u32 %s, s%d, %s", v(aM[jp]), sT, v(aL16))
    k("v_and_b32 v90, 15, v1")
    k("v_lshrrev_b32 v91, 4, v1")
    k("v_bfe_u32 v92, v1, 2, 2")
    k("v_and_b32 v93, 3, v1")
    k("v_mul_u32_u24 v94, 320, v91")
    k("v_lshl_add_u32 v94, v90, 3, v94")
    k("s_mul_i32 s%d, s%d, 1280", sT, w)
    k("s_add_u32 s%d, s%d, %d", sT, sT, L_XB)
    k("v_add_u32 %s, s%d, v94", v(aXW), sT)
    k("s_lshr_b32 s%d, s%d, 1", sT, w)
    k("s_mul_i32 s%d, s%d, 1280", sT, sT)
    k("s_and_b32 s%d, s%d, 1", sCNT, w)
    k("s_lshl_b32 s%d, s%d, 7", sCNT, sCNT)
    k("s_add_u32 s%d, s%d, s%d", sT, sT, sCNT)
    k("s_add_u32 s%d, s%d, %d", sT, sT, L_OB)
    k("v_add_u32 %s, s%d, v94", v(aOW), sT)
    k("v_mul_u32_u24 v94, 320, v93")
    k("v_lshrrev_b32 v95, 2, v1")
    k("v_lshl_add_u32 v94, v95, 3, v94")
    k("v_add_u32 %s, %d, v94", v(aXR), L_XB)
    k("s_lshl_b32 s%d, s%d, 14", sT, w)
    k("v_add_u32 %s, s%d, %s", v(aWV), sT, v(aL16))
    k("v_add_u32 %s, 0x10000, %s", v(aWO), v(aWV))
    k("v_add_u32 %s, %d, %s", v(aKT), L_KT, v(aL16))
    k("v_lshrrev_b32 v94, 3, v90")
    k("v_lshl_add_u32 v94, v94, 2, v91")
    k("v_lshlrev_b32 v94, 13, v94")
    k("v_and_b32 v95, 7, v1")
    k("v_lshl_add_u32 %s, v95, 3, v94", v(aH1S))
    k("v_lshlrev_b32 v94, 4, v91")
    k("v_lshl_add_u32 v94, v93, 2, v94")
    k("v_mov_b32 v95, v92")
    k("v_cmp_eq_u32 vcc, 0, v95")
    k("v_mov_b32 v95, 0x40000000")
    k("v_cndmask_b32 %s, v95, v94, vcc", v(aH2S))
    k("v_and_b32 v94, 2, v1")
    k("v_cmp_eq_u32 vcc, 0, v94")
    k("v_mov_b32 v94, 0x44444444")
    k("v_mov_b32 v95, 0xeeeeeeee")
    k("v_cndmask_b32 %s, v95, v94, vcc", v(IDX))
    k("v_mov_b32 v94, 0x3f80")
    k("v_mov_b32 v95, 0x3f800000")
    for d in range(4):
        k("v_cmp_eq_u32 vcc, %d, v90", 4 * d)
        k("v_cndmask_b32 %s, 0, v94, vcc", v(SEL + d))
        k("v_cmp_eq_u32 vcc, %d, v90", 4 * d + 1)
        k("v_cndmask_b32 %s, %s, v95, vcc", v(SEL + d), v(SEL + d))
    k("s_lshl_b32 s%d, s%d, 16", sT, w)
    k("s_lshl_b32 s%d, s%d, 6", sH1S0, S_HEAD)
    k("s_add_u32 s%d, s%d, s%d", sH1S0, sH1S0, sT)
    k("s_add_u32 s%d, s%d, 0x%x", sH1S0, sH1S0, HOP1)
    k("s_add_u32 s%d, s%d, 0x1000", sH1S1, sH1S0)
    k("s_lshl_b32 s%d, s%d, 2", sH1L, S_HEAD)
    k("s_add_u32 s%d, s%d, s%d", sH1L, sH1L, w)
    k("s_lshl_b32 s%d, s%d, 11", sH1L, sH1L)
    k("s_add_u32 s%d, s%d, 0x%x", sH1L, sH1L, HOP1)
    k("s_lshr_b32 s%d, s%d, 3", sH2S, S_HEAD)
    k("s_lshl_b32 s%d, s%d, 11", sH2S, sH2S)
    k("s_and_b32 s%d, s%d, 7", sT, S_HEAD)
    k("s_lshl_b32 s%d, s%d, 6", sT, sT)
    k("s_add_u32 s%d, s%d, s%d", sH2S, sH2S, sT)
    k("s_lshl_b32 s%d, s%d, 9", sT, w)
    k("s_add_u32 s%d, s%d, s%d", sH2S, sH2S, sT)
    k("s_add_u32 s%d, s%d, 0x%x", sH2S, sH2S, HOP2)
    k("s_lshl_b32 s%d, s%d, 11", sH2L, w)
    k("s_add_u32 s%d, s%d, 0x%x", sH2L, sH2L, HOP2)
    k("s_lshl_b32 s%d, s%d, 13", sKV, S_HEAD)
    k("s_lshl_b32 s%d, s%d, 11", sT, w)
    k("s_add_u32 s%d, s%d, s%d", sKV, sKV, sT)
    k("s_add_u32 s%d, s%d, 0x%x", sVIM, sKV, VIMG)
    k("s_add_u32 s%d, s%d, 0x%x", sKV, sKV, KIMG)
    k("s_add_u32 s%d, s%d, %d", sKTD, sT, L_KT)
    k("s_lshl_b32 s%d, s%d, 12", sKM, S_HEAD)
    k("s_lshl_b32 s%d, s%d, 10", sT, w)
    k("s_add_u32 s%d, s%d, s%d", sKM, sKM, sT)
    k("s_add_u32 s%d, s%d, 0x%x", sKM, sKM, KM - 0x20000)
    k("s_mov_b32 s%d, 0x%x", sC, f2u(CSC))
    k("s_mov_b32 s%d, 400000", S_LIM)
    k("s_mov_b32 s%d, 0x33333333", sMASK)
    k("s_mov_b32 s%d, 0x33333333", sMASK + 1)
    k("s_mov_b32 s%d, 0", sPH)
    k("s_xor_b32 s%d, s%d, 0x2000", sH2R, sH2S)

def merged_setup(k):
    k("s_lshl_b32 s%d, s%d, 5", sQF, S_HEAD)
    k("s_add_u32 s%d, s%d, 0x%x", sQF, sQF, FLAGS + F_QF)
    k("s_lshl_b32 s%d, s%d, 2", sKF, S_HEAD)
    k("s_add_u32 s%d, s%d, s%d", sKF, sKF, S_WAVE)
    k("s_lshl_b32 s%d, s%d, 7", sKF, sKF)
    k("s_add_u32 s%d, s%d, 0x%x", sKF, sKF, FLAGS + F_KF)
    k("v_lshlrev_b32 %s, 2, v93", v(aFL))

def kv_refresh(k, plus, back=None):
    lp = k.lab("kvr"); ok = k.lab("kvok")
    k("s_mov_b32 s%d, 0", sCNT)
    k("s_add_u32 s%d, s%d, %d", sT, S_STEP, plus)
    k.L(lp)
    k("buffer_load_dword v1, %s, %s, s%d offen sc1", v(aFL), s(S_WS, 4), sQF)
    k("s_waitcnt vmcnt(0)")
    k("v_cmp_ge_u32 vcc, s%d, v1", sT)
    k("s_cbranch_vccz %s", ok)
    k("s_sleep 2")
    k("s_add_u32 s%d, s%d, 1", sCNT, sCNT)
    k("s_cmp_lt_u32 s%d, s%d", sCNT, S_LIM)
    k("s_cbranch_scc1 %s", lp)
    k("s_mov_b32 s%d, 0", S_LIM)
    k.L(ok)
    if back: k("s_branch %s", back)

import chain as _c1
def chain_arm(k):
    k.c("---- arm hop buffers (both slots), sc1")
    for i in range(4): k("v_mov_b32 %s, -1", v(96 + i))
    for slot in range(2):
        k("s_add_u32 s%d, s%d, 0x%x", sT, sH1L, slot * 262144)
        k("buffer_store_dwordx4 v[96:99], %s, %s, s%d offen sc1", v(aL16), s(S_WS, 4), sT)
        k("buffer_store_dwordx4 v[96:99], %s, %s, s%d offen offset:1024 sc1", v(aL16), s(S_WS, 4), sT)
    k("buffer_store_dword v96, %s, %s, s%d offen sc1", v(aH2S), s(S_WS, 4), sH2R)
load_mem0 = _c1.load_mem0
WVR_ = 128
WOR_ = 192

def chain_load_weights(k, hooks={}, pre_issue={}, after_first=None):
    w = S_WAVE
    k.c("---- chain weight load")
    k("v_and_b32 v90, 15, v1")
    k("v_lshrrev_b32 v91, 4, v1")
    k("s_and_b32 s44, s%d, 1", w)
    k("s_lshl_b32 s44, s44, 2")
    k("v_xor_b32 v120, s44, v90")
    k("v_and_b32 v121, 1, v91")
    k("v_lshlrev_b32 v121, 3, v121")
    k("v_xor_b32 v120, v120, v121")
    k("v_lshlrev_b32 v120, 4, v120")
    k("v_lshl_add_u32 v120, v91, 13, v120")
    k("s_lshl_b32 s45, s%d, 8", S_HEAD)
    k("s_lshl_b32 s48, s%d, 17", w)
    k("s_add_u32 s45, s45, s48")
    k("s_lshl_b32 s44, s%d, 12", w)
    sc = [('q', 0), ('q', 1), ('k', 0), ('k', 1), ('v', 1), ('o', 0), ('v', 0), ('o', 1)]
    srds = dict(q=S_WQ, k=S_WK, v=S_WV, o=S_WO)
    queue = []
    def issue(i):
        m, par = sc[i]; reg = (i & 1) * 65536
        for n in range(16):
            if m == 'o':
                k("s_add_u32 s48, s49, %d", par * 128 + n * 8192)
                k("s_add_u32 m0, s3, %d", n * 1024)
            else:
                c, q = n >> 2, n & 3
                k("s_add_u32 s48, s45, %d", (2 * c + par) * 64 * 8192 + q * 4 * 8192)
                k("s_add_u32 m0, s44, %d", reg + c * 16384 + q * 1024)
            k("buffer_load_dwordx4 v%d, %s, s48 offen lds", 121 if m == 'o' else 120, s(srds[m], 4))
            queue.append(i)
    k("s_waitcnt lgkmcnt(0)")
    fin_srd(k, 'Wq', S_WQ)
    lstamp(k, 7)
    issue(0)
    if after_first: after_first(k)
    k("v_lshrrev_b32 v121, 3, v1")
    k("v_lshlrev_b32 v121, 10, v121")
    k("v_and_b32 v122, 7, v1")
    k("v_lshl_add_u32 v121, v122, 4, v121")
    k("v_and_b32 v126, 1, v92")
    k("v_lshl_add_u32 v126, v126, 2, v91")
    k("v_lshrrev_b32 v127, 1, v92")
    k("v_lshl_add_u32 v126, v126, 2, v127")
    k("v_lshlrev_b32 v126, 8, v126")
    k("v_xor_b32 v127, s%d, v92", w)
    k("v_lshl_add_u32 v126, v127, 6, v126")
    k("v_lshl_add_u32 v126, v93, 4, v126")
    for jp in range(4):
        k("s_xor_b32 s48, s%d, %d", w, jp)
        k("s_lshl_b32 s48, s48, 14")
        k("v_add_u32 v%d, s48, v126", 122 + jp)
    k("v_lshrrev_b32 v126, 1, v92")
    k("v_lshrrev_b32 v127, 1, v91")
    k("v_lshl_add_u32 v126, v127, 1, v126")
    k("v_and_b32 v127, 1, v91")
    k("v_lshl_add_u32 v126, v127, 3, v126")
    k("v_lshlrev_b32 v126, 2, v126")
    k("v_and_b32 v127, 1, v92")
    k("v_add_u32 v126, v126, v127")
    k("v_lshlrev_b32 v126, 7, v126")
    k("v_lshl_add_u32 v126, v93, 3, v126")
    k("s_lshl_b32 s48, s%d, 14", w)
    k("s_add_u32 s3, s48, 0x10000")
    k("v_add_u32 v126, s3, v126")
    k("s_lshl_b32 s49, s%d, 17", S_HEAD)
    k("s_lshl_b32 s48, s%d, 8", w)
    k("s_add_u32 s49, s49, s48")
    if -1 in hooks: queue.extend([-1] * hooks[-1](k))
    issue(1)
    lstamp(k, 5)
    TMP = 40
    for i in range(8):
        m, par = sc[i]
        if i in hooks: queue.extend([-1] * hooks[i](k))
        last = max(n for n, c in enumerate(queue) if c == i)
        k("s_waitcnt vmcnt(%d)", len(queue) - 1 - last)
        k("s_barrier")
        if i < 5: lstamp(k, i)
        inplace = i >= 6
        cnt = 0
        for a_ in range(4):
            for b_ in range(2):
                if inplace: dst = TMP + (a_ * 2 + b_) * 8
                elif m == 'q': dst = WQ + (b_ * 8 + 2 * a_ + par) * 8
                elif m == 'k': dst = WK + (b_ * 8 + 2 * a_ + par) * 8
                elif m == 'v': dst = WVR_ + (a_ * 2 + b_) * 8
                else: dst = WOR_ + (a_ * 2 + b_) * 8
                for y in range(4):
                    if m == 'o':
                        k("ds_read_b64_tr_b16 %s, v126 offset:%d", u(dst + 2 * y, 2), (64 * b_ + 16 * (y >> 1) + 2 * (y & 1)) * 128 + 32 * a_)
                    else:
                        k("ds_read_b64_tr_b16 %s, v%d offset:%d", u(dst + 2 * y, 2), 122 + a_, (32 * (y >> 1) + 2 * (y & 1)) * 256 + 8 * b_)
                cnt += 4
                if cnt % 8 == 0: k("s_waitcnt lgkmcnt(4)")
        if i < 4:
            for jp in range(4): k("v_xor_b32 v%d, 0x10000, v%d", 122 + jp, 122 + jp)
        k("s_waitcnt lgkmcnt(0)")
        k("s_barrier")
        if inplace:
            for q in range(16):
                k("ds_write_b128 %s, %s offset:%d", v(aWO if m == 'o' else aWV), v(TMP + 4 * q, 4), q * 1024)
                if q % 8 == 7: k("s_waitcnt lgkmcnt(0)")
        if i in pre_issue: pre_issue[i](k)
        if i + 2 < 8: issue(i + 2)


def PFK(p):
    W = s(S_WS, 4)
    return [["s_mov_b32 m0, s%d" % sKTD, "buffer_load_dwordx4 %s, %s, s%d offen sc1 lds" % (v(aL16), W, sKV)],
            ["buffer_load_dwordx4 %s, %s, s%d offen offset:1024 sc1 lds" % (v(aL16), W, sKV)],
            ["buffer_load_dwordx4 %s, %s, %s, s%d offen sc1" % (v(VTN, 4), v(aL16), W, sVIM)],
            ["buffer_load_dwordx4 %s, %s, %s, s%d offen offset:1024 sc1" % (v(VTN + 4, 4), v(aL16), W, sVIM)],
            ["s_add_u32 s%d, s%d, 0x40000" % (sKV, sKV), "s_add_u32 s%d, s%d, 0x40000" % (sVIM, sVIM),
             "s_xor_b32 s%d, s%d, 0x2000" % (sKTD, sKTD)]][p]

def WVR(n, h):
    return "ds_read_b128 %s, %s offset:%d" % (v(G + (n & 3) * 8 + 4 * h, 4), v(aWV), n * 2048 + h * 1024)

def weave(k, spine, fill):
    for i, m in enumerate(spine):
        k(m)
        for f in fill.get(i, []): k(f)

def check_n(k, buf, n, t0, t1):
    if n == 8:
        k("v_max3_u32 %s, %s, %s, %s", v(t0), v(buf), v(buf + 1), v(buf + 2))
        k("v_max3_u32 %s, %s, %s, %s", v(t1), v(buf + 3), v(buf + 4), v(buf + 5))
        k("v_max3_u32 %s, %s, %s, %s", v(t0), v(buf + 6), v(buf + 7), v(t0))
        k("v_max_u32 %s, %s, %s", v(t0), v(t0), v(t1))
    else:
        k("v_max3_u32 %s, %s, %s, %s", v(t0), v(buf), v(buf + 1), v(buf + 2))
        k("v_max_u32 %s, %s, %s", v(t0), v(t0), v(buf + 3))
    k("v_cmp_eq_u32 vcc, -1, %s", v(t0))

def retry_stub(k, lab, back, loads, buf, n, pre=None, cnt=None):
    k.L(lab)
    lp = k.lab("rp")
    k("s_mov_b32 s%d, 0", sCNT)
    k.L(lp)
    for l in loads: k(l)
    if cnt is not None and getattr(k, 'ticks', False): k("s_add_u32 s%d, s%d, 1", cnt, cnt)
    k("s_waitcnt vmcnt(0)")
    if pre:
        for l in pre: k(l)
    check_n(k, buf, n, CT, CT + 1)
    k("s_cbranch_vccz %s", back)
    k("s_add_u32 s%d, s%d, 1", sCNT, sCNT)
    k("s_cmp_lt_u32 s%d, s%d", sCNT, S_LIM)
    k("s_cbranch_scc1 %s", lp)
    k("s_mov_b32 s%d, 0", S_LIM)
    k("s_branch %s", back)

def delay(k, slots):
    while slots > 0:
        m = min(slots, 16); k("s_nop %d", m - 1); slots -= m

def chain_loop(k, stf, tag):
    W = s(S_WS, 4)
    o = getattr(k, 'copt', {})
    mg = getattr(k, 'merged', False)
    tk = getattr(k, 'ticks', False)
    TK = lambda i: ("s_memtime s[%d:%d]" % (64 + 2 * i, 65 + 2 * i)) if tk else ""
    lexit = k.lab(tag + "exit"); bexit = k.lab(tag + "bexit")
    Qs = lambda j, b: [SMF(AQ, b, WQ + j * 8), SMF(AQ + 4, b, WQ + (8 + j) * 8)]
    Ks = lambda j, b: [SMF(AK, b, WK + j * 8), SMF(AK + 4, b, WK + (8 + j) * 8)]
    Vs = lambda j, b: [SMF(AV + 4 * t, b, (G + ((j + t) & 3) * 8) if j % 2 == 0 else (WVR_ + ((j >> 1) * 2 + t) * 8)) for t in range(2)]
    Q = lambda j: Qs(j, MA + 4 * j); Kp = lambda j: Ks(j, MA + 4 * j); V = lambda j: Vs(j, MA + 4 * j)
    KORD = [0, 1, 2, 4, 6, 3, 5, 7]
    MR = lambda j: "ds_read_b128 %s, %s offset:%d" % (v(MA + 4 * j, 4), v(aM[j >> 1]), (j & 1) * 1024)
    KTR = lambda f: "ds_read_b128 %s, %s offset:%d" % (v(MA + 4 * KORD[f], 4), v(aKT), f * 1024)
    MV = lambda d, x: "v_mov_b32 %s, %s" % (v(d), x)
    EX = lambda d, s_: "v_exp_f32 %s, %s" % (v(d), v(s_))
    CV = lambda d, a_, b_: "v_cvt_pk_bf16_f32 %s, %s, %s" % (v(d), v(a_), v(b_))
    FA = lambda a_: ["v_add_f32 %s, %s, %s" % (v(a_), v(a_), v(a_ + 2)), "v_add_f32 %s, %s, %s" % (v(a_ + 1), v(a_ + 1), v(a_ + 3))]
    stkvm = "buffer_store_dwordx4 %s, %s, %s, s%d offen sc1" % (v(KVM, 4), v(aL16), W, sKM)
    r_sm = k.lab(tag + "rsm"); b_sm = k.lab(tag + "bsm"); r_kv = k.lab(tag + "rkv"); b_kv = k.lab(tag + "bkv")
    EB = [MA, VTN]
    lF = [k.lab(tag + "s0f") for _ in EB]; lto = k.lab(tag + "to")
    RD = MA + 16; HT = MA + 20; H1 = MA + 8; H1B = MA + 24
    lde = lambda b: ["buffer_load_dwordx4 %s, %s, %s, s%d offen sc1" % (v(b, 4), v(aL16), W, sH2L),
                     "buffer_load_dwordx4 %s, %s, %s, s%d offen offset:1024 sc1" % (v(b + 4, 4), v(aL16), W, sH2L)]
    def spin(reg, n, lab, magic="0x7fc1"):
        for i in range(n):
            k("v_cmp_ne_u32 vcc, %s, %s", magic, v(reg))
            k("s_cbranch_vccnz %s", lab)
    lS = [k.lab(tag + "s0v") for _ in EB]; lcom = k.lab(tag + "com"); lpoll = k.lab(tag + "poll")
    k("s_branch %s", lS[0])
    k(".aw_on")
    nb0 = o.get('b0', 5)
    fl = [[],
          ["buffer_load_dword v1, %s, %s, s%d offen sc1" % (v(aFL4), W, sQF)]] if mg else [[], []]
    for bi in (1, 0):
        b = EB[bi]; ob = EB[1 - bi]
        k(".aw_reset")
        k.L(lF[1 - bi])
        if o.get('mask', 0): k("s_mov_b64 exec, vcc")
        for l in lde(ob): k(l)
        if o.get('mask', 0): k("s_mov_b64 exec, -1")
        if tk: k("s_add_u32 s97, s97, 1")
        k("s_add_u32 s%d, s%d, 1", sCNT, sCNT)
        k("s_cmp_ge_u32 s%d, s%d", sCNT, S_LIM)
        k("s_cbranch_scc1 %s", lto)
        if bi == 0: k.L(lpoll)
        ar = k.lab(tag + "ar2")
        spin(b + 7, o.get('ns2', 16), ar, "-2")
        k.L(ar)
        k("s_waitcnt vmcnt(2)")
        k("v_max_u32 %s, %s, %s", v(HT), v(b + 3), v(b + 7))
        k("v_cmp_eq_u32 vcc, -1, %s", v(HT))
        k("s_cbranch_vccnz %s", lF[bi])
        k.L(lS[bi])
        tick(k, 15); tick_step_end(k); tick(k, 0)
        if o.get('plog2'): k("s_memtime s[64:65]"); k("s_memrealtime s[66:67]")
        w64 = o.get('w64', 0)
        if w64 == 0: k("ds_write_b128 %s, %s", v(aM[0]), v(b, 4))
        f = {o.get('gw2', 2): ["ds_write_b128 %s, %s offset:1024" % (v(aM[0]), v(b + 4, 4))], nb0: [".aw_writes", "s_barrier", TK(1), MR(2)]}
        if w64 == 1:
            del f[o.get('gw2', 2)]
            ws = ["ds_write_b64 %s, %s offset:%d" % (v(aM[0]), v(b + 2 * i, 2), (i >> 1) * 1024 + (i & 1) * 8) for i in range(4)]
            k(ws[0])
            for i in range(1, 4): f[i - 1] = [ws[i]]
        if w64 == 2:
            del f[o.get('gw2', 2)]
            ws = ["ds_write_b32 %s, %s offset:%d" % (v(aM[0]), v(b + i), (i >> 2) * 1024 + (i & 3) * 4) for i in range(8)]
            k(ws[0]); k(ws[1])
            for i in range(3): f[i] = ws[2 + 2 * i: 4 + 2 * i]
        for x in range(3, 8): f[min(nb0 + x - 2, 11)] = f.get(min(nb0 + x - 2, 11), []) + [MR(x)]
        if o.get('early', 0): f[1] = PFK(0)[1:]; f[2] = PFK(1); f[3] = [stkvm]; f[4] = fl[0]
        weave(k, Qs(0, b) + Ks(0, b) + Qs(1, b + 4) + Ks(1, b + 4) + Vs(0, b) + Vs(1, b + 4), f)
        if bi: k("s_branch %s", lcom)
    k.L(lcom)
    qf = []
    for t in range(2):
        a_ = AQ + 4 * t
        qf += FA(a_) + ["v_mul_f32 %s, s%d, %s" % (v(a_), sC, v(a_)), "v_mul_f32 %s, s%d, %s" % (v(a_ + 1), sC, v(a_ + 1)), CV(a_, a_, a_ + 1)]
    E_ = lambda x: [] if o.get('early', 0) else x
    weave(k, Q(2) + Q(3) + Q(4) + Q(5) + Q(6) + Q(7) + Kp(2) + Kp(3) + Kp(4) + Kp(5) + Kp(6) + Kp(7), {
        0: [TK(2), "s_waitcnt vmcnt(0)"] + PFK(2), 1: [WVR(4, 0)], 2: [WVR(4, 1)], 3: PFK(3), 4: [WVR(5, 0)], 5: [WVR(5, 1)], 6: PFK(0)[1:], 7: [KTR(1)],
        8: (["v_mov_b32 v34, s64", "v_mov_b32 v35, s66", "v_mov_b32 v33, 0", "s_lshl_b32 s68, s%d, 3" % S_STEP, "s_add_u32 s68, s68, s100",
             "buffer_store_dwordx2 v[34:35], v33, %s, s68 offen" % W] if o.get('plog2') else []),
        9: PFK(1), 10: [KTR(0)], 11: PFK(4), 12: [stkvm],
        13: ["s_add_u32 s%d, s%d, 0x20000" % (sKM, sKM), qf[0]], 14: [qf[1]], 15: [qf[5]], 16: fl[0] + [qf[6]], 17: [qf[2]], 18: [qf[3]], 19: fl[1] + [qf[7]], 20: [qf[8]],
        21: [qf[4]], 22: [qf[9]], 23: (["ds_write2_b32 %s, %s, %s offset0:0 offset1:32" % (v(aXW), v(AQ), v(AQ + 4))] if o.get('qw', 1) else [])})
    X = AQ
    XR = lambda i: "ds_read_b64_tr_b16 %s, %s offset:%d" % (v(X + 2 * i, 2), v(aXR), (i >> 1) * 1280 + (i & 1) * 128)
    ONES, PM, LA, E, T1, T2, T0 = G, G + 4, G + 8, G + 12, G + 20, G + 24, G + 28
    O1 = "0x3f803f80"
    KORD[:] = [0, 1, 2, 4, 3, 5, 6, 7]
    kf = FA(AK) + FA(AK + 4) + [CV(AQ + 1, AK, AK + 1), CV(AQ + 5, AK + 4, AK + 5)]
    XW = "ds_write2_b64 %s, %s, %s offset0:0 offset1:16" % (v(aXW), v(AQ, 2), v(AQ + 4, 2))
    BAR = [".aw_writes", "s_barrier", TK(6)]
    vs = V(2) + V(4) + V(3) + V(5) + V(6) + V(7)
    nb = o.get('xb', 6)
    f = {0: [WVR(6, 0)] + kf, 1: [XW, TK(5)], 2: [WVR(6, 1), MV(KVM, v(AQ + 1))], 3: [WVR(7, 0), MV(KVM + 1, v(AQ + 5))], 4: [WVR(7, 1), MV(ONES, O1)], 5: [KTR(2), MV(ONES + 1, O1)]}
    mv = [MV(ONES + 2, O1), MV(ONES + 3, O1), MV(PM + 1, "0"), MV(PM + 2, "0")]
    if o.get('qw', 1):
        kf = FA(AK) + FA(AK + 4) + [CV(KVM, AK, AK + 1), CV(KVM + 1, AK + 4, AK + 5)]
        XW = "ds_write2_b32 %s, %s, %s offset0:1 offset1:33" % (v(aXW), v(KVM), v(KVM + 1))
        f = {0: [WVR(6, 0)] + kf, 1: [XW, TK(5)], 2: [WVR(6, 1)], 3: [WVR(7, 0), MV(ONES, O1)], 4: [WVR(7, 1), MV(ONES + 1, O1)], 5: [KTR(2), MV(ONES + 2, O1)]}
        mv = [MV(ONES + 3, O1), MV(PM + 1, "0"), MV(PM + 2, "0")]
    xs = [XR(i) for i in range(8)]
    cnt = o.get('xc', {5: [2, 1, 1, 1, 1, 1, 1], 6: [1, 2, 2, 1, 1, 1], 7: [2, 2, 2, 1, 1], 8: [2, 2, 2, 2]}[nb])
    for g_ in range(6, nb): f[g_] = [KTR(3) if g_ == 6 else KTR(4), mv.pop(0)]
    kdone = 3 + max(0, nb - 6)
    for x, c_ in enumerate(cnt):
        f[nb + x] = (f.get(nb, []) + BAR if x == 0 else []) + xs[:c_]; xs = xs[c_:]
    assert not xs
    weave(k, vs, f)
    vf = []
    for t in range(2): vf += FA(AV + 4 * t) + [CV(KVM + 2 + t, AV + 4 * t, AV + 4 * t + 1)]
    t1 = lambda kb: MF(T1, MA + 4 * KORD[kb], X + 4 * kb, kb == 0)
    t2 = lambda kb: MF(T2, MA + 4 * KORD[4 + kb], X + 4 * kb, kb == 0)
    t0 = lambda kb: MF(T0, X + 4 * kb, X + 4 * kb, kb == 0)
    KQ = lambda i: [KTR(kdone + i)] if kdone + i < 8 else []
    tb = o.get('tb', 1)
    fc = {0: [TK(7)] + KQ(0) + mv[:1], 1: KQ(1) + [vf[0]], 2: KQ(2) + [vf[1]], 3: KQ(3) + [vf[3]], 4: KQ(4) + [vf[4]], 5: [vf[2], vf[5]],
          6: ["s_cmp_ge_u32 s%d, %d" % (S_STEP, o.get('kvl', 59)), "s_cbranch_scc1 %s" % lexit, bexit + ":"] + mv[1:2], 7: mv[2:]}
    if tb == 0:
        fc.update({8: [EX(E, T1)], 9: [EX(E + 1, T1 + 1)], 10: [EX(E + 2, T1 + 2)],
            11: [EX(E + 3, T1 + 3), EX(T0, T0 + 2), EX(T0 + 1, T0 + 3), CV(E, E, E + 1), CV(E + 1, E + 2, E + 3), CV(PM, T0, T0 + 1), CV(PM + 3, T0, T0 + 1)]})
        weave(k, [t1(0), t0(0), t1(1), t0(1), t1(2), t0(2), t1(3), t2(0), t0(3), t2(1), t2(2), t2(3)], fc)
        pvf = {0: [EX(E + 4, T2)], 1: [EX(E + 5, T2 + 1)], 2: [EX(E + 6, T2 + 2), EX(E + 7, T2 + 3), CV(E + 2, E + 4, E + 5), CV(E + 3, E + 6, E + 7)]}
    else:
        fc.update({8: [EX(T0, T0 + 2)], 9: [EX(T0 + 1, T0 + 3)], 10: [CV(PM, T0, T0 + 1), CV(PM + 3, T0, T0 + 1)], 11: [EX(E, T1)]})
        weave(k, [t0(0), t1(0), t0(1), t1(1), t0(2), t1(2), t0(3), t1(3), t2(0), t2(1), t2(2), t2(3)], fc)
        pvf = {0: [EX(E + 1, T1 + 1)], 1: [EX(E + 2, T1 + 2)], 2: [EX(E + 3, T1 + 3), EX(E + 4, T2), EX(E + 5, T2 + 1), CV(E, E, E + 1), EX(E + 6, T2 + 2), EX(E + 7, T2 + 3),
               CV(E + 1, E + 2, E + 3), CV(E + 2, E + 4, E + 5), CV(E + 3, E + 6, E + 7)]}
    O = AV
    Z = lambda i: "v_mov_b32 %s, 0" % v(MA + i)
    M16z = lambda d, A, B: "v_mfma_f32_16x16x16_bf16 %s, %s, %s, 0" % (v(d, 4), v(A, 2), v(B, 2))
    tick(k, 8)
    def pv(k, fast):
        weave(k, [M16z(LA, PM, ONES), M16z(O, PM, KVM + 2), M16z(O + 4, PM + 2, KVM + 2)],
              pvf if fast else {})
        weave(k, [MF(LA, E, ONES, False), MF(O, E, VT, False), MF(O + 4, E, VT + 4, False)], {})
    pv(k, True)
    k("v_rcp_f32 %s, %s", v(LA), v(LA))
    k("v_rcp_f32 %s, %s", v(LA + 1), v(LA + 1))
    k.L(b_sm)
    for t in range(2):
        if o.get('pk', 1): k("v_pk_mul_f32 %s, %s, %s", v(O + 4 * t, 2), v(O + 4 * t, 2), v(LA, 2))
        else:
            k("v_mul_f32 %s, %s, %s", v(O + 4 * t), v(O + 4 * t), v(LA))
            k("v_mul_f32 %s, %s, %s", v(O + 4 * t + 1), v(O + 4 * t + 1), v(LA + 1))
        k(CV(E + 4 + t, O + 4 * t, O + 4 * t + 1))
    k("ds_write_b64 %s, %s", v(aOW), v(E + 4, 2))
    tick(k, 9)
    Z2 = lambda i: "v_mov_b64 %s, 0" % v(MA + 2 * i, 2)
    ZP = X + 8 + 6
    ZM = lambda r: "v_mfma_f32_32x32x8_bf16 %s, %s, %s, 0" % (v(r, 16), v(ZP, 2), v(ZP, 2))
    k("v_max3_f32 %s, |%s|, |%s|, |%s|", v(X), v(T1), v(T1 + 1), v(T1 + 2))
    k("v_max3_f32 %s, |%s|, |%s|, |%s|", v(X + 1), v(T1 + 3), v(T2), v(T2 + 1))
    k("v_max3_f32 %s, |%s|, |%s|, %s", v(X), v(T2 + 2), v(T2 + 3), v(X))
    k("v_max3_f32 %s, |%s|, |%s|, %s", v(X + 1), v(T0 + 2), v(T0 + 3), v(X + 1))
    k("v_mov_b64 %s, 0", v(ZP, 2))
    k("v_max_f32 %s, %s, %s", v(X), v(X), v(X + 1))
    k("v_cmp_lt_f32 vcc, s%d, %s", sTHR, v(X))
    k("s_and_b64 vcc, vcc, %s", s(sMASK, 2))
    k("s_cbranch_scc1 %s", r_sm)
    k("s_mov_b32 s%d, 0x42700000", sTHR)
    k(ZM(MA))
    k(".aw_writes"); k("s_barrier")
    tick(k, 10)
    OA = AQ
    for i in range(4):
        k("ds_read_b64_tr_b16 %s, %s offset:%d", v(OA + 2 * i, 2), v(aXR), (L_OB - L_XB) + (i >> 1) * 1280 + (i & 1) * 128)
        if i == o.get('zp', 1): k(ZM(MA + 16))
    PK = AK
    SB = {(4, 0): G, (5, 0): G + 8, (4, 1): G + 16, (5, 1): G + 24, (6, 0): VT, (7, 0): AV, (6, 1): G, (7, 1): G + 8}
    WOB = lambda nt, kbo: (WOR_ + (nt * 2 + kbo) * 8) if nt < 4 else SB[(nt, kbo)]
    WR = lambda nt, kbo, h: "ds_read_b128 %s, %s offset:%d" % (v(SB[(nt, kbo)] + 4 * h, 4), v(aWO), ((nt - 4) * 2 + kbo) * 2048 + h * 1024)
    WS_ = lambda nt, kbo: SMF(MA + 4 * nt, OA + 4 * kbo, WOB(nt, kbo))
    AD = lambda nt, b: "v_add_f32 %s, %s, %s" % (v(MA + 4 * nt + b), v(MA + 4 * nt + b), v(MA + 4 * nt + 2 + b))
    PC = lambda sx, b, hh: CV(PK + 4 * sx + 2 * b + hh, MA + 4 * (4 * sx + 2 * hh) + b, MA + 4 * (4 * sx + 2 * hh + 1) + b)
    ST1 = lambda sx: "buffer_store_dwordx4 %s, %s, %s, s%d offen %s" % (v(PK + 4 * sx, 4), v(aH1S), W, sH1S1 if sx else sH1S0, stf)
    PA = lambda nt: "v_pk_add_f32 %s, %s, %s" % (v(MA + 4 * nt, 2), v(MA + 4 * nt, 2), v(MA + 4 * nt + 2, 2))
    TG = lambda sx: "v_and_or_b32 %s, %s, -2, s%d" % (v(PK + 4 * sx), v(PK + 4 * sx), sPH)
    k(WR(4, 0, 0)); k(WR(4, 0, 1))
    A2 = lambda nt: [PA(nt)] if o.get('pk', 1) else [AD(nt, 0), AD(nt, 1)]
    P2 = lambda tp, b: CV(PK + 2 * tp + b, MA + 8 * tp + b, MA + 8 * tp + 4 + b)
    T2_ = lambda tp: "v_and_or_b32 %s, %s, -2, s%d" % (v(PK + 2 * tp), v(PK + 2 * tp), sPH)
    S2 = lambda tp: "buffer_store_dwordx2 %s, %s, %s, s%d offen offset:%d %s" % (v(PK + 2 * tp, 2), v(aH1S), W, sH1S1 if tp >> 1 else sH1S0, (tp & 1) * 2048, stf)
    fin = lambda tp: [AD(2 * tp + 1, 0), AD(2 * tp + 1, 1), P2(tp, 0), P2(tp, 1), T2_(tp), S2(tp)]
    fa = {0: [TK(11), WR(5, 0, 0)], 1: [WR(5, 0, 1)], 2: [WR(4, 1, 0)], 3: [WR(4, 1, 1)],
        4: [WR(5, 1, 0), AD(0, 0)], 5: [WR(5, 1, 1), AD(0, 1)] + fin(0) + [TK(12)], 6: [WR(6, 0, 0), WR(6, 0, 1)], 7: [WR(7, 0, 0), WR(7, 0, 1)],
        8: [WR(6, 1, 0), AD(2, 0)], 9: [WR(6, 1, 1), AD(2, 1), WR(7, 1, 0), WR(7, 1, 1)] + fin(1),
        12: [AD(4, 0)], 13: [AD(4, 1)] + fin(2),
        15: A2(6) + A2(7) + [P2(3, 0), P2(3, 1), T2_(3), S2(3)]}
    wv_ = o.get('wv', 3)
    if wv_ == 0:
        fa = {0: [TK(11), WR(5, 0, 0)], 1: [WR(5, 0, 1)], 2: [WR(4, 1, 0)], 3: [WR(4, 1, 1)],
            4: [WR(5, 1, 0), AD(0, 0)], 5: [WR(5, 1, 1), AD(0, 1)], 6: [WR(6, 0, 0), AD(1, 0)], 7: [WR(6, 0, 1), WR(7, 0, 0), WR(7, 0, 1)] + fin(0)[1:] + [TK(12)],
            8: [WR(6, 1, 0), AD(2, 0)], 9: [WR(6, 1, 1), AD(2, 1)], 10: [WR(7, 1, 0), AD(3, 0)], 11: [WR(7, 1, 1)] + fin(1)[1:],
            12: [AD(4, 0)], 13: [AD(4, 1)], 14: [AD(5, 0)],
            15: fin(2)[1:] + A2(6) + A2(7) + [P2(3, 0), P2(3, 1), T2_(3), S2(3)]}
    elif wv_ == 1:
        fa = {0: [TK(11), WR(5, 0, 0)], 1: [WR(5, 0, 1)], 2: [WR(4, 1, 0), WR(4, 1, 1)], 3: [WR(5, 1, 0), WR(5, 1, 1)],
            4: [WR(6, 0, 0), AD(0, 0)], 5: [WR(6, 0, 1), AD(0, 1)], 6: [WR(7, 0, 0)] + fin(0)[:-1], 7: [S2(0), TK(12), WR(7, 0, 1)],
            8: [WR(6, 1, 0), AD(2, 0)], 9: [WR(6, 1, 1), AD(2, 1)], 10: [WR(7, 1, 0), WR(7, 1, 1)] + fin(1)[:-1], 11: [S2(1)],
            12: [AD(4, 0)], 13: [AD(4, 1)], 14: fin(2)[:-1],
            15: [S2(2)] + A2(6) + A2(7) + [P2(3, 0), P2(3, 1), T2_(3), S2(3)]}
    elif wv_ == 3:
        fa = {0: [TK(11), WR(5, 0, 0)], 1: [WR(5, 0, 1)], 2: [WR(4, 1, 0), WR(4, 1, 1)], 3: [WR(5, 1, 0), WR(5, 1, 1)],
            4: [WR(6, 0, 0), AD(0, 0)], 5: [WR(6, 0, 1), AD(0, 1)], 6: [WR(7, 0, 0)] + fin(0)[:-1], 7: [S2(0), TK(12), WR(7, 0, 1)],
            8: [WR(6, 1, 0), AD(2, 0)], 9: [WR(6, 1, 1), AD(2, 1)], 10: [WR(7, 1, 0), WR(7, 1, 1)] + fin(1)[:-1], 11: [S2(1)],
            12: [AD(4, 0)], 13: [AD(4, 1)] + fin(2)[:-1], 14: [S2(2)],
            15: A2(6) + A2(7) + [P2(3, 0), P2(3, 1), T2_(3), S2(3)]}
    elif wv_ == 4:
        fa = {0: [TK(11), WR(5, 0, 0)], 1: [WR(5, 0, 1)], 2: [WR(4, 1, 0), WR(4, 1, 1)], 3: [WR(5, 1, 0), WR(5, 1, 1)],
            4: [WR(6, 0, 0), AD(0, 0)], 5: [WR(6, 0, 1), AD(0, 1)], 6: [WR(7, 0, 0), AD(1, 0)], 7: [WR(7, 0, 1)] + fin(0)[1:-1], 8: [S2(0), TK(12), WR(6, 1, 0), AD(2, 0)],
            9: [WR(6, 1, 1), AD(2, 1)], 10: [WR(7, 1, 0), WR(7, 1, 1)] + fin(1)[:-1], 11: [S2(1)],
            12: [AD(4, 0)], 13: [AD(4, 1)] + fin(2)[:-1], 14: [S2(2)],
            15: A2(6) + A2(7) + [P2(3, 0), P2(3, 1), T2_(3), S2(3)]}
    else:
        fa = {0: [TK(11), WR(5, 0, 0)], 1: [WR(5, 0, 1)], 2: [WR(4, 1, 0), WR(4, 1, 1)], 3: [WR(5, 1, 0), WR(5, 1, 1)],
            4: [WR(6, 0, 0), AD(0, 0)], 5: [WR(6, 0, 1), AD(0, 1)], 6: [WR(7, 0, 0), AD(1, 0)], 7: [WR(7, 0, 1)] + fin(0)[1:-1], 8: [S2(0), TK(12), WR(6, 1, 0), AD(2, 0)],
            9: [WR(6, 1, 1), AD(2, 1)], 10: [WR(7, 1, 0), AD(3, 0)], 11: [WR(7, 1, 1)] + fin(1)[1:-1], 12: [S2(1), AD(4, 0)],
            13: [AD(4, 1)], 14: fin(2)[:-1],
            15: [S2(2)] + A2(6) + A2(7) + [P2(3, 0), P2(3, 1), T2_(3), S2(3)]}
    weave(k, [WS_(0, 0), WS_(1, 0), WS_(0, 1), WS_(1, 1), WS_(2, 0), WS_(3, 0), WS_(2, 1), WS_(3, 1), WS_(4, 0), WS_(5, 0),
              WS_(4, 1), WS_(5, 1), WS_(6, 0), WS_(7, 0), WS_(6, 1), WS_(7, 1)], fa)
    tick(k, 13)
    if o.get('plog'):
        k("s_mov_b32 m0, s%d", S_STEP)
        k("v_writelane_b32 v1, s64, m0")
    RD = MA + 16; HT = MA + 20; H1 = MA + 8; H1B = MA + 24
    h1lb = lambda b: ["buffer_load_dwordx4 %s, %s, %s, s%d offen sc1" % (v(b, 4), v(aL16), W, sH1L),
           "buffer_load_dwordx4 %s, %s, %s, s%d offen offset:1024 sc1" % (v(b + 4, 4), v(aL16), W, sH1L)]
    redb = lambda b: [MF(RD, SEL, b, True), MF(RD, SEL, b + 4, False),
           "v_bitop3_b32 %s, %s, %s, s%d bitop3:0x7e" % (v(HT), v(b), v(b + 4), sPH), "v_and_b32 %s, 1, %s" % (v(HT), v(HT)),
           "v_cmp_ne_u32 vcc, 0, %s" % v(HT)]
    h1l = h1lb(H1); red = redb(H1)
    lde = lambda b: ["buffer_load_dwordx4 %s, %s, %s, s%d offen sc1" % (v(b, 4), v(aL16), W, sH2L),
                     "buffer_load_dwordx4 %s, %s, %s, s%d offen offset:1024 sc1" % (v(b + 4, 4), v(aL16), W, sH2L)]
    KAV = "v_mov_b32 %s, 0" % v(MA + 22)
    def warm(vl, ol, slots, per=o.get('per', 4)):
        while slots > 0:
            k(vl.pop(0) if vl else (KAV if o.get('ka', 0) else "s_nop 0")); slots -= 1
            r = min(per - 1, slots)
            while r > 0 and ol:
                x = ol.pop(0); k(x); c = 2 if x.startswith('ds_') else 1; r -= c; slots -= c
            if r > 0: k("s_nop %d", r - 1); slots -= r
    def spin(reg, n, lab, magic="0x7fc1"):
        for i in range(n):
            k("v_cmp_ne_u32 vcc, %s, %s", magic, v(reg))
            k("s_cbranch_vccnz %s", lab)
            if o.get('spn', 0): k("s_nop %d", o.get('spn') - 1)
    ok1 = k.lab(tag + "ok1"); rr1 = k.lab(tag + "r1"); ar1 = k.lab(tag + "ar1"); ar0 = k.lab(tag + "ar0")
    lp1 = k.lab(tag + "lp1"); lB = k.lab(tag + "gB"); lA2 = k.lab(tag + "gA2")
    k("s_cmp_ge_u32 s%d, 2", S_WAVE)
    k(".aw_fork")
    k("s_cbranch_scc1 %s", lB)
    for g in 'ab':
        if g == 'b':
            k.L(lB); k(".aw_join")
        hv = ["v_mov_b64 %s, 0" % v(AQ + 2 * i, 2) for i in range(12)] + ["v_xor_b32 %s, 0x2000, %s" % (v(aKT), v(aKT))]
        ho = [WVR(n, h) for n in range(4) for h in range(2)] + \
             ["s_mov_b32 s%d, s%d" % (sH2R, sH2S), "s_xor_b32 s%d, s%d, 0x2000" % (sH2S, sH2S)] + \
             ["s_xor_b32 s%d, s%d, 0x40000" % (r, r) for r in (sH1S0, sH1S1)] + \
             ["s_xor_b32 s%d, s%d, 0x2000" % (sH2L, sH2L), "s_add_u32 s%d, s%d, 1" % (S_STEP, S_STEP), "s_mov_b32 m0, s%d" % sKTD, "s_mov_b32 s%d, 0" % sCNT]
        warm(hv, ho, o.get('p0' + g, 24 if g == 'a' else 44))
        tick(k, 3)
        for l in h1lb(H1B): k(l)
        warm(hv, ho, o.get('p1' + g, 54 if g == 'a' else 24))
        for l in h1l: k(l)
        warm(hv, ho, o.get('w1' + g, 2 if g == 'a' else 14))
        assert not hv and not ho
        k(".aw_all")
        if g == 'a': k("s_branch %s", lp1)
    k.L(lp1)
    spin(H1B + 3, o.get('ns1', 24), ar0)
    k.L(ar0)
    k("s_waitcnt vmcnt(3)")
    tick(k, 4)
    k(redb(H1B)[0])
    k("s_waitcnt vmcnt(2)")
    for l in redb(H1B)[1:]: k(l)
    k("s_cbranch_vccnz %s", rr1)
    k.L(ok1)
    for sh in (4, 8):
        for r in (RD, RD + 1): k("v_add_f32_dpp %s, %s, %s row_ror:%d row_mask:0xf bank_mask:0xf", v(r), v(r), v(r), sh)
    k("v_cvt_pk_bf16_f32 %s, %s, %s", v(RD), v(RD), v(RD + 1))
    k("buffer_store_dword %s, %s, %s, s%d offen %s", v(RD), v(aH2S), W, sH2S, stf)
    tick(k, 14)
    k(MV(HT, "-1"))
    k("buffer_store_dword %s, %s, %s, s%d offen %s", v(HT), v(aH2S), W, sH2R, stf)
    hv = ["v_mov_b64 %s, %s" % (v(VT + 2 * i, 2), v(VTN + 2 * i, 2)) for i in range(4)]
    ho = ["s_xor_b32 s%d, s%d, 0x40000" % (sH1L, sH1L), "s_bfe_u32 s%d, s%d, 0x10001" % (sPH, S_STEP), "s_mov_b32 s%d, 0" % sCNT]
    if mg:
        k("s_add_u32 s%d, s%d, 1", sT, S_STEP); k("v_cmp_ge_u32 vcc, s%d, v1", sT)
        k("s_cbranch_vccnz %s", r_kv)
        k.L(b_kv)
    k("s_cmp_ge_u32 s%d, 2", S_WAVE)
    k("s_cbranch_scc1 %s", lA2)
    warm([], [], o.get('p2a', 20))
    k.L(lA2)
    p2 = o.get('p2', [26, 30])
    warm(hv, ho, p2[0])
    assert not hv and not ho
    for l in lde(EB[0]): k(l)
    warm(hv, ho, p2[1])
    for l in lde(EB[1]): k(l)
    warm(hv, ho, o.get('w2', 15))
    k(".aw_all")
    k(".aw_off")
    k("s_branch %s", lpoll)
    k.L(lto)
    k("s_mov_b32 s%d, 0", S_LIM)
    k("s_waitcnt vmcnt(0)")
    k("s_branch %s", lS[0])
    k.L(rr1)
    if o.get('mask', 0): k("s_mov_b64 exec, vcc")
    for l in h1lb(H1B): k(l)
    if o.get('mask', 0): k("s_mov_b64 exec, -1")
    if tk: k("s_add_u32 s98, s98, 1")
    spin(H1 + 7, o.get('ns1', 24), ar1)
    k.L(ar1)
    k("s_waitcnt vmcnt(2)")
    for l in red: k(l)
    k("s_cbranch_vccz %s", ok1)
    if o.get('mask', 0): k("s_mov_b64 exec, vcc")
    for l in h1l: k(l)
    if o.get('mask', 0): k("s_mov_b64 exec, -1")
    if tk: k("s_add_u32 s96, s96, 1")
    k("s_add_u32 s%d, s%d, 1", sCNT, sCNT)
    k("s_cmp_lt_u32 s%d, s%d", sCNT, S_LIM)
    k("s_cbranch_scc1 %s", lp1)
    k("s_mov_b32 s%d, 0", S_LIM)
    k("s_branch %s", ok1)
    if mg:
        k.L(r_kv)
        kv_refresh(k, 1, b_kv)
    k.L(r_sm)
    k("v_max3_f32 %s, %s, %s, %s", v(X), v(T1), v(T1 + 1), v(T1 + 2))
    k("v_max3_f32 %s, %s, %s, %s", v(X), v(T1 + 3), v(T2), v(X))
    k("v_max3_f32 %s, %s, %s, %s", v(X), v(T2 + 1), v(T2 + 2), v(X))
    k("v_max3_f32 %s, %s, %s, %s", v(X), v(T2 + 3), v(T0 + 2), v(X))
    k("v_max_f32 %s, %s, %s", v(X), v(T0 + 3), v(X))
    xmax(k, X, X + 1)
    for r in [T1 + i for i in range(8)] + [T0 + 2, T0 + 3]: k("v_sub_f32 %s, %s, %s", v(r), v(r), v(X))
    for i in range(8): k(EX(E + i, T1 + i))
    k(EX(T0, T0 + 2)); k(EX(T0 + 1, T0 + 3))
    for i in range(4): k(CV(E + i, E + 2 * i, E + 2 * i + 1))
    k(CV(PM, T0, T0 + 1)); k(CV(PM + 3, T0, T0 + 1))
    pv(k, False)
    k("s_mov_b32 s%d, 0x7f800000", sTHR)
    k("v_rcp_f32 %s, %s", v(LA), v(LA))
    k("v_rcp_f32 %s, %s", v(LA + 1), v(LA + 1))
    k("s_waitcnt lgkmcnt(0)")
    k("s_branch %s", b_sm)
    k.L(lexit)
    k(stkvm)
    k("s_cmp_lt_u32 s%d, 63", S_STEP)
    k("s_cbranch_scc1 %s", bexit)
    k("s_waitcnt lgkmcnt(0)")

def role_chain(k, force_slow=False):
    mg = getattr(k, 'merged', False)
    srds = (('Wq', S_WQ), ('Wk', S_WK), ('Wv', S_WV), ('Wo', S_WO), ('mem0', 56))
    for n, r in srds: load_srd(k, n, r)
    def after_first(k):
        for n, r in srds[1:] + (('ws', S_WS), ('dbg', S_DBG)): fin_srd(k, n, r)
        chain_setup(k)
        merged_setup(k)
        k("s_mov_b32 s%d, 0", S_STEP)
    W = s(S_WS, 4)
    def h_arm(k):
        chain_arm(k)
        k("v_lshrrev_b32 v104, 1, v90")
        k("v_and_b32 v104, 6, v104")
        k("v_and_b32 v105, 1, v1")
        k("v_add_u32 v104, v104, v105")
        k("v_lshlrev_b32 v104, 10, v104")
        k("v_lshrrev_b32 v105, 1, v91")
        k("v_lshl_add_u32 v104, v105, 6, v104")
        k("v_and_b32 v105, 1, v91")
        k("v_lshl_add_u32 v104, v105, 4, v104")
        k("s_lshl_b32 s%d, s%d, 8", sT, S_WAVE)
        for j in range(2):
            k("buffer_load_dwordx4 %s, v104, %s, s%d offen offset:%d", v(40 + 8 * j, 4), s(56, 4), sT, j * 128)
            k("buffer_load_dwordx4 %s, v104, %s, s%d offen offset:%d", v(44 + 8 * j, 4), s(56, 4), sT, j * 128 + 32)
        k("v_mov_b32 v107, 0")
        k("buffer_load_dword v118, v107, %s, 0 offen offset:%d sc1", s(S_DBG, 4), DBG_T)
        return 10
    lwarm = k.lab("CW"); lwend = k.lab("CWe")
    def h_mem0(k):
        lt = k.lab("CT"); lt2 = k.lab("CT2")
        k("v_cmp_eq_u32 vcc, 0, v118")
        k("s_cbranch_vccz %s", lt)
        wait_ready(k, 118, DBG_T)
        k.L(lt)
        k("v_readfirstlane_b32 s%d, v118", sT)
        k("s_cmp_lg_u32 s%d, s54", sT)
        k("s_cselect_b32 s100, 0x10001, 1")
        k("s_cbranch_scc0 %s", lt2)
        k("s_cmp_eq_u32 s101, 0")
        k("s_cbranch_scc1 %s", k.lswap)
        k.L(lt2)
        k("v_and_b32 v105, 2, v1")
        k("v_mul_u32_u24 v105, 0x10101, v105")
        k("v_and_b32 v106, 2, v1")
        k("v_lshl_add_u32 v105, v106, 24, v105")
        k("v_add_u32 v105, 0x05040100, v105")
        for j in range(2):
            for i in range(4):
                k("v_perm_b32 %s, %s, %s, v105", v(MA + 4 * j + i), v(44 + 8 * j + i), v(40 + 8 * j + i))
        k("v_mov_b32 v107, 0")
        k("buffer_load_dword v108, v107, %s, 0 offen offset:%d sc1", s(S_DBG, 4), DBG_READY)
        n = 1
        if k.copt.get('cwarm', 1):
            lpc = k.lab("pc")
            k("s_getpc_b64 s[60:61]")
            k.L(lpc)
            k("s_add_u32 s60, s60, %s-%s", lwarm, lpc)
            k("s_addc_u32 s61, s61, 0")
            k("s_lshl_b32 s%d, s%d, 13", sT, S_WAVE)
            k("v_lshlrev_b32 v104, 7, v1")
            k("v_min_u32 v105, %s-%s-4, v104", lwend, lwarm)
            k("global_load_dword v116, v105, s[60:61]")
            k("v_add_u32 v104, 0x2000, v104")
            k("v_min_u32 v105, %s-%s-4, v104", lwend, lwarm)
            k("global_load_dword v117, v105, s[60:61]")
            n += 2
        return n
    def h_announce(k):
        k("v_mov_b32 v106, s100")
        k("s_cmp_eq_u32 s%d, 0", S_WAVE)
        k("s_cselect_b32 s%d, 8, 0x1000", sT)
        k("v_mov_b32 v105, s%d", sT)
        k("s_mov_b64 exec, 1")
        k("buffer_atomic_add v106, v105, %s, 0 offen sc1", s(S_DBG, 4))
        k("s_mov_b64 exec, -1")
        return 1
    def h_flags(k):
        k("buffer_load_dword v109, %s, %s, s%d offen sc1", v(aFL), W, sQF)
        n = 1
        if k.copt.get('hwarm', 1):
            for base, x in ((sH1L, 0), (sH1L, 0x40000), (sH2L, 0), (sH2L, 0x2000)):
                k("s_xor_b32 s%d, s%d, 0x%x", sT, base, x)
                for off in (0, 1024):
                    k("buffer_load_dwordx4 v[112:115], %s, %s, s%d offen offset:%d sc1", v(aL16), W, sT, off)
                    n += 1
        return n
    def h_pf(k):
        k("s_waitcnt vmcnt(16)")
        k("v_cmp_eq_u32 vcc, 0, v108")
        k("s_or_b32 s%d, vcc_lo, vcc_hi", sSAFE)
        k("v_cmp_ge_u32 vcc, 1, v109")
        k("s_or_b32 s%d, s%d, vcc_lo", sSAFE, sSAFE)
        for p in range(4):
            for l in PFK(p): k(l)
        k("buffer_load_dword v110, v107, %s, 0 offen offset:8 sc1", s(S_DBG, 4))
        return 5
    def h3(k): return h_mem0(k) + h_announce(k)
    chain_load_weights(k, {-1: h_arm, 2: h3, 5: h_flags, 7: h_pf} if k.copt.get('ho', 0) == 0 else {-1: h_arm, 2: h_mem0, k.copt['ho']: h_announce, 5: h_flags, 7: h_pf}, {}, after_first)
    stamp(k, 2, 1, wgreg=S_HEAD, vt=120)
    if k.copt.get('dst'): k("s_memrealtime s[94:95]")
    if mg:
        lok = k.lab("CHf")
        k("s_cmp_eq_u32 s%d, 0", sSAFE)
        k("s_cbranch_scc1 %s", lok)
        wait_ready(k, 108)
        kv_refresh(k, 1)
        for p in range(4):
            for l in PFK(p): k(l)
        k.L(lok)
    k("s_mov_b32 s%d, 0", sSAFE)
    k("s_mov_b32 s%d, 0x42700000", sTHR)
    for l in PFK(4): k(l)
    k("s_waitcnt vmcnt(0)")
    k("v_readfirstlane_b32 s44, v110")
    for n in range(4):
        k(WVR(n, 0)); k(WVR(n, 1))
    for i in range(24): k("v_mov_b32 %s, 0", v(AQ + i))
    lp = k.lab("CHs"); ok = k.lab("CHok")
    k("v_mov_b32 %s, 0", v(KVM + 1))
    k("s_mov_b32 s%d, 0", sCNT)
    k.L(lp)
    k("s_and_b32 s45, s44, 0xffff")
    k("s_cmp_ge_u32 s45, 32")
    k("s_cbranch_scc1 %s", ok)
    k("buffer_load_dword %s, %s, %s, 0 offen offset:8 sc1", v(KVM), v(KVM + 1), s(S_DBG, 4))
    k("s_waitcnt vmcnt(0)")
    k("v_readfirstlane_b32 s44, %s", v(KVM))
    k("s_add_u32 s%d, s%d, 1", sCNT, sCNT)
    k("s_cmp_lt_u32 s%d, s%d", sCNT, S_LIM)
    k("s_cbranch_scc1 %s", lp)
    k("s_mov_b32 s%d, 0", S_LIM)
    k.L(ok)
    k("s_waitcnt vmcnt(0)")
    for i in range(8): k("v_mov_b32 %s, %s", v(VT + i), v(VTN + i))
    k("s_waitcnt lgkmcnt(0)")
    stamp(k, 2, 2, wgreg=S_HEAD, vt=56)
    if k.copt.get('dst'): k("s_memrealtime s[96:97]"); k("s_waitcnt lgkmcnt(0)")
    stamp(k, 2, 4, wgreg=S_HEAD, vt=56, cyc=True)
    tick_init(k)
    if k.copt.get('plog2'):
        k("s_lshl_b32 s100, s%d, 2", S_HEAD)
        k("s_add_u32 s100, s100, s%d", S_WAVE)
        k("s_lshl_b32 s100, s100, 9")
        k("s_add_u32 s100, s100, 0x%x", TS + 8 * 65536)
    k("s_mov_b32 m0, s%d", sKTD)
    k("v_mov_b32 v1, 0")
    lslow = k.lab("CHslow"); ldone = k.lab("CHdone")
    k("s_lshr_b32 s44, s44, 16")
    k("s_cmp_lg_u32 s44, %d", 0 if not force_slow else 77)
    k("s_cbranch_scc1 %s", lslow)
    n0 = len(k.lines)
    k.L(lwarm)
    chain_loop(k, "", "F")
    k.L(lwend)
    o = getattr(k, 'copt', {})
    if o.get('free'):
        body = k.lines[n0:]; out = []
        for l in body:
            ls = l.strip()
            if 's100' in ls: out.append(l); continue
            if ls.startswith('s_cbranch_vccnz'): continue
            if ls.startswith('s_cbranch_vccz Fs0v'): l = l.replace('s_cbranch_vccz', 's_branch')
            if ls.startswith('s_cbranch_scc1 Frsm'): continue
            if 'novmem' in o['free'] and (ls.startswith('buffer_') or 'vmcnt' in ls): continue
            if 'nowait' in o['free'] and 'vmcnt' in ls: continue
            out.append(l)
        k.lines[n0:] = out
    k("s_branch %s", ldone)
    k.L(lslow)
    chain_loop(k, "sc1", "S")
    k.L(ldone)
    if k.copt.get('plog'):
        k("s_lshl_b32 s100, s%d, 2", S_HEAD)
        k("s_add_u32 s100, s100, s%d", S_WAVE)
        k("s_lshl_b32 s100, s100, 8")
        k("s_add_u32 s100, s100, 0x%x", TS + 8 * 65536)
        k("v_lshrrev_b32 v40, 2, %s", v(aL16))
        k("buffer_store_dword v1, v40, %s, s100 offen", s(S_WS, 4))
    tick_dump(k)
    k("s_waitcnt vmcnt(0)")
    stamp(k, 2, 3, wgreg=S_HEAD, vt=56)
    dstamp(k, 7, 56); dstamp(k, 5, 56, False, 94); dstamp(k, 6, 56, False, 96); dstamp(k, 3, 56, True, 98)
    stamp(k, 2, 5, wgreg=S_HEAD, vt=56, cyc=True)
```

```python
from roles import *
import struct
def f2u(x): return struct.unpack('<I', struct.pack('<f', x))[0]

L_KT = 131072
L_MB = L_KT + 16384
L_XB = L_MB + 8192
L_OB = L_XB + 5120
L_MISC_ = L_OB + 2560
WQ, WK, WO = 256, 384, 128
aM = [2, 3, 4, 5]; aXW = 6; aXR = 7; aOW = 8; aWV = 9; aKT = 10; aL16 = 11
aH1S = 12; aWO = 13; aH1L = 11; aH2S = 14; IDX = 15
KVM = 16
SEL = 20
VTN = 24
MA = 32; AQ = 64; AK = 72; AV = 80; G = 88; VT = 120
S_HEAD = 5; S_LIM = 6; S_STEP = 7
S_WQ, S_WK, S_WV, S_WO = 12, 16, 20, 28
sH1S0, sH1S1, sH1L, sH2S, sH2L = 32, 33, 34, 35, 36
sKV = 37; sKTD = 38; sKM = 39; sVIM = 40; sC = 41; sCNT = 42; sT = 43
sH1R = 50; sH2R = 51; sMASK = 52
sPH = 50; sTHR = 49; sSAFE = 55; sQF = 46; sKF = 47; aFL = 0; aFL4 = 0
CSC = 0.08838834764831845 * 1.4426950408889634
VORD = [0, 2, 4, 6, 1, 3, 5, 7]
CT = MA

from chain import elect, xmax
def tick(k, i):
    if getattr(k, 'ticks', False): k("s_memtime s[%d:%d]", 64 + 2 * i, 65 + 2 * i)
def tick_init(k):
    if not getattr(k, 'ticks', False): return
    for i in range(96, 100): k("s_mov_b32 s%d, 0", i)
def tick_step_end(k):
    if not getattr(k, 'ticks', False): return
    l = k.lab("tse")
    k("s_cmp_lg_u32 s%d, %d", S_STEP, k.copt.get('tstep', 41))
    k("s_cbranch_scc1 %s", l)
    k("s_waitcnt vmcnt(0) lgkmcnt(0)")
    k("s_lshl_b32 s100, s%d, 2", S_HEAD)
    k("s_add_u32 s100, s100, s%d", S_WAVE)
    k("s_lshl_b32 s100, s100, 7")
    k("s_add_u32 s100, s100, 0x%x", TS + 8 * 65536)
    k("v_mov_b32 v41, 0")
    for i in range(16):
        k("v_mov_b32 v40, s%d", 64 + 2 * i)
        k("buffer_store_dword v40, v41, %s, s100 offen offset:%d", s(S_WS, 4), 4 * i)
    for e in range(2):
        lw = k.lab("cal")
        k("s_memrealtime s[64:65]")
        k("s_waitcnt lgkmcnt(0)")
        if e: k("s_add_u32 s64, s64, 100")
        k.L(lw)
        k("s_memrealtime s[66:67]")
        k("s_memtime s[68:69]")
        k("s_waitcnt lgkmcnt(0)")
        k("s_sub_u32 s70, s64, s66")
        k("s_cmp_ge_i32 s70, 0")
        k("s_cbranch_scc1 %s", lw)
        k("v_mov_b32 v40, s66")
        k("buffer_store_dword v40, v41, %s, s100 offen offset:%d", s(S_WS, 4), 80 + 8 * e)
        k("v_mov_b32 v40, s68")
        k("buffer_store_dword v40, v41, %s, s100 offen offset:%d", s(S_WS, 4), 84 + 8 * e)
    k.L(l)
def tick_dump(k):
    if not getattr(k, 'ticks', False): return
    k("v_mov_b32 v41, 0")
    for i in range(4):
        k("v_mov_b32 v40, s%d", 96 + i)
        k("buffer_store_dword v40, v41, %s, s100 offen offset:%d", s(S_WS, 4), 64 + 4 * i)

def SMF(acc, A, B): return "v_smfmac_f32_16x16x64_bf16 %s, %s, %s, %s" % (v(acc, 4), v(A, 4), u(B, 8), v(IDX))
def MF(d, A, B, first): return "v_mfma_f32_16x16x32_bf16 %s, %s, %s, %s" % (v(d, 4), v(A, 4), v(B, 4), "0" if first else v(d, 4))
def M16(d, A, B): return "v_mfma_f32_16x16x16_bf16 %s, %s, %s, %s" % (v(d, 4), v(A, 2), v(B, 2), v(d, 4))

def chain_setup(k):
    w = S_WAVE
    k.c("---- chain setup: addresses")
    k("v_lshlrev_b32 %s, 4, v1", v(aL16))
    for jp in range(4):
        k("s_xor_b32 s%d, s%d, %d", sT, w, jp)
        k("s_lshl_b32 s%d, s%d, 11", sT, sT)
        k("s_add_u32 s%d, s%d, %d", sT, sT, L_MB)
        k("v_add_u32 %s, s%d, %s", v(aM[jp]), sT, v(aL16))
    k("v_and_b32 v90, 15, v1")
    k("v_lshrrev_b32 v91, 4, v1")
    k("v_bfe_u32 v92, v1, 2, 2")
    k("v_and_b32 v93, 3, v1")
    k("v_mul_u32_u24 v94, 320, v91")
    k("v_lshl_add_u32 v94, v90, 3, v94")
    k("s_mul_i32 s%d, s%d, 1280", sT, w)
    k("s_add_u32 s%d, s%d, %d", sT, sT, L_XB)
    k("v_add_u32 %s, s%d, v94", v(aXW), sT)
    k("s_lshr_b32 s%d, s%d, 1", sT, w)
    k("s_mul_i32 s%d, s%d, 1280", sT, sT)
    k("s_and_b32 s%d, s%d, 1", sCNT, w)
    k("s_lshl_b32 s%d, s%d, 7", sCNT, sCNT)
    k("s_add_u32 s%d, s%d, s%d", sT, sT, sCNT)
    k("s_add_u32 s%d, s%d, %d", sT, sT, L_OB)
    k("v_add_u32 %s, s%d, v94", v(aOW), sT)
    k("v_mul_u32_u24 v94, 320, v93")
    k("v_lshrrev_b32 v95, 2, v1")
    k("v_lshl_add_u32 v94, v95, 3, v94")
    k("v_add_u32 %s, %d, v94", v(aXR), L_XB)
    k("s_lshl_b32 s%d, s%d, 14", sT, w)
    k("v_add_u32 %s, s%d, %s", v(aWV), sT, v(aL16))
    k("v_add_u32 %s, 0x10000, %s", v(aWO), v(aWV))
    k("v_add_u32 %s, %d, %s", v(aKT), L_KT, v(aL16))
    k("v_lshrrev_b32 v94, 3, v90")
    k("v_lshl_add_u32 v94, v94, 2, v91")
    k("v_lshlrev_b32 v94, 13, v94")
    k("v_and_b32 v95, 7, v1")
    k("v_lshl_add_u32 %s, v95, 3, v94", v(aH1S))
    k("v_lshlrev_b32 v94, 4, v91")
    k("v_lshl_add_u32 v94, v93, 2, v94")
    k("v_mov_b32 v95, v92")
    k("v_cmp_eq_u32 vcc, 0, v95")
    k("v_mov_b32 v95, 0x40000000")
    k("v_cndmask_b32 %s, v95, v94, vcc", v(aH2S))
    k("v_and_b32 v94, 2, v1")
    k("v_cmp_eq_u32 vcc, 0, v94")
    k("v_mov_b32 v94, 0x44444444")
    k("v_mov_b32 v95, 0xeeeeeeee")
    k("v_cndmask_b32 %s, v95, v94, vcc", v(IDX))
    k("v_mov_b32 v94, 0x3f80")
    k("v_mov_b32 v95, 0x3f800000")
    for d in range(4):
        k("v_cmp_eq_u32 vcc, %d, v90", 4 * d)
        k("v_cndmask_b32 %s, 0, v94, vcc", v(SEL + d))
        k("v_cmp_eq_u32 vcc, %d, v90", 4 * d + 1)
        k("v_cndmask_b32 %s, %s, v95, vcc", v(SEL + d), v(SEL + d))
    k("s_lshl_b32 s%d, s%d, 16", sT, w)
    k("s_lshl_b32 s%d, s%d, 6", sH1S0, S_HEAD)
    k("s_add_u32 s%d, s%d, s%d", sH1S0, sH1S0, sT)
    k("s_add_u32 s%d, s%d, 0x%x", sH1S0, sH1S0, HOP1)
    k("s_add_u32 s%d, s%d, 0x1000", sH1S1, sH1S0)
    k("s_lshl_b32 s%d, s%d, 2", sH1L, S_HEAD)
    k("s_add_u32 s%d, s%d, s%d", sH1L, sH1L, w)
    k("s_lshl_b32 s%d, s%d, 11", sH1L, sH1L)
    k("s_add_u32 s%d, s%d, 0x%x", sH1L, sH1L, HOP1)
    k("s_lshr_b32 s%d, s%d, 3", sH2S, S_HEAD)
    k("s_lshl_b32 s%d, s%d, 11", sH2S, sH2S)
    k("s_and_b32 s%d, s%d, 7", sT, S_HEAD)
    k("s_lshl_b32 s%d, s%d, 6", sT, sT)
    k("s_add_u32 s%d, s%d, s%d", sH2S, sH2S, sT)
    k("s_lshl_b32 s%d, s%d, 9", sT, w)
    k("s_add_u32 s%d, s%d, s%d", sH2S, sH2S, sT)
    k("s_add_u32 s%d, s%d, 0x%x", sH2S, sH2S, HOP2)
    k("s_lshl_b32 s%d, s%d, 11", sH2L, w)
    k("s_add_u32 s%d, s%d, 0x%x", sH2L, sH2L, HOP2)
    k("s_lshl_b32 s%d, s%d, 13", sKV, S_HEAD)
    k("s_lshl_b32 s%d, s%d, 11", sT, w)
    k("s_add_u32 s%d, s%d, s%d", sKV, sKV, sT)
    k("s_add_u32 s%d, s%d, 0x%x", sVIM, sKV, VIMG)
    k("s_add_u32 s%d, s%d, 0x%x", sKV, sKV, KIMG)
    k("s_add_u32 s%d, s%d, %d", sKTD, sT, L_KT)
    k("s_lshl_b32 s%d, s%d, 12", sKM, S_HEAD)
    k("s_lshl_b32 s%d, s%d, 10", sT, w)
    k("s_add_u32 s%d, s%d, s%d", sKM, sKM, sT)
    k("s_add_u32 s%d, s%d, 0x%x", sKM, sKM, KM - 0x20000)
    k("s_mov_b32 s%d, 0x%x", sC, f2u(CSC))
    k("s_mov_b32 s%d, 400000", S_LIM)
    k("s_mov_b32 s%d, 0x33333333", sMASK)
    k("s_mov_b32 s%d, 0x33333333", sMASK + 1)
    k("s_mov_b32 s%d, 0", sPH)
    k("s_xor_b32 s%d, s%d, 0x2000", sH2R, sH2S)

def merged_setup(k):
    k("s_lshl_b32 s%d, s%d, 5", sQF, S_HEAD)
    k("s_add_u32 s%d, s%d, 0x%x", sQF, sQF, FLAGS + F_QF)
    k("s_lshl_b32 s%d, s%d, 7", sKF, S_HEAD)
    k("s_add_u32 s%d, s%d, 0x%x", sKF, sKF, FLAGS + F_KF)
    k("v_lshlrev_b32 %s, 2, v93", v(aFL))

def kv_refresh(k, plus, back=None):
    lp = k.lab("kvr"); ok = k.lab("kvok")
    k("s_mov_b32 s%d, 0", sCNT)
    k("s_add_u32 s%d, s%d, %d", sT, S_STEP, plus)
    k.L(lp)
    k("buffer_load_dword v1, %s, %s, s%d offen sc1", v(aFL), s(S_WS, 4), sQF)
    k("s_waitcnt vmcnt(0)")
    k("v_cmp_ge_u32 vcc, s%d, v1", sT)
    k("s_cbranch_vccz %s", ok)
    k("s_sleep 2")
    k("s_add_u32 s%d, s%d, 1", sCNT, sCNT)
    k("s_cmp_lt_u32 s%d, s%d", sCNT, S_LIM)
    k("s_cbranch_scc1 %s", lp)
    k("s_mov_b32 s%d, 0", S_LIM)
    k.L(ok)
    if back: k("s_branch %s", back)

import chain as _c1
def chain_arm(k):
    k.c("---- arm hop buffers (both slots), sc1")
    for i in range(4): k("v_mov_b32 %s, -1", v(96 + i))
    for slot in range(2):
        k("s_add_u32 s%d, s%d, 0x%x", sT, sH1L, slot * 262144)
        k("buffer_store_dwordx4 v[96:99], %s, %s, s%d offen sc1", v(aL16), s(S_WS, 4), sT)
        k("buffer_store_dwordx4 v[96:99], %s, %s, s%d offen offset:1024 sc1", v(aL16), s(S_WS, 4), sT)
    k("buffer_store_dword v96, %s, %s, s%d offen sc1", v(aH2S), s(S_WS, 4), sH2R)
load_mem0 = _c1.load_mem0
WVR_ = 128
WOR_ = 192

def chain_load_weights(k, hooks={}, pre_issue={}, after_first=None):
    w = S_WAVE
    k.c("---- chain weight load")
    k("v_and_b32 v90, 15, v1")
    k("v_lshrrev_b32 v91, 4, v1")
    k("s_and_b32 s44, s%d, 1", w)
    k("s_lshl_b32 s44, s44, 2")
    k("v_xor_b32 v120, s44, v90")
    k("v_and_b32 v121, 1, v91")
    k("v_lshlrev_b32 v121, 3, v121")
    k("v_xor_b32 v120, v120, v121")
    k("v_lshlrev_b32 v120, 4, v120")
    k("v_lshl_add_u32 v120, v91, 13, v120")
    k("s_lshl_b32 s45, s%d, 8", S_HEAD)
    k("s_lshl_b32 s48, s%d, 17", w)
    k("s_add_u32 s45, s45, s48")
    k("s_lshl_b32 s44, s%d, 12", w)
    sc = [('q', 0), ('q', 1), ('k', 0), ('k', 1), ('v', 1), ('o', 0), ('v', 0), ('o', 1)]
    srds = dict(q=S_WQ, k=S_WK, v=S_WV, o=S_WO)
    queue = []
    def issue(i):
        m, par = sc[i]; reg = (i & 1) * 65536
        for n in range(16):
            if m == 'o':
                k("s_add_u32 s48, s49, %d", par * 128 + n * 8192)
                k("s_add_u32 m0, s3, %d", n * 1024)
            else:
                c, q = n >> 2, n & 3
                k("s_add_u32 s48, s45, %d", (2 * c + par) * 64 * 8192 + q * 4 * 8192)
                k("s_add_u32 m0, s44, %d", reg + c * 16384 + q * 1024)
            k("buffer_load_dwordx4 v%d, %s, s48 offen lds", 121 if m == 'o' else 120, s(srds[m], 4))
            queue.append(i)
    k("s_waitcnt lgkmcnt(0)")
    fin_srd(k, 'Wq', S_WQ)
    lstamp(k, 7)
    issue(0)
    if after_first: after_first(k)
    k("v_lshrrev_b32 v121, 3, v1")
    k("v_lshlrev_b32 v121, 10, v121")
    k("v_and_b32 v122, 7, v1")
    k("v_lshl_add_u32 v121, v122, 4, v121")
    k("v_and_b32 v126, 1, v92")
    k("v_lshl_add_u32 v126, v126, 2, v91")
    k("v_lshrrev_b32 v127, 1, v92")
    k("v_lshl_add_u32 v126, v126, 2, v127")
    k("v_lshlrev_b32 v126, 8, v126")
    k("v_xor_b32 v127, s%d, v92", w)
    k("v_lshl_add_u32 v126, v127, 6, v126")
    k("v_lshl_add_u32 v126, v93, 4, v126")
    for jp in range(4):
        k("s_xor_b32 s48, s%d, %d", w, jp)
        k("s_lshl_b32 s48, s48, 14")
        k("v_add_u32 v%d, s48, v126", 122 + jp)
    k("v_lshrrev_b32 v126, 1, v92")
    k("v_lshrrev_b32 v127, 1, v91")
    k("v_lshl_add_u32 v126, v127, 1, v126")
    k("v_and_b32 v127, 1, v91")
    k("v_lshl_add_u32 v126, v127, 3, v126")
    k("v_lshlrev_b32 v126, 2, v126")
    k("v_and_b32 v127, 1, v92")
    k("v_add_u32 v126, v126, v127")
    k("v_lshlrev_b32 v126, 7, v126")
    k("v_lshl_add_u32 v126, v93, 3, v126")
    k("s_lshl_b32 s48, s%d, 14", w)
    k("s_add_u32 s3, s48, 0x10000")
    k("v_add_u32 v126, s3, v126")
    k("s_lshl_b32 s49, s%d, 17", S_HEAD)
    k("s_lshl_b32 s48, s%d, 8", w)
    k("s_add_u32 s49, s49, s48")
    if -1 in hooks: queue.extend([-1] * hooks[-1](k))
    issue(1)
    lstamp(k, 5)
    TMP = 40
    for i in range(8):
        m, par = sc[i]
        if i in hooks: queue.extend([-1] * hooks[i](k))
        last = max(n for n, c in enumerate(queue) if c == i)
        k("s_waitcnt vmcnt(%d)", len(queue) - 1 - last)
        k("s_barrier")
        if i in (0, 2, 4, 5, 6): lstamp(k, {0: 0, 2: 2, 4: 4, 5: 1, 6: 3}[i])
        inplace = i >= 6
        cnt = 0
        for a_ in range(4):
            for b_ in range(2):
                if inplace: dst = TMP + (a_ * 2 + b_) * 8
                elif m == 'q': dst = WQ + (b_ * 8 + 2 * a_ + par) * 8
                elif m == 'k': dst = WK + (b_ * 8 + 2 * a_ + par) * 8
                elif m == 'v': dst = WVR_ + (a_ * 2 + b_) * 8
                else: dst = WOR_ + (a_ * 2 + b_) * 8
                for y in range(4):
                    if m == 'o':
                        k("ds_read_b64_tr_b16 %s, v126 offset:%d", u(dst + 2 * y, 2), (64 * b_ + 16 * (y >> 1) + 2 * (y & 1)) * 128 + 32 * a_)
                    else:
                        k("ds_read_b64_tr_b16 %s, v%d offset:%d", u(dst + 2 * y, 2), 122 + a_, (32 * (y >> 1) + 2 * (y & 1)) * 256 + 8 * b_)
                cnt += 4
                if cnt % 8 == 0: k("s_waitcnt lgkmcnt(4)")
        if i < 4:
            for jp in range(4): k("v_xor_b32 v%d, 0x10000, v%d", 122 + jp, 122 + jp)
        k("s_waitcnt lgkmcnt(0)")
        k("s_barrier")
        if inplace:
            for q in range(16):
                k("ds_write_b128 %s, %s offset:%d", v(aWO if m == 'o' else aWV), v(TMP + 4 * q, 4), q * 1024)
                if q % 8 == 7: k("s_waitcnt lgkmcnt(0)")
        if i in pre_issue: queue.extend([-1] * pre_issue[i](k))
        if i + 2 < 8: issue(i + 2)


def PFK(p):
    W = s(S_WS, 4)
    return [["s_mov_b32 m0, s%d" % sKTD, "buffer_load_dwordx4 %s, %s, s%d offen sc1 lds" % (v(aL16), W, sKV)],
            ["buffer_load_dwordx4 %s, %s, s%d offen offset:1024 sc1 lds" % (v(aL16), W, sKV)],
            ["buffer_load_dwordx4 %s, %s, %s, s%d offen sc1" % (v(VTN, 4), v(aL16), W, sVIM)],
            ["buffer_load_dwordx4 %s, %s, %s, s%d offen offset:1024 sc1" % (v(VTN + 4, 4), v(aL16), W, sVIM)],
            ["s_add_u32 s%d, s%d, 0x40000" % (sKV, sKV), "s_add_u32 s%d, s%d, 0x40000" % (sVIM, sVIM),
             "s_xor_b32 s%d, s%d, 0x2000" % (sKTD, sKTD)]][p]

def WVR(n, h):
    return "ds_read_b128 %s, %s offset:%d" % (v(G + (n & 3) * 8 + 4 * h, 4), v(aWV), n * 2048 + h * 1024)

def weave(k, spine, fill):
    for i, m in enumerate(spine):
        k(m)
        for f in fill.get(i, []): k(f)

def check_n(k, buf, n, t0, t1):
    if n == 8:
        k("v_max3_u32 %s, %s, %s, %s", v(t0), v(buf), v(buf + 1), v(buf + 2))
        k("v_max3_u32 %s, %s, %s, %s", v(t1), v(buf + 3), v(buf + 4), v(buf + 5))
        k("v_max3_u32 %s, %s, %s, %s", v(t0), v(buf + 6), v(buf + 7), v(t0))
        k("v_max_u32 %s, %s, %s", v(t0), v(t0), v(t1))
    else:
        k("v_max3_u32 %s, %s, %s, %s", v(t0), v(buf), v(buf + 1), v(buf + 2))
        k("v_max_u32 %s, %s, %s", v(t0), v(t0), v(buf + 3))
    k("v_cmp_eq_u32 vcc, -1, %s", v(t0))

def retry_stub(k, lab, back, loads, buf, n, pre=None, cnt=None):
    k.L(lab)
    lp = k.lab("rp")
    k("s_mov_b32 s%d, 0", sCNT)
    k.L(lp)
    for l in loads: k(l)
    if cnt is not None and getattr(k, 'ticks', False): k("s_add_u32 s%d, s%d, 1", cnt, cnt)
    k("s_waitcnt vmcnt(0)")
    if pre:
        for l in pre: k(l)
    check_n(k, buf, n, CT, CT + 1)
    k("s_cbranch_vccz %s", back)
    k("s_add_u32 s%d, s%d, 1", sCNT, sCNT)
    k("s_cmp_lt_u32 s%d, s%d", sCNT, S_LIM)
    k("s_cbranch_scc1 %s", lp)
    k("s_mov_b32 s%d, 0", S_LIM)
    k("s_branch %s", back)

def delay(k, slots):
    while slots > 0:
        m = min(slots, 16); k("s_nop %d", m - 1); slots -= m

def chain_loop(k, stf, tag):
    W = s(S_WS, 4)
    o = getattr(k, 'copt', {})
    mg = getattr(k, 'merged', False)
    tk = getattr(k, 'ticks', False)
    TK = lambda i: ("s_memtime s[%d:%d]" % (64 + 2 * i, 65 + 2 * i)) if tk else ""
    lexit = k.lab(tag + "exit"); bexit = k.lab(tag + "bexit")
    Qs = lambda j, b: [SMF(AQ, b, WQ + j * 8), SMF(AQ + 4, b, WQ + (8 + j) * 8)]
    Ks = lambda j, b: [SMF(AK, b, WK + j * 8), SMF(AK + 4, b, WK + (8 + j) * 8)]
    Vs = lambda j, b: [SMF(AV + 4 * t, b, (G + ((j + t) & 3) * 8) if j % 2 == 0 else (WVR_ + ((j >> 1) * 2 + t) * 8)) for t in range(2)]
    Q = lambda j: Qs(j, MA + 4 * j); Kp = lambda j: Ks(j, MA + 4 * j); V = lambda j: Vs(j, MA + 4 * j)
    KORD = [0, 1, 2, 4, 6, 3, 5, 7]
    MR = lambda j: "ds_read_b128 %s, %s offset:%d" % (v(MA + 4 * j, 4), v(aM[j >> 1]), (j & 1) * 1024)
    KTR = lambda f: "ds_read_b128 %s, %s offset:%d" % (v(MA + 4 * KORD[f], 4), v(aKT), f * 1024)
    MV = lambda d, x: "v_mov_b32 %s, %s" % (v(d), x)
    EX = lambda d, s_: "v_exp_f32 %s, %s" % (v(d), v(s_))
    CV = lambda d, a_, b_: "v_cvt_pk_bf16_f32 %s, %s, %s" % (v(d), v(a_), v(b_))
    FA = lambda a_: ["v_add_f32 %s, %s, %s" % (v(a_), v(a_), v(a_ + 2)), "v_add_f32 %s, %s, %s" % (v(a_ + 1), v(a_ + 1), v(a_ + 3))]
    stkvm = "buffer_store_dwordx4 %s, %s, %s, s%d offen sc1" % (v(KVM, 4), v(aL16), W, sKM)
    r_sm = k.lab(tag + "rsm"); b_sm = k.lab(tag + "bsm"); r_kv = k.lab(tag + "rkv"); b_kv = k.lab(tag + "bkv")
    EB = [MA, VTN]
    lF = [k.lab(tag + "s0f") for _ in EB]; lto = k.lab(tag + "to")
    RD = MA + 16; HT = MA + 20; H1 = MA + 8; H1B = MA + 24
    lde = lambda b: ["buffer_load_dwordx4 %s, %s, %s, s%d offen sc1" % (v(b, 4), v(aL16), W, sH2L),
                     "buffer_load_dwordx4 %s, %s, %s, s%d offen offset:1024 sc1" % (v(b + 4, 4), v(aL16), W, sH2L)]
    def spin(reg, n, lab, magic="0x7fc1"):
        for i in range(n):
            k("v_cmp_ne_u32 vcc, %s, %s", magic, v(reg))
            k("s_cbranch_vccnz %s", lab)
    lS = [k.lab(tag + "s0v") for _ in EB]; lcom = k.lab(tag + "com"); lpoll = k.lab(tag + "poll")
    k("s_branch %s", lS[0])
    k(".aw_on")
    nb0 = o.get('b0', 5)
    fl = [[],
          ["buffer_load_dword v1, %s, %s, s%d offen sc1" % (v(aFL4), W, sQF)]] if mg else [[], []]
    for bi in (1, 0):
        b = EB[bi]; ob = EB[1 - bi]
        k(".aw_reset")
        k.L(lF[1 - bi])
        if o.get('nanc', 1):
            k("v_max_u32 %s, %s, %s", v(HT), v(ob + 3), v(ob + 7))
            k("v_cmp_eq_u32 vcc, -1, %s", v(HT))
            k("s_cbranch_vccz %s", lS[1 - bi])
        if o.get('mask', 0): k("s_mov_b64 exec, vcc")
        for l in lde(ob): k(l)
        if o.get('mask', 0): k("s_mov_b64 exec, -1")
        if tk: k("s_add_u32 s97, s97, 1")
        k("s_add_u32 s%d, s%d, 1", sCNT, sCNT)
        k("s_cmp_ge_u32 s%d, s%d", sCNT, S_LIM)
        k("s_cbranch_scc1 %s", lto)
        if bi == 0: k.L(lpoll)
        ar = k.lab(tag + "ar2")
        spin(b + 7, o.get('ns2', 16), ar, "-2")
        k.L(ar)
        k("s_waitcnt vmcnt(2)")
        if o.get('nanc', 1): k("v_cmp_u_f32 vcc, %s, %s", v(b + 3), v(b + 7))
        else:
            k("v_max_u32 %s, %s, %s", v(HT), v(b + 3), v(b + 7))
            k("v_cmp_eq_u32 vcc, -1, %s", v(HT))
        k("s_cbranch_vccnz %s", lF[bi])
        k.L(lS[bi])
        tick(k, 15); tick_step_end(k); tick(k, 0)
        if o.get('plog2'): k("s_memtime s[64:65]"); k("s_memrealtime s[66:67]")
        w64 = o.get('w64', 0)
        if w64 == 0: k("ds_write_b128 %s, %s", v(aM[0]), v(b, 4))
        f = {o.get('gw2', 2): ["ds_write_b128 %s, %s offset:1024" % (v(aM[0]), v(b + 4, 4))], nb0: [".aw_writes", "s_barrier", TK(1), MR(2)]}
        if w64 == 1:
            del f[o.get('gw2', 2)]
            ws = ["ds_write_b64 %s, %s offset:%d" % (v(aM[0]), v(b + 2 * i, 2), (i >> 1) * 1024 + (i & 1) * 8) for i in range(4)]
            k(ws[0])
            for i in range(1, 4): f[i - 1] = [ws[i]]
        if w64 == 2:
            del f[o.get('gw2', 2)]
            ws = ["ds_write_b32 %s, %s offset:%d" % (v(aM[0]), v(b + i), (i >> 2) * 1024 + (i & 3) * 4) for i in range(8)]
            k(ws[0]); k(ws[1])
            for i in range(3): f[i] = ws[2 + 2 * i: 4 + 2 * i]
        for x in range(3, 8): f[min(nb0 + x - 2, 11)] = f.get(min(nb0 + x - 2, 11), []) + [MR(x)]
        if o.get('early', 0): f[1] = PFK(0)[1:]; f[2] = PFK(1); f[3] = [stkvm]; f[4] = fl[0]
        weave(k, Qs(0, b) + Ks(0, b) + Qs(1, b + 4) + Ks(1, b + 4) + Vs(0, b) + Vs(1, b + 4), f)
        if bi: k("s_branch %s", lcom)
    k.L(lcom)
    r_qf = k.lab(tag + "rqf"); b_qf = k.lab(tag + "bqf")
    if mg and o.get('qfc', 1):
        k("s_cbranch_scc1 %s", r_qf) if False else None
    qf = []
    for t in range(2):
        a_ = AQ + 4 * t
        qf += FA(a_) + ["v_mul_f32 %s, s%d, %s" % (v(a_), sC, v(a_)), "v_mul_f32 %s, s%d, %s" % (v(a_ + 1), sC, v(a_ + 1)), CV(a_, a_, a_ + 1)]
    E_ = lambda x: [] if o.get('early', 0) else x
    weave(k, Q(2) + Q(3) + Q(4) + Q(5) + Q(6) + Q(7) + Kp(2) + Kp(3) + Kp(4) + Kp(5) + Kp(6) + Kp(7), {
        0: [TK(2), "s_waitcnt vmcnt(0)"] + PFK(2), 1: (["s_cmp_lg_u32 s%d, 0" % sSAFE, "s_cbranch_scc1 %s" % r_qf, b_qf + ":"] if (mg and o.get('qfc', 1)) else []) + [WVR(4, 0)], 2: [WVR(4, 1)], 3: PFK(3), 4: [WVR(5, 0)], 5: [WVR(5, 1)], 6: PFK(0)[1:], 7: [KTR(1)],
        8: (["v_mov_b32 v34, s64", "v_mov_b32 v35, s66", "v_mov_b32 v33, 0", "s_lshl_b32 s68, s%d, 3" % S_STEP, "s_add_u32 s68, s68, s100",
             "buffer_store_dwordx2 v[34:35], v33, %s, s68 offen" % W] if o.get('plog2') else []),
        9: PFK(1), 10: [KTR(0)], 11: PFK(4), 12: [stkvm],
        13: ["s_add_u32 s%d, s%d, 0x20000" % (sKM, sKM), qf[0]], 14: [qf[1]], 15: [qf[5]], 16: fl[0] + [qf[6]], 17: [qf[2]], 18: [qf[3]], 19: (fl[1] if not o.get('qfc', 1) else []) + [qf[7]], 20: [qf[8]],
        21: [qf[4]], 22: [qf[9]], 23: (["ds_write2_b32 %s, %s, %s offset0:0 offset1:32" % (v(aXW), v(AQ), v(AQ + 4))] if o.get('qw', 1) else [])})
    X = AQ
    XR = lambda i: "ds_read_b64_tr_b16 %s, %s offset:%d" % (v(X + 2 * i, 2), v(aXR), (i >> 1) * 1280 + (i & 1) * 128)
    ONES, PM, LA, E, T1, T2, T0 = G, G + 4, G + 8, G + 12, G + 20, G + 24, G + 28
    O1 = "0x3f803f80"
    KORD[:] = [0, 1, 2, 4, 3, 5, 6, 7]
    kf = FA(AK) + FA(AK + 4) + [CV(AQ + 1, AK, AK + 1), CV(AQ + 5, AK + 4, AK + 5)]
    XW = "ds_write2_b64 %s, %s, %s offset0:0 offset1:16" % (v(aXW), v(AQ, 2), v(AQ + 4, 2))
    BAR = [".aw_writes", "s_barrier", TK(6)]
    vs = V(2) + V(4) + V(3) + V(5) + V(6) + V(7)
    nb = o.get('xb', 6)
    f = {0: [WVR(6, 0)] + kf, 1: [XW, TK(5)], 2: [WVR(6, 1), MV(KVM, v(AQ + 1))], 3: [WVR(7, 0), MV(KVM + 1, v(AQ + 5))], 4: [WVR(7, 1), MV(ONES, O1)], 5: [KTR(2), MV(ONES + 1, O1)]}
    mv = [MV(ONES + 2, O1), MV(ONES + 3, O1), MV(PM + 1, "0"), MV(PM + 2, "0")]
    if o.get('qw', 1):
        kf = FA(AK) + FA(AK + 4) + [CV(KVM, AK, AK + 1), CV(KVM + 1, AK + 4, AK + 5)]
        XW = "ds_write2_b32 %s, %s, %s offset0:1 offset1:33" % (v(aXW), v(KVM), v(KVM + 1))
        f = {0: [WVR(6, 0)] + kf, 1: [XW, TK(5)], 2: [WVR(6, 1)], 3: [WVR(7, 0), MV(ONES, O1)], 4: [WVR(7, 1), MV(ONES + 1, O1)], 5: [KTR(2), MV(ONES + 2, O1)]}
        mv = [MV(ONES + 3, O1), MV(PM + 1, "0"), MV(PM + 2, "0")]
    xs = [XR(i) for i in range(8)]
    cnt = o.get('xc', {5: [2, 1, 1, 1, 1, 1, 1], 6: [1, 2, 2, 1, 1, 1], 7: [2, 2, 2, 1, 1], 8: [2, 2, 2, 2]}[nb])
    for g_ in range(6, nb): f[g_] = [KTR(3) if g_ == 6 else KTR(4), mv.pop(0)]
    kdone = 3 + max(0, nb - 6)
    for x, c_ in enumerate(cnt):
        f[nb + x] = (f.get(nb, []) + BAR if x == 0 else []) + xs[:c_]; xs = xs[c_:]
    assert not xs
    weave(k, vs, f)
    vf = []
    for t in range(2): vf += FA(AV + 4 * t) + [CV(KVM + 2 + t, AV + 4 * t, AV + 4 * t + 1)]
    t1 = lambda kb: MF(T1, MA + 4 * KORD[kb], X + 4 * kb, kb == 0)
    t2 = lambda kb: MF(T2, MA + 4 * KORD[4 + kb], X + 4 * kb, kb == 0)
    t0 = lambda kb: MF(T0, X + 4 * kb, X + 4 * kb, kb == 0)
    KQ = lambda i: [KTR(kdone + i)] if kdone + i < 8 else []
    tb = o.get('tb', 1)
    fc = {0: [TK(7)] + KQ(0) + mv[:1], 1: KQ(1) + [vf[0]], 2: KQ(2) + [vf[1]], 3: KQ(3) + [vf[3]], 4: KQ(4) + [vf[4]], 5: [vf[2], vf[5]],
          6: ["s_cmp_ge_u32 s%d, %d" % (S_STEP, o.get('kvl', 59)), "s_cbranch_scc1 %s" % lexit, bexit + ":"] + mv[1:2], 7: mv[2:]}
    if tb == 0:
        fc.update({8: [EX(E, T1)], 9: [EX(E + 1, T1 + 1)], 10: [EX(E + 2, T1 + 2)],
            11: [EX(E + 3, T1 + 3), EX(T0, T0 + 2), EX(T0 + 1, T0 + 3), CV(E, E, E + 1), CV(E + 1, E + 2, E + 3), CV(PM, T0, T0 + 1), CV(PM + 3, T0, T0 + 1)]})
        weave(k, [t1(0), t0(0), t1(1), t0(1), t1(2), t0(2), t1(3), t2(0), t0(3), t2(1), t2(2), t2(3)], fc)
        pvf = {0: [EX(E + 4, T2)], 1: [EX(E + 5, T2 + 1)], 2: [EX(E + 6, T2 + 2), EX(E + 7, T2 + 3), CV(E + 2, E + 4, E + 5), CV(E + 3, E + 6, E + 7)]}
    else:
        fc.update({8: [EX(T0, T0 + 2)], 9: [EX(T0 + 1, T0 + 3)], 10: [CV(PM, T0, T0 + 1), CV(PM + 3, T0, T0 + 1)], 11: [EX(E, T1)]})
        weave(k, [t0(0), t1(0), t0(1), t1(1), t0(2), t1(2), t0(3), t1(3), t2(0), t2(1), t2(2), t2(3)], fc)
        pvf = {0: [EX(E + 1, T1 + 1)], 1: [EX(E + 2, T1 + 2)], 2: [EX(E + 3, T1 + 3), EX(E + 4, T2), EX(E + 5, T2 + 1), CV(E, E, E + 1), EX(E + 6, T2 + 2), EX(E + 7, T2 + 3),
               CV(E + 1, E + 2, E + 3), CV(E + 2, E + 4, E + 5), CV(E + 3, E + 6, E + 7)]}
    O = AV
    Z = lambda i: "v_mov_b32 %s, 0" % v(MA + i)
    M16z = lambda d, A, B: "v_mfma_f32_16x16x16_bf16 %s, %s, %s, 0" % (v(d, 4), v(A, 2), v(B, 2))
    tick(k, 8)
    def pv(k, fast):
        weave(k, [M16z(LA, PM, ONES), M16z(O, PM, KVM + 2), M16z(O + 4, PM + 2, KVM + 2)],
              pvf if fast else {})
        weave(k, [MF(LA, E, ONES, False), MF(O, E, VT, False), MF(O + 4, E, VT + 4, False)], {})
    pv(k, True)
    k("v_rcp_f32 %s, %s", v(LA), v(LA))
    k("v_rcp_f32 %s, %s", v(LA + 1), v(LA + 1))
    k.L(b_sm)
    for t in range(2):
        if o.get('pk', 1): k("v_pk_mul_f32 %s, %s, %s", v(O + 4 * t, 2), v(O + 4 * t, 2), v(LA, 2))
        else:
            k("v_mul_f32 %s, %s, %s", v(O + 4 * t), v(O + 4 * t), v(LA))
            k("v_mul_f32 %s, %s, %s", v(O + 4 * t + 1), v(O + 4 * t + 1), v(LA + 1))
        k(CV(E + 4 + t, O + 4 * t, O + 4 * t + 1))
    k("ds_write_b64 %s, %s", v(aOW), v(E + 4, 2))
    tick(k, 9)
    Z2 = lambda i: "v_mov_b64 %s, 0" % v(MA + 2 * i, 2)
    ZP = X + 8 + 6
    ZM = lambda r: "v_mfma_f32_32x32x8_bf16 %s, %s, %s, 0" % (v(r, 16), v(ZP, 2), v(ZP, 2))
    k("v_max3_f32 %s, |%s|, |%s|, |%s|", v(X), v(T1), v(T1 + 1), v(T1 + 2))
    k("v_max3_f32 %s, |%s|, |%s|, |%s|", v(X + 1), v(T1 + 3), v(T2), v(T2 + 1))
    k("v_max3_f32 %s, |%s|, |%s|, %s", v(X), v(T2 + 2), v(T2 + 3), v(X))
    k("v_max3_f32 %s, |%s|, |%s|, %s", v(X + 1), v(T0 + 2), v(T0 + 3), v(X + 1))
    k("v_mov_b64 %s, 0", v(ZP, 2))
    k("v_max_f32 %s, %s, %s", v(X), v(X), v(X + 1))
    k("v_cmp_lt_f32 vcc, s%d, %s", sTHR, v(X))
    k("s_and_b64 vcc, vcc, %s", s(sMASK, 2))
    k("s_cbranch_scc1 %s", r_sm)
    k("s_mov_b32 s%d, 0x42700000", sTHR)
    k(ZM(MA))
    k(".aw_writes"); k("s_barrier")
    tick(k, 10)
    OA = AQ
    for i in range(4):
        k("ds_read_b64_tr_b16 %s, %s offset:%d", v(OA + 2 * i, 2), v(aXR), (L_OB - L_XB) + (i >> 1) * 1280 + (i & 1) * 128)
        if i == o.get('zp', 1): k(ZM(MA + 16))
    PK = AK
    SB = {(4, 0): G, (5, 0): G + 8, (4, 1): G + 16, (5, 1): G + 24, (6, 0): VT, (7, 0): AV, (6, 1): G, (7, 1): G + 8}
    WOB = lambda nt, kbo: (WOR_ + (nt * 2 + kbo) * 8) if nt < 4 else SB[(nt, kbo)]
    WR = lambda nt, kbo, h: "ds_read_b128 %s, %s offset:%d" % (v(SB[(nt, kbo)] + 4 * h, 4), v(aWO), ((nt - 4) * 2 + kbo) * 2048 + h * 1024)
    WS_ = lambda nt, kbo: SMF(MA + 4 * nt, OA + 4 * kbo, WOB(nt, kbo))
    AD = lambda nt, b: "v_add_f32 %s, %s, %s" % (v(MA + 4 * nt + b), v(MA + 4 * nt + b), v(MA + 4 * nt + 2 + b))
    PC = lambda sx, b, hh: CV(PK + 4 * sx + 2 * b + hh, MA + 4 * (4 * sx + 2 * hh) + b, MA + 4 * (4 * sx + 2 * hh + 1) + b)
    ST1 = lambda sx: "buffer_store_dwordx4 %s, %s, %s, s%d offen %s" % (v(PK + 4 * sx, 4), v(aH1S), W, sH1S1 if sx else sH1S0, stf)
    PA = lambda nt: "v_pk_add_f32 %s, %s, %s" % (v(MA + 4 * nt, 2), v(MA + 4 * nt, 2), v(MA + 4 * nt + 2, 2))
    TG = lambda sx: "v_and_or_b32 %s, %s, -2, s%d" % (v(PK + 4 * sx), v(PK + 4 * sx), sPH)
    k(WR(4, 0, 0)); k(WR(4, 0, 1))
    A2 = lambda nt: [PA(nt)] if o.get('pk', 1) else [AD(nt, 0), AD(nt, 1)]
    P2 = lambda tp, b: CV(PK + 2 * tp + b, MA + 8 * tp + b, MA + 8 * tp + 4 + b)
    T2_ = lambda tp: "v_and_or_b32 %s, %s, -2, s%d" % (v(PK + 2 * tp), v(PK + 2 * tp), sPH)
    S2 = lambda tp: "buffer_store_dwordx2 %s, %s, %s, s%d offen offset:%d %s" % (v(PK + 2 * tp, 2), v(aH1S), W, sH1S1 if tp >> 1 else sH1S0, (tp & 1) * 2048, stf)
    fin = lambda tp: [AD(2 * tp + 1, 0), AD(2 * tp + 1, 1), P2(tp, 0), P2(tp, 1), T2_(tp), S2(tp)]
    fa = {0: [TK(11), WR(5, 0, 0)], 1: [WR(5, 0, 1)], 2: [WR(4, 1, 0)], 3: [WR(4, 1, 1)],
        4: [WR(5, 1, 0), AD(0, 0)], 5: [WR(5, 1, 1), AD(0, 1)] + fin(0) + [TK(12)], 6: [WR(6, 0, 0), WR(6, 0, 1)], 7: [WR(7, 0, 0), WR(7, 0, 1)],
        8: [WR(6, 1, 0), AD(2, 0)], 9: [WR(6, 1, 1), AD(2, 1), WR(7, 1, 0), WR(7, 1, 1)] + fin(1),
        12: [AD(4, 0)], 13: [AD(4, 1)] + fin(2),
        15: A2(6) + A2(7) + [P2(3, 0), P2(3, 1), T2_(3), S2(3)]}
    wv_ = o.get('wv', 3)
    if wv_ == 0:
        fa = {0: [TK(11), WR(5, 0, 0)], 1: [WR(5, 0, 1)], 2: [WR(4, 1, 0)], 3: [WR(4, 1, 1)],
            4: [WR(5, 1, 0), AD(0, 0)], 5: [WR(5, 1, 1), AD(0, 1)], 6: [WR(6, 0, 0), AD(1, 0)], 7: [WR(6, 0, 1), WR(7, 0, 0), WR(7, 0, 1)] + fin(0)[1:] + [TK(12)],
            8: [WR(6, 1, 0), AD(2, 0)], 9: [WR(6, 1, 1), AD(2, 1)], 10: [WR(7, 1, 0), AD(3, 0)], 11: [WR(7, 1, 1)] + fin(1)[1:],
            12: [AD(4, 0)], 13: [AD(4, 1)], 14: [AD(5, 0)],
            15: fin(2)[1:] + A2(6) + A2(7) + [P2(3, 0), P2(3, 1), T2_(3), S2(3)]}
    elif wv_ == 1:
        fa = {0: [TK(11), WR(5, 0, 0)], 1: [WR(5, 0, 1)], 2: [WR(4, 1, 0), WR(4, 1, 1)], 3: [WR(5, 1, 0), WR(5, 1, 1)],
            4: [WR(6, 0, 0), AD(0, 0)], 5: [WR(6, 0, 1), AD(0, 1)], 6: [WR(7, 0, 0)] + fin(0)[:-1], 7: [S2(0), TK(12), WR(7, 0, 1)],
            8: [WR(6, 1, 0), AD(2, 0)], 9: [WR(6, 1, 1), AD(2, 1)], 10: [WR(7, 1, 0), WR(7, 1, 1)] + fin(1)[:-1], 11: [S2(1)],
            12: [AD(4, 0)], 13: [AD(4, 1)], 14: fin(2)[:-1],
            15: [S2(2)] + A2(6) + A2(7) + [P2(3, 0), P2(3, 1), T2_(3), S2(3)]}
    elif wv_ == 3:
        fa = {0: [TK(11), WR(5, 0, 0)], 1: [WR(5, 0, 1)], 2: [WR(4, 1, 0), WR(4, 1, 1)], 3: [WR(5, 1, 0), WR(5, 1, 1)],
            4: [WR(6, 0, 0), AD(0, 0)], 5: [WR(6, 0, 1), AD(0, 1)], 6: [WR(7, 0, 0)] + fin(0)[:-1], 7: [S2(0), TK(12), WR(7, 0, 1)],
            8: [WR(6, 1, 0), AD(2, 0)], 9: [WR(6, 1, 1), AD(2, 1)], 10: [WR(7, 1, 0), WR(7, 1, 1)] + fin(1)[:-1], 11: [S2(1)],
            12: [AD(4, 0)], 13: [AD(4, 1)] + fin(2)[:-1], 14: [S2(2)],
            15: A2(6) + A2(7) + [P2(3, 0), P2(3, 1), T2_(3), S2(3)]}
    elif wv_ == 4:
        fa = {0: [TK(11), WR(5, 0, 0)], 1: [WR(5, 0, 1)], 2: [WR(4, 1, 0), WR(4, 1, 1)], 3: [WR(5, 1, 0), WR(5, 1, 1)],
            4: [WR(6, 0, 0), AD(0, 0)], 5: [WR(6, 0, 1), AD(0, 1)], 6: [WR(7, 0, 0), AD(1, 0)], 7: [WR(7, 0, 1)] + fin(0)[1:-1], 8: [S2(0), TK(12), WR(6, 1, 0), AD(2, 0)],
            9: [WR(6, 1, 1), AD(2, 1)], 10: [WR(7, 1, 0), WR(7, 1, 1)] + fin(1)[:-1], 11: [S2(1)],
            12: [AD(4, 0)], 13: [AD(4, 1)] + fin(2)[:-1], 14: [S2(2)],
            15: A2(6) + A2(7) + [P2(3, 0), P2(3, 1), T2_(3), S2(3)]}
    else:
        fa = {0: [TK(11), WR(5, 0, 0)], 1: [WR(5, 0, 1)], 2: [WR(4, 1, 0), WR(4, 1, 1)], 3: [WR(5, 1, 0), WR(5, 1, 1)],
            4: [WR(6, 0, 0), AD(0, 0)], 5: [WR(6, 0, 1), AD(0, 1)], 6: [WR(7, 0, 0), AD(1, 0)], 7: [WR(7, 0, 1)] + fin(0)[1:-1], 8: [S2(0), TK(12), WR(6, 1, 0), AD(2, 0)],
            9: [WR(6, 1, 1), AD(2, 1)], 10: [WR(7, 1, 0), AD(3, 0)], 11: [WR(7, 1, 1)] + fin(1)[1:-1], 12: [S2(1), AD(4, 0)],
            13: [AD(4, 1)], 14: fin(2)[:-1],
            15: [S2(2)] + A2(6) + A2(7) + [P2(3, 0), P2(3, 1), T2_(3), S2(3)]}
    weave(k, [WS_(0, 0), WS_(1, 0), WS_(0, 1), WS_(1, 1), WS_(2, 0), WS_(3, 0), WS_(2, 1), WS_(3, 1), WS_(4, 0), WS_(5, 0),
              WS_(4, 1), WS_(5, 1), WS_(6, 0), WS_(7, 0), WS_(6, 1), WS_(7, 1)], fa)
    tick(k, 13)
    if o.get('plog'):
        k("s_mov_b32 m0, s%d", S_STEP)
        k("v_writelane_b32 v1, s64, m0")
    RD = MA + 16; HT = MA + 20; H1 = MA + 8; H1B = MA + 24
    h1lb = lambda b: ["buffer_load_dwordx4 %s, %s, %s, s%d offen sc1" % (v(b, 4), v(aL16), W, sH1L),
           "buffer_load_dwordx4 %s, %s, %s, s%d offen offset:1024 sc1" % (v(b + 4, 4), v(aL16), W, sH1L)]
    redb = lambda b: [MF(RD, SEL, b, True), MF(RD, SEL, b + 4, False),
           "v_bitop3_b32 %s, %s, %s, s%d bitop3:0x7e" % (v(HT), v(b), v(b + 4), sPH), "v_and_b32 %s, 1, %s" % (v(HT), v(HT)),
           "v_cmp_ne_u32 vcc, 0, %s" % v(HT)]
    h1l = h1lb(H1); red = redb(H1)
    lde = lambda b: ["buffer_load_dwordx4 %s, %s, %s, s%d offen sc1" % (v(b, 4), v(aL16), W, sH2L),
                     "buffer_load_dwordx4 %s, %s, %s, s%d offen offset:1024 sc1" % (v(b + 4, 4), v(aL16), W, sH2L)]
    KAV = "v_mov_b32 %s, 0" % v(MA + 22)
    def warm(vl, ol, slots, per=o.get('per', 4)):
        while slots > 0:
            k(vl.pop(0) if vl else (KAV if o.get('ka', 0) else "s_nop 0")); slots -= 1
            r = min(per - 1, slots)
            while r > 0 and ol:
                x = ol.pop(0); k(x); c = 2 if x.startswith('ds_') else 1; r -= c; slots -= c
            if r > 0: k("s_nop %d", r - 1); slots -= r
    def spin(reg, n, lab, magic="0x7fc1"):
        for i in range(n):
            k("v_cmp_ne_u32 vcc, %s, %s", magic, v(reg))
            k("s_cbranch_vccnz %s", lab)
            if o.get('spn', 0): k("s_nop %d", o.get('spn') - 1)
    ok1 = k.lab(tag + "ok1"); rr1 = k.lab(tag + "r1"); ar1 = k.lab(tag + "ar1"); ar0 = k.lab(tag + "ar0")
    lp1 = k.lab(tag + "lp1"); lB = k.lab(tag + "gB"); lA2 = k.lab(tag + "gA2")
    k("s_cmp_ge_u32 s%d, 2", S_WAVE)
    k(".aw_fork")
    k("s_cbranch_scc1 %s", lB)
    for g in 'ab':
        if g == 'b':
            k.L(lB); k(".aw_join")
        hv = ["v_mov_b64 %s, 0" % v(AQ + 2 * i, 2) for i in range(12)] + ["v_xor_b32 %s, 0x2000, %s" % (v(aKT), v(aKT))]
        ho = [WVR(n, h) for n in range(4) for h in range(2)] + \
             ["s_mov_b32 s%d, s%d" % (sH2R, sH2S), "s_xor_b32 s%d, s%d, 0x2000" % (sH2S, sH2S)] + \
             ["s_xor_b32 s%d, s%d, 0x40000" % (r, r) for r in (sH1S0, sH1S1)] + \
             ["s_xor_b32 s%d, s%d, 0x2000" % (sH2L, sH2L), "s_add_u32 s%d, s%d, 1" % (S_STEP, S_STEP), "s_mov_b32 m0, s%d" % sKTD, "s_mov_b32 s%d, 0" % sCNT]
        warm(hv, ho, o.get('p0' + g, 24 if g == 'a' else 44))
        tick(k, 3)
        for l in h1lb(H1B): k(l)
        warm(hv, ho, o.get('p1' + g, 54 if g == 'a' else 24))
        for l in h1l: k(l)
        warm(hv, ho, o.get('w1' + g, 2 if g == 'a' else 14))
        assert not hv and not ho
        k(".aw_all")
        if g == 'a': k("s_branch %s", lp1)
    k.L(lp1)
    spin(H1B + 3, o.get('ns1', 24), ar0)
    k.L(ar0)
    k("s_waitcnt vmcnt(3)")
    tick(k, 4)
    k(redb(H1B)[0])
    k("s_waitcnt vmcnt(2)")
    for l in redb(H1B)[1:]: k(l)
    k("s_cbranch_vccnz %s", rr1)
    k.L(ok1)
    for sh in (4, 8):
        for r in (RD, RD + 1): k("v_add_f32_dpp %s, %s, %s row_ror:%d row_mask:0xf bank_mask:0xf", v(r), v(r), v(r), sh)
    k("v_cvt_pk_bf16_f32 %s, %s, %s", v(RD), v(RD), v(RD + 1))
    k("buffer_store_dword %s, %s, %s, s%d offen %s", v(RD), v(aH2S), W, sH2S, stf)
    tick(k, 14)
    k(MV(HT, "-1"))
    k("buffer_store_dword %s, %s, %s, s%d offen %s", v(HT), v(aH2S), W, sH2R, stf)
    hv = ["v_mov_b64 %s, %s" % (v(VT + 2 * i, 2), v(VTN + 2 * i, 2)) for i in range(4)]
    ho = ["s_xor_b32 s%d, s%d, 0x40000" % (sH1L, sH1L), "s_bfe_u32 s%d, s%d, 0x10001" % (sPH, S_STEP), "s_mov_b32 s%d, 0" % sCNT]
    if mg:
        k("s_add_u32 s%d, s%d, 1", sT, S_STEP); k("v_cmp_ge_u32 vcc, s%d, v1", sT)
        k("s_cbranch_vccnz %s", r_kv)
        k.L(b_kv)
        if o.get('qfc', 1):
            k("s_add_u32 s%d, s%d, %d", sT, S_STEP, o.get('qfm', 4)); k("v_cmp_ge_u32 vcc, s%d, v1", sT)
            k("s_or_b32 s%d, vcc_lo, vcc_hi", sSAFE)
    k("s_cmp_ge_u32 s%d, 2", S_WAVE)
    k("s_cbranch_scc1 %s", lA2)
    warm([], [], o.get('p2a', 20))
    k.L(lA2)
    p2 = o.get('p2', [26, 30])
    warm(hv, ho, p2[0])
    assert not hv and not ho
    for l in lde(EB[0]): k(l)
    warm(hv, ho, p2[1])
    for l in lde(EB[1]): k(l)
    warm(hv, ho, o.get('w2', 15))
    k(".aw_all")
    k(".aw_off")
    k("s_branch %s", lpoll)
    k.L(lto)
    k("s_mov_b32 s%d, 0", S_LIM)
    k("s_waitcnt vmcnt(0)")
    k("s_branch %s", lS[0])
    k.L(rr1)
    if o.get('mask', 0): k("s_mov_b64 exec, vcc")
    for l in h1lb(H1B): k(l)
    if o.get('mask', 0): k("s_mov_b64 exec, -1")
    if tk: k("s_add_u32 s98, s98, 1")
    spin(H1 + 7, o.get('ns1', 24), ar1)
    k.L(ar1)
    k("s_waitcnt vmcnt(2)")
    for l in red: k(l)
    k("s_cbranch_vccz %s", ok1)
    if o.get('mask', 0): k("s_mov_b64 exec, vcc")
    for l in h1l: k(l)
    if o.get('mask', 0): k("s_mov_b64 exec, -1")
    if tk: k("s_add_u32 s96, s96, 1")
    k("s_add_u32 s%d, s%d, 1", sCNT, sCNT)
    k("s_cmp_lt_u32 s%d, s%d", sCNT, S_LIM)
    k("s_cbranch_scc1 %s", lp1)
    k("s_mov_b32 s%d, 0", S_LIM)
    k("s_branch %s", ok1)
    if mg and o.get('qfc', 1):
        k.L(r_qf)
        for x in fl[1]: k(x)
        k("s_branch %s", b_qf)
    if mg:
        k.L(r_kv)
        kv_refresh(k, 1, b_kv)
    k.L(r_sm)
    k("v_max3_f32 %s, %s, %s, %s", v(X), v(T1), v(T1 + 1), v(T1 + 2))
    k("v_max3_f32 %s, %s, %s, %s", v(X), v(T1 + 3), v(T2), v(X))
    k("v_max3_f32 %s, %s, %s, %s", v(X), v(T2 + 1), v(T2 + 2), v(X))
    k("v_max3_f32 %s, %s, %s, %s", v(X), v(T2 + 3), v(T0 + 2), v(X))
    k("v_max_f32 %s, %s, %s", v(X), v(T0 + 3), v(X))
    xmax(k, X, X + 1)
    for r in [T1 + i for i in range(8)] + [T0 + 2, T0 + 3]: k("v_sub_f32 %s, %s, %s", v(r), v(r), v(X))
    for i in range(8): k(EX(E + i, T1 + i))
    k(EX(T0, T0 + 2)); k(EX(T0 + 1, T0 + 3))
    for i in range(4): k(CV(E + i, E + 2 * i, E + 2 * i + 1))
    k(CV(PM, T0, T0 + 1)); k(CV(PM + 3, T0, T0 + 1))
    pv(k, False)
    k("s_mov_b32 s%d, 0x7f800000", sTHR)
    k("v_rcp_f32 %s, %s", v(LA), v(LA))
    k("v_rcp_f32 %s, %s", v(LA + 1), v(LA + 1))
    k("s_waitcnt lgkmcnt(0)")
    k("s_branch %s", b_sm)
    k.L(lexit)
    k(stkvm)
    k("s_cmp_lt_u32 s%d, 63", S_STEP)
    k("s_cbranch_scc1 %s", bexit)
    k("s_waitcnt lgkmcnt(0)")

def role_chain(k, force_slow=False):
    mg = getattr(k, 'merged', False)
    srds = (('Wq', S_WQ), ('Wk', S_WK), ('Wv', S_WV), ('Wo', S_WO), ('mem0', 56))
    for n, r in srds: load_srd(k, n, r)
    def after_first(k):
        for n, r in srds[1:] + (('ws', S_WS), ('dbg', S_DBG)): fin_srd(k, n, r)
        chain_setup(k)
        merged_setup(k)
        k("s_mov_b32 s%d, 0", S_STEP)
    W = s(S_WS, 4)
    def h_arm(k):
        chain_arm(k)
        k("v_lshrrev_b32 v104, 1, v90")
        k("v_and_b32 v104, 6, v104")
        k("v_and_b32 v105, 1, v1")
        k("v_add_u32 v104, v104, v105")
        k("v_lshlrev_b32 v104, 10, v104")
        k("v_lshrrev_b32 v105, 1, v91")
        k("v_lshl_add_u32 v104, v105, 6, v104")
        k("v_and_b32 v105, 1, v91")
        k("v_lshl_add_u32 v104, v105, 4, v104")
        k("s_lshl_b32 s%d, s%d, 8", sT, S_WAVE)
        for j in range(2):
            k("buffer_load_dwordx4 %s, v104, %s, s%d offen offset:%d", v(40 + 8 * j, 4), s(56, 4), sT, j * 128)
            k("buffer_load_dwordx4 %s, v104, %s, s%d offen offset:%d", v(44 + 8 * j, 4), s(56, 4), sT, j * 128 + 32)
        k("v_mov_b32 v107, 0")
        k("buffer_load_dword v118, v107, %s, 0 offen offset:%d sc1", s(S_DBG, 4), DBG_T)
        return 10
    lwarm = k.lab("CW"); lwend = k.lab("CWe")
    def h_mem0(k):
        lt = k.lab("CT"); lt2 = k.lab("CT2")
        k("v_cmp_eq_u32 vcc, 0, v118")
        k("s_cbranch_vccz %s", lt)
        wait_ready(k, 118, DBG_T)
        k.L(lt)
        k("v_readfirstlane_b32 s%d, v118", sT)
        k("s_cmp_lg_u32 s%d, s54", sT)
        k("s_cselect_b32 s100, 2, 1")
        k("s_cbranch_scc0 %s", lt2)
        k("s_cmp_eq_u32 s101, 0")
        k("s_cbranch_scc1 %s", k.lswap)
        k.L(lt2)
        k("v_and_b32 v105, 2, v1")
        k("v_mul_u32_u24 v105, 0x10101, v105")
        k("v_and_b32 v106, 2, v1")
        k("v_lshl_add_u32 v105, v106, 24, v105")
        k("v_add_u32 v105, 0x05040100, v105")
        for j in range(2):
            for i in range(4):
                k("v_perm_b32 %s, %s, %s, v105", v(MA + 4 * j + i), v(44 + 8 * j + i), v(40 + 8 * j + i))
        n = 0
        if k.copt.get('cwarm', 1):
            lpc = k.lab("pc")
            k("s_getpc_b64 s[60:61]")
            k.L(lpc)
            k("s_add_u32 s60, s60, %s-%s", lwarm, lpc)
            k("s_addc_u32 s61, s61, 0")
            k("s_lshl_b32 s%d, s%d, 13", sT, S_WAVE)
            k("v_lshlrev_b32 v104, 7, v1")
            k("v_min_u32 v105, %s-%s-4, v104", lwend, lwarm)
            k("global_load_dword v116, v105, s[60:61]")
            k("v_add_u32 v104, 0x2000, v104")
            k("v_min_u32 v105, %s-%s-4, v104", lwend, lwarm)
            k("global_load_dword v117, v105, s[60:61]")
            n += 2
        return n
    def h_rdy(k):
        k("buffer_load_dword v108, v107, %s, 0 offen offset:%d sc1", s(S_DBG, 4), DBG_READY)
        return 1
    def announce(k):
        k("v_mov_b32 v106, s100")
        k("s_lshl_b32 s%d, s%d, 30", sT, S_WAVE)
        k("s_lshr_b32 s%d, s%d, 1", sCNT, sT)
        k("s_or_b32 s%d, s%d, s%d", sT, sT, sCNT)
        k("s_and_b32 s%d, s%d, 0x40000000", sT, sT)
        k("v_mov_b32 v105, 0x40000000")
        k("v_cmp_eq_u32 vcc, 0, v108")
        k("v_mov_b32 v104, s%d", sT)
        k("v_cndmask_b32 v105, v104, v105, vcc")
        k("buffer_store_dword v106, v105, %s, s%d offen sc1", W, sKF)
    def h_announce(k):
        announce(k)
        return 1
    def h_qf(k):
        k("buffer_load_dword v109, %s, %s, s%d offen sc1", v(aFL), W, sQF)
        return 1
    def h_warm(k):
        n = 0
        for base, x in ((sH1L, 0), (sH1L, 0x40000), (sH2L, 0), (sH2L, 0x2000)):
            k("s_xor_b32 s%d, s%d, 0x%x", sT, base, x)
            for off in (0, 1024):
                k("buffer_load_dwordx4 v[112:115], %s, %s, s%d offen offset:%d sc1", v(aL16), W, sT, off)
                n += 1
        return n
    def h_flags(k): return h_qf(k) + h_warm(k)
    def h_pf(k):
        k("s_waitcnt vmcnt(%d)", 16 + {0: 0, 1: 9, 2: 1, 3: 8, 4: 0}[k.copt.get('hv', 0)])
        k("v_cmp_eq_u32 vcc, 0, v108")
        k("s_or_b32 s%d, vcc_lo, vcc_hi", sSAFE)
        k("v_cmp_ge_u32 vcc, 1, v109")
        k("s_or_b32 s%d, s%d, vcc_lo", sSAFE, sSAFE)
        for p in range(4):
            for l in PFK(p): k(l)
        k("v_and_b32 v111, 31, v1")
        k("v_lshlrev_b32 v111, 7, v111")
        k("s_mov_b32 s63, 0x%x", FLAGS + F_KF)
        k("buffer_load_dword v110, v111, %s, s63 offen sc1", W)
        return 5
    def h3(k): return h_mem0(k) + h_announce(k)
    hv_ = k.copt.get('hv', 0)
    if hv_ == 0: hooks = {-1: h_arm, 1: h_rdy, 2: h_mem0, 4: h_announce, 5: h_flags, 7: h_pf}
    elif hv_ == 1: hooks = {-1: h_arm, 1: h_rdy, 2: h_mem0, 5: h_qf, 6: (lambda k: h_announce(k) + h_warm(k)), 7: h_pf}
    elif hv_ >= 2: hooks = {-1: h_arm, 1: h_rdy, 2: h_mem0, 5: h_qf, 6: h_announce, 7: (lambda k: h_pf(k) + h_warm(k))}
    pre = {}
    if hv_ == 3: hooks = {-1: h_arm}; pre = {0: h_rdy, 1: h_mem0, 2: h_announce, 3: h_qf, 4: h_warm, 5: h_pf}
    if hv_ == 4: hooks = {-1: h_arm}; pre = {0: h_rdy, 1: h_mem0, 2: h_announce, 3: h_warm, 4: h_qf, 6: h_pf}
    chain_load_weights(k, hooks, pre, after_first)
    stamp(k, 2, 1, wgreg=S_HEAD, vt=120)
    if k.copt.get('dst'): k("s_memrealtime s[94:95]")
    if mg:
        lok = k.lab("CHf")
        k("s_cmp_eq_u32 s%d, 0", sSAFE)
        k("s_cbranch_scc1 %s", lok)
        wait_ready(k, 108)
        announce(k)
        k("v_mov_b32 v110, 0")
        kv_refresh(k, 1)
        for p in range(4):
            for l in PFK(p): k(l)
        k.L(lok)
    k("s_mov_b32 s%d, 1", sSAFE)
    k("s_mov_b32 s%d, 0x42700000", sTHR)
    for l in PFK(4): k(l)
    k("s_waitcnt vmcnt(0)")
    k("v_mov_b32 %s, v110", v(KVM)); k("v_mov_b32 %s, v111", v(KVM + 1))
    for n in range(4):
        k(WVR(n, 0)); k(WVR(n, 1))
    for i in range(24): k("v_mov_b32 %s, 0", v(AQ + i))
    lp = k.lab("CHs"); ok = k.lab("CHok")
    k("s_mov_b32 s%d, 0", sCNT)
    k.L(lp)
    k("v_cmp_eq_u32 vcc, 0, %s", v(KVM))
    k("s_cbranch_vccz %s", ok)
    k("s_sleep 2")
    k("buffer_load_dword %s, %s, %s, s63 offen sc1", v(KVM), v(KVM + 1), W)
    k("s_waitcnt vmcnt(0)")
    k("s_add_u32 s%d, s%d, 1", sCNT, sCNT)
    k("s_cmp_lt_u32 s%d, s%d", sCNT, S_LIM)
    k("s_cbranch_scc1 %s", lp)
    k("s_mov_b32 s%d, 0", S_LIM)
    k.L(ok)
    k("v_cmp_ne_u32 vcc, 1, %s", v(KVM))
    k("s_or_b32 s44, vcc_lo, vcc_hi")
    for i in range(8): k("v_mov_b32 %s, %s", v(VT + i), v(VTN + i))
    k("s_waitcnt lgkmcnt(0)")
    stamp(k, 2, 2, wgreg=S_HEAD, vt=56)
    if k.copt.get('dst'): k("s_memrealtime s[96:97]"); k("s_waitcnt lgkmcnt(0)")
    stamp(k, 2, 4, wgreg=S_HEAD, vt=56, cyc=True)
    tick_init(k)
    if k.copt.get('plog2'):
        k("s_lshl_b32 s100, s%d, 2", S_HEAD)
        k("s_add_u32 s100, s100, s%d", S_WAVE)
        k("s_lshl_b32 s100, s100, 9")
        k("s_add_u32 s100, s100, 0x%x", TS + 8 * 65536)
    k("s_mov_b32 m0, s%d", sKTD)
    k("v_mov_b32 v1, 0")
    lslow = k.lab("CHslow"); ldone = k.lab("CHdone")
    k("s_cmp_lg_u32 s44, %d", 0 if not force_slow else 77)
    k("s_cbranch_scc1 %s", lslow)
    n0 = len(k.lines)
    k.L(lwarm)
    chain_loop(k, "", "F")
    k.L(lwend)
    o = getattr(k, 'copt', {})
    if o.get('free'):
        body = k.lines[n0:]; out = []
        for l in body:
            ls = l.strip()
            if 's100' in ls: out.append(l); continue
            if ls.startswith('s_cbranch_vccnz'): continue
            if ls.startswith('s_cbranch_vccz Fs0v'): l = l.replace('s_cbranch_vccz', 's_branch')
            if ls.startswith('s_cbranch_scc1 Frsm'): continue
            if 'novmem' in o['free'] and (ls.startswith('buffer_') or 'vmcnt' in ls): continue
            if 'nowait' in o['free'] and 'vmcnt' in ls: continue
            out.append(l)
        k.lines[n0:] = out
    k("s_branch %s", ldone)
    k.L(lslow)
    chain_loop(k, "sc1", "S")
    k.L(ldone)
    if k.copt.get('plog'):
        k("s_lshl_b32 s100, s%d, 2", S_HEAD)
        k("s_add_u32 s100, s100, s%d", S_WAVE)
        k("s_lshl_b32 s100, s100, 8")
        k("s_add_u32 s100, s100, 0x%x", TS + 8 * 65536)
        k("v_lshrrev_b32 v40, 2, %s", v(aL16))
        k("buffer_store_dword v1, v40, %s, s100 offen", s(S_WS, 4))
    tick_dump(k)
    k("s_waitcnt vmcnt(0)")
    stamp(k, 2, 3, wgreg=S_HEAD, vt=56)
    dstamp(k, 7, 56); dstamp(k, 5, 56, False, 94); dstamp(k, 6, 56, False, 96); dstamp(k, 3, 56, True, 98)
    stamp(k, 2, 5, wgreg=S_HEAD, vt=56, cyc=True)
```

```python
from roles import *
import struct
def f2u(x): return struct.unpack('<I', struct.pack('<f', x))[0]

L_KT = 131072
L_MB = L_KT + 16384
L_XB = L_MB + 8192
L_OB = L_XB + 5120
L_MISC_ = L_OB + 2560
WQ, WK, WO = 256, 384, 128
aM = [2, 3, 4, 5]; aXW = 6; aXR = 7; aOW = 8; aWV = 9; aKT = 10; aL16 = 11
aH1S = 12; aWO = 13; aH1L = 11; aH2S = 14; IDX = 15
KVM = 16
SEL = 20
VTN = 24
MA = 32; AQ = 64; AK = 72; AV = 80; G = 88; VT = 120
S_HEAD = 5; S_LIM = 6; S_STEP = 7
S_WQ, S_WK, S_WV, S_WO = 12, 16, 20, 28
sH1S0, sH1S1, sH1L, sH2S, sH2L = 32, 33, 34, 35, 36
sKV = 37; sKTD = 38; sKM = 39; sVIM = 40; sC = 41; sCNT = 42; sT = 43
sH1R = 50; sH2R = 51; sMASK = 52
sPH = 50; sTHR = 49; sSAFE = 55; sQF = 46; sKF = 47; aFL = 0; aFL4 = 0
CSC = 0.08838834764831845 * 1.4426950408889634
VORD = [0, 2, 4, 6, 1, 3, 5, 7]
CT = MA

from chain import elect, xmax
def tick(k, i):
    if getattr(k, 'ticks', False): k("s_memtime s[%d:%d]", 64 + 2 * i, 65 + 2 * i)
def tick_init(k):
    if not getattr(k, 'ticks', False): return
    for i in range(96, 100): k("s_mov_b32 s%d, 0", i)
def tick_step_end(k):
    if not getattr(k, 'ticks', False): return
    l = k.lab("tse")
    k("s_cmp_lg_u32 s%d, %d", S_STEP, k.copt.get('tstep', 41))
    k("s_cbranch_scc1 %s", l)
    k("s_waitcnt vmcnt(0) lgkmcnt(0)")
    k("s_lshl_b32 s100, s%d, 2", S_HEAD)
    k("s_add_u32 s100, s100, s%d", S_WAVE)
    k("s_lshl_b32 s100, s100, 7")
    k("s_add_u32 s100, s100, 0x%x", TS + 8 * 65536)
    k("v_mov_b32 v41, 0")
    for i in range(16):
        k("v_mov_b32 v40, s%d", 64 + 2 * i)
        k("buffer_store_dword v40, v41, %s, s100 offen offset:%d", s(S_WS, 4), 4 * i)
    for e in range(2):
        lw = k.lab("cal")
        k("s_memrealtime s[64:65]")
        k("s_waitcnt lgkmcnt(0)")
        if e: k("s_add_u32 s64, s64, 100")
        k.L(lw)
        k("s_memrealtime s[66:67]")
        k("s_memtime s[68:69]")
        k("s_waitcnt lgkmcnt(0)")
        k("s_sub_u32 s70, s64, s66")
        k("s_cmp_ge_i32 s70, 0")
        k("s_cbranch_scc1 %s", lw)
        k("v_mov_b32 v40, s66")
        k("buffer_store_dword v40, v41, %s, s100 offen offset:%d", s(S_WS, 4), 80 + 8 * e)
        k("v_mov_b32 v40, s68")
        k("buffer_store_dword v40, v41, %s, s100 offen offset:%d", s(S_WS, 4), 84 + 8 * e)
    k.L(l)
def tick_dump(k):
    if not getattr(k, 'ticks', False): return
    k("v_mov_b32 v41, 0")
    for i in range(4):
        k("v_mov_b32 v40, s%d", 96 + i)
        k("buffer_store_dword v40, v41, %s, s100 offen offset:%d", s(S_WS, 4), 64 + 4 * i)

def SMF(acc, A, B): return "v_smfmac_f32_16x16x64_bf16 %s, %s, %s, %s" % (v(acc, 4), v(A, 4), u(B, 8), v(IDX))
def MF(d, A, B, first): return "v_mfma_f32_16x16x32_bf16 %s, %s, %s, %s" % (v(d, 4), v(A, 4), v(B, 4), "0" if first else v(d, 4))
def M16(d, A, B): return "v_mfma_f32_16x16x16_bf16 %s, %s, %s, %s" % (v(d, 4), v(A, 2), v(B, 2), v(d, 4))

def chain_setup(k):
    w = S_WAVE
    k.c("---- chain setup: addresses")
    k("v_lshlrev_b32 %s, 4, v1", v(aL16))
    for jp in range(4):
        k("s_xor_b32 s%d, s%d, %d", sT, w, jp)
        k("s_lshl_b32 s%d, s%d, 11", sT, sT)
        k("s_add_u32 s%d, s%d, %d", sT, sT, L_MB)
        k("v_add_u32 %s, s%d, %s", v(aM[jp]), sT, v(aL16))
    k("v_and_b32 v90, 15, v1")
    k("v_lshrrev_b32 v91, 4, v1")
    k("v_bfe_u32 v92, v1, 2, 2")
    k("v_and_b32 v93, 3, v1")
    k("v_mul_u32_u24 v94, 320, v91")
    k("v_lshl_add_u32 v94, v90, 3, v94")
    k("s_mul_i32 s%d, s%d, 1280", sT, w)
    k("s_add_u32 s%d, s%d, %d", sT, sT, L_XB)
    k("v_add_u32 %s, s%d, v94", v(aXW), sT)
    k("s_lshr_b32 s%d, s%d, 1", sT, w)
    k("s_mul_i32 s%d, s%d, 1280", sT, sT)
    k("s_and_b32 s%d, s%d, 1", sCNT, w)
    k("s_lshl_b32 s%d, s%d, 7", sCNT, sCNT)
    k("s_add_u32 s%d, s%d, s%d", sT, sT, sCNT)
    k("s_add_u32 s%d, s%d, %d", sT, sT, L_OB)
    k("v_add_u32 %s, s%d, v94", v(aOW), sT)
    k("v_mul_u32_u24 v94, 320, v93")
    k("v_lshrrev_b32 v95, 2, v1")
    k("v_lshl_add_u32 v94, v95, 3, v94")
    k("v_add_u32 %s, %d, v94", v(aXR), L_XB)
    k("s_lshl_b32 s%d, s%d, 14", sT, w)
    k("v_add_u32 %s, s%d, %s", v(aWV), sT, v(aL16))
    k("v_add_u32 %s, 0x10000, %s", v(aWO), v(aWV))
    k("v_add_u32 %s, %d, %s", v(aKT), L_KT, v(aL16))
    k("v_lshrrev_b32 v94, 3, v90")
    k("v_lshl_add_u32 v94, v94, 2, v91")
    k("v_lshlrev_b32 v94, 13, v94")
    k("v_and_b32 v95, 7, v1")
    k("v_lshl_add_u32 %s, v95, 3, v94", v(aH1S))
    k("v_lshlrev_b32 v94, 4, v91")
    k("v_lshl_add_u32 v94, v93, 2, v94")
    k("v_mov_b32 v95, v92")
    k("v_cmp_eq_u32 vcc, 0, v95")
    k("v_mov_b32 v95, 0x40000000")
    k("v_cndmask_b32 %s, v95, v94, vcc", v(aH2S))
    k("v_and_b32 v94, 2, v1")
    k("v_cmp_eq_u32 vcc, 0, v94")
    k("v_mov_b32 v94, 0x44444444")
    k("v_mov_b32 v95, 0xeeeeeeee")
    k("v_cndmask_b32 %s, v95, v94, vcc", v(IDX))
    k("v_mov_b32 v94, 0x3f80")
    k("v_mov_b32 v95, 0x3f800000")
    for d in range(4):
        k("v_cmp_eq_u32 vcc, %d, v90", 4 * d)
        k("v_cndmask_b32 %s, 0, v94, vcc", v(SEL + d))
        k("v_cmp_eq_u32 vcc, %d, v90", 4 * d + 1)
        k("v_cndmask_b32 %s, %s, v95, vcc", v(SEL + d), v(SEL + d))
    k("s_lshl_b32 s%d, s%d, 16", sT, w)
    k("s_lshl_b32 s%d, s%d, 6", sH1S0, S_HEAD)
    k("s_add_u32 s%d, s%d, s%d", sH1S0, sH1S0, sT)
    k("s_add_u32 s%d, s%d, 0x%x", sH1S0, sH1S0, HOP1)
    k("s_add_u32 s%d, s%d, 0x1000", sH1S1, sH1S0)
    k("s_lshl_b32 s%d, s%d, 2", sH1L, S_HEAD)
    k("s_add_u32 s%d, s%d, s%d", sH1L, sH1L, w)
    k("s_lshl_b32 s%d, s%d, 11", sH1L, sH1L)
    k("s_add_u32 s%d, s%d, 0x%x", sH1L, sH1L, HOP1)
    k("s_lshr_b32 s%d, s%d, 3", sH2S, S_HEAD)
    k("s_lshl_b32 s%d, s%d, 11", sH2S, sH2S)
    k("s_and_b32 s%d, s%d, 7", sT, S_HEAD)
    k("s_lshl_b32 s%d, s%d, 6", sT, sT)
    k("s_add_u32 s%d, s%d, s%d", sH2S, sH2S, sT)
    k("s_lshl_b32 s%d, s%d, 9", sT, w)
    k("s_add_u32 s%d, s%d, s%d", sH2S, sH2S, sT)
    k("s_add_u32 s%d, s%d, 0x%x", sH2S, sH2S, HOP2)
    k("s_lshl_b32 s%d, s%d, 11", sH2L, w)
    k("s_add_u32 s%d, s%d, 0x%x", sH2L, sH2L, HOP2)
    k("s_lshl_b32 s%d, s%d, 13", sKV, S_HEAD)
    k("s_lshl_b32 s%d, s%d, 11", sT, w)
    k("s_add_u32 s%d, s%d, s%d", sKV, sKV, sT)
    k("s_add_u32 s%d, s%d, 0x%x", sVIM, sKV, VIMG)
    k("s_add_u32 s%d, s%d, 0x%x", sKV, sKV, KIMG)
    k("s_add_u32 s%d, s%d, %d", sKTD, sT, L_KT)
    k("s_lshl_b32 s%d, s%d, 12", sKM, S_HEAD)
    k("s_lshl_b32 s%d, s%d, 10", sT, w)
    k("s_add_u32 s%d, s%d, s%d", sKM, sKM, sT)
    k("s_add_u32 s%d, s%d, 0x%x", sKM, sKM, KM - 0x20000)
    k("s_mov_b32 s%d, 0x%x", sC, f2u(CSC))
    k("s_mov_b32 s%d, 400000", S_LIM)
    k("s_mov_b32 s%d, 0x33333333", sMASK)
    k("s_mov_b32 s%d, 0x33333333", sMASK + 1)
    k("s_mov_b32 s%d, 0", sPH)
    k("s_xor_b32 s%d, s%d, 0x2000", sH2R, sH2S)

def merged_setup(k):
    k("s_lshl_b32 s%d, s%d, 5", sQF, S_HEAD)
    k("s_add_u32 s%d, s%d, 0x%x", sQF, sQF, FLAGS + F_QF)
    k("s_lshl_b32 s%d, s%d, 7", sKF, S_HEAD)
    k("s_add_u32 s%d, s%d, 0x%x", sKF, sKF, FLAGS + F_KF)
    k("v_lshlrev_b32 %s, 2, v93", v(aFL))

def kv_refresh(k, plus, back=None):
    lp = k.lab("kvr"); ok = k.lab("kvok")
    k("s_mov_b32 s%d, 0", sCNT)
    k("s_add_u32 s%d, s%d, %d", sT, S_STEP, plus)
    k.L(lp)
    k("buffer_load_dword v1, %s, %s, s%d offen sc1", v(aFL), s(S_WS, 4), sQF)
    k("s_waitcnt vmcnt(0)")
    k("v_cmp_ge_u32 vcc, s%d, v1", sT)
    k("s_cbranch_vccz %s", ok)
    k("s_sleep 2")
    k("s_add_u32 s%d, s%d, 1", sCNT, sCNT)
    k("s_cmp_lt_u32 s%d, s%d", sCNT, S_LIM)
    k("s_cbranch_scc1 %s", lp)
    k("s_mov_b32 s%d, 0", S_LIM)
    k.L(ok)
    if back: k("s_branch %s", back)

import chain as _c1
def chain_arm(k):
    k.c("---- arm hop buffers (both slots), sc1")
    for i in range(4): k("v_mov_b32 %s, -1", v(96 + i))
    for slot in range(2):
        k("s_add_u32 s%d, s%d, 0x%x", sT, sH1L, slot * 262144)
        k("buffer_store_dwordx4 v[96:99], %s, %s, s%d offen sc1", v(aL16), s(S_WS, 4), sT)
        k("buffer_store_dwordx4 v[96:99], %s, %s, s%d offen offset:1024 sc1", v(aL16), s(S_WS, 4), sT)
    k("buffer_store_dword v96, %s, %s, s%d offen sc1", v(aH2S), s(S_WS, 4), sH2R)
load_mem0 = _c1.load_mem0
WVR_ = 128
WOR_ = 192

def chain_load_weights(k, hooks={}, pre_issue={}, after_first=None):
    w = S_WAVE
    k.c("---- chain weight load")
    k("v_and_b32 v90, 15, v1")
    k("v_lshrrev_b32 v91, 4, v1")
    k("s_and_b32 s44, s%d, 1", w)
    k("s_lshl_b32 s44, s44, 2")
    k("v_xor_b32 v120, s44, v90")
    k("v_and_b32 v121, 1, v91")
    k("v_lshlrev_b32 v121, 3, v121")
    k("v_xor_b32 v120, v120, v121")
    k("v_lshlrev_b32 v120, 4, v120")
    k("v_lshl_add_u32 v120, v91, 13, v120")
    k("s_lshl_b32 s45, s%d, 8", S_HEAD)
    k("s_lshl_b32 s48, s%d, 17", w)
    k("s_add_u32 s45, s45, s48")
    k("s_lshl_b32 s44, s%d, 12", w)
    sc = [('q', 0), ('q', 1), ('k', 0), ('k', 1), ('v', 1), ('o', 0), ('v', 0), ('o', 1)]
    srds = dict(q=S_WQ, k=S_WK, v=S_WV, o=S_WO)
    queue = []
    def issue(i):
        m, par = sc[i]; reg = (i & 1) * 65536
        for n in range(16):
            if m == 'o':
                k("s_add_u32 s48, s49, %d", par * 128 + n * 8192)
                k("s_add_u32 m0, s3, %d", n * 1024)
            else:
                c, q = n >> 2, n & 3
                k("s_add_u32 s48, s45, %d", (2 * c + par) * 64 * 8192 + q * 4 * 8192)
                k("s_add_u32 m0, s44, %d", reg + c * 16384 + q * 1024)
            k("buffer_load_dwordx4 v%d, %s, s48 offen lds", 121 if m == 'o' else 120, s(srds[m], 4))
            queue.append(i)
    k("s_waitcnt lgkmcnt(0)")
    fin_srd(k, 'Wq', S_WQ)
    lstamp(k, 7)
    issue(0)
    if after_first: after_first(k)
    k("v_lshrrev_b32 v121, 3, v1")
    k("v_lshlrev_b32 v121, 10, v121")
    k("v_and_b32 v122, 7, v1")
    k("v_lshl_add_u32 v121, v122, 4, v121")
    k("v_and_b32 v126, 1, v92")
    k("v_lshl_add_u32 v126, v126, 2, v91")
    k("v_lshrrev_b32 v127, 1, v92")
    k("v_lshl_add_u32 v126, v126, 2, v127")
    k("v_lshlrev_b32 v126, 8, v126")
    k("v_xor_b32 v127, s%d, v92", w)
    k("v_lshl_add_u32 v126, v127, 6, v126")
    k("v_lshl_add_u32 v126, v93, 4, v126")
    for jp in range(4):
        k("s_xor_b32 s48, s%d, %d", w, jp)
        k("s_lshl_b32 s48, s48, 14")
        k("v_add_u32 v%d, s48, v126", 122 + jp)
    k("v_lshrrev_b32 v126, 1, v92")
    k("v_lshrrev_b32 v127, 1, v91")
    k("v_lshl_add_u32 v126, v127, 1, v126")
    k("v_and_b32 v127, 1, v91")
    k("v_lshl_add_u32 v126, v127, 3, v126")
    k("v_lshlrev_b32 v126, 2, v126")
    k("v_and_b32 v127, 1, v92")
    k("v_add_u32 v126, v126, v127")
    k("v_lshlrev_b32 v126, 7, v126")
    k("v_lshl_add_u32 v126, v93, 3, v126")
    k("s_lshl_b32 s48, s%d, 14", w)
    k("s_add_u32 s3, s48, 0x10000")
    k("v_add_u32 v126, s3, v126")
    k("s_lshl_b32 s49, s%d, 17", S_HEAD)
    k("s_lshl_b32 s48, s%d, 8", w)
    k("s_add_u32 s49, s49, s48")
    if -1 in hooks: queue.extend([-1] * hooks[-1](k))
    issue(1)
    lstamp(k, 5)
    TMP = 40
    for i in range(8):
        m, par = sc[i]
        if i in hooks: queue.extend([-1] * hooks[i](k))
        last = max(n for n, c in enumerate(queue) if c == i)
        k("s_waitcnt vmcnt(%d)", len(queue) - 1 - last)
        k("s_barrier")
        if i in (0, 2, 4, 5, 6): lstamp(k, {0: 0, 2: 2, 4: 4, 5: 1, 6: 3}[i])
        inplace = i >= 6
        cnt = 0
        for a_ in range(4):
            for b_ in range(2):
                if inplace: dst = TMP + (a_ * 2 + b_) * 8
                elif m == 'q': dst = WQ + (b_ * 8 + 2 * a_ + par) * 8
                elif m == 'k': dst = WK + (b_ * 8 + 2 * a_ + par) * 8
                elif m == 'v': dst = WVR_ + (a_ * 2 + b_) * 8
                else: dst = WOR_ + (a_ * 2 + b_) * 8
                for y in range(4):
                    if m == 'o':
                        k("ds_read_b64_tr_b16 %s, v126 offset:%d", u(dst + 2 * y, 2), (64 * b_ + 16 * (y >> 1) + 2 * (y & 1)) * 128 + 32 * a_)
                    else:
                        k("ds_read_b64_tr_b16 %s, v%d offset:%d", u(dst + 2 * y, 2), 122 + a_, (32 * (y >> 1) + 2 * (y & 1)) * 256 + 8 * b_)
                cnt += 4
                if cnt % 8 == 0: k("s_waitcnt lgkmcnt(4)")
        if i < 4:
            for jp in range(4): k("v_xor_b32 v%d, 0x10000, v%d", 122 + jp, 122 + jp)
        k("s_waitcnt lgkmcnt(0)")
        k("s_barrier")
        if inplace:
            for q in range(16):
                k("ds_write_b128 %s, %s offset:%d", v(aWO if m == 'o' else aWV), v(TMP + 4 * q, 4), q * 1024)
                if q % 8 == 7: k("s_waitcnt lgkmcnt(0)")
        if i in pre_issue: queue.extend([-1] * pre_issue[i](k))
        if i + 2 < 8: issue(i + 2)


def PFK(p):
    W = s(S_WS, 4)
    return [["s_mov_b32 m0, s%d" % sKTD, "buffer_load_dwordx4 %s, %s, s%d offen sc1 lds" % (v(aL16), W, sKV)],
            ["buffer_load_dwordx4 %s, %s, s%d offen offset:1024 sc1 lds" % (v(aL16), W, sKV)],
            ["buffer_load_dwordx4 %s, %s, %s, s%d offen sc1" % (v(VTN, 4), v(aL16), W, sVIM)],
            ["buffer_load_dwordx4 %s, %s, %s, s%d offen offset:1024 sc1" % (v(VTN + 4, 4), v(aL16), W, sVIM)],
            ["s_add_u32 s%d, s%d, 0x40000" % (sKV, sKV), "s_add_u32 s%d, s%d, 0x40000" % (sVIM, sVIM),
             "s_xor_b32 s%d, s%d, 0x2000" % (sKTD, sKTD)]][p]

def WVR(n, h):
    return "ds_read_b128 %s, %s offset:%d" % (v(G + (n & 3) * 8 + 4 * h, 4), v(aWV), n * 2048 + h * 1024)

def weave(k, spine, fill):
    for i, m in enumerate(spine):
        k(m)
        for f in fill.get(i, []): k(f)

def check_n(k, buf, n, t0, t1):
    if n == 8:
        k("v_max3_u32 %s, %s, %s, %s", v(t0), v(buf), v(buf + 1), v(buf + 2))
        k("v_max3_u32 %s, %s, %s, %s", v(t1), v(buf + 3), v(buf + 4), v(buf + 5))
        k("v_max3_u32 %s, %s, %s, %s", v(t0), v(buf + 6), v(buf + 7), v(t0))
        k("v_max_u32 %s, %s, %s", v(t0), v(t0), v(t1))
    else:
        k("v_max3_u32 %s, %s, %s, %s", v(t0), v(buf), v(buf + 1), v(buf + 2))
        k("v_max_u32 %s, %s, %s", v(t0), v(t0), v(buf + 3))
    k("v_cmp_eq_u32 vcc, -1, %s", v(t0))

def retry_stub(k, lab, back, loads, buf, n, pre=None, cnt=None):
    k.L(lab)
    lp = k.lab("rp")
    k("s_mov_b32 s%d, 0", sCNT)
    k.L(lp)
    for l in loads: k(l)
    if cnt is not None and getattr(k, 'ticks', False): k("s_add_u32 s%d, s%d, 1", cnt, cnt)
    k("s_waitcnt vmcnt(0)")
    if pre:
        for l in pre: k(l)
    check_n(k, buf, n, CT, CT + 1)
    k("s_cbranch_vccz %s", back)
    k("s_add_u32 s%d, s%d, 1", sCNT, sCNT)
    k("s_cmp_lt_u32 s%d, s%d", sCNT, S_LIM)
    k("s_cbranch_scc1 %s", lp)
    k("s_mov_b32 s%d, 0", S_LIM)
    k("s_branch %s", back)

def delay(k, slots):
    while slots > 0:
        m = min(slots, 16); k("s_nop %d", m - 1); slots -= m

def chain_loop(k, stf, tag):
    W = s(S_WS, 4)
    o = getattr(k, 'copt', {})
    mg = getattr(k, 'merged', False)
    tk = getattr(k, 'ticks', False)
    TK = lambda i: ("s_memtime s[%d:%d]" % (64 + 2 * i, 65 + 2 * i)) if tk else ""
    lexit = k.lab(tag + "exit"); bexit = k.lab(tag + "bexit")
    Qs = lambda j, b: [SMF(AQ, b, WQ + j * 8), SMF(AQ + 4, b, WQ + (8 + j) * 8)]
    Ks = lambda j, b: [SMF(AK, b, WK + j * 8), SMF(AK + 4, b, WK + (8 + j) * 8)]
    Vs = lambda j, b: [SMF(AV + 4 * t, b, (G + ((j + t) & 3) * 8) if j % 2 == 0 else (WVR_ + ((j >> 1) * 2 + t) * 8)) for t in range(2)]
    Q = lambda j: Qs(j, MA + 4 * j); Kp = lambda j: Ks(j, MA + 4 * j); V = lambda j: Vs(j, MA + 4 * j)
    KORD = [0, 1, 2, 4, 6, 3, 5, 7]
    MR = lambda j: "ds_read_b128 %s, %s offset:%d" % (v(MA + 4 * j, 4), v(aM[j >> 1]), (j & 1) * 1024)
    KTR = lambda f: "ds_read_b128 %s, %s offset:%d" % (v(MA + 4 * KORD[f], 4), v(aKT), f * 1024)
    MV = lambda d, x: "v_mov_b32 %s, %s" % (v(d), x)
    EX = lambda d, s_: "v_exp_f32 %s, %s" % (v(d), v(s_))
    CV = lambda d, a_, b_: "v_cvt_pk_bf16_f32 %s, %s, %s" % (v(d), v(a_), v(b_))
    FA = lambda a_: ["v_add_f32 %s, %s, %s" % (v(a_), v(a_), v(a_ + 2)), "v_add_f32 %s, %s, %s" % (v(a_ + 1), v(a_ + 1), v(a_ + 3))]
    stkvm = "buffer_store_dwordx4 %s, %s, %s, s%d offen sc1" % (v(KVM, 4), v(aL16), W, sKM)
    r_sm = k.lab(tag + "rsm"); b_sm = k.lab(tag + "bsm"); r_kv = k.lab(tag + "rkv"); b_kv = k.lab(tag + "bkv")
    EB = [MA, VTN]
    lF = [k.lab(tag + "s0f") for _ in EB]; lto = k.lab(tag + "to")
    RD = MA + 16; HT = MA + 20; H1 = MA + 8; H1B = MA + 24
    lde = lambda b: ["buffer_load_dwordx4 %s, %s, %s, s%d offen sc1" % (v(b, 4), v(aL16), W, sH2L),
                     "buffer_load_dwordx4 %s, %s, %s, s%d offen offset:1024 sc1" % (v(b + 4, 4), v(aL16), W, sH2L)]
    def spin(reg, n, lab, magic="0x7fc1"):
        for i in range(n):
            k("v_cmp_ne_u32 vcc, %s, %s", magic, v(reg))
            k("s_cbranch_vccnz %s", lab)
    lS = [k.lab(tag + "s0v") for _ in EB]; lcom = k.lab(tag + "com"); lpoll = k.lab(tag + "poll")
    k("s_branch %s", lS[0])
    k(".aw_on")
    nb0 = o.get('b0', 5)
    fl = [[],
          ["buffer_load_dword v1, %s, %s, s%d offen sc1" % (v(aFL4), W, sQF)]] if mg else [[], []]
    for bi in (1, 0):
        b = EB[bi]; ob = EB[1 - bi]
        k(".aw_reset")
        k.L(lF[1 - bi])
        if o.get('nanc', 1):
            k("v_max_u32 %s, %s, %s", v(HT), v(ob + 3), v(ob + 7))
            k("v_cmp_eq_u32 vcc, -1, %s", v(HT))
            k("s_cbranch_vccz %s", lS[1 - bi])
        if o.get('mask', 0): k("s_mov_b64 exec, vcc")
        for l in lde(ob): k(l)
        if o.get('mask', 0): k("s_mov_b64 exec, -1")
        if tk: k("s_add_u32 s97, s97, 1")
        k("s_add_u32 s%d, s%d, 1", sCNT, sCNT)
        k("s_cmp_ge_u32 s%d, s%d", sCNT, S_LIM)
        k("s_cbranch_scc1 %s", lto)
        if bi == 0: k.L(lpoll)
        ar = k.lab(tag + "ar2")
        spin(b + 7, o.get('ns2', 16), ar, "-2")
        k.L(ar)
        k("s_waitcnt vmcnt(2)")
        if o.get('nanc', 1): k("v_cmp_u_f32 vcc, %s, %s", v(b + 3), v(b + 7))
        else:
            k("v_max_u32 %s, %s, %s", v(HT), v(b + 3), v(b + 7))
            k("v_cmp_eq_u32 vcc, -1, %s", v(HT))
        k("s_cbranch_vccnz %s", lF[bi])
        k.L(lS[bi])
        tick(k, 15); tick_step_end(k); tick(k, 0)
        if o.get('plog2'): k("s_memtime s[64:65]"); k("s_memrealtime s[66:67]")
        w64 = o.get('w64', 0)
        if w64 == 0: k("ds_write_b128 %s, %s", v(aM[0]), v(b, 4))
        f = {o.get('gw2', 2): ["ds_write_b128 %s, %s offset:1024" % (v(aM[0]), v(b + 4, 4))], nb0: [".aw_writes", "s_barrier", TK(1), MR(2)]}
        if w64 == 1:
            del f[o.get('gw2', 2)]
            ws = ["ds_write_b64 %s, %s offset:%d" % (v(aM[0]), v(b + 2 * i, 2), (i >> 1) * 1024 + (i & 1) * 8) for i in range(4)]
            k(ws[0])
            for i in range(1, 4): f[i - 1] = [ws[i]]
        if w64 == 2:
            del f[o.get('gw2', 2)]
            ws = ["ds_write_b32 %s, %s offset:%d" % (v(aM[0]), v(b + i), (i >> 2) * 1024 + (i & 3) * 4) for i in range(8)]
            k(ws[0]); k(ws[1])
            for i in range(3): f[i] = ws[2 + 2 * i: 4 + 2 * i]
        for x in range(3, 8): f[min(nb0 + x - 2, 11)] = f.get(min(nb0 + x - 2, 11), []) + [MR(x)]
        if o.get('early', 0): f[1] = PFK(0)[1:]; f[2] = PFK(1); f[3] = [stkvm]; f[4] = fl[0]
        for g_, x in zip(o.get('ks0', []), [PFK(0)[1:], PFK(1)]): f[g_] = f[g_] + x
        weave(k, Qs(0, b) + Ks(0, b) + Qs(1, b + 4) + Ks(1, b + 4) + Vs(0, b) + Vs(1, b + 4), f)
        if bi: k("s_branch %s", lcom)
    k.L(lcom)
    r_qf = k.lab(tag + "rqf"); b_qf = k.lab(tag + "bqf")
    if mg and o.get('qfc', 1):
        k("s_cbranch_scc1 %s", r_qf) if False else None
    qf = []
    for t in range(2):
        a_ = AQ + 4 * t
        qf += FA(a_) + ["v_mul_f32 %s, s%d, %s" % (v(a_), sC, v(a_)), "v_mul_f32 %s, s%d, %s" % (v(a_ + 1), sC, v(a_ + 1)), CV(a_, a_, a_ + 1)]
    E_ = lambda x: [] if o.get('early', 0) else x
    pl_ = (["v_mov_b32 v34, s64", "v_mov_b32 v35, s66", "v_mov_b32 v33, 0", "s_lshl_b32 s68, s%d, 3" % S_STEP, "s_add_u32 s68, s68, s100",
             "buffer_store_dwordx2 v[34:35], v33, %s, s68 offen" % W] if o.get('plog2') else [])
    vp = o.get('vp', [3, 5, 7, 9, 0])
    fq = {g_: [] for g_ in range(24)}
    fq[0] += [TK(2), "s_waitcnt vmcnt(%d)" % len(o.get('ks0', []))]
    for g_, x in zip(vp, [PFK(2), PFK(3), PFK(0)[1:], PFK(1), [stkvm]] if not o.get('ks0') else [PFK(2), PFK(3), [stkvm]]): fq[g_] += x
    free = [g_ for g_ in range(1, 23) if g_ not in vp]
    misc = [[WVR(4, 0)], [WVR(4, 1)], [WVR(5, 0)], [WVR(5, 1)], [KTR(1)], pl_ + [KTR(0)]]
    if mg and o.get('qfc', 1): misc = [["s_cmp_lg_u32 s%d, 0" % sSAFE, "s_cbranch_scc1 %s" % r_qf, b_qf + ":"]] + misc
    for x in misc: fq[free.pop(0)] += x
    late = [g_ for g_ in free if g_ > max(vp)]
    fq[late[0]] += (PFK(4)[:2] if not o.get('xkv') else ["s_nop 0", "s_nop 0"]); fq[late[1]] += PFK(4)[2:] + ["s_add_u32 s%d, s%d, 0x20000" % (sKM, sKM)]
    for g_, q_ in zip(range(13, 23), [0, 1, 5, 6, 2, 3, 7, 8, 4, 9]): fq[g_] += [qf[q_]]
    fq[23] += ["ds_write2_b32 %s, %s, %s offset0:0 offset1:32" % (v(aXW), v(AQ), v(AQ + 4))]
    weave(k, Q(2) + Q(3) + Q(4) + Q(5) + Q(6) + Q(7) + Kp(2) + Kp(3) + Kp(4) + Kp(5) + Kp(6) + Kp(7), fq)
    X = AQ
    XR = lambda i: "ds_read_b64_tr_b16 %s, %s offset:%d" % (v(X + 2 * i, 2), v(aXR), (i >> 1) * 1280 + (i & 1) * 128)
    ONES, PM, LA, E, T1, T2, T0 = G, G + 4, G + 8, G + 12, G + 20, G + 24, G + 28
    O1 = "0x3f803f80"
    KORD[:] = [0, 1, 2, 4, 3, 5, 6, 7]
    kf = FA(AK) + FA(AK + 4) + [CV(AQ + 1, AK, AK + 1), CV(AQ + 5, AK + 4, AK + 5)]
    XW = "ds_write2_b64 %s, %s, %s offset0:0 offset1:16" % (v(aXW), v(AQ, 2), v(AQ + 4, 2))
    BAR = [".aw_writes", "s_barrier", TK(6)]
    vs = V(2) + V(4) + V(3) + V(5) + V(6) + V(7)
    nb = o.get('xb', 6)
    f = {0: [WVR(6, 0)] + kf, 1: [XW, TK(5)], 2: [WVR(6, 1), MV(KVM, v(AQ + 1))], 3: [WVR(7, 0), MV(KVM + 1, v(AQ + 5))], 4: [WVR(7, 1), MV(ONES, O1)], 5: [KTR(2), MV(ONES + 1, O1)]}
    mv = [MV(ONES + 2, O1), MV(ONES + 3, O1), MV(PM + 1, "0"), MV(PM + 2, "0")]
    if o.get('qw', 1):
        kf = FA(AK) + FA(AK + 4) + [CV(KVM, AK, AK + 1), CV(KVM + 1, AK + 4, AK + 5)]
        XW = "ds_write2_b32 %s, %s, %s offset0:1 offset1:33" % (v(aXW), v(KVM), v(KVM + 1))
        f = {0: [WVR(6, 0)] + kf, 1: [XW, TK(5)], 2: [WVR(6, 1)], 3: [WVR(7, 0), MV(ONES, O1)], 4: [WVR(7, 1), MV(ONES + 1, O1)], 5: [KTR(2), MV(ONES + 2, O1)]}
        mv = [MV(ONES + 3, O1), MV(PM + 1, "0"), MV(PM + 2, "0")]
    xs = [XR(i) for i in range(8)]
    cnt = o.get('xc', {5: [2, 1, 1, 1, 1, 1, 1], 6: [1, 2, 2, 1, 1, 1], 7: [2, 2, 2, 1, 1], 8: [2, 2, 2, 2]}[nb])
    for g_ in range(6, nb): f[g_] = [KTR(3) if g_ == 6 else KTR(4), mv.pop(0)]
    kdone = 3 + max(0, nb - 6)
    for x, c_ in enumerate(cnt):
        f[nb + x] = (f.get(nb, []) + BAR if x == 0 else []) + xs[:c_]; xs = xs[c_:]
    assert not xs
    weave(k, vs, f)
    vf = []
    for t in range(2): vf += FA(AV + 4 * t) + [CV(KVM + 2 + t, AV + 4 * t, AV + 4 * t + 1)]
    t1 = lambda kb: MF(T1, MA + 4 * KORD[kb], X + 4 * kb, kb == 0)
    t2 = lambda kb: MF(T2, MA + 4 * KORD[4 + kb], X + 4 * kb, kb == 0)
    t0 = lambda kb: MF(T0, X + 4 * kb, X + 4 * kb, kb == 0)
    KQ = lambda i: [KTR(kdone + i)] if kdone + i < 8 else []
    tb = o.get('tb', 1)
    fc = {0: [TK(7)] + KQ(0) + mv[:1], 1: KQ(1) + [vf[0]], 2: KQ(2) + [vf[1]], 3: KQ(3) + [vf[3]], 4: KQ(4) + [vf[4]], 5: [vf[2], vf[5]],
          6: ["s_cmp_ge_u32 s%d, %d" % (S_STEP, o.get('kvl', 59)), "s_cbranch_scc1 %s" % lexit, bexit + ":"] + mv[1:2], 7: mv[2:]}
    if tb == 0:
        fc.update({8: [EX(E, T1)], 9: [EX(E + 1, T1 + 1)], 10: [EX(E + 2, T1 + 2)],
            11: [EX(E + 3, T1 + 3), EX(T0, T0 + 2), EX(T0 + 1, T0 + 3), CV(E, E, E + 1), CV(E + 1, E + 2, E + 3), CV(PM, T0, T0 + 1), CV(PM + 3, T0, T0 + 1)]})
        weave(k, [t1(0), t0(0), t1(1), t0(1), t1(2), t0(2), t1(3), t2(0), t0(3), t2(1), t2(2), t2(3)], fc)
        pvf = {0: [EX(E + 4, T2)], 1: [EX(E + 5, T2 + 1)], 2: [EX(E + 6, T2 + 2), EX(E + 7, T2 + 3), CV(E + 2, E + 4, E + 5), CV(E + 3, E + 6, E + 7)]}
    else:
        fc.update({8: [EX(T0, T0 + 2)], 9: [EX(T0 + 1, T0 + 3)], 10: [CV(PM, T0, T0 + 1), CV(PM + 3, T0, T0 + 1)], 11: [EX(E, T1)]})
        weave(k, [t0(0), t1(0), t0(1), t1(1), t0(2), t1(2), t0(3), t1(3), t2(0), t2(1), t2(2), t2(3)], fc)
        pvf = {0: [EX(E + 1, T1 + 1)], 1: [EX(E + 2, T1 + 2)], 2: [EX(E + 3, T1 + 3), EX(E + 4, T2), EX(E + 5, T2 + 1), CV(E, E, E + 1), EX(E + 6, T2 + 2), EX(E + 7, T2 + 3),
               CV(E + 1, E + 2, E + 3), CV(E + 2, E + 4, E + 5), CV(E + 3, E + 6, E + 7)]}
    O = AV
    Z = lambda i: "v_mov_b32 %s, 0" % v(MA + i)
    M16z = lambda d, A, B: "v_mfma_f32_16x16x16_bf16 %s, %s, %s, 0" % (v(d, 4), v(A, 2), v(B, 2))
    tick(k, 8)
    def pv(k, fast):
        weave(k, [M16z(LA, PM, ONES), M16z(O, PM, KVM + 2), M16z(O + 4, PM + 2, KVM + 2)],
              pvf if fast else {})
        weave(k, [MF(LA, E, ONES, False), MF(O, E, VT, False), MF(O + 4, E, VT + 4, False)], {})
    pv(k, True)
    k("v_rcp_f32 %s, %s", v(LA), v(LA))
    k("v_rcp_f32 %s, %s", v(LA + 1), v(LA + 1))
    k.L(b_sm)
    for t in range(2):
        if o.get('pk', 1): k("v_pk_mul_f32 %s, %s, %s", v(O + 4 * t, 2), v(O + 4 * t, 2), v(LA, 2))
        else:
            k("v_mul_f32 %s, %s, %s", v(O + 4 * t), v(O + 4 * t), v(LA))
            k("v_mul_f32 %s, %s, %s", v(O + 4 * t + 1), v(O + 4 * t + 1), v(LA + 1))
        k(CV(E + 4 + t, O + 4 * t, O + 4 * t + 1))
    k("ds_write_b64 %s, %s", v(aOW), v(E + 4, 2))
    tick(k, 9)
    Z2 = lambda i: "v_mov_b64 %s, 0" % v(MA + 2 * i, 2)
    ZP = X + 8 + 6
    ZM = lambda r: "v_mfma_f32_32x32x8_bf16 %s, %s, %s, 0" % (v(r, 16), v(ZP, 2), v(ZP, 2))
    k("v_max3_f32 %s, |%s|, |%s|, |%s|", v(X), v(T1), v(T1 + 1), v(T1 + 2))
    k("v_max3_f32 %s, |%s|, |%s|, |%s|", v(X + 1), v(T1 + 3), v(T2), v(T2 + 1))
    k("v_max3_f32 %s, |%s|, |%s|, %s", v(X), v(T2 + 2), v(T2 + 3), v(X))
    k("v_max3_f32 %s, |%s|, |%s|, %s", v(X + 1), v(T0 + 2), v(T0 + 3), v(X + 1))
    k("v_mov_b64 %s, 0", v(ZP, 2))
    k("v_max_f32 %s, %s, %s", v(X), v(X), v(X + 1))
    k("v_cmp_lt_f32 vcc, s%d, %s", sTHR, v(X))
    k("s_and_b64 vcc, vcc, %s", s(sMASK, 2))
    k("s_cbranch_scc1 %s", r_sm)
    k("s_mov_b32 s%d, 0x42700000", sTHR)
    k(ZM(MA))
    k(".aw_writes"); k("s_barrier")
    tick(k, 10)
    OA = AQ
    for i in range(4):
        k("ds_read_b64_tr_b16 %s, %s offset:%d", v(OA + 2 * i, 2), v(aXR), (L_OB - L_XB) + (i >> 1) * 1280 + (i & 1) * 128)
        if i == o.get('zp', 1): k(ZM(MA + 16))
    PK = AK
    SB = {(4, 0): G, (5, 0): G + 8, (4, 1): G + 16, (5, 1): G + 24, (6, 0): VT, (7, 0): AV, (6, 1): G, (7, 1): G + 8}
    WOB = lambda nt, kbo: (WOR_ + (nt * 2 + kbo) * 8) if nt < 4 else SB[(nt, kbo)]
    WR = lambda nt, kbo, h: "ds_read_b128 %s, %s offset:%d" % (v(SB[(nt, kbo)] + 4 * h, 4), v(aWO), ((nt - 4) * 2 + kbo) * 2048 + h * 1024)
    WS_ = lambda nt, kbo: SMF(MA + 4 * nt, OA + 4 * kbo, WOB(nt, kbo))
    AD = lambda nt, b: "v_add_f32 %s, %s, %s" % (v(MA + 4 * nt + b), v(MA + 4 * nt + b), v(MA + 4 * nt + 2 + b))
    PC = lambda sx, b, hh: CV(PK + 4 * sx + 2 * b + hh, MA + 4 * (4 * sx + 2 * hh) + b, MA + 4 * (4 * sx + 2 * hh + 1) + b)
    ST1 = lambda sx: "buffer_store_dwordx4 %s, %s, %s, s%d offen %s" % (v(PK + 4 * sx, 4), v(aH1S), W, sH1S1 if sx else sH1S0, stf)
    PA = lambda nt: "v_pk_add_f32 %s, %s, %s" % (v(MA + 4 * nt, 2), v(MA + 4 * nt, 2), v(MA + 4 * nt + 2, 2))
    TG = lambda sx: "v_and_or_b32 %s, %s, -2, s%d" % (v(PK + 4 * sx), v(PK + 4 * sx), sPH)
    k(WR(4, 0, 0)); k(WR(4, 0, 1))
    A2 = lambda nt: [PA(nt)] if o.get('pk', 1) else [AD(nt, 0), AD(nt, 1)]
    P2 = lambda tp, b: CV(PK + 2 * tp + b, MA + 8 * tp + b, MA + 8 * tp + 4 + b)
    T2_ = lambda tp: "v_and_or_b32 %s, %s, -2, s%d" % (v(PK + 2 * tp), v(PK + 2 * tp), sPH)
    S2 = lambda tp: "buffer_store_dwordx2 %s, %s, %s, s%d offen offset:%d %s" % (v(PK + 2 * tp, 2), v(aH1S), W, sH1S1 if tp >> 1 else sH1S0, (tp & 1) * 2048, stf)
    fin = lambda tp: [AD(2 * tp + 1, 0), AD(2 * tp + 1, 1), P2(tp, 0), P2(tp, 1), T2_(tp), S2(tp)]
    fa = {0: [TK(11), WR(5, 0, 0)], 1: [WR(5, 0, 1)], 2: [WR(4, 1, 0)], 3: [WR(4, 1, 1)],
        4: [WR(5, 1, 0), AD(0, 0)], 5: [WR(5, 1, 1), AD(0, 1)] + fin(0) + [TK(12)], 6: [WR(6, 0, 0), WR(6, 0, 1)], 7: [WR(7, 0, 0), WR(7, 0, 1)],
        8: [WR(6, 1, 0), AD(2, 0)], 9: [WR(6, 1, 1), AD(2, 1), WR(7, 1, 0), WR(7, 1, 1)] + fin(1),
        12: [AD(4, 0)], 13: [AD(4, 1)] + fin(2),
        15: A2(6) + A2(7) + [P2(3, 0), P2(3, 1), T2_(3), S2(3)]}
    wv_ = o.get('wv', 3)
    if wv_ == 0:
        fa = {0: [TK(11), WR(5, 0, 0)], 1: [WR(5, 0, 1)], 2: [WR(4, 1, 0)], 3: [WR(4, 1, 1)],
            4: [WR(5, 1, 0), AD(0, 0)], 5: [WR(5, 1, 1), AD(0, 1)], 6: [WR(6, 0, 0), AD(1, 0)], 7: [WR(6, 0, 1), WR(7, 0, 0), WR(7, 0, 1)] + fin(0)[1:] + [TK(12)],
            8: [WR(6, 1, 0), AD(2, 0)], 9: [WR(6, 1, 1), AD(2, 1)], 10: [WR(7, 1, 0), AD(3, 0)], 11: [WR(7, 1, 1)] + fin(1)[1:],
            12: [AD(4, 0)], 13: [AD(4, 1)], 14: [AD(5, 0)],
            15: fin(2)[1:] + A2(6) + A2(7) + [P2(3, 0), P2(3, 1), T2_(3), S2(3)]}
    elif wv_ == 1:
        fa = {0: [TK(11), WR(5, 0, 0)], 1: [WR(5, 0, 1)], 2: [WR(4, 1, 0), WR(4, 1, 1)], 3: [WR(5, 1, 0), WR(5, 1, 1)],
            4: [WR(6, 0, 0), AD(0, 0)], 5: [WR(6, 0, 1), AD(0, 1)], 6: [WR(7, 0, 0)] + fin(0)[:-1], 7: [S2(0), TK(12), WR(7, 0, 1)],
            8: [WR(6, 1, 0), AD(2, 0)], 9: [WR(6, 1, 1), AD(2, 1)], 10: [WR(7, 1, 0), WR(7, 1, 1)] + fin(1)[:-1], 11: [S2(1)],
            12: [AD(4, 0)], 13: [AD(4, 1)], 14: fin(2)[:-1],
            15: [S2(2)] + A2(6) + A2(7) + [P2(3, 0), P2(3, 1), T2_(3), S2(3)]}
    elif wv_ == 3:
        fa = {0: [TK(11), WR(5, 0, 0)], 1: [WR(5, 0, 1)], 2: [WR(4, 1, 0), WR(4, 1, 1)], 3: [WR(5, 1, 0), WR(5, 1, 1)],
            4: [WR(6, 0, 0), AD(0, 0)], 5: [WR(6, 0, 1), AD(0, 1)], 6: [WR(7, 0, 0)] + fin(0)[:-1], 7: [S2(0), TK(12), WR(7, 0, 1)],
            8: [WR(6, 1, 0), AD(2, 0)], 9: [WR(6, 1, 1), AD(2, 1)], 10: [WR(7, 1, 0), WR(7, 1, 1)] + fin(1)[:-1], 11: [S2(1)],
            12: [AD(4, 0)], 13: [AD(4, 1)] + fin(2)[:-1], 14: [S2(2)],
            15: A2(6) + A2(7) + [P2(3, 0), P2(3, 1), T2_(3), S2(3)]}
    elif wv_ == 4:
        fa = {0: [TK(11), WR(5, 0, 0)], 1: [WR(5, 0, 1)], 2: [WR(4, 1, 0), WR(4, 1, 1)], 3: [WR(5, 1, 0), WR(5, 1, 1)],
            4: [WR(6, 0, 0), AD(0, 0)], 5: [WR(6, 0, 1), AD(0, 1)], 6: [WR(7, 0, 0), AD(1, 0)], 7: [WR(7, 0, 1)] + fin(0)[1:-1], 8: [S2(0), TK(12), WR(6, 1, 0), AD(2, 0)],
            9: [WR(6, 1, 1), AD(2, 1)], 10: [WR(7, 1, 0), WR(7, 1, 1)] + fin(1)[:-1], 11: [S2(1)],
            12: [AD(4, 0)], 13: [AD(4, 1)] + fin(2)[:-1], 14: [S2(2)],
            15: A2(6) + A2(7) + [P2(3, 0), P2(3, 1), T2_(3), S2(3)]}
    else:
        fa = {0: [TK(11), WR(5, 0, 0)], 1: [WR(5, 0, 1)], 2: [WR(4, 1, 0), WR(4, 1, 1)], 3: [WR(5, 1, 0), WR(5, 1, 1)],
            4: [WR(6, 0, 0), AD(0, 0)], 5: [WR(6, 0, 1), AD(0, 1)], 6: [WR(7, 0, 0), AD(1, 0)], 7: [WR(7, 0, 1)] + fin(0)[1:-1], 8: [S2(0), TK(12), WR(6, 1, 0), AD(2, 0)],
            9: [WR(6, 1, 1), AD(2, 1)], 10: [WR(7, 1, 0), AD(3, 0)], 11: [WR(7, 1, 1)] + fin(1)[1:-1], 12: [S2(1), AD(4, 0)],
            13: [AD(4, 1)], 14: fin(2)[:-1],
            15: [S2(2)] + A2(6) + A2(7) + [P2(3, 0), P2(3, 1), T2_(3), S2(3)]}
    weave(k, [WS_(0, 0), WS_(1, 0), WS_(0, 1), WS_(1, 1), WS_(2, 0), WS_(3, 0), WS_(2, 1), WS_(3, 1), WS_(4, 0), WS_(5, 0),
              WS_(4, 1), WS_(5, 1), WS_(6, 0), WS_(7, 0), WS_(6, 1), WS_(7, 1)], fa)
    tick(k, 13)
    if o.get('plog'):
        k("s_mov_b32 m0, s%d", S_STEP)
        k("v_writelane_b32 v1, s64, m0")
    RD = MA + 16; HT = MA + 20; H1 = MA + 8; H1B = MA + 24
    h1lb = lambda b: ["buffer_load_dwordx4 %s, %s, %s, s%d offen sc1" % (v(b, 4), v(aL16), W, sH1L),
           "buffer_load_dwordx4 %s, %s, %s, s%d offen offset:1024 sc1" % (v(b + 4, 4), v(aL16), W, sH1L)]
    redb = lambda b: [MF(RD, SEL, b, True), MF(RD, SEL, b + 4, False),
           "v_bitop3_b32 %s, %s, %s, s%d bitop3:0x7e" % (v(HT), v(b), v(b + 4), sPH), "v_and_b32 %s, 1, %s" % (v(HT), v(HT)),
           "v_cmp_ne_u32 vcc, 0, %s" % v(HT)]
    h1l = h1lb(H1); red = redb(H1)
    lde = lambda b: ["buffer_load_dwordx4 %s, %s, %s, s%d offen sc1" % (v(b, 4), v(aL16), W, sH2L),
                     "buffer_load_dwordx4 %s, %s, %s, s%d offen offset:1024 sc1" % (v(b + 4, 4), v(aL16), W, sH2L)]
    KAV = "v_mov_b32 %s, 0" % v(MA + 22)
    def warm(vl, ol, slots, per=o.get('per', 4)):
        while slots > 0:
            k(vl.pop(0) if vl else (KAV if o.get('ka', 0) else "s_nop 0")); slots -= 1
            r = min(per - 1, slots)
            while r > 0 and ol:
                x = ol.pop(0); k(x); c = 2 if x.startswith('ds_') else 1; r -= c; slots -= c
            if r > 0: k("s_nop %d", r - 1); slots -= r
    def spin(reg, n, lab, magic="0x7fc1"):
        for i in range(n):
            k("v_cmp_ne_u32 vcc, %s, %s", magic, v(reg))
            k("s_cbranch_vccnz %s", lab)
            if o.get('spn', 0): k("s_nop %d", o.get('spn') - 1)
    ok1 = k.lab(tag + "ok1"); rr1 = k.lab(tag + "r1"); ar1 = k.lab(tag + "ar1"); ar0 = k.lab(tag + "ar0")
    lp1 = k.lab(tag + "lp1"); lB = k.lab(tag + "gB"); lA2 = k.lab(tag + "gA2")
    k("s_cmp_ge_u32 s%d, 2", S_WAVE)
    k(".aw_fork")
    k("s_cbranch_scc1 %s", lB)
    for g in 'ab':
        if g == 'b':
            k.L(lB); k(".aw_join")
        hv = ["v_mov_b64 %s, 0" % v(AQ + 2 * i, 2) for i in range(12)] + ["v_xor_b32 %s, 0x2000, %s" % (v(aKT), v(aKT))]
        ho = [WVR(n, h) for n in range(4) for h in range(2)] + \
             ["s_mov_b32 s%d, s%d" % (sH2R, sH2S), "s_xor_b32 s%d, s%d, 0x2000" % (sH2S, sH2S)] + \
             ["s_xor_b32 s%d, s%d, 0x40000" % (r, r) for r in (sH1S0, sH1S1)] + \
             ["s_xor_b32 s%d, s%d, 0x2000" % (sH2L, sH2L), "s_add_u32 s%d, s%d, 1" % (S_STEP, S_STEP), "s_mov_b32 m0, s%d" % sKTD, "s_mov_b32 s%d, 0" % sCNT]
        warm(hv, ho, o.get('p0' + g, 24 if g == 'a' else 44))
        tick(k, 3)
        for l in h1lb(H1B): k(l)
        warm(hv, ho, o.get('p1' + g, 54 if g == 'a' else 24))
        for l in h1l: k(l)
        warm(hv, ho, o.get('w1' + g, 2 if g == 'a' else 14))
        assert not hv and not ho
        k(".aw_all")
        if g == 'a': k("s_branch %s", lp1)
    k.L(lp1)
    spin(H1B + 3, o.get('ns1', 24), ar0)
    k.L(ar0)
    k("s_waitcnt vmcnt(3)")
    tick(k, 4)
    k(redb(H1B)[0])
    k("s_waitcnt vmcnt(2)")
    for l in redb(H1B)[1:]: k(l)
    k("s_cbranch_vccnz %s", rr1)
    k.L(ok1)
    for sh in (4, 8):
        for r in (RD, RD + 1): k("v_add_f32_dpp %s, %s, %s row_ror:%d row_mask:0xf bank_mask:0xf", v(r), v(r), v(r), sh)
    k("v_cvt_pk_bf16_f32 %s, %s, %s", v(RD), v(RD), v(RD + 1))
    k("buffer_store_dword %s, %s, %s, s%d offen %s", v(RD), v(aH2S), W, sH2S, stf)
    tick(k, 14)
    k(MV(HT, "-1"))
    k("buffer_store_dword %s, %s, %s, s%d offen %s", v(HT), v(aH2S), W, sH2R, stf)
    hv = ["v_mov_b64 %s, %s" % (v(VT + 2 * i, 2), v(VTN + 2 * i, 2)) for i in range(4)]
    ho = ["s_xor_b32 s%d, s%d, 0x40000" % (sH1L, sH1L), "s_bfe_u32 s%d, s%d, 0x10001" % (sPH, S_STEP), "s_mov_b32 s%d, 0" % sCNT]
    if mg:
        k("s_add_u32 s%d, s%d, 1", sT, S_STEP); k("v_cmp_ge_u32 vcc, s%d, v1", sT)
        k("s_cbranch_vccnz %s", r_kv)
        k.L(b_kv)
        if o.get('qfc', 1):
            k("s_add_u32 s%d, s%d, %d", sT, S_STEP, o.get('qfm', 4)); k("v_cmp_ge_u32 vcc, s%d, v1", sT)
            k("s_or_b32 s%d, vcc_lo, vcc_hi", sSAFE)
    k("s_cmp_ge_u32 s%d, 2", S_WAVE)
    k("s_cbranch_scc1 %s", lA2)
    warm([], [], o.get('p2a', 20))
    k.L(lA2)
    p2 = o.get('p2', [26, 30])
    warm(hv, ho, p2[0])
    assert not hv and not ho
    for l in lde(EB[0]): k(l)
    warm(hv, ho, p2[1])
    for l in lde(EB[1]): k(l)
    warm(hv, ho, o.get('w2', 15))
    k(".aw_all")
    k(".aw_off")
    k("s_branch %s", lpoll)
    k.L(lto)
    k("s_mov_b32 s%d, 0", S_LIM)
    k("s_waitcnt vmcnt(0)")
    k("s_branch %s", lS[0])
    k.L(rr1)
    if o.get('mask', 0): k("s_mov_b64 exec, vcc")
    for l in h1lb(H1B): k(l)
    if o.get('mask', 0): k("s_mov_b64 exec, -1")
    if tk: k("s_add_u32 s98, s98, 1")
    spin(H1 + 7, o.get('ns1', 24), ar1)
    k.L(ar1)
    k("s_waitcnt vmcnt(2)")
    for l in red: k(l)
    k("s_cbranch_vccz %s", ok1)
    if o.get('mask', 0): k("s_mov_b64 exec, vcc")
    for l in h1l: k(l)
    if o.get('mask', 0): k("s_mov_b64 exec, -1")
    if tk: k("s_add_u32 s96, s96, 1")
    k("s_add_u32 s%d, s%d, 1", sCNT, sCNT)
    k("s_cmp_lt_u32 s%d, s%d", sCNT, S_LIM)
    k("s_cbranch_scc1 %s", lp1)
    k("s_mov_b32 s%d, 0", S_LIM)
    k("s_branch %s", ok1)
    if mg and o.get('qfc', 1):
        k.L(r_qf)
        for x in fl[1]: k(x)
        k("s_branch %s", b_qf)
    if mg:
        k.L(r_kv)
        kv_refresh(k, 1, b_kv)
    k.L(r_sm)
    k("v_max3_f32 %s, %s, %s, %s", v(X), v(T1), v(T1 + 1), v(T1 + 2))
    k("v_max3_f32 %s, %s, %s, %s", v(X), v(T1 + 3), v(T2), v(X))
    k("v_max3_f32 %s, %s, %s, %s", v(X), v(T2 + 1), v(T2 + 2), v(X))
    k("v_max3_f32 %s, %s, %s, %s", v(X), v(T2 + 3), v(T0 + 2), v(X))
    k("v_max_f32 %s, %s, %s", v(X), v(T0 + 3), v(X))
    xmax(k, X, X + 1)
    for r in [T1 + i for i in range(8)] + [T0 + 2, T0 + 3]: k("v_sub_f32 %s, %s, %s", v(r), v(r), v(X))
    for i in range(8): k(EX(E + i, T1 + i))
    k(EX(T0, T0 + 2)); k(EX(T0 + 1, T0 + 3))
    for i in range(4): k(CV(E + i, E + 2 * i, E + 2 * i + 1))
    k(CV(PM, T0, T0 + 1)); k(CV(PM + 3, T0, T0 + 1))
    pv(k, False)
    k("s_mov_b32 s%d, 0x7f800000", sTHR)
    k("v_rcp_f32 %s, %s", v(LA), v(LA))
    k("v_rcp_f32 %s, %s", v(LA + 1), v(LA + 1))
    k("s_waitcnt lgkmcnt(0)")
    k("s_branch %s", b_sm)
    k.L(lexit)
    k(stkvm)
    k("s_cmp_lt_u32 s%d, 63", S_STEP)
    k("s_cbranch_scc1 %s", bexit)
    k("s_waitcnt lgkmcnt(0)")

def role_chain(k, force_slow=False):
    mg = getattr(k, 'merged', False)
    srds = (('Wq', S_WQ), ('Wk', S_WK), ('Wv', S_WV), ('Wo', S_WO), ('mem0', 56))
    for n, r in srds: load_srd(k, n, r)
    def after_first(k):
        for n, r in srds[1:] + (('ws', S_WS), ('dbg', S_DBG)): fin_srd(k, n, r)
        chain_setup(k)
        merged_setup(k)
        k("s_mov_b32 s%d, 0", S_STEP)
    W = s(S_WS, 4)
    def h_arm(k):
        chain_arm(k)
        k("v_lshrrev_b32 v104, 1, v90")
        k("v_and_b32 v104, 6, v104")
        k("v_and_b32 v105, 1, v1")
        k("v_add_u32 v104, v104, v105")
        k("v_lshlrev_b32 v104, 10, v104")
        k("v_lshrrev_b32 v105, 1, v91")
        k("v_lshl_add_u32 v104, v105, 6, v104")
        k("v_and_b32 v105, 1, v91")
        k("v_lshl_add_u32 v104, v105, 4, v104")
        k("s_lshl_b32 s%d, s%d, 8", sT, S_WAVE)
        for j in range(2):
            k("buffer_load_dwordx4 %s, v104, %s, s%d offen offset:%d", v(40 + 8 * j, 4), s(56, 4), sT, j * 128)
            k("buffer_load_dwordx4 %s, v104, %s, s%d offen offset:%d", v(44 + 8 * j, 4), s(56, 4), sT, j * 128 + 32)
        k("v_mov_b32 v107, 0")
        k("buffer_load_dword v118, v107, %s, 0 offen offset:%d sc1", s(S_DBG, 4), DBG_T)
        return 10
    lwarm = k.lab("CW"); lwend = k.lab("CWe")
    def h_mem0(k):
        lt = k.lab("CT"); lt2 = k.lab("CT2")
        k("v_cmp_eq_u32 vcc, 0, v118")
        k("s_cbranch_vccz %s", lt)
        wait_ready(k, 118, DBG_T)
        k.L(lt)
        k("v_readfirstlane_b32 s%d, v118", sT)
        k("s_cmp_lg_u32 s%d, s54", sT)
        k("s_cselect_b32 s100, 2, 1")
        k("s_cbranch_scc0 %s", lt2)
        k("s_cmp_eq_u32 s101, 0")
        k("s_cbranch_scc1 %s", k.lswap)
        k.L(lt2)
        k("v_and_b32 v105, 2, v1")
        k("v_mul_u32_u24 v105, 0x10101, v105")
        k("v_and_b32 v106, 2, v1")
        k("v_lshl_add_u32 v105, v106, 24, v105")
        k("v_add_u32 v105, 0x05040100, v105")
        for j in range(2):
            for i in range(4):
                k("v_perm_b32 %s, %s, %s, v105", v(MA + 4 * j + i), v(44 + 8 * j + i), v(40 + 8 * j + i))
        n = 0
        if k.copt.get('cwarm', 1):
            lpc = k.lab("pc")
            k("s_getpc_b64 s[60:61]")
            k.L(lpc)
            k("s_add_u32 s60, s60, %s-%s", lwarm, lpc)
            k("s_addc_u32 s61, s61, 0")
            k("s_lshl_b32 s%d, s%d, 13", sT, S_WAVE)
            k("v_lshlrev_b32 v104, 7, v1")
            k("v_min_u32 v105, %s-%s-4, v104", lwend, lwarm)
            k("global_load_dword v116, v105, s[60:61]")
            k("v_add_u32 v104, 0x2000, v104")
            k("v_min_u32 v105, %s-%s-4, v104", lwend, lwarm)
            k("global_load_dword v117, v105, s[60:61]")
            n += 2
        return n
    def h_rdy(k):
        k("buffer_load_dword v108, v107, %s, 0 offen offset:%d sc1", s(S_DBG, 4), DBG_READY)
        return 1
    def announce(k):
        k("v_mov_b32 v106, s100")
        k("s_lshl_b32 s%d, s%d, 30", sT, S_WAVE)
        k("s_lshr_b32 s%d, s%d, 1", sCNT, sT)
        k("s_or_b32 s%d, s%d, s%d", sT, sT, sCNT)
        k("s_and_b32 s%d, s%d, 0x40000000", sT, sT)
        k("v_mov_b32 v105, 0x40000000")
        k("v_cmp_eq_u32 vcc, 0, v108")
        k("v_mov_b32 v104, s%d", sT)
        k("v_cndmask_b32 v105, v104, v105, vcc")
        k("buffer_store_dword v106, v105, %s, s%d offen sc1", W, sKF)
    def h_announce(k):
        announce(k)
        return 1
    def h_qf(k):
        k("buffer_load_dword v109, %s, %s, s%d offen sc1", v(aFL), W, sQF)
        return 1
    def h_warm(k):
        n = 0
        for base, x in ((sH1L, 0), (sH1L, 0x40000), (sH2L, 0), (sH2L, 0x2000)):
            k("s_xor_b32 s%d, s%d, 0x%x", sT, base, x)
            for off in (0, 1024):
                k("buffer_load_dwordx4 v[112:115], %s, %s, s%d offen offset:%d sc1", v(aL16), W, sT, off)
                n += 1
        return n
    def h_flags(k): return h_qf(k) + h_warm(k)
    def h_pf(k):
        k("s_waitcnt vmcnt(%d)", 16 + {0: 0, 1: 9, 2: 1, 3: 8, 4: 0}[k.copt.get('hv', 0)])
        k("v_cmp_eq_u32 vcc, 0, v108")
        k("s_or_b32 s%d, vcc_lo, vcc_hi", sSAFE)
        k("v_cmp_ge_u32 vcc, 1, v109")
        k("s_or_b32 s%d, s%d, vcc_lo", sSAFE, sSAFE)
        for p in range(4):
            for l in PFK(p): k(l)
        k("v_and_b32 v111, 31, v1")
        k("v_lshlrev_b32 v111, 7, v111")
        k("s_mov_b32 s63, 0x%x", FLAGS + F_KF)
        k("buffer_load_dword v110, v111, %s, s63 offen sc1", W)
        return 5
    def h3(k): return h_mem0(k) + h_announce(k)
    hv_ = k.copt.get('hv', 0)
    if hv_ == 0: hooks = {-1: h_arm, 1: h_rdy, 2: h_mem0, 4: h_announce, 5: h_flags, 7: h_pf}
    elif hv_ == 1: hooks = {-1: h_arm, 1: h_rdy, 2: h_mem0, 5: h_qf, 6: (lambda k: h_announce(k) + h_warm(k)), 7: h_pf}
    elif hv_ >= 2: hooks = {-1: h_arm, 1: h_rdy, 2: h_mem0, 5: h_qf, 6: h_announce, 7: (lambda k: h_pf(k) + h_warm(k))}
    pre = {}
    if hv_ == 3: hooks = {-1: h_arm}; pre = {0: h_rdy, 1: h_mem0, 2: h_announce, 3: h_qf, 4: h_warm, 5: h_pf}
    if hv_ == 4: hooks = {-1: h_arm}; pre = {0: h_rdy, 1: h_mem0, 2: h_announce, 3: h_warm, 4: h_qf, 6: h_pf}
    chain_load_weights(k, hooks, pre, after_first)
    stamp(k, 2, 1, wgreg=S_HEAD, vt=120)
    if k.copt.get('dst'): k("s_memrealtime s[94:95]")
    if mg:
        lok = k.lab("CHf")
        k("s_cmp_eq_u32 s%d, 0", sSAFE)
        k("s_cbranch_scc1 %s", lok)
        wait_ready(k, 108)
        announce(k)
        k("v_mov_b32 v110, 0")
        kv_refresh(k, 1)
        for p in range(4):
            for l in PFK(p): k(l)
        k.L(lok)
    k("s_mov_b32 s%d, 1", sSAFE)
    k("s_mov_b32 s%d, 0x42700000", sTHR)
    for l in PFK(4): k(l)
    k("s_waitcnt vmcnt(0)")
    k("v_mov_b32 %s, v110", v(KVM)); k("v_mov_b32 %s, v111", v(KVM + 1))
    for n in range(4):
        k(WVR(n, 0)); k(WVR(n, 1))
    for i in range(24): k("v_mov_b32 %s, 0", v(AQ + i))
    lp = k.lab("CHs"); ok = k.lab("CHok")
    k("s_mov_b32 s%d, 0", sCNT)
    k.L(lp)
    k("v_cmp_eq_u32 vcc, 0, %s", v(KVM))
    k("s_cbranch_vccz %s", ok)
    k("s_sleep 2")
    k("buffer_load_dword %s, %s, %s, s63 offen sc1", v(KVM), v(KVM + 1), W)
    k("s_waitcnt vmcnt(0)")
    k("s_add_u32 s%d, s%d, 1", sCNT, sCNT)
    k("s_cmp_lt_u32 s%d, s%d", sCNT, S_LIM)
    k("s_cbranch_scc1 %s", lp)
    k("s_mov_b32 s%d, 0", S_LIM)
    k.L(ok)
    k("v_cmp_ne_u32 vcc, 1, %s", v(KVM))
    k("s_or_b32 s44, vcc_lo, vcc_hi")
    for i in range(8): k("v_mov_b32 %s, %s", v(VT + i), v(VTN + i))
    k("s_waitcnt lgkmcnt(0)")
    stamp(k, 2, 2, wgreg=S_HEAD, vt=56)
    if k.copt.get('dst'): k("s_memrealtime s[96:97]"); k("s_waitcnt lgkmcnt(0)")
    stamp(k, 2, 4, wgreg=S_HEAD, vt=56, cyc=True)
    tick_init(k)
    if k.copt.get('plog2'):
        k("s_lshl_b32 s100, s%d, 2", S_HEAD)
        k("s_add_u32 s100, s100, s%d", S_WAVE)
        k("s_lshl_b32 s100, s100, 9")
        k("s_add_u32 s100, s100, 0x%x", TS + 8 * 65536)
    k("s_mov_b32 m0, s%d", sKTD)
    k("v_mov_b32 v1, 0")
    lslow = k.lab("CHslow"); ldone = k.lab("CHdone")
    k("s_cmp_lg_u32 s44, %d", 0 if not force_slow else 77)
    k("s_cbranch_scc1 %s", lslow)
    n0 = len(k.lines)
    k.L(lwarm)
    chain_loop(k, "", "F")
    k.L(lwend)
    o = getattr(k, 'copt', {})
    if o.get('free'):
        body = k.lines[n0:]; out = []
        for l in body:
            ls = l.strip()
            if 's100' in ls: out.append(l); continue
            if ls.startswith('s_cbranch_vccnz'): continue
            if ls.startswith('s_cbranch_vccz Fs0v'): l = l.replace('s_cbranch_vccz', 's_branch')
            if ls.startswith('s_cbranch_scc1 Frsm'): continue
            if 'novmem' in o['free'] and (ls.startswith('buffer_') or 'vmcnt' in ls): continue
            if 'nowait' in o['free'] and 'vmcnt' in ls: continue
            out.append(l)
        k.lines[n0:] = out
    k("s_branch %s", ldone)
    k.L(lslow)
    chain_loop(k, "sc1", "S")
    k.L(ldone)
    if k.copt.get('plog'):
        k("s_lshl_b32 s100, s%d, 2", S_HEAD)
        k("s_add_u32 s100, s100, s%d", S_WAVE)
        k("s_lshl_b32 s100, s100, 8")
        k("s_add_u32 s100, s100, 0x%x", TS + 8 * 65536)
        k("v_lshrrev_b32 v40, 2, %s", v(aL16))
        k("buffer_store_dword v1, v40, %s, s100 offen", s(S_WS, 4))
    tick_dump(k)
    k("s_waitcnt vmcnt(0)")
    stamp(k, 2, 3, wgreg=S_HEAD, vt=56)
    dstamp(k, 7, 56); dstamp(k, 5, 56, False, 94); dstamp(k, 6, 56, False, 96); dstamp(k, 3, 56, True, 98)
    stamp(k, 2, 5, wgreg=S_HEAD, vt=56, cyc=True)
```

```python
from common import *

S_WS = 8
S_W  = 12
S_X  = 16
S_O  = 20
S_DBG = 24
S_WAVE = 4
ST = "sc1"
LD = "sc1"

def lane_wave(k):
    k("v_and_b32 v1, 63, v0")
    k("v_lshrrev_b32 v2, 6, v0")
    k("v_readfirstlane_b32 s%d, v2", S_WAVE)

S_SPIN = 6

def wait_ready(k, vt, off=DBG_READY):
    lp = k.lab("rdy"); ok = k.lab("rdyok")
    k("s_mov_b32 s42, 0")
    k("v_mov_b32 %s, 0", v(vt + 1))
    k.L(lp)
    k("buffer_load_dword %s, %s, %s, 0 offen offset:%d sc1", v(vt), v(vt + 1), s(S_DBG, 4), off)
    k("s_waitcnt vmcnt(0)")
    k("v_cmp_eq_u32 vcc, 0, %s", v(vt))
    k("s_cbranch_vccz %s", ok)
    k("s_sleep 1")
    k("s_add_u32 s42, s42, 1")
    k("s_cmp_lt_u32 s42, s%d", S_SPIN)
    k("s_cbranch_scc1 %s", lp)
    k("s_mov_b32 s%d, 0", S_SPIN)
    k.L(ok)

def wait_flags(k, vaddr, s_off, s_seg, vt, scnt=59, wave0=False):
    lp = k.lab("wf"); ok = k.lab("wfok")
    if wave0:
        k("s_cmp_lg_u32 s%d, 0", S_WAVE)
        k("s_cbranch_scc1 %s", ok)
    k("s_mov_b32 s%d, 0", scnt)
    k.L(lp)
    k("buffer_load_dword %s, %s, %s, s%d offen sc1", v(vt), v(vaddr), s(S_WS, 4), s_off)
    k("s_waitcnt vmcnt(0)")
    k("v_cmp_ge_u32 vcc, s%d, %s", s_seg, v(vt))
    k("s_cbranch_vccz %s", ok)
    k("s_sleep %d", getattr(k, 'copt', {}).get('slp', 1))
    k("s_add_u32 s%d, s%d, 1", scnt, scnt)
    k("s_cmp_lt_u32 s%d, s%d", scnt, S_SPIN)
    k("s_cbranch_scc1 %s", lp)
    k("s_mov_b32 s%d, 0", S_SPIN)
    k.L(ok)
    if wave0: k("s_barrier")

def wait_flags_fast(k, vaddr, s_off, s_seg, vts, scnt=59):
    lp = k.lab("wf"); ok = k.lab("wfok")
    n = len(vts)
    ld = lambda r: k("buffer_load_dword %s, %s, %s, s%d offen sc1", v(r), v(vaddr), s(S_WS, 4), s_off)
    k("s_cmp_lg_u32 s%d, 0", S_WAVE)
    k("s_cbranch_scc1 %s", ok)
    k("s_mov_b32 s%d, 0", scnt)
    ld(vts[0])
    k("s_waitcnt vmcnt(0)")
    k("v_cmp_ge_u32 vcc, s%d, %s", s_seg, v(vts[0]))
    k("s_cbranch_vccz %s", ok)
    for r in vts[:-1]:
        ld(r); k("s_sleep %d", k.copt.get('slf', 3))
    k.L(lp)
    for i in range(n):
        ld(vts[(i - 1) % n])
        k("s_waitcnt vmcnt(%d)", n - 1)
        k("v_cmp_ge_u32 vcc, s%d, %s", s_seg, v(vts[i]))
        k("s_cbranch_vccz %s", ok)
        k("s_sleep %d", k.copt.get('slf', 3))
    k("s_add_u32 s%d, s%d, 1", scnt, scnt)
    k("s_cmp_lt_u32 s%d, s%d", scnt, S_SPIN)
    k("s_cbranch_scc1 %s", lp)
    k("s_mov_b32 s%d, 0", S_SPIN)
    k.L(ok)
    k("s_barrier")

def set_flag(k, s_off, val, vt, drain=True):
    l = k.lab("sf")
    if drain:
        k("s_waitcnt vmcnt(0)")
        k("s_barrier")
    k("s_cmp_lg_u32 s%d, 0", S_WAVE)
    k("s_cbranch_scc1 %s", l)
    k("v_mov_b32 %s, %s", v(vt), val)
    k("v_mov_b32 %s, 0", v(vt + 1))
    k("s_mov_b64 exec, 1")
    k("buffer_store_dword %s, %s, %s, s%d offen sc1", v(vt), v(vt + 1), s(S_WS, 4), s_off)
    k("s_mov_b64 exec, -1")
    k.L(l)

def ln_finish(k, X, n, mean, var, t0, t1, OUT):
    round_bf16(k, mean, mean)
    round_bf16(k, var, var)
    k("v_add_f32 %s, 0x3727c5ac, %s", v(var), v(var))
    round_bf16(k, var, var)
    k("v_sqrt_f32 %s, %s", v(var), v(var))
    round_bf16(k, var, var)
    k("v_rcp_f32 %s, %s", v(var), v(var))
    for i in range(0, n, 2):
        k("v_sub_f32 %s, %s, %s", v(X + i), v(X + i), v(mean))
        k("v_sub_f32 %s, %s, %s", v(X + i + 1), v(X + i + 1), v(mean))
        k("v_cvt_pk_bf16_f32 %s, %s, %s", v(t0), v(X + i), v(X + i + 1))
        k("v_lshlrev_b32 %s, 16, %s", v(X + i), v(t0))
        k("v_and_b32 %s, 0xffff0000, %s", v(X + i + 1), v(t0))
        k("v_mul_f32 %s, %s, %s", v(X + i), v(X + i), v(var))
        k("v_mul_f32 %s, %s, %s", v(X + i + 1), v(X + i + 1), v(var))
        k("v_cvt_pk_bf16_f32 %s, %s, %s", v(OUT + i // 2), v(X + i), v(X + i + 1))

def role_ln1(k, s_tile, ntiles=1, after=None):
    k.c("---- LN1 role")
    k("v_lshrrev_b32 v2, 4, v1")
    k("v_and_b32 v3, 15, v1")
    k("s_lshl_b32 s40, s%d, 2", S_WAVE)
    k("v_add_u32 v2, s40, v2")
    k("v_lshlrev_b32 v4, 10, v2")
    k("v_lshl_add_u32 v4, v3, 4, v4")
    k("s_lshl_b32 s41, s%d, 14", s_tile)
    RAW = 64
    for ti in range(ntiles):
        k("s_add_u32 s43, s41, %d", ti * 32 * 16384)
        for it in range(4):
            k("buffer_load_dwordx4 %s, v4, %s, s43 offen offset:%d", v(RAW + 16 * ti + 4 * it, 4), s(S_X, 4), it * 256)
    k("v_lshrrev_b32 v5, 2, v3")
    k("v_lshlrev_b32 v5, 10, v5")
    k("v_and_b32 v6, 3, v3")
    k("v_lshl_add_u32 v5, v6, 8, v5")
    k("v_lshl_add_u32 v5, v2, 4, v5")
    X = 32
    k("s_waitcnt vmcnt(%d)", 4 * (ntiles - 1))
    k("s_mov_b32 s43, 0")
    lp = k.lab("LN1l")
    k.L(lp)
    for i in range(16):
        k("v_lshlrev_b32 %s, 16, %s", v(X + 2 * i), v(RAW + i))
        k("v_and_b32 %s, 0xffff0000, %s", v(X + 2 * i + 1), v(RAW + i))
    k("v_add_f32 v24, %s, %s", v(X), v(X + 1))
    k("v_add_f32 v25, %s, %s", v(X + 2), v(X + 3))
    for i in range(4, 32, 2):
        k("v_add_f32 v24, v24, %s", v(X + i))
        k("v_add_f32 v25, v25, %s", v(X + i + 1))
    k("v_add_f32 v24, v24, v25")
    row16_allreduce_add(k, 24)
    k("v_mul_f32 v24, 0x3b000000, v24")
    k("v_mov_b32 v25, 0")
    k("v_mov_b32 v26, 0")
    for i in range(0, 32, 2):
        k("v_sub_f32 v27, %s, v24", v(X + i))
        k("v_sub_f32 v28, %s, v24", v(X + i + 1))
        k("v_fmac_f32 v25, v27, v27")
        k("v_fmac_f32 v26, v28, v28")
    k("v_add_f32 v25, v25, v26")
    row16_allreduce_add(k, 25)
    k("v_mul_f32 v25, 0x3b000000, v25")
    ln_finish(k, X, 32, 24, 25, 26, 27, 8)
    for it in range(4):
        k("s_add_u32 s42, s41, 0x%x", XN + it * 4096)
        k("buffer_store_dwordx4 %s, v5, %s, s42 offen %s", v(8 + 4 * it, 4), s(S_WS, 4), ST)
    if ntiles > 1:
        k("s_add_u32 s43, s43, 1")
        if after: after(k, 43)
        for i in range(0, 16 * (ntiles - 1), 2): k("v_mov_b64 %s, %s", v(RAW + i, 2), v(RAW + 16 + i, 2))
        k("s_add_u32 s41, s41, %d", 32 * 16384)
        k("s_cmp_lt_u32 s43, %d", ntiles)
        k("s_cbranch_scc1 %s", lp)

def stage_rows256(k, srd, s_base, pitch, nrows, vaddr, lds_off=0, depth=None):
    k("v_lshrrev_b32 %s, 4, v1", v(vaddr + 1))
    k("v_lshlrev_b32 %s, 2, %s", v(vaddr), v(vaddr + 1))
    k("v_xor_b32 %s, %s, v1", v(vaddr), v(vaddr))
    k("v_and_b32 %s, 15, %s", v(vaddr), v(vaddr))
    k("v_lshlrev_b32 %s, 4, %s", v(vaddr), v(vaddr))
    k("s_mov_b32 s44, %d", pitch)
    k("v_mad_u32_u24 %s, %s, s44, %s", v(vaddr), v(vaddr + 1), v(vaddr))
    k("s_mul_i32 s44, s%d, %d", S_WAVE, 4 * pitch)
    k("s_add_u32 s44, s44, s%d", s_base)
    k("s_lshl_b32 s45, s%d, 10", S_WAVE)
    if lds_off: k("s_add_u32 s45, s45, %d", lds_off)
    n = nrows // 16
    for i in range(n):
        k("s_mov_b32 m0, s45")
        k("buffer_load_dwordx4 %s, %s, s44 offen lds", v(vaddr), s(srd, 4))
        if depth is not None: k("s_waitcnt vmcnt(%d)", depth)
        if i < n - 1:
            k("s_add_u32 s44, s44, %d", 16 * pitch)
            k("s_add_u32 s45, s45, 4096")

def frag_addr256(k, va, vtmp, lds_off=0):
    k("v_lshrrev_b32 %s, 4, v1", v(va))
    k("v_lshlrev_b32 %s, 3, %s", v(va), v(va))
    k("v_bfe_u32 %s, v1, 2, 2", v(vtmp))
    k("v_add_u32 %s, %s, %s", v(va), v(va), v(vtmp))
    k("v_lshlrev_b32 %s, 8, %s", v(va), v(va))
    k("v_xor_b32 %s, s%d, %s", v(vtmp), S_WAVE, v(vtmp))
    k("v_lshl_add_u32 %s, %s, 6, %s", v(va), v(vtmp), v(va))
    k("v_and_b32 %s, 3, v1", v(vtmp))
    k("v_lshl_add_u32 %s, %s, 4, %s", v(va), v(vtmp), v(va))
    if lds_off: k("v_add_u32 %s, %d, %s", v(va), lds_off, v(va))
    k("v_add_u32 %s, 0x10000, %s", v(va + 1), v(va))

def read_frags256(k, va, WREG):
    for ks in range(16):
        for t in range(2):
            for y in range(2):
                off = ks * 8192 + y * 1024 + 8 * t
                k("ds_read_b64_tr_b16 %s, %s offset:%d", u(WREG + (t * 16 + ks) * 4 + 2 * y, 2),
                  v(va + (off >> 16)), off & 0xffff)
        if ks % 3 == 2: k("s_waitcnt lgkmcnt(4)")
    k("s_waitcnt lgkmcnt(0)")

def seg_gemm_loop(k, WREG, w_is_a, s_src, src_stride, niter_sreg, epilogue, n_epi_vm, pre_dma=None, publish=None, tag="G"):
    PF = 8; NB = 16; FW = 16; ACC = 80
    k("v_lshlrev_b32 v4, 4, v1")
    k("v_mov_b32 v5, v4")
    k("s_lshl_b32 s48, s%d, 13", S_WAVE)
    k("s_add_u32 s49, s%d, s48", s_src)
    k("s_mov_b32 s50, s48")
    k("s_mov_b32 s51, 0")
    k("s_mov_b32 s52, 0")
    def dma_piece(p):
        if p == 0:
            if pre_dma: pre_dma(k)
            k("s_cmp_lt_u32 s52, s%d", niter_sreg)
            k("s_cselect_b32 s53, s49, 0")
            k("s_mov_b32 m0, s50")
        if p == 4:
            k("s_add_u32 s53, s53, 4096")
            k("s_add_u32 m0, s50, 4096")
        k("buffer_load_dwordx4 v4, %s, s53 offen offset:%d %s lds", s(S_WS, 4), (p % 4) * 1024, LD)
        if p == 7:
            k("s_add_u32 s49, s49, %s", src_stride)
            k("s_add_u32 s50, s50, 0x8000")
            k("s_and_b32 s50, s50, 0x1ffff")
            k("s_add_u32 s52, s52, 1")
    for i in range(2):
        for p in range(8): dma_piece(p)
    dma_piece(0); dma_piece(1)
    for j in range(n_epi_vm): k("buffer_load_dword v7, v4, %s, 0 offen", s(S_WS, 4))
    k("s_waitcnt vmcnt(%d)", 10 + n_epi_vm)
    k("s_barrier")
    for f in range(PF):
        k("ds_read_b128 %s, v5 offset:%d", v(FW + 4 * (f % NB), 4), f * 1024)
    lp = k.lab(tag + "loop")
    k.L(lp)
    k("v_add_u32 v6, 0x8000, v5")
    k("v_and_b32 v6, 0x1ffff, v6")
    for f in range(32):
        mt, ks = f // 16, f % 16
        if f == 32 - PF:
            k("s_waitcnt vmcnt(%d)", 8 + n_epi_vm)
            k("s_barrier")
            if publish: publish(k)
        g = f + PF
        if g < 32: k("ds_read_b128 %s, v5 offset:%d", v(FW + 4 * (g % NB), 4), g * 1024)
        else: k("ds_read_b128 %s, v6 offset:%d", v(FW + 4 * (g % NB), 4), (g - 32) * 1024)
        k("s_waitcnt lgkmcnt(%d)", PF)
        for t in range(2):
            acc = v(ACC + (mt * 2 + t) * 4, 4)
            wf = u(WREG + (t * 16 + ks) * 4, 4); xf = v(FW + 4 * (f % NB), 4)
            A, B = (wf, xf) if w_is_a else (xf, wf)
            k("v_mfma_f32_16x16x32_bf16 %s, %s, %s, %s", acc, A, B, "0" if ks == 0 else acc)
            if t == 0 and f % 4 == 0: dma_piece(((f + 8) // 4) % 8)
    epilogue(k, ACC)
    k("v_mov_b32 v5, v6")
    k("s_add_u32 s51, s51, 1")
    k("s_cmp_lt_u32 s51, s%d", niter_sreg)
    k("s_cbranch_scc1 %s", lp)
    k("s_waitcnt vmcnt(0) lgkmcnt(0)")

def role_qkv(k, s_idx, pre_dma=None, publish=None, pre_loop=None):
    k.c("---- QKV role")
    stamp(k, 1, 0, vt=120)
    WREG = 128
    k("s_lshr_b32 s32, s%d, 6", s_idx)
    k("s_bfe_u32 s33, s%d, 0x50001", s_idx)
    k("s_and_b32 s34, s%d, 1", s_idx)
    k("s_lshl_b32 s35, s32, 3")
    k("s_add_u32 s35, s35, 24")
    k("s_cmp_eq_u32 s32, 2")
    k("s_cselect_b32 s35, 16, s35")
    k("s_load_dwordx2 %s, s[0:1], s35", s(S_W, 2))
    k("s_lshl_b32 s36, s33, 8")
    k("s_waitcnt lgkmcnt(0)")
    fin_srd(k, 'Wq', S_W)
    stage_rows256(k, S_W, 36, 8192, 512, 8)
    frag_addr256(k, 10, 12)
    k("s_waitcnt vmcnt(0)")
    k("s_barrier")
    stamp(k, 1, 1, vt=120)
    read_frags256(k, 10, WREG)
    k("s_barrier")
    stamp(k, 1, 2, vt=120)
    k("s_lshl_b32 s37, s32, 24")
    k("s_add_u32 s37, s37, 0x%x", KIMG)
    k("s_cmp_eq_u32 s32, 2")
    k("s_cselect_b32 s37, 0x%x, s37", QIMG)
    k("s_lshl_b32 s38, s33, 13")
    k("s_add_u32 s37, s37, s38")
    k("s_lshl_b32 s38, s34, 18")
    k("s_add_u32 s37, s37, s38")
    k("s_lshl_b32 s38, s34, 15")
    if XN: k("s_add_u32 s38, s38, 0x%x", XN)
    k("s_mov_b32 s39, 32")
    if pre_loop: pre_loop(k)
    lv = k.lab("QKVv"); lend = k.lab("QKVend")
    k("s_cmp_eq_u32 s32, 1")
    k("s_cbranch_scc1 %s", lv)
    def epi_qk(k, ACC):
        for mt in range(2):
            for t in range(2):
                for h in range(2):
                    r = ACC + (mt * 2 + t) * 4 + 2 * h
                    k("v_cvt_pk_bf16_f32 %s, %s, %s", v(112 + mt * 4 + t * 2 + h), v(r), v(r + 1))
        k("buffer_store_dwordx4 v[112:115], v4, %s, s37 offen %s", s(S_WS, 4), ST)
        k("s_add_u32 s40, s37, 4096")
        k("buffer_store_dwordx4 v[116:119], v4, %s, s40 offen %s", s(S_WS, 4), ST)
        k("s_add_u32 s37, s37, 0x80000")
    k("s_lshl_b32 s40, s%d, 10", S_WAVE)
    k("s_add_u32 s37, s37, s40")
    seg_gemm_loop(k, WREG, True, 38, "0x10000", 39, epi_qk, 2, pre_dma, publish, tag="QK")
    k("s_branch %s", lend)
    k.L(lv)
    def epi_v(k, ACC):
        for t in range(2):
            for mt in range(2):
                for h in range(2):
                    r = ACC + (mt * 2 + t) * 4 + 2 * h
                    k("v_cvt_pk_bf16_f32 %s, %s, %s", v(112 + t * 4 + mt * 2 + h), v(r), v(r + 1))
        k("buffer_store_dwordx4 v[112:115], v4, %s, s37 offen %s", s(S_WS, 4), ST)
        k("buffer_store_dwordx4 v[116:119], v4, %s, s37 offen offset:1024 %s", s(S_WS, 4), ST)
        k("buffer_store_dwordx4 v[120:123], v4, %s, s41 offen %s", s(S_WS, 4), ST)
        k("s_add_u32 s37, s37, 0x80000")
        k("s_add_u32 s41, s41, 0x40000")
    k("s_lshl_b32 s40, s%d, 11", S_WAVE)
    k("s_add_u32 s37, s37, s40")
    k("s_lshl_b32 s41, s34, 17")
    k("s_lshl_b32 s40, s33, 12")
    k("s_add_u32 s41, s41, s40")
    k("s_lshl_b32 s40, s%d, 10", S_WAVE)
    k("s_add_u32 s41, s41, s40")
    k("s_add_u32 s41, s41, 0x%x", KM)
    for i in range(4): k("v_mov_b32 v%d, -1", 120 + i)
    seg_gemm_loop(k, WREG, False, 38, "0x10000", 39, epi_v, 3, pre_dma, publish, tag="V")
    k.L(lend)
    stamp(k, 1, 3, vt=120)
```

```python
from roles import *
from chain import xmax
import struct
def f2u(x): return struct.unpack('<I', struct.pack('<f', x))[0]
CSC = 0.08838834764831845 * 1.4426950408889634
def MF(d, A, B, first): return "v_mfma_f32_16x16x32_bf16 %s, %s, %s, %s" % (v(d, 4), u(A, 4), u(B, 4), "0" if first else v(d, 4))
def M16(d, A, B): return "v_mfma_f32_16x16x16_bf16 %s, %s, %s, %s" % (v(d, 4), v(A, 2), v(B, 2), v(d, 4))
def CV(d, a_, b_): return "v_cvt_pk_bf16_f32 %s, %s, %s" % (v(d), v(a_), v(b_))

def xsum(k, r, tmp):
    k("v_mov_b32 %s, %s", v(tmp), v(r))
    k("v_permlane32_swap_b32 %s, %s", v(r), v(tmp))
    k("v_add_f32 %s, %s, %s", v(r), v(r), v(tmp))
    k("v_mov_b32 %s, %s", v(tmp), v(r))
    k("v_permlane16_swap_b32 %s, %s", v(r), v(tmp))
    k("v_add_f32 %s, %s, %s", v(r), v(r), v(tmp))

def last_seg(k, dst, s_seg):
    k("s_add_u32 s%d, s%d, 60", dst, s_seg)
    k("s_cmp_eq_u32 s%d, 0", s_seg)
    k("s_cselect_b32 s%d, 63, s%d", dst, dst)

def role_bc(k, s_idx, s_seg, nstride, wait_qkv=None, wait_kvm=None, publish=None, hint=None):
    k.c("---- BC role")
    W = s(S_WS, 4); WREG = 256
    load_srd(k, 'Wo', S_W)
    k("s_lshr_b32 s32, s%d, 2", s_idx)
    k("s_and_b32 s33, s%d, 3", s_idx)
    k("s_lshl_b32 s36, s32, 19")
    k("s_lshl_b32 s37, s33, 8")
    k("s_add_u32 s36, s36, s37")
    k("s_waitcnt lgkmcnt(0)")
    fin_srd(k, 'Wo', S_W)
    stage_rows256(k, S_W, 36, 1024, 512, 8, depth=k.copt.get('wd'))
    frag_addr256(k, 10, 12)
    k("s_waitcnt vmcnt(0)")
    k("s_barrier")
    read_frags256(k, 10, WREG)
    k("s_barrier")
    QF, KF, VF, KV, XK = 16, 48, 80, 112, 128
    T, TM, P, PM, OT, FW, ACC = 144, 156, 164, 172, 180, 192, 180
    aL16, aXW, aXR, aOW, aOR = 4, 5, 6, 7, 8
    k("v_lshlrev_b32 v4, 4, v1")
    k("v_and_b32 v10, 15, v1")
    k("v_lshrrev_b32 v11, 4, v1")
    k("v_bfe_u32 v12, v1, 2, 2")
    k("v_and_b32 v13, 3, v1")
    k("s_mul_i32 s38, s%d, 5120", S_WAVE)
    k("s_add_u32 s38, s38, 65536")
    k("v_mul_u32_u24 v14, 320, v11")
    k("v_lshl_add_u32 v14, v10, 3, v14")
    k("v_add_u32 v%d, s38, v14", aXW)
    k("v_mul_u32_u24 v14, 320, v13")
    k("v_lshrrev_b32 v15, 2, v1")
    k("v_lshl_add_u32 v14, v15, 3, v14")
    k("v_add_u32 v%d, s38, v14", aXR)
    k("s_lshl_b32 s38, s%d, 12", S_WAVE)
    k("v_add_u32 v%d, s38, v4", aOW)
    k("v_mov_b32 v%d, v4", aOR)
    k("v_lshlrev_b32 v14, 2, v11")
    for j in range(4):
        k("v_add_u32 v15, %d, v14", j)
        k("v_cmp_gt_u32 %s, v15, v10", s(64 + 2 * j, 2))
    k("v_mov_b32 v9, 0xff800000")
    k("s_mov_b32 s41, 0x%x", f2u(CSC))
    k("s_lshl_b32 s34, s32, 2")
    k("s_add_u32 s34, s34, s%d", S_WAVE)
    k("s_lshl_b32 s35, s34, 13")
    k("s_lshl_b32 s39, s34, 12")
    k("s_lshl_b32 s40, s33, 2")
    k("s_add_u32 s40, s40, s%d", S_WAVE)
    k("s_lshl_b32 s40, s40, 8")
    k("s_lshl_b32 s38, s32, 13")
    k("s_add_u32 s40, s40, s38")
    k("s_add_u32 s40, s40, 0x%x", PART)
    k("v_lshlrev_b32 v184, 16, v12")
    k("v_lshl_add_u32 v184, v11, 6, v184")
    k("v_lshl_add_u32 v184, v13, 4, v184")
    k("v_add_u32 v185, 4096, v184")
    def load_qkv(sseg):
        k("s_lshl_b32 s45, s%d, 18", sseg)
        k("s_add_u32 s45, s45, s35")
        for base, R in ((QIMG, QF), (KIMG, KF), (VIMG, VF)):
            for hf in range(2):
                k("s_add_u32 s43, s45, 0x%x", base + hf * 4096)
                for i in range(4):
                    k("buffer_load_dwordx4 %s, v4, %s, s43 offen offset:%d %s", a(128 + R - QF + 16 * hf + 4 * i, 4), W, i * 1024, LD)
    if hint:
        last_seg(k, 42, s_seg)
        k("s_lshl_b32 s42, s42, 19")
        k("s_add_u32 s42, s42, s40")
        k("s_add_u32 s43, s42, 0x40000")
        for i in range(4): k("v_mov_b32 v%d, -1", 188 + i)
        for n in range(k.narm):
            for sr in (42, 43):
                for t in range(2): k("buffer_store_dwordx4 v[188:191], v%d, %s, s%d offen %s", 184 + t, W, sr, ST)
                k("s_sub_u32 s%d, s%d, 0x%x", sr, sr, 3 << 19)
    if wait_qkv: wait_qkv(k, s_seg)
    load_qkv(s_seg)
    k("s_waitcnt vmcnt(0)")
    lp = k.lab("BCl")
    k.L(lp)
    k("s_waitcnt vmcnt(4)")
    k("s_lshl_b32 s42, s%d, 17", s_seg)
    k("s_add_u32 s42, s42, s39")
    k("s_add_u32 s42, s42, 0x%x", KM)
    def ldkv():
        for i in range(4):
            k("buffer_load_dwordx4 %s, v4, %s, s42 offen offset:%d %s", v(KV + 4 * i, 4), W, i * 1024, LD)
    ldkv()
    QA, KA = 384, 416
    cp = ["v_accvgpr_read_b32 v%d, a%d" % (QF + i, 128 + i) for i in list(range(32)) + list(range(64, 96))]
    for kb in range(4):
        for m_ in (MF(T, KA + 4 * kb, QA + 4 * kb, kb == 0), MF(T + 4, KA + 4 * kb, QA + 16 + 4 * kb, kb == 0), MF(T + 8, KA + 16 + 4 * kb, QA + 16 + 4 * kb, kb == 0)):
            k(m_); k(cp.pop(0)); k(cp.pop(0))
    for x in cp: k(x)
    for j in range(4):
        k("v_cndmask_b32 %s, %s, v9, %s", v(T + j), v(T + j), s(64 + 2 * j, 2))
        k("v_cndmask_b32 %s, %s, v9, %s", v(T + 8 + j), v(T + 8 + j), s(64 + 2 * j, 2))
    MX, SM, TMP, M2, S2 = 10, 12, 14, 180, 182
    vals = [[T + j for j in range(4)], [T + 4 + j for j in range(8)]]
    for mt in range(2):
        vs = vals[mt]
        k("v_max_f32 %s, %s, %s", v(MX + mt), v(vs[0]), v(vs[1]))
        for i in range(2, len(vs), 2):
            k("v_max3_f32 %s, %s, %s, %s", v(MX + mt), v(vs[i]), v(vs[i + 1]), v(MX + mt))
    for mt in range(2): xmax(k, MX + mt, TMP + mt)
    for mt in range(2):
        k("v_mul_f32 %s, s41, %s", v(MX + mt), v(MX + mt))
        for r in vals[mt]: k("v_fma_f32 %s, %s, s41, -%s", v(r), v(r), v(MX + mt))
        for r in vals[mt]: k("v_exp_f32 %s, %s", v(r), v(r))
    for mt in range(2):
        vs = vals[mt]
        k("v_add_f32 %s, %s, %s", v(SM + mt), v(vs[0]), v(vs[1]))
        for r in vs[2:]: k("v_add_f32 %s, %s, %s", v(SM + mt), v(SM + mt), v(r))
    k("v_mov_b32 %s, 0", v(P + 2)); k("v_mov_b32 %s, 0", v(P + 3))
    for mt in range(2):
        k("v_mov_b32 %s, 0", v(PM + 4 * mt + 1)); k("v_mov_b32 %s, 0", v(PM + 4 * mt + 2))
    lnp = k.lab("BCnp"); lnw = k.lab("BCnw")
    k("s_waitcnt vmcnt(0)")
    k("s_cmp_lt_u32 s%d, %d", s_seg, nstride)
    k("s_cbranch_scc1 %s", lnp)
    k("s_sub_u32 s44, s%d, %d", s_seg, nstride)
    if publish: publish(k, 44)
    k.L(lnp)
    k("s_add_u32 s44, s%d, %d", s_seg, nstride)
    k("s_cmp_ge_u32 s44, 64")
    k("s_cbranch_scc1 %s", lnw)
    if wait_qkv: wait_qkv(k, 44)
    load_qkv(44)
    k.L(lnw)
    lstamp(k, 0)
    lpk = k.lab("BCk"); okk = k.lab("BCko")
    k("s_mov_b32 s59, 0")
    k.L(lpk)
    k("v_max3_u32 v2, %s, %s, %s", v(KV), v(KV + 4), v(KV + 8))
    k("v_max_u32 v2, v2, %s", v(KV + 12))
    k("v_cmp_eq_u32 vcc, -1, v2")
    k("s_cbranch_vccz %s", okk)
    k("s_sleep %d", getattr(k, 'copt', {}).get('slpk', 2))
    ldkv()
    k("s_waitcnt vmcnt(0)")
    k("s_add_u32 s59, s59, 1")
    k("s_cmp_lt_u32 s59, s%d", S_SPIN)
    k("s_cbranch_scc1 %s", lpk)
    k("s_mov_b32 s%d, 0", S_SPIN)
    k.L(okk)
    lstamp(k, 1)
    k(".aw_on")
    for i in range(4):
        k("ds_write_b32 v%d, %s offset:%d", aXW, v(KV + 4 * i), i * 1280)
        k("ds_write_b32 v%d, %s offset:%d", aXW, v(KV + 4 * i + 1), i * 1280 + 128)
        for y in range(2):
            k("ds_read_b64_tr_b16 %s, v%d offset:%d", v(XK + 4 * i + 2 * y, 2), aXR, i * 1280 + y * 128)
    lstamp(k, 2)
    for kb in range(4):
        k(MF(TM, XK + 4 * kb, QF + 4 * kb, kb == 0))
        k(MF(TM + 4, XK + 4 * kb, QF + 16 + 4 * kb, kb == 0))
    for mt in range(2):
        k("v_mul_f32 %s, s41, %s", v(TM + 4 * mt), v(TM + 4 * mt))
        k("v_mul_f32 %s, s41, %s", v(TM + 4 * mt + 1), v(TM + 4 * mt + 1))
        k("v_max3_f32 %s, %s, %s, %s", v(M2 + mt), v(TM + 4 * mt), v(TM + 4 * mt + 1), v(MX + mt))
    def x2(op, r, tmp):
        for sw in ("v_permlane32_swap_b32", "v_permlane16_swap_b32"):
            for mt in range(2): k("v_mov_b32 %s, %s", v(tmp + mt), v(r + mt))
            for mt in range(2): k("%s %s, %s", sw, v(r + mt), v(tmp + mt))
            for mt in range(2): k("%s %s, %s, %s", op, v(r + mt), v(r + mt), v(tmp + mt))
    x2("v_max_f32", M2, TMP)
    for mt in range(2):
        k("v_sub_f32 %s, %s, %s", v(MX + mt), v(MX + mt), v(M2 + mt))
        k("v_sub_f32 %s, %s, %s", v(TM + 4 * mt), v(TM + 4 * mt), v(M2 + mt))
        k("v_sub_f32 %s, %s, %s", v(TM + 4 * mt + 1), v(TM + 4 * mt + 1), v(M2 + mt))
    for mt in range(2):
        for r in (MX + mt, TM + 4 * mt, TM + 4 * mt + 1): k("v_exp_f32 %s, %s", v(r), v(r))
    for mt in range(2):
        k("v_fma_f32 %s, %s, %s, %s", v(SM + mt), v(SM + mt), v(MX + mt), v(TM + 4 * mt))
        k("v_add_f32 %s, %s, %s", v(SM + mt), v(SM + mt), v(TM + 4 * mt + 1))
    x2("v_add_f32", SM, TMP)
    for mt in range(2): k("v_rcp_f32 %s, %s", v(SM + mt), v(SM + mt))
    for mt in range(2):
        k("v_mul_f32 %s, %s, %s", v(MX + mt), v(MX + mt), v(SM + mt))
        k("v_mul_f32 %s, %s, %s", v(TM + 4 * mt), v(TM + 4 * mt), v(SM + mt))
        k("v_mul_f32 %s, %s, %s", v(TM + 4 * mt + 1), v(TM + 4 * mt + 1), v(SM + mt))
    for mt in range(2):
        for r in vals[mt]: k("v_mul_f32 %s, %s, %s", v(r), v(r), v(MX + mt))
    k(CV(P, T, T + 1)); k(CV(P + 1, T + 2, T + 3))
    for i in range(4): k(CV(P + 4 + i, T + 4 + 2 * i, T + 5 + 2 * i))
    for mt in range(2):
        k(CV(PM + 4 * mt, TM + 4 * mt, TM + 4 * mt + 1)); k(CV(PM + 4 * mt + 3, TM + 4 * mt, TM + 4 * mt + 1))
    O = lambda wp, mt, t: FW + ((wp * 2 + mt) * 2 + t) * 4
    def pack(wp):
        out = []
        for mt in range(2):
            o0 = O(wp, mt, 0)
            out += [CV(o0 + i, o0 + 2 * i, o0 + 2 * i + 1) for i in range(4)]
            out += ["ds_write_b128 v%d, %s offset:%d" % (aOW, v(o0, 4), mt * 16384 + wp * 1024)]
        return out
    pend = []
    for wp in range(4):
        ms = [MF(O(wp, mt, t), VF + 4 * (2 * wp + t), P + 4 * mt, True) for mt in range(2) for t in range(2)] + \
             [M16(O(wp, mt, t), KV + 4 * wp + 2, PM + 4 * mt + 2 * t) for mt in range(2) for t in range(2)]
        for mi, m_ in enumerate(ms):
            k(m_)
            if mi >= 2:
                for _ in range(2):
                    if pend: k(pend.pop(0))
        pend = pack(wp)
    for x in pend: k(x)
    k(".aw_writes")
    k("s_barrier")
    lstamp(k, 3)
    PF = 8
    AC = T
    for f in range(PF): k("ds_read_b128 %s, v%d offset:%d", v(FW + 4 * (f % 16), 4), aOR, f * 1024)
    for f in range(32):
        mt, ks = f // 16, f % 16
        if f + PF < 32: k("ds_read_b128 %s, v%d offset:%d", v(FW + 4 * ((f + PF) % 16), 4), aOR, (f + PF) * 1024)
        for t in range(2): k(MF(AC + (mt * 2 + t) * 4, WREG + (t * 16 + ks) * 4, FW + 4 * (f % 16), ks == 0))
        if hint and f == k.copt.get('hbc', 99): hint(k, s_seg)
        if f == 20:
            k("s_lshl_b32 s42, s%d, 19", s_seg)
            k("s_add_u32 s42, s42, s40")
            for t in range(2): k("buffer_store_dwordx4 %s, v%d, %s, s42 offen %s", v(AC + 4 * t, 4), 184 + t, W, ST)
    k(".aw_off")
    k("s_add_u32 s42, s42, 0x40000")
    for t in range(2): k("buffer_store_dwordx4 %s, v%d, %s, s42 offen %s", v(AC + 8 + 4 * t, 4), 184 + t, W, ST)
    k("v_xor_b32 v%d, 0x8000, v%d", aOW, aOW)
    k("v_xor_b32 v%d, 0x8000, v%d", aOR, aOR)
    lstamp(k, 4)
    if hint: hint(k, s_seg, True)
    k("s_add_u32 s%d, s%d, %d", s_seg, s_seg, nstride)
    k("s_cmp_lt_u32 s%d, 64", s_seg)
    k("s_cbranch_scc1 %s", lp)
    k("s_sub_u32 s44, s%d, %d", s_seg, nstride)
    if publish: publish(k, 44)
    lstamp(k, 5)

def role_red(k, s_tq, s_seg, nstride, wait=None, publish=None, hint=None, wait_final=None):
    k.c("---- R role")
    W = s(S_WS, 4)
    k("v_and_b32 v10, 3, v1")
    k("v_bfe_u32 v11, v1, 2, 2")
    k("v_lshrrev_b32 v12, 4, v1")
    k("s_lshl_b32 s32, s%d, 2", S_WAVE)
    k("v_add_u32 v12, s32, v12")
    k("s_and_b32 s33, s%d, 3", s_tq)
    k("s_lshl_b32 s33, s33, 2")
    k("v_add_u32 v13, s33, v10")
    k("v_lshl_add_u32 v14, v11, 4, v13")
    k("v_lshlrev_b32 v14, 4, v14")
    k("v_lshlrev_b32 v4, 4, v0")
    k("v_add_u32 v9, 4096, v4")
    k("v_lshl_add_u32 v5, v12, 10, v14")
    k("v_lshlrev_b32 v6, 10, v13")
    k("v_lshl_add_u32 v6, v12, 6, v6")
    k("v_lshl_add_u32 v6, v11, 4, v6")
    k("s_lshr_b32 s34, s%d, 2", s_tq)
    k("s_lshl_b32 s35, s%d, 16", s_tq)
    k("s_add_u32 s35, s35, 0x%x", PART)
    k("s_lshl_b32 s36, s34, 14")
    k("s_lshl_b32 s37, s%d, 5", S_WAVE)
    k("v_lshlrev_b32 v8, 3, v10")
    k("v_add_u32 v7, s37, v8")
    if hint:
        last_seg(k, 39, s_seg)
        k("s_lshl_b32 s39, s39, 15")
        k("s_add_u32 s39, s39, s36")
        for i in range(4): k("v_mov_b32 v%d, -1", 16 + i)
        for n in range(k.narm):
            for base in (HIMG, HNIMG):
                k("s_add_u32 s38, s39, 0x%x", base - n * (3 << 15))
                k("buffer_store_dwordx4 v[16:19], v5, %s, s38 offen %s", W, ST)
        k("s_waitcnt vmcnt(0)")
    lp = k.lab("Rl"); lre = k.lab("Rre"); lfb = k.lab("Rfb"); lgo = k.lab("Rgo"); lend = k.lab("Rend")
    k.L(lp)
    k("s_mov_b32 s73, %d", 64 - 3 * k.narm)
    k("s_lshl_b32 s39, s%d, 15", s_seg)
    k("s_add_u32 s39, s39, s36")
    k("buffer_load_dwordx4 v[16:19], v6, %s, s39 offen", s(S_X, 4))
    lstamp(k, 0)
    if wait: wait(k, s_seg)
    lstamp(k, 1)
    k.L(lre)
    k("s_lshl_b32 s38, s%d, 19", s_seg)
    k("s_add_u32 s38, s38, s35")
    PB = 32
    for hg in range(8):
        for t in range(2):
            k("buffer_load_dwordx4 %s, v%d, %s, s38 offen %s", v(PB + 8 * hg + 4 * t, 4), 9 if t else 4, W, LD)
        if hg < 7: k("s_add_u32 s38, s38, 8192")
    X = 20
    k("s_waitcnt vmcnt(16)")
    for j in range(4):
        k("v_lshlrev_b32 %s, 16, %s", v(X + 2 * j), v(16 + j))
        k("v_and_b32 %s, 0xffff0000, %s", v(X + 2 * j + 1), v(16 + j))
    for hg in range(1, 8):
        k("s_waitcnt vmcnt(%d)", 14 - 2 * hg)
        for i in range(8): k("v_add_f32 %s, %s, %s", v(PB + i), v(PB + i), v(PB + 8 * hg + i))
    lstamp(k, 2)
    if hint:
        k("v_cmp_u_f32 vcc, %s, %s", v(PB), v(PB + 4))
        k("s_cbranch_vccnz %s", lfb)
        k.L(lgo)
    H = 40
    for i in range(0, 8, 2):
        k(CV(28, PB + i, PB + i + 1))
        k("v_lshlrev_b32 v29, 16, v28")
        k("v_and_b32 v28, 0xffff0000, v28")
        k("v_add_f32 %s, %s, v29", v(X + i), v(X + i))
        k("v_add_f32 %s, %s, v28", v(X + i + 1), v(X + i + 1))
        k(CV(H + i // 2, X + i, X + i + 1))
        k("v_lshlrev_b32 %s, 16, %s", v(X + i), v(H + i // 2))
        k("v_and_b32 %s, 0xffff0000, %s", v(X + i + 1), v(H + i // 2))
    k("s_add_u32 s38, s39, 0x%x", HIMG)
    k("buffer_store_dwordx4 %s, v5, %s, s38 offen %s", v(H, 4), W, ST)
    def red16(r, tmp):
        for sh in (4, 8): k("v_add_f32_dpp %s, %s, %s row_ror:%d row_mask:0xf bank_mask:0xf", v(r), v(r), v(r), sh)
        xsum(k, r, tmp)
    k("v_add_f32 v44, %s, %s", v(X), v(X + 1))
    for i in range(2, 8): k("v_add_f32 v44, v44, %s", v(X + i))
    red16(44, 46)
    k("v_mul_f32 v44, 0x3c000000, v44")
    k("v_mov_b32 v45, 0")
    for i in range(8):
        k("v_sub_f32 v46, %s, v44", v(X + i))
        k("v_fmac_f32 v45, v46, v46")
    red16(45, 46)
    if hint and k.copt.get('hr2', 0): hint(k, s_seg)
    k("ds_write_b64 v7, v[44:45]")
    k("s_waitcnt lgkmcnt(0)")
    k("s_barrier")
    for w in range(4): k("ds_read_b64 %s, v8 offset:%d", v(48 + 2 * w, 2), 32 * w)
    k("v_xor_b32 v7, 128, v7")
    k("v_xor_b32 v8, 128, v8")
    k("s_waitcnt lgkmcnt(0)")
    k("v_add_f32 v44, v48, v50"); k("v_add_f32 v46, v52, v54"); k("v_add_f32 v44, v44, v46")
    k("v_mul_f32 v44, 0.25, v44")
    k("v_add_f32 v45, v49, v51"); k("v_add_f32 v46, v53, v55"); k("v_add_f32 v45, v45, v46")
    k("v_mov_b32 v47, 0")
    for w in range(4):
        k("v_sub_f32 v46, %s, v44", v(48 + 2 * w))
        k("v_fmac_f32 v47, v46, v46")
    k("v_mul_f32 v47, 0x43000000, v47")
    k("v_add_f32 v45, v45, v47")
    k("v_mul_f32 v45, 0x3b000000, v45")
    if hint and k.copt.get('hr', 0): hint(k, s_seg)
    ln_finish(k, X, 8, 44, 45, 46, 47, 56)
    k("s_add_u32 s38, s39, 0x%x", HNIMG)
    k("buffer_store_dwordx4 v[56:59], v5, %s, s38 offen %s", W, ST)
    lstamp(k, 4)
    if hint: hint(k, s_seg, True)
    if publish: publish(k, s_seg)
    lstamp(k, 5)
    k("s_add_u32 s%d, s%d, %d", s_seg, s_seg, nstride)
    k("s_cmp_lt_u32 s%d, 64", s_seg)
    k("s_cbranch_scc1 %s", lp)
    if hint:
        k("s_branch %s", lend)
        k.L(lfb)
        k("s_cmp_lt_u32 s%d, s73", s_seg)
        k("s_cbranch_scc1 %s", lgo)
        k("s_mov_b32 s73, 64")
        wait_final(k, s_seg)
        k("s_branch %s", lre)
        k.L(lend)

def role_up(k, s_u, s_seg, nstride, niter_sreg, pre_dma=None, publish=None, wait=None, hint=None, wait_final=None):
    k.c("---- U role")
    W = s(S_WS, 4); WREG = 128
    load_srd(k, 'w1', S_W); load_srd(k, 'w3', S_X)
    k("v_lshrrev_b32 v8, 3, v1")
    k("s_mov_b32 s32, 2752")
    k("v_mul_lo_u32 v8, v8, s32")
    k("v_and_b32 v9, 7, v1")
    k("v_lshl_add_u32 v8, v9, 4, v8")
    k("s_lshl_b32 s33, s%d, 7", s_u)
    k("s_mul_i32 s34, s%d, %d", S_WAVE, 8 * 2752)
    k("s_add_u32 s33, s33, s34")
    k("v_add_u32 v8, s33, v8")
    k("s_lshl_b32 s35, s%d, 10", S_WAVE)
    k("s_waitcnt lgkmcnt(0)")
    fin_srd(k, 'w1', S_W); fin_srd(k, 'w3', S_X)
    for i in range(16):
        k("s_add_u32 m0, s35, %d", i * 4096)
        k("buffer_load_dwordx4 v8, %s, 0 offen lds", s(S_W, 4))
        k("s_add_u32 m0, s35, %d", 65536 + i * 4096)
        k("buffer_load_dwordx4 v8, %s, 0 offen lds", s(S_X, 4))
        if k.copt.get('wd') is not None: k("s_waitcnt vmcnt(%d)", k.copt['wd'])
        if i < 15: k("v_add_u32 v8, %d, v8", 32 * 2752)
    WREG = 256
    k("v_lshrrev_b32 v10, 4, v1")
    k("v_bfe_u32 v12, v1, 2, 2")
    k("v_lshl_add_u32 v10, v10, 3, v12")
    k("v_lshlrev_b32 v10, 7, v10")
    k("v_and_b32 v12, 3, v1")
    k("v_lshl_add_u32 v10, v12, 4, v10")
    k("s_lshr_b32 s36, s%d, 1", S_WAVE)
    k("s_lshl_b32 s37, s36, 6")
    k("v_add_u32 v10, s37, v10")
    k("v_add_u32 v11, 0x10000, v10")
    k("s_waitcnt vmcnt(0)")
    k("s_barrier")
    for ks in range(16):
        for m in range(2):
            for hf in range(2):
                for y in range(2):
                    k("ds_read_b64_tr_b16 %s, v%d offset:%d", u(WREG + ((m * 2 + hf) * 16 + ks) * 4 + 2 * y, 2), 10 + m, ks * 4096 + y * 512 + 8 * hf)
        k("s_waitcnt lgkmcnt(4)")
    k("s_waitcnt lgkmcnt(0)")
    k("s_barrier")
    k("s_and_b32 s37, s%d, 1", S_WAVE)
    k("s_lshl_b32 s39, s%d, 1", s_u)
    k("s_add_u32 s39, s39, s36")
    k("v_lshlrev_b32 v4, 4, v1")
    k("s_cmp_lt_u32 s39, 43")
    k("s_cselect_b32 s40, 0, 0x40000000")
    k("v_add_u32 v12, s40, v4")
    k("s_lshl_b32 s39, s39, 10")
    k("s_mul_i32 s40, s%d, 88064", s_seg)
    k("s_add_u32 s39, s39, s40")
    k("s_mul_i32 s40, s37, 44032")
    k("s_add_u32 s39, s39, s40")
    k("s_add_u32 s39, s39, 0x%x", ACT)
    k("s_lshl_b32 s38, s%d, 15", s_seg)
    k("s_add_u32 s38, s38, 0x%x", HNIMG)
    k("s_mov_b32 s41, 0xbfb8aa3b")
    k("s_lshl_b32 s40, s37, 14")
    k("v_add_u32 v5, s40, v4")
    k("s_lshl_b32 s48, s36, 10")
    k("s_add_u32 s48, s48, s40")
    k("s_add_u32 s38, s38, s48")
    if hint:
        last_seg(k, 49, s_seg)
        k("s_sub_u32 s49, s49, s%d", s_seg)
        k("s_mul_i32 s49, s49, 88064")
        k("s_add_u32 s49, s49, s39")
        for i in range(4): k("v_mov_b32 v%d, -1", 16 + i)
        for n in range(k.narm):
            k("buffer_store_dwordx4 v[16:19], v12, %s, s49 offen %s", W, ST)
            k("s_sub_u32 s49, s49, %d", 3 * 88064)
        k("s_waitcnt vmcnt(0)")
    lp = k.lab("Ul"); lfb = k.lab("Ufb"); lgo = k.lab("Ugo"); lend = k.lab("Uend")
    k.L(lp)
    lstamp(k, 0)
    if wait: wait(k, s_seg)
    lstamp(k, 1)
    for i in range(8):
        k("s_add_u32 m0, s48, %d", i * 2048)
        k("s_add_u32 s49, s38, %d", i * 2048)
        k("buffer_load_dwordx4 v4, %s, s49 offen %s lds", W, LD)
    FW = 16; AC = 80
    k(".aw_on")
    for half in range(2):
        k("s_waitcnt vmcnt(%d)", 4 - 4 * half)
        k("s_barrier")
        lstamp(k, 2 + half)
        for f in range(8): k("ds_read_b128 %s, v5 offset:%d", v(FW + 4 * (half * 8 + f), 4), (half * 8 + f) * 1024)

        for f in range(half * 8, half * 8 + 8):
            for q in range(4): k(MF(AC + 4 * q, WREG + (q * 16 + f) * 4, FW + 4 * f, f == 0))
            if hint and f == k.copt.get('hu2', 99): hint(k, s_seg)
    k(".aw_off")
    if hint:
        k("v_cmp_u_f32 vcc, %s, %s", v(AC), v(AC))
        k("s_cbranch_vccnz %s", lfb)
        k.L(lgo)
        if k.copt.get('hu', 0): hint(k, s_seg)
    g0 = AC; u0 = AC + 8; TT = 96
    for r in range(AC, AC + 16, 2):
        k(CV(TT, r, r + 1))
        k("v_lshlrev_b32 %s, 16, %s", v(r), v(TT))
        k("v_and_b32 %s, 0xffff0000, %s", v(r + 1), v(TT))
    for j in range(8): k("v_mul_f32 %s, s41, %s", v(TT + j), v(g0 + j))
    for j in range(8): k("v_exp_f32 %s, %s", v(TT + j), v(TT + j))
    for j in range(8): k("v_add_f32 %s, 1.0, %s", v(TT + j), v(TT + j))
    for j in range(8): k("v_rcp_f32 %s, %s", v(TT + j), v(TT + j))
    for j in range(8): k("v_mul_f32 %s, %s, %s", v(g0 + j), v(g0 + j), v(TT + j))
    for r in range(g0, g0 + 8, 2):
        k(CV(TT, r, r + 1))
        k("v_lshlrev_b32 %s, 16, %s", v(r), v(TT))
        k("v_and_b32 %s, 0xffff0000, %s", v(r + 1), v(TT))
    for j in range(8): k("v_mul_f32 %s, %s, %s", v(g0 + j), v(g0 + j), v(u0 + j))
    for j in range(4): k(CV(TT + j, g0 + 2 * j, g0 + 2 * j + 1))
    k("buffer_store_dwordx4 %s, v12, %s, s39 offen %s", v(TT, 4), W, ST)
    k("s_add_u32 s39, s39, %d", 88064 * nstride)
    k("s_add_u32 s38, s38, %d", 32768 * nstride)
    lstamp(k, 4)
    if hint:
        hint(k, s_seg, True)
        ls_ = k.lab("Uwf")
        k("s_cmp_lt_u32 s%d, %d", s_seg, 64 - 3 * k.narm)
        k("s_cbranch_scc1 %s", ls_)
        wait_final(k, s_seg)
        k.L(ls_)
    if publish: publish(k, s_seg)
    lstamp(k, 5)
    k("s_add_u32 s%d, s%d, %d", s_seg, s_seg, nstride)
    k("s_cmp_lt_u32 s%d, 64", s_seg)
    k("s_cbranch_scc1 %s", lp)
    if hint:
        k("s_branch %s", lend)
        k.L(lfb)
        k("s_cmp_lt_u32 s%d, %d", s_seg, 64 - 3 * k.narm)
        k("s_cbranch_scc1 %s", lgo)
        wait_final(k, s_seg)
        k("s_lshl_b32 s49, s36, 10")
        k("s_sub_u32 s49, s38, s49")
        for f in range(16):
            k("buffer_load_dwordx4 %s, v4, %s, s49 offen offset:%d %s", v(FW + 4 * f, 4), W, (f % 4) * 1024, LD)
            if f % 4 == 3: k("s_add_u32 s49, s49, 4096")
        k("s_waitcnt vmcnt(0)")
        for f in range(16):
            for q in range(4): k(MF(AC + 4 * q, WREG + (q * 16 + f) * 4, FW + 4 * f, f == 0))
        k("s_branch %s", lgo)
        k.L(lend)

def role_dn(k, s_dn, s_seg, nstride, s_mt, wait=None, wait_final=None):
    k.c("---- Dn role")
    W = s(S_WS, 4); WREG = 256
    load_srd(k, 'w2', S_W)
    k("v_lshrrev_b32 v8, 2, v1")
    k("v_lshlrev_b32 v8, 10, v8")
    k("v_and_b32 v9, 3, v1")
    k("v_lshl_add_u32 v8, v9, 4, v8")
    k("s_mul_i32 s32, s%d, %d", S_WAVE, 352 * 1024)
    k("s_lshl_b32 s33, s%d, 6", s_dn)
    k("s_add_u32 s32, s32, s33")
    k("v_add_u32 v8, s32, v8")
    k("s_mul_i32 s35, s%d, 22528", S_WAVE)
    k("s_waitcnt lgkmcnt(0)")
    fin_srd(k, 'w2', S_W)
    for i in range(22):
        k("s_add_u32 m0, s35, %d", i * 1024)
        k("buffer_load_dwordx4 v8, %s, 0 offen lds", s(S_W, 4))
        if k.copt.get('wd') is not None: k("s_waitcnt vmcnt(%d)", k.copt['wd'])
        if i < 21: k("v_add_u32 v8, 16384, v8")
    k("v_lshrrev_b32 v11, 4, v1")
    k("v_bfe_u32 v12, v1, 2, 2")
    k("v_lshl_add_u32 v10, v11, 3, v12")
    k("v_lshlrev_b32 v10, 6, v10")
    k("v_lshl_add_u32 v10, v9, 4, v10")
    k("v_add_u32 v10, s35, v10")
    k("s_waitcnt vmcnt(0)")
    for ks in range(11):
        for t in range(2):
            for y in range(2):
                k("ds_read_b64_tr_b16 %s, v10 offset:%d", u(WREG + (t * 11 + ks) * 4 + 2 * y, 2), ks * 2048 + y * 256 + 8 * t)
        if ks % 3 == 2: k("s_waitcnt lgkmcnt(4)")
    k("s_waitcnt lgkmcnt(0)")
    k("s_barrier")
    k("v_lshlrev_b32 v4, 4, v1")
    k("s_cmp_eq_u32 s%d, 3", S_WAVE)
    k("s_cselect_b32 s36, 0x40000000, 0")
    k("v_add_u32 v5, s36, v4")
    k("s_mul_i32 s36, s%d, 11264", S_WAVE)
    k("s_add_u32 s36, s36, 0x%x", ACT)
    k("s_mul_i32 s37, s%d, 44032", s_mt)
    k("s_add_u32 s36, s36, s37")
    k("s_lshl_b32 s37, s%d, 11", S_WAVE)
    k("v_add_u32 v6, s37, v4")
    k("v_mov_b32 v7, v4")
    k("s_lshl_b32 s39, s%d, 14", s_mt)
    k("s_lshl_b32 s40, s%d, 10", s_dn)
    k("s_add_u32 s40, s40, s39")
    k("s_add_u32 s40, s40, 0x%x", HIMG)
    k("s_add_u32 s39, s39, s33")
    k("v_and_b32 v12, 15, v1")
    k("v_lshlrev_b32 v12, 10, v12")
    k("v_lshl_add_u32 v12, v11, 4, v12")
    AF = 32; AC = 16
    lp = k.lab("Dl"); lsk = k.lab("Dsk"); lre = k.lab("Dre"); lfb = k.lab("Dfb"); lgo = k.lab("Dgo"); lend = k.lab("Dend"); lw3 = k.lab("Dw3")
    k.L(lp)
    k("s_mov_b32 s73, %d", 64 - 3 * k.narm)
    lstamp(k, 0)
    if wait: wait(k, s_seg)
    lstamp(k, 1)
    k.L(lre)
    k("s_mul_i32 s41, s%d, 88064", s_seg)
    k("s_add_u32 s41, s41, s36")
    k("s_lshl_b32 s43, s%d, 15", s_seg)
    k("s_add_u32 s42, s43, s40")
    k("buffer_load_dwordx4 v[120:123], v4, %s, s42 offen %s", W, LD)
    for ks in range(11):
        if ks % 4 == 0: k("s_add_u32 s42, s41, %d", ks * 1024)
        k("buffer_load_dwordx4 %s, v%d, %s, s42 offen offset:%d %s", v(AF + ks * 4, 4), 5 if ks == 10 else 4, W, (ks % 4) * 1024, LD)
    for ks in range(11):
        k("s_waitcnt vmcnt(%d)", 10 - ks)
        for t in range(2): k(MF(AC + t * 4, WREG + (t * 11 + ks) * 4, AF + ks * 4, ks == 0))
        if ks < 4:
            k("v_lshlrev_b32 %s, 16, %s", v(96 + 2 * ks), v(120 + ks))
            k("v_and_b32 %s, 0xffff0000, %s", v(97 + 2 * ks), v(120 + ks))
    lstamp(k, 2)
    if wait_final:
        k("v_cmp_u_f32 vcc, %s, %s", v(AC), v(96))
        k("s_cbranch_vccnz %s", lfb)
        k.L(lgo)
    k("s_cmp_eq_u32 s%d, 3", S_WAVE)
    k("s_cbranch_scc1 %s", lw3)
    for i in range(2): k("ds_write_b128 v6, %s offset:%d", v(AC + 4 * i, 4), i * 1024)
    k("s_waitcnt lgkmcnt(0)")
    k("s_barrier")
    k("s_branch %s", lsk)
    k.L(lw3)
    k("s_barrier")
    for w in range(3):
        for t in range(2): k("ds_read_b128 %s, v7 offset:%d", v(AF + 8 * w + 4 * t, 4), w * 2048 + t * 1024)
    for w in range(3):
        k("s_waitcnt lgkmcnt(%d)", 4 - 2 * w)
        for i in range(0, 8, 2): k("v_pk_add_f32 %s, %s, %s", v(AC + i, 2), v(AC + i, 2), v(AF + 8 * w + i, 2))
    for i in range(0, 8, 2): k(CV(80 + i // 2, AC + i, AC + i + 1))
    for i in range(0, 8, 2):
        k("v_lshlrev_b32 %s, 16, %s", v(AC + i), v(80 + i // 2))
        k("v_and_b32 %s, 0xffff0000, %s", v(AC + i + 1), v(80 + i // 2))
    for i in range(0, 8, 2): k("v_pk_add_f32 %s, %s, %s", v(AC + i, 2), v(AC + i, 2), v(96 + i, 2))
    for i in range(0, 8, 2): k(CV(84 + i // 2, AC + i, AC + i + 1))
    k("s_add_u32 s42, s43, s39")
    k("buffer_store_dwordx4 v[84:87], v12, %s, s42 offen %s", s(S_O, 4), k.copt.get('ost', ''))
    k.L(lsk)
    lstamp(k, 4)
    k("v_xor_b32 v6, 0x4000, v6")
    k("v_xor_b32 v7, 0x4000, v7")
    k("s_add_u32 s%d, s%d, %d", s_seg, s_seg, nstride)
    k("s_cmp_lt_u32 s%d, 64", s_seg)
    k("s_cbranch_scc1 %s", lp)
    if wait_final:
        k("s_branch %s", lend)
        k.L(lfb)
        k("s_cmp_lt_u32 s%d, s73", s_seg)
        k("s_cbranch_scc1 %s", lgo)
        k("s_mov_b32 s73, 64")
        wait_final(k, s_seg)
        k("s_branch %s", lre)
        k.L(lend)
```

```python
import sys, json
from build_v1 import header_comments
from chain15 import *
from roles2 import *
KN = NAME + "_kernel"
def build(opts={}, stamps=False, ticks=False):
    k = K(); k.stamps = stamps; k.ticks = ticks; k.copt = opts; k.merged = True
    kernel_header(k, KN)
    lend = k.lab("END")
    lstamp(k, 6)
    if opts.get('dst'): k("s_memrealtime s[98:99]")
    k("s_cmp_ge_u32 s2, 256")
    k("s_cbranch_scc1 %s", lend)
    load_srd(k, 'ws', S_WS); load_srd(k, 'dbg', S_DBG)
    if opts.get('home'): k("s_xor_b32 s2, s2, %d", opts['home'])
    lane_wave(k)
    k("s_mov_b32 s%d, 400000", S_SPIN)
    if opts.get('allwarm'):
        law = k.lab("AW"); lpc = k.lab("AWpc")
        k("s_cmp_ge_u32 s2, 64")
        k("s_cbranch_scc1 %s", law)
        k("s_cmp_lg_u32 s%d, 3", S_WAVE)
        k("s_cbranch_scc1 %s", law)
        k("s_getpc_b64 s[60:61]")
        k.L(lpc)
        k("s_lshr_b32 s44, s2, 3")
        k("s_lshl_b32 s44, s44, 13")
        k("v_lshlrev_b32 v2, 7, v1")
        k("v_add_u32 v2, s44, v2")
        k("v_min_u32 v2, %s-%s, v2", lend, lpc)
        k("global_load_dword v119, v2, s[60:61]")
        k("global_load_dword v3, v2, s[60:61] offset:-64") if False else None
        k.L(law)
    ROLE = 5
    k("s_getreg_b32 s54, hwreg(HW_REG_XCC_ID)")
    k("s_and_b32 s54, s54, 7")
    k("s_add_u32 s54, s54, 1")
    k("s_mov_b32 s3, s2")
    k("s_mov_b32 s101, 0")
    lsw = k.lab("SWAP"); lrd = k.lab("ROLED"); lw = k.lab("WORK")
    k("s_or_b32 s44, s2, s%d", S_WAVE)
    k("s_cmp_lg_u32 s44, 0")
    k("s_cbranch_scc1 %s", lrd)
    k("s_waitcnt lgkmcnt(0)")
    fin_srd(k, 'dbg', S_DBG)
    k("v_mov_b32 v2, 0"); k("v_mov_b32 v3, %s", str(opts['die'] + 1) if 'die' in opts else "s54")
    k("buffer_store_dword v3, v2, %s, 0 offen offset:%d sc1", s(S_DBG, 4), DBG_T)
    k.L(lrd)
    k("s_and_b32 s%d, s3, 7", ROLE)
    k("s_lshl_b32 s%d, s%d, 5", ROLE, ROLE)
    k("s_lshr_b32 s3, s3, 3")
    k("s_add_u32 s%d, s%d, s3", ROLE, ROLE)
    k("s_cmp_ge_u32 s%d, 32", ROLE)
    k("s_cbranch_scc1 %s", lw)
    k.lswap = lsw
    role_chain(k, opts.get('slow', False))
    lstamp_dump(k, ROLE)
    k("s_branch %s", lend)
    k.L(lsw)
    lo = k.lab("SWo"); lp = k.lab("SWp"); ld = k.lab("SWd"); lc = k.lab("SWc")
    k("s_waitcnt vmcnt(0) lgkmcnt(0)")
    k("s_barrier")
    k("s_mov_b32 s101, 1")
    k("s_mov_b32 s3, s2")
    k("s_and_b32 s47, s2, 7")
    k("s_cmp_eq_u32 s47, 0")
    k("s_cselect_b32 s47, 1, 0")
    k("s_xor_b32 s46, s47, 1")
    k("v_mbcnt_lo_u32_b32 v1, -1, 0")
    k("v_mbcnt_hi_u32_b32 v1, -1, v1")
    k("s_lshl_b32 s44, s%d, 6", S_WAVE)
    k("v_add_u32 v0, s44, v1")
    k("s_cmp_lg_u32 s%d, 0", S_WAVE)
    k("s_cbranch_scc1 %s", lo)
    k("s_mov_b64 exec, 1")
    k("s_lshl_b32 s48, s47, 2")
    k("v_mov_b32 v2, 0"); k("v_mov_b32 v4, 1")
    k("buffer_atomic_add v4, v2, %s, s48 offen sc0 sc1", s(S_DBG, 4))
    k("s_lshl_b32 s49, s47, 4")
    k("s_lshl_b32 s50, s46, 4")
    k("s_add_u32 s51, s2, 1")
    k("s_lshl_b32 s51, s51, s49")
    k("s_waitcnt vmcnt(0)")
    k("v_readfirstlane_b32 s48, v4")
    k("s_cmp_ge_u32 s48, %d", opts.get('maxpair', 32))
    k("s_cbranch_scc1 %s", ld)
    k("s_lshl_b32 s48, s48, 2")
    k("s_add_u32 s48, s48, 64")
    k("v_mov_b32 v4, s51")
    k("buffer_atomic_or v4, v2, %s, s48 offen sc0 sc1", s(S_DBG, 4))
    k("s_mov_b32 s52, 0")
    k.L(lp)
    k("s_waitcnt vmcnt(0)")
    k("v_readfirstlane_b32 s53, v4")
    k("s_lshr_b32 s44, s53, s49")
    k("s_and_b32 s44, s44, 0xffff")
    k("s_cmp_eq_u32 s44, 0xffff")
    k("s_cbranch_scc1 %s", ld)
    k("s_lshr_b32 s53, s53, s50")
    k("s_and_b32 s53, s53, 0xffff")
    k("s_cmp_lg_u32 s53, 0")
    k("s_cbranch_scc1 %s", lc)
    k("s_cmp_gt_u32 s52, 400")
    k("s_cbranch_scc1 %s", ld)
    k("s_add_u32 s52, s52, 1")
    k("buffer_load_dword v4, v2, %s, s48 offen sc1", s(S_DBG, 4))
    k("s_cmp_le_u32 s52, 400")
    k("s_cbranch_scc1 %s", lp)
    k("s_waitcnt vmcnt(0)")
    k("s_lshl_b32 s53, 0xffff, s50")
    k("s_or_b32 s53, s53, s51")
    k("v_mov_b32 v4, s53"); k("v_mov_b32 v5, s51")
    k("buffer_atomic_cmpswap v[4:5], v2, %s, s48 offen sc0 sc1", s(S_DBG, 4))
    k("s_branch %s", lp)
    k.L(lc)
    k("s_sub_u32 s3, s53, 1")
    k("s_and_b32 s3, s3, 255")
    k.L(ld)
    k("v_mov_b32 v3, s3"); k("v_mov_b32 v2, 163328")
    k("ds_write_b32 v2, v3")
    k("s_mov_b64 exec, -1")
    k("s_waitcnt lgkmcnt(0)")
    k.L(lo)
    k("s_barrier")
    k("v_mov_b32 v2, 163328")
    k("ds_read_b32 v3, v2")
    k("s_waitcnt lgkmcnt(0)")
    k("v_readfirstlane_b32 s3, v3")
    k("s_branch %s", lrd)
    k.L(lw)
    srds = [('x', S_X), ('out', S_O)]
    for n, r in srds: load_srd(k, n, r)
    k("s_waitcnt lgkmcnt(0)")
    for n, r in srds + [('ws', S_WS), ('dbg', S_DBG)]: fin_srd(k, n, r)
    k("s_mov_b32 s100, s54")
    def tcheck(k):
        lnt = k.lab("NT"); lgo = k.lab("NTs")
        k("s_cmp_lg_u32 s101, 0")
        k("s_cbranch_scc1 %s", lnt)
        wait_ready(k, 2, DBG_T)
        k("v_readfirstlane_b32 s44, v2")
        k("s_cmp_lg_u32 s44, s100")
        k("s_cbranch_scc1 %s", lnt)
        k("s_mov_b32 s54, s100")
        k("s_branch %s", lsw)
        k.L(lnt)
    lz = k.lab("Z")
    k("s_lshl_b32 s44, s101, 8")
    k("s_or_b32 s44, s44, s2")
    k("s_cmp_lg_u32 s44, 7")
    k("s_cbranch_scc1 %s", lz)
    k("s_cmp_lg_u32 s%d, 1", S_WAVE)
    k("s_cbranch_scc1 %s", lz)
    for i in range(4): k("v_mov_b32 v%d, 0", 4 + i)
    k("v_lshlrev_b32 v8, 4, v1")
    k("s_mov_b32 s40, 0x%x", FLAGS)
    for i in range(2): k("buffer_store_dwordx4 v[4:7], v8, %s, s40 offen offset:%d sc1", s(S_WS, 4), i * 1024)
    k("v_lshlrev_b32 v8, 7, v1")
    for i in range(12):
        k("s_mov_b32 s40, 0x%x", FLAGS + 0x2000 + i * 0x2000)
        k("buffer_store_dwordx4 v[4:7], v8, %s, s40 offen sc1", s(S_WS, 4))
    k("v_mov_b32 v9, 1")
    k("s_waitcnt vmcnt(0)")
    k("s_mov_b64 exec, 1")
    k("buffer_store_dword v9, v4, %s, 0 offen offset:%d sc1", s(S_DBG, 4), DBG_READY)
    k("s_mov_b64 exec, -1")
    k.L(lz)
    k("s_cmp_ge_u32 s%d, 256", ROLE)
    k("s_cbranch_scc1 %s", lend)
    stamp(k, 3, 0, wgreg=ROLE, vt=120)
    GRP, TK_, SEG, FO, FI = 54, 55, 7, 56, 57
    k("s_lshr_b32 s%d, s%d, 5", GRP, ROLE)
    k("s_and_b32 s%d, s%d, 31", TK_, ROLE)
    lq = k.lab("DOQKV"); l2 = k.lab("ROLE2")
    k("s_cmp_ge_u32 s%d, 2", GRP)
    k("s_cbranch_scc1 %s", lq)
    k("s_lshl_b32 s%d, s%d, 2", FO, TK_)
    k("s_add_u32 s%d, s%d, 0x%x", FO, FO, FLAGS + F_XN)
    def ln_after(k, scount):
        ls = k.lab("LNs")
        k("s_cmp_lg_u32 s%d, 1", scount)
        k("s_cbranch_scc1 %s", ls)
        tcheck(k)
        wait_ready(k, 2)
        k.L(ls)
        set_flag(k, FO, "s%d" % scount, 2)
    role_ln1(k, TK_, 4, ln_after)
    k("s_branch %s", l2)
    k.L(lq)
    k("s_sub_u32 s58, s%d, 64", ROLE)
    def pre_loop(k):
        tcheck(k)
        wait_ready(k, 2)
        k("v_and_b32 v8, 31, v1")
        k("v_lshlrev_b32 v8, 2, v8")
        k("s_mov_b32 s%d, 0x%x", FI, FLAGS + F_XN)
        k("s_mov_b32 s%d, 0", SEG)
        wait_flags(k, 8, FI, SEG, 2)
        k("s_lshl_b32 s%d, s32, 1", FO)
        k("s_add_u32 s%d, s%d, s34", FO, FO)
        k("s_lshl_b32 s%d, s%d, 2", FO, FO)
        k("s_lshl_b32 s40, s33, 5")
        k("s_add_u32 s%d, s%d, s40", FO, FO)
        k("s_add_u32 s%d, s%d, 0x%x", FO, FO, FLAGS + F_QF)
        k("s_sub_u32 s%d, s34, 3", SEG)
    def q_publish(k):
        k("s_max_i32 s40, s%d, 0", SEG)
        set_flag(k, FO, "s40", 2, drain=False)
        k("s_add_u32 s%d, s%d, 2", SEG, SEG)
    def q_pre_dma(k):
        ls = k.lab("QPd")
        k("s_cmp_lg_u32 s52, 8")
        k("s_cbranch_scc1 %s", ls)
        k("s_mov_b32 s58, 3")
        wait_flags(k, 8, FI, 58, 2)
        k.L(ls)
    for _ in range(opts.get('wdelay', 0)): k("s_sleep 37")
    if opts.get('qdelay'):
        lqd = k.lab("QD"); lqo = k.lab("QDo")
        k("s_cmp_lt_u32 s58, 128")
        k("s_cbranch_scc1 %s", lqo)
        k("v_mov_b32 v3, 0"); k("s_mov_b32 s59, 0")
        k.L(lqd)
        k("buffer_load_dword v2, v3, %s, 0 offen offset:8 sc1", s(S_DBG, 4))
        k("s_waitcnt vmcnt(0)")
        k("v_readfirstlane_b32 s40, v2")
        k("s_and_b32 s40, s40, 0xffff")
        k("s_cmp_ge_u32 s40, 32")
        k("s_cbranch_scc1 %s", lqo)
        k("s_sleep 16")
        k("s_add_u32 s59, s59, 1")
        k("s_cmp_lt_u32 s59, 20000")
        k("s_cbranch_scc1 %s", lqd)
        k.L(lqo)
    role_qkv(k, 58, q_pre_dma, q_publish, pre_loop)
    set_flag(k, FO, "0x80", 2)
    k.L(l2)
    stamp(k, 3, 1, wgreg=ROLE, vt=120)
    dstamp(k, 8, 120)
    k("s_waitcnt vmcnt(0)")
    k("s_barrier")
    lur = k.lab("UR"); ldn = k.lab("DN"); lrd = k.lab("RD"); lfin = k.lab("FIN")
    if opts.get('nowork'): k("s_branch %s", lfin)
    k("s_cmp_ge_u32 s%d, 4", GRP)
    k("s_cbranch_scc1 %s", lur)
    k("s_sub_u32 s%d, s%d, 1", SEG, GRP)
    k("s_lshl_b32 s%d, s%d, 12", FO, SEG)
    k("s_lshl_b32 s40, s%d, 7", TK_)
    k("s_add_u32 s%d, s%d, s40", FO, FO)
    k("s_add_u32 s%d, s%d, 0x%x", FO, FO, FLAGS + F_BF)
    def wait_qkv(k, sseg):
        lsk = k.lab("wq")
        k("s_cmp_lt_u32 s%d, s72", sseg)
        k("s_cbranch_scc1 %s", lsk)
        k("v_min_u32 v3, 5, v1")
        k("v_lshlrev_b32 v3, 2, v3")
        k("s_lshl_b32 s%d, s34, 5", FI)
        k("s_add_u32 s%d, s%d, 0x%x", FI, FI, FLAGS + F_QF)
        wait_flags(k, 3, FI, sseg, 2)
        k("v_cmp_gt_u32 vcc, 0x80, v2")
        k("s_cmp_eq_u64 vcc, 0")
        k("s_cselect_b32 s72, 64, 0")
        k.L(lsk)
        return
        k("v_min_u32 v3, 2, v1")
        k("v_lshlrev_b32 v3, 3, v3")
        k("s_and_b32 s%d, s%d, 1", FI, sseg)
        k("s_lshl_b32 s%d, s%d, 2", FI, FI)
        k("s_lshl_b32 s58, s34, 5")
        k("s_add_u32 s%d, s%d, s58", FI, FI)
        k("s_add_u32 s%d, s%d, 0x%x", FI, FI, FLAGS + F_QF)
        wait_flags(k, 3, FI, sseg, 2)
    def wait_kvm(k, sseg):
        k("v_and_b32 v3, 3, v1")
        k("v_lshlrev_b32 v3, 7, v3")
        k("s_lshl_b32 s%d, s34, 9", FI)
        k("s_add_u32 s%d, s%d, 0x%x", FI, FI, FLAGS + F_KF)
        wait_flags(k, 3, FI, sseg, 2)
    H = opts.get('hint', 1)
    k.narm = opts.get('narm', 2) if H else 0
    A0 = 64 - 3 * k.narm
    def publish(k, sseg):
        k("s_lshl_b32 s58, s%d, 1", sseg)
        k("s_add_u32 s58, s58, 2")
        set_flag(k, FO, "s58", 2)
    def hint(k, sseg, bar=False):
        if bar and opts.get('h1', 1): return
        l = k.lab("hn")
        k("s_cmp_lt_u32 s%d, %d", sseg, A0)
        k("s_cbranch_scc1 %s", l)
        if bar: k("s_barrier")
        k("s_lshl_b32 s58, s%d, 1", sseg)
        k("s_add_u32 s58, s58, 1")
        k("s_add_u32 s75, s%d, 0x%x", FO, opts.get('hoff', 0xA000))
        set_flag(k, 75, "s58", 2, drain=False)
        k.L(l)
    def wfin(va):
        def f(k, sseg):
            k("s_lshl_b32 s58, s%d, 1", sseg)
            k("s_add_u32 s58, s58, 1")
            wait_flags(k, va, FI, 58, 2)
        return f
    def wnorm(va):
        def f(k, sseg):
            k("s_cmp_lt_u32 s%d, %d", sseg, A0)
            k("s_cselect_b32 s75, 0, 0x%x", opts.get('hoff', 0xA000))
            k("s_addc_u32 s58, s%d, s%d", sseg, sseg)
            k("s_add_u32 s75, s75, s%d", FI)
            if opts.get('ff', 0): wait_flags_fast(k, va, 75, 58, [124, 125, 126, 127][:opts.get('nf', 3)])
            else: wait_flags(k, va, 75, 58, 2, wave0=True)
        return f
    if not H: hint = None
    k("s_mov_b32 s72, 0")
    role_bc(k, TK_, SEG, 3, wait_qkv, wait_kvm, publish, hint)
    dstamp(k, 10, 120); dstamp(k, 13, 120, False, 76); dstamp(k, 2, 120, True, 76)
    k("s_branch %s", lfin)
    k.L(lur)
    k("s_cmp_eq_u32 s%d, 7", GRP)
    k("s_cbranch_scc1 %s", ldn)
    k("s_sub_u32 s%d, s%d, 4", SEG, GRP)
    k("s_lshl_b32 s%d, s%d, 12", FI, SEG)
    k("s_cmp_ge_u32 s%d, 22", TK_)
    k("s_cbranch_scc1 %s", lrd)
    k("s_lshl_b32 s40, s%d, 7", TK_)
    k("s_add_u32 s%d, s%d, s40", FO, FI)
    k("s_add_u32 s%d, s%d, 0x%x", FO, FO, FLAGS + F_UF)
    k("s_add_u32 s%d, s%d, 0x%x", FI, FI, FLAGS + F_RF)
    k("v_and_b32 v13, 7, v1")
    k("v_lshlrev_b32 v13, 7, v13")
    role_up(k, TK_, SEG, 3, None, None, publish, wnorm(13), hint, wfin(13))
    dstamp(k, 12, 120)
    k("s_branch %s", lfin)
    k.L(lrd)
    k("s_cmp_ge_u32 s%d, 30", TK_)
    k("s_cbranch_scc1 %s", lfin)
    k("s_sub_u32 s%d, s%d, 22", TK_, TK_)
    k("s_lshl_b32 s40, s%d, 7", TK_)
    k("s_add_u32 s%d, s%d, s40", FO, FI)
    k("s_add_u32 s%d, s%d, 0x%x", FO, FO, FLAGS + F_RF)
    k("s_add_u32 s%d, s%d, 0x%x", FI, FI, FLAGS + F_BF)
    k("v_and_b32 v15, 31, v1")
    k("v_lshlrev_b32 v15, 7, v15")
    role_red(k, TK_, SEG, 3, wnorm(15), publish, hint, wfin(15))
    dstamp(k, 11, 120)
    k("s_branch %s", lfin)
    k.L(ldn)
    k("s_lshr_b32 s72, s%d, 4", TK_)
    k("s_mov_b32 s%d, 0", SEG)
    k("s_and_b32 s%d, s%d, 15", TK_, TK_)
    k("v_min_u32 v13, 21, v1")
    k("v_lshlrev_b32 v13, 7, v13")
    def wait_up(k, sseg):
        k("s_mul_i32 s58, s%d, 43", sseg)
        k("s_lshr_b32 s58, s58, 7")
        k("s_mul_i32 s58, s58, 3")
        k("s_sub_u32 s58, s%d, s58", sseg)
        k("s_lshl_b32 s%d, s58, 12", FI)
        k("s_add_u32 s%d, s%d, 0x%x", FI, FI, FLAGS + F_UF)
        wnorm(13)(k, sseg)
    role_dn(k, TK_, SEG, 1, 72, wait_up, wfin(13) if H else None)
    k('s_waitcnt lgkmcnt(0)'); dstamp(k, 14, 120, False, 76); dstamp(k, 15, 120, False, 78)
    k.L(lfin)
    stamp(k, 3, 2, wgreg=ROLE, vt=120)
    dstamp(k, 9, 120); dstamp(k, 3, 120, True, 98); dstamp(k, 4, 120, False, 98)
    lstamp_dump(k, ROLE)
    k.L(lend)
    k("s_endpgm")
    body = insert_nops(auto_wait(k.lines))
    hdr = header_comments([])
    hdr.append('; @launch grid=(256,1,1) block=(256,1,1) lds=163840')
    return '\n'.join(hdr) + '\n.amdgcn_target "amdgcn-amd-amdhsa--gfx950"\n.text\n' + '\n'.join(body) + \
        '\n.section .rodata,"a"\n.p2align 6\n' + kernel_desc(KN)
if __name__ == '__main__':
    o = {"lazy": 1, "p0a": 42, "p0b": 39, "p1a": 40, "p1b": 40, "p2": [17, 36], "w1a": 8, "w1b": 8, "p2a": 4, "hbc": 22, "hr": 1, "hu": 0, "hu2": 14, "narm": 3, "kvl": 60, "wd": 3, "slpk": 4, "w1": 14, "b0": 6, "w2": 14, "ns1": 0, "ns2": 0, "ho": 4}
    if len(sys.argv) > 1: o.update(json.loads(sys.argv[1]))
    open('m.s', 'w').write(build(o))
    open('ms.s', 'w').write(build(o, stamps=True))
```

```python
from roles import *
import struct
def f2u(x): return struct.unpack('<I', struct.pack('<f', x))[0]

L_KT = 131072
L_MB = L_KT + 16384
L_XB = L_MB + 8192
L_OB = L_XB + 5120
L_MISC_ = L_OB + 2560
WQ, WK, WO = 256, 384, 128
aM = [2, 3, 4, 5]; aXW = 6; aXR = 7; aOW = 8; aWV = 9; aKT = 10; aL16 = 11
aH1S = 12; aWO = 13; aH1L = 11; aH2S = 14; IDX = 15
KVM = 16
SEL = 20
VTN = 24
MA = 32; AQ = 64; AK = 72; AV = 80; G = 88; VT = 120
S_HEAD = 5; S_LIM = 6; S_STEP = 7
S_WQ, S_WK, S_WV, S_WO = 12, 16, 20, 28
sH1S0, sH1S1, sH1L, sH2S, sH2L = 32, 33, 34, 35, 36
sKV = 37; sKTD = 38; sKM = 39; sVIM = 40; sC = 41; sCNT = 42; sT = 43
sH1R = 50; sH2R = 51; sMASK = 52
sPH = 50; sTHR = 49; sSAFE = 55; sQF = 46; sKF = 47; aFL = 0; aFL4 = 0
CSC = 0.08838834764831845 * 1.4426950408889634
VORD = [0, 2, 4, 6, 1, 3, 5, 7]
CT = MA

from chain import elect, xmax
def tick(k, i):
    if getattr(k, 'ticks', False): k("s_memtime s[%d:%d]", 64 + 2 * i, 65 + 2 * i)
def tick_init(k):
    if not getattr(k, 'ticks', False): return
    for i in range(96, 100): k("s_mov_b32 s%d, 0", i)
def tick_step_end(k):
    if not getattr(k, 'ticks', False): return
    l = k.lab("tse")
    k("s_cmp_lg_u32 s%d, %d", S_STEP, k.copt.get('tstep', 41))
    k("s_cbranch_scc1 %s", l)
    k("s_waitcnt vmcnt(0) lgkmcnt(0)")
    k("s_lshl_b32 s100, s%d, 2", S_HEAD)
    k("s_add_u32 s100, s100, s%d", S_WAVE)
    k("s_lshl_b32 s100, s100, 7")
    k("s_add_u32 s100, s100, 0x%x", TS + 8 * 65536)
    k("v_mov_b32 v41, 0")
    for i in range(16):
        k("v_mov_b32 v40, s%d", 64 + 2 * i)
        k("buffer_store_dword v40, v41, %s, s100 offen offset:%d", s(S_WS, 4), 4 * i)
    for e in range(2):
        lw = k.lab("cal")
        k("s_memrealtime s[64:65]")
        k("s_waitcnt lgkmcnt(0)")
        if e: k("s_add_u32 s64, s64, 100")
        k.L(lw)
        k("s_memrealtime s[66:67]")
        k("s_memtime s[68:69]")
        k("s_waitcnt lgkmcnt(0)")
        k("s_sub_u32 s70, s64, s66")
        k("s_cmp_ge_i32 s70, 0")
        k("s_cbranch_scc1 %s", lw)
        k("v_mov_b32 v40, s66")
        k("buffer_store_dword v40, v41, %s, s100 offen offset:%d", s(S_WS, 4), 80 + 8 * e)
        k("v_mov_b32 v40, s68")
        k("buffer_store_dword v40, v41, %s, s100 offen offset:%d", s(S_WS, 4), 84 + 8 * e)
    k.L(l)
def tick_dump(k):
    if not getattr(k, 'ticks', False): return
    k("v_mov_b32 v41, 0")
    for i in range(4):
        k("v_mov_b32 v40, s%d", 96 + i)
        k("buffer_store_dword v40, v41, %s, s100 offen offset:%d", s(S_WS, 4), 64 + 4 * i)

def SMF(acc, A, B): return "v_smfmac_f32_16x16x64_bf16 %s, %s, %s, %s" % (v(acc, 4), v(A, 4), u(B, 8), v(IDX))
def MF(d, A, B, first): return "v_mfma_f32_16x16x32_bf16 %s, %s, %s, %s" % (v(d, 4), v(A, 4), v(B, 4), "0" if first else v(d, 4))
def M16(d, A, B): return "v_mfma_f32_16x16x16_bf16 %s, %s, %s, %s" % (v(d, 4), v(A, 2), v(B, 2), v(d, 4))

def chain_setup(k):
    w = S_WAVE
    k.c("---- chain setup: addresses")
    k("v_lshlrev_b32 %s, 4, v1", v(aL16))
    for jp in range(4):
        k("s_xor_b32 s%d, s%d, %d", sT, w, jp)
        k("s_lshl_b32 s%d, s%d, 11", sT, sT)
        k("s_add_u32 s%d, s%d, %d", sT, sT, L_MB)
        k("v_add_u32 %s, s%d, %s", v(aM[jp]), sT, v(aL16))
    k("v_and_b32 v90, 15, v1")
    k("v_lshrrev_b32 v91, 4, v1")
    k("v_bfe_u32 v92, v1, 2, 2")
    k("v_and_b32 v93, 3, v1")
    k("v_mul_u32_u24 v94, 320, v91")
    k("v_lshl_add_u32 v94, v90, 3, v94")
    k("s_mul_i32 s%d, s%d, 1280", sT, w)
    k("s_add_u32 s%d, s%d, %d", sT, sT, L_XB)
    k("v_add_u32 %s, s%d, v94", v(aXW), sT)
    k("s_lshr_b32 s%d, s%d, 1", sT, w)
    k("s_mul_i32 s%d, s%d, 1280", sT, sT)
    k("s_and_b32 s%d, s%d, 1", sCNT, w)
    k("s_lshl_b32 s%d, s%d, 7", sCNT, sCNT)
    k("s_add_u32 s%d, s%d, s%d", sT, sT, sCNT)
    k("s_add_u32 s%d, s%d, %d", sT, sT, L_OB)
    k("v_add_u32 %s, s%d, v94", v(aOW), sT)
    k("v_mul_u32_u24 v94, 320, v93")
    k("v_lshrrev_b32 v95, 2, v1")
    k("v_lshl_add_u32 v94, v95, 3, v94")
    k("v_add_u32 %s, %d, v94", v(aXR), L_XB)
    k("s_lshl_b32 s%d, s%d, 14", sT, w)
    k("v_add_u32 %s, s%d, %s", v(aWV), sT, v(aL16))
    k("v_add_u32 %s, 0x10000, %s", v(aWO), v(aWV))
    k("v_add_u32 %s, %d, %s", v(aKT), L_KT, v(aL16))
    k("v_lshrrev_b32 v94, 3, v90")
    k("v_lshl_add_u32 v94, v94, 2, v91")
    k("v_lshlrev_b32 v94, 13, v94")
    k("v_and_b32 v95, 7, v1")
    k("v_lshl_add_u32 %s, v95, 3, v94", v(aH1S))
    k("v_lshlrev_b32 v94, 4, v91")
    k("v_lshl_add_u32 v94, v93, 2, v94")
    k("v_mov_b32 v95, v92")
    k("v_cmp_eq_u32 vcc, 0, v95")
    k("v_mov_b32 v95, 0x40000000")
    k("v_cndmask_b32 %s, v95, v94, vcc", v(aH2S))
    k("v_and_b32 v94, 2, v1")
    k("v_cmp_eq_u32 vcc, 0, v94")
    k("v_mov_b32 v94, 0x44444444")
    k("v_mov_b32 v95, 0xeeeeeeee")
    k("v_cndmask_b32 %s, v95, v94, vcc", v(IDX))
    k("v_mov_b32 v94, 0x3f80")
    k("v_mov_b32 v95, 0x3f800000")
    for d in range(4):
        k("v_cmp_eq_u32 vcc, %d, v90", 4 * d)
        k("v_cndmask_b32 %s, 0, v94, vcc", v(SEL + d))
        k("v_cmp_eq_u32 vcc, %d, v90", 4 * d + 1)
        k("v_cndmask_b32 %s, %s, v95, vcc", v(SEL + d), v(SEL + d))
    k("s_lshl_b32 s%d, s%d, 16", sT, w)
    k("s_lshl_b32 s%d, s%d, 6", sH1S0, S_HEAD)
    k("s_add_u32 s%d, s%d, s%d", sH1S0, sH1S0, sT)
    k("s_add_u32 s%d, s%d, 0x%x", sH1S0, sH1S0, HOP1)
    k("s_add_u32 s%d, s%d, 0x1000", sH1S1, sH1S0)
    k("s_lshl_b32 s%d, s%d, 2", sH1L, S_HEAD)
    k("s_add_u32 s%d, s%d, s%d", sH1L, sH1L, w)
    k("s_lshl_b32 s%d, s%d, 11", sH1L, sH1L)
    k("s_add_u32 s%d, s%d, 0x%x", sH1L, sH1L, HOP1)
    k("s_lshr_b32 s%d, s%d, 3", sH2S, S_HEAD)
    k("s_lshl_b32 s%d, s%d, 11", sH2S, sH2S)
    k("s_and_b32 s%d, s%d, 7", sT, S_HEAD)
    k("s_lshl_b32 s%d, s%d, 6", sT, sT)
    k("s_add_u32 s%d, s%d, s%d", sH2S, sH2S, sT)
    k("s_lshl_b32 s%d, s%d, 9", sT, w)
    k("s_add_u32 s%d, s%d, s%d", sH2S, sH2S, sT)
    k("s_add_u32 s%d, s%d, 0x%x", sH2S, sH2S, HOP2)
    k("s_lshl_b32 s%d, s%d, 11", sH2L, w)
    k("s_add_u32 s%d, s%d, 0x%x", sH2L, sH2L, HOP2)
    k("s_lshl_b32 s%d, s%d, 13", sKV, S_HEAD)
    k("s_lshl_b32 s%d, s%d, 11", sT, w)
    k("s_add_u32 s%d, s%d, s%d", sKV, sKV, sT)
    k("s_add_u32 s%d, s%d, 0x%x", sVIM, sKV, VIMG)
    k("s_add_u32 s%d, s%d, 0x%x", sKV, sKV, KIMG)
    k("s_add_u32 s%d, s%d, %d", sKTD, sT, L_KT)
    k("s_lshl_b32 s%d, s%d, 12", sKM, S_HEAD)
    k("s_lshl_b32 s%d, s%d, 10", sT, w)
    k("s_add_u32 s%d, s%d, s%d", sKM, sKM, sT)
    k("s_add_u32 s%d, s%d, 0x%x", sKM, sKM, KM - 0x20000)
    k("s_mov_b32 s%d, 0x%x", sC, f2u(CSC))
    k("s_mov_b32 s%d, 400000", S_LIM)
    k("s_mov_b32 s%d, 0x33333333", sMASK)
    k("s_mov_b32 s%d, 0x33333333", sMASK + 1)
    k("s_mov_b32 s%d, 0", sPH)
    k("s_xor_b32 s%d, s%d, 0x2000", sH2R, sH2S)

def merged_setup(k):
    k("s_lshl_b32 s%d, s%d, 7", sQF, S_HEAD)
    k("s_add_u32 s%d, s%d, 0x%x", sQF, sQF, FLAGS + F_QF)
    k("s_lshl_b32 s%d, s%d, 7", sKF, S_HEAD)
    k("s_add_u32 s%d, s%d, 0x%x", sKF, sKF, FLAGS + F_KF)
    k("v_lshlrev_b32 %s, 2, v93", v(aFL))

def kv_refresh(k, plus, back=None):
    lp = k.lab("kvr"); ok = k.lab("kvok")
    k("s_mov_b32 s%d, 0", sCNT)
    k("s_add_u32 s%d, s%d, %d", sT, S_STEP, plus)
    k.L(lp)
    k("buffer_load_dword v1, %s, %s, s%d offen sc1", v(aFL), s(S_WS, 4), sQF)
    k("s_waitcnt vmcnt(0)")
    k("v_cmp_ge_u32 vcc, s%d, v1", sT)
    k("s_cbranch_vccz %s", ok)
    k("s_sleep 2")
    k("s_add_u32 s%d, s%d, 1", sCNT, sCNT)
    k("s_cmp_lt_u32 s%d, s%d", sCNT, S_LIM)
    k("s_cbranch_scc1 %s", lp)
    k("s_mov_b32 s%d, 0", S_LIM)
    k.L(ok)
    if back: k("s_branch %s", back)

import chain as _c1
def chain_arm(k):
    k.c("---- arm hop buffers (both slots), sc1")
    for i in range(4): k("v_mov_b32 %s, -1", v(96 + i))
    for slot in range(2):
        k("s_add_u32 s%d, s%d, 0x%x", sT, sH1L, slot * 262144)
        k("buffer_store_dwordx4 v[96:99], %s, %s, s%d offen sc1", v(aL16), s(S_WS, 4), sT)
        k("buffer_store_dwordx4 v[96:99], %s, %s, s%d offen offset:1024 sc1", v(aL16), s(S_WS, 4), sT)
    k("buffer_store_dword v96, %s, %s, s%d offen sc1", v(aH2S), s(S_WS, 4), sH2R)
load_mem0 = _c1.load_mem0
WVR_ = 128
WOR_ = 192

def chain_load_weights(k, hooks={}, pre_issue={}, after_first=None):
    w = S_WAVE
    k.c("---- chain weight load")
    k("v_and_b32 v90, 15, v1")
    k("v_lshrrev_b32 v91, 4, v1")
    k("s_and_b32 s44, s%d, 1", w)
    k("s_lshl_b32 s44, s44, 2")
    k("v_xor_b32 v120, s44, v90")
    k("v_and_b32 v121, 1, v91")
    k("v_lshlrev_b32 v121, 3, v121")
    k("v_xor_b32 v120, v120, v121")
    k("v_lshlrev_b32 v120, 4, v120")
    k("v_lshl_add_u32 v120, v91, 13, v120")
    k("s_lshl_b32 s45, s%d, 8", S_HEAD)
    k("s_lshl_b32 s48, s%d, 17", w)
    k("s_add_u32 s45, s45, s48")
    k("s_lshl_b32 s44, s%d, 12", w)
    sc = [('q', 0), ('q', 1), ('k', 0), ('k', 1), ('v', 1), ('o', 0), ('v', 0), ('o', 1)]
    srds = dict(q=S_WQ, k=S_WK, v=S_WV, o=S_WO)
    queue = []
    def issue(i):
        m, par = sc[i]; reg = (i & 1) * 65536
        for n in range(16):
            if m == 'o':
                k("s_add_u32 s48, s49, %d", par * 128 + n * 8192)
                k("s_add_u32 m0, s3, %d", n * 1024)
            else:
                c, q = n >> 2, n & 3
                k("s_add_u32 s48, s45, %d", (2 * c + par) * 64 * 8192 + q * 4 * 8192)
                k("s_add_u32 m0, s44, %d", reg + c * 16384 + q * 1024)
            k("buffer_load_dwordx4 v%d, %s, s48 offen lds", 121 if m == 'o' else 120, s(srds[m], 4))
            queue.append(i)
    k("s_waitcnt lgkmcnt(0)")
    fin_srd(k, 'Wq', S_WQ)
    lstamp(k, 7)
    issue(0)
    if after_first: after_first(k)
    k("v_lshrrev_b32 v121, 3, v1")
    k("v_lshlrev_b32 v121, 10, v121")
    k("v_and_b32 v122, 7, v1")
    k("v_lshl_add_u32 v121, v122, 4, v121")
    k("v_and_b32 v126, 1, v92")
    k("v_lshl_add_u32 v126, v126, 2, v91")
    k("v_lshrrev_b32 v127, 1, v92")
    k("v_lshl_add_u32 v126, v126, 2, v127")
    k("v_lshlrev_b32 v126, 8, v126")
    k("v_xor_b32 v127, s%d, v92", w)
    k("v_lshl_add_u32 v126, v127, 6, v126")
    k("v_lshl_add_u32 v126, v93, 4, v126")
    for jp in range(4):
        k("s_xor_b32 s48, s%d, %d", w, jp)
        k("s_lshl_b32 s48, s48, 14")
        k("v_add_u32 v%d, s48, v126", 122 + jp)
    k("v_lshrrev_b32 v126, 1, v92")
    k("v_lshrrev_b32 v127, 1, v91")
    k("v_lshl_add_u32 v126, v127, 1, v126")
    k("v_and_b32 v127, 1, v91")
    k("v_lshl_add_u32 v126, v127, 3, v126")
    k("v_lshlrev_b32 v126, 2, v126")
    k("v_and_b32 v127, 1, v92")
    k("v_add_u32 v126, v126, v127")
    k("v_lshlrev_b32 v126, 7, v126")
    k("v_lshl_add_u32 v126, v93, 3, v126")
    k("s_lshl_b32 s48, s%d, 14", w)
    k("s_add_u32 s3, s48, 0x10000")
    k("v_add_u32 v126, s3, v126")
    k("s_lshl_b32 s49, s%d, 17", S_HEAD)
    k("s_lshl_b32 s48, s%d, 8", w)
    k("s_add_u32 s49, s49, s48")
    if -1 in hooks: queue.extend([-1] * hooks[-1](k))
    issue(1)
    lstamp(k, 5)
    TMP = 40
    for i in range(8):
        m, par = sc[i]
        if i in hooks: queue.extend([-1] * hooks[i](k))
        last = max(n for n, c in enumerate(queue) if c == i)
        k("s_waitcnt vmcnt(%d)", len(queue) - 1 - last)
        k("s_barrier")
        if i in (0, 2, 4, 5, 6): lstamp(k, {0: 0, 2: 2, 4: 4, 5: 1, 6: 3}[i])
        inplace = i >= 6
        cnt = 0
        for a_ in range(4):
            for b_ in range(2):
                if inplace: dst = TMP + (a_ * 2 + b_) * 8
                elif m == 'q': dst = WQ + (b_ * 8 + 2 * a_ + par) * 8
                elif m == 'k': dst = WK + (b_ * 8 + 2 * a_ + par) * 8
                elif m == 'v': dst = WVR_ + (a_ * 2 + b_) * 8
                else: dst = WOR_ + (a_ * 2 + b_) * 8
                for y in range(4):
                    if m == 'o':
                        k("ds_read_b64_tr_b16 %s, v126 offset:%d", u(dst + 2 * y, 2), (64 * b_ + 16 * (y >> 1) + 2 * (y & 1)) * 128 + 32 * a_)
                    else:
                        k("ds_read_b64_tr_b16 %s, v%d offset:%d", u(dst + 2 * y, 2), 122 + a_, (32 * (y >> 1) + 2 * (y & 1)) * 256 + 8 * b_)
                cnt += 4
                if cnt % 8 == 0: k("s_waitcnt lgkmcnt(4)")
        if i < 4:
            for jp in range(4): k("v_xor_b32 v%d, 0x10000, v%d", 122 + jp, 122 + jp)
        k("s_waitcnt lgkmcnt(0)")
        k("s_barrier")
        if inplace:
            for q in range(16):
                k("ds_write_b128 %s, %s offset:%d", v(aWO if m == 'o' else aWV), v(TMP + 4 * q, 4), q * 1024)
                if q % 8 == 7: k("s_waitcnt lgkmcnt(0)")
        if i in pre_issue: queue.extend([-1] * pre_issue[i](k))
        if i + 2 < 8: issue(i + 2)


def PFK(p):
    W = s(S_WS, 4)
    return [["s_mov_b32 m0, s%d" % sKTD, "buffer_load_dwordx4 %s, %s, s%d offen sc1 lds" % (v(aL16), W, sKV)],
            ["buffer_load_dwordx4 %s, %s, s%d offen offset:1024 sc1 lds" % (v(aL16), W, sKV)],
            ["buffer_load_dwordx4 %s, %s, %s, s%d offen sc1" % (v(VTN, 4), v(aL16), W, sVIM)],
            ["buffer_load_dwordx4 %s, %s, %s, s%d offen offset:1024 sc1" % (v(VTN + 4, 4), v(aL16), W, sVIM)],
            ["s_add_u32 s%d, s%d, 0x40000" % (sKV, sKV), "s_add_u32 s%d, s%d, 0x40000" % (sVIM, sVIM),
             "s_xor_b32 s%d, s%d, 0x2000" % (sKTD, sKTD)]][p]

def WVR(n, h):
    return "ds_read_b128 %s, %s offset:%d" % (v(G + (n & 3) * 8 + 4 * h, 4), v(aWV), n * 2048 + h * 1024)

def weave(k, spine, fill):
    for i, m in enumerate(spine):
        k(m)
        for f in fill.get(i, []): k(f)

def check_n(k, buf, n, t0, t1):
    if n == 8:
        k("v_max3_u32 %s, %s, %s, %s", v(t0), v(buf), v(buf + 1), v(buf + 2))
        k("v_max3_u32 %s, %s, %s, %s", v(t1), v(buf + 3), v(buf + 4), v(buf + 5))
        k("v_max3_u32 %s, %s, %s, %s", v(t0), v(buf + 6), v(buf + 7), v(t0))
        k("v_max_u32 %s, %s, %s", v(t0), v(t0), v(t1))
    else:
        k("v_max3_u32 %s, %s, %s, %s", v(t0), v(buf), v(buf + 1), v(buf + 2))
        k("v_max_u32 %s, %s, %s", v(t0), v(t0), v(buf + 3))
    k("v_cmp_eq_u32 vcc, -1, %s", v(t0))

def retry_stub(k, lab, back, loads, buf, n, pre=None, cnt=None):
    k.L(lab)
    lp = k.lab("rp")
    k("s_mov_b32 s%d, 0", sCNT)
    k.L(lp)
    for l in loads: k(l)
    if cnt is not None and getattr(k, 'ticks', False): k("s_add_u32 s%d, s%d, 1", cnt, cnt)
    k("s_waitcnt vmcnt(0)")
    if pre:
        for l in pre: k(l)
    check_n(k, buf, n, CT, CT + 1)
    k("s_cbranch_vccz %s", back)
    k("s_add_u32 s%d, s%d, 1", sCNT, sCNT)
    k("s_cmp_lt_u32 s%d, s%d", sCNT, S_LIM)
    k("s_cbranch_scc1 %s", lp)
    k("s_mov_b32 s%d, 0", S_LIM)
    k("s_branch %s", back)

def delay(k, slots):
    while slots > 0:
        m = min(slots, 16); k("s_nop %d", m - 1); slots -= m

def chain_loop(k, stf, tag):
    W = s(S_WS, 4)
    o = getattr(k, 'copt', {})
    mg = getattr(k, 'merged', False)
    tk = getattr(k, 'ticks', False)
    TK = lambda i: ("s_memtime s[%d:%d]" % (64 + 2 * i, 65 + 2 * i)) if tk else ""
    lexit = k.lab(tag + "exit"); bexit = k.lab(tag + "bexit")
    Qs = lambda j, b: [SMF(AQ, b, WQ + j * 8), SMF(AQ + 4, b, WQ + (8 + j) * 8)]
    Ks = lambda j, b: [SMF(AK, b, WK + j * 8), SMF(AK + 4, b, WK + (8 + j) * 8)]
    Vs = lambda j, b: [SMF(AV + 4 * t, b, (G + ((j + t) & 3) * 8) if j % 2 == 0 else (WVR_ + ((j >> 1) * 2 + t) * 8)) for t in range(2)]
    Q = lambda j: Qs(j, MA + 4 * j); Kp = lambda j: Ks(j, MA + 4 * j); V = lambda j: Vs(j, MA + 4 * j)
    KORD = [0, 1, 2, 4, 6, 3, 5, 7]
    MR = lambda j: "ds_read_b128 %s, %s offset:%d" % (v(MA + 4 * j, 4), v(aM[j >> 1]), (j & 1) * 1024)
    KTR = lambda f: "ds_read_b128 %s, %s offset:%d" % (v(MA + 4 * KORD[f], 4), v(aKT), f * 1024)
    MV = lambda d, x: "v_mov_b32 %s, %s" % (v(d), x)
    EX = lambda d, s_: "v_exp_f32 %s, %s" % (v(d), v(s_))
    CV = lambda d, a_, b_: "v_cvt_pk_bf16_f32 %s, %s, %s" % (v(d), v(a_), v(b_))
    FA = lambda a_: ["v_add_f32 %s, %s, %s" % (v(a_), v(a_), v(a_ + 2)), "v_add_f32 %s, %s, %s" % (v(a_ + 1), v(a_ + 1), v(a_ + 3))]
    stkvm = "buffer_store_dwordx4 %s, %s, %s, s%d offen sc1" % (v(KVM, 4), v(aL16), W, sKM)
    r_sm = k.lab(tag + "rsm"); b_sm = k.lab(tag + "bsm"); r_kv = k.lab(tag + "rkv"); b_kv = k.lab(tag + "bkv")
    EB = [MA, VTN]
    lF = [k.lab(tag + "s0f") for _ in EB]; lto = k.lab(tag + "to")
    RD = MA + 16; HT = MA + 20; H1 = MA + 8; H1B = MA + 24
    lde = lambda b: ["buffer_load_dwordx4 %s, %s, %s, s%d offen sc1" % (v(b, 4), v(aL16), W, sH2L),
                     "buffer_load_dwordx4 %s, %s, %s, s%d offen offset:1024 sc1" % (v(b + 4, 4), v(aL16), W, sH2L)]
    def spin(reg, n, lab, magic="0x7fc1"):
        for i in range(n):
            k("v_cmp_ne_u32 vcc, %s, %s", magic, v(reg))
            k("s_cbranch_vccnz %s", lab)
    lS = [k.lab(tag + "s0v") for _ in EB]; lcom = k.lab(tag + "com"); lpoll = k.lab(tag + "poll")
    k("s_branch %s", lS[0])
    k(".aw_on")
    nb0 = o.get('b0', 5)
    fl = [[],
          ["buffer_load_dword v1, %s, %s, s%d offen sc1" % (v(aFL4), W, sQF)]] if mg else [[], []]
    for bi in (1, 0):
        b = EB[bi]; ob = EB[1 - bi]
        k(".aw_reset")
        k.L(lF[1 - bi])
        if o.get('nanc', 1):
            k("v_max_u32 %s, %s, %s", v(HT), v(ob + 3), v(ob + 7))
            k("v_cmp_eq_u32 vcc, -1, %s", v(HT))
            k("s_cbranch_vccz %s", lS[1 - bi])
        if o.get('mask', 0): k("s_mov_b64 exec, vcc")
        for l in lde(ob): k(l)
        if o.get('mask', 0): k("s_mov_b64 exec, -1")
        if tk: k("s_add_u32 s97, s97, 1")
        k("s_add_u32 s%d, s%d, 1", sCNT, sCNT)
        k("s_cmp_ge_u32 s%d, s%d", sCNT, S_LIM)
        k("s_cbranch_scc1 %s", lto)
        if bi == 0: k.L(lpoll)
        ar = k.lab(tag + "ar2")
        spin(b + 7, o.get('ns2', 16), ar, "-2")
        k.L(ar)
        k("s_waitcnt vmcnt(2)")
        if o.get('nanc', 1): k("v_cmp_u_f32 vcc, %s, %s", v(b + 3), v(b + 7))
        else:
            k("v_max_u32 %s, %s, %s", v(HT), v(b + 3), v(b + 7))
            k("v_cmp_eq_u32 vcc, -1, %s", v(HT))
        k("s_cbranch_vccnz %s", lF[bi])
        k.L(lS[bi])
        tick(k, 15); tick_step_end(k); tick(k, 0)
        if o.get('plog2'): k("s_memtime s[64:65]"); k("s_memrealtime s[66:67]")
        w64 = o.get('w64', 0)
        if w64 == 0: k("ds_write_b128 %s, %s", v(aM[0]), v(b, 4))
        f = {o.get('gw2', 2): ["ds_write_b128 %s, %s offset:1024" % (v(aM[0]), v(b + 4, 4))], nb0: [".aw_writes", "s_barrier", TK(1), MR(2)]}
        if w64 == 1:
            del f[o.get('gw2', 2)]
            ws = ["ds_write_b64 %s, %s offset:%d" % (v(aM[0]), v(b + 2 * i, 2), (i >> 1) * 1024 + (i & 1) * 8) for i in range(4)]
            k(ws[0])
            for i in range(1, 4): f[i - 1] = [ws[i]]
        if w64 == 2:
            del f[o.get('gw2', 2)]
            ws = ["ds_write_b32 %s, %s offset:%d" % (v(aM[0]), v(b + i), (i >> 2) * 1024 + (i & 3) * 4) for i in range(8)]
            k(ws[0]); k(ws[1])
            for i in range(3): f[i] = ws[2 + 2 * i: 4 + 2 * i]
        for x in range(3, 8): f[min(nb0 + x - 2, 11)] = f.get(min(nb0 + x - 2, 11), []) + [MR(x)]
        if o.get('early', 0): f[1] = PFK(0)[1:]; f[2] = PFK(1); f[3] = [stkvm]; f[4] = fl[0]
        for g_, x in zip(o.get('ks0', []), [PFK(0)[1:], PFK(1)]): f[g_] = f[g_] + x
        weave(k, Qs(0, b) + Ks(0, b) + Qs(1, b + 4) + Ks(1, b + 4) + Vs(0, b) + Vs(1, b + 4), f)
        if bi: k("s_branch %s", lcom)
    k.L(lcom)
    r_qf = k.lab(tag + "rqf"); b_qf = k.lab(tag + "bqf")
    if mg and o.get('qfc', 1):
        k("s_cbranch_scc1 %s", r_qf) if False else None
    qf = []
    for t in range(2):
        a_ = AQ + 4 * t
        qf += FA(a_) + ["v_mul_f32 %s, s%d, %s" % (v(a_), sC, v(a_)), "v_mul_f32 %s, s%d, %s" % (v(a_ + 1), sC, v(a_ + 1)), CV(a_, a_, a_ + 1)]
    E_ = lambda x: [] if o.get('early', 0) else x
    pl_ = (["v_mov_b32 v34, s64", "v_mov_b32 v35, s66", "v_mov_b32 v33, 0", "s_lshl_b32 s68, s%d, 3" % S_STEP, "s_add_u32 s68, s68, s100",
             "buffer_store_dwordx2 v[34:35], v33, %s, s68 offen" % W] if o.get('plog2') else [])
    vp = o.get('vp', [3, 5, 7, 9, 0])
    fq = {g_: [] for g_ in range(24)}
    fq[0] += [TK(2), "s_waitcnt vmcnt(%d)" % len(o.get('ks0', []))]
    for g_, x in zip(vp, [PFK(2), PFK(3), PFK(0)[1:], PFK(1), [stkvm]] if not o.get('ks0') else [PFK(2), PFK(3), [stkvm]]): fq[g_] += x
    free = [g_ for g_ in range(1, 23) if g_ not in vp]
    misc = [[WVR(4, 0)], [WVR(4, 1)], [WVR(5, 0)], [WVR(5, 1)], [KTR(1)], pl_ + [KTR(0)]]
    if mg and o.get('qfc', 1): misc = [["s_cmp_lg_u32 s%d, 0" % sSAFE, "s_cbranch_scc1 %s" % r_qf, b_qf + ":"]] + misc
    for x in misc: fq[free.pop(0)] += x
    late = [g_ for g_ in free if g_ > max(vp)]
    fq[late[0]] += (PFK(4)[:2] if not o.get('xkv') else ["s_nop 0", "s_nop 0"]); fq[late[1]] += PFK(4)[2:] + ["s_add_u32 s%d, s%d, 0x20000" % (sKM, sKM)]
    for g_, q_ in zip(range(13, 23), [0, 1, 5, 6, 2, 3, 7, 8, 4, 9]): fq[g_] += [qf[q_]]
    fq[23] += ["ds_write2_b32 %s, %s, %s offset0:0 offset1:32" % (v(aXW), v(AQ), v(AQ + 4))]
    weave(k, Q(2) + Q(3) + Q(4) + Q(5) + Q(6) + Q(7) + Kp(2) + Kp(3) + Kp(4) + Kp(5) + Kp(6) + Kp(7), fq)
    X = AQ
    XR = lambda i: "ds_read_b64_tr_b16 %s, %s offset:%d" % (v(X + 2 * i, 2), v(aXR), (i >> 1) * 1280 + (i & 1) * 128)
    ONES, PM, LA, E, T1, T2, T0 = G, G + 4, G + 8, G + 12, G + 20, G + 24, G + 28
    O1 = "0x3f803f80"
    KORD[:] = [0, 1, 2, 4, 3, 5, 6, 7]
    kf = FA(AK) + FA(AK + 4) + [CV(AQ + 1, AK, AK + 1), CV(AQ + 5, AK + 4, AK + 5)]
    XW = "ds_write2_b64 %s, %s, %s offset0:0 offset1:16" % (v(aXW), v(AQ, 2), v(AQ + 4, 2))
    BAR = [".aw_writes", "s_barrier", TK(6)]
    vs = V(2) + V(4) + V(3) + V(5) + V(6) + V(7)
    nb = o.get('xb', 6)
    f = {0: [WVR(6, 0)] + kf, 1: [XW, TK(5)], 2: [WVR(6, 1), MV(KVM, v(AQ + 1))], 3: [WVR(7, 0), MV(KVM + 1, v(AQ + 5))], 4: [WVR(7, 1), MV(ONES, O1)], 5: [KTR(2), MV(ONES + 1, O1)]}
    mv = [MV(ONES + 2, O1), MV(ONES + 3, O1), MV(PM + 1, "0"), MV(PM + 2, "0")]
    if o.get('qw', 1):
        kf = FA(AK) + FA(AK + 4) + [CV(KVM, AK, AK + 1), CV(KVM + 1, AK + 4, AK + 5)]
        XW = "ds_write2_b32 %s, %s, %s offset0:1 offset1:33" % (v(aXW), v(KVM), v(KVM + 1))
        f = {0: [WVR(6, 0)] + kf, 1: [XW, TK(5)], 2: [WVR(6, 1)], 3: [WVR(7, 0), MV(ONES, O1)], 4: [WVR(7, 1), MV(ONES + 1, O1)], 5: [KTR(2), MV(ONES + 2, O1)]}
        mv = [MV(ONES + 3, O1), MV(PM + 1, "0"), MV(PM + 2, "0")]
    xs = [XR(i) for i in range(8)]
    cnt = o.get('xc', {5: [2, 1, 1, 1, 1, 1, 1], 6: [1, 2, 2, 1, 1, 1], 7: [2, 2, 2, 1, 1], 8: [2, 2, 2, 2]}[nb])
    for g_ in range(6, nb): f[g_] = [KTR(3) if g_ == 6 else KTR(4), mv.pop(0)]
    kdone = 3 + max(0, nb - 6)
    for x, c_ in enumerate(cnt):
        f[nb + x] = (f.get(nb, []) + BAR if x == 0 else []) + xs[:c_]; xs = xs[c_:]
    assert not xs
    weave(k, vs, f)
    vf = []
    for t in range(2): vf += FA(AV + 4 * t) + [CV(KVM + 2 + t, AV + 4 * t, AV + 4 * t + 1)]
    t1 = lambda kb: MF(T1, MA + 4 * KORD[kb], X + 4 * kb, kb == 0)
    t2 = lambda kb: MF(T2, MA + 4 * KORD[4 + kb], X + 4 * kb, kb == 0)
    t0 = lambda kb: MF(T0, X + 4 * kb, X + 4 * kb, kb == 0)
    KQ = lambda i: [KTR(kdone + i)] if kdone + i < 8 else []
    tb = o.get('tb', 1)
    fc = {0: [TK(7)] + KQ(0) + mv[:1], 1: KQ(1) + [vf[0]], 2: KQ(2) + [vf[1]], 3: KQ(3) + [vf[3]], 4: KQ(4) + [vf[4]], 5: [vf[2], vf[5]],
          6: ["s_cmp_ge_u32 s%d, %d" % (S_STEP, o.get('kvl', 59)), "s_cbranch_scc1 %s" % lexit, bexit + ":"] + mv[1:2], 7: mv[2:]}
    if tb == 0:
        fc.update({8: [EX(E, T1)], 9: [EX(E + 1, T1 + 1)], 10: [EX(E + 2, T1 + 2)],
            11: [EX(E + 3, T1 + 3), EX(T0, T0 + 2), EX(T0 + 1, T0 + 3), CV(E, E, E + 1), CV(E + 1, E + 2, E + 3), CV(PM, T0, T0 + 1), CV(PM + 3, T0, T0 + 1)]})
        weave(k, [t1(0), t0(0), t1(1), t0(1), t1(2), t0(2), t1(3), t2(0), t0(3), t2(1), t2(2), t2(3)], fc)
        pvf = {0: [EX(E + 4, T2)], 1: [EX(E + 5, T2 + 1)], 2: [EX(E + 6, T2 + 2), EX(E + 7, T2 + 3), CV(E + 2, E + 4, E + 5), CV(E + 3, E + 6, E + 7)]}
    else:
        fc.update({8: [EX(T0, T0 + 2)], 9: [EX(T0 + 1, T0 + 3)], 10: [CV(PM, T0, T0 + 1), CV(PM + 3, T0, T0 + 1)], 11: [EX(E, T1)]})
        weave(k, [t0(0), t1(0), t0(1), t1(1), t0(2), t1(2), t0(3), t1(3), t2(0), t2(1), t2(2), t2(3)], fc)
        pvf = {0: [EX(E + 1, T1 + 1)], 1: [EX(E + 2, T1 + 2)], 2: [EX(E + 3, T1 + 3), EX(E + 4, T2), EX(E + 5, T2 + 1), CV(E, E, E + 1), EX(E + 6, T2 + 2), EX(E + 7, T2 + 3),
               CV(E + 1, E + 2, E + 3), CV(E + 2, E + 4, E + 5), CV(E + 3, E + 6, E + 7)]}
    O = AV
    Z = lambda i: "v_mov_b32 %s, 0" % v(MA + i)
    M16z = lambda d, A, B: "v_mfma_f32_16x16x16_bf16 %s, %s, %s, 0" % (v(d, 4), v(A, 2), v(B, 2))
    tick(k, 8)
    def pv(k, fast):
        weave(k, [M16z(LA, PM, ONES), M16z(O, PM, KVM + 2), M16z(O + 4, PM + 2, KVM + 2)],
              pvf if fast else {})
        weave(k, [MF(LA, E, ONES, False), MF(O, E, VT, False), MF(O + 4, E, VT + 4, False)], {})
    pv(k, True)
    k("v_rcp_f32 %s, %s", v(LA), v(LA))
    k("v_rcp_f32 %s, %s", v(LA + 1), v(LA + 1))
    k.L(b_sm)
    for t in range(2):
        if o.get('pk', 1): k("v_pk_mul_f32 %s, %s, %s", v(O + 4 * t, 2), v(O + 4 * t, 2), v(LA, 2))
        else:
            k("v_mul_f32 %s, %s, %s", v(O + 4 * t), v(O + 4 * t), v(LA))
            k("v_mul_f32 %s, %s, %s", v(O + 4 * t + 1), v(O + 4 * t + 1), v(LA + 1))
        k(CV(E + 4 + t, O + 4 * t, O + 4 * t + 1))
    k("ds_write_b64 %s, %s", v(aOW), v(E + 4, 2))
    tick(k, 9)
    Z2 = lambda i: "v_mov_b64 %s, 0" % v(MA + 2 * i, 2)
    ZP = X + 8 + 6
    ZM = lambda r: "v_mfma_f32_32x32x8_bf16 %s, %s, %s, 0" % (v(r, 16), v(ZP, 2), v(ZP, 2))
    k("v_max3_f32 %s, |%s|, |%s|, |%s|", v(X), v(T1), v(T1 + 1), v(T1 + 2))
    k("v_max3_f32 %s, |%s|, |%s|, |%s|", v(X + 1), v(T1 + 3), v(T2), v(T2 + 1))
    k("v_max3_f32 %s, |%s|, |%s|, %s", v(X), v(T2 + 2), v(T2 + 3), v(X))
    k("v_max3_f32 %s, |%s|, |%s|, %s", v(X + 1), v(T0 + 2), v(T0 + 3), v(X + 1))
    k("v_mov_b64 %s, 0", v(ZP, 2))
    k("v_max_f32 %s, %s, %s", v(X), v(X), v(X + 1))
    k("v_cmp_lt_f32 vcc, s%d, %s", sTHR, v(X))
    k("s_and_b64 vcc, vcc, %s", s(sMASK, 2))
    k("s_cbranch_scc1 %s", r_sm)
    k("s_mov_b32 s%d, 0x42700000", sTHR)
    k(ZM(MA))
    k(".aw_writes"); k("s_barrier")
    tick(k, 10)
    OA = AQ
    for i in range(4):
        k("ds_read_b64_tr_b16 %s, %s offset:%d", v(OA + 2 * i, 2), v(aXR), (L_OB - L_XB) + (i >> 1) * 1280 + (i & 1) * 128)
        if i == o.get('zp', 1): k(ZM(MA + 16))
    PK = AK
    SB = {(4, 0): G, (5, 0): G + 8, (4, 1): G + 16, (5, 1): G + 24, (6, 0): VT, (7, 0): AV, (6, 1): G, (7, 1): G + 8}
    WOB = lambda nt, kbo: (WOR_ + (nt * 2 + kbo) * 8) if nt < 4 else SB[(nt, kbo)]
    WR = lambda nt, kbo, h: "ds_read_b128 %s, %s offset:%d" % (v(SB[(nt, kbo)] + 4 * h, 4), v(aWO), ((nt - 4) * 2 + kbo) * 2048 + h * 1024)
    WS_ = lambda nt, kbo: SMF(MA + 4 * nt, OA + 4 * kbo, WOB(nt, kbo))
    AD = lambda nt, b: "v_add_f32 %s, %s, %s" % (v(MA + 4 * nt + b), v(MA + 4 * nt + b), v(MA + 4 * nt + 2 + b))
    PC = lambda sx, b, hh: CV(PK + 4 * sx + 2 * b + hh, MA + 4 * (4 * sx + 2 * hh) + b, MA + 4 * (4 * sx + 2 * hh + 1) + b)
    ST1 = lambda sx: "buffer_store_dwordx4 %s, %s, %s, s%d offen %s" % (v(PK + 4 * sx, 4), v(aH1S), W, sH1S1 if sx else sH1S0, stf)
    PA = lambda nt: "v_pk_add_f32 %s, %s, %s" % (v(MA + 4 * nt, 2), v(MA + 4 * nt, 2), v(MA + 4 * nt + 2, 2))
    TG = lambda sx: "v_and_or_b32 %s, %s, -2, s%d" % (v(PK + 4 * sx), v(PK + 4 * sx), sPH)
    k(WR(4, 0, 0)); k(WR(4, 0, 1))
    A2 = lambda nt: [PA(nt)] if o.get('pk', 1) else [AD(nt, 0), AD(nt, 1)]
    P2 = lambda tp, b: CV(PK + 2 * tp + b, MA + 8 * tp + b, MA + 8 * tp + 4 + b)
    T2_ = lambda tp: "v_and_or_b32 %s, %s, -2, s%d" % (v(PK + 2 * tp), v(PK + 2 * tp), sPH)
    S2 = lambda tp: "buffer_store_dwordx2 %s, %s, %s, s%d offen offset:%d %s" % (v(PK + 2 * tp, 2), v(aH1S), W, sH1S1 if tp >> 1 else sH1S0, (tp & 1) * 2048, stf)
    fin = lambda tp: [AD(2 * tp + 1, 0), AD(2 * tp + 1, 1), P2(tp, 0), P2(tp, 1), T2_(tp), S2(tp)]
    fa = {0: [TK(11), WR(5, 0, 0)], 1: [WR(5, 0, 1)], 2: [WR(4, 1, 0)], 3: [WR(4, 1, 1)],
        4: [WR(5, 1, 0), AD(0, 0)], 5: [WR(5, 1, 1), AD(0, 1)] + fin(0) + [TK(12)], 6: [WR(6, 0, 0), WR(6, 0, 1)], 7: [WR(7, 0, 0), WR(7, 0, 1)],
        8: [WR(6, 1, 0), AD(2, 0)], 9: [WR(6, 1, 1), AD(2, 1), WR(7, 1, 0), WR(7, 1, 1)] + fin(1),
        12: [AD(4, 0)], 13: [AD(4, 1)] + fin(2),
        15: A2(6) + A2(7) + [P2(3, 0), P2(3, 1), T2_(3), S2(3)]}
    wv_ = o.get('wv', 3)
    if wv_ == 0:
        fa = {0: [TK(11), WR(5, 0, 0)], 1: [WR(5, 0, 1)], 2: [WR(4, 1, 0)], 3: [WR(4, 1, 1)],
            4: [WR(5, 1, 0), AD(0, 0)], 5: [WR(5, 1, 1), AD(0, 1)], 6: [WR(6, 0, 0), AD(1, 0)], 7: [WR(6, 0, 1), WR(7, 0, 0), WR(7, 0, 1)] + fin(0)[1:] + [TK(12)],
            8: [WR(6, 1, 0), AD(2, 0)], 9: [WR(6, 1, 1), AD(2, 1)], 10: [WR(7, 1, 0), AD(3, 0)], 11: [WR(7, 1, 1)] + fin(1)[1:],
            12: [AD(4, 0)], 13: [AD(4, 1)], 14: [AD(5, 0)],
            15: fin(2)[1:] + A2(6) + A2(7) + [P2(3, 0), P2(3, 1), T2_(3), S2(3)]}
    elif wv_ == 1:
        fa = {0: [TK(11), WR(5, 0, 0)], 1: [WR(5, 0, 1)], 2: [WR(4, 1, 0), WR(4, 1, 1)], 3: [WR(5, 1, 0), WR(5, 1, 1)],
            4: [WR(6, 0, 0), AD(0, 0)], 5: [WR(6, 0, 1), AD(0, 1)], 6: [WR(7, 0, 0)] + fin(0)[:-1], 7: [S2(0), TK(12), WR(7, 0, 1)],
            8: [WR(6, 1, 0), AD(2, 0)], 9: [WR(6, 1, 1), AD(2, 1)], 10: [WR(7, 1, 0), WR(7, 1, 1)] + fin(1)[:-1], 11: [S2(1)],
            12: [AD(4, 0)], 13: [AD(4, 1)], 14: fin(2)[:-1],
            15: [S2(2)] + A2(6) + A2(7) + [P2(3, 0), P2(3, 1), T2_(3), S2(3)]}
    elif wv_ == 3:
        fa = {0: [TK(11), WR(5, 0, 0)], 1: [WR(5, 0, 1)], 2: [WR(4, 1, 0), WR(4, 1, 1)], 3: [WR(5, 1, 0), WR(5, 1, 1)],
            4: [WR(6, 0, 0), AD(0, 0)], 5: [WR(6, 0, 1), AD(0, 1)], 6: [WR(7, 0, 0)] + fin(0)[:-1], 7: [S2(0), TK(12), WR(7, 0, 1)],
            8: [WR(6, 1, 0), AD(2, 0)], 9: [WR(6, 1, 1), AD(2, 1)], 10: [WR(7, 1, 0), WR(7, 1, 1)] + fin(1)[:-1], 11: [S2(1)],
            12: [AD(4, 0)], 13: [AD(4, 1)] + fin(2)[:-1], 14: [S2(2)],
            15: A2(6) + A2(7) + [P2(3, 0), P2(3, 1), T2_(3), S2(3)]}
    elif wv_ == 4:
        fa = {0: [TK(11), WR(5, 0, 0)], 1: [WR(5, 0, 1)], 2: [WR(4, 1, 0), WR(4, 1, 1)], 3: [WR(5, 1, 0), WR(5, 1, 1)],
            4: [WR(6, 0, 0), AD(0, 0)], 5: [WR(6, 0, 1), AD(0, 1)], 6: [WR(7, 0, 0), AD(1, 0)], 7: [WR(7, 0, 1)] + fin(0)[1:-1], 8: [S2(0), TK(12), WR(6, 1, 0), AD(2, 0)],
            9: [WR(6, 1, 1), AD(2, 1)], 10: [WR(7, 1, 0), WR(7, 1, 1)] + fin(1)[:-1], 11: [S2(1)],
            12: [AD(4, 0)], 13: [AD(4, 1)] + fin(2)[:-1], 14: [S2(2)],
            15: A2(6) + A2(7) + [P2(3, 0), P2(3, 1), T2_(3), S2(3)]}
    else:
        fa = {0: [TK(11), WR(5, 0, 0)], 1: [WR(5, 0, 1)], 2: [WR(4, 1, 0), WR(4, 1, 1)], 3: [WR(5, 1, 0), WR(5, 1, 1)],
            4: [WR(6, 0, 0), AD(0, 0)], 5: [WR(6, 0, 1), AD(0, 1)], 6: [WR(7, 0, 0), AD(1, 0)], 7: [WR(7, 0, 1)] + fin(0)[1:-1], 8: [S2(0), TK(12), WR(6, 1, 0), AD(2, 0)],
            9: [WR(6, 1, 1), AD(2, 1)], 10: [WR(7, 1, 0), AD(3, 0)], 11: [WR(7, 1, 1)] + fin(1)[1:-1], 12: [S2(1), AD(4, 0)],
            13: [AD(4, 1)], 14: fin(2)[:-1],
            15: [S2(2)] + A2(6) + A2(7) + [P2(3, 0), P2(3, 1), T2_(3), S2(3)]}
    weave(k, [WS_(0, 0), WS_(1, 0), WS_(0, 1), WS_(1, 1), WS_(2, 0), WS_(3, 0), WS_(2, 1), WS_(3, 1), WS_(4, 0), WS_(5, 0),
              WS_(4, 1), WS_(5, 1), WS_(6, 0), WS_(7, 0), WS_(6, 1), WS_(7, 1)], fa)
    tick(k, 13)
    if o.get('plog'):
        k("s_mov_b32 m0, s%d", S_STEP)
        k("v_writelane_b32 v1, s64, m0")
    RD = MA + 16; HT = MA + 20; H1 = MA + 8; H1B = MA + 24
    h1lb = lambda b: ["buffer_load_dwordx4 %s, %s, %s, s%d offen sc1" % (v(b, 4), v(aL16), W, sH1L),
           "buffer_load_dwordx4 %s, %s, %s, s%d offen offset:1024 sc1" % (v(b + 4, 4), v(aL16), W, sH1L)]
    redb = lambda b: [MF(RD, SEL, b, True), MF(RD, SEL, b + 4, False),
           "v_bitop3_b32 %s, %s, %s, s%d bitop3:0x7e" % (v(HT), v(b), v(b + 4), sPH), "v_and_b32 %s, 1, %s" % (v(HT), v(HT)),
           "v_cmp_ne_u32 vcc, 0, %s" % v(HT)]
    h1l = h1lb(H1); red = redb(H1)
    lde = lambda b: ["buffer_load_dwordx4 %s, %s, %s, s%d offen sc1" % (v(b, 4), v(aL16), W, sH2L),
                     "buffer_load_dwordx4 %s, %s, %s, s%d offen offset:1024 sc1" % (v(b + 4, 4), v(aL16), W, sH2L)]
    KAV = "v_mov_b32 %s, 0" % v(MA + 22)
    def warm(vl, ol, slots, per=o.get('per', 4)):
        while slots > 0:
            k(vl.pop(0) if vl else (KAV if o.get('ka', 0) else "s_nop 0")); slots -= 1
            r = min(per - 1, slots)
            while r > 0 and ol:
                x = ol.pop(0); k(x); c = 2 if x.startswith('ds_') else 1; r -= c; slots -= c
            if r > 0: k("s_nop %d", r - 1); slots -= r
    def spin(reg, n, lab, magic="0x7fc1"):
        for i in range(n):
            k("v_cmp_ne_u32 vcc, %s, %s", magic, v(reg))
            k("s_cbranch_vccnz %s", lab)
            if o.get('spn', 0): k("s_nop %d", o.get('spn') - 1)
    ok1 = k.lab(tag + "ok1"); rr1 = k.lab(tag + "r1"); ar1 = k.lab(tag + "ar1"); ar0 = k.lab(tag + "ar0")
    lp1 = k.lab(tag + "lp1"); lB = k.lab(tag + "gB"); lA2 = k.lab(tag + "gA2")
    k("s_cmp_ge_u32 s%d, 2", S_WAVE)
    k(".aw_fork")
    k("s_cbranch_scc1 %s", lB)
    for g in 'ab':
        if g == 'b':
            k.L(lB); k(".aw_join")
        hv = ["v_mov_b64 %s, 0" % v(AQ + 2 * i, 2) for i in range(12)] + ["v_xor_b32 %s, 0x2000, %s" % (v(aKT), v(aKT))]
        ho = [WVR(n, h) for n in range(4) for h in range(2)] + \
             ["s_mov_b32 s%d, s%d" % (sH2R, sH2S), "s_xor_b32 s%d, s%d, 0x2000" % (sH2S, sH2S)] + \
             ["s_xor_b32 s%d, s%d, 0x40000" % (r, r) for r in (sH1S0, sH1S1)] + \
             ["s_xor_b32 s%d, s%d, 0x2000" % (sH2L, sH2L), "s_add_u32 s%d, s%d, 1" % (S_STEP, S_STEP), "s_mov_b32 m0, s%d" % sKTD, "s_mov_b32 s%d, 0" % sCNT]
        warm(hv, ho, o.get('p0' + g, 24 if g == 'a' else 44))
        tick(k, 3)
        for l in h1lb(H1B): k(l)
        warm(hv, ho, o.get('p1' + g, 54 if g == 'a' else 24))
        for l in h1l: k(l)
        warm(hv, ho, o.get('w1' + g, 2 if g == 'a' else 14))
        assert not hv and not ho
        k(".aw_all")
        if g == 'a': k("s_branch %s", lp1)
    k.L(lp1)
    spin(H1B + 3, o.get('ns1', 24), ar0)
    k.L(ar0)
    k("s_waitcnt vmcnt(3)")
    tick(k, 4)
    k(redb(H1B)[0])
    k("s_waitcnt vmcnt(2)")
    for l in redb(H1B)[1:]: k(l)
    k("s_cbranch_vccnz %s", rr1)
    k.L(ok1)
    for sh in (4, 8):
        for r in (RD, RD + 1): k("v_add_f32_dpp %s, %s, %s row_ror:%d row_mask:0xf bank_mask:0xf", v(r), v(r), v(r), sh)
    k("v_cvt_pk_bf16_f32 %s, %s, %s", v(RD), v(RD), v(RD + 1))
    k("buffer_store_dword %s, %s, %s, s%d offen %s", v(RD), v(aH2S), W, sH2S, stf)
    tick(k, 14)
    k(MV(HT, "-1"))
    k("buffer_store_dword %s, %s, %s, s%d offen %s", v(HT), v(aH2S), W, sH2R, stf)
    hv = ["v_mov_b64 %s, %s" % (v(VT + 2 * i, 2), v(VTN + 2 * i, 2)) for i in range(4)]
    ho = ["s_xor_b32 s%d, s%d, 0x40000" % (sH1L, sH1L), "s_bfe_u32 s%d, s%d, 0x10001" % (sPH, S_STEP), "s_mov_b32 s%d, 0" % sCNT]
    if mg:
        k("s_add_u32 s%d, s%d, 1", sT, S_STEP); k("v_cmp_ge_u32 vcc, s%d, v1", sT)
        k("s_cbranch_vccnz %s", r_kv)
        k.L(b_kv)
        if o.get('qfc', 1):
            k("s_add_u32 s%d, s%d, %d", sT, S_STEP, o.get('qfm', 4)); k("v_cmp_ge_u32 vcc, s%d, v1", sT)
            k("s_or_b32 s%d, vcc_lo, vcc_hi", sSAFE)
    k("s_cmp_ge_u32 s%d, 2", S_WAVE)
    k("s_cbranch_scc1 %s", lA2)
    warm([], [], o.get('p2a', 20))
    k.L(lA2)
    p2 = o.get('p2', [26, 30])
    warm(hv, ho, p2[0])
    assert not hv and not ho
    for l in lde(EB[0]): k(l)
    warm(hv, ho, p2[1])
    for l in lde(EB[1]): k(l)
    warm(hv, ho, o.get('w2', 15))
    k(".aw_all")
    k(".aw_off")
    k("s_branch %s", lpoll)
    k.L(lto)
    k("s_mov_b32 s%d, 0", S_LIM)
    k("s_waitcnt vmcnt(0)")
    k("s_branch %s", lS[0])
    k.L(rr1)
    if o.get('mask', 0): k("s_mov_b64 exec, vcc")
    for l in h1lb(H1B): k(l)
    if o.get('mask', 0): k("s_mov_b64 exec, -1")
    if tk: k("s_add_u32 s98, s98, 1")
    spin(H1 + 7, o.get('ns1', 24), ar1)
    k.L(ar1)
    k("s_waitcnt vmcnt(2)")
    for l in red: k(l)
    k("s_cbranch_vccz %s", ok1)
    if o.get('mask', 0): k("s_mov_b64 exec, vcc")
    for l in h1l: k(l)
    if o.get('mask', 0): k("s_mov_b64 exec, -1")
    if tk: k("s_add_u32 s96, s96, 1")
    k("s_add_u32 s%d, s%d, 1", sCNT, sCNT)
    k("s_cmp_lt_u32 s%d, s%d", sCNT, S_LIM)
    k("s_cbranch_scc1 %s", lp1)
    k("s_mov_b32 s%d, 0", S_LIM)
    k("s_branch %s", ok1)
    if mg and o.get('qfc', 1):
        k.L(r_qf)
        for x in fl[1]: k(x)
        k("s_branch %s", b_qf)
    if mg:
        k.L(r_kv)
        kv_refresh(k, 1, b_kv)
    k.L(r_sm)
    k("v_max3_f32 %s, %s, %s, %s", v(X), v(T1), v(T1 + 1), v(T1 + 2))
    k("v_max3_f32 %s, %s, %s, %s", v(X), v(T1 + 3), v(T2), v(X))
    k("v_max3_f32 %s, %s, %s, %s", v(X), v(T2 + 1), v(T2 + 2), v(X))
    k("v_max3_f32 %s, %s, %s, %s", v(X), v(T2 + 3), v(T0 + 2), v(X))
    k("v_max_f32 %s, %s, %s", v(X), v(T0 + 3), v(X))
    xmax(k, X, X + 1)
    for r in [T1 + i for i in range(8)] + [T0 + 2, T0 + 3]: k("v_sub_f32 %s, %s, %s", v(r), v(r), v(X))
    for i in range(8): k(EX(E + i, T1 + i))
    k(EX(T0, T0 + 2)); k(EX(T0 + 1, T0 + 3))
    for i in range(4): k(CV(E + i, E + 2 * i, E + 2 * i + 1))
    k(CV(PM, T0, T0 + 1)); k(CV(PM + 3, T0, T0 + 1))
    pv(k, False)
    k("s_mov_b32 s%d, 0x7f800000", sTHR)
    k("v_rcp_f32 %s, %s", v(LA), v(LA))
    k("v_rcp_f32 %s, %s", v(LA + 1), v(LA + 1))
    k("s_waitcnt lgkmcnt(0)")
    k("s_branch %s", b_sm)
    k.L(lexit)
    k(stkvm)
    k("s_cmp_lt_u32 s%d, 63", S_STEP)
    k("s_cbranch_scc1 %s", bexit)
    k("s_waitcnt lgkmcnt(0)")

def role_chain(k, force_slow=False):
    mg = getattr(k, 'merged', False)
    srds = (('Wq', S_WQ), ('Wk', S_WK), ('Wv', S_WV), ('Wo', S_WO), ('mem0', 56))
    for n, r in srds: load_srd(k, n, r)
    def after_first(k):
        for n, r in srds[1:] + (('ws', S_WS), ('dbg', S_DBG)): fin_srd(k, n, r)
        chain_setup(k)
        merged_setup(k)
        k("s_mov_b32 s%d, 0", S_STEP)
    W = s(S_WS, 4)
    def h_arm(k):
        chain_arm(k)
        k("v_lshrrev_b32 v104, 1, v90")
        k("v_and_b32 v104, 6, v104")
        k("v_and_b32 v105, 1, v1")
        k("v_add_u32 v104, v104, v105")
        k("v_lshlrev_b32 v104, 10, v104")
        k("v_lshrrev_b32 v105, 1, v91")
        k("v_lshl_add_u32 v104, v105, 6, v104")
        k("v_and_b32 v105, 1, v91")
        k("v_lshl_add_u32 v104, v105, 4, v104")
        k("s_lshl_b32 s%d, s%d, 8", sT, S_WAVE)
        for j in range(2):
            k("buffer_load_dwordx4 %s, v104, %s, s%d offen offset:%d", v(40 + 8 * j, 4), s(56, 4), sT, j * 128)
            k("buffer_load_dwordx4 %s, v104, %s, s%d offen offset:%d", v(44 + 8 * j, 4), s(56, 4), sT, j * 128 + 32)
        k("v_mov_b32 v107, 0")
        k("buffer_load_dword v118, v107, %s, 0 offen offset:%d sc1", s(S_DBG, 4), DBG_T)
        return 10
    lwarm = k.lab("CW"); lwend = k.lab("CWe")
    def h_mem0(k):
        lt = k.lab("CT"); lt2 = k.lab("CT2")
        k("v_cmp_eq_u32 vcc, 0, v118")
        k("s_cbranch_vccz %s", lt)
        wait_ready(k, 118, DBG_T)
        k.L(lt)
        k("v_readfirstlane_b32 s%d, v118", sT)
        k("s_cmp_lg_u32 s%d, s54", sT)
        k("s_cselect_b32 s100, 2, 1")
        k("s_cbranch_scc0 %s", lt2)
        k("s_cmp_eq_u32 s101, 0")
        k("s_cbranch_scc1 %s", k.lswap)
        k.L(lt2)
        k("v_and_b32 v105, 2, v1")
        k("v_mul_u32_u24 v105, 0x10101, v105")
        k("v_and_b32 v106, 2, v1")
        k("v_lshl_add_u32 v105, v106, 24, v105")
        k("v_add_u32 v105, 0x05040100, v105")
        for j in range(2):
            for i in range(4):
                k("v_perm_b32 %s, %s, %s, v105", v(MA + 4 * j + i), v(44 + 8 * j + i), v(40 + 8 * j + i))
        n = 0
        if k.copt.get('cwarm', 1):
            lpc = k.lab("pc")
            k("s_getpc_b64 s[60:61]")
            k.L(lpc)
            k("s_add_u32 s60, s60, %s-%s", lwarm, lpc)
            k("s_addc_u32 s61, s61, 0")
            k("s_lshl_b32 s%d, s%d, 13", sT, S_WAVE)
            k("v_lshlrev_b32 v104, 7, v1")
            k("v_min_u32 v105, %s-%s-4, v104", lwend, lwarm)
            k("global_load_dword v116, v105, s[60:61]")
            k("v_add_u32 v104, 0x2000, v104")
            k("v_min_u32 v105, %s-%s-4, v104", lwend, lwarm)
            k("global_load_dword v117, v105, s[60:61]")
            n += 2
        return n
    def h_rdy(k):
        k("buffer_load_dword v108, v107, %s, 0 offen offset:%d sc1", s(S_DBG, 4), DBG_READY)
        return 1
    def h_done(k):
        announce(k, 64)
        return 1
    def announce(k, off=0):
        k("v_mov_b32 v106, s100")
        k("s_lshl_b32 s%d, s%d, 30", sT, S_WAVE)
        k("s_lshr_b32 s%d, s%d, 1", sCNT, sT)
        k("s_or_b32 s%d, s%d, s%d", sT, sT, sCNT)
        k("s_and_b32 s%d, s%d, 0x40000000", sT, sT)
        k("v_mov_b32 v105, 0x40000000")
        k("v_cmp_eq_u32 vcc, 0, v108")
        k("v_mov_b32 v104, s%d", sT)
        k("v_cndmask_b32 v105, v104, v105, vcc")
        k("buffer_store_dword v106, v105, %s, s%d offen offset:%d sc1", W, sKF, off)
    def h_announce(k):
        announce(k)
        return 1
    def h_qf(k):
        k("buffer_load_dword v109, %s, %s, s%d offen sc1", v(aFL), W, sQF)
        return 1
    def h_warm(k):
        n = 0
        for base, x in ((sH1L, 0), (sH1L, 0x40000), (sH2L, 0), (sH2L, 0x2000)):
            k("s_xor_b32 s%d, s%d, 0x%x", sT, base, x)
            for off in (0, 1024):
                k("buffer_load_dwordx4 v[112:115], %s, %s, s%d offen offset:%d sc1", v(aL16), W, sT, off)
                n += 1
        return n
    def h_flags(k): return h_qf(k) + h_warm(k)
    def h_pf(k):
        k("s_waitcnt vmcnt(%d)", 16 + {0: 0, 1: 9, 2: 1, 3: 8, 4: 0}[k.copt.get('hv', 0)])
        k("v_cmp_eq_u32 vcc, 0, v108")
        k("s_or_b32 s%d, vcc_lo, vcc_hi", sSAFE)
        k("v_cmp_ge_u32 vcc, 1, v109")
        k("s_or_b32 s%d, s%d, vcc_lo", sSAFE, sSAFE)
        for p in range(4):
            for l in PFK(p): k(l)
        k("v_and_b32 v111, 31, v1")
        k("v_lshlrev_b32 v111, 7, v111")
        k("s_mov_b32 s63, 0x%x", FLAGS + F_KF)
        k("buffer_load_dword v110, v111, %s, s63 offen sc1", W)
        return 5
    def h3(k): return h_mem0(k) + h_announce(k)
    hv_ = k.copt.get('hv', 0)
    if hv_ == 0: hooks = {-1: h_arm, 1: h_rdy, 2: h_mem0, 4: h_announce, 5: h_flags, 7: h_pf}
    elif hv_ == 1: hooks = {-1: h_arm, 1: h_rdy, 2: h_mem0, 5: h_qf, 6: (lambda k: h_announce(k) + h_warm(k)), 7: h_pf}
    elif hv_ >= 2: hooks = {-1: h_arm, 1: h_rdy, 2: h_mem0, 5: h_qf, 6: h_announce, 7: (lambda k: h_pf(k) + h_warm(k))}
    pre = {}
    if k.copt.get('qp') is not None: pre[k.copt.get('qph', 5)] = h_done
    if hv_ == 3: hooks = {-1: h_arm}; pre = {0: h_rdy, 1: h_mem0, 2: h_announce, 3: h_qf, 4: h_warm, 5: h_pf}
    if hv_ == 4: hooks = {-1: h_arm}; pre = {0: h_rdy, 1: h_mem0, 2: h_announce, 3: h_warm, 4: h_qf, 6: h_pf}
    chain_load_weights(k, hooks, pre, after_first)
    stamp(k, 2, 1, wgreg=S_HEAD, vt=120)
    if k.copt.get('dst'): k("s_memrealtime s[94:95]")
    if mg:
        lok = k.lab("CHf")
        k("s_cmp_eq_u32 s%d, 0", sSAFE)
        k("s_cbranch_scc1 %s", lok)
        wait_ready(k, 108)
        announce(k)
        announce(k, 64)
        k("v_mov_b32 v110, 0")
        kv_refresh(k, 1)
        for p in range(4):
            for l in PFK(p): k(l)
        k.L(lok)
    k("s_mov_b32 s%d, 1", sSAFE)
    k("s_mov_b32 s%d, 0x42700000", sTHR)
    for l in PFK(4): k(l)
    k("s_waitcnt vmcnt(0)")
    k("v_mov_b32 %s, v110", v(KVM)); k("v_mov_b32 %s, v111", v(KVM + 1))
    for n in range(4):
        k(WVR(n, 0)); k(WVR(n, 1))
    for i in range(24): k("v_mov_b32 %s, 0", v(AQ + i))
    lp = k.lab("CHs"); ok = k.lab("CHok")
    k("s_mov_b32 s%d, 0", sCNT)
    k.L(lp)
    k("v_cmp_eq_u32 vcc, 0, %s", v(KVM))
    k("s_cbranch_vccz %s", ok)
    k("s_sleep 2")
    k("buffer_load_dword %s, %s, %s, s63 offen sc1", v(KVM), v(KVM + 1), W)
    k("s_waitcnt vmcnt(0)")
    k("s_add_u32 s%d, s%d, 1", sCNT, sCNT)
    k("s_cmp_lt_u32 s%d, s%d", sCNT, S_LIM)
    k("s_cbranch_scc1 %s", lp)
    k("s_mov_b32 s%d, 0", S_LIM)
    k.L(ok)
    k("v_cmp_ne_u32 vcc, 1, %s", v(KVM))
    k("s_or_b32 s44, vcc_lo, vcc_hi")
    for i in range(8): k("v_mov_b32 %s, %s", v(VT + i), v(VTN + i))
    k("s_waitcnt lgkmcnt(0)")
    stamp(k, 2, 2, wgreg=S_HEAD, vt=56)
    if k.copt.get('dst'): k("s_memrealtime s[96:97]"); k("s_waitcnt lgkmcnt(0)")
    stamp(k, 2, 4, wgreg=S_HEAD, vt=56, cyc=True)
    tick_init(k)
    if k.copt.get('plog2'):
        k("s_lshl_b32 s100, s%d, 2", S_HEAD)
        k("s_add_u32 s100, s100, s%d", S_WAVE)
        k("s_lshl_b32 s100, s100, 9")
        k("s_add_u32 s100, s100, 0x%x", TS + 8 * 65536)
    k("s_mov_b32 m0, s%d", sKTD)
    k("v_mov_b32 v1, 0")
    lslow = k.lab("CHslow"); ldone = k.lab("CHdone")
    k("s_cmp_lg_u32 s44, %d", 0 if not force_slow else 77)
    k("s_cbranch_scc1 %s", lslow)
    n0 = len(k.lines)
    k.L(lwarm)
    chain_loop(k, "", "F")
    k.L(lwend)
    o = getattr(k, 'copt', {})
    if o.get('free'):
        body = k.lines[n0:]; out = []
        for l in body:
            ls = l.strip()
            if 's100' in ls: out.append(l); continue
            if ls.startswith('s_cbranch_vccnz'): continue
            if ls.startswith('s_cbranch_vccz Fs0v'): l = l.replace('s_cbranch_vccz', 's_branch')
            if ls.startswith('s_cbranch_scc1 Frsm'): continue
            if 'novmem' in o['free'] and (ls.startswith('buffer_') or 'vmcnt' in ls): continue
            if 'nowait' in o['free'] and 'vmcnt' in ls: continue
            out.append(l)
        k.lines[n0:] = out
    k("s_branch %s", ldone)
    k.L(lslow)
    chain_loop(k, "sc1", "S")
    k.L(ldone)
    if k.copt.get('plog'):
        k("s_lshl_b32 s100, s%d, 2", S_HEAD)
        k("s_add_u32 s100, s100, s%d", S_WAVE)
        k("s_lshl_b32 s100, s100, 8")
        k("s_add_u32 s100, s100, 0x%x", TS + 8 * 65536)
        k("v_lshrrev_b32 v40, 2, %s", v(aL16))
        k("buffer_store_dword v1, v40, %s, s100 offen", s(S_WS, 4))
    tick_dump(k)
    k("s_waitcnt vmcnt(0)")
    stamp(k, 2, 3, wgreg=S_HEAD, vt=56)
    dstamp(k, 7, 56); dstamp(k, 5, 56, False, 94); dstamp(k, 6, 56, False, 96); dstamp(k, 3, 56, True, 98)
    stamp(k, 2, 5, wgreg=S_HEAD, vt=56, cyc=True)
```

```python
from asmlib import *
NAME = "sequential_preLN__memory_aug_recurrent_mem_tr__glu_gated_swiglu__prompt"
XN    = 0x0000000
QIMG  = 0x0200000
KIMG  = 0x1200000
VIMG  = 0x2200000
KM    = 0x3220000
VM    = 0x3A00000
PART  = 0x4000000
HIMG  = 0x6000000
HNIMG = 0x6200000
ACT   = 0x6400000
HOP1  = 0x7000000
HOP2  = 0x7100000
FLAGS = 0x7200000
WS_BYTES = 268435456
KA = dict(x=0, mem0=8, Wq=16, Wk=24, Wv=32, Wo=40, w1=64, w3=72, w2=80, out=88, dbg=96, ws=104)
SZ = dict(x=2097152, mem0=8192, Wq=4194304, Wk=4194304, Wv=4194304, Wo=4194304, w1=512*1376*2, w3=512*1376*2,
          w2=1376*512*2, out=2097152, dbg=256, ws=WS_BYTES)

def load_srd(k, name, sreg):
    k("s_load_dwordx2 %s, s[0:1], %d", s(sreg, 2), KA[name])
def fin_srd(k, name, sreg):
    k("s_and_b32 %s, %s, 0xffff", s(sreg + 1), s(sreg + 1))
    k("s_mov_b32 %s, 0x%x", s(sreg + 2), SZ[name])
    k("s_mov_b32 %s, 0x20000", s(sreg + 3))

def kernel_header(k, name):
    k(".globl %s", name)
    k(".p2align 8")
    k(".type %s,@function", name)
    k.L(name)

def kernel_desc(name, vgpr=512, accum=256, sgpr=102):
    return """.amdhsa_kernel %s
  .amdhsa_next_free_vgpr %d
  .amdhsa_next_free_sgpr %d
  .amdhsa_accum_offset %d
  .amdhsa_group_segment_fixed_size 0
  .amdhsa_kernarg_size 112
  .amdhsa_user_sgpr_count 2
  .amdhsa_user_sgpr_kernarg_segment_ptr 1
  .amdhsa_system_sgpr_workgroup_id_x 1
  .amdhsa_float_denorm_mode_32 3
  .amdhsa_float_denorm_mode_16_64 3
.end_amdhsa_kernel
""" % (name, vgpr, sgpr, accum)

def row16_allreduce_add(k, r, tmp=None):
    for sh in (1, 2, 4, 8):
        k("v_add_f32_dpp %s, %s, %s row_ror:%d row_mask:0xf bank_mask:0xf", v(r), v(r), v(r), sh)

def round_bf16(k, dst, src):
    k("v_cvt_pk_bf16_f32 %s, %s, %s", v(dst), v(src), v(src))
    k("v_lshlrev_b32 %s, 16, %s", v(dst), v(dst))

TS = 0x7800000
def stamp(k, slot, idx, S_WS=8, wgreg=2, vt=2, st=60, cyc=False):
    if not getattr(k, 'stamps', False): return
    l = k.lab("ST")
    k("s_cmp_lg_u32 s4, 0")
    k("s_cbranch_scc1 %s", l)
    k("%s %s", "s_memtime" if cyc else "s_memrealtime", s(st, 2))
    k("s_lshl_b32 %s, s%d, 7", s(st + 2), wgreg)
    k("s_add_u32 %s, %s, 0x%x", s(st + 2), s(st + 2), TS + slot * 65536 + idx * 8)
    k("v_mov_b32 %s, 0", v(vt + 2))
    k("s_waitcnt lgkmcnt(0)")
    k("v_mov_b32 %s, %s", v(vt), s(st))
    k("v_mov_b32 %s, %s", v(vt + 1), s(st + 1))
    k("buffer_store_dwordx2 %s, %s, %s, %s offen", v(vt, 2), v(vt + 2), s(S_WS, 4), s(st + 2))
    if not ((slot == 2 and idx in (1, 2, 4)) or slot == 0): k("s_waitcnt vmcnt(0)")
    k.L(l)

F_XN = 0x000; F_QF = 0x1000; F_KF = 0x2000; F_BF = 0x6000; F_RF = 0x9000; F_UF = 0xC000
DBG_READY = 224

def lstamp(k, idx):
    if getattr(k, 'copt', {}).get('ilog') and idx in (1, 4) and getattr(k, 'inworker', False):
        l = k.lab("IL")
        k("s_cmp_lg_u32 s4, 0"); k("s_cbranch_scc1 %s", l)
        k("s_memrealtime s[92:93]"); k("s_lshl_b32 s94, s5, 9"); k("s_lshl_b32 s95, s7, 3"); k("s_add_u32 s94, s94, s95")
        k("s_add_u32 s94, s94, 0x%x", TS + 16 * 65536 + (4 if idx == 4 else 0))
        k("s_waitcnt lgkmcnt(0)"); k("v_mov_b32 v2, s92"); k("v_mov_b32 v3, 0")
        k("buffer_store_dword v2, v3, s[8:11], s94 offen")
        k.L(l)
    if getattr(k, 'stamps', False) or (getattr(k, 'copt', {}).get('dst') and idx in (0, 1)): k("s_memrealtime s[%d:%d]", 76 + 2 * idx, 77 + 2 * idx)
def lstamp_dump(k, wgreg):
    if not getattr(k, 'stamps', False): return
    l = k.lab("LS")
    k("s_cmp_lg_u32 s4, 0")
    k("s_cbranch_scc1 %s", l)
    k("s_waitcnt lgkmcnt(0)")
    k("s_lshl_b32 s62, s%d, 7", wgreg)
    k("s_add_u32 s62, s62, 0x%x", TS + 4 * 65536)
    k("v_mov_b32 v122, 0")
    for i in range(8):
        k("v_mov_b32 v120, s%d", 76 + 2 * i); k("v_mov_b32 v121, s%d", 77 + 2 * i)
        k("buffer_store_dwordx2 v[120:121], v122, s[8:11], s62 offen offset:%d", 8 * i)
    k.L(l)
DBG_T = 228

def dstamp(k, word, vt, neg=False, sreg=None):
    if not getattr(k, 'copt', {}).get('dst'): return
    l = k.lab("DS")
    k("s_cmp_lg_u32 s4, 0")
    k("s_cbranch_scc1 %s", l)
    if sreg is None:
        k("s_memrealtime s[60:61]")
        k("s_waitcnt lgkmcnt(0)")
        sreg = 60
    k("s_and_b32 s62, s%d, 0xffffff", sreg)
    if neg: k("s_xor_b32 s62, s62, 0xffffff")
    k("v_mov_b32 %s, s62", v(vt)); k("v_mov_b32 %s, 0", v(vt + 1))
    k("s_mov_b64 exec, 1")
    k("buffer_atomic_umax %s, %s, s[24:27], 0 offen offset:%d sc1", v(vt), v(vt + 1), 4 * word)
    k("s_mov_b64 exec, -1")
    k.L(l)
DBG_READY2 = 232
```

```python
from common import *

S_WS = 8
S_W  = 12
S_X  = 16
S_O  = 20
S_DBG = 24
S_WAVE = 4
ST = "sc1"
LD = "sc1"

def lane_wave(k):
    k("v_and_b32 v1, 63, v0")
    k("v_lshrrev_b32 v2, 6, v0")
    k("v_readfirstlane_b32 s%d, v2", S_WAVE)

S_SPIN = 6

def wait_ready(k, vt, off=DBG_READY):
    lp = k.lab("rdy"); ok = k.lab("rdyok")
    k("s_mov_b32 s42, 0")
    k("v_mov_b32 %s, 0", v(vt + 1))
    k.L(lp)
    k("buffer_load_dword %s, %s, %s, 0 offen offset:%d sc1", v(vt), v(vt + 1), s(S_DBG, 4), off)
    k("s_waitcnt vmcnt(0)")
    k("v_cmp_eq_u32 vcc, 0, %s", v(vt))
    k("s_cbranch_vccz %s", ok)
    k("s_sleep 1")
    k("s_add_u32 s42, s42, 1")
    k("s_cmp_lt_u32 s42, s%d", S_SPIN)
    k("s_cbranch_scc1 %s", lp)
    k("s_mov_b32 s%d, 0", S_SPIN)
    k.L(ok)

def wait_flags(k, vaddr, s_off, s_seg, vt, scnt=59, wave0=False):
    lp = k.lab("wf"); ok = k.lab("wfok")
    if wave0:
        k("s_cmp_lg_u32 s%d, 0", S_WAVE)
        k("s_cbranch_scc1 %s", ok)
    k("s_mov_b32 s%d, 0", scnt)
    k.L(lp)
    k("buffer_load_dword %s, %s, %s, s%d offen sc1", v(vt), v(vaddr), s(S_WS, 4), s_off)
    k("s_waitcnt vmcnt(0)")
    k("v_cmp_ge_u32 vcc, s%d, %s", s_seg, v(vt))
    k("s_cbranch_vccz %s", ok)
    k("s_sleep %d", getattr(k, 'copt', {}).get('slp', 1))
    k("s_add_u32 s%d, s%d, 1", scnt, scnt)
    k("s_cmp_lt_u32 s%d, s%d", scnt, S_SPIN)
    k("s_cbranch_scc1 %s", lp)
    k("s_mov_b32 s%d, 0", S_SPIN)
    k.L(ok)
    if wave0: k("s_barrier")

def wait_flags_fast(k, vaddr, s_off, s_seg, vts, scnt=59):
    lp = k.lab("wf"); ok = k.lab("wfok")
    n = len(vts)
    ld = lambda r: k("buffer_load_dword %s, %s, %s, s%d offen sc1", v(r), v(vaddr), s(S_WS, 4), s_off)
    k("s_cmp_lg_u32 s%d, 0", S_WAVE)
    k("s_cbranch_scc1 %s", ok)
    k("s_mov_b32 s%d, 0", scnt)
    ld(vts[0])
    k("s_waitcnt vmcnt(0)")
    k("v_cmp_ge_u32 vcc, s%d, %s", s_seg, v(vts[0]))
    k("s_cbranch_vccz %s", ok)
    for r in vts[:-1]:
        ld(r); k("s_sleep %d", k.copt.get('slf', 3))
    k.L(lp)
    for i in range(n):
        ld(vts[(i - 1) % n])
        k("s_waitcnt vmcnt(%d)", n - 1)
        k("v_cmp_ge_u32 vcc, s%d, %s", s_seg, v(vts[i]))
        k("s_cbranch_vccz %s", ok)
        k("s_sleep %d", k.copt.get('slf', 3))
    k("s_add_u32 s%d, s%d, 1", scnt, scnt)
    k("s_cmp_lt_u32 s%d, s%d", scnt, S_SPIN)
    k("s_cbranch_scc1 %s", lp)
    k("s_mov_b32 s%d, 0", S_SPIN)
    k.L(ok)
    k("s_barrier")

def set_flag(k, s_off, val, vt, drain=True):
    l = k.lab("sf")
    if drain:
        k("s_waitcnt vmcnt(0)")
        k("s_barrier")
    k("s_cmp_lg_u32 s%d, 0", S_WAVE)
    k("s_cbranch_scc1 %s", l)
    k("v_mov_b32 %s, %s", v(vt), val)
    k("v_mov_b32 %s, 0", v(vt + 1))
    k("s_mov_b64 exec, 1")
    k("buffer_store_dword %s, %s, %s, s%d offen sc1", v(vt), v(vt + 1), s(S_WS, 4), s_off)
    k("s_mov_b64 exec, -1")
    k.L(l)

def ln_finish(k, X, n, mean, var, t0, t1, OUT):
    round_bf16(k, mean, mean)
    round_bf16(k, var, var)
    k("v_add_f32 %s, 0x3727c5ac, %s", v(var), v(var))
    round_bf16(k, var, var)
    k("v_sqrt_f32 %s, %s", v(var), v(var))
    round_bf16(k, var, var)
    k("v_rcp_f32 %s, %s", v(var), v(var))
    for i in range(0, n, 2):
        k("v_sub_f32 %s, %s, %s", v(X + i), v(X + i), v(mean))
        k("v_sub_f32 %s, %s, %s", v(X + i + 1), v(X + i + 1), v(mean))
        k("v_cvt_pk_bf16_f32 %s, %s, %s", v(t0), v(X + i), v(X + i + 1))
        k("v_lshlrev_b32 %s, 16, %s", v(X + i), v(t0))
        k("v_and_b32 %s, 0xffff0000, %s", v(X + i + 1), v(t0))
        k("v_mul_f32 %s, %s, %s", v(X + i), v(X + i), v(var))
        k("v_mul_f32 %s, %s, %s", v(X + i + 1), v(X + i + 1), v(var))
        k("v_cvt_pk_bf16_f32 %s, %s, %s", v(OUT + i // 2), v(X + i), v(X + i + 1))

def role_ln1(k, s_tile, ntiles=1, after=None, mid=None):
    k.c("---- LN1 role")
    k("v_lshrrev_b32 v2, 4, v1")
    k("v_and_b32 v3, 15, v1")
    k("s_lshl_b32 s40, s%d, 2", S_WAVE)
    k("v_add_u32 v2, s40, v2")
    k("v_lshlrev_b32 v4, 10, v2")
    k("v_lshl_add_u32 v4, v3, 4, v4")
    k("s_lshl_b32 s41, s%d, 14", s_tile)
    RAW = 64
    for ti in range(ntiles):
        k("s_add_u32 s43, s41, %d", ti * 32 * 16384)
        for it in range(4):
            k("buffer_load_dwordx4 %s, v4, %s, s43 offen offset:%d", v(RAW + 16 * ti + 4 * it, 4), s(S_X, 4), it * 256)
    k("v_lshrrev_b32 v5, 2, v3")
    k("v_lshlrev_b32 v5, 10, v5")
    k("v_and_b32 v6, 3, v3")
    k("v_lshl_add_u32 v5, v6, 8, v5")
    k("v_lshl_add_u32 v5, v2, 4, v5")
    X = 32
    k("s_waitcnt vmcnt(%d)", 4 * (ntiles - 1))
    if mid: mid(k)
    k("s_mov_b32 s43, 0")
    lp = k.lab("LN1l")
    k.L(lp)
    for i in range(16):
        k("v_lshlrev_b32 %s, 16, %s", v(X + 2 * i), v(RAW + i))
        k("v_and_b32 %s, 0xffff0000, %s", v(X + 2 * i + 1), v(RAW + i))
    k("v_add_f32 v24, %s, %s", v(X), v(X + 1))
    k("v_add_f32 v25, %s, %s", v(X + 2), v(X + 3))
    for i in range(4, 32, 2):
        k("v_add_f32 v24, v24, %s", v(X + i))
        k("v_add_f32 v25, v25, %s", v(X + i + 1))
    k("v_add_f32 v24, v24, v25")
    row16_allreduce_add(k, 24)
    k("v_mul_f32 v24, 0x3b000000, v24")
    k("v_mov_b32 v25, 0")
    k("v_mov_b32 v26, 0")
    for i in range(0, 32, 2):
        k("v_sub_f32 v27, %s, v24", v(X + i))
        k("v_sub_f32 v28, %s, v24", v(X + i + 1))
        k("v_fmac_f32 v25, v27, v27")
        k("v_fmac_f32 v26, v28, v28")
    k("v_add_f32 v25, v25, v26")
    row16_allreduce_add(k, 25)
    k("v_mul_f32 v25, 0x3b000000, v25")
    ln_finish(k, X, 32, 24, 25, 26, 27, 8)
    for it in range(4):
        k("s_add_u32 s42, s41, 0x%x", XN + it * 4096)
        k("buffer_store_dwordx4 %s, v5, %s, s42 offen %s", v(8 + 4 * it, 4), s(S_WS, 4), ST)
    if ntiles > 1:
        k("s_add_u32 s43, s43, 1")
        if after: after(k, 43)
        for i in range(0, 16 * (ntiles - 1), 2): k("v_mov_b64 %s, %s", v(RAW + i, 2), v(RAW + 16 + i, 2))
        k("s_add_u32 s41, s41, %d", 32 * 16384)
        k("s_cmp_lt_u32 s43, %d", ntiles)
        k("s_cbranch_scc1 %s", lp)

def stage_rows256(k, srd, s_base, pitch, nrows, vaddr, lds_off=0, depth=None):
    k("v_lshrrev_b32 %s, 4, v1", v(vaddr + 1))
    k("v_lshlrev_b32 %s, 2, %s", v(vaddr), v(vaddr + 1))
    k("v_xor_b32 %s, %s, v1", v(vaddr), v(vaddr))
    k("v_and_b32 %s, 15, %s", v(vaddr), v(vaddr))
    k("v_lshlrev_b32 %s, 4, %s", v(vaddr), v(vaddr))
    k("s_mov_b32 s44, %d", pitch)
    k("v_mad_u32_u24 %s, %s, s44, %s", v(vaddr), v(vaddr + 1), v(vaddr))
    k("s_mul_i32 s44, s%d, %d", S_WAVE, 4 * pitch)
    k("s_add_u32 s44, s44, s%d", s_base)
    k("s_lshl_b32 s45, s%d, 10", S_WAVE)
    if lds_off: k("s_add_u32 s45, s45, %d", lds_off)
    n = nrows // 16
    for i in range(n):
        k("s_mov_b32 m0, s45")
        k("buffer_load_dwordx4 %s, %s, s44 offen lds", v(vaddr), s(srd, 4))
        if depth is not None: k("s_waitcnt vmcnt(%d)", depth)
        if i < n - 1:
            k("s_add_u32 s44, s44, %d", 16 * pitch)
            k("s_add_u32 s45, s45, 4096")

def frag_addr256(k, va, vtmp, lds_off=0):
    k("v_lshrrev_b32 %s, 4, v1", v(va))
    k("v_lshlrev_b32 %s, 3, %s", v(va), v(va))
    k("v_bfe_u32 %s, v1, 2, 2", v(vtmp))
    k("v_add_u32 %s, %s, %s", v(va), v(va), v(vtmp))
    k("v_lshlrev_b32 %s, 8, %s", v(va), v(va))
    k("v_xor_b32 %s, s%d, %s", v(vtmp), S_WAVE, v(vtmp))
    k("v_lshl_add_u32 %s, %s, 6, %s", v(va), v(vtmp), v(va))
    k("v_and_b32 %s, 3, v1", v(vtmp))
    k("v_lshl_add_u32 %s, %s, 4, %s", v(va), v(vtmp), v(va))
    if lds_off: k("v_add_u32 %s, %d, %s", v(va), lds_off, v(va))
    k("v_add_u32 %s, 0x10000, %s", v(va + 1), v(va))

def read_frags256(k, va, WREG):
    for ks in range(16):
        for t in range(2):
            for y in range(2):
                off = ks * 8192 + y * 1024 + 8 * t
                k("ds_read_b64_tr_b16 %s, %s offset:%d", u(WREG + (t * 16 + ks) * 4 + 2 * y, 2),
                  v(va + (off >> 16)), off & 0xffff)
        if ks % 3 == 2: k("s_waitcnt lgkmcnt(4)")
    k("s_waitcnt lgkmcnt(0)")

def seg_gemm_loop(k, WREG, w_is_a, s_src, src_stride, niter_sreg, epilogue, n_epi_vm, pre_dma=None, publish=None, tag="G"):
    PF = 8; NB = 16; FW = 16; ACC = 80
    k("v_lshlrev_b32 v4, 4, v1")
    k("v_mov_b32 v5, v4")
    k("s_lshl_b32 s48, s%d, 13", S_WAVE)
    k("s_add_u32 s49, s%d, s48", s_src)
    k("s_mov_b32 s50, s48")
    k("s_mov_b32 s51, 0")
    k("s_mov_b32 s52, 0")
    def dma_piece(p):
        if p == 0:
            if pre_dma: pre_dma(k)
            k("s_cmp_lt_u32 s52, s%d", niter_sreg)
            k("s_cselect_b32 s53, s49, 0")
            k("s_mov_b32 m0, s50")
        if p == 4:
            k("s_add_u32 s53, s53, 4096")
            k("s_add_u32 m0, s50, 4096")
        k("buffer_load_dwordx4 v4, %s, s53 offen offset:%d %s lds", s(S_WS, 4), (p % 4) * 1024, LD)
        if p == 7:
            k("s_add_u32 s49, s49, %s", src_stride)
            k("s_add_u32 s50, s50, 0x8000")
            k("s_and_b32 s50, s50, 0x1ffff")
            k("s_add_u32 s52, s52, 1")
    for i in range(2):
        for p in range(8): dma_piece(p)
    dma_piece(0); dma_piece(1)
    for j in range(n_epi_vm): k("buffer_load_dword v7, v4, %s, 0 offen", s(S_WS, 4))
    k("s_waitcnt vmcnt(%d)", 10 + n_epi_vm)
    k("s_barrier")
    for f in range(PF):
        k("ds_read_b128 %s, v5 offset:%d", v(FW + 4 * (f % NB), 4), f * 1024)
    lp = k.lab(tag + "loop")
    k.L(lp)
    k("v_add_u32 v6, 0x8000, v5")
    k("v_and_b32 v6, 0x1ffff, v6")
    for f in range(32):
        mt, ks = f // 16, f % 16
        if f == 32 - PF:
            k("s_waitcnt vmcnt(%d)", 8 + n_epi_vm)
            k("s_barrier")
            if publish: publish(k)
        g = f + PF
        if g < 32: k("ds_read_b128 %s, v5 offset:%d", v(FW + 4 * (g % NB), 4), g * 1024)
        else: k("ds_read_b128 %s, v6 offset:%d", v(FW + 4 * (g % NB), 4), (g - 32) * 1024)
        k("s_waitcnt lgkmcnt(%d)", PF)
        for t in range(2):
            acc = v(ACC + (mt * 2 + t) * 4, 4)
            wf = u(WREG + (t * 16 + ks) * 4, 4); xf = v(FW + 4 * (f % NB), 4)
            A, B = (wf, xf) if w_is_a else (xf, wf)
            k("v_mfma_f32_16x16x32_bf16 %s, %s, %s, %s", acc, A, B, "0" if ks == 0 else acc)
            if t == 0 and f % 4 == 0: dma_piece(((f + 8) // 4) % 8)
    epilogue(k, ACC)
    k("v_mov_b32 v5, v6")
    k("s_add_u32 s51, s51, 1")
    k("s_cmp_lt_u32 s51, s%d", niter_sreg)
    k("s_cbranch_scc1 %s", lp)
    k("s_waitcnt vmcnt(0) lgkmcnt(0)")

def role_qkv(k, s_idx, pre_dma=None, publish=None, pre_loop=None, post_dma=None):
    k.c("---- QKV role")
    stamp(k, 1, 0, vt=120)
    WREG = 128
    k("s_lshr_b32 s32, s%d, 6", s_idx)
    k("s_bfe_u32 s33, s%d, 0x50001", s_idx)
    k("s_and_b32 s34, s%d, 1", s_idx)
    k("s_lshl_b32 s35, s32, 3")
    k("s_add_u32 s35, s35, 24")
    k("s_cmp_eq_u32 s32, 2")
    k("s_cselect_b32 s35, 16, s35")
    k("s_load_dwordx2 %s, s[0:1], s35", s(S_W, 2))
    k("s_lshl_b32 s36, s33, 8")
    k("s_waitcnt lgkmcnt(0)")
    fin_srd(k, 'Wq', S_W)
    stage_rows256(k, S_W, 36, 8192, 512, 8)
    if post_dma: post_dma(k)
    frag_addr256(k, 10, 12)
    k("s_waitcnt vmcnt(0)")
    k("s_barrier")
    stamp(k, 1, 1, vt=120)
    read_frags256(k, 10, WREG)
    k("s_barrier")
    stamp(k, 1, 2, vt=120)
    k("s_lshl_b32 s37, s32, 24")
    k("s_add_u32 s37, s37, 0x%x", KIMG)
    k("s_cmp_eq_u32 s32, 2")
    k("s_cselect_b32 s37, 0x%x, s37", QIMG)
    k("s_lshl_b32 s38, s33, 13")
    k("s_add_u32 s37, s37, s38")
    k("s_lshl_b32 s38, s34, 18")
    k("s_add_u32 s37, s37, s38")
    k("s_lshl_b32 s38, s34, 15")
    if XN: k("s_add_u32 s38, s38, 0x%x", XN)
    k("s_mov_b32 s39, 32")
    if pre_loop: pre_loop(k)
    lv = k.lab("QKVv"); lend = k.lab("QKVend")
    k("s_cmp_eq_u32 s32, 1")
    k("s_cbranch_scc1 %s", lv)
    def epi_qk(k, ACC):
        for mt in range(2):
            for t in range(2):
                for h in range(2):
                    r = ACC + (mt * 2 + t) * 4 + 2 * h
                    k("v_cvt_pk_bf16_f32 %s, %s, %s", v(112 + mt * 4 + t * 2 + h), v(r), v(r + 1))
        k("buffer_store_dwordx4 v[112:115], v4, %s, s37 offen %s", s(S_WS, 4), ST)
        k("s_add_u32 s40, s37, 4096")
        k("buffer_store_dwordx4 v[116:119], v4, %s, s40 offen %s", s(S_WS, 4), ST)
        k("s_add_u32 s37, s37, 0x80000")
    k("s_lshl_b32 s40, s%d, 10", S_WAVE)
    k("s_add_u32 s37, s37, s40")
    seg_gemm_loop(k, WREG, True, 38, "0x10000", 39, epi_qk, 2, pre_dma, publish, tag="QK")
    k("s_branch %s", lend)
    k.L(lv)
    def epi_v(k, ACC):
        for t in range(2):
            for mt in range(2):
                for h in range(2):
                    r = ACC + (mt * 2 + t) * 4 + 2 * h
                    k("v_cvt_pk_bf16_f32 %s, %s, %s", v(112 + t * 4 + mt * 2 + h), v(r), v(r + 1))
        k("buffer_store_dwordx4 v[112:115], v4, %s, s37 offen %s", s(S_WS, 4), ST)
        k("buffer_store_dwordx4 v[116:119], v4, %s, s37 offen offset:1024 %s", s(S_WS, 4), ST)
        k("buffer_store_dwordx4 v[120:123], v4, %s, s41 offen %s", s(S_WS, 4), ST)
        k("s_add_u32 s37, s37, 0x80000")
        k("s_add_u32 s41, s41, 0x40000")
    k("s_lshl_b32 s40, s%d, 11", S_WAVE)
    k("s_add_u32 s37, s37, s40")
    k("s_lshl_b32 s41, s34, 17")
    k("s_lshl_b32 s40, s33, 12")
    k("s_add_u32 s41, s41, s40")
    k("s_lshl_b32 s40, s%d, 10", S_WAVE)
    k("s_add_u32 s41, s41, s40")
    k("s_add_u32 s41, s41, 0x%x", KM)
    for i in range(4): k("v_mov_b32 v%d, -1", 120 + i)
    seg_gemm_loop(k, WREG, False, 38, "0x10000", 39, epi_v, 3, pre_dma, publish, tag="V")
    k.L(lend)
    stamp(k, 1, 3, vt=120)
```

```python
from roles import *
from chain import xmax
import struct
def f2u(x): return struct.unpack('<I', struct.pack('<f', x))[0]
CSC = 0.08838834764831845 * 1.4426950408889634
def MF(d, A, B, first): return "v_mfma_f32_16x16x32_bf16 %s, %s, %s, %s" % (v(d, 4), u(A, 4), u(B, 4), "0" if first else v(d, 4))
def M16(d, A, B): return "v_mfma_f32_16x16x16_bf16 %s, %s, %s, %s" % (v(d, 4), v(A, 2), v(B, 2), v(d, 4))
def CV(d, a_, b_): return "v_cvt_pk_bf16_f32 %s, %s, %s" % (v(d), v(a_), v(b_))

def xsum(k, r, tmp):
    k("v_mov_b32 %s, %s", v(tmp), v(r))
    k("v_permlane32_swap_b32 %s, %s", v(r), v(tmp))
    k("v_add_f32 %s, %s, %s", v(r), v(r), v(tmp))
    k("v_mov_b32 %s, %s", v(tmp), v(r))
    k("v_permlane16_swap_b32 %s, %s", v(r), v(tmp))
    k("v_add_f32 %s, %s, %s", v(r), v(r), v(tmp))

def last_seg(k, dst, s_seg):
    k("s_add_u32 s%d, s%d, 60", dst, s_seg)
    k("s_cmp_eq_u32 s%d, 0", s_seg)
    k("s_cselect_b32 s%d, 63, s%d", dst, dst)

def bc_stage(k, s_idx):
    load_srd(k, 'Wo', S_W)
    k("s_lshr_b32 s32, s%d, 2", s_idx)
    k("s_and_b32 s33, s%d, 3", s_idx)
    k("s_lshl_b32 s36, s32, 19")
    k("s_lshl_b32 s37, s33, 8")
    k("s_add_u32 s36, s36, s37")
    k("s_waitcnt lgkmcnt(0)")
    fin_srd(k, 'Wo', S_W)
    stage_rows256(k, S_W, 36, 1024, 512, 8, depth=k.copt.get('wdb'))

def role_bc(k, s_idx, s_seg, nstride, wait_qkv=None, wait_kvm=None, publish=None, hint=None):
    k.c("---- BC role")
    W = s(S_WS, 4); WREG = 256
    lst = k.lab("BCst")
    if k.copt.get('ew', 0):
        k("s_cmp_eq_u32 s%d, 0", s_seg)
        k("s_cbranch_scc1 %s", lst)
    bc_stage(k, s_idx)
    k.L(lst)
    frag_addr256(k, 10, 12)
    k("s_waitcnt vmcnt(0)")
    k("s_barrier")
    read_frags256(k, 10, WREG)
    k("s_barrier")
    QF, KF, VF, KV, XK = 16, 48, 80, 112, 128
    T, TM, P, PM, OT, FW, ACC = 144, 156, 164, 172, 180, 192, 180
    aL16, aXW, aXR, aOW, aOR = 4, 5, 6, 7, 8
    k("v_lshlrev_b32 v4, 4, v1")
    k("v_and_b32 v10, 15, v1")
    k("v_lshrrev_b32 v11, 4, v1")
    k("v_bfe_u32 v12, v1, 2, 2")
    k("v_and_b32 v13, 3, v1")
    k("s_mul_i32 s38, s%d, 5120", S_WAVE)
    k("s_add_u32 s38, s38, 65536")
    k("v_mul_u32_u24 v14, 320, v11")
    k("v_lshl_add_u32 v14, v10, 3, v14")
    k("v_add_u32 v%d, s38, v14", aXW)
    k("v_mul_u32_u24 v14, 320, v13")
    k("v_lshrrev_b32 v15, 2, v1")
    k("v_lshl_add_u32 v14, v15, 3, v14")
    k("v_add_u32 v%d, s38, v14", aXR)
    k("s_lshl_b32 s38, s%d, 12", S_WAVE)
    k("v_add_u32 v%d, s38, v4", aOW)
    k("v_mov_b32 v%d, v4", aOR)
    k("v_lshlrev_b32 v14, 2, v11")
    for j in range(4):
        k("v_add_u32 v15, %d, v14", j)
        k("v_cmp_gt_u32 %s, v15, v10", s(64 + 2 * j, 2))
    k("v_mov_b32 v9, 0xff800000")
    k("s_mov_b32 s41, 0x%x", f2u(CSC))
    k("s_lshl_b32 s34, s32, 2")
    k("s_add_u32 s34, s34, s%d", S_WAVE)
    k("s_lshl_b32 s35, s34, 13")
    k("s_lshl_b32 s39, s34, 12")
    k("s_lshl_b32 s40, s33, 2")
    k("s_add_u32 s40, s40, s%d", S_WAVE)
    k("s_lshl_b32 s40, s40, 8")
    k("s_lshl_b32 s38, s32, 13")
    k("s_add_u32 s40, s40, s38")
    k("s_add_u32 s40, s40, 0x%x", PART)
    k("v_lshlrev_b32 v184, 16, v12")
    k("v_lshl_add_u32 v184, v11, 6, v184")
    k("v_lshl_add_u32 v184, v13, 4, v184")
    k("v_add_u32 v185, 4096, v184")
    def load_qkv(sseg):
        k("s_lshl_b32 s45, s%d, 18", sseg)
        k("s_add_u32 s45, s45, s35")
        for base, R in ((QIMG, QF), (KIMG, KF), (VIMG, VF)):
            for hf in range(2):
                k("s_add_u32 s43, s45, 0x%x", base + hf * 4096)
                for i in range(4):
                    k("buffer_load_dwordx4 %s, v4, %s, s43 offen offset:%d %s", a(128 + R - QF + 16 * hf + 4 * i, 4), W, i * 1024, LD)
    if hint:
        last_seg(k, 42, s_seg)
        k("s_lshl_b32 s42, s42, 19")
        k("s_add_u32 s42, s42, s40")
        k("s_add_u32 s43, s42, 0x40000")
        for i in range(4): k("v_mov_b32 v%d, -1", 188 + i)
        for n in range(k.narm):
            for sr in (42, 43):
                for t in range(2): k("buffer_store_dwordx4 v[188:191], v%d, %s, s%d offen %s", 184 + t, W, sr, ST)
                k("s_sub_u32 s%d, s%d, 0x%x", sr, sr, 3 << 19)
    if wait_qkv: wait_qkv(k, s_seg)
    load_qkv(s_seg)
    k("s_waitcnt vmcnt(0)")
    lp = k.lab("BCl")
    k.L(lp)
    k("s_waitcnt vmcnt(4)")
    k("s_lshl_b32 s42, s%d, 17", s_seg)
    k("s_add_u32 s42, s42, s39")
    k("s_add_u32 s42, s42, 0x%x", KM)
    def ldkv():
        for i in range(4):
            k("buffer_load_dwordx4 %s, v4, %s, s42 offen offset:%d %s", v(KV + 4 * i, 4), W, i * 1024, LD)
    ldkv()
    QA, KA = 384, 416
    cp = ["v_accvgpr_read_b32 v%d, a%d" % (QF + i, 128 + i) for i in list(range(32)) + list(range(64, 96))]
    for kb in range(4):
        for m_ in (MF(T, KA + 4 * kb, QA + 4 * kb, kb == 0), MF(T + 4, KA + 4 * kb, QA + 16 + 4 * kb, kb == 0), MF(T + 8, KA + 16 + 4 * kb, QA + 16 + 4 * kb, kb == 0)):
            k(m_); k(cp.pop(0)); k(cp.pop(0))
    for x in cp: k(x)
    for j in range(4):
        k("v_cndmask_b32 %s, %s, v9, %s", v(T + j), v(T + j), s(64 + 2 * j, 2))
        k("v_cndmask_b32 %s, %s, v9, %s", v(T + 8 + j), v(T + 8 + j), s(64 + 2 * j, 2))
    MX, SM, TMP, M2, S2 = 10, 12, 14, 180, 182
    vals = [[T + j for j in range(4)], [T + 4 + j for j in range(8)]]
    for mt in range(2):
        vs = vals[mt]
        k("v_max_f32 %s, %s, %s", v(MX + mt), v(vs[0]), v(vs[1]))
        for i in range(2, len(vs), 2):
            k("v_max3_f32 %s, %s, %s, %s", v(MX + mt), v(vs[i]), v(vs[i + 1]), v(MX + mt))
    for mt in range(2): xmax(k, MX + mt, TMP + mt)
    for mt in range(2):
        k("v_mul_f32 %s, s41, %s", v(MX + mt), v(MX + mt))
        for r in vals[mt]: k("v_fma_f32 %s, %s, s41, -%s", v(r), v(r), v(MX + mt))
        for r in vals[mt]: k("v_exp_f32 %s, %s", v(r), v(r))
    for mt in range(2):
        vs = vals[mt]
        k("v_add_f32 %s, %s, %s", v(SM + mt), v(vs[0]), v(vs[1]))
        for r in vs[2:]: k("v_add_f32 %s, %s, %s", v(SM + mt), v(SM + mt), v(r))
    k("v_mov_b32 %s, 0", v(P + 2)); k("v_mov_b32 %s, 0", v(P + 3))
    for mt in range(2):
        k("v_mov_b32 %s, 0", v(PM + 4 * mt + 1)); k("v_mov_b32 %s, 0", v(PM + 4 * mt + 2))
    lnp = k.lab("BCnp"); lnw = k.lab("BCnw")
    k("s_waitcnt vmcnt(0)")
    k("s_cmp_lt_u32 s%d, %d", s_seg, nstride)
    k("s_cbranch_scc1 %s", lnp)
    k("s_sub_u32 s44, s%d, %d", s_seg, nstride)
    if publish: publish(k, 44)
    k.L(lnp)
    k("s_add_u32 s44, s%d, %d", s_seg, nstride)
    k("s_cmp_ge_u32 s44, 64")
    k("s_cbranch_scc1 %s", lnw)
    if wait_qkv: wait_qkv(k, 44)
    load_qkv(44)
    k.L(lnw)
    lstamp(k, 0)
    lpk = k.lab("BCk"); okk = k.lab("BCko")
    k("s_mov_b32 s59, 0")
    k.L(lpk)
    k("v_max3_u32 v2, %s, %s, %s", v(KV), v(KV + 4), v(KV + 8))
    k("v_max_u32 v2, v2, %s", v(KV + 12))
    k("v_cmp_eq_u32 vcc, -1, v2")
    k("s_cbranch_vccz %s", okk)
    k("s_sleep %d", getattr(k, 'copt', {}).get('slpk', 2))
    ldkv()
    k("s_waitcnt vmcnt(0)")
    k("s_add_u32 s59, s59, 1")
    k("s_cmp_lt_u32 s59, s%d", S_SPIN)
    k("s_cbranch_scc1 %s", lpk)
    k("s_mov_b32 s%d, 0", S_SPIN)
    k.L(okk)
    lstamp(k, 1)
    k(".aw_on")
    for i in range(4):
        k("ds_write_b32 v%d, %s offset:%d", aXW, v(KV + 4 * i), i * 1280)
        k("ds_write_b32 v%d, %s offset:%d", aXW, v(KV + 4 * i + 1), i * 1280 + 128)
        for y in range(2):
            k("ds_read_b64_tr_b16 %s, v%d offset:%d", v(XK + 4 * i + 2 * y, 2), aXR, i * 1280 + y * 128)
    lstamp(k, 2)
    for kb in range(4):
        k(MF(TM, XK + 4 * kb, QF + 4 * kb, kb == 0))
        k(MF(TM + 4, XK + 4 * kb, QF + 16 + 4 * kb, kb == 0))
    for mt in range(2):
        k("v_mul_f32 %s, s41, %s", v(TM + 4 * mt), v(TM + 4 * mt))
        k("v_mul_f32 %s, s41, %s", v(TM + 4 * mt + 1), v(TM + 4 * mt + 1))
        k("v_max3_f32 %s, %s, %s, %s", v(M2 + mt), v(TM + 4 * mt), v(TM + 4 * mt + 1), v(MX + mt))
    def x2(op, r, tmp):
        for sw in ("v_permlane32_swap_b32", "v_permlane16_swap_b32"):
            for mt in range(2): k("v_mov_b32 %s, %s", v(tmp + mt), v(r + mt))
            for mt in range(2): k("%s %s, %s", sw, v(r + mt), v(tmp + mt))
            for mt in range(2): k("%s %s, %s, %s", op, v(r + mt), v(r + mt), v(tmp + mt))
    x2("v_max_f32", M2, TMP)
    for mt in range(2):
        k("v_sub_f32 %s, %s, %s", v(MX + mt), v(MX + mt), v(M2 + mt))
        k("v_sub_f32 %s, %s, %s", v(TM + 4 * mt), v(TM + 4 * mt), v(M2 + mt))
        k("v_sub_f32 %s, %s, %s", v(TM + 4 * mt + 1), v(TM + 4 * mt + 1), v(M2 + mt))
    for mt in range(2):
        for r in (MX + mt, TM + 4 * mt, TM + 4 * mt + 1): k("v_exp_f32 %s, %s", v(r), v(r))
    for mt in range(2):
        k("v_fma_f32 %s, %s, %s, %s", v(SM + mt), v(SM + mt), v(MX + mt), v(TM + 4 * mt))
        k("v_add_f32 %s, %s, %s", v(SM + mt), v(SM + mt), v(TM + 4 * mt + 1))
    x2("v_add_f32", SM, TMP)
    for mt in range(2): k("v_rcp_f32 %s, %s", v(SM + mt), v(SM + mt))
    for mt in range(2):
        k("v_mul_f32 %s, %s, %s", v(MX + mt), v(MX + mt), v(SM + mt))
        k("v_mul_f32 %s, %s, %s", v(TM + 4 * mt), v(TM + 4 * mt), v(SM + mt))
        k("v_mul_f32 %s, %s, %s", v(TM + 4 * mt + 1), v(TM + 4 * mt + 1), v(SM + mt))
    for mt in range(2):
        for r in vals[mt]: k("v_mul_f32 %s, %s, %s", v(r), v(r), v(MX + mt))
    k(CV(P, T, T + 1)); k(CV(P + 1, T + 2, T + 3))
    for i in range(4): k(CV(P + 4 + i, T + 4 + 2 * i, T + 5 + 2 * i))
    for mt in range(2):
        k(CV(PM + 4 * mt, TM + 4 * mt, TM + 4 * mt + 1)); k(CV(PM + 4 * mt + 3, TM + 4 * mt, TM + 4 * mt + 1))
    O = lambda wp, mt, t: FW + ((wp * 2 + mt) * 2 + t) * 4
    def pack(wp):
        out = []
        for mt in range(2):
            o0 = O(wp, mt, 0)
            out += [CV(o0 + i, o0 + 2 * i, o0 + 2 * i + 1) for i in range(4)]
            out += ["ds_write_b128 v%d, %s offset:%d" % (aOW, v(o0, 4), mt * 16384 + wp * 1024)]
        return out
    pend = []
    for wp in range(4):
        ms = [MF(O(wp, mt, t), VF + 4 * (2 * wp + t), P + 4 * mt, True) for mt in range(2) for t in range(2)] + \
             [M16(O(wp, mt, t), KV + 4 * wp + 2, PM + 4 * mt + 2 * t) for mt in range(2) for t in range(2)]
        for mi, m_ in enumerate(ms):
            k(m_)
            if mi >= 2:
                for _ in range(2):
                    if pend: k(pend.pop(0))
        pend = pack(wp)
    for x in pend: k(x)
    k(".aw_writes")
    k("s_barrier")
    lstamp(k, 3)
    PF = 8
    AC = T
    for f in range(PF): k("ds_read_b128 %s, v%d offset:%d", v(FW + 4 * (f % 16), 4), aOR, f * 1024)
    for f in range(32):
        mt, ks = f // 16, f % 16
        if f + PF < 32: k("ds_read_b128 %s, v%d offset:%d", v(FW + 4 * ((f + PF) % 16), 4), aOR, (f + PF) * 1024)
        for t in range(2): k(MF(AC + (mt * 2 + t) * 4, WREG + (t * 16 + ks) * 4, FW + 4 * (f % 16), ks == 0))
        if hint and f == k.copt.get('hbc', 99): hint(k, s_seg)
        if f == 20:
            k("s_lshl_b32 s42, s%d, 19", s_seg)
            k("s_add_u32 s42, s42, s40")
            for t in range(2): k("buffer_store_dwordx4 %s, v%d, %s, s42 offen %s", v(AC + 4 * t, 4), 184 + t, W, ST)
    k(".aw_off")
    k("s_add_u32 s42, s42, 0x40000")
    for t in range(2): k("buffer_store_dwordx4 %s, v%d, %s, s42 offen %s", v(AC + 8 + 4 * t, 4), 184 + t, W, ST)
    k("v_xor_b32 v%d, 0x8000, v%d", aOW, aOW)
    k("v_xor_b32 v%d, 0x8000, v%d", aOR, aOR)
    lstamp(k, 4)
    if hint: hint(k, s_seg, True)
    k("s_add_u32 s%d, s%d, %d", s_seg, s_seg, nstride)
    k("s_cmp_lt_u32 s%d, 64", s_seg)
    k("s_cbranch_scc1 %s", lp)
    k("s_sub_u32 s44, s%d, %d", s_seg, nstride)
    if publish: publish(k, 44)
    lstamp(k, 5)

def role_red(k, s_tq, s_seg, nstride, wait=None, publish=None, hint=None, wait_final=None):
    k.c("---- R role")
    W = s(S_WS, 4)
    k("v_and_b32 v10, 3, v1")
    k("v_bfe_u32 v11, v1, 2, 2")
    k("v_lshrrev_b32 v12, 4, v1")
    k("s_lshl_b32 s32, s%d, 2", S_WAVE)
    k("v_add_u32 v12, s32, v12")
    k("s_and_b32 s33, s%d, 3", s_tq)
    k("s_lshl_b32 s33, s33, 2")
    k("v_add_u32 v13, s33, v10")
    k("v_lshl_add_u32 v14, v11, 4, v13")
    k("v_lshlrev_b32 v14, 4, v14")
    k("v_lshlrev_b32 v4, 4, v0")
    k("v_add_u32 v9, 4096, v4")
    k("v_lshl_add_u32 v5, v12, 10, v14")
    k("v_lshlrev_b32 v6, 10, v13")
    k("v_lshl_add_u32 v6, v12, 6, v6")
    k("v_lshl_add_u32 v6, v11, 4, v6")
    k("s_lshr_b32 s34, s%d, 2", s_tq)
    k("s_lshl_b32 s35, s%d, 16", s_tq)
    k("s_add_u32 s35, s35, 0x%x", PART)
    k("s_lshl_b32 s36, s34, 14")
    k("s_lshl_b32 s37, s%d, 5", S_WAVE)
    k("v_lshlrev_b32 v8, 3, v10")
    k("v_add_u32 v7, s37, v8")
    if hint:
        last_seg(k, 39, s_seg)
        k("s_lshl_b32 s39, s39, 15")
        k("s_add_u32 s39, s39, s36")
        for i in range(4): k("v_mov_b32 v%d, -1", 16 + i)
        for n in range(k.narm):
            for base in (HIMG, HNIMG):
                k("s_add_u32 s38, s39, 0x%x", base - n * (3 << 15))
                k("buffer_store_dwordx4 v[16:19], v5, %s, s38 offen %s", W, ST)
        k("s_waitcnt vmcnt(0)")
    lp = k.lab("Rl"); lre = k.lab("Rre"); lfb = k.lab("Rfb"); lgo = k.lab("Rgo"); lend = k.lab("Rend")
    k.L(lp)
    k("s_mov_b32 s73, %d", 64 - 3 * k.narm)
    k("s_lshl_b32 s39, s%d, 15", s_seg)
    k("s_add_u32 s39, s39, s36")
    k("buffer_load_dwordx4 v[16:19], v6, %s, s39 offen", s(S_X, 4))
    lstamp(k, 0)
    if wait: wait(k, s_seg)
    lstamp(k, 1)
    k.L(lre)
    k("s_lshl_b32 s38, s%d, 19", s_seg)
    k("s_add_u32 s38, s38, s35")
    PB = 32
    for hg in range(8):
        for t in range(2):
            k("buffer_load_dwordx4 %s, v%d, %s, s38 offen %s", v(PB + 8 * hg + 4 * t, 4), 9 if t else 4, W, LD)
        if hg < 7: k("s_add_u32 s38, s38, 8192")
    X = 20
    k("s_waitcnt vmcnt(16)")
    for j in range(4):
        k("v_lshlrev_b32 %s, 16, %s", v(X + 2 * j), v(16 + j))
        k("v_and_b32 %s, 0xffff0000, %s", v(X + 2 * j + 1), v(16 + j))
    for hg in range(1, 8):
        k("s_waitcnt vmcnt(%d)", 14 - 2 * hg)
        for i in range(8): k("v_add_f32 %s, %s, %s", v(PB + i), v(PB + i), v(PB + 8 * hg + i))
    lstamp(k, 2)
    if hint:
        k("v_cmp_u_f32 vcc, %s, %s", v(PB), v(PB + 4))
        k("s_cbranch_vccnz %s", lfb)
        k.L(lgo)
    H = 40
    for i in range(0, 8, 2):
        k(CV(28, PB + i, PB + i + 1))
        k("v_lshlrev_b32 v29, 16, v28")
        k("v_and_b32 v28, 0xffff0000, v28")
        k("v_add_f32 %s, %s, v29", v(X + i), v(X + i))
        k("v_add_f32 %s, %s, v28", v(X + i + 1), v(X + i + 1))
        k(CV(H + i // 2, X + i, X + i + 1))
        k("v_lshlrev_b32 %s, 16, %s", v(X + i), v(H + i // 2))
        k("v_and_b32 %s, 0xffff0000, %s", v(X + i + 1), v(H + i // 2))
    k("s_add_u32 s38, s39, 0x%x", HIMG)
    k("buffer_store_dwordx4 %s, v5, %s, s38 offen %s", v(H, 4), W, ST)
    def red16(r, tmp):
        for sh in (4, 8): k("v_add_f32_dpp %s, %s, %s row_ror:%d row_mask:0xf bank_mask:0xf", v(r), v(r), v(r), sh)
        xsum(k, r, tmp)
    k("v_add_f32 v44, %s, %s", v(X), v(X + 1))
    for i in range(2, 8): k("v_add_f32 v44, v44, %s", v(X + i))
    red16(44, 46)
    k("v_mul_f32 v44, 0x3c000000, v44")
    k("v_mov_b32 v45, 0")
    for i in range(8):
        k("v_sub_f32 v46, %s, v44", v(X + i))
        k("v_fmac_f32 v45, v46, v46")
    red16(45, 46)
    if hint and k.copt.get('hr2', 0): hint(k, s_seg)
    k("ds_write_b64 v7, v[44:45]")
    k("s_waitcnt lgkmcnt(0)")
    k("s_barrier")
    for w in range(4): k("ds_read_b64 %s, v8 offset:%d", v(48 + 2 * w, 2), 32 * w)
    k("v_xor_b32 v7, 128, v7")
    k("v_xor_b32 v8, 128, v8")
    k("s_waitcnt lgkmcnt(0)")
    k("v_add_f32 v44, v48, v50"); k("v_add_f32 v46, v52, v54"); k("v_add_f32 v44, v44, v46")
    k("v_mul_f32 v44, 0.25, v44")
    k("v_add_f32 v45, v49, v51"); k("v_add_f32 v46, v53, v55"); k("v_add_f32 v45, v45, v46")
    k("v_mov_b32 v47, 0")
    for w in range(4):
        k("v_sub_f32 v46, %s, v44", v(48 + 2 * w))
        k("v_fmac_f32 v47, v46, v46")
    k("v_mul_f32 v47, 0x43000000, v47")
    k("v_add_f32 v45, v45, v47")
    k("v_mul_f32 v45, 0x3b000000, v45")
    if hint and k.copt.get('hr', 0): hint(k, s_seg)
    ln_finish(k, X, 8, 44, 45, 46, 47, 56)
    k("s_add_u32 s38, s39, 0x%x", HNIMG)
    k("buffer_store_dwordx4 v[56:59], v5, %s, s38 offen %s", W, ST)
    lstamp(k, 4)
    if hint: hint(k, s_seg, True)
    if publish: publish(k, s_seg)
    lstamp(k, 5)
    k("s_add_u32 s%d, s%d, %d", s_seg, s_seg, nstride)
    k("s_cmp_lt_u32 s%d, 64", s_seg)
    k("s_cbranch_scc1 %s", lp)
    if hint:
        k("s_branch %s", lend)
        k.L(lfb)
        k("s_cmp_lt_u32 s%d, s73", s_seg)
        k("s_cbranch_scc1 %s", lgo)
        k("s_mov_b32 s73, 64")
        wait_final(k, s_seg)
        k("s_branch %s", lre)
        k.L(lend)

def role_up(k, s_u, s_seg, nstride, niter_sreg, pre_dma=None, publish=None, wait=None, hint=None, wait_final=None):
    k.c("---- U role")
    W = s(S_WS, 4); WREG = 128
    load_srd(k, 'w1', S_W); load_srd(k, 'w3', S_X)
    k("v_lshrrev_b32 v8, 3, v1")
    k("s_mov_b32 s32, 2752")
    k("v_mul_lo_u32 v8, v8, s32")
    k("v_and_b32 v9, 7, v1")
    k("v_lshl_add_u32 v8, v9, 4, v8")
    k("s_lshl_b32 s33, s%d, 7", s_u)
    k("s_mul_i32 s34, s%d, %d", S_WAVE, 8 * 2752)
    k("s_add_u32 s33, s33, s34")
    k("v_add_u32 v8, s33, v8")
    k("s_lshl_b32 s35, s%d, 10", S_WAVE)
    k("s_waitcnt lgkmcnt(0)")
    fin_srd(k, 'w1', S_W); fin_srd(k, 'w3', S_X)
    for i in range(16):
        k("s_add_u32 m0, s35, %d", i * 4096)
        k("buffer_load_dwordx4 v8, %s, 0 offen lds", s(S_W, 4))
        k("s_add_u32 m0, s35, %d", 65536 + i * 4096)
        k("buffer_load_dwordx4 v8, %s, 0 offen lds", s(S_X, 4))
        if k.copt.get('wd') is not None: k("s_waitcnt vmcnt(%d)", k.copt['wd'])
        if i < 15: k("v_add_u32 v8, %d, v8", 32 * 2752)
    WREG = 256
    k("v_lshrrev_b32 v10, 4, v1")
    k("v_bfe_u32 v12, v1, 2, 2")
    k("v_lshl_add_u32 v10, v10, 3, v12")
    k("v_lshlrev_b32 v10, 7, v10")
    k("v_and_b32 v12, 3, v1")
    k("v_lshl_add_u32 v10, v12, 4, v10")
    k("s_lshr_b32 s36, s%d, 1", S_WAVE)
    k("s_lshl_b32 s37, s36, 6")
    k("v_add_u32 v10, s37, v10")
    k("v_add_u32 v11, 0x10000, v10")
    k("s_waitcnt vmcnt(0)")
    k("s_barrier")
    for ks in range(16):
        for m in range(2):
            for hf in range(2):
                for y in range(2):
                    k("ds_read_b64_tr_b16 %s, v%d offset:%d", u(WREG + ((m * 2 + hf) * 16 + ks) * 4 + 2 * y, 2), 10 + m, ks * 4096 + y * 512 + 8 * hf)
        k("s_waitcnt lgkmcnt(4)")
    k("s_waitcnt lgkmcnt(0)")
    k("s_barrier")
    k("s_and_b32 s37, s%d, 1", S_WAVE)
    k("s_lshl_b32 s39, s%d, 1", s_u)
    k("s_add_u32 s39, s39, s36")
    k("v_lshlrev_b32 v4, 4, v1")
    k("s_cmp_lt_u32 s39, 43")
    k("s_cselect_b32 s40, 0, 0x40000000")
    k("v_add_u32 v12, s40, v4")
    k("s_lshl_b32 s39, s39, 10")
    k("s_mul_i32 s40, s%d, 88064", s_seg)
    k("s_add_u32 s39, s39, s40")
    k("s_mul_i32 s40, s37, 44032")
    k("s_add_u32 s39, s39, s40")
    k("s_add_u32 s39, s39, 0x%x", ACT)
    k("s_lshl_b32 s38, s%d, 15", s_seg)
    k("s_add_u32 s38, s38, 0x%x", HNIMG)
    k("s_mov_b32 s41, 0xbfb8aa3b")
    k("s_lshl_b32 s40, s37, 14")
    k("v_add_u32 v5, s40, v4")
    k("s_lshl_b32 s48, s36, 10")
    k("s_add_u32 s48, s48, s40")
    k("s_add_u32 s38, s38, s48")
    if hint:
        last_seg(k, 49, s_seg)
        k("s_sub_u32 s49, s49, s%d", s_seg)
        k("s_mul_i32 s49, s49, 88064")
        k("s_add_u32 s49, s49, s39")
        for i in range(4): k("v_mov_b32 v%d, -1", 16 + i)
        for n in range(k.narm):
            k("buffer_store_dwordx4 v[16:19], v12, %s, s49 offen %s", W, ST)
            k("s_sub_u32 s49, s49, %d", 3 * 88064)
        k("s_waitcnt vmcnt(0)")
    lp = k.lab("Ul"); lfb = k.lab("Ufb"); lgo = k.lab("Ugo"); lend = k.lab("Uend")
    k.L(lp)
    lstamp(k, 0)
    if wait: wait(k, s_seg)
    lstamp(k, 1)
    for i in range(8):
        k("s_add_u32 m0, s48, %d", i * 2048)
        k("s_add_u32 s49, s38, %d", i * 2048)
        k("buffer_load_dwordx4 v4, %s, s49 offen %s lds", W, LD)
    FW = 16; AC = 80
    k(".aw_on")
    for half in range(2):
        k("s_waitcnt vmcnt(%d)", 4 - 4 * half)
        k("s_barrier")
        lstamp(k, 2 + half)
        for f in range(8): k("ds_read_b128 %s, v5 offset:%d", v(FW + 4 * (half * 8 + f), 4), (half * 8 + f) * 1024)

        for f in range(half * 8, half * 8 + 8):
            for q in range(4): k(MF(AC + 4 * q, WREG + (q * 16 + f) * 4, FW + 4 * f, f == 0))
            if hint and f == k.copt.get('hu2', 99): hint(k, s_seg)
    k(".aw_off")
    if hint:
        k("v_cmp_u_f32 vcc, %s, %s", v(AC), v(AC))
        k("s_cbranch_vccnz %s", lfb)
        k.L(lgo)
        if k.copt.get('hu', 0): hint(k, s_seg)
    g0 = AC; u0 = AC + 8; TT = 96
    for r in range(AC, AC + 16, 2):
        k(CV(TT, r, r + 1))
        k("v_lshlrev_b32 %s, 16, %s", v(r), v(TT))
        k("v_and_b32 %s, 0xffff0000, %s", v(r + 1), v(TT))
    for j in range(8): k("v_mul_f32 %s, s41, %s", v(TT + j), v(g0 + j))
    for j in range(8): k("v_exp_f32 %s, %s", v(TT + j), v(TT + j))
    for j in range(8): k("v_add_f32 %s, 1.0, %s", v(TT + j), v(TT + j))
    for j in range(8): k("v_rcp_f32 %s, %s", v(TT + j), v(TT + j))
    for j in range(8): k("v_mul_f32 %s, %s, %s", v(g0 + j), v(g0 + j), v(TT + j))
    for r in range(g0, g0 + 8, 2):
        k(CV(TT, r, r + 1))
        k("v_lshlrev_b32 %s, 16, %s", v(r), v(TT))
        k("v_and_b32 %s, 0xffff0000, %s", v(r + 1), v(TT))
    for j in range(8): k("v_mul_f32 %s, %s, %s", v(g0 + j), v(g0 + j), v(u0 + j))
    for j in range(4): k(CV(TT + j, g0 + 2 * j, g0 + 2 * j + 1))
    k("buffer_store_dwordx4 %s, v12, %s, s39 offen %s", v(TT, 4), W, ST)
    k("s_add_u32 s39, s39, %d", 88064 * nstride)
    k("s_add_u32 s38, s38, %d", 32768 * nstride)
    lstamp(k, 4)
    if hint:
        hint(k, s_seg, True)
        ls_ = k.lab("Uwf")
        k("s_cmp_lt_u32 s%d, %d", s_seg, 64 - 3 * k.narm)
        k("s_cbranch_scc1 %s", ls_)
        wait_final(k, s_seg)
        k.L(ls_)
    if publish: publish(k, s_seg)
    lstamp(k, 5)
    k("s_add_u32 s%d, s%d, %d", s_seg, s_seg, nstride)
    k("s_cmp_lt_u32 s%d, 64", s_seg)
    k("s_cbranch_scc1 %s", lp)
    if hint:
        k("s_branch %s", lend)
        k.L(lfb)
        k("s_cmp_lt_u32 s%d, %d", s_seg, 64 - 3 * k.narm)
        k("s_cbranch_scc1 %s", lgo)
        wait_final(k, s_seg)
        k("s_lshl_b32 s49, s36, 10")
        k("s_sub_u32 s49, s38, s49")
        for f in range(16):
            k("buffer_load_dwordx4 %s, v4, %s, s49 offen offset:%d %s", v(FW + 4 * f, 4), W, (f % 4) * 1024, LD)
            if f % 4 == 3: k("s_add_u32 s49, s49, 4096")
        k("s_waitcnt vmcnt(0)")
        for f in range(16):
            for q in range(4): k(MF(AC + 4 * q, WREG + (q * 16 + f) * 4, FW + 4 * f, f == 0))
        k("s_branch %s", lgo)
        k.L(lend)

def role_dn(k, s_dn, s_seg, nstride, s_mt, wait=None, wait_final=None):
    k.c("---- Dn role")
    W = s(S_WS, 4); WREG = 256
    load_srd(k, 'w2', S_W)
    k("v_lshrrev_b32 v8, 2, v1")
    k("v_lshlrev_b32 v8, 10, v8")
    k("v_and_b32 v9, 3, v1")
    k("v_lshl_add_u32 v8, v9, 4, v8")
    k("s_mul_i32 s32, s%d, %d", S_WAVE, 352 * 1024)
    k("s_lshl_b32 s33, s%d, 6", s_dn)
    k("s_add_u32 s32, s32, s33")
    k("v_add_u32 v8, s32, v8")
    k("s_mul_i32 s35, s%d, 22528", S_WAVE)
    k("s_waitcnt lgkmcnt(0)")
    fin_srd(k, 'w2', S_W)
    for i in range(22):
        k("s_add_u32 m0, s35, %d", i * 1024)
        k("buffer_load_dwordx4 v8, %s, 0 offen lds", s(S_W, 4))
        if k.copt.get('wd') is not None: k("s_waitcnt vmcnt(%d)", k.copt['wd'])
        if i < 21: k("v_add_u32 v8, 16384, v8")
    k("v_lshrrev_b32 v11, 4, v1")
    k("v_bfe_u32 v12, v1, 2, 2")
    k("v_lshl_add_u32 v10, v11, 3, v12")
    k("v_lshlrev_b32 v10, 6, v10")
    k("v_lshl_add_u32 v10, v9, 4, v10")
    k("v_add_u32 v10, s35, v10")
    k("s_waitcnt vmcnt(0)")
    for ks in range(11):
        for t in range(2):
            for y in range(2):
                k("ds_read_b64_tr_b16 %s, v10 offset:%d", u(WREG + (t * 11 + ks) * 4 + 2 * y, 2), ks * 2048 + y * 256 + 8 * t)
        if ks % 3 == 2: k("s_waitcnt lgkmcnt(4)")
    k("s_waitcnt lgkmcnt(0)")
    k("s_barrier")
    k("v_lshlrev_b32 v4, 4, v1")
    k("s_cmp_eq_u32 s%d, 3", S_WAVE)
    k("s_cselect_b32 s36, 0x40000000, 0")
    k("v_add_u32 v5, s36, v4")
    k("s_mul_i32 s36, s%d, 11264", S_WAVE)
    k("s_add_u32 s36, s36, 0x%x", ACT)
    k("s_mul_i32 s37, s%d, 44032", s_mt)
    k("s_add_u32 s36, s36, s37")
    k("s_lshl_b32 s37, s%d, 11", S_WAVE)
    k("v_add_u32 v6, s37, v4")
    k("v_mov_b32 v7, v4")
    k("s_lshl_b32 s39, s%d, 14", s_mt)
    k("s_lshl_b32 s40, s%d, 10", s_dn)
    k("s_add_u32 s40, s40, s39")
    k("s_add_u32 s40, s40, 0x%x", HIMG)
    k("s_add_u32 s39, s39, s33")
    k("v_and_b32 v12, 15, v1")
    k("v_lshlrev_b32 v12, 10, v12")
    k("v_lshl_add_u32 v12, v11, 4, v12")
    AF = 32; AC = 16
    lp = k.lab("Dl"); lsk = k.lab("Dsk"); lre = k.lab("Dre"); lfb = k.lab("Dfb"); lgo = k.lab("Dgo"); lend = k.lab("Dend"); lw3 = k.lab("Dw3")
    def loads(sseg):
        k("s_mul_i32 s41, s%d, 88064", sseg)
        k("s_add_u32 s41, s41, s36")
        k("s_lshl_b32 s42, s%d, 15", sseg)
        k("s_add_u32 s42, s42, s40")
        k("buffer_load_dwordx4 v[120:123], v4, %s, s42 offen %s", W, LD)
        for ks in range(11):
            if ks % 4 == 0: k("s_add_u32 s42, s41, %d", ks * 1024)
            k("buffer_load_dwordx4 %s, v%d, %s, s42 offen offset:%d %s", v(AF + ks * 4, 4), 5 if ks == 10 else 4, W, (ks % 4) * 1024, LD)
    lpre = k.lab("Dpre"); lnp = k.lab("Dnp")
    RB = 128
    k.L(lp)
    lstamp(k, 0)
    wait(k, s_seg, True)
    k("s_mov_b32 s73, %d", 64 - 3 * k.narm)
    k.L(lre)
    k("s_waitcnt vmcnt(0)")
    loads(s_seg)
    k("buffer_load_dword v14, v4, %s, 0 offen", W)
    k.L(lpre)
    lstamp(k, 1)
    k("s_add_u32 s44, s%d, 1", s_seg)
    k("s_min_u32 s45, s44, 63")
    wait(k, 45, False)
    for ks in range(11):
        k("s_waitcnt vmcnt(%d)", 12 - ks)
        for t in range(2): k(MF(AC + t * 4, WREG + (t * 11 + ks) * 4, AF + ks * 4, ks == 0))
        if ks < 4:
            k("v_lshlrev_b32 %s, 16, %s", v(96 + 2 * ks), v(120 + ks))
            k("v_and_b32 %s, 0xffff0000, %s", v(97 + 2 * ks), v(120 + ks))
    lstamp(k, 2)
    if wait_final:
        k("v_cmp_u_f32 vcc, %s, %s", v(AC), v(96))
        k("s_cbranch_vccnz %s", lfb)
        k.L(lgo)
    k("s_waitcnt vmcnt(0)")
    k("v_cmp_ge_u32 vcc, s74, v15")
    k("s_or_b32 s46, vcc_lo, vcc_hi")
    k("s_cmp_ge_u32 s44, 64")
    k("s_cselect_b32 s46, 1, s46")
    k("s_cmp_lg_u32 s46, 0")
    k("s_cbranch_scc1 %s", lnp)
    loads(44)
    k.L(lnp)
    k("s_cmp_eq_u32 s%d, 3", S_WAVE)
    k("s_cbranch_scc1 %s", lw3)
    for i in range(2): k("ds_write_b128 v6, %s offset:%d", v(AC + 4 * i, 4), i * 1024)
    k("buffer_load_dword v14, v4, %s, 0 offen", W)
    k("s_waitcnt lgkmcnt(0)")
    k("s_barrier")
    k("s_branch %s", lsk)
    k.L(lw3)
    k("s_barrier")
    for w in range(3):
        for t in range(2): k("ds_read_b128 %s, v7 offset:%d", v(RB + 8 * w + 4 * t, 4), w * 2048 + t * 1024)
    for w in range(3):
        k("s_waitcnt lgkmcnt(%d)", 4 - 2 * w)
        for i in range(0, 8, 2): k("v_pk_add_f32 %s, %s, %s", v(AC + i, 2), v(AC + i, 2), v(RB + 8 * w + i, 2))
    for i in range(0, 8, 2): k(CV(80 + i // 2, AC + i, AC + i + 1))
    for i in range(0, 8, 2):
        k("v_lshlrev_b32 %s, 16, %s", v(AC + i), v(80 + i // 2))
        k("v_and_b32 %s, 0xffff0000, %s", v(AC + i + 1), v(80 + i // 2))
    for i in range(0, 8, 2): k("v_pk_add_f32 %s, %s, %s", v(AC + i, 2), v(AC + i, 2), v(96 + i, 2))
    for i in range(0, 8, 2): k(CV(84 + i // 2, AC + i, AC + i + 1))
    k("s_lshl_b32 s42, s%d, 15", s_seg)
    k("s_add_u32 s42, s42, s39")
    k("buffer_store_dwordx4 v[84:87], v12, %s, s42 offen %s", s(S_O, 4), k.copt.get('ost', ''))
    k.L(lsk)
    lstamp(k, 4)
    k("v_xor_b32 v6, 0x4000, v6")
    k("v_xor_b32 v7, 0x4000, v7")
    k("s_mov_b32 s%d, s44", s_seg)
    k("s_mov_b32 s73, %d", 64 - 3 * k.narm)
    k("s_cmp_eq_u32 s46, 0")
    k("s_cbranch_scc1 %s", lpre)
    k("s_cmp_lt_u32 s%d, 64", s_seg)
    k("s_cbranch_scc1 %s", lp)
    if wait_final:
        k("s_branch %s", lend)
        k.L(lfb)
        k("s_cmp_lt_u32 s%d, s73", s_seg)
        k("s_cbranch_scc1 %s", lgo)
        k("s_mov_b32 s73, 64")
        wait_final(k, s_seg)
        k("s_branch %s", lre)
        k.L(lend)
```

```python
import sys, json
from build_v1 import header_comments
from chain15 import *
from roles2 import *
KN = NAME + "_kernel"
def build(opts={}, stamps=False, ticks=False):
    k = K(); k.stamps = stamps; k.ticks = ticks; k.copt = opts; k.merged = True
    kernel_header(k, KN)
    lend = k.lab("END")
    lstamp(k, 6)
    if opts.get('dst'): k("s_memrealtime s[98:99]")
    k("s_cmp_ge_u32 s2, 256")
    k("s_cbranch_scc1 %s", lend)
    load_srd(k, 'ws', S_WS); load_srd(k, 'dbg', S_DBG)
    if opts.get('home'): k("s_xor_b32 s2, s2, %d", opts['home'])
    lane_wave(k)
    k("s_mov_b32 s%d, 400000", S_SPIN)
    if opts.get('allwarm'):
        law = k.lab("AW"); lpc = k.lab("AWpc")
        k("s_cmp_ge_u32 s2, 64")
        k("s_cbranch_scc1 %s", law)
        k("s_cmp_lg_u32 s%d, 3", S_WAVE)
        k("s_cbranch_scc1 %s", law)
        k("s_getpc_b64 s[60:61]")
        k.L(lpc)
        k("s_lshr_b32 s44, s2, 3")
        k("s_lshl_b32 s44, s44, 13")
        k("v_lshlrev_b32 v2, 7, v1")
        k("v_add_u32 v2, s44, v2")
        k("v_min_u32 v2, %s-%s, v2", lend, lpc)
        k("global_load_dword v119, v2, s[60:61]")
        k("global_load_dword v3, v2, s[60:61] offset:-64") if False else None
        k.L(law)
    ROLE = 5
    k("s_getreg_b32 s54, hwreg(HW_REG_XCC_ID)")
    k("s_and_b32 s54, s54, 7")
    k("s_add_u32 s54, s54, 1")
    k("s_mov_b32 s3, s2")
    k("s_mov_b32 s101, 0")
    lsw = k.lab("SWAP"); lrd = k.lab("ROLED"); lw = k.lab("WORK")
    k("s_or_b32 s44, s2, s%d", S_WAVE)
    k("s_cmp_lg_u32 s44, 0")
    k("s_cbranch_scc1 %s", lrd)
    k("s_waitcnt lgkmcnt(0)")
    fin_srd(k, 'dbg', S_DBG)
    k("v_mov_b32 v2, 0"); k("v_mov_b32 v3, %s", str(opts['die'] + 1) if 'die' in opts else "s54")
    k("buffer_store_dword v3, v2, %s, 0 offen offset:%d sc1", s(S_DBG, 4), DBG_T)
    k.L(lrd)
    k("s_and_b32 s%d, s3, 7", ROLE)
    k("s_lshl_b32 s%d, s%d, 5", ROLE, ROLE)
    k("s_lshr_b32 s3, s3, 3")
    k("s_add_u32 s%d, s%d, s3", ROLE, ROLE)
    k("s_cmp_ge_u32 s%d, 32", ROLE)
    k("s_cbranch_scc1 %s", lw)
    k.lswap = lsw
    role_chain(k, opts.get('slow', False))
    lstamp_dump(k, ROLE)
    k("s_branch %s", lend)
    k.L(lsw)
    lo = k.lab("SWo"); lp = k.lab("SWp"); ld = k.lab("SWd"); lc = k.lab("SWc")
    k("s_waitcnt vmcnt(0) lgkmcnt(0)")
    k("s_barrier")
    k("s_mov_b32 s101, 1")
    k("s_mov_b32 s3, s2")
    k("s_and_b32 s47, s2, 7")
    k("s_cmp_eq_u32 s47, 0")
    k("s_cselect_b32 s47, 1, 0")
    k("s_xor_b32 s46, s47, 1")
    k("v_mbcnt_lo_u32_b32 v1, -1, 0")
    k("v_mbcnt_hi_u32_b32 v1, -1, v1")
    k("s_lshl_b32 s44, s%d, 6", S_WAVE)
    k("v_add_u32 v0, s44, v1")
    k("s_cmp_lg_u32 s%d, 0", S_WAVE)
    k("s_cbranch_scc1 %s", lo)
    k("s_mov_b64 exec, 1")
    k("s_lshl_b32 s48, s47, 2")
    k("v_mov_b32 v2, 0"); k("v_mov_b32 v4, 1")
    k("buffer_atomic_add v4, v2, %s, s48 offen sc0 sc1", s(S_DBG, 4))
    k("s_lshl_b32 s49, s47, 4")
    k("s_lshl_b32 s50, s46, 4")
    k("s_add_u32 s51, s2, 1")
    k("s_lshl_b32 s51, s51, s49")
    k("s_waitcnt vmcnt(0)")
    k("v_readfirstlane_b32 s48, v4")
    k("s_cmp_ge_u32 s48, %d", opts.get('maxpair', 32))
    k("s_cbranch_scc1 %s", ld)
    k("s_lshl_b32 s48, s48, 2")
    k("s_add_u32 s48, s48, 64")
    k("v_mov_b32 v4, s51")
    k("buffer_atomic_or v4, v2, %s, s48 offen sc0 sc1", s(S_DBG, 4))
    k("s_mov_b32 s52, 0")
    k.L(lp)
    k("s_waitcnt vmcnt(0)")
    k("v_readfirstlane_b32 s53, v4")
    k("s_lshr_b32 s44, s53, s49")
    k("s_and_b32 s44, s44, 0xffff")
    k("s_cmp_eq_u32 s44, 0xffff")
    k("s_cbranch_scc1 %s", ld)
    k("s_lshr_b32 s53, s53, s50")
    k("s_and_b32 s53, s53, 0xffff")
    k("s_cmp_lg_u32 s53, 0")
    k("s_cbranch_scc1 %s", lc)
    k("s_cmp_gt_u32 s52, 400")
    k("s_cbranch_scc1 %s", ld)
    k("s_add_u32 s52, s52, 1")
    k("buffer_load_dword v4, v2, %s, s48 offen sc1", s(S_DBG, 4))
    k("s_cmp_le_u32 s52, 400")
    k("s_cbranch_scc1 %s", lp)
    k("s_waitcnt vmcnt(0)")
    k("s_lshl_b32 s53, 0xffff, s50")
    k("s_or_b32 s53, s53, s51")
    k("v_mov_b32 v4, s53"); k("v_mov_b32 v5, s51")
    k("buffer_atomic_cmpswap v[4:5], v2, %s, s48 offen sc0 sc1", s(S_DBG, 4))
    k("s_branch %s", lp)
    k.L(lc)
    k("s_sub_u32 s3, s53, 1")
    k("s_and_b32 s3, s3, 255")
    k.L(ld)
    k("v_mov_b32 v3, s3"); k("v_mov_b32 v2, 163328")
    k("ds_write_b32 v2, v3")
    k("s_mov_b64 exec, -1")
    k("s_waitcnt lgkmcnt(0)")
    k.L(lo)
    k("s_barrier")
    k("v_mov_b32 v2, 163328")
    k("ds_read_b32 v3, v2")
    k("s_waitcnt lgkmcnt(0)")
    k("v_readfirstlane_b32 s3, v3")
    k("s_branch %s", lrd)
    k.L(lw)
    srds = [('x', S_X), ('out', S_O)]
    for n, r in srds: load_srd(k, n, r)
    k("s_waitcnt lgkmcnt(0)")
    for n, r in srds + [('ws', S_WS), ('dbg', S_DBG)]: fin_srd(k, n, r)
    k("s_mov_b32 s100, s54")
    def tr_issue(k):
        stamp(k, 0, 0, wgreg=ROLE, vt=28)
        k("v_mov_b32 v15, 0")
        k("buffer_load_dwordx2 a[254:255], v15, %s, 0 offen offset:%d sc1", s(S_DBG, 4), DBG_READY)
    def tr_check(k):
        lf = k.lab("TRf"); ls_ = k.lab("TRs")
        k("s_waitcnt vmcnt(0)")
        k("v_accvgpr_read_b32 v2, a254"); k("v_accvgpr_read_b32 v3, a255")
        k("v_readfirstlane_b32 s44, v2"); k("v_readfirstlane_b32 s42, v3")
        k("s_cmp_eq_u32 s44, 0"); k("s_cbranch_scc1 %s", ls_)
        k("s_cmp_eq_u32 s42, 0"); k("s_cbranch_scc1 %s", ls_)
        k("s_cmp_lg_u32 s42, s100"); k("s_cbranch_scc1 %s", lf)
        k.L(ls_)
        tcheck(k)
        wait_ready(k, 2)
        k.L(lf)
    def tcheck(k):
        lnt = k.lab("NT"); lgo = k.lab("NTs")
        k("s_cmp_lg_u32 s101, 0")
        k("s_cbranch_scc1 %s", lnt)
        wait_ready(k, 2, DBG_T)
        k("v_readfirstlane_b32 s44, v2")
        k("s_cmp_lg_u32 s44, s100")
        k("s_cbranch_scc1 %s", lnt)
        k("s_mov_b32 s54, s100")
        k("s_branch %s", lsw)
        k.L(lnt)
    lz = k.lab("Z")
    k("s_lshl_b32 s44, s101, 8")
    k("s_or_b32 s44, s44, s2")
    k("s_and_b32 s40, s44, 0xfffffff7")
    k("s_cmp_lg_u32 s40, 7")
    k("s_cbranch_scc1 %s", lz)
    for i in range(4): k("v_mov_b32 v%d, 0", 4 + i)
    k("s_cmp_eq_u32 s44, 7")
    k("s_cselect_b32 s41, 4, 7")
    k("s_cselect_b32 s42, 0x1000, 0x8000") if False else None
    k("s_cselect_b32 s40, 0, 0x6000")
    k("s_add_u32 s40, s40, 0x%x", FLAGS)
    k("v_lshlrev_b32 v8, s41, v0")
    k("s_lshl_b32 s42, 256, s41")
    for i in range(3):
        k("buffer_store_dwordx4 v[4:7], v8, %s, s40 offen sc1", s(S_WS, 4))
        k("s_add_u32 s40, s40, s42")
    k("s_and_b32 s40, s44, 8")
    k("v_mov_b32 v9, 1")
    k("s_waitcnt vmcnt(0)")
    k("s_barrier")
    k("s_mov_b64 exec, 1")
    k("buffer_store_dword v9, v4, %s, s40 offen offset:%d sc1", s(S_DBG, 4), DBG_READY)
    k("s_mov_b64 exec, -1")
    stamp(k, 0, 5, wgreg=ROLE, vt=28)
    k.L(lz)
    k("s_cmp_ge_u32 s%d, 256", ROLE)
    k("s_cbranch_scc1 %s", lend)
    stamp(k, 3, 0, wgreg=ROLE, vt=120)
    GRP, TK_, SEG, FO, FI = 54, 55, 7, 56, 57
    k("s_lshr_b32 s%d, s%d, 5", GRP, ROLE)
    k("s_and_b32 s%d, s%d, 31", TK_, ROLE)
    lq = k.lab("DOQKV"); l2 = k.lab("ROLE2")
    k("s_cmp_ge_u32 s%d, 2", GRP)
    k("s_cbranch_scc1 %s", lq)
    k("s_lshl_b32 s%d, s%d, 2", FO, TK_)
    k("s_add_u32 s%d, s%d, 0x%x", FO, FO, FLAGS + F_XN)
    def ln_after(k, scount):
        ls = k.lab("LNs")
        k("s_cmp_lg_u32 s%d, 1", scount)
        k("s_cbranch_scc1 %s", ls)
        stamp(k, 0, 1, wgreg=ROLE, vt=28)
        tr_check(k)
        stamp(k, 0, 2, wgreg=ROLE, vt=28)
        set_flag(k, FO, "1", 2)
        stamp(k, 0, 3, wgreg=ROLE, vt=28)
        if opts.get('ew', 0): bc_stage(k, TK_)
        k.L(ls)
    role_ln1(k, TK_, 4, ln_after, tr_issue)
    set_flag(k, FO, "4", 2)
    k("s_branch %s", l2)
    k.L(lq)
    k("s_sub_u32 s58, s%d, 64", ROLE)
    def pre_loop(k):
        tr_check(k)
        k("v_and_b32 v8, 31, v1")
        k("v_lshlrev_b32 v8, 2, v8")
        k("s_mov_b32 s%d, 0x%x", FI, FLAGS + F_XN)
        k("s_mov_b32 s%d, 0", SEG)
        wait_flags(k, 8, FI, SEG, 2)
        k("s_lshl_b32 s%d, s32, 1", FO)
        k("s_add_u32 s%d, s%d, s34", FO, FO)
        k("s_lshl_b32 s%d, s%d, 2", FO, FO)
        k("s_lshl_b32 s40, s33, 7")
        k("s_add_u32 s%d, s%d, s40", FO, FO)
        k("s_add_u32 s%d, s%d, 0x%x", FO, FO, FLAGS + F_QF)
        k("s_sub_u32 s%d, s34, 2", SEG)
    def q_publish(k):
        k("s_max_i32 s40, s%d, 0", SEG)
        set_flag(k, FO, "s40", 2, drain=False)
        k("s_add_u32 s%d, s%d, 2", SEG, SEG)
    def q_pre_dma(k):
        if opts.get('qp') is not None:
            lq_ = k.lab("QPp")
            k("s_cmp_eq_u32 s32, 2")
            k("s_cselect_b32 s58, %d, %d", opts.get('qpq', opts['qp']), opts['qp'])
            k("s_cmp_lg_u32 s52, s58")
            k("s_cbranch_scc1 %s", lq_)
            k("s_lshl_b32 s75, s33, 7")
            k("s_add_u32 s75, s75, 0x%x", FLAGS + F_KF + 64)
            k("s_mov_b32 s58, 0")
            k("v_mov_b32 v9, 0")
            wait_flags(k, 9, 75, 58, 2)
            k.L(lq_)
        ls = k.lab("QPd")
        k("s_cmp_lg_u32 s52, 8")
        k("s_cbranch_scc1 %s", ls)
        k("s_mov_b32 s58, 3")
        wait_flags(k, 8, FI, 58, 2)
        k.L(ls)
    for _ in range(opts.get('wdelay', 0)): k("s_sleep 37")
    if opts.get('qdelay'):
        lqd = k.lab("QD"); lqo = k.lab("QDo")
        k("s_cmp_lt_u32 s58, 128")
        k("s_cbranch_scc1 %s", lqo)
        k("v_mov_b32 v3, 0"); k("s_mov_b32 s59, 0")
        k.L(lqd)
        k("buffer_load_dword v2, v3, %s, 0 offen offset:8 sc1", s(S_DBG, 4))
        k("s_waitcnt vmcnt(0)")
        k("v_readfirstlane_b32 s40, v2")
        k("s_and_b32 s40, s40, 0xffff")
        k("s_cmp_ge_u32 s40, 32")
        k("s_cbranch_scc1 %s", lqo)
        k("s_sleep 16")
        k("s_add_u32 s59, s59, 1")
        k("s_cmp_lt_u32 s59, 20000")
        k("s_cbranch_scc1 %s", lqd)
        k.L(lqo)
    def q_post_dma(k):
        if opts.get('wow', 0):
            load_srd(k, 'Wo', 28)
            k("s_lshl_b32 s40, s58, 2"); k("s_add_u32 s40, s40, s%d", S_WAVE); k("s_mul_i32 s40, s40, 6144")
            k("v_lshlrev_b32 v14, 4, v1"); k("v_add_u32 v14, s40, v14")
            k("s_waitcnt lgkmcnt(0)")
            fin_srd(k, 'Wo', 28)
            for i in range(6):
                if i == 4: k("v_add_u32 v14, 4096, v14")
                k("buffer_load_dwordx4 v[16:19], v14, s[28:31], 0 offen offset:%d", (i % 4) * 1024)
        tr_issue(k)
    role_qkv(k, 58, q_pre_dma, q_publish, pre_loop, q_post_dma)
    set_flag(k, FO, "0x80", 2)
    k.L(l2)
    stamp(k, 3, 1, wgreg=ROLE, vt=120)
    dstamp(k, 8, 120)
    k("s_waitcnt vmcnt(0)")
    k("s_barrier")
    k.inworker = True
    wait_ready(k, 2, DBG_READY2)
    lur = k.lab("UR"); ldn = k.lab("DN"); lrd = k.lab("RD"); lfin = k.lab("FIN")
    if opts.get('nowork'): k("s_branch %s", lfin)
    k("s_cmp_ge_u32 s%d, 4", GRP)
    k("s_cbranch_scc1 %s", lur)
    k("s_sub_u32 s%d, s%d, 1", SEG, GRP)
    k("s_lshl_b32 s%d, s%d, 12", FO, SEG)
    k("s_lshl_b32 s40, s%d, 7", TK_)
    k("s_add_u32 s%d, s%d, s40", FO, FO)
    k("s_add_u32 s%d, s%d, 0x%x", FO, FO, FLAGS + F_BF)
    def wait_qkv(k, sseg):
        lsk = k.lab("wq")
        k("s_cmp_lt_u32 s%d, s72", sseg)
        k("s_cbranch_scc1 %s", lsk)
        k("v_min_u32 v3, 5, v1")
        k("v_lshlrev_b32 v3, 2, v3")
        k("s_lshl_b32 s%d, s34, 7", FI)
        k("s_add_u32 s%d, s%d, 0x%x", FI, FI, FLAGS + F_QF)
        wait_flags(k, 3, FI, sseg, 2)
        k("v_cmp_gt_u32 vcc, 0x80, v2")
        k("s_cmp_eq_u64 vcc, 0")
        k("s_cselect_b32 s72, 64, 0")
        k.L(lsk)
        return
        k("v_min_u32 v3, 2, v1")
        k("v_lshlrev_b32 v3, 3, v3")
        k("s_and_b32 s%d, s%d, 1", FI, sseg)
        k("s_lshl_b32 s%d, s%d, 2", FI, FI)
        k("s_lshl_b32 s58, s34, 5")
        k("s_add_u32 s%d, s%d, s58", FI, FI)
        k("s_add_u32 s%d, s%d, 0x%x", FI, FI, FLAGS + F_QF)
        wait_flags(k, 3, FI, sseg, 2)
    def wait_kvm(k, sseg):
        k("v_and_b32 v3, 3, v1")
        k("v_lshlrev_b32 v3, 7, v3")
        k("s_lshl_b32 s%d, s34, 9", FI)
        k("s_add_u32 s%d, s%d, 0x%x", FI, FI, FLAGS + F_KF)
        wait_flags(k, 3, FI, sseg, 2)
    H = opts.get('hint', 1)
    k.narm = opts.get('narm', 2) if H else 0
    A0 = 64 - 3 * k.narm
    def publish(k, sseg):
        k("s_lshl_b32 s58, s%d, 1", sseg)
        k("s_add_u32 s58, s58, 2")
        set_flag(k, FO, "s58", 2)
    def hint(k, sseg, bar=False):
        if bar and opts.get('h1', 1): return
        l = k.lab("hn")
        k("s_cmp_lt_u32 s%d, %d", sseg, A0)
        k("s_cbranch_scc1 %s", l)
        if bar: k("s_barrier")
        k("s_lshl_b32 s58, s%d, 1", sseg)
        k("s_add_u32 s58, s58, 1")
        k("s_add_u32 s75, s%d, 0x%x", FO, opts.get('hoff', 0xA000))
        set_flag(k, 75, "s58", 2, drain=False)
        k.L(l)
    def wfin(va):
        def f(k, sseg):
            k("s_lshl_b32 s58, s%d, 1", sseg)
            k("s_add_u32 s58, s58, 1")
            wait_flags(k, va, FI, 58, 2)
        return f
    def wnorm(va):
        def f(k, sseg):
            k("s_cmp_lt_u32 s%d, %d", sseg, A0)
            k("s_cselect_b32 s75, 0, 0x%x", opts.get('hoff', 0xA000))
            k("s_addc_u32 s58, s%d, s%d", sseg, sseg)
            k("s_add_u32 s75, s75, s%d", FI)
            if opts.get('ff', 0): wait_flags_fast(k, va, 75, 58, [124, 125, 126, 127][:opts.get('nf', 3)])
            else: wait_flags(k, va, 75, 58, 2, wave0=True)
        return f
    if not H: hint = None
    k("s_mov_b32 s72, 0")
    role_bc(k, TK_, SEG, 3, wait_qkv, wait_kvm, publish, hint)
    dstamp(k, 10, 120); dstamp(k, 13, 120, False, 76); dstamp(k, 2, 120, True, 76)
    k("s_branch %s", lfin)
    k.L(lur)
    k("s_cmp_eq_u32 s%d, 7", GRP)
    k("s_cbranch_scc1 %s", ldn)
    k("s_sub_u32 s%d, s%d, 4", SEG, GRP)
    k("s_lshl_b32 s%d, s%d, 12", FI, SEG)
    k("s_cmp_ge_u32 s%d, 22", TK_)
    k("s_cbranch_scc1 %s", lrd)
    k("s_lshl_b32 s40, s%d, 7", TK_)
    k("s_add_u32 s%d, s%d, s40", FO, FI)
    k("s_add_u32 s%d, s%d, 0x%x", FO, FO, FLAGS + F_UF)
    k("s_add_u32 s%d, s%d, 0x%x", FI, FI, FLAGS + F_RF)
    k("v_and_b32 v13, 7, v1")
    k("v_lshlrev_b32 v13, 7, v13")
    role_up(k, TK_, SEG, 3, None, None, publish, wnorm(13), hint, wfin(13))
    dstamp(k, 12, 120)
    k("s_branch %s", lfin)
    k.L(lrd)
    k("s_cmp_ge_u32 s%d, 30", TK_)
    k("s_cbranch_scc1 %s", lfin)
    k("s_sub_u32 s%d, s%d, 22", TK_, TK_)
    k("s_lshl_b32 s40, s%d, 7", TK_)
    k("s_add_u32 s%d, s%d, s40", FO, FI)
    k("s_add_u32 s%d, s%d, 0x%x", FO, FO, FLAGS + F_RF)
    k("s_add_u32 s%d, s%d, 0x%x", FI, FI, FLAGS + F_BF)
    k("v_and_b32 v15, 31, v1")
    k("v_lshlrev_b32 v15, 7, v15")
    role_red(k, TK_, SEG, 3, wnorm(15), publish, hint, wfin(15))
    dstamp(k, 11, 120)
    k("s_branch %s", lfin)
    k.L(ldn)
    k("s_lshr_b32 s72, s%d, 4", TK_)
    k("s_mov_b32 s%d, 0", SEG)
    k("s_and_b32 s%d, s%d, 15", TK_, TK_)
    k("v_min_u32 v13, 21, v1")
    k("v_lshlrev_b32 v13, 7, v13")
    def up_fi(k, sseg):
        k("s_mul_i32 s58, s%d, 43", sseg)
        k("s_lshr_b32 s58, s58, 7")
        k("s_mul_i32 s58, s58, 3")
        k("s_sub_u32 s58, s%d, s58", sseg)
        k("s_lshl_b32 s%d, s58, 12", FI)
        k("s_add_u32 s%d, s%d, 0x%x", FI, FI, FLAGS + F_UF)
    def wait_up(k, sseg, block):
        up_fi(k, sseg)
        k("s_cmp_lt_u32 s%d, %d", sseg, A0)
        k("s_cselect_b32 s75, 0, 0x%x", opts.get('hoff', 0xA000))
        k("s_addc_u32 s74, s%d, s%d", sseg, sseg)
        k("s_add_u32 s75, s75, s%d", FI)
        if block: wait_flags(k, 13, 75, 74, 2)
        else: k("buffer_load_dword v15, v13, %s, s75 offen sc1", s(S_WS, 4))
    def dn_final(k, sseg):
        up_fi(k, sseg)
        wfin(13)(k, sseg)
    role_dn(k, TK_, SEG, 1, 72, wait_up, dn_final if H else None)
    k('s_waitcnt lgkmcnt(0)'); dstamp(k, 14, 120, False, 76); dstamp(k, 15, 120, False, 78)
    k.L(lfin)
    stamp(k, 3, 2, wgreg=ROLE, vt=120)
    dstamp(k, 9, 120); dstamp(k, 3, 120, True, 98); dstamp(k, 4, 120, False, 98)
    lstamp_dump(k, ROLE)
    k.L(lend)
    k("s_endpgm")
    body = insert_nops(auto_wait(k.lines))
    hdr = header_comments([])
    hdr.append('; @launch grid=(256,1,1) block=(256,1,1) lds=163840')
    return '\n'.join(hdr) + '\n.amdgcn_target "amdgcn-amd-amdhsa--gfx950"\n.text\n' + '\n'.join(body) + \
        '\n.section .rodata,"a"\n.p2align 6\n' + kernel_desc(KN)
if __name__ == '__main__':
    o = {"lazy": 1, "p0a": 42, "p0b": 39, "p1a": 40, "p1b": 40, "p2": [17, 36], "w1a": 8, "w1b": 8, "p2a": 4, "hbc": 22, "hr": 1, "hu": 0, "hu2": 14, "narm": 3, "kvl": 60, "qp": 7, "qpq": 3, "qph": 4, "wd": 3, "slpk": 4, "w1": 14, "b0": 6, "w2": 14, "ns1": 0, "ns2": 0, "ho": 4}
    if len(sys.argv) > 1: o.update(json.loads(sys.argv[1]))
    open('m.s', 'w').write(build(o))
    open('ms.s', 'w').write(build(o, stamps=True))
```

```python
from roles import *
import struct
def f2u(x): return struct.unpack('<I', struct.pack('<f', x))[0]

L_KT = 131072
L_MB = L_KT + 16384
L_XB = L_MB + 8192
L_OB = L_XB + 5120
L_MISC_ = L_OB + 2560
WQ, WK, WO = 256, 384, 128
aM = [2, 3, 4, 5]; aXW = 6; aXR = 7; aOW = 8; aWV = 9; aKT = 10; aL16 = 11
aH1S = 12; aWO = 13; aH1L = 11; aH2S = 14; IDX = 15
KVM = 16
SEL = 20
VTN = 24
MA = 32; AQ = 64; AK = 72; AV = 80; G = 88; VT = 120
S_HEAD = 5; S_LIM = 6; S_STEP = 7
S_WQ, S_WK, S_WV, S_WO = 12, 16, 20, 28
sH1S0, sH1S1, sH1L, sH2S, sH2L = 32, 33, 34, 35, 36
sKV = 37; sKTD = 38; sKM = 39; sVIM = 40; sC = 41; sCNT = 42; sT = 43
sH1R = 50; sH2R = 51; sMASK = 52
sPH = 50; sTHR = 49; sSAFE = 55; sQF = 46; sKF = 47; aFL = 0; aFL4 = 0
CSC = 0.08838834764831845 * 1.4426950408889634
VORD = [0, 2, 4, 6, 1, 3, 5, 7]
CT = MA

from chain import elect, xmax
def tick(k, i):
    if getattr(k, 'ticks', False): k("s_memtime s[%d:%d]", 64 + 2 * i, 65 + 2 * i)
def tick_init(k):
    if not getattr(k, 'ticks', False): return
    for i in range(96, 100): k("s_mov_b32 s%d, 0", i)
def tick_step_end(k):
    if not getattr(k, 'ticks', False): return
    l = k.lab("tse")
    k("s_cmp_lg_u32 s%d, %d", S_STEP, k.copt.get('tstep', 41))
    k("s_cbranch_scc1 %s", l)
    k("s_waitcnt vmcnt(0) lgkmcnt(0)")
    k("s_lshl_b32 s100, s%d, 2", S_HEAD)
    k("s_add_u32 s100, s100, s%d", S_WAVE)
    k("s_lshl_b32 s100, s100, 7")
    k("s_add_u32 s100, s100, 0x%x", TS + 8 * 65536)
    k("v_mov_b32 v41, 0")
    for i in range(16):
        k("v_mov_b32 v40, s%d", 64 + 2 * i)
        k("buffer_store_dword v40, v41, %s, s100 offen offset:%d", s(S_WS, 4), 4 * i)
    for e in range(2):
        lw = k.lab("cal")
        k("s_memrealtime s[64:65]")
        k("s_waitcnt lgkmcnt(0)")
        if e: k("s_add_u32 s64, s64, 100")
        k.L(lw)
        k("s_memrealtime s[66:67]")
        k("s_memtime s[68:69]")
        k("s_waitcnt lgkmcnt(0)")
        k("s_sub_u32 s70, s64, s66")
        k("s_cmp_ge_i32 s70, 0")
        k("s_cbranch_scc1 %s", lw)
        k("v_mov_b32 v40, s66")
        k("buffer_store_dword v40, v41, %s, s100 offen offset:%d", s(S_WS, 4), 80 + 8 * e)
        k("v_mov_b32 v40, s68")
        k("buffer_store_dword v40, v41, %s, s100 offen offset:%d", s(S_WS, 4), 84 + 8 * e)
    k.L(l)
def tick_dump(k):
    if not getattr(k, 'ticks', False): return
    k("v_mov_b32 v41, 0")
    for i in range(4):
        k("v_mov_b32 v40, s%d", 96 + i)
        k("buffer_store_dword v40, v41, %s, s100 offen offset:%d", s(S_WS, 4), 64 + 4 * i)

def SMF(acc, A, B): return "v_smfmac_f32_16x16x64_bf16 %s, %s, %s, %s" % (v(acc, 4), v(A, 4), u(B, 8), v(IDX))
def MF(d, A, B, first): return "v_mfma_f32_16x16x32_bf16 %s, %s, %s, %s" % (v(d, 4), v(A, 4), v(B, 4), "0" if first else v(d, 4))
def M16(d, A, B): return "v_mfma_f32_16x16x16_bf16 %s, %s, %s, %s" % (v(d, 4), v(A, 2), v(B, 2), v(d, 4))

def chain_setup(k):
    w = S_WAVE
    k.c("---- chain setup: addresses")
    k("v_lshlrev_b32 %s, 4, v1", v(aL16))
    for jp in range(4):
        k("s_xor_b32 s%d, s%d, %d", sT, w, jp)
        k("s_lshl_b32 s%d, s%d, 11", sT, sT)
        k("s_add_u32 s%d, s%d, %d", sT, sT, L_MB)
        k("v_add_u32 %s, s%d, %s", v(aM[jp]), sT, v(aL16))
    k("v_and_b32 v90, 15, v1")
    k("v_lshrrev_b32 v91, 4, v1")
    k("v_bfe_u32 v92, v1, 2, 2")
    k("v_and_b32 v93, 3, v1")
    k("v_mul_u32_u24 v94, 320, v91")
    k("v_lshl_add_u32 v94, v90, 3, v94")
    k("s_mul_i32 s%d, s%d, 1280", sT, w)
    k("s_add_u32 s%d, s%d, %d", sT, sT, L_XB)
    k("v_add_u32 %s, s%d, v94", v(aXW), sT)
    k("s_lshr_b32 s%d, s%d, 1", sT, w)
    k("s_mul_i32 s%d, s%d, 1280", sT, sT)
    k("s_and_b32 s%d, s%d, 1", sCNT, w)
    k("s_lshl_b32 s%d, s%d, 7", sCNT, sCNT)
    k("s_add_u32 s%d, s%d, s%d", sT, sT, sCNT)
    k("s_add_u32 s%d, s%d, %d", sT, sT, L_OB)
    k("v_add_u32 %s, s%d, v94", v(aOW), sT)
    k("v_mul_u32_u24 v94, 320, v93")
    k("v_lshrrev_b32 v95, 2, v1")
    k("v_lshl_add_u32 v94, v95, 3, v94")
    k("v_add_u32 %s, %d, v94", v(aXR), L_XB)
    k("s_lshl_b32 s%d, s%d, 14", sT, w)
    k("v_add_u32 %s, s%d, %s", v(aWV), sT, v(aL16))
    k("v_add_u32 %s, 0x10000, %s", v(aWO), v(aWV))
    k("v_add_u32 %s, %d, %s", v(aKT), L_KT, v(aL16))
    k("v_lshrrev_b32 v94, 3, v90")
    k("v_lshl_add_u32 v94, v94, 2, v91")
    k("v_lshlrev_b32 v94, 13, v94")
    k("v_and_b32 v95, 7, v1")
    k("v_lshl_add_u32 %s, v95, 3, v94", v(aH1S))
    k("v_lshlrev_b32 v94, 4, v91")
    k("v_lshl_add_u32 v94, v93, 2, v94")
    k("v_mov_b32 v95, v92")
    k("v_cmp_eq_u32 vcc, 0, v95")
    k("v_mov_b32 v95, 0x40000000")
    k("v_cndmask_b32 %s, v95, v94, vcc", v(aH2S))
    k("v_and_b32 v94, 2, v1")
    k("v_cmp_eq_u32 vcc, 0, v94")
    k("v_mov_b32 v94, 0x44444444")
    k("v_mov_b32 v95, 0xeeeeeeee")
    k("v_cndmask_b32 %s, v95, v94, vcc", v(IDX))
    k("v_mov_b32 v94, 0x3f80")
    k("v_mov_b32 v95, 0x3f800000")
    for d in range(4):
        k("v_cmp_eq_u32 vcc, %d, v90", 4 * d)
        k("v_cndmask_b32 %s, 0, v94, vcc", v(SEL + d))
        k("v_cmp_eq_u32 vcc, %d, v90", 4 * d + 1)
        k("v_cndmask_b32 %s, %s, v95, vcc", v(SEL + d), v(SEL + d))
    k("s_lshl_b32 s%d, s%d, 16", sT, w)
    k("s_lshl_b32 s%d, s%d, 6", sH1S0, S_HEAD)
    k("s_add_u32 s%d, s%d, s%d", sH1S0, sH1S0, sT)
    k("s_add_u32 s%d, s%d, 0x%x", sH1S0, sH1S0, HOP1)
    k("s_add_u32 s%d, s%d, 0x1000", sH1S1, sH1S0)
    k("s_lshl_b32 s%d, s%d, 2", sH1L, S_HEAD)
    k("s_add_u32 s%d, s%d, s%d", sH1L, sH1L, w)
    k("s_lshl_b32 s%d, s%d, 11", sH1L, sH1L)
    k("s_add_u32 s%d, s%d, 0x%x", sH1L, sH1L, HOP1)
    k("s_lshr_b32 s%d, s%d, 3", sH2S, S_HEAD)
    k("s_lshl_b32 s%d, s%d, 11", sH2S, sH2S)
    k("s_and_b32 s%d, s%d, 7", sT, S_HEAD)
    k("s_lshl_b32 s%d, s%d, 6", sT, sT)
    k("s_add_u32 s%d, s%d, s%d", sH2S, sH2S, sT)
    k("s_lshl_b32 s%d, s%d, 9", sT, w)
    k("s_add_u32 s%d, s%d, s%d", sH2S, sH2S, sT)
    k("s_add_u32 s%d, s%d, 0x%x", sH2S, sH2S, HOP2)
    k("s_lshl_b32 s%d, s%d, 11", sH2L, w)
    k("s_add_u32 s%d, s%d, 0x%x", sH2L, sH2L, HOP2)
    k("s_lshl_b32 s%d, s%d, 13", sKV, S_HEAD)
    k("s_lshl_b32 s%d, s%d, 11", sT, w)
    k("s_add_u32 s%d, s%d, s%d", sKV, sKV, sT)
    k("s_add_u32 s%d, s%d, 0x%x", sVIM, sKV, VIMG)
    k("s_add_u32 s%d, s%d, 0x%x", sKV, sKV, KIMG)
    k("s_add_u32 s%d, s%d, %d", sKTD, sT, L_KT)
    k("s_lshl_b32 s%d, s%d, 12", sKM, S_HEAD)
    k("s_lshl_b32 s%d, s%d, 10", sT, w)
    k("s_add_u32 s%d, s%d, s%d", sKM, sKM, sT)
    k("s_add_u32 s%d, s%d, 0x%x", sKM, sKM, KM - 0x20000)
    k("s_mov_b32 s%d, 0x%x", sC, f2u(CSC))
    k("s_mov_b32 s%d, 400000", S_LIM)
    k("s_mov_b32 s%d, 0x33333333", sMASK)
    k("s_mov_b32 s%d, 0x33333333", sMASK + 1)
    k("s_mov_b32 s%d, 0", sPH)
    k("s_xor_b32 s%d, s%d, 0x2000", sH2R, sH2S)

def merged_setup(k):
    k("s_lshl_b32 s%d, s%d, 7", sQF, S_HEAD)
    k("s_add_u32 s%d, s%d, 0x%x", sQF, sQF, FLAGS + F_QF)
    k("s_lshl_b32 s%d, s%d, 7", sKF, S_HEAD)
    k("s_add_u32 s%d, s%d, 0x%x", sKF, sKF, FLAGS + F_KF)
    k("v_lshlrev_b32 %s, 2, v93", v(aFL))

def kv_refresh(k, plus, back=None):
    lp = k.lab("kvr"); ok = k.lab("kvok")
    k("s_mov_b32 s%d, 0", sCNT)
    k("s_add_u32 s%d, s%d, %d", sT, S_STEP, plus)
    k.L(lp)
    k("buffer_load_dword v1, %s, %s, s%d offen sc1", v(aFL), s(S_WS, 4), sQF)
    k("s_waitcnt vmcnt(0)")
    k("v_cmp_ge_u32 vcc, s%d, v1", sT)
    k("s_cbranch_vccz %s", ok)
    k("s_sleep 2")
    k("s_add_u32 s%d, s%d, 1", sCNT, sCNT)
    k("s_cmp_lt_u32 s%d, s%d", sCNT, S_LIM)
    k("s_cbranch_scc1 %s", lp)
    k("s_mov_b32 s%d, 0", S_LIM)
    k.L(ok)
    if back: k("s_branch %s", back)

import chain as _c1
def chain_arm(k):
    k.c("---- arm hop buffers (both slots), sc1")
    for i in range(4): k("v_mov_b32 %s, -1", v(96 + i))
    for slot in range(2):
        k("s_add_u32 s%d, s%d, 0x%x", sT, sH1L, slot * 262144)
        k("buffer_store_dwordx4 v[96:99], %s, %s, s%d offen sc1", v(aL16), s(S_WS, 4), sT)
        k("buffer_store_dwordx4 v[96:99], %s, %s, s%d offen offset:1024 sc1", v(aL16), s(S_WS, 4), sT)
    k("buffer_store_dword v96, %s, %s, s%d offen sc1", v(aH2S), s(S_WS, 4), sH2R)
load_mem0 = _c1.load_mem0
WVR_ = 128
WOR_ = 192

def chain_load_weights(k, hooks={}, pre_issue={}, after_first=None):
    w = S_WAVE
    k.c("---- chain weight load")
    k("v_and_b32 v90, 15, v1")
    k("v_lshrrev_b32 v91, 4, v1")
    k("s_and_b32 s44, s%d, 1", w)
    k("s_lshl_b32 s44, s44, 2")
    k("v_xor_b32 v120, s44, v90")
    k("v_and_b32 v121, 1, v91")
    k("v_lshlrev_b32 v121, 3, v121")
    k("v_xor_b32 v120, v120, v121")
    k("v_lshlrev_b32 v120, 4, v120")
    k("v_lshl_add_u32 v120, v91, 13, v120")
    k("s_lshl_b32 s45, s%d, 8", S_HEAD)
    k("s_lshl_b32 s48, s%d, 17", w)
    k("s_add_u32 s45, s45, s48")
    k("s_lshl_b32 s44, s%d, 12", w)
    sc = [('q', 0), ('q', 1), ('k', 0), ('k', 1), ('v', 1), ('o', 0), ('v', 0), ('o', 1)]
    srds = dict(q=S_WQ, k=S_WK, v=S_WV, o=S_WO)
    queue = []
    def issue(i):
        m, par = sc[i]; reg = (i & 1) * 65536
        for n in range(16):
            if m == 'o':
                k("s_add_u32 s48, s49, %d", par * 128 + n * 8192)
                k("s_add_u32 m0, s3, %d", n * 1024)
            else:
                c, q = n >> 2, n & 3
                k("s_add_u32 s48, s45, %d", (2 * c + par) * 64 * 8192 + q * 4 * 8192)
                k("s_add_u32 m0, s44, %d", reg + c * 16384 + q * 1024)
            k("buffer_load_dwordx4 v%d, %s, s48 offen lds", 121 if m == 'o' else 120, s(srds[m], 4))
            queue.append(i)
    k("s_waitcnt lgkmcnt(0)")
    fin_srd(k, 'Wq', S_WQ)
    lstamp(k, 7)
    issue(0)
    if after_first: after_first(k)
    k("v_lshrrev_b32 v121, 3, v1")
    k("v_lshlrev_b32 v121, 10, v121")
    k("v_and_b32 v122, 7, v1")
    k("v_lshl_add_u32 v121, v122, 4, v121")
    k("v_and_b32 v126, 1, v92")
    k("v_lshl_add_u32 v126, v126, 2, v91")
    k("v_lshrrev_b32 v127, 1, v92")
    k("v_lshl_add_u32 v126, v126, 2, v127")
    k("v_lshlrev_b32 v126, 8, v126")
    k("v_xor_b32 v127, s%d, v92", w)
    k("v_lshl_add_u32 v126, v127, 6, v126")
    k("v_lshl_add_u32 v126, v93, 4, v126")
    for jp in range(4):
        k("s_xor_b32 s48, s%d, %d", w, jp)
        k("s_lshl_b32 s48, s48, 14")
        k("v_add_u32 v%d, s48, v126", 122 + jp)
    k("v_lshrrev_b32 v126, 1, v92")
    k("v_lshrrev_b32 v127, 1, v91")
    k("v_lshl_add_u32 v126, v127, 1, v126")
    k("v_and_b32 v127, 1, v91")
    k("v_lshl_add_u32 v126, v127, 3, v126")
    k("v_lshlrev_b32 v126, 2, v126")
    k("v_and_b32 v127, 1, v92")
    k("v_add_u32 v126, v126, v127")
    k("v_lshlrev_b32 v126, 7, v126")
    k("v_lshl_add_u32 v126, v93, 3, v126")
    k("s_lshl_b32 s48, s%d, 14", w)
    k("s_add_u32 s3, s48, 0x10000")
    k("v_add_u32 v126, s3, v126")
    k("s_lshl_b32 s49, s%d, 17", S_HEAD)
    k("s_lshl_b32 s48, s%d, 8", w)
    k("s_add_u32 s49, s49, s48")
    if -1 in hooks: queue.extend([-1] * hooks[-1](k))
    issue(1)
    lstamp(k, 5)
    TMP = 40
    for i in range(8):
        m, par = sc[i]
        if i in hooks: queue.extend([-1] * hooks[i](k))
        last = max(n for n, c in enumerate(queue) if c == i)
        k("s_waitcnt vmcnt(%d)", len(queue) - 1 - last)
        k("s_barrier")
        if i in (0, 2, 4, 5, 6): lstamp(k, {0: 0, 2: 2, 4: 4, 5: 1, 6: 3}[i])
        inplace = i >= 6
        cnt = 0
        for a_ in range(4):
            for b_ in range(2):
                if inplace: dst = TMP + (a_ * 2 + b_) * 8
                elif m == 'q': dst = WQ + (b_ * 8 + 2 * a_ + par) * 8
                elif m == 'k': dst = WK + (b_ * 8 + 2 * a_ + par) * 8
                elif m == 'v': dst = WVR_ + (a_ * 2 + b_) * 8
                else: dst = WOR_ + (a_ * 2 + b_) * 8
                for y in range(4):
                    if m == 'o':
                        k("ds_read_b64_tr_b16 %s, v126 offset:%d", u(dst + 2 * y, 2), (64 * b_ + 16 * (y >> 1) + 2 * (y & 1)) * 128 + 32 * a_)
                    else:
                        k("ds_read_b64_tr_b16 %s, v%d offset:%d", u(dst + 2 * y, 2), 122 + a_, (32 * (y >> 1) + 2 * (y & 1)) * 256 + 8 * b_)
                cnt += 4
                if cnt % 8 == 0: k("s_waitcnt lgkmcnt(4)")
        if i < 4:
            for jp in range(4): k("v_xor_b32 v%d, 0x10000, v%d", 122 + jp, 122 + jp)
        k("s_waitcnt lgkmcnt(0)")
        k("s_barrier")
        if inplace:
            for q in range(16):
                k("ds_write_b128 %s, %s offset:%d", v(aWO if m == 'o' else aWV), v(TMP + 4 * q, 4), q * 1024)
                if q % 8 == 7: k("s_waitcnt lgkmcnt(0)")
        if i in pre_issue: queue.extend([-1] * pre_issue[i](k))
        if i + 2 < 8: issue(i + 2)


def PFK(p):
    W = s(S_WS, 4)
    return [["s_mov_b32 m0, s%d" % sKTD, "buffer_load_dwordx4 %s, %s, s%d offen sc1 lds" % (v(aL16), W, sKV)],
            ["buffer_load_dwordx4 %s, %s, s%d offen offset:1024 sc1 lds" % (v(aL16), W, sKV)],
            ["buffer_load_dwordx4 %s, %s, %s, s%d offen sc1" % (v(VTN, 4), v(aL16), W, sVIM)],
            ["buffer_load_dwordx4 %s, %s, %s, s%d offen offset:1024 sc1" % (v(VTN + 4, 4), v(aL16), W, sVIM)],
            ["s_add_u32 s%d, s%d, 0x40000" % (sKV, sKV), "s_add_u32 s%d, s%d, 0x40000" % (sVIM, sVIM),
             "s_xor_b32 s%d, s%d, 0x2000" % (sKTD, sKTD)]][p]

def WVR(n, h):
    return "ds_read_b128 %s, %s offset:%d" % (v(G + (n & 3) * 8 + 4 * h, 4), v(aWV), n * 2048 + h * 1024)

def weave(k, spine, fill):
    for i, m in enumerate(spine):
        k(m)
        for f in fill.get(i, []): k(f)

def check_n(k, buf, n, t0, t1):
    if n == 8:
        k("v_max3_u32 %s, %s, %s, %s", v(t0), v(buf), v(buf + 1), v(buf + 2))
        k("v_max3_u32 %s, %s, %s, %s", v(t1), v(buf + 3), v(buf + 4), v(buf + 5))
        k("v_max3_u32 %s, %s, %s, %s", v(t0), v(buf + 6), v(buf + 7), v(t0))
        k("v_max_u32 %s, %s, %s", v(t0), v(t0), v(t1))
    else:
        k("v_max3_u32 %s, %s, %s, %s", v(t0), v(buf), v(buf + 1), v(buf + 2))
        k("v_max_u32 %s, %s, %s", v(t0), v(t0), v(buf + 3))
    k("v_cmp_eq_u32 vcc, -1, %s", v(t0))

def retry_stub(k, lab, back, loads, buf, n, pre=None, cnt=None):
    k.L(lab)
    lp = k.lab("rp")
    k("s_mov_b32 s%d, 0", sCNT)
    k.L(lp)
    for l in loads: k(l)
    if cnt is not None and getattr(k, 'ticks', False): k("s_add_u32 s%d, s%d, 1", cnt, cnt)
    k("s_waitcnt vmcnt(0)")
    if pre:
        for l in pre: k(l)
    check_n(k, buf, n, CT, CT + 1)
    k("s_cbranch_vccz %s", back)
    k("s_add_u32 s%d, s%d, 1", sCNT, sCNT)
    k("s_cmp_lt_u32 s%d, s%d", sCNT, S_LIM)
    k("s_cbranch_scc1 %s", lp)
    k("s_mov_b32 s%d, 0", S_LIM)
    k("s_branch %s", back)

def delay(k, slots):
    while slots > 0:
        m = min(slots, 16); k("s_nop %d", m - 1); slots -= m

def chain_loop(k, stf, tag):
    W = s(S_WS, 4)
    o = getattr(k, 'copt', {})
    mg = getattr(k, 'merged', False)
    tk = getattr(k, 'ticks', False)
    TK = lambda i: ("s_memtime s[%d:%d]" % (64 + 2 * i, 65 + 2 * i)) if tk else ""
    lexit = k.lab(tag + "exit"); bexit = k.lab(tag + "bexit")
    Qs = lambda j, b: [SMF(AQ, b, WQ + j * 8), SMF(AQ + 4, b, WQ + (8 + j) * 8)]
    Ks = lambda j, b: [SMF(AK, b, WK + j * 8), SMF(AK + 4, b, WK + (8 + j) * 8)]
    Vs = lambda j, b: [SMF(AV + 4 * t, b, (G + ((j + t) & 3) * 8) if j % 2 == 0 else (WVR_ + ((j >> 1) * 2 + t) * 8)) for t in range(2)]
    Q = lambda j: Qs(j, MA + 4 * j); Kp = lambda j: Ks(j, MA + 4 * j); V = lambda j: Vs(j, MA + 4 * j)
    KORD = [0, 1, 2, 4, 6, 3, 5, 7]
    MR = lambda j: "ds_read_b128 %s, %s offset:%d" % (v(MA + 4 * j, 4), v(aM[j >> 1]), (j & 1) * 1024)
    KTR = lambda f: "ds_read_b128 %s, %s offset:%d" % (v(MA + 4 * KORD[f], 4), v(aKT), f * 1024)
    MV = lambda d, x: "v_mov_b32 %s, %s" % (v(d), x)
    EX = lambda d, s_: "v_exp_f32 %s, %s" % (v(d), v(s_))
    CV = lambda d, a_, b_: "v_cvt_pk_bf16_f32 %s, %s, %s" % (v(d), v(a_), v(b_))
    FA = lambda a_: ["v_add_f32 %s, %s, %s" % (v(a_), v(a_), v(a_ + 2)), "v_add_f32 %s, %s, %s" % (v(a_ + 1), v(a_ + 1), v(a_ + 3))]
    stkvm = "buffer_store_dwordx4 %s, %s, %s, s%d offen sc1" % (v(KVM, 4), v(aL16), W, sKM)
    r_sm = k.lab(tag + "rsm"); b_sm = k.lab(tag + "bsm"); r_kv = k.lab(tag + "rkv"); b_kv = k.lab(tag + "bkv")
    EB = [MA, VTN]
    lF = [k.lab(tag + "s0f") for _ in EB]; lto = k.lab(tag + "to")
    RD = MA + 16; HT = MA + 20; H1 = MA + 8; H1B = MA + 24
    lde = lambda b: ["buffer_load_dwordx4 %s, %s, %s, s%d offen sc1" % (v(b, 4), v(aL16), W, sH2L),
                     "buffer_load_dwordx4 %s, %s, %s, s%d offen offset:1024 sc1" % (v(b + 4, 4), v(aL16), W, sH2L)]
    def spin(reg, n, lab, magic="0x7fc1"):
        for i in range(n):
            k("v_cmp_ne_u32 vcc, %s, %s", magic, v(reg))
            k("s_cbranch_vccnz %s", lab)
    lS = [k.lab(tag + "s0v") for _ in EB]; lcom = k.lab(tag + "com"); lpoll = k.lab(tag + "poll")
    k("s_branch %s", lS[0])
    k(".aw_on")
    nb0 = o.get('b0', 5)
    fl = [[],
          ["buffer_load_dword v1, %s, %s, s%d offen sc1" % (v(aFL4), W, sQF)]] if mg else [[], []]
    for bi in (1, 0):
        b = EB[bi]; ob = EB[1 - bi]
        k(".aw_reset")
        k.L(lF[1 - bi])
        if o.get('nanc', 1):
            k("v_max_u32 %s, %s, %s", v(HT), v(ob + 3), v(ob + 7))
            k("v_cmp_eq_u32 vcc, -1, %s", v(HT))
            k("s_cbranch_vccz %s", lS[1 - bi])
        if o.get('mask', 0): k("s_mov_b64 exec, vcc")
        for l in lde(ob): k(l)
        if o.get('mask', 0): k("s_mov_b64 exec, -1")
        if tk: k("s_add_u32 s97, s97, 1")
        k("s_add_u32 s%d, s%d, 1", sCNT, sCNT)
        k("s_cmp_ge_u32 s%d, s%d", sCNT, S_LIM)
        k("s_cbranch_scc1 %s", lto)
        if bi == 0: k.L(lpoll)
        ar = k.lab(tag + "ar2")
        spin(b + 7, o.get('ns2', 16), ar, "-2")
        k.L(ar)
        k("s_waitcnt vmcnt(2)")
        if o.get('nanc', 1): k("v_cmp_u_f32 vcc, %s, %s", v(b + 3), v(b + 7))
        else:
            k("v_max_u32 %s, %s, %s", v(HT), v(b + 3), v(b + 7))
            k("v_cmp_eq_u32 vcc, -1, %s", v(HT))
        k("s_cbranch_vccnz %s", lF[bi])
        k.L(lS[bi])
        tick(k, 15); tick_step_end(k); tick(k, 0)
        if o.get('plog2'): k("s_memtime s[64:65]"); k("s_memrealtime s[66:67]")
        w64 = o.get('w64', 0)
        if w64 == 0: k("ds_write_b128 %s, %s", v(aM[0]), v(b, 4))
        f = {o.get('gw2', 2): ["ds_write_b128 %s, %s offset:1024" % (v(aM[0]), v(b + 4, 4))], nb0: [".aw_writes", "s_barrier", TK(1), MR(2)]}
        if w64 == 1:
            del f[o.get('gw2', 2)]
            ws = ["ds_write_b64 %s, %s offset:%d" % (v(aM[0]), v(b + 2 * i, 2), (i >> 1) * 1024 + (i & 1) * 8) for i in range(4)]
            k(ws[0])
            for i in range(1, 4): f[i - 1] = [ws[i]]
        if w64 == 2:
            del f[o.get('gw2', 2)]
            ws = ["ds_write_b32 %s, %s offset:%d" % (v(aM[0]), v(b + i), (i >> 2) * 1024 + (i & 3) * 4) for i in range(8)]
            k(ws[0]); k(ws[1])
            for i in range(3): f[i] = ws[2 + 2 * i: 4 + 2 * i]
        for x in range(3, 8): f[min(nb0 + x - 2, 11)] = f.get(min(nb0 + x - 2, 11), []) + [MR(x)]
        if o.get('early', 0): f[1] = PFK(0)[1:]; f[2] = PFK(1); f[3] = [stkvm]; f[4] = fl[0]
        for g_, x in zip(o.get('ks0', []), [PFK(0)[1:], PFK(1)]): f[g_] = f[g_] + x
        weave(k, Qs(0, b) + Ks(0, b) + Qs(1, b + 4) + Ks(1, b + 4) + Vs(0, b) + Vs(1, b + 4), f)
        if bi: k("s_branch %s", lcom)
    k.L(lcom)
    r_qf = k.lab(tag + "rqf"); b_qf = k.lab(tag + "bqf")
    if mg and o.get('qfc', 1):
        k("s_cbranch_scc1 %s", r_qf) if False else None
    qf = []
    for t in range(2):
        a_ = AQ + 4 * t
        qf += FA(a_) + ["v_mul_f32 %s, s%d, %s" % (v(a_), sC, v(a_)), "v_mul_f32 %s, s%d, %s" % (v(a_ + 1), sC, v(a_ + 1)), CV(a_, a_, a_ + 1)]
    E_ = lambda x: [] if o.get('early', 0) else x
    pl_ = (["v_mov_b32 v34, s64", "v_mov_b32 v35, s66", "v_mov_b32 v33, 0", "s_lshl_b32 s68, s%d, 3" % S_STEP, "s_add_u32 s68, s68, s100",
             "buffer_store_dwordx2 v[34:35], v33, %s, s68 offen" % W] if o.get('plog2') else [])
    vp = o.get('vp', [3, 5, 7, 9, 0])
    fq = {g_: [] for g_ in range(24)}
    fq[0] += [TK(2), "s_waitcnt vmcnt(%d)" % len(o.get('ks0', []))]
    for g_, x in zip(vp, [PFK(2), PFK(3), PFK(0)[1:], PFK(1), [stkvm]] if not o.get('ks0') else [PFK(2), PFK(3), [stkvm]]): fq[g_] += x
    free = [g_ for g_ in range(1, 23) if g_ not in vp]
    misc = [[WVR(4, 0)], [WVR(4, 1)], [WVR(5, 0)], [WVR(5, 1)], [KTR(1)], pl_ + [KTR(0)]]
    if mg and o.get('qfc', 1): misc = [["s_cmp_lg_u32 s%d, 0" % sSAFE, "s_cbranch_scc1 %s" % r_qf, b_qf + ":"]] + misc
    for x in misc: fq[free.pop(0)] += x
    late = [g_ for g_ in free if g_ > max(vp)]
    fq[late[0]] += (PFK(4)[:2] if not o.get('xkv') else ["s_nop 0", "s_nop 0"]); fq[late[1]] += PFK(4)[2:] + ["s_add_u32 s%d, s%d, 0x20000" % (sKM, sKM)]
    for g_, q_ in zip(range(13, 23), [0, 1, 5, 6, 2, 3, 7, 8, 4, 9]): fq[g_] += [qf[q_]]
    fq[23] += ["ds_write2_b32 %s, %s, %s offset0:0 offset1:32" % (v(aXW), v(AQ), v(AQ + 4))]
    weave(k, Q(2) + Q(3) + Q(4) + Q(5) + Q(6) + Q(7) + Kp(2) + Kp(3) + Kp(4) + Kp(5) + Kp(6) + Kp(7), fq)
    X = AQ
    XR = lambda i: "ds_read_b64_tr_b16 %s, %s offset:%d" % (v(X + 2 * i, 2), v(aXR), (i >> 1) * 1280 + (i & 1) * 128)
    ONES, PM, LA, E, T1, T2, T0 = G, G + 4, G + 8, G + 12, G + 20, G + 24, G + 28
    O1 = "0x3f803f80"
    KORD[:] = [0, 1, 2, 4, 3, 5, 6, 7]
    kf = FA(AK) + FA(AK + 4) + [CV(AQ + 1, AK, AK + 1), CV(AQ + 5, AK + 4, AK + 5)]
    XW = "ds_write2_b64 %s, %s, %s offset0:0 offset1:16" % (v(aXW), v(AQ, 2), v(AQ + 4, 2))
    BAR = [".aw_writes", "s_barrier", TK(6)]
    vs = V(2) + V(4) + V(3) + V(5) + V(6) + V(7)
    nb = o.get('xb', 6)
    f = {0: [WVR(6, 0)] + kf, 1: [XW, TK(5)], 2: [WVR(6, 1), MV(KVM, v(AQ + 1))], 3: [WVR(7, 0), MV(KVM + 1, v(AQ + 5))], 4: [WVR(7, 1), MV(ONES, O1)], 5: [KTR(2), MV(ONES + 1, O1)]}
    mv = [MV(ONES + 2, O1), MV(ONES + 3, O1), MV(PM + 1, "0"), MV(PM + 2, "0")]
    if o.get('qw', 1):
        kf = FA(AK) + FA(AK + 4) + [CV(KVM, AK, AK + 1), CV(KVM + 1, AK + 4, AK + 5)]
        XW = "ds_write2_b32 %s, %s, %s offset0:1 offset1:33" % (v(aXW), v(KVM), v(KVM + 1))
        f = {0: [WVR(6, 0)] + kf, 1: [XW, TK(5)], 2: [WVR(6, 1)], 3: [WVR(7, 0), MV(ONES, O1)], 4: [WVR(7, 1), MV(ONES + 1, O1)], 5: [KTR(2), MV(ONES + 2, O1)]}
        mv = [MV(ONES + 3, O1), MV(PM + 1, "0"), MV(PM + 2, "0")]
    xs = [XR(i) for i in range(8)]
    cnt = o.get('xc', {5: [2, 1, 1, 1, 1, 1, 1], 6: [1, 2, 2, 1, 1, 1], 7: [2, 2, 2, 1, 1], 8: [2, 2, 2, 2]}[nb])
    for g_ in range(6, nb): f[g_] = [KTR(3) if g_ == 6 else KTR(4), mv.pop(0)]
    kdone = 3 + max(0, nb - 6)
    for x, c_ in enumerate(cnt):
        f[nb + x] = (f.get(nb, []) + BAR if x == 0 else []) + xs[:c_]; xs = xs[c_:]
    assert not xs
    weave(k, vs, f)
    vf = []
    for t in range(2): vf += FA(AV + 4 * t) + [CV(KVM + 2 + t, AV + 4 * t, AV + 4 * t + 1)]
    t1 = lambda kb: MF(T1, MA + 4 * KORD[kb], X + 4 * kb, kb == 0)
    t2 = lambda kb: MF(T2, MA + 4 * KORD[4 + kb], X + 4 * kb, kb == 0)
    t0 = lambda kb: MF(T0, X + 4 * kb, X + 4 * kb, kb == 0)
    KQ = lambda i: [KTR(kdone + i)] if kdone + i < 8 else []
    tb = o.get('tb', 1)
    fc = {0: [TK(7)] + KQ(0) + mv[:1], 1: KQ(1) + [vf[0]], 2: KQ(2) + [vf[1]], 3: KQ(3) + [vf[3]], 4: KQ(4) + [vf[4]], 5: [vf[2], vf[5]],
          6: ["s_cmp_ge_u32 s%d, %d" % (S_STEP, o.get('kvl', 59)), "s_cbranch_scc1 %s" % lexit, bexit + ":"] + mv[1:2], 7: mv[2:]}
    if tb == 0:
        fc.update({8: [EX(E, T1)], 9: [EX(E + 1, T1 + 1)], 10: [EX(E + 2, T1 + 2)],
            11: [EX(E + 3, T1 + 3), EX(T0, T0 + 2), EX(T0 + 1, T0 + 3), CV(E, E, E + 1), CV(E + 1, E + 2, E + 3), CV(PM, T0, T0 + 1), CV(PM + 3, T0, T0 + 1)]})
        weave(k, [t1(0), t0(0), t1(1), t0(1), t1(2), t0(2), t1(3), t2(0), t0(3), t2(1), t2(2), t2(3)], fc)
        pvf = {0: [EX(E + 4, T2)], 1: [EX(E + 5, T2 + 1)], 2: [EX(E + 6, T2 + 2), EX(E + 7, T2 + 3), CV(E + 2, E + 4, E + 5), CV(E + 3, E + 6, E + 7)]}
    else:
        fc.update({8: [EX(T0, T0 + 2)], 9: [EX(T0 + 1, T0 + 3)], 10: [CV(PM, T0, T0 + 1), CV(PM + 3, T0, T0 + 1)], 11: [EX(E, T1)]})
        weave(k, [t0(0), t1(0), t0(1), t1(1), t0(2), t1(2), t0(3), t1(3), t2(0), t2(1), t2(2), t2(3)], fc)
        pvf = {0: [EX(E + 1, T1 + 1)], 1: [EX(E + 2, T1 + 2)], 2: [EX(E + 3, T1 + 3), EX(E + 4, T2), EX(E + 5, T2 + 1), CV(E, E, E + 1), EX(E + 6, T2 + 2), EX(E + 7, T2 + 3),
               CV(E + 1, E + 2, E + 3), CV(E + 2, E + 4, E + 5), CV(E + 3, E + 6, E + 7)]}
    O = AV
    Z = lambda i: "v_mov_b32 %s, 0" % v(MA + i)
    M16z = lambda d, A, B: "v_mfma_f32_16x16x16_bf16 %s, %s, %s, 0" % (v(d, 4), v(A, 2), v(B, 2))
    tick(k, 8)
    def pv(k, fast):
        weave(k, [M16z(LA, PM, ONES), M16z(O, PM, KVM + 2), M16z(O + 4, PM + 2, KVM + 2)],
              pvf if fast else {})
        weave(k, [MF(LA, E, ONES, False), MF(O, E, VT, False), MF(O + 4, E, VT + 4, False)], {})
    pv(k, True)
    k("v_rcp_f32 %s, %s", v(LA), v(LA))
    k("v_rcp_f32 %s, %s", v(LA + 1), v(LA + 1))
    k.L(b_sm)
    for t in range(2):
        if o.get('pk', 1): k("v_pk_mul_f32 %s, %s, %s", v(O + 4 * t, 2), v(O + 4 * t, 2), v(LA, 2))
        else:
            k("v_mul_f32 %s, %s, %s", v(O + 4 * t), v(O + 4 * t), v(LA))
            k("v_mul_f32 %s, %s, %s", v(O + 4 * t + 1), v(O + 4 * t + 1), v(LA + 1))
        k(CV(E + 4 + t, O + 4 * t, O + 4 * t + 1))
    k("ds_write_b64 %s, %s", v(aOW), v(E + 4, 2))
    tick(k, 9)
    Z2 = lambda i: "v_mov_b64 %s, 0" % v(MA + 2 * i, 2)
    ZP = X + 8 + 6
    ZM = lambda r: "v_mfma_f32_32x32x8_bf16 %s, %s, %s, 0" % (v(r, 16), v(ZP, 2), v(ZP, 2))
    k("v_max3_f32 %s, |%s|, |%s|, |%s|", v(X), v(T1), v(T1 + 1), v(T1 + 2))
    k("v_max3_f32 %s, |%s|, |%s|, |%s|", v(X + 1), v(T1 + 3), v(T2), v(T2 + 1))
    k("v_max3_f32 %s, |%s|, |%s|, %s", v(X), v(T2 + 2), v(T2 + 3), v(X))
    k("v_max3_f32 %s, |%s|, |%s|, %s", v(X + 1), v(T0 + 2), v(T0 + 3), v(X + 1))
    k("v_mov_b64 %s, 0", v(ZP, 2))
    k("v_max_f32 %s, %s, %s", v(X), v(X), v(X + 1))
    k("v_cmp_lt_f32 vcc, s%d, %s", sTHR, v(X))
    k("s_and_b64 vcc, vcc, %s", s(sMASK, 2))
    k("s_cbranch_scc1 %s", r_sm)
    k("s_mov_b32 s%d, 0x42700000", sTHR)
    k(ZM(MA))
    k(".aw_writes"); k("s_barrier")
    tick(k, 10)
    OA = AQ
    for i in range(4):
        k("ds_read_b64_tr_b16 %s, %s offset:%d", v(OA + 2 * i, 2), v(aXR), (L_OB - L_XB) + (i >> 1) * 1280 + (i & 1) * 128)
        if i == o.get('zp', 1): k(ZM(MA + 16))
    PK = AK
    SB = {(4, 0): G, (5, 0): G + 8, (4, 1): G + 16, (5, 1): G + 24, (6, 0): VT, (7, 0): AV, (6, 1): G, (7, 1): G + 8}
    WOB = lambda nt, kbo: (WOR_ + (nt * 2 + kbo) * 8) if nt < 4 else SB[(nt, kbo)]
    WR = lambda nt, kbo, h: "ds_read_b128 %s, %s offset:%d" % (v(SB[(nt, kbo)] + 4 * h, 4), v(aWO), ((nt - 4) * 2 + kbo) * 2048 + h * 1024)
    WS_ = lambda nt, kbo: SMF(MA + 4 * nt, OA + 4 * kbo, WOB(nt, kbo))
    AD = lambda nt, b: "v_add_f32 %s, %s, %s" % (v(MA + 4 * nt + b), v(MA + 4 * nt + b), v(MA + 4 * nt + 2 + b))
    PC = lambda sx, b, hh: CV(PK + 4 * sx + 2 * b + hh, MA + 4 * (4 * sx + 2 * hh) + b, MA + 4 * (4 * sx + 2 * hh + 1) + b)
    ST1 = lambda sx: "buffer_store_dwordx4 %s, %s, %s, s%d offen %s" % (v(PK + 4 * sx, 4), v(aH1S), W, sH1S1 if sx else sH1S0, stf)
    PA = lambda nt: "v_pk_add_f32 %s, %s, %s" % (v(MA + 4 * nt, 2), v(MA + 4 * nt, 2), v(MA + 4 * nt + 2, 2))
    TG = lambda sx: "v_and_or_b32 %s, %s, -2, s%d" % (v(PK + 4 * sx), v(PK + 4 * sx), sPH)
    k(WR(4, 0, 0)); k(WR(4, 0, 1))
    A2 = lambda nt: [PA(nt)] if o.get('pk', 1) else [AD(nt, 0), AD(nt, 1)]
    P2 = lambda tp, b: CV(PK + 2 * tp + b, MA + 8 * tp + b, MA + 8 * tp + 4 + b)
    T2_ = lambda tp: "v_and_or_b32 %s, %s, -2, s%d" % (v(PK + 2 * tp), v(PK + 2 * tp), sPH)
    S2 = lambda tp: "buffer_store_dwordx2 %s, %s, %s, s%d offen offset:%d %s" % (v(PK + 2 * tp, 2), v(aH1S), W, sH1S1 if tp >> 1 else sH1S0, (tp & 1) * 2048, stf)
    fin = lambda tp: [AD(2 * tp + 1, 0), AD(2 * tp + 1, 1), P2(tp, 0), P2(tp, 1), T2_(tp), S2(tp)]
    fa = {0: [TK(11), WR(5, 0, 0)], 1: [WR(5, 0, 1)], 2: [WR(4, 1, 0)], 3: [WR(4, 1, 1)],
        4: [WR(5, 1, 0), AD(0, 0)], 5: [WR(5, 1, 1), AD(0, 1)] + fin(0) + [TK(12)], 6: [WR(6, 0, 0), WR(6, 0, 1)], 7: [WR(7, 0, 0), WR(7, 0, 1)],
        8: [WR(6, 1, 0), AD(2, 0)], 9: [WR(6, 1, 1), AD(2, 1), WR(7, 1, 0), WR(7, 1, 1)] + fin(1),
        12: [AD(4, 0)], 13: [AD(4, 1)] + fin(2),
        15: A2(6) + A2(7) + [P2(3, 0), P2(3, 1), T2_(3), S2(3)]}
    wv_ = o.get('wv', 3)
    if wv_ == 0:
        fa = {0: [TK(11), WR(5, 0, 0)], 1: [WR(5, 0, 1)], 2: [WR(4, 1, 0)], 3: [WR(4, 1, 1)],
            4: [WR(5, 1, 0), AD(0, 0)], 5: [WR(5, 1, 1), AD(0, 1)], 6: [WR(6, 0, 0), AD(1, 0)], 7: [WR(6, 0, 1), WR(7, 0, 0), WR(7, 0, 1)] + fin(0)[1:] + [TK(12)],
            8: [WR(6, 1, 0), AD(2, 0)], 9: [WR(6, 1, 1), AD(2, 1)], 10: [WR(7, 1, 0), AD(3, 0)], 11: [WR(7, 1, 1)] + fin(1)[1:],
            12: [AD(4, 0)], 13: [AD(4, 1)], 14: [AD(5, 0)],
            15: fin(2)[1:] + A2(6) + A2(7) + [P2(3, 0), P2(3, 1), T2_(3), S2(3)]}
    elif wv_ == 1:
        fa = {0: [TK(11), WR(5, 0, 0)], 1: [WR(5, 0, 1)], 2: [WR(4, 1, 0), WR(4, 1, 1)], 3: [WR(5, 1, 0), WR(5, 1, 1)],
            4: [WR(6, 0, 0), AD(0, 0)], 5: [WR(6, 0, 1), AD(0, 1)], 6: [WR(7, 0, 0)] + fin(0)[:-1], 7: [S2(0), TK(12), WR(7, 0, 1)],
            8: [WR(6, 1, 0), AD(2, 0)], 9: [WR(6, 1, 1), AD(2, 1)], 10: [WR(7, 1, 0), WR(7, 1, 1)] + fin(1)[:-1], 11: [S2(1)],
            12: [AD(4, 0)], 13: [AD(4, 1)], 14: fin(2)[:-1],
            15: [S2(2)] + A2(6) + A2(7) + [P2(3, 0), P2(3, 1), T2_(3), S2(3)]}
    elif wv_ == 3:
        fa = {0: [TK(11), WR(5, 0, 0)], 1: [WR(5, 0, 1)], 2: [WR(4, 1, 0), WR(4, 1, 1)], 3: [WR(5, 1, 0), WR(5, 1, 1)],
            4: [WR(6, 0, 0), AD(0, 0)], 5: [WR(6, 0, 1), AD(0, 1)], 6: [WR(7, 0, 0)] + fin(0)[:-1], 7: [S2(0), TK(12), WR(7, 0, 1)],
            8: [WR(6, 1, 0), AD(2, 0)], 9: [WR(6, 1, 1), AD(2, 1)], 10: [WR(7, 1, 0), WR(7, 1, 1)] + fin(1)[:-1], 11: [S2(1)],
            12: [AD(4, 0)], 13: [AD(4, 1)] + fin(2)[:-1], 14: [S2(2)],
            15: A2(6) + A2(7) + [P2(3, 0), P2(3, 1), T2_(3), S2(3)]}
    elif wv_ == 4:
        fa = {0: [TK(11), WR(5, 0, 0)], 1: [WR(5, 0, 1)], 2: [WR(4, 1, 0), WR(4, 1, 1)], 3: [WR(5, 1, 0), WR(5, 1, 1)],
            4: [WR(6, 0, 0), AD(0, 0)], 5: [WR(6, 0, 1), AD(0, 1)], 6: [WR(7, 0, 0), AD(1, 0)], 7: [WR(7, 0, 1)] + fin(0)[1:-1], 8: [S2(0), TK(12), WR(6, 1, 0), AD(2, 0)],
            9: [WR(6, 1, 1), AD(2, 1)], 10: [WR(7, 1, 0), WR(7, 1, 1)] + fin(1)[:-1], 11: [S2(1)],
            12: [AD(4, 0)], 13: [AD(4, 1)] + fin(2)[:-1], 14: [S2(2)],
            15: A2(6) + A2(7) + [P2(3, 0), P2(3, 1), T2_(3), S2(3)]}
    else:
        fa = {0: [TK(11), WR(5, 0, 0)], 1: [WR(5, 0, 1)], 2: [WR(4, 1, 0), WR(4, 1, 1)], 3: [WR(5, 1, 0), WR(5, 1, 1)],
            4: [WR(6, 0, 0), AD(0, 0)], 5: [WR(6, 0, 1), AD(0, 1)], 6: [WR(7, 0, 0), AD(1, 0)], 7: [WR(7, 0, 1)] + fin(0)[1:-1], 8: [S2(0), TK(12), WR(6, 1, 0), AD(2, 0)],
            9: [WR(6, 1, 1), AD(2, 1)], 10: [WR(7, 1, 0), AD(3, 0)], 11: [WR(7, 1, 1)] + fin(1)[1:-1], 12: [S2(1), AD(4, 0)],
            13: [AD(4, 1)], 14: fin(2)[:-1],
            15: [S2(2)] + A2(6) + A2(7) + [P2(3, 0), P2(3, 1), T2_(3), S2(3)]}
    weave(k, [WS_(0, 0), WS_(1, 0), WS_(0, 1), WS_(1, 1), WS_(2, 0), WS_(3, 0), WS_(2, 1), WS_(3, 1), WS_(4, 0), WS_(5, 0),
              WS_(4, 1), WS_(5, 1), WS_(6, 0), WS_(7, 0), WS_(6, 1), WS_(7, 1)], fa)
    tick(k, 13)
    if o.get('plog'):
        k("s_mov_b32 m0, s%d", S_STEP)
        k("v_writelane_b32 v1, s64, m0")
    RD = MA + 16; HT = MA + 20; H1 = MA + 8; H1B = MA + 24
    h1lb = lambda b: ["buffer_load_dwordx4 %s, %s, %s, s%d offen sc1" % (v(b, 4), v(aL16), W, sH1L),
           "buffer_load_dwordx4 %s, %s, %s, s%d offen offset:1024 sc1" % (v(b + 4, 4), v(aL16), W, sH1L)]
    redb = lambda b: [MF(RD, SEL, b, True), MF(RD, SEL, b + 4, False),
           "v_bitop3_b32 %s, %s, %s, s%d bitop3:0x7e" % (v(HT), v(b), v(b + 4), sPH), "v_and_b32 %s, 1, %s" % (v(HT), v(HT)),
           "v_cmp_ne_u32 vcc, 0, %s" % v(HT)]
    h1l = h1lb(H1); red = redb(H1)
    lde = lambda b: ["buffer_load_dwordx4 %s, %s, %s, s%d offen sc1" % (v(b, 4), v(aL16), W, sH2L),
                     "buffer_load_dwordx4 %s, %s, %s, s%d offen offset:1024 sc1" % (v(b + 4, 4), v(aL16), W, sH2L)]
    KAV = "v_mov_b32 %s, 0" % v(MA + 22)
    def warm(vl, ol, slots, per=o.get('per', 4)):
        while slots > 0 and (vl or ol):
            if vl: k(vl.pop(0)); slots -= 1
            r = min(per - 1, slots)
            while r > 0 and ol:
                x = ol.pop(0); k(x); c = 2 if x.startswith('ds_') else 1; r -= c; slots -= c
            if r > 0 and o.get('dense', 1) == 0: k("s_nop %d", r - 1); slots -= r
        if o.get('slw', 0):
            n = slots // 16
            if n > 0: k("s_sleep %d", n); slots -= 16 * n + 1
        while slots > 0:
            m_ = min(slots, 16); k("s_nop %d", m_ - 1); slots -= m_
    def spin(reg, n, lab, magic="0x7fc1"):
        for i in range(n):
            k("v_cmp_ne_u32 vcc, %s, %s", magic, v(reg))
            k("s_cbranch_vccnz %s", lab)
            if o.get('spn', 0): k("s_nop %d", o.get('spn') - 1)
    ok1 = k.lab(tag + "ok1"); rr1 = k.lab(tag + "r1"); ar1 = k.lab(tag + "ar1"); ar0 = k.lab(tag + "ar0")
    lp1 = k.lab(tag + "lp1"); lB = k.lab(tag + "gB"); lA2 = k.lab(tag + "gA2")
    uni = o.get('uni', 1)
    if not uni:
        k("s_cmp_ge_u32 s%d, 2", S_WAVE)
        k(".aw_fork")
        k("s_cbranch_scc1 %s", lB)
    for g in ('a' if uni else 'ab'):
        if g == 'b':
            k.L(lB); k(".aw_join")
        hv = ["v_mov_b64 %s, 0" % v(AQ + 2 * i, 2) for i in range(12)] + ["v_xor_b32 %s, 0x2000, %s" % (v(aKT), v(aKT))]
        ho = [WVR(n, h) for n in range(4) for h in range(2)] + \
             ["s_mov_b32 s%d, s%d" % (sH2R, sH2S), "s_xor_b32 s%d, s%d, 0x2000" % (sH2S, sH2S)] + \
             ["s_xor_b32 s%d, s%d, 0x40000" % (r, r) for r in (sH1S0, sH1S1)] + \
             ["s_xor_b32 s%d, s%d, 0x2000" % (sH2L, sH2L), "s_add_u32 s%d, s%d, 1" % (S_STEP, S_STEP), "s_mov_b32 m0, s%d" % sKTD, "s_mov_b32 s%d, 0" % sCNT]
        kw = o.get('kw', 0)
        if kw:
            hv2 = [MV(AQ + i, "0") for i in range(24)]; hv = hv[-1:]
            def spaced(slots, per):
                while slots > 0:
                    k(hv2.pop(0) if hv2 else MV(HT + 1, "0")); slots -= 1
                    r = min(per - 1, slots)
                    if r > 0: k("s_nop %d", r - 1); slots -= r
            warm(hv, ho, o.get('p0' + g, 44))
            for l in h1lb(H1B): k(l)
            spaced(o.get('p1' + g, 38), o.get('kper', 3))
            for l in h1l: k(l)
            spaced(kw, o.get('kper', 3))
            hvrest = hv2
        else:
            hvrest = []
            warm(hv, ho, o.get('p0' + g, 24 if g == 'a' else 44))
            tick(k, 3)
            for l in h1lb(H1B): k(l)
            warm(hv, ho, o.get('p1' + g, 54 if g == 'a' else 24))
            for l in h1l: k(l)
            warm(hv, ho, o.get('w1' + g, 2 if g == 'a' else 14))
        assert not hv and not ho
        k(".aw_all")
        if g == 'a' and not uni: k("s_branch %s", lp1)
    k.L(lp1)
    spin(H1B + 3, o.get('ns1', 24), ar0)
    k.L(ar0)
    k("s_waitcnt vmcnt(3)")
    tick(k, 4)
    k(redb(H1B)[0])
    k("s_waitcnt vmcnt(2)")
    for l in redb(H1B)[1:]: k(l)
    k("s_cbranch_vccnz %s", rr1)
    k.L(ok1)
    for sh in (4, 8):
        for r in (RD, RD + 1): k("v_add_f32_dpp %s, %s, %s row_ror:%d row_mask:0xf bank_mask:0xf", v(r), v(r), v(r), sh)
    k("v_cvt_pk_bf16_f32 %s, %s, %s", v(RD), v(RD), v(RD + 1))
    k("buffer_store_dword %s, %s, %s, s%d offen %s", v(RD), v(aH2S), W, sH2S, stf)
    tick(k, 14)
    k(MV(HT, "-1"))
    k("buffer_store_dword %s, %s, %s, s%d offen %s", v(HT), v(aH2S), W, sH2R, stf)
    hv = ["v_mov_b64 %s, %s" % (v(VT + 2 * i, 2), v(VTN + 2 * i, 2)) for i in range(4)] + hvrest
    ho = ["s_xor_b32 s%d, s%d, 0x40000" % (sH1L, sH1L), "s_bfe_u32 s%d, s%d, 0x10001" % (sPH, S_STEP), "s_mov_b32 s%d, 0" % sCNT]
    if mg:
        k("s_add_u32 s%d, s%d, 1", sT, S_STEP); k("v_cmp_ge_u32 vcc, s%d, v1", sT)
        k("s_cbranch_vccnz %s", r_kv)
        k.L(b_kv)
        if o.get('qfc', 1):
            k("s_add_u32 s%d, s%d, %d", sT, S_STEP, o.get('qfm', 4)); k("v_cmp_ge_u32 vcc, s%d, v1", sT)
            k("s_or_b32 s%d, vcc_lo, vcc_hi", sSAFE)
    if not uni:
        k("s_cmp_ge_u32 s%d, 2", S_WAVE)
        k("s_cbranch_scc1 %s", lA2)
        warm([], [], o.get('p2a', 20))
        k.L(lA2)
    p2 = o.get('p2', [26, 30])
    warm(hv, ho, p2[0])
    assert not hv and not ho
    for l in lde(EB[0]): k(l)
    warm(hv, ho, p2[1])
    for l in lde(EB[1]): k(l)
    warm(hv, ho, o.get('w2', 15))
    k(".aw_all")
    k(".aw_off")
    k("s_branch %s", lpoll)
    k.L(lto)
    k("s_mov_b32 s%d, 0", S_LIM)
    k("s_waitcnt vmcnt(0)")
    k("s_branch %s", lS[0])
    k.L(rr1)
    if o.get('mask', 0): k("s_mov_b64 exec, vcc")
    for l in h1lb(H1B): k(l)
    if o.get('mask', 0): k("s_mov_b64 exec, -1")
    if tk: k("s_add_u32 s98, s98, 1")
    spin(H1 + 7, o.get('ns1', 24), ar1)
    k.L(ar1)
    k("s_waitcnt vmcnt(2)")
    for l in red: k(l)
    k("s_cbranch_vccz %s", ok1)
    if o.get('mask', 0): k("s_mov_b64 exec, vcc")
    for l in h1l: k(l)
    if o.get('mask', 0): k("s_mov_b64 exec, -1")
    if tk: k("s_add_u32 s96, s96, 1")
    k("s_add_u32 s%d, s%d, 1", sCNT, sCNT)
    k("s_cmp_lt_u32 s%d, s%d", sCNT, S_LIM)
    k("s_cbranch_scc1 %s", lp1)
    k("s_mov_b32 s%d, 0", S_LIM)
    k("s_branch %s", ok1)
    if mg and o.get('qfc', 1):
        k.L(r_qf)
        for x in fl[1]: k(x)
        k("s_branch %s", b_qf)
    if mg:
        k.L(r_kv)
        kv_refresh(k, 1, b_kv)
    k.L(r_sm)
    k("v_max3_f32 %s, %s, %s, %s", v(X), v(T1), v(T1 + 1), v(T1 + 2))
    k("v_max3_f32 %s, %s, %s, %s", v(X), v(T1 + 3), v(T2), v(X))
    k("v_max3_f32 %s, %s, %s, %s", v(X), v(T2 + 1), v(T2 + 2), v(X))
    k("v_max3_f32 %s, %s, %s, %s", v(X), v(T2 + 3), v(T0 + 2), v(X))
    k("v_max_f32 %s, %s, %s", v(X), v(T0 + 3), v(X))
    xmax(k, X, X + 1)
    for r in [T1 + i for i in range(8)] + [T0 + 2, T0 + 3]: k("v_sub_f32 %s, %s, %s", v(r), v(r), v(X))
    for i in range(8): k(EX(E + i, T1 + i))
    k(EX(T0, T0 + 2)); k(EX(T0 + 1, T0 + 3))
    for i in range(4): k(CV(E + i, E + 2 * i, E + 2 * i + 1))
    k(CV(PM, T0, T0 + 1)); k(CV(PM + 3, T0, T0 + 1))
    pv(k, False)
    k("s_mov_b32 s%d, 0x7f800000", sTHR)
    k("v_rcp_f32 %s, %s", v(LA), v(LA))
    k("v_rcp_f32 %s, %s", v(LA + 1), v(LA + 1))
    k("s_waitcnt lgkmcnt(0)")
    k("s_branch %s", b_sm)
    k.L(lexit)
    k(stkvm)
    k("s_cmp_lt_u32 s%d, 63", S_STEP)
    k("s_cbranch_scc1 %s", bexit)
    k("s_waitcnt lgkmcnt(0)")

def role_chain(k, force_slow=False):
    mg = getattr(k, 'merged', False)
    srds = (('Wq', S_WQ), ('Wk', S_WK), ('Wv', S_WV), ('Wo', S_WO), ('mem0', 56))
    for n, r in srds: load_srd(k, n, r)
    def after_first(k):
        for n, r in srds[1:] + (('ws', S_WS), ('dbg', S_DBG)): fin_srd(k, n, r)
        chain_setup(k)
        merged_setup(k)
        k("s_mov_b32 s%d, 0", S_STEP)
    W = s(S_WS, 4)
    def h_arm(k):
        chain_arm(k)
        k("v_lshrrev_b32 v104, 1, v90")
        k("v_and_b32 v104, 6, v104")
        k("v_and_b32 v105, 1, v1")
        k("v_add_u32 v104, v104, v105")
        k("v_lshlrev_b32 v104, 10, v104")
        k("v_lshrrev_b32 v105, 1, v91")
        k("v_lshl_add_u32 v104, v105, 6, v104")
        k("v_and_b32 v105, 1, v91")
        k("v_lshl_add_u32 v104, v105, 4, v104")
        k("s_lshl_b32 s%d, s%d, 8", sT, S_WAVE)
        for j in range(2):
            k("buffer_load_dwordx4 %s, v104, %s, s%d offen offset:%d", v(40 + 8 * j, 4), s(56, 4), sT, j * 128)
            k("buffer_load_dwordx4 %s, v104, %s, s%d offen offset:%d", v(44 + 8 * j, 4), s(56, 4), sT, j * 128 + 32)
        k("v_mov_b32 v107, 0")
        k("buffer_load_dword v118, v107, %s, 0 offen offset:%d sc1", s(S_DBG, 4), DBG_T)
        return 10
    lwarm = k.lab("CW"); lwend = k.lab("CWe")
    def h_mem0(k):
        lt = k.lab("CT"); lt2 = k.lab("CT2")
        k("v_cmp_eq_u32 vcc, 0, v118")
        k("s_cbranch_vccz %s", lt)
        wait_ready(k, 118, DBG_T)
        k.L(lt)
        k("v_readfirstlane_b32 s%d, v118", sT)
        k("s_cmp_lg_u32 s%d, s54", sT)
        k("s_cselect_b32 s100, 2, 1")
        k("s_cbranch_scc0 %s", lt2)
        k("s_cmp_eq_u32 s101, 0")
        k("s_cbranch_scc1 %s", k.lswap)
        k.L(lt2)
        k("v_and_b32 v105, 2, v1")
        k("v_mul_u32_u24 v105, 0x10101, v105")
        k("v_and_b32 v106, 2, v1")
        k("v_lshl_add_u32 v105, v106, 24, v105")
        k("v_add_u32 v105, 0x05040100, v105")
        for j in range(2):
            for i in range(4):
                k("v_perm_b32 %s, %s, %s, v105", v(MA + 4 * j + i), v(44 + 8 * j + i), v(40 + 8 * j + i))
        n = 0
        if k.copt.get('cwarm', 1):
            lpc = k.lab("pc")
            k("s_getpc_b64 s[60:61]")
            k.L(lpc)
            k("s_add_u32 s60, s60, %s-%s", lwarm, lpc)
            k("s_addc_u32 s61, s61, 0")
            k("s_lshl_b32 s%d, s%d, 13", sT, S_WAVE)
            k("v_lshlrev_b32 v104, 7, v1")
            k("v_min_u32 v105, %s-%s-4, v104", lwend, lwarm)
            k("global_load_dword v116, v105, s[60:61]")
            k("v_add_u32 v104, 0x2000, v104")
            k("v_min_u32 v105, %s-%s-4, v104", lwend, lwarm)
            k("global_load_dword v117, v105, s[60:61]")
            n += 2
        return n
    def h_rdy(k):
        k("buffer_load_dword v108, v107, %s, 0 offen offset:%d sc1", s(S_DBG, 4), DBG_READY)
        return 1
    def h_done(k):
        announce(k, 64)
        return 1
    def announce(k, off=0):
        k("v_mov_b32 v106, s100")
        k("s_lshl_b32 s%d, s%d, 30", sT, S_WAVE)
        k("s_lshr_b32 s%d, s%d, 1", sCNT, sT)
        k("s_or_b32 s%d, s%d, s%d", sT, sT, sCNT)
        k("s_and_b32 s%d, s%d, 0x40000000", sT, sT)
        k("v_mov_b32 v105, 0x40000000")
        k("v_cmp_eq_u32 vcc, 0, v108")
        k("v_mov_b32 v104, s%d", sT)
        k("v_cndmask_b32 v105, v104, v105, vcc")
        k("buffer_store_dword v106, v105, %s, s%d offen offset:%d sc1", W, sKF, off)
    def h_announce(k):
        announce(k)
        return 1
    def h_qf(k):
        k("buffer_load_dword v109, %s, %s, s%d offen sc1", v(aFL), W, sQF)
        return 1
    def h_warm(k):
        n = 0
        for base, x in ((sH1L, 0), (sH1L, 0x40000), (sH2L, 0), (sH2L, 0x2000)):
            k("s_xor_b32 s%d, s%d, 0x%x", sT, base, x)
            for off in (0, 1024):
                k("buffer_load_dwordx4 v[112:115], %s, %s, s%d offen offset:%d sc1", v(aL16), W, sT, off)
                n += 1
        return n
    def h_flags(k): return h_qf(k) + h_warm(k)
    def h_pf(k):
        k("s_waitcnt vmcnt(%d)", 16 + {0: 0, 1: 9, 2: 1, 3: 8, 4: 0}[k.copt.get('hv', 0)])
        k("v_cmp_eq_u32 vcc, 0, v108")
        k("s_or_b32 s%d, vcc_lo, vcc_hi", sSAFE)
        k("v_cmp_ge_u32 vcc, 1, v109")
        k("s_or_b32 s%d, s%d, vcc_lo", sSAFE, sSAFE)
        for p in range(4):
            for l in PFK(p): k(l)
        k("v_and_b32 v111, 31, v1")
        k("v_lshlrev_b32 v111, 7, v111")
        k("s_mov_b32 s63, 0x%x", FLAGS + F_KF)
        k("buffer_load_dword v110, v111, %s, s63 offen sc1", W)
        return 5
    def h3(k): return h_mem0(k) + h_announce(k)
    hv_ = k.copt.get('hv', 0)
    if hv_ == 0: hooks = {-1: h_arm, 1: h_rdy, 2: h_mem0, 4: h_announce, 5: h_flags, 7: h_pf}
    elif hv_ == 1: hooks = {-1: h_arm, 1: h_rdy, 2: h_mem0, 5: h_qf, 6: (lambda k: h_announce(k) + h_warm(k)), 7: h_pf}
    elif hv_ >= 2: hooks = {-1: h_arm, 1: h_rdy, 2: h_mem0, 5: h_qf, 6: h_announce, 7: (lambda k: h_pf(k) + h_warm(k))}
    pre = {}
    if k.copt.get('qp') is not None: pre[k.copt.get('qph', 5)] = h_done
    if hv_ == 3: hooks = {-1: h_arm}; pre = {0: h_rdy, 1: h_mem0, 2: h_announce, 3: h_qf, 4: h_warm, 5: h_pf}
    if hv_ == 4: hooks = {-1: h_arm}; pre = {0: h_rdy, 1: h_mem0, 2: h_announce, 3: h_warm, 4: h_qf, 6: h_pf}
    chain_load_weights(k, hooks, pre, after_first)
    stamp(k, 2, 1, wgreg=S_HEAD, vt=120)
    if k.copt.get('dst'): k("s_memrealtime s[94:95]")
    if mg:
        lok = k.lab("CHf")
        k("s_cmp_eq_u32 s%d, 0", sSAFE)
        k("s_cbranch_scc1 %s", lok)
        wait_ready(k, 108)
        announce(k)
        announce(k, 64)
        k("v_mov_b32 v110, 0")
        kv_refresh(k, 1)
        for p in range(4):
            for l in PFK(p): k(l)
        k.L(lok)
    k("s_mov_b32 s%d, 1", sSAFE)
    k("s_mov_b32 s%d, 0x42700000", sTHR)
    for l in PFK(4): k(l)
    k("s_waitcnt vmcnt(0)")
    k("v_mov_b32 %s, v110", v(KVM)); k("v_mov_b32 %s, v111", v(KVM + 1))
    for n in range(4):
        k(WVR(n, 0)); k(WVR(n, 1))
    for i in range(24): k("v_mov_b32 %s, 0", v(AQ + i))
    lp = k.lab("CHs"); ok = k.lab("CHok")
    k("s_mov_b32 s%d, 0", sCNT)
    k.L(lp)
    k("v_cmp_eq_u32 vcc, 0, %s", v(KVM))
    k("s_cbranch_vccz %s", ok)
    k("s_sleep 2")
    k("buffer_load_dword %s, %s, %s, s63 offen sc1", v(KVM), v(KVM + 1), W)
    k("s_waitcnt vmcnt(0)")
    k("s_add_u32 s%d, s%d, 1", sCNT, sCNT)
    k("s_cmp_lt_u32 s%d, s%d", sCNT, S_LIM)
    k("s_cbranch_scc1 %s", lp)
    k("s_mov_b32 s%d, 0", S_LIM)
    k.L(ok)
    k("v_cmp_ne_u32 vcc, 1, %s", v(KVM))
    k("s_or_b32 s44, vcc_lo, vcc_hi")
    for i in range(8): k("v_mov_b32 %s, %s", v(VT + i), v(VTN + i))
    k("s_waitcnt lgkmcnt(0)")
    stamp(k, 2, 2, wgreg=S_HEAD, vt=56)
    if k.copt.get('dst'): k("s_memrealtime s[96:97]"); k("s_waitcnt lgkmcnt(0)")
    stamp(k, 2, 4, wgreg=S_HEAD, vt=56, cyc=True)
    tick_init(k)
    if k.copt.get('plog2'):
        k("s_lshl_b32 s100, s%d, 2", S_HEAD)
        k("s_add_u32 s100, s100, s%d", S_WAVE)
        k("s_lshl_b32 s100, s100, 9")
        k("s_add_u32 s100, s100, 0x%x", TS + 8 * 65536)
    k("s_mov_b32 m0, s%d", sKTD)
    k("v_mov_b32 v1, 0")
    lslow = k.lab("CHslow"); ldone = k.lab("CHdone")
    k("s_cmp_lg_u32 s44, %d", 0 if not force_slow else 77)
    k("s_cbranch_scc1 %s", lslow)
    n0 = len(k.lines)
    k.L(lwarm)
    chain_loop(k, "", "F")
    k.L(lwend)
    o = getattr(k, 'copt', {})
    if o.get('free'):
        body = k.lines[n0:]; out = []
        for l in body:
            ls = l.strip()
            if 's100' in ls: out.append(l); continue
            if ls.startswith('s_cbranch_vccnz'): continue
            if ls.startswith('s_cbranch_vccz Fs0v'): l = l.replace('s_cbranch_vccz', 's_branch')
            if ls.startswith('s_cbranch_scc1 Frsm'): continue
            if 'novmem' in o['free'] and (ls.startswith('buffer_') or 'vmcnt' in ls): continue
            if 'nowait' in o['free'] and 'vmcnt' in ls: continue
            out.append(l)
        k.lines[n0:] = out
    k("s_branch %s", ldone)
    k.L(lslow)
    chain_loop(k, "sc1", "S")
    k.L(ldone)
    if k.copt.get('plog'):
        k("s_lshl_b32 s100, s%d, 2", S_HEAD)
        k("s_add_u32 s100, s100, s%d", S_WAVE)
        k("s_lshl_b32 s100, s100, 8")
        k("s_add_u32 s100, s100, 0x%x", TS + 8 * 65536)
        k("v_lshrrev_b32 v40, 2, %s", v(aL16))
        k("buffer_store_dword v1, v40, %s, s100 offen", s(S_WS, 4))
    tick_dump(k)
    k("s_waitcnt vmcnt(0)")
    stamp(k, 2, 3, wgreg=S_HEAD, vt=56)
    dstamp(k, 7, 56); dstamp(k, 5, 56, False, 94); dstamp(k, 6, 56, False, 96); dstamp(k, 3, 56, True, 98)
    stamp(k, 2, 5, wgreg=S_HEAD, vt=56, cyc=True)
```

```python
import sys, json
from build_v1 import header_comments
from chain15 import *
from roles2 import *
KN = NAME + "_kernel"
def build(opts={}, stamps=False, ticks=False):
    k = K(); k.stamps = stamps; k.ticks = ticks; k.copt = opts; k.merged = True
    kernel_header(k, KN)
    lend = k.lab("END")
    lstamp(k, 6)
    if opts.get('dst'): k("s_memrealtime s[98:99]")
    k("s_cmp_ge_u32 s2, 256")
    k("s_cbranch_scc1 %s", lend)
    load_srd(k, 'ws', S_WS); load_srd(k, 'dbg', S_DBG)
    if opts.get('home'): k("s_xor_b32 s2, s2, %d", opts['home'])
    lane_wave(k)
    k("s_mov_b32 s%d, 400000", S_SPIN)
    if opts.get('allwarm'):
        law = k.lab("AW"); lpc = k.lab("AWpc")
        k("s_cmp_ge_u32 s2, 64")
        k("s_cbranch_scc1 %s", law)
        k("s_cmp_lg_u32 s%d, 3", S_WAVE)
        k("s_cbranch_scc1 %s", law)
        k("s_getpc_b64 s[60:61]")
        k.L(lpc)
        k("s_lshr_b32 s44, s2, 3")
        k("s_lshl_b32 s44, s44, 13")
        k("v_lshlrev_b32 v2, 7, v1")
        k("v_add_u32 v2, s44, v2")
        k("v_min_u32 v2, %s-%s, v2", lend, lpc)
        k("global_load_dword v119, v2, s[60:61]")
        k("global_load_dword v3, v2, s[60:61] offset:-64") if False else None
        k.L(law)
    ROLE = 5
    k("s_getreg_b32 s54, hwreg(HW_REG_XCC_ID)")
    k("s_and_b32 s54, s54, 7")
    k("s_add_u32 s54, s54, 1")
    k("s_mov_b32 s3, s2")
    k("s_mov_b32 s101, 0")
    lsw = k.lab("SWAP"); lrd = k.lab("ROLED"); lw = k.lab("WORK")
    k("s_or_b32 s44, s2, s%d", S_WAVE)
    k("s_cmp_lg_u32 s44, 0")
    k("s_cbranch_scc1 %s", lrd)
    k("s_waitcnt lgkmcnt(0)")
    fin_srd(k, 'dbg', S_DBG)
    k("v_mov_b32 v2, 0"); k("v_mov_b32 v3, %s", str(opts['die'] + 1) if 'die' in opts else "s54")
    k("buffer_store_dword v3, v2, %s, 0 offen offset:%d sc1", s(S_DBG, 4), DBG_T)
    k.L(lrd)
    k("s_and_b32 s%d, s3, 7", ROLE)
    k("s_lshl_b32 s%d, s%d, 5", ROLE, ROLE)
    k("s_lshr_b32 s3, s3, 3")
    k("s_add_u32 s%d, s%d, s3", ROLE, ROLE)
    k("s_cmp_ge_u32 s%d, 32", ROLE)
    k("s_cbranch_scc1 %s", lw)
    k.lswap = lsw
    role_chain(k, opts.get('slow', False))
    lstamp_dump(k, ROLE)
    k("s_branch %s", lend)
    k.L(lsw)
    lo = k.lab("SWo"); lp = k.lab("SWp"); ld = k.lab("SWd"); lc = k.lab("SWc")
    k("s_waitcnt vmcnt(0) lgkmcnt(0)")
    k("s_barrier")
    k("s_mov_b32 s101, 1")
    k("s_mov_b32 s3, s2")
    k("s_and_b32 s47, s2, 7")
    k("s_cmp_eq_u32 s47, 0")
    k("s_cselect_b32 s47, 1, 0")
    k("s_xor_b32 s46, s47, 1")
    k("v_mbcnt_lo_u32_b32 v1, -1, 0")
    k("v_mbcnt_hi_u32_b32 v1, -1, v1")
    k("s_lshl_b32 s44, s%d, 6", S_WAVE)
    k("v_add_u32 v0, s44, v1")
    k("s_cmp_lg_u32 s%d, 0", S_WAVE)
    k("s_cbranch_scc1 %s", lo)
    k("s_mov_b64 exec, 1")
    k("s_lshl_b32 s48, s47, 2")
    k("v_mov_b32 v2, 0"); k("v_mov_b32 v4, 1")
    k("buffer_atomic_add v4, v2, %s, s48 offen sc0 sc1", s(S_DBG, 4))
    k("s_lshl_b32 s49, s47, 4")
    k("s_lshl_b32 s50, s46, 4")
    k("s_add_u32 s51, s2, 1")
    k("s_lshl_b32 s51, s51, s49")
    k("s_waitcnt vmcnt(0)")
    k("v_readfirstlane_b32 s48, v4")
    k("s_cmp_ge_u32 s48, %d", opts.get('maxpair', 32))
    k("s_cbranch_scc1 %s", ld)
    k("s_lshl_b32 s48, s48, 2")
    k("s_add_u32 s48, s48, 64")
    k("v_mov_b32 v4, s51")
    k("buffer_atomic_or v4, v2, %s, s48 offen sc0 sc1", s(S_DBG, 4))
    k("s_mov_b32 s52, 0")
    k.L(lp)
    k("s_waitcnt vmcnt(0)")
    k("v_readfirstlane_b32 s53, v4")
    k("s_lshr_b32 s44, s53, s49")
    k("s_and_b32 s44, s44, 0xffff")
    k("s_cmp_eq_u32 s44, 0xffff")
    k("s_cbranch_scc1 %s", ld)
    k("s_lshr_b32 s53, s53, s50")
    k("s_and_b32 s53, s53, 0xffff")
    k("s_cmp_lg_u32 s53, 0")
    k("s_cbranch_scc1 %s", lc)
    k("s_cmp_gt_u32 s52, 400")
    k("s_cbranch_scc1 %s", ld)
    k("s_add_u32 s52, s52, 1")
    k("buffer_load_dword v4, v2, %s, s48 offen sc1", s(S_DBG, 4))
    k("s_cmp_le_u32 s52, 400")
    k("s_cbranch_scc1 %s", lp)
    k("s_waitcnt vmcnt(0)")
    k("s_lshl_b32 s53, 0xffff, s50")
    k("s_or_b32 s53, s53, s51")
    k("v_mov_b32 v4, s53"); k("v_mov_b32 v5, s51")
    k("buffer_atomic_cmpswap v[4:5], v2, %s, s48 offen sc0 sc1", s(S_DBG, 4))
    k("s_branch %s", lp)
    k.L(lc)
    k("s_sub_u32 s3, s53, 1")
    k("s_and_b32 s3, s3, 255")
    k.L(ld)
    k("v_mov_b32 v3, s3"); k("v_mov_b32 v2, 163328")
    k("ds_write_b32 v2, v3")
    k("s_mov_b64 exec, -1")
    k("s_waitcnt lgkmcnt(0)")
    k.L(lo)
    k("s_barrier")
    k("v_mov_b32 v2, 163328")
    k("ds_read_b32 v3, v2")
    k("s_waitcnt lgkmcnt(0)")
    k("v_readfirstlane_b32 s3, v3")
    k("s_branch %s", lrd)
    k.L(lw)
    srds = [('x', S_X), ('out', S_O)]
    for n, r in srds: load_srd(k, n, r)
    k("s_waitcnt lgkmcnt(0)")
    for n, r in srds + [('ws', S_WS), ('dbg', S_DBG)]: fin_srd(k, n, r)
    k("s_mov_b32 s100, s54")
    def tr_issue(k):
        stamp(k, 0, 0, wgreg=ROLE, vt=28)
        k("v_mov_b32 v15, 0")
        k("buffer_load_dwordx2 a[254:255], v15, %s, 0 offen offset:%d sc1", s(S_DBG, 4), DBG_READY)
    def tr_check(k):
        lf = k.lab("TRf"); ls_ = k.lab("TRs")
        k("s_waitcnt vmcnt(0)")
        k("v_accvgpr_read_b32 v2, a254"); k("v_accvgpr_read_b32 v3, a255")
        k("v_readfirstlane_b32 s44, v2"); k("v_readfirstlane_b32 s42, v3")
        k("s_cmp_eq_u32 s44, 0"); k("s_cbranch_scc1 %s", ls_)
        k("s_cmp_eq_u32 s42, 0"); k("s_cbranch_scc1 %s", ls_)
        k("s_cmp_lg_u32 s42, s100"); k("s_cbranch_scc1 %s", lf)
        k.L(ls_)
        tcheck(k)
        wait_ready(k, 2)
        k.L(lf)
    def tcheck(k):
        lnt = k.lab("NT"); lgo = k.lab("NTs")
        k("s_cmp_lg_u32 s101, 0")
        k("s_cbranch_scc1 %s", lnt)
        wait_ready(k, 2, DBG_T)
        k("v_readfirstlane_b32 s44, v2")
        k("s_cmp_lg_u32 s44, s100")
        k("s_cbranch_scc1 %s", lnt)
        k("s_mov_b32 s54, s100")
        k("s_branch %s", lsw)
        k.L(lnt)
    lz = k.lab("Z")
    k("s_lshl_b32 s44, s101, 8")
    k("s_or_b32 s44, s44, s2")
    k("s_and_b32 s40, s44, 0xfffffff7")
    k("s_cmp_lg_u32 s40, 7")
    k("s_cbranch_scc1 %s", lz)
    for i in range(4): k("v_mov_b32 v%d, 0", 4 + i)
    k("s_cmp_eq_u32 s44, 7")
    k("s_cselect_b32 s41, 4, 7")
    k("s_cselect_b32 s42, 0x1000, 0x8000") if False else None
    k("s_cselect_b32 s40, 0, 0x6000")
    k("s_add_u32 s40, s40, 0x%x", FLAGS)
    k("v_lshlrev_b32 v8, s41, v0")
    k("s_lshl_b32 s42, 256, s41")
    for i in range(3):
        k("buffer_store_dwordx4 v[4:7], v8, %s, s40 offen sc1", s(S_WS, 4))
        k("s_add_u32 s40, s40, s42")
    k("s_and_b32 s40, s44, 8")
    k("v_mov_b32 v9, 1")
    k("s_waitcnt vmcnt(0)")
    k("s_barrier")
    k("s_mov_b64 exec, 1")
    k("buffer_store_dword v9, v4, %s, s40 offen offset:%d sc1", s(S_DBG, 4), DBG_READY)
    k("s_mov_b64 exec, -1")
    stamp(k, 0, 5, wgreg=ROLE, vt=28)
    k.L(lz)
    k("s_cmp_ge_u32 s%d, 256", ROLE)
    k("s_cbranch_scc1 %s", lend)
    stamp(k, 3, 0, wgreg=ROLE, vt=120)
    GRP, TK_, SEG, FO, FI = 54, 55, 7, 56, 57
    k("s_lshr_b32 s%d, s%d, 5", GRP, ROLE)
    k("s_and_b32 s%d, s%d, 31", TK_, ROLE)
    lq = k.lab("DOQKV"); l2 = k.lab("ROLE2")
    k("s_cmp_ge_u32 s%d, 2", GRP)
    k("s_cbranch_scc1 %s", lq)
    k("s_lshl_b32 s%d, s%d, 2", FO, TK_)
    k("s_add_u32 s%d, s%d, 0x%x", FO, FO, FLAGS + F_XN)
    def ln_after(k, scount):
        ls = k.lab("LNs")
        k("s_cmp_lg_u32 s%d, 1", scount)
        k("s_cbranch_scc1 %s", ls)
        stamp(k, 0, 1, wgreg=ROLE, vt=28)
        tr_check(k)
        stamp(k, 0, 2, wgreg=ROLE, vt=28)
        set_flag(k, FO, "1", 2)
        stamp(k, 0, 3, wgreg=ROLE, vt=28)
        if opts.get('ew', 0): bc_stage(k, TK_)
        k.L(ls)
    role_ln1(k, TK_, 4, ln_after, tr_issue)
    set_flag(k, FO, "4", 2)
    k("s_branch %s", l2)
    k.L(lq)
    k("s_sub_u32 s58, s%d, 64", ROLE)
    def pre_loop(k):
        tr_check(k)
        k("v_and_b32 v8, 31, v1")
        k("v_lshlrev_b32 v8, 2, v8")
        k("s_mov_b32 s%d, 0x%x", FI, FLAGS + F_XN)
        k("s_mov_b32 s%d, 0", SEG)
        wait_flags(k, 8, FI, SEG, 2)
        k("s_lshl_b32 s%d, s32, 1", FO)
        k("s_add_u32 s%d, s%d, s34", FO, FO)
        k("s_lshl_b32 s%d, s%d, 2", FO, FO)
        k("s_lshl_b32 s40, s33, 7")
        k("s_add_u32 s%d, s%d, s40", FO, FO)
        k("s_add_u32 s%d, s%d, 0x%x", FO, FO, FLAGS + F_QF)
        k("s_sub_u32 s%d, s34, 2", SEG)
    def q_publish(k):
        k("s_max_i32 s40, s%d, 0", SEG)
        set_flag(k, FO, "s40", 2, drain=False)
        k("s_add_u32 s%d, s%d, 2", SEG, SEG)
    def q_pre_dma(k):
        if opts.get('qp') is not None:
            lq_ = k.lab("QPp")
            k("s_cmp_eq_u32 s32, 2")
            k("s_cselect_b32 s58, %d, %d", opts.get('qpq', opts['qp']), opts['qp'])
            k("s_cmp_lg_u32 s52, s58")
            k("s_cbranch_scc1 %s", lq_)
            k("s_lshl_b32 s75, s33, 7")
            k("s_add_u32 s75, s75, 0x%x", FLAGS + F_KF + 64)
            k("s_mov_b32 s58, 0")
            k("v_mov_b32 v9, 0")
            wait_flags(k, 9, 75, 58, 2)
            k.L(lq_)
        ls = k.lab("QPd")
        k("s_cmp_lg_u32 s52, 8")
        k("s_cbranch_scc1 %s", ls)
        k("s_mov_b32 s58, 3")
        wait_flags(k, 8, FI, 58, 2)
        k.L(ls)
    for _ in range(opts.get('wdelay', 0)): k("s_sleep 37")
    if opts.get('qdelay'):
        lqd = k.lab("QD"); lqo = k.lab("QDo")
        k("s_cmp_lt_u32 s58, 128")
        k("s_cbranch_scc1 %s", lqo)
        k("v_mov_b32 v3, 0"); k("s_mov_b32 s59, 0")
        k.L(lqd)
        k("buffer_load_dword v2, v3, %s, 0 offen offset:8 sc1", s(S_DBG, 4))
        k("s_waitcnt vmcnt(0)")
        k("v_readfirstlane_b32 s40, v2")
        k("s_and_b32 s40, s40, 0xffff")
        k("s_cmp_ge_u32 s40, 32")
        k("s_cbranch_scc1 %s", lqo)
        k("s_sleep 16")
        k("s_add_u32 s59, s59, 1")
        k("s_cmp_lt_u32 s59, 20000")
        k("s_cbranch_scc1 %s", lqd)
        k.L(lqo)
    def q_post_dma(k):
        if opts.get('wow', 0):
            load_srd(k, 'Wo', 28)
            k("s_lshl_b32 s40, s58, 2"); k("s_add_u32 s40, s40, s%d", S_WAVE); k("s_mul_i32 s40, s40, 6144")
            k("v_lshlrev_b32 v14, 4, v1"); k("v_add_u32 v14, s40, v14")
            k("s_waitcnt lgkmcnt(0)")
            fin_srd(k, 'Wo', 28)
            for i in range(6):
                if i == 4: k("v_add_u32 v14, 4096, v14")
                k("buffer_load_dwordx4 v[16:19], v14, s[28:31], 0 offen offset:%d", (i % 4) * 1024)
        tr_issue(k)
    role_qkv(k, 58, q_pre_dma, q_publish, pre_loop, q_post_dma)
    set_flag(k, FO, "0x80", 2)
    k.L(l2)
    stamp(k, 3, 1, wgreg=ROLE, vt=120)
    dstamp(k, 8, 120)
    k("s_waitcnt vmcnt(0)")
    k("s_barrier")
    k.inworker = True
    wait_ready(k, 2, DBG_READY2)
    lur = k.lab("UR"); ldn = k.lab("DN"); lrd = k.lab("RD"); lfin = k.lab("FIN")
    if opts.get('nowork'): k("s_branch %s", lfin)
    k("s_cmp_ge_u32 s%d, 4", GRP)
    k("s_cbranch_scc1 %s", lur)
    k("s_sub_u32 s%d, s%d, 1", SEG, GRP)
    k("s_lshl_b32 s%d, s%d, 12", FO, SEG)
    k("s_lshl_b32 s40, s%d, 7", TK_)
    k("s_add_u32 s%d, s%d, s40", FO, FO)
    k("s_add_u32 s%d, s%d, 0x%x", FO, FO, FLAGS + F_BF)
    def wait_qkv(k, sseg):
        lsk = k.lab("wq")
        k("s_cmp_lt_u32 s%d, s72", sseg)
        k("s_cbranch_scc1 %s", lsk)
        k("v_min_u32 v3, 5, v1")
        k("v_lshlrev_b32 v3, 2, v3")
        k("s_lshl_b32 s%d, s34, 7", FI)
        k("s_add_u32 s%d, s%d, 0x%x", FI, FI, FLAGS + F_QF)
        wait_flags(k, 3, FI, sseg, 2)
        k("v_cmp_gt_u32 vcc, 0x80, v2")
        k("s_cmp_eq_u64 vcc, 0")
        k("s_cselect_b32 s72, 64, 0")
        k.L(lsk)
        return
        k("v_min_u32 v3, 2, v1")
        k("v_lshlrev_b32 v3, 3, v3")
        k("s_and_b32 s%d, s%d, 1", FI, sseg)
        k("s_lshl_b32 s%d, s%d, 2", FI, FI)
        k("s_lshl_b32 s58, s34, 5")
        k("s_add_u32 s%d, s%d, s58", FI, FI)
        k("s_add_u32 s%d, s%d, 0x%x", FI, FI, FLAGS + F_QF)
        wait_flags(k, 3, FI, sseg, 2)
    def wait_kvm(k, sseg):
        k("v_and_b32 v3, 3, v1")
        k("v_lshlrev_b32 v3, 7, v3")
        k("s_lshl_b32 s%d, s34, 9", FI)
        k("s_add_u32 s%d, s%d, 0x%x", FI, FI, FLAGS + F_KF)
        wait_flags(k, 3, FI, sseg, 2)
    H = opts.get('hint', 1)
    k.narm = opts.get('narm', 2) if H else 0
    A0 = 64 - 3 * k.narm
    def publish(k, sseg):
        k("s_lshl_b32 s58, s%d, 1", sseg)
        k("s_add_u32 s58, s58, 2")
        set_flag(k, FO, "s58", 2)
    def hint(k, sseg, bar=False):
        if bar and opts.get('h1', 1): return
        l = k.lab("hn")
        k("s_cmp_lt_u32 s%d, %d", sseg, A0)
        k("s_cbranch_scc1 %s", l)
        if bar: k("s_barrier")
        k("s_lshl_b32 s58, s%d, 1", sseg)
        k("s_add_u32 s58, s58, 1")
        k("s_add_u32 s75, s%d, 0x%x", FO, opts.get('hoff', 0xA000))
        set_flag(k, 75, "s58", 2, drain=False)
        k.L(l)
    def wfin(va):
        def f(k, sseg):
            k("s_lshl_b32 s58, s%d, 1", sseg)
            k("s_add_u32 s58, s58, 1")
            wait_flags(k, va, FI, 58, 2)
        return f
    def wnorm(va):
        def f(k, sseg):
            k("s_cmp_lt_u32 s%d, %d", sseg, A0)
            k("s_cselect_b32 s75, 0, 0x%x", opts.get('hoff', 0xA000))
            k("s_addc_u32 s58, s%d, s%d", sseg, sseg)
            k("s_add_u32 s75, s75, s%d", FI)
            if opts.get('ff', 0): wait_flags_fast(k, va, 75, 58, [124, 125, 126, 127][:opts.get('nf', 3)])
            else: wait_flags(k, va, 75, 58, 2, wave0=True)
        return f
    if not H: hint = None
    k("s_mov_b32 s72, 0")
    role_bc(k, TK_, SEG, 3, wait_qkv, wait_kvm, publish, hint)
    dstamp(k, 10, 120); dstamp(k, 13, 120, False, 76); dstamp(k, 2, 120, True, 76)
    k("s_branch %s", lfin)
    k.L(lur)
    k("s_cmp_eq_u32 s%d, 7", GRP)
    k("s_cbranch_scc1 %s", ldn)
    k("s_sub_u32 s%d, s%d, 4", SEG, GRP)
    k("s_lshl_b32 s%d, s%d, 12", FI, SEG)
    k("s_cmp_ge_u32 s%d, 22", TK_)
    k("s_cbranch_scc1 %s", lrd)
    k("s_lshl_b32 s40, s%d, 7", TK_)
    k("s_add_u32 s%d, s%d, s40", FO, FI)
    k("s_add_u32 s%d, s%d, 0x%x", FO, FO, FLAGS + F_UF)
    k("s_add_u32 s%d, s%d, 0x%x", FI, FI, FLAGS + F_RF)
    k("v_and_b32 v13, 7, v1")
    k("v_lshlrev_b32 v13, 7, v13")
    role_up(k, TK_, SEG, 3, None, None, publish, wnorm(13), hint, wfin(13))
    dstamp(k, 12, 120)
    k("s_branch %s", lfin)
    k.L(lrd)
    k("s_cmp_ge_u32 s%d, 30", TK_)
    k("s_cbranch_scc1 %s", lfin)
    k("s_sub_u32 s%d, s%d, 22", TK_, TK_)
    k("s_lshl_b32 s40, s%d, 7", TK_)
    k("s_add_u32 s%d, s%d, s40", FO, FI)
    k("s_add_u32 s%d, s%d, 0x%x", FO, FO, FLAGS + F_RF)
    k("s_add_u32 s%d, s%d, 0x%x", FI, FI, FLAGS + F_BF)
    k("v_and_b32 v15, 31, v1")
    k("v_lshlrev_b32 v15, 7, v15")
    role_red(k, TK_, SEG, 3, wnorm(15), publish, hint, wfin(15))
    dstamp(k, 11, 120)
    k("s_branch %s", lfin)
    k.L(ldn)
    k("s_lshr_b32 s72, s%d, 4", TK_)
    k("s_mov_b32 s%d, 0", SEG)
    k("s_and_b32 s%d, s%d, 15", TK_, TK_)
    k("v_min_u32 v13, 21, v1")
    k("v_lshlrev_b32 v13, 7, v13")
    def up_fi(k, sseg):
        k("s_mul_i32 s58, s%d, 43", sseg)
        k("s_lshr_b32 s58, s58, 7")
        k("s_mul_i32 s58, s58, 3")
        k("s_sub_u32 s58, s%d, s58", sseg)
        k("s_lshl_b32 s%d, s58, 12", FI)
        k("s_add_u32 s%d, s%d, 0x%x", FI, FI, FLAGS + F_UF)
    def wait_up(k, sseg, block):
        up_fi(k, sseg)
        k("s_cmp_lt_u32 s%d, %d", sseg, A0)
        k("s_cselect_b32 s75, 0, 0x%x", opts.get('hoff', 0xA000))
        k("s_addc_u32 s74, s%d, s%d", sseg, sseg)
        k("s_add_u32 s75, s75, s%d", FI)
        if block: wait_flags(k, 13, 75, 74, 2)
        else: k("buffer_load_dword v15, v13, %s, s75 offen sc1", s(S_WS, 4))
    def dn_final(k, sseg):
        up_fi(k, sseg)
        wfin(13)(k, sseg)
    role_dn(k, TK_, SEG, 1, 72, wait_up, dn_final if H else None)
    k('s_waitcnt lgkmcnt(0)'); dstamp(k, 14, 120, False, 76); dstamp(k, 15, 120, False, 78)
    k.L(lfin)
    stamp(k, 3, 2, wgreg=ROLE, vt=120)
    dstamp(k, 9, 120); dstamp(k, 3, 120, True, 98); dstamp(k, 4, 120, False, 98)
    lstamp_dump(k, ROLE)
    k.L(lend)
    k("s_endpgm")
    body = insert_nops(auto_wait(k.lines))
    hdr = header_comments([])
    hdr.append('; @launch grid=(256,1,1) block=(256,1,1) lds=163840')
    hdr += """;
; One persistent launch, 256 workgroups (one per CU), role-specialised:
;  * 32 workgroups (one head each, kept on one die when placement allows, checked at run time via XCC_ID; otherwise the
;    same loop runs with write-through hand-offs) hold Wq/Wk/Wv/Wo of their head in registers/LDS and run the 64-step
;    memory recurrence: sparse-MFMA projections of the 8 memory rows, attention, Wo, then reduce-scatter + all-gather.
;  * the other 224 workgroups do LN, token QKV, then token attention + Wo, residual + LN, SwiGLU up and down as
;    weight-stationary pipelines that follow the recurrence segment by segment (flags / sentinels set up in this launch).
; Generated by the author's own Python emitter (wait states and lgkmcnt waits are inserted by that script).""".split('\n')
    return '\n'.join(hdr) + '\n.amdgcn_target "amdgcn-amd-amdhsa--gfx950"\n.text\n' + '\n'.join(body) + \
        '\n.section .rodata,"a"\n.p2align 6\n' + kernel_desc(KN)
if __name__ == '__main__':
    o = {"lazy": 1, "al": 9, "opt": 1, "xb": 7, "p0a": 47, "p1a": 38, "p2": [21, 36], "w1a": 0, "w1b": 0, "p2a": 4, "hbc": 16, "hr": 0, "hr2": 1, "hu": 0, "hu2": 10, "narm": 3, "kvl": 62, "qp": 7, "qpq": 3, "qph": 4, "wd": 3, "slpk": 2, "w1": 14, "b0": 6, "w2": 0, "ns1": 0, "ns2": 0, "ho": 4}
    if len(sys.argv) > 1: o.update(json.loads(sys.argv[1]))
    open('m.s', 'w').write(build(o))
    open('ms.s', 'w').write(build(o, stamps=True))
```

```python
from roles import *
import struct
def f2u(x): return struct.unpack('<I', struct.pack('<f', x))[0]

L_KT = 131072
L_MB = L_KT + 16384
L_XB = L_MB + 8192
L_OB = L_XB + 5120
L_MISC_ = L_OB + 2560
WQ, WK, WO = 256, 384, 128
aM = [2, 3, 4, 5]; aXW = 6; aXR = 7; aOW = 8; aWV = 9; aKT = 10; aL16 = 11
aH1S = 12; aWO = 13; aH1L = 11; aH2S = 14; IDX = 15
KVM = 16
SEL = 20
VTN = 24
MA = 32; AQ = 64; AK = 72; AV = 80; G = 88; VT = 120
S_HEAD = 5; S_LIM = 6; S_STEP = 7
S_WQ, S_WK, S_WV, S_WO = 12, 16, 20, 28
sH1S0, sH1S1, sH1L, sH2S, sH2L = 32, 33, 34, 35, 36
sKV = 37; sKTD = 38; sKM = 39; sVIM = 40; sC = 41; sCNT = 42; sT = 43
sH1R = 50; sH2R = 51; sMASK = 52
sPH = 50; sTHR = 49; sSAFE = 55; sQF = 46; sKF = 47; aFL = 0; aFL4 = 0
CSC = 0.08838834764831845 * 1.4426950408889634
VORD = [0, 2, 4, 6, 1, 3, 5, 7]
CT = MA

from chain import elect, xmax
def tick(k, i):
    if getattr(k, 'ticks', False): k("s_memtime s[%d:%d]", 64 + 2 * i, 65 + 2 * i)
def tick_init(k):
    if not getattr(k, 'ticks', False): return
    for i in range(96, 100): k("s_mov_b32 s%d, 0", i)
def tick_step_end(k):
    if not getattr(k, 'ticks', False): return
    l = k.lab("tse")
    k("s_cmp_lg_u32 s%d, %d", S_STEP, k.copt.get('tstep', 41))
    k("s_cbranch_scc1 %s", l)
    k("s_waitcnt vmcnt(0) lgkmcnt(0)")
    k("s_lshl_b32 s100, s%d, 2", S_HEAD)
    k("s_add_u32 s100, s100, s%d", S_WAVE)
    k("s_lshl_b32 s100, s100, 7")
    k("s_add_u32 s100, s100, 0x%x", TS + 8 * 65536)
    k("v_mov_b32 v41, 0")
    for i in range(16):
        k("v_mov_b32 v40, s%d", 64 + 2 * i)
        k("buffer_store_dword v40, v41, %s, s100 offen offset:%d", s(S_WS, 4), 4 * i)
    for e in range(2):
        lw = k.lab("cal")
        k("s_memrealtime s[64:65]")
        k("s_waitcnt lgkmcnt(0)")
        if e: k("s_add_u32 s64, s64, 100")
        k.L(lw)
        k("s_memrealtime s[66:67]")
        k("s_memtime s[68:69]")
        k("s_waitcnt lgkmcnt(0)")
        k("s_sub_u32 s70, s64, s66")
        k("s_cmp_ge_i32 s70, 0")
        k("s_cbranch_scc1 %s", lw)
        k("v_mov_b32 v40, s66")
        k("buffer_store_dword v40, v41, %s, s100 offen offset:%d", s(S_WS, 4), 80 + 8 * e)
        k("v_mov_b32 v40, s68")
        k("buffer_store_dword v40, v41, %s, s100 offen offset:%d", s(S_WS, 4), 84 + 8 * e)
    k.L(l)
def tick_dump(k):
    if not getattr(k, 'ticks', False): return
    k("v_mov_b32 v41, 0")
    for i in range(4):
        k("v_mov_b32 v40, s%d", 96 + i)
        k("buffer_store_dword v40, v41, %s, s100 offen offset:%d", s(S_WS, 4), 64 + 4 * i)

def SMF(acc, A, B): return "v_smfmac_f32_16x16x64_bf16 %s, %s, %s, %s" % (v(acc, 4), v(A, 4), u(B, 8), v(IDX))
def MF(d, A, B, first): return "v_mfma_f32_16x16x32_bf16 %s, %s, %s, %s" % (v(d, 4), v(A, 4), v(B, 4), "0" if first else v(d, 4))
def M16(d, A, B): return "v_mfma_f32_16x16x16_bf16 %s, %s, %s, %s" % (v(d, 4), v(A, 2), v(B, 2), v(d, 4))

def chain_setup(k):
    w = S_WAVE
    k.c("---- chain setup: addresses")
    k("v_lshlrev_b32 %s, 4, v1", v(aL16))
    for jp in range(4):
        k("s_xor_b32 s%d, s%d, %d", sT, w, jp)
        k("s_lshl_b32 s%d, s%d, 11", sT, sT)
        k("s_add_u32 s%d, s%d, %d", sT, sT, L_MB)
        k("v_add_u32 %s, s%d, %s", v(aM[jp]), sT, v(aL16))
    k("v_and_b32 v90, 15, v1")
    k("v_lshrrev_b32 v91, 4, v1")
    k("v_bfe_u32 v92, v1, 2, 2")
    k("v_and_b32 v93, 3, v1")
    k("v_mul_u32_u24 v94, 320, v91")
    k("v_lshl_add_u32 v94, v90, 3, v94")
    k("s_mul_i32 s%d, s%d, 1280", sT, w)
    k("s_add_u32 s%d, s%d, %d", sT, sT, L_XB)
    k("v_add_u32 %s, s%d, v94", v(aXW), sT)
    k("s_lshr_b32 s%d, s%d, 1", sT, w)
    k("s_mul_i32 s%d, s%d, 1280", sT, sT)
    k("s_and_b32 s%d, s%d, 1", sCNT, w)
    k("s_lshl_b32 s%d, s%d, 7", sCNT, sCNT)
    k("s_add_u32 s%d, s%d, s%d", sT, sT, sCNT)
    k("s_add_u32 s%d, s%d, %d", sT, sT, L_OB)
    k("v_add_u32 %s, s%d, v94", v(aOW), sT)
    k("v_mul_u32_u24 v94, 320, v93")
    k("v_lshrrev_b32 v95, 2, v1")
    k("v_lshl_add_u32 v94, v95, 3, v94")
    k("v_add_u32 %s, %d, v94", v(aXR), L_XB)
    k("s_lshl_b32 s%d, s%d, 14", sT, w)
    k("v_add_u32 %s, s%d, %s", v(aWV), sT, v(aL16))
    k("v_add_u32 %s, 0x10000, %s", v(aWO), v(aWV))
    k("v_add_u32 %s, %d, %s", v(aKT), L_KT, v(aL16))
    k("v_lshrrev_b32 v94, 3, v90")
    k("v_lshl_add_u32 v94, v94, 2, v91")
    k("v_lshlrev_b32 v94, 13, v94")
    k("v_and_b32 v95, 7, v1")
    k("v_lshl_add_u32 %s, v95, 3, v94", v(aH1S))
    k("v_lshlrev_b32 v94, 4, v91")
    k("v_lshl_add_u32 v94, v93, 2, v94")
    k("v_mov_b32 v95, v92")
    k("v_cmp_eq_u32 vcc, 0, v95")
    k("v_mov_b32 v95, 0x40000000")
    k("v_cndmask_b32 %s, v95, v94, vcc", v(aH2S))
    k("v_and_b32 v94, 2, v1")
    k("v_cmp_eq_u32 vcc, 0, v94")
    k("v_mov_b32 v94, 0x44444444")
    k("v_mov_b32 v95, 0xeeeeeeee")
    k("v_cndmask_b32 %s, v95, v94, vcc", v(IDX))
    k("v_mov_b32 v94, 0x3f80")
    k("v_mov_b32 v95, 0x3f800000")
    for d in range(4):
        k("v_cmp_eq_u32 vcc, %d, v90", 4 * d)
        k("v_cndmask_b32 %s, 0, v94, vcc", v(SEL + d))
        k("v_cmp_eq_u32 vcc, %d, v90", 4 * d + 1)
        k("v_cndmask_b32 %s, %s, v95, vcc", v(SEL + d), v(SEL + d))
    k("s_lshl_b32 s%d, s%d, 16", sT, w)
    k("s_lshl_b32 s%d, s%d, 6", sH1S0, S_HEAD)
    k("s_add_u32 s%d, s%d, s%d", sH1S0, sH1S0, sT)
    k("s_add_u32 s%d, s%d, 0x%x", sH1S0, sH1S0, HOP1)
    k("s_add_u32 s%d, s%d, 0x1000", sH1S1, sH1S0)
    k("s_lshl_b32 s%d, s%d, 2", sH1L, S_HEAD)
    k("s_add_u32 s%d, s%d, s%d", sH1L, sH1L, w)
    k("s_lshl_b32 s%d, s%d, 11", sH1L, sH1L)
    k("s_add_u32 s%d, s%d, 0x%x", sH1L, sH1L, HOP1)
    k("s_lshr_b32 s%d, s%d, 3", sH2S, S_HEAD)
    k("s_lshl_b32 s%d, s%d, 11", sH2S, sH2S)
    k("s_and_b32 s%d, s%d, 7", sT, S_HEAD)
    k("s_lshl_b32 s%d, s%d, 6", sT, sT)
    k("s_add_u32 s%d, s%d, s%d", sH2S, sH2S, sT)
    k("s_lshl_b32 s%d, s%d, 9", sT, w)
    k("s_add_u32 s%d, s%d, s%d", sH2S, sH2S, sT)
    k("s_add_u32 s%d, s%d, 0x%x", sH2S, sH2S, HOP2)
    k("s_lshl_b32 s%d, s%d, 11", sH2L, w)
    k("s_add_u32 s%d, s%d, 0x%x", sH2L, sH2L, HOP2)
    k("s_lshl_b32 s%d, s%d, 13", sKV, S_HEAD)
    k("s_lshl_b32 s%d, s%d, 11", sT, w)
    k("s_add_u32 s%d, s%d, s%d", sKV, sKV, sT)
    k("s_add_u32 s%d, s%d, 0x%x", sVIM, sKV, VIMG)
    k("s_add_u32 s%d, s%d, 0x%x", sKV, sKV, KIMG)
    k("s_add_u32 s%d, s%d, %d", sKTD, sT, L_KT)
    k("s_lshl_b32 s%d, s%d, 12", sKM, S_HEAD)
    k("s_lshl_b32 s%d, s%d, 10", sT, w)
    k("s_add_u32 s%d, s%d, s%d", sKM, sKM, sT)
    k("s_add_u32 s%d, s%d, 0x%x", sKM, sKM, KM - 0x20000)
    k("s_mov_b32 s%d, 0x%x", sC, f2u(CSC))
    k("s_mov_b32 s%d, 400000", S_LIM)
    k("s_mov_b32 s%d, 0x33333333", sMASK)
    k("s_mov_b32 s%d, 0x33333333", sMASK + 1)
    k("s_mov_b32 s%d, 0", sPH)
    k("s_xor_b32 s%d, s%d, 0x2000", sH2R, sH2S)

def merged_setup(k):
    k("s_lshl_b32 s%d, s%d, 7", sQF, S_HEAD)
    k("s_add_u32 s%d, s%d, 0x%x", sQF, sQF, FLAGS + F_QF)
    k("s_lshl_b32 s%d, s%d, 7", sKF, S_HEAD)
    k("s_add_u32 s%d, s%d, 0x%x", sKF, sKF, FLAGS + F_KF)
    k("v_lshlrev_b32 %s, 2, v93", v(aFL))

def kv_refresh(k, plus, back=None):
    lp = k.lab("kvr"); ok = k.lab("kvok")
    k("s_mov_b32 s%d, 0", sCNT)
    k("s_add_u32 s%d, s%d, %d", sT, S_STEP, plus)
    k.L(lp)
    k("buffer_load_dword v1, %s, %s, s%d offen sc1", v(aFL), s(S_WS, 4), sQF)
    k("s_waitcnt vmcnt(0)")
    k("v_cmp_ge_u32 vcc, s%d, v1", sT)
    k("s_cbranch_vccz %s", ok)
    k("s_sleep 2")
    k("s_add_u32 s%d, s%d, 1", sCNT, sCNT)
    k("s_cmp_lt_u32 s%d, s%d", sCNT, S_LIM)
    k("s_cbranch_scc1 %s", lp)
    k("s_mov_b32 s%d, 0", S_LIM)
    k.L(ok)
    if back: k("s_branch %s", back)

import chain as _c1
def chain_arm(k):
    k.c("---- arm hop buffers (both slots), sc1")
    for i in range(4): k("v_mov_b32 %s, -1", v(96 + i))
    for slot in range(2):
        k("s_add_u32 s%d, s%d, 0x%x", sT, sH1L, slot * 262144)
        k("buffer_store_dwordx4 v[96:99], %s, %s, s%d offen sc1", v(aL16), s(S_WS, 4), sT)
        k("buffer_store_dwordx4 v[96:99], %s, %s, s%d offen offset:1024 sc1", v(aL16), s(S_WS, 4), sT)
    k("buffer_store_dword v96, %s, %s, s%d offen sc1", v(aH2S), s(S_WS, 4), sH2R)
load_mem0 = _c1.load_mem0
WVR_ = 128
WOR_ = 192

def chain_load_weights(k, hooks={}, pre_issue={}, after_first=None):
    w = S_WAVE
    k.c("---- chain weight load")
    k("v_and_b32 v90, 15, v1")
    k("v_lshrrev_b32 v91, 4, v1")
    k("s_and_b32 s44, s%d, 1", w)
    k("s_lshl_b32 s44, s44, 2")
    k("v_xor_b32 v120, s44, v90")
    k("v_and_b32 v121, 1, v91")
    k("v_lshlrev_b32 v121, 3, v121")
    k("v_xor_b32 v120, v120, v121")
    k("v_lshlrev_b32 v120, 4, v120")
    k("v_lshl_add_u32 v120, v91, 13, v120")
    k("s_lshl_b32 s45, s%d, 8", S_HEAD)
    k("s_lshl_b32 s48, s%d, 17", w)
    k("s_add_u32 s45, s45, s48")
    k("s_lshl_b32 s44, s%d, 12", w)
    sc = [('q', 0), ('q', 1), ('k', 0), ('k', 1), ('v', 1), ('o', 0), ('v', 0), ('o', 1)]
    srds = dict(q=S_WQ, k=S_WK, v=S_WV, o=S_WO)
    queue = []
    def issue(i):
        m, par = sc[i]; reg = (i & 1) * 65536
        for n in range(16):
            if m == 'o':
                k("s_add_u32 s48, s49, %d", par * 128 + n * 8192)
                k("s_add_u32 m0, s3, %d", n * 1024)
            else:
                c, q = n >> 2, n & 3
                k("s_add_u32 s48, s45, %d", (2 * c + par) * 64 * 8192 + q * 4 * 8192)
                k("s_add_u32 m0, s44, %d", reg + c * 16384 + q * 1024)
            k("buffer_load_dwordx4 v%d, %s, s48 offen lds", 121 if m == 'o' else 120, s(srds[m], 4))
            queue.append(i)
    k("s_waitcnt lgkmcnt(0)")
    fin_srd(k, 'Wq', S_WQ)
    lstamp(k, 7)
    issue(0)
    if after_first: after_first(k)
    k("v_lshrrev_b32 v121, 3, v1")
    k("v_lshlrev_b32 v121, 10, v121")
    k("v_and_b32 v122, 7, v1")
    k("v_lshl_add_u32 v121, v122, 4, v121")
    k("v_and_b32 v126, 1, v92")
    k("v_lshl_add_u32 v126, v126, 2, v91")
    k("v_lshrrev_b32 v127, 1, v92")
    k("v_lshl_add_u32 v126, v126, 2, v127")
    k("v_lshlrev_b32 v126, 8, v126")
    k("v_xor_b32 v127, s%d, v92", w)
    k("v_lshl_add_u32 v126, v127, 6, v126")
    k("v_lshl_add_u32 v126, v93, 4, v126")
    for jp in range(4):
        k("s_xor_b32 s48, s%d, %d", w, jp)
        k("s_lshl_b32 s48, s48, 14")
        k("v_add_u32 v%d, s48, v126", 122 + jp)
    k("v_lshrrev_b32 v126, 1, v92")
    k("v_lshrrev_b32 v127, 1, v91")
    k("v_lshl_add_u32 v126, v127, 1, v126")
    k("v_and_b32 v127, 1, v91")
    k("v_lshl_add_u32 v126, v127, 3, v126")
    k("v_lshlrev_b32 v126, 2, v126")
    k("v_and_b32 v127, 1, v92")
    k("v_add_u32 v126, v126, v127")
    k("v_lshlrev_b32 v126, 7, v126")
    k("v_lshl_add_u32 v126, v93, 3, v126")
    k("s_lshl_b32 s48, s%d, 14", w)
    k("s_add_u32 s3, s48, 0x10000")
    k("v_add_u32 v126, s3, v126")
    k("s_lshl_b32 s49, s%d, 17", S_HEAD)
    k("s_lshl_b32 s48, s%d, 8", w)
    k("s_add_u32 s49, s49, s48")
    if -1 in hooks: queue.extend([-1] * hooks[-1](k))
    issue(1)
    lstamp(k, 5)
    TMP = 40
    for i in range(8):
        m, par = sc[i]
        if i in hooks: queue.extend([-1] * hooks[i](k))
        last = max(n for n, c in enumerate(queue) if c == i)
        k("s_waitcnt vmcnt(%d)", len(queue) - 1 - last)
        k("s_barrier")
        if i in (0, 2, 4, 5, 6): lstamp(k, {0: 0, 2: 2, 4: 4, 5: 1, 6: 3}[i])
        inplace = i >= 6
        cnt = 0
        for a_ in range(4):
            for b_ in range(2):
                if inplace: dst = TMP + (a_ * 2 + b_) * 8
                elif m == 'q': dst = WQ + (b_ * 8 + 2 * a_ + par) * 8
                elif m == 'k': dst = WK + (b_ * 8 + 2 * a_ + par) * 8
                elif m == 'v': dst = WVR_ + (a_ * 2 + b_) * 8
                else: dst = WOR_ + (a_ * 2 + b_) * 8
                for y in range(4):
                    if m == 'o':
                        k("ds_read_b64_tr_b16 %s, v126 offset:%d", u(dst + 2 * y, 2), (64 * b_ + 16 * (y >> 1) + 2 * (y & 1)) * 128 + 32 * a_)
                    else:
                        k("ds_read_b64_tr_b16 %s, v%d offset:%d", u(dst + 2 * y, 2), 122 + a_, (32 * (y >> 1) + 2 * (y & 1)) * 256 + 8 * b_)
                cnt += 4
                if cnt % 8 == 0: k("s_waitcnt lgkmcnt(4)")
        if i < 4:
            for jp in range(4): k("v_xor_b32 v%d, 0x10000, v%d", 122 + jp, 122 + jp)
        k("s_waitcnt lgkmcnt(0)")
        k("s_barrier")
        if inplace:
            for q in range(16):
                k("ds_write_b128 %s, %s offset:%d", v(aWO if m == 'o' else aWV), v(TMP + 4 * q, 4), q * 1024)
                if q % 8 == 7: k("s_waitcnt lgkmcnt(0)")
        if i in pre_issue: queue.extend([-1] * pre_issue[i](k))
        if i + 2 < 8: issue(i + 2)


def PFK(p):
    W = s(S_WS, 4)
    return [["s_mov_b32 m0, s%d" % sKTD, "buffer_load_dwordx4 %s, %s, s%d offen sc1 lds" % (v(aL16), W, sKV)],
            ["buffer_load_dwordx4 %s, %s, s%d offen offset:1024 sc1 lds" % (v(aL16), W, sKV)],
            ["buffer_load_dwordx4 %s, %s, %s, s%d offen sc1" % (v(VTN, 4), v(aL16), W, sVIM)],
            ["buffer_load_dwordx4 %s, %s, %s, s%d offen offset:1024 sc1" % (v(VTN + 4, 4), v(aL16), W, sVIM)],
            ["s_add_u32 s%d, s%d, 0x40000" % (sKV, sKV), "s_add_u32 s%d, s%d, 0x40000" % (sVIM, sVIM),
             "s_xor_b32 s%d, s%d, 0x2000" % (sKTD, sKTD)]][p]

def WVR(n, h):
    return "ds_read_b128 %s, %s offset:%d" % (v(G + (n & 3) * 8 + 4 * h, 4), v(aWV), n * 2048 + h * 1024)

def weave(k, spine, fill):
    for i, m in enumerate(spine):
        k(m)
        for f in fill.get(i, []): k(f)

def check_n(k, buf, n, t0, t1):
    if n == 8:
        k("v_max3_u32 %s, %s, %s, %s", v(t0), v(buf), v(buf + 1), v(buf + 2))
        k("v_max3_u32 %s, %s, %s, %s", v(t1), v(buf + 3), v(buf + 4), v(buf + 5))
        k("v_max3_u32 %s, %s, %s, %s", v(t0), v(buf + 6), v(buf + 7), v(t0))
        k("v_max_u32 %s, %s, %s", v(t0), v(t0), v(t1))
    else:
        k("v_max3_u32 %s, %s, %s, %s", v(t0), v(buf), v(buf + 1), v(buf + 2))
        k("v_max_u32 %s, %s, %s", v(t0), v(t0), v(buf + 3))
    k("v_cmp_eq_u32 vcc, -1, %s", v(t0))

def retry_stub(k, lab, back, loads, buf, n, pre=None, cnt=None):
    k.L(lab)
    lp = k.lab("rp")
    k("s_mov_b32 s%d, 0", sCNT)
    k.L(lp)
    for l in loads: k(l)
    if cnt is not None and getattr(k, 'ticks', False): k("s_add_u32 s%d, s%d, 1", cnt, cnt)
    k("s_waitcnt vmcnt(0)")
    if pre:
        for l in pre: k(l)
    check_n(k, buf, n, CT, CT + 1)
    k("s_cbranch_vccz %s", back)
    k("s_add_u32 s%d, s%d, 1", sCNT, sCNT)
    k("s_cmp_lt_u32 s%d, s%d", sCNT, S_LIM)
    k("s_cbranch_scc1 %s", lp)
    k("s_mov_b32 s%d, 0", S_LIM)
    k("s_branch %s", back)

def delay(k, slots):
    while slots > 0:
        m = min(slots, 16); k("s_nop %d", m - 1); slots -= m

def chain_loop(k, stf, tag):
    W = s(S_WS, 4)
    o = getattr(k, 'copt', {})
    mg = getattr(k, 'merged', False)
    tk = getattr(k, 'ticks', False)
    TK = lambda i: ("s_memtime s[%d:%d]" % (64 + 2 * i, 65 + 2 * i)) if tk else ""
    lexit = k.lab(tag + "exit"); bexit = k.lab(tag + "bexit")
    Qs = lambda j, b: [SMF(AQ, b, WQ + j * 8), SMF(AQ + 4, b, WQ + (8 + j) * 8)]
    Ks = lambda j, b: [SMF(AK, b, WK + j * 8), SMF(AK + 4, b, WK + (8 + j) * 8)]
    Vs = lambda j, b: [SMF(AV + 4 * t, b, (G + ((j + t) & 3) * 8) if j % 2 == 0 else (WVR_ + ((j >> 1) * 2 + t) * 8)) for t in range(2)]
    Q = lambda j: Qs(j, MA + 4 * j); Kp = lambda j: Ks(j, MA + 4 * j); V = lambda j: Vs(j, MA + 4 * j)
    KORD = [0, 1, 2, 4, 6, 3, 5, 7]
    MR = lambda j: "ds_read_b128 %s, %s offset:%d" % (v(MA + 4 * j, 4), v(aM[j >> 1]), (j & 1) * 1024)
    KTR = lambda f: "ds_read_b128 %s, %s offset:%d" % (v(MA + 4 * KORD[f], 4), v(aKT), f * 1024)
    MV = lambda d, x: "v_mov_b32 %s, %s" % (v(d), x)
    EX = lambda d, s_: "v_exp_f32 %s, %s" % (v(d), v(s_))
    CV = lambda d, a_, b_: "v_cvt_pk_bf16_f32 %s, %s, %s" % (v(d), v(a_), v(b_))
    FA = lambda a_: ["v_add_f32 %s, %s, %s" % (v(a_), v(a_), v(a_ + 2)), "v_add_f32 %s, %s, %s" % (v(a_ + 1), v(a_ + 1), v(a_ + 3))]
    stkvm = "buffer_store_dwordx4 %s, %s, %s, s%d offen sc1" % (v(KVM, 4), v(aL16), W, sKM)
    r_sm = k.lab(tag + "rsm"); b_sm = k.lab(tag + "bsm"); r_kv = k.lab(tag + "rkv"); b_kv = k.lab(tag + "bkv")
    EB = [MA, VTN]
    lX = [k.lab(tag + "s0e") for _ in EB]
    lF = [k.lab(tag + "s0f") for _ in EB]; lto = k.lab(tag + "to")
    RD = MA + 16; HT = MA + 20; H1 = MA + 8; H1B = MA + 24
    lde = lambda b: ["buffer_load_dwordx4 %s, %s, %s, s%d offen sc1" % (v(b, 4), v(aL16), W, sH2L),
                     "buffer_load_dwordx4 %s, %s, %s, s%d offen offset:1024 sc1" % (v(b + 4, 4), v(aL16), W, sH2L)]
    def spin(reg, n, lab, magic="0x7fc1"):
        for i in range(n):
            k("v_cmp_ne_u32 vcc, %s, %s", magic, v(reg))
            k("s_cbranch_vccnz %s", lab)
    lS = [k.lab(tag + "s0v") for _ in EB]; lcom = k.lab(tag + "com"); lpoll = k.lab(tag + "poll")
    if o.get('opt', 0): k("ds_write_b128 %s, %s", v(aM[0]), v(MA, 4))
    k("s_branch %s", lS[0])
    k(".aw_on")
    nb0 = o.get('b0', 5)
    fl = [[],
          ["buffer_load_dword v1, %s, %s, s%d offen sc1" % (v(aFL4), W, sQF)]] if mg else [[], []]
    for bi in (1, 0):
        b = EB[bi]; ob = EB[1 - bi]
        k(".aw_reset")
        if o.get('al') is not None:
            k(".p2align 6")
            for _ in range(o['al']): k("s_nop 0")
        k.L(lF[1 - bi])
        if o.get('fx', 0):
            k("s_cmp_ge_u32 s%d, 6", sCNT)
            k("s_cbranch_scc1 %s", lX[1 - bi])
            k.L(lX[1 - bi] + "b")
        elif o.get('nanc', 1):
            k("v_max_u32 %s, %s, %s", v(HT), v(ob + 3), v(ob + 7))
            k("v_cmp_eq_u32 vcc, -1, %s", v(HT))
            k("s_cbranch_vccz %s", lS[1 - bi])
        if o.get('mask', 0): k("s_mov_b64 exec, vcc")
        for l in lde(ob): k(l)
        if o.get('mask', 0): k("s_mov_b64 exec, -1")
        if tk: k("s_add_u32 s97, s97, 1")
        k("s_add_u32 s%d, s%d, 1", sCNT, sCNT)
        if not o.get('fx', 0):
            k("s_cmp_ge_u32 s%d, s%d", sCNT, S_LIM)
            k("s_cbranch_scc1 %s", lto)
        if bi == 0: k.L(lpoll)
        if o.get('opt', 0):
            k("s_waitcnt vmcnt(3)")
            k("ds_write_b128 %s, %s", v(aM[0]), v(b, 4))
        ar = k.lab(tag + "ar2")
        spin(b + 7, o.get('ns2', 16), ar, "-2")
        k.L(ar)
        k("s_waitcnt vmcnt(2)")
        if o.get('nanc', 1): k("v_cmp_u_f32 vcc, %s, %s", v(b + 3), v(b + 7))
        else:
            k("v_max_u32 %s, %s, %s", v(HT), v(b + 3), v(b + 7))
            k("v_cmp_eq_u32 vcc, -1, %s", v(HT))
        k("s_cbranch_vccnz %s", lF[bi])
        k.L(lS[bi])
        tick(k, 15); tick_step_end(k); tick(k, 0)
        if o.get('plog2'): k("s_memtime s[64:65]"); k("s_memrealtime s[66:67]")
        w64 = o.get('w64', 0)
        if w64 == 0 and not o.get('opt', 0): k("ds_write_b128 %s, %s", v(aM[0]), v(b, 4))
        f = {o.get('gw2', 2): ["ds_write_b128 %s, %s offset:1024" % (v(aM[0]), v(b + 4, 4))], nb0: [".aw_writes", "s_barrier", TK(1), MR(2)]}
        if w64 == 1:
            del f[o.get('gw2', 2)]
            ws = ["ds_write_b64 %s, %s offset:%d" % (v(aM[0]), v(b + 2 * i, 2), (i >> 1) * 1024 + (i & 1) * 8) for i in range(4)]
            k(ws[0])
            for i in range(1, 4): f[i - 1] = [ws[i]]
        if w64 == 2:
            del f[o.get('gw2', 2)]
            ws = ["ds_write_b32 %s, %s offset:%d" % (v(aM[0]), v(b + i), (i >> 2) * 1024 + (i & 3) * 4) for i in range(8)]
            k(ws[0]); k(ws[1])
            for i in range(3): f[i] = ws[2 + 2 * i: 4 + 2 * i]
        for x in range(3, 8): f[min(nb0 + x - 2, 11)] = f.get(min(nb0 + x - 2, 11), []) + [MR(x)]
        if o.get('early', 0): f[1] = PFK(0)[1:]; f[2] = PFK(1); f[3] = [stkvm]; f[4] = fl[0]
        for g_, x in zip(o.get('ks0', []), [PFK(0)[1:], PFK(1)]): f[g_] = f[g_] + x
        weave(k, Qs(0, b) + Ks(0, b) + Qs(1, b + 4) + Ks(1, b + 4) + Vs(0, b) + Vs(1, b + 4), f)
        if bi: k("s_branch %s", lcom)
    k.L(lcom)
    r_qf = k.lab(tag + "rqf"); b_qf = k.lab(tag + "bqf")
    if mg and o.get('qfc', 1):
        k("s_cbranch_scc1 %s", r_qf) if False else None
    qf = []
    for t in range(2):
        a_ = AQ + 4 * t
        qf += FA(a_) + ["v_mul_f32 %s, s%d, %s" % (v(a_), sC, v(a_)), "v_mul_f32 %s, s%d, %s" % (v(a_ + 1), sC, v(a_ + 1)), CV(a_, a_, a_ + 1)]
    E_ = lambda x: [] if o.get('early', 0) else x
    pl_ = (["v_mov_b32 v34, s64", "v_mov_b32 v35, s66", "v_mov_b32 v33, 0", "s_lshl_b32 s68, s%d, 3" % S_STEP, "s_add_u32 s68, s68, s100",
             "buffer_store_dwordx2 v[34:35], v33, %s, s68 offen" % W] if o.get('plog2') else [])
    vp = o.get('vp', [3, 5, 7, 9, 0])
    fq = {g_: [] for g_ in range(24)}
    fq[0] += [TK(2), "s_waitcnt vmcnt(%d)" % len(o.get('ks0', []))]
    for g_, x in zip(vp, [PFK(2), PFK(3), PFK(0)[1:], PFK(1), [stkvm]] if not o.get('ks0') else [PFK(2), PFK(3), [stkvm]]): fq[g_] += x
    free = [g_ for g_ in range(1, 23) if g_ not in vp]
    misc = [[WVR(4, 0)], [WVR(4, 1)], [WVR(5, 0)], [WVR(5, 1)], [KTR(1)], pl_ + [KTR(0)]]
    if mg and o.get('qfc', 1): misc = [["s_cmp_lg_u32 s%d, 0" % sSAFE, "s_cbranch_scc1 %s" % r_qf, b_qf + ":"]] + misc
    for x in misc: fq[free.pop(0)] += x
    late = [g_ for g_ in free if g_ > max(vp)]
    fq[late[0]] += (PFK(4)[:2] if not o.get('xkv') else ["s_nop 0", "s_nop 0"]); fq[late[1]] += PFK(4)[2:] + ["s_add_u32 s%d, s%d, 0x20000" % (sKM, sKM)]
    for g_, q_ in zip(range(13, 23), [0, 1, 5, 6, 2, 3, 7, 8, 4, 9]): fq[g_] += [qf[q_]]
    fq[23] += ["ds_write2_b32 %s, %s, %s offset0:0 offset1:32" % (v(aXW), v(AQ), v(AQ + 4))]
    weave(k, Q(2) + Q(3) + Q(4) + Q(5) + Q(6) + Q(7) + Kp(2) + Kp(3) + Kp(4) + Kp(5) + Kp(6) + Kp(7), fq)
    X = AQ
    XR = lambda i: "ds_read_b64_tr_b16 %s, %s offset:%d" % (v(X + 2 * i, 2), v(aXR), (i >> 1) * 1280 + (i & 1) * 128)
    ONES, PM, LA, E, T1, T2, T0 = G, G + 4, G + 8, G + 12, G + 20, G + 24, G + 28
    O1 = "0x3f803f80"
    KORD[:] = [0, 1, 2, 4, 3, 5, 6, 7]
    kf = FA(AK) + FA(AK + 4) + [CV(AQ + 1, AK, AK + 1), CV(AQ + 5, AK + 4, AK + 5)]
    XW = "ds_write2_b64 %s, %s, %s offset0:0 offset1:16" % (v(aXW), v(AQ, 2), v(AQ + 4, 2))
    BAR = ["s_nop 0"] * o.get('padX', 0) + [".aw_writes", "s_barrier", TK(6)]
    vs = V(2) + V(4) + V(3) + V(5) + V(6) + V(7)
    nb = o.get('xb', 6)
    f = {0: [WVR(6, 0)] + kf, 1: [XW, TK(5)], 2: [WVR(6, 1), MV(KVM, v(AQ + 1))], 3: [WVR(7, 0), MV(KVM + 1, v(AQ + 5))], 4: [WVR(7, 1), MV(ONES, O1)], 5: [KTR(2), MV(ONES + 1, O1)]}
    mv = [MV(ONES + 2, O1), MV(ONES + 3, O1), MV(PM + 1, "0"), MV(PM + 2, "0")]
    if o.get('qw', 1):
        kf = FA(AK) + FA(AK + 4) + [CV(KVM, AK, AK + 1), CV(KVM + 1, AK + 4, AK + 5)]
        XW = "ds_write2_b32 %s, %s, %s offset0:1 offset1:33" % (v(aXW), v(KVM), v(KVM + 1))
        f = {0: [WVR(6, 0)] + kf, 1: [XW, TK(5)], 2: [WVR(6, 1)], 3: [WVR(7, 0), MV(ONES, O1)], 4: [WVR(7, 1), MV(ONES + 1, O1)], 5: [KTR(2), MV(ONES + 2, O1)]}
        mv = [MV(ONES + 3, O1), MV(PM + 1, "0"), MV(PM + 2, "0")]
    xs = [XR(i) for i in range(8)]
    cnt = o.get('xc', {5: [2, 1, 1, 1, 1, 1, 1], 6: [1, 2, 2, 1, 1, 1], 7: [2, 2, 2, 1, 1], 8: [2, 2, 2, 2]}[nb])
    for g_ in range(6, nb): f[g_] = [KTR(3) if g_ == 6 else KTR(4), mv.pop(0)]
    kdone = 3 + max(0, nb - 6)
    for x, c_ in enumerate(cnt):
        f[nb + x] = (f.get(nb, []) + BAR if x == 0 else []) + xs[:c_]; xs = xs[c_:]
    assert not xs
    weave(k, vs, f)
    vf = []
    for t in range(2): vf += FA(AV + 4 * t) + [CV(KVM + 2 + t, AV + 4 * t, AV + 4 * t + 1)]
    t1 = lambda kb: MF(T1, MA + 4 * KORD[kb], X + 4 * kb, kb == 0)
    t2 = lambda kb: MF(T2, MA + 4 * KORD[4 + kb], X + 4 * kb, kb == 0)
    t0 = lambda kb: MF(T0, X + 4 * kb, X + 4 * kb, kb == 0)
    KQ = lambda i: [KTR(kdone + i)] if kdone + i < 8 else []
    tb = o.get('tb', 1)
    fc = {0: [TK(7)] + KQ(0) + mv[:1], 1: KQ(1) + [vf[0]], 2: KQ(2) + [vf[1]], 3: KQ(3) + [vf[3]], 4: KQ(4) + [vf[4]], 5: [vf[2], vf[5]],
          6: ["s_cmp_ge_u32 s%d, %d" % (S_STEP, o.get('kvl', 59)), "s_cbranch_scc1 %s" % lexit, bexit + ":"] + mv[1:2], 7: mv[2:]}
    if tb == 0:
        fc.update({8: [EX(E, T1)], 9: [EX(E + 1, T1 + 1)], 10: [EX(E + 2, T1 + 2)],
            11: [EX(E + 3, T1 + 3), EX(T0, T0 + 2), EX(T0 + 1, T0 + 3), CV(E, E, E + 1), CV(E + 1, E + 2, E + 3), CV(PM, T0, T0 + 1), CV(PM + 3, T0, T0 + 1)]})
        weave(k, [t1(0), t0(0), t1(1), t0(1), t1(2), t0(2), t1(3), t2(0), t0(3), t2(1), t2(2), t2(3)], fc)
        pvf = {0: [EX(E + 4, T2)], 1: [EX(E + 5, T2 + 1)], 2: [EX(E + 6, T2 + 2), EX(E + 7, T2 + 3), CV(E + 2, E + 4, E + 5), CV(E + 3, E + 6, E + 7)]}
    else:
        fc.update({8: [EX(T0, T0 + 2)], 9: [EX(T0 + 1, T0 + 3)], 10: [CV(PM, T0, T0 + 1), CV(PM + 3, T0, T0 + 1)], 11: [EX(E, T1)]})
        weave(k, [t0(0), t1(0), t0(1), t1(1), t0(2), t1(2), t0(3), t1(3), t2(0), t2(1), t2(2), t2(3)], fc)
        pvf = {0: [EX(E + 1, T1 + 1)], 1: [EX(E + 2, T1 + 2)], 2: [EX(E + 3, T1 + 3), EX(E + 4, T2), EX(E + 5, T2 + 1), CV(E, E, E + 1), EX(E + 6, T2 + 2), EX(E + 7, T2 + 3),
               CV(E + 1, E + 2, E + 3), CV(E + 2, E + 4, E + 5), CV(E + 3, E + 6, E + 7)]}
    O = AV
    Z = lambda i: "v_mov_b32 %s, 0" % v(MA + i)
    M16z = lambda d, A, B: "v_mfma_f32_16x16x16_bf16 %s, %s, %s, 0" % (v(d, 4), v(A, 2), v(B, 2))
    tick(k, 8)
    def pv(k, fast):
        weave(k, [M16z(LA, PM, ONES), M16z(O, PM, KVM + 2), M16z(O + 4, PM + 2, KVM + 2)],
              pvf if fast else {})
        weave(k, [MF(LA, E, ONES, False), MF(O, E, VT, False), MF(O + 4, E, VT + 4, False)], {})
    pv(k, True)
    k("v_rcp_f32 %s, %s", v(LA), v(LA))
    k("v_rcp_f32 %s, %s", v(LA + 1), v(LA + 1))
    k.L(b_sm)
    for t in range(2):
        if o.get('pk', 1): k("v_pk_mul_f32 %s, %s, %s", v(O + 4 * t, 2), v(O + 4 * t, 2), v(LA, 2))
        else:
            k("v_mul_f32 %s, %s, %s", v(O + 4 * t), v(O + 4 * t), v(LA))
            k("v_mul_f32 %s, %s, %s", v(O + 4 * t + 1), v(O + 4 * t + 1), v(LA + 1))
        k(CV(E + 4 + t, O + 4 * t, O + 4 * t + 1))
    k("ds_write_b64 %s, %s", v(aOW), v(E + 4, 2))
    tick(k, 9)
    Z2 = lambda i: "v_mov_b64 %s, 0" % v(MA + 2 * i, 2)
    ZP = X + 8 + 6
    ZM = lambda r: "v_mfma_f32_32x32x8_bf16 %s, %s, %s, 0" % (v(r, 16), v(ZP, 2), v(ZP, 2))
    k("v_max3_f32 %s, |%s|, |%s|, |%s|", v(X), v(T1), v(T1 + 1), v(T1 + 2))
    k("v_max3_f32 %s, |%s|, |%s|, |%s|", v(X + 1), v(T1 + 3), v(T2), v(T2 + 1))
    k("v_max3_f32 %s, |%s|, |%s|, %s", v(X), v(T2 + 2), v(T2 + 3), v(X))
    k("v_max3_f32 %s, |%s|, |%s|, %s", v(X + 1), v(T0 + 2), v(T0 + 3), v(X + 1))
    k("v_mov_b64 %s, 0", v(ZP, 2))
    k("v_max_f32 %s, %s, %s", v(X), v(X), v(X + 1))
    k("v_cmp_lt_f32 vcc, s%d, %s", sTHR, v(X))
    k("s_and_b64 vcc, vcc, %s", s(sMASK, 2))
    k("s_cbranch_scc1 %s", r_sm)
    k("s_mov_b32 s%d, 0x42700000", sTHR)
    k(ZM(MA))
    for _ in range(o.get('padO', 0)): k("s_nop 0")
    k(".aw_writes"); k("s_barrier")
    tick(k, 10)
    OA = AQ
    for i in range(4):
        k("ds_read_b64_tr_b16 %s, %s offset:%d", v(OA + 2 * i, 2), v(aXR), (L_OB - L_XB) + (i >> 1) * 1280 + (i & 1) * 128)
        if i == o.get('zp', 1): k(ZM(MA + 16))
    PK = AK
    SB = {(4, 0): G, (5, 0): G + 8, (4, 1): G + 16, (5, 1): G + 24, (6, 0): VT, (7, 0): AV, (6, 1): G, (7, 1): G + 8}
    WOB = lambda nt, kbo: (WOR_ + (nt * 2 + kbo) * 8) if nt < 4 else SB[(nt, kbo)]
    WR = lambda nt, kbo, h: "ds_read_b128 %s, %s offset:%d" % (v(SB[(nt, kbo)] + 4 * h, 4), v(aWO), ((nt - 4) * 2 + kbo) * 2048 + h * 1024)
    WS_ = lambda nt, kbo: SMF(MA + 4 * nt, OA + 4 * kbo, WOB(nt, kbo))
    AD = lambda nt, b: "v_add_f32 %s, %s, %s" % (v(MA + 4 * nt + b), v(MA + 4 * nt + b), v(MA + 4 * nt + 2 + b))
    PC = lambda sx, b, hh: CV(PK + 4 * sx + 2 * b + hh, MA + 4 * (4 * sx + 2 * hh) + b, MA + 4 * (4 * sx + 2 * hh + 1) + b)
    ST1 = lambda sx: "buffer_store_dwordx4 %s, %s, %s, s%d offen %s" % (v(PK + 4 * sx, 4), v(aH1S), W, sH1S1 if sx else sH1S0, stf)
    PA = lambda nt: "v_pk_add_f32 %s, %s, %s" % (v(MA + 4 * nt, 2), v(MA + 4 * nt, 2), v(MA + 4 * nt + 2, 2))
    TG = lambda sx: "v_and_or_b32 %s, %s, -2, s%d" % (v(PK + 4 * sx), v(PK + 4 * sx), sPH)
    k(WR(4, 0, 0)); k(WR(4, 0, 1))
    A2 = lambda nt: [PA(nt)] if o.get('pk', 1) else [AD(nt, 0), AD(nt, 1)]
    P2 = lambda tp, b: CV(PK + 2 * tp + b, MA + 8 * tp + b, MA + 8 * tp + 4 + b)
    T2_ = lambda tp: "v_and_or_b32 %s, %s, -2, s%d" % (v(PK + 2 * tp), v(PK + 2 * tp), sPH)
    S2 = lambda tp: "buffer_store_dwordx2 %s, %s, %s, s%d offen offset:%d %s" % (v(PK + 2 * tp, 2), v(aH1S), W, sH1S1 if tp >> 1 else sH1S0, (tp & 1) * 2048, stf)
    fin = lambda tp: [AD(2 * tp + 1, 0), AD(2 * tp + 1, 1), P2(tp, 0), P2(tp, 1), T2_(tp), S2(tp)]
    fa = {0: [TK(11), WR(5, 0, 0)], 1: [WR(5, 0, 1)], 2: [WR(4, 1, 0)], 3: [WR(4, 1, 1)],
        4: [WR(5, 1, 0), AD(0, 0)], 5: [WR(5, 1, 1), AD(0, 1)] + fin(0) + [TK(12)], 6: [WR(6, 0, 0), WR(6, 0, 1)], 7: [WR(7, 0, 0), WR(7, 0, 1)],
        8: [WR(6, 1, 0), AD(2, 0)], 9: [WR(6, 1, 1), AD(2, 1), WR(7, 1, 0), WR(7, 1, 1)] + fin(1),
        12: [AD(4, 0)], 13: [AD(4, 1)] + fin(2),
        15: A2(6) + A2(7) + [P2(3, 0), P2(3, 1), T2_(3), S2(3)]}
    wv_ = o.get('wv', 3)
    if wv_ == 0:
        fa = {0: [TK(11), WR(5, 0, 0)], 1: [WR(5, 0, 1)], 2: [WR(4, 1, 0)], 3: [WR(4, 1, 1)],
            4: [WR(5, 1, 0), AD(0, 0)], 5: [WR(5, 1, 1), AD(0, 1)], 6: [WR(6, 0, 0), AD(1, 0)], 7: [WR(6, 0, 1), WR(7, 0, 0), WR(7, 0, 1)] + fin(0)[1:] + [TK(12)],
            8: [WR(6, 1, 0), AD(2, 0)], 9: [WR(6, 1, 1), AD(2, 1)], 10: [WR(7, 1, 0), AD(3, 0)], 11: [WR(7, 1, 1)] + fin(1)[1:],
            12: [AD(4, 0)], 13: [AD(4, 1)], 14: [AD(5, 0)],
            15: fin(2)[1:] + A2(6) + A2(7) + [P2(3, 0), P2(3, 1), T2_(3), S2(3)]}
    elif wv_ == 1:
        fa = {0: [TK(11), WR(5, 0, 0)], 1: [WR(5, 0, 1)], 2: [WR(4, 1, 0), WR(4, 1, 1)], 3: [WR(5, 1, 0), WR(5, 1, 1)],
            4: [WR(6, 0, 0), AD(0, 0)], 5: [WR(6, 0, 1), AD(0, 1)], 6: [WR(7, 0, 0)] + fin(0)[:-1], 7: [S2(0), TK(12), WR(7, 0, 1)],
            8: [WR(6, 1, 0), AD(2, 0)], 9: [WR(6, 1, 1), AD(2, 1)], 10: [WR(7, 1, 0), WR(7, 1, 1)] + fin(1)[:-1], 11: [S2(1)],
            12: [AD(4, 0)], 13: [AD(4, 1)], 14: fin(2)[:-1],
            15: [S2(2)] + A2(6) + A2(7) + [P2(3, 0), P2(3, 1), T2_(3), S2(3)]}
    elif wv_ == 3:
        fa = {0: [TK(11), WR(5, 0, 0)], 1: [WR(5, 0, 1)], 2: [WR(4, 1, 0), WR(4, 1, 1)], 3: [WR(5, 1, 0), WR(5, 1, 1)],
            4: [WR(6, 0, 0), AD(0, 0)], 5: [WR(6, 0, 1), AD(0, 1)], 6: [WR(7, 0, 0)] + fin(0)[:-1], 7: [S2(0), TK(12), WR(7, 0, 1)],
            8: [WR(6, 1, 0), AD(2, 0)], 9: [WR(6, 1, 1), AD(2, 1)], 10: [WR(7, 1, 0), WR(7, 1, 1)] + fin(1)[:-1], 11: [S2(1)],
            12: [AD(4, 0)], 13: [AD(4, 1)] + fin(2)[:-1], 14: [S2(2)],
            15: A2(6) + A2(7) + [P2(3, 0), P2(3, 1), T2_(3), S2(3)]}
    elif wv_ == 4:
        fa = {0: [TK(11), WR(5, 0, 0)], 1: [WR(5, 0, 1)], 2: [WR(4, 1, 0), WR(4, 1, 1)], 3: [WR(5, 1, 0), WR(5, 1, 1)],
            4: [WR(6, 0, 0), AD(0, 0)], 5: [WR(6, 0, 1), AD(0, 1)], 6: [WR(7, 0, 0), AD(1, 0)], 7: [WR(7, 0, 1)] + fin(0)[1:-1], 8: [S2(0), TK(12), WR(6, 1, 0), AD(2, 0)],
            9: [WR(6, 1, 1), AD(2, 1)], 10: [WR(7, 1, 0), WR(7, 1, 1)] + fin(1)[:-1], 11: [S2(1)],
            12: [AD(4, 0)], 13: [AD(4, 1)] + fin(2)[:-1], 14: [S2(2)],
            15: A2(6) + A2(7) + [P2(3, 0), P2(3, 1), T2_(3), S2(3)]}
    else:
        fa = {0: [TK(11), WR(5, 0, 0)], 1: [WR(5, 0, 1)], 2: [WR(4, 1, 0), WR(4, 1, 1)], 3: [WR(5, 1, 0), WR(5, 1, 1)],
            4: [WR(6, 0, 0), AD(0, 0)], 5: [WR(6, 0, 1), AD(0, 1)], 6: [WR(7, 0, 0), AD(1, 0)], 7: [WR(7, 0, 1)] + fin(0)[1:-1], 8: [S2(0), TK(12), WR(6, 1, 0), AD(2, 0)],
            9: [WR(6, 1, 1), AD(2, 1)], 10: [WR(7, 1, 0), AD(3, 0)], 11: [WR(7, 1, 1)] + fin(1)[1:-1], 12: [S2(1), AD(4, 0)],
            13: [AD(4, 1)], 14: fin(2)[:-1],
            15: [S2(2)] + A2(6) + A2(7) + [P2(3, 0), P2(3, 1), T2_(3), S2(3)]}
    weave(k, [WS_(0, 0), WS_(1, 0), WS_(0, 1), WS_(1, 1), WS_(2, 0), WS_(3, 0), WS_(2, 1), WS_(3, 1), WS_(4, 0), WS_(5, 0),
              WS_(4, 1), WS_(5, 1), WS_(6, 0), WS_(7, 0), WS_(6, 1), WS_(7, 1)], fa)
    tick(k, 13)
    if o.get('plog'):
        k("s_mov_b32 m0, s%d", S_STEP)
        k("v_writelane_b32 v1, s64, m0")
    RD = MA + 16; HT = MA + 20; H1 = MA + 8; H1B = MA + 24
    h1lb = lambda b: ["buffer_load_dwordx4 %s, %s, %s, s%d offen sc1" % (v(b, 4), v(aL16), W, sH1L),
           "buffer_load_dwordx4 %s, %s, %s, s%d offen offset:1024 sc1" % (v(b + 4, 4), v(aL16), W, sH1L)]
    redb = lambda b: [MF(RD, SEL, b, True), MF(RD, SEL, b + 4, False),
           "v_bitop3_b32 %s, %s, %s, s%d bitop3:0x7e" % (v(HT), v(b), v(b + 4), sPH), "v_and_b32 %s, 1, %s" % (v(HT), v(HT)),
           "v_cmp_ne_u32 vcc, 0, %s" % v(HT)]
    h1l = h1lb(H1); red = redb(H1)
    lde = lambda b: ["buffer_load_dwordx4 %s, %s, %s, s%d offen sc1" % (v(b, 4), v(aL16), W, sH2L),
                     "buffer_load_dwordx4 %s, %s, %s, s%d offen offset:1024 sc1" % (v(b + 4, 4), v(aL16), W, sH2L)]
    KAV = "v_mov_b32 %s, 0" % v(MA + 22)
    def warm(vl, ol, slots, per=o.get('per', 4)):
        while slots > 0 and (vl or ol):
            if vl: k(vl.pop(0)); slots -= 1
            r = min(per - 1, slots)
            while r > 0 and ol:
                x = ol.pop(0); k(x); c = 2 if x.startswith('ds_') else 1; r -= c; slots -= c
            if r > 0 and o.get('dense', 1) == 0: k("s_nop %d", r - 1); slots -= r
        if o.get('slw', 0):
            n = slots // 16
            if n > 0: k("s_sleep %d", n); slots -= 16 * n + 1
        while slots > 0:
            m_ = min(slots, 16); k("s_nop %d", m_ - 1); slots -= m_
    def spin(reg, n, lab, magic="0x7fc1"):
        for i in range(n):
            k("v_cmp_ne_u32 vcc, %s, %s", magic, v(reg))
            k("s_cbranch_vccnz %s", lab)
            if o.get('spn', 0): k("s_nop %d", o.get('spn') - 1)
    ok1 = k.lab(tag + "ok1"); rr1 = k.lab(tag + "r1"); ar1 = k.lab(tag + "ar1"); ar0 = k.lab(tag + "ar0")
    lp1 = k.lab(tag + "lp1"); lB = k.lab(tag + "gB"); lA2 = k.lab(tag + "gA2")
    uni = o.get('uni', 1)
    if not uni:
        k("s_cmp_ge_u32 s%d, 2", S_WAVE)
        k(".aw_fork")
        k("s_cbranch_scc1 %s", lB)
    for g in ('a' if uni else 'ab'):
        if g == 'b':
            k.L(lB); k(".aw_join")
        hv = ["v_mov_b64 %s, 0" % v(AQ + 2 * i, 2) for i in range(12)] + ["v_xor_b32 %s, 0x2000, %s" % (v(aKT), v(aKT))]
        ho = [WVR(n, h) for n in range(4) for h in range(2)] + \
             ["s_mov_b32 s%d, s%d" % (sH2R, sH2S), "s_xor_b32 s%d, s%d, 0x2000" % (sH2S, sH2S)] + \
             ["s_xor_b32 s%d, s%d, 0x40000" % (r, r) for r in (sH1S0, sH1S1)] + \
             ["s_xor_b32 s%d, s%d, 0x2000" % (sH2L, sH2L), "s_add_u32 s%d, s%d, 1" % (S_STEP, S_STEP), "s_mov_b32 m0, s%d" % sKTD, "s_mov_b32 s%d, 0" % sCNT]
        kw = o.get('kw', 0)
        if kw:
            hv2 = [MV(AQ + i, "0") for i in range(24)]; hv = hv[-1:]
            def spaced(slots, per):
                while slots > 0:
                    k(hv2.pop(0) if hv2 else MV(HT + 1, "0")); slots -= 1
                    r = min(per - 1, slots)
                    if r > 0: k("s_nop %d", r - 1); slots -= r
            warm(hv, ho, o.get('p0' + g, 44))
            for l in h1lb(H1B): k(l)
            spaced(o.get('p1' + g, 38), o.get('kper', 3))
            for l in h1l: k(l)
            spaced(kw, o.get('kper', 3))
            hvrest = hv2
        else:
            hvrest = []
            warm(hv, ho, o.get('p0' + g, 24 if g == 'a' else 44))
            tick(k, 3)
            for l in h1lb(H1B): k(l)
            warm(hv, ho, o.get('p1' + g, 54 if g == 'a' else 24))
            for l in h1l: k(l)
            warm(hv, ho, o.get('w1' + g, 2 if g == 'a' else 14))
        assert not hv and not ho
        k(".aw_all")
        if g == 'a' and not uni: k("s_branch %s", lp1)
    for _ in range(o.get('padR', 0)): k("s_nop 0")
    k.L(lp1)
    spin(H1B + 3, o.get('ns1', 24), ar0)
    k.L(ar0)
    k("s_waitcnt vmcnt(3)")
    tick(k, 4)
    k(redb(H1B)[0])
    k("s_waitcnt vmcnt(2)")
    for l in redb(H1B)[1:]: k(l)
    k("s_cbranch_vccnz %s", rr1)
    k.L(ok1)
    for sh in (4, 8):
        for r in (RD, RD + 1): k("v_add_f32_dpp %s, %s, %s row_ror:%d row_mask:0xf bank_mask:0xf", v(r), v(r), v(r), sh)
    k("v_cvt_pk_bf16_f32 %s, %s, %s", v(RD), v(RD), v(RD + 1))
    k("buffer_store_dword %s, %s, %s, s%d offen %s", v(RD), v(aH2S), W, sH2S, stf)
    tick(k, 14)
    k(MV(HT, "-1"))
    k("buffer_store_dword %s, %s, %s, s%d offen %s", v(HT), v(aH2S), W, sH2R, stf)
    hv = ["v_mov_b64 %s, %s" % (v(VT + 2 * i, 2), v(VTN + 2 * i, 2)) for i in range(4)] + hvrest
    ho = ["s_xor_b32 s%d, s%d, 0x40000" % (sH1L, sH1L), "s_bfe_u32 s%d, s%d, 0x10001" % (sPH, S_STEP), "s_mov_b32 s%d, 0" % sCNT]
    if mg:
        k("s_add_u32 s%d, s%d, 1", sT, S_STEP); k("v_cmp_ge_u32 vcc, s%d, v1", sT)
        k("s_cbranch_vccnz %s", r_kv)
        k.L(b_kv)
        if o.get('qfc', 1):
            k("s_add_u32 s%d, s%d, %d", sT, S_STEP, o.get('qfm', 4)); k("v_cmp_ge_u32 vcc, s%d, v1", sT)
            k("s_or_b32 s%d, vcc_lo, vcc_hi", sSAFE)
    if not uni:
        k("s_cmp_ge_u32 s%d, 2", S_WAVE)
        k("s_cbranch_scc1 %s", lA2)
        warm([], [], o.get('p2a', 20))
        k.L(lA2)
    p2 = o.get('p2', [26, 30])
    warm(hv, ho, p2[0])
    assert not hv and not ho
    for l in lde(EB[0]): k(l)
    warm(hv, ho, p2[1])
    for l in lde(EB[1]): k(l)
    warm(hv, ho, o.get('w2', 15))
    k(".aw_all")
    k(".aw_off")
    if o.get('llog'):
        la = k.lab("ll")
        k("s_cmp_eq_u32 s%d, 16", S_STEP); k("s_cbranch_scc1 %sa", la)
        k("s_cmp_lg_u32 s%d, 56", S_STEP); k("s_cbranch_scc1 %s", lpoll)
        k("s_memtime s[66:67]"); k("s_branch %s", lpoll)
        k.L(la + "a"); k("s_memtime s[64:65]")
    k("s_branch %s", lpoll)
    if o.get('fx', 0):
        for i_, b_ in enumerate(EB):
            k.L(lX[i_])
            k("v_max_u32 %s, %s, %s", v(HT), v(b_ + 3), v(b_ + 7))
            k("v_cmp_eq_u32 vcc, -1, %s", v(HT))
            k("s_cbranch_vccz %s", lS[i_])
            k("s_cmp_lt_u32 s%d, s%d", sCNT, S_LIM)
            k("s_cbranch_scc1 %s", lX[i_] + "b")
            k("s_branch %s", lto)
    k.L(lto)
    k("s_mov_b32 s%d, 0", S_LIM)
    k("s_waitcnt vmcnt(0)")
    if o.get('opt', 0): k("ds_write_b128 %s, %s", v(aM[0]), v(MA, 4))
    k("s_branch %s", lS[0])
    k.L(rr1)
    if o.get('mask', 0): k("s_mov_b64 exec, vcc")
    for l in h1lb(H1B): k(l)
    if o.get('mask', 0): k("s_mov_b64 exec, -1")
    if tk: k("s_add_u32 s98, s98, 1")
    spin(H1 + 7, o.get('ns1', 24), ar1)
    k.L(ar1)
    k("s_waitcnt vmcnt(2)")
    for l in red: k(l)
    k("s_cbranch_vccz %s", ok1)
    if o.get('mask', 0): k("s_mov_b64 exec, vcc")
    for l in h1l: k(l)
    if o.get('mask', 0): k("s_mov_b64 exec, -1")
    if tk: k("s_add_u32 s96, s96, 1")
    k("s_add_u32 s%d, s%d, 1", sCNT, sCNT)
    k("s_cmp_lt_u32 s%d, s%d", sCNT, S_LIM)
    k("s_cbranch_scc1 %s", lp1)
    k("s_mov_b32 s%d, 0", S_LIM)
    k("s_branch %s", ok1)
    if mg and o.get('qfc', 1):
        k.L(r_qf)
        for x in fl[1]: k(x)
        k("s_branch %s", b_qf)
    if mg:
        k.L(r_kv)
        kv_refresh(k, 1, b_kv)
    k.L(r_sm)
    k("v_max3_f32 %s, %s, %s, %s", v(X), v(T1), v(T1 + 1), v(T1 + 2))
    k("v_max3_f32 %s, %s, %s, %s", v(X), v(T1 + 3), v(T2), v(X))
    k("v_max3_f32 %s, %s, %s, %s", v(X), v(T2 + 1), v(T2 + 2), v(X))
    k("v_max3_f32 %s, %s, %s, %s", v(X), v(T2 + 3), v(T0 + 2), v(X))
    k("v_max_f32 %s, %s, %s", v(X), v(T0 + 3), v(X))
    xmax(k, X, X + 1)
    for r in [T1 + i for i in range(8)] + [T0 + 2, T0 + 3]: k("v_sub_f32 %s, %s, %s", v(r), v(r), v(X))
    for i in range(8): k(EX(E + i, T1 + i))
    k(EX(T0, T0 + 2)); k(EX(T0 + 1, T0 + 3))
    for i in range(4): k(CV(E + i, E + 2 * i, E + 2 * i + 1))
    k(CV(PM, T0, T0 + 1)); k(CV(PM + 3, T0, T0 + 1))
    pv(k, False)
    k("s_mov_b32 s%d, 0x7f800000", sTHR)
    k("v_rcp_f32 %s, %s", v(LA), v(LA))
    k("v_rcp_f32 %s, %s", v(LA + 1), v(LA + 1))
    k("s_waitcnt lgkmcnt(0)")
    k("s_branch %s", b_sm)
    k.L(lexit)
    k(stkvm)
    k("s_cmp_lt_u32 s%d, 63", S_STEP)
    k("s_cbranch_scc1 %s", bexit)
    k("s_waitcnt lgkmcnt(0)")

def role_chain(k, force_slow=False):
    mg = getattr(k, 'merged', False)
    srds = (('Wq', S_WQ), ('Wk', S_WK), ('Wv', S_WV), ('Wo', S_WO), ('mem0', 56))
    for n, r in srds: load_srd(k, n, r)
    def after_first(k):
        for n, r in srds[1:] + (('ws', S_WS), ('dbg', S_DBG)): fin_srd(k, n, r)
        chain_setup(k)
        merged_setup(k)
        k("s_mov_b32 s%d, 0", S_STEP)
    W = s(S_WS, 4)
    def h_arm(k):
        chain_arm(k)
        k("v_lshrrev_b32 v104, 1, v90")
        k("v_and_b32 v104, 6, v104")
        k("v_and_b32 v105, 1, v1")
        k("v_add_u32 v104, v104, v105")
        k("v_lshlrev_b32 v104, 10, v104")
        k("v_lshrrev_b32 v105, 1, v91")
        k("v_lshl_add_u32 v104, v105, 6, v104")
        k("v_and_b32 v105, 1, v91")
        k("v_lshl_add_u32 v104, v105, 4, v104")
        k("s_lshl_b32 s%d, s%d, 8", sT, S_WAVE)
        for j in range(2):
            k("buffer_load_dwordx4 %s, v104, %s, s%d offen offset:%d", v(40 + 8 * j, 4), s(56, 4), sT, j * 128)
            k("buffer_load_dwordx4 %s, v104, %s, s%d offen offset:%d", v(44 + 8 * j, 4), s(56, 4), sT, j * 128 + 32)
        k("v_mov_b32 v107, 0")
        k("buffer_load_dword v118, v107, %s, 0 offen offset:%d sc1", s(S_DBG, 4), DBG_T)
        return 10
    lwarm = k.lab("CW"); lwend = k.lab("CWe")
    def h_mem0(k):
        lt = k.lab("CT"); lt2 = k.lab("CT2")
        k("v_cmp_eq_u32 vcc, 0, v118")
        k("s_cbranch_vccz %s", lt)
        wait_ready(k, 118, DBG_T)
        k.L(lt)
        k("v_readfirstlane_b32 s%d, v118", sT)
        k("s_cmp_lg_u32 s%d, s54", sT)
        k("s_cselect_b32 s100, 2, 1")
        k("s_cbranch_scc0 %s", lt2)
        k("s_cmp_eq_u32 s101, 0")
        k("s_cbranch_scc1 %s", k.lswap)
        k.L(lt2)
        k("v_and_b32 v105, 2, v1")
        k("v_mul_u32_u24 v105, 0x10101, v105")
        k("v_and_b32 v106, 2, v1")
        k("v_lshl_add_u32 v105, v106, 24, v105")
        k("v_add_u32 v105, 0x05040100, v105")
        for j in range(2):
            for i in range(4):
                k("v_perm_b32 %s, %s, %s, v105", v(MA + 4 * j + i), v(44 + 8 * j + i), v(40 + 8 * j + i))
        n = 0
        if k.copt.get('cwarm', 1):
            lpc = k.lab("pc")
            k("s_getpc_b64 s[60:61]")
            k.L(lpc)
            k("s_add_u32 s60, s60, %s-%s", lwarm, lpc)
            k("s_addc_u32 s61, s61, 0")
            k("s_lshl_b32 s%d, s%d, 13", sT, S_WAVE)
            k("v_lshlrev_b32 v104, 7, v1")
            k("v_min_u32 v105, %s-%s-4, v104", lwend, lwarm)
            k("global_load_dword v116, v105, s[60:61]")
            k("v_add_u32 v104, 0x2000, v104")
            k("v_min_u32 v105, %s-%s-4, v104", lwend, lwarm)
            k("global_load_dword v117, v105, s[60:61]")
            n += 2
        return n
    def h_rdy(k):
        k("buffer_load_dword v108, v107, %s, 0 offen offset:%d sc1", s(S_DBG, 4), DBG_READY)
        return 1
    def h_done(k):
        announce(k, 64)
        return 1
    def announce(k, off=0):
        k("v_mov_b32 v106, s100")
        k("s_lshl_b32 s%d, s%d, 30", sT, S_WAVE)
        k("s_lshr_b32 s%d, s%d, 1", sCNT, sT)
        k("s_or_b32 s%d, s%d, s%d", sT, sT, sCNT)
        k("s_and_b32 s%d, s%d, 0x40000000", sT, sT)
        k("v_mov_b32 v105, 0x40000000")
        k("v_cmp_eq_u32 vcc, 0, v108")
        k("v_mov_b32 v104, s%d", sT)
        k("v_cndmask_b32 v105, v104, v105, vcc")
        k("buffer_store_dword v106, v105, %s, s%d offen offset:%d sc1", W, sKF, off)
    def h_announce(k):
        announce(k)
        return 1
    def h_qf(k):
        k("buffer_load_dword v109, %s, %s, s%d offen sc1", v(aFL), W, sQF)
        return 1
    def h_warm(k):
        n = 0
        for base, x in ((sH1L, 0), (sH1L, 0x40000), (sH2L, 0), (sH2L, 0x2000)):
            k("s_xor_b32 s%d, s%d, 0x%x", sT, base, x)
            for off in (0, 1024):
                k("buffer_load_dwordx4 v[112:115], %s, %s, s%d offen offset:%d sc1", v(aL16), W, sT, off)
                n += 1
        return n
    def h_flags(k): return h_qf(k) + h_warm(k)
    def h_pf(k):
        k("s_waitcnt vmcnt(%d)", 16 + {0: 0, 1: 9, 2: 1, 3: 8, 4: 0}[k.copt.get('hv', 0)])
        k("v_cmp_eq_u32 vcc, 0, v108")
        k("s_or_b32 s%d, vcc_lo, vcc_hi", sSAFE)
        k("v_cmp_ge_u32 vcc, 1, v109")
        k("s_or_b32 s%d, s%d, vcc_lo", sSAFE, sSAFE)
        for p in range(4):
            for l in PFK(p): k(l)
        k("v_and_b32 v111, 31, v1")
        k("v_lshlrev_b32 v111, 7, v111")
        k("s_mov_b32 s63, 0x%x", FLAGS + F_KF)
        k("buffer_load_dword v110, v111, %s, s63 offen sc1", W)
        return 5
    def h3(k): return h_mem0(k) + h_announce(k)
    hv_ = k.copt.get('hv', 0)
    if hv_ == 0: hooks = {-1: h_arm, 1: h_rdy, 2: h_mem0, 4: h_announce, 5: h_flags, 7: h_pf}
    elif hv_ == 1: hooks = {-1: h_arm, 1: h_rdy, 2: h_mem0, 5: h_qf, 6: (lambda k: h_announce(k) + h_warm(k)), 7: h_pf}
    elif hv_ >= 2: hooks = {-1: h_arm, 1: h_rdy, 2: h_mem0, 5: h_qf, 6: h_announce, 7: (lambda k: h_pf(k) + h_warm(k))}
    pre = {}
    if k.copt.get('qp') is not None: pre[k.copt.get('qph', 5)] = h_done
    if hv_ == 3: hooks = {-1: h_arm}; pre = {0: h_rdy, 1: h_mem0, 2: h_announce, 3: h_qf, 4: h_warm, 5: h_pf}
    if hv_ == 4: hooks = {-1: h_arm}; pre = {0: h_rdy, 1: h_mem0, 2: h_announce, 3: h_warm, 4: h_qf, 6: h_pf}
    chain_load_weights(k, hooks, pre, after_first)
    stamp(k, 2, 1, wgreg=S_HEAD, vt=120)
    if k.copt.get('dst'): k("s_memrealtime s[94:95]")
    if mg:
        lok = k.lab("CHf")
        k("s_cmp_eq_u32 s%d, 0", sSAFE)
        k("s_cbranch_scc1 %s", lok)
        wait_ready(k, 108)
        announce(k)
        announce(k, 64)
        k("v_mov_b32 v110, 0")
        kv_refresh(k, 1)
        for p in range(4):
            for l in PFK(p): k(l)
        k.L(lok)
    k("s_mov_b32 s%d, 1", sSAFE)
    k("s_mov_b32 s%d, 0x42700000", sTHR)
    for l in PFK(4): k(l)
    k("s_waitcnt vmcnt(0)")
    k("v_mov_b32 %s, v110", v(KVM)); k("v_mov_b32 %s, v111", v(KVM + 1))
    for n in range(4):
        k(WVR(n, 0)); k(WVR(n, 1))
    for i in range(24): k("v_mov_b32 %s, 0", v(AQ + i))
    lp = k.lab("CHs"); ok = k.lab("CHok")
    k("s_mov_b32 s%d, 0", sCNT)
    k.L(lp)
    k("v_cmp_eq_u32 vcc, 0, %s", v(KVM))
    k("s_cbranch_vccz %s", ok)
    k("s_sleep 2")
    k("buffer_load_dword %s, %s, %s, s63 offen sc1", v(KVM), v(KVM + 1), W)
    k("s_waitcnt vmcnt(0)")
    k("s_add_u32 s%d, s%d, 1", sCNT, sCNT)
    k("s_cmp_lt_u32 s%d, s%d", sCNT, S_LIM)
    k("s_cbranch_scc1 %s", lp)
    k("s_mov_b32 s%d, 0", S_LIM)
    k.L(ok)
    k("v_cmp_ne_u32 vcc, 1, %s", v(KVM))
    k("s_or_b32 s44, vcc_lo, vcc_hi")
    for i in range(8): k("v_mov_b32 %s, %s", v(VT + i), v(VTN + i))
    k("s_waitcnt lgkmcnt(0)")
    stamp(k, 2, 2, wgreg=S_HEAD, vt=56)
    if k.copt.get('dst'): k("s_memrealtime s[96:97]"); k("s_waitcnt lgkmcnt(0)")
    stamp(k, 2, 4, wgreg=S_HEAD, vt=56, cyc=True)
    tick_init(k)
    if k.copt.get('plog2'):
        k("s_lshl_b32 s100, s%d, 2", S_HEAD)
        k("s_add_u32 s100, s100, s%d", S_WAVE)
        k("s_lshl_b32 s100, s100, 9")
        k("s_add_u32 s100, s100, 0x%x", TS + 8 * 65536)
    k("s_mov_b32 m0, s%d", sKTD)
    k("v_mov_b32 v1, 0")
    lslow = k.lab("CHslow"); ldone = k.lab("CHdone")
    k("s_cmp_lg_u32 s44, %d", 0 if not force_slow else 77)
    k("s_cbranch_scc1 %s", lslow)
    n0 = len(k.lines)
    k.L(lwarm)
    chain_loop(k, "", "F")
    k.L(lwend)
    o = getattr(k, 'copt', {})
    if o.get('free'):
        body = k.lines[n0:]; out = []
        for l in body:
            ls = l.strip()
            if 's100' in ls: out.append(l); continue
            if ls.startswith('s_cbranch_vccnz'): continue
            if ls.startswith('s_cbranch_vccz Fs0v'): l = l.replace('s_cbranch_vccz', 's_branch')
            if ls.startswith('s_cbranch_scc1 Frsm'): continue
            if 'novmem' in o['free'] and (ls.startswith('buffer_') or 'vmcnt' in ls): continue
            if 'nowait' in o['free'] and 'vmcnt' in ls: continue
            out.append(l)
        k.lines[n0:] = out
    k("s_branch %s", ldone)
    k.L(lslow)
    chain_loop(k, "sc1", "S")
    k.L(ldone)
    if k.copt.get('plog'):
        k("s_lshl_b32 s100, s%d, 2", S_HEAD)
        k("s_add_u32 s100, s100, s%d", S_WAVE)
        k("s_lshl_b32 s100, s100, 8")
        k("s_add_u32 s100, s100, 0x%x", TS + 8 * 65536)
        k("v_lshrrev_b32 v40, 2, %s", v(aL16))
        k("buffer_store_dword v1, v40, %s, s100 offen", s(S_WS, 4))
    if k.copt.get('llog'):
        k("s_sub_u32 s64, s66, s64"); k("v_mov_b32 v40, s64"); k("v_mov_b32 v41, 0")
        k("s_lshl_b32 s65, s%d, 4", S_HEAD); k("s_lshl_b32 s66, s%d, 2", S_WAVE); k("s_add_u32 s65, s65, s66"); k("s_add_u32 s65, s65, 0x%x", TS + 8 * 65536)
        k("buffer_store_dword v40, v41, %s, s65 offen", s(S_WS, 4))
    tick_dump(k)
    k("s_waitcnt vmcnt(0)")
    stamp(k, 2, 3, wgreg=S_HEAD, vt=56)
    dstamp(k, 7, 56); dstamp(k, 5, 56, False, 94); dstamp(k, 6, 56, False, 96); dstamp(k, 3, 56, True, 98)
    stamp(k, 2, 5, wgreg=S_HEAD, vt=56, cyc=True)
```
